```python
import torch

def _softmax(x, axis=-1):
    return torch.softmax(x, dim=axis)
def _gelu(x):
    return torch.nn.functional.gelu(x, approximate="tanh")
def _silu(x):
    return torch.nn.functional.silu(x)
def _sigmoid(x):
    return torch.sigmoid(x)
def _layernorm(x, axis=-1, eps=1e-5):
    m = x.mean(dim=axis, keepdim=True)
    v = x.var(dim=axis, keepdim=True, unbiased=False)
    return (x - m) / torch.sqrt(v + eps)
def _scatter_add(tgt, idx, src, axis=0):
    return tgt.clone().index_add_(axis, idx, src)
def _segment_sum(src, seg, n):
    out = torch.zeros((n,) + src.shape[1:], dtype=src.dtype)
    return out.index_add_(0, seg, src)
def _pad(x, pw):
    flat = tuple(v for pair in reversed(pw) for v in pair)
    return torch.nn.functional.pad(x, flat)

kernel_name = 'gated_mix__ssm_conv_s4d__mha_block__prompt'

def setup_inputs():

    _w = (lambda a: (lambda t: t.to(torch.bfloat16) if t.is_floating_point() else t)(torch.as_tensor(a)))
    def _A_setup():
        Bsz, L, D, N = 1, 2048, 576, 128
        return {
            "u": _w((lambda *s: torch.randn(*s, dtype=torch.bfloat16) * 0.05)(Bsz, L, D)),
            "log_A_real": _w((lambda *s: torch.randn(*s, dtype=torch.bfloat16) * 6.4)(D, N) * 0.5),
            "A_imag": _w((lambda *s: torch.randn(*s, dtype=torch.bfloat16) * 0.1)(D, N) * 3.14),
            "C_real": _w((lambda *s: torch.randn(*s, dtype=torch.bfloat16) * 0.4)(D, N) / N ** 0.5),
            "C_imag": _w((lambda *s: torch.randn(*s, dtype=torch.bfloat16) * 0.4)(D, N) / N ** 0.5),
            "log_dt": _w((lambda *s: torch.randn(*s, dtype=torch.bfloat16) * 0.1)(D) * 0.5 - 4.0),
            "D_skip": _w((lambda *s: torch.randn(*s, dtype=torch.bfloat16) * 0.1)(D)),
        }
    _A_in = _A_setup()

    def _B_setup():
        B, S, D, H = 1, 2048, 576, 32
        return {
            "x": _w((lambda *s: torch.randn(*s, dtype=torch.bfloat16) * 0.05)(B, S, D)),
            "wqkv": _w((lambda *s: torch.randn(*s, dtype=torch.bfloat16) * 0.8)(D, 3 * D)),
            "wo": _w((lambda *s: torch.randn(*s, dtype=torch.bfloat16) * 0.05)(D, D)),
        }
    _B_in = _B_setup()

    return {
        "A_u": _A_in["u"],
        "A_log_A_real": _A_in["log_A_real"],
        "A_A_imag": _A_in["A_imag"],
        "A_C_real": _A_in["C_real"],
        "A_C_imag": _A_in["C_imag"],
        "A_log_dt": _A_in["log_dt"],
        "A_D_skip": _A_in["D_skip"],
        "B_x": _B_in["x"],
        "B_wqkv": _B_in["wqkv"],
        "B_wo": _B_in["wo"],
        "gate_w": _w((lambda *s: torch.randn(*s, dtype=torch.bfloat16) * 0.05)(576) * 16.0),
    }

def reference(A_u, A_log_A_real, A_A_imag, A_C_real, A_C_imag, A_log_dt, A_D_skip, B_x, B_wqkv, B_wo, gate_w):
    def _A_ref(u, log_A_real, A_imag, C_real, C_imag, log_dt, D_skip):
        L = u.shape[1]
        dt = torch.exp(log_dt)
        A = -torch.exp(log_A_real) + 1j * A_imag
        C = (C_real + 1j * C_imag) * dt[:, None]
        pos = (lambda x, dt: x.to(dt))(torch.arange(L), log_dt.dtype)
        P = torch.exp((A * dt[:, None])[:, :, None] * pos[None, None, :])
        K = 2.0 * torch.einsum("dn,dnl->dl", C, P).real
        L2 = 2 * L
        u_t = (lambda x, *d: x.permute(*d))(u, 0, 2, 1)
        Kf = (lambda x, *a, **k: torch.fft.rfft(x.float(), *a, **k))(K, L2)
        Uf = (lambda x, *a, **k: torch.fft.rfft(x.float(), *a, **k))(u_t, L2)
        y = (lambda x, *a, **k: torch.fft.irfft(x, *a, **k).to(torch.bfloat16))(Uf * Kf[None, :, :], L2)[:, :, :L]
        y = (lambda x, *d: x.permute(*d))(y, 0, 2, 1)
        return y + u * D_skip[None, None, :]

    def _B_ref(x, wqkv, wo):
        B, S, D = x.shape
        H = 32
        Dh = D // H
        qkv = (lambda x, *d: x.permute(*d))((x @ wqkv).reshape(B, S, 3, H, Dh), 2, 0, 3, 1, 4)
        q, k, v = qkv[0], qkv[1], qkv[2]
        scores = torch.einsum("bhqd,bhkd->bhqk", q, k) * (Dh ** -0.5)
        p = _softmax(scores, axis=-1)
        o = torch.einsum("bhqk,bhkd->bhqd", p, v)
        return (lambda x, *d: x.permute(*d))(o, 0, 2, 1, 3).reshape(B, S, D) @ wo

    x = A_u
    g = _sigmoid((x * gate_w).sum(-1, keepdims=True))
    a = _A_ref(x, A_log_A_real, A_A_imag, A_C_real, A_C_imag, A_log_dt, A_D_skip)
    b = _B_ref(x, B_wqkv, B_wo)
    return g * a + (1 - g) * b
```

```python
class Asm:
    def __init__(self):
        self.lines = []
        self.nlabel = 0
    def __call__(self, s):
        for ln in s.split("\n"):
            ln = ln.strip()
            if ln:
                self.lines.append(ln if ln.endswith(":") else "    " + ln)
    def c(self, s):
        self.lines.append("    ; " + s)
    def label(self, base):
        self.nlabel += 1
        return f"L_{base}_{self.nlabel}"
    def text(self):
        return "\n".join(self.lines) + "\n"

def vr(b, n=1):
    return f"v{b}" if n == 1 else f"v[{b}:{b+n-1}]"
def sr(b, n=1):
    return f"s{b}" if n == 1 else f"s[{b}:{b+n-1}]"

class Regs:
    def __init__(self, start, limit):
        self.p = start; self.limit = limit; self.hi = start
    def alloc(self, n=1, align=None):
        if align is None:
            align = 1 if n == 1 else 2
        self.p = (self.p + align - 1) // align * align
        b = self.p
        self.p += n
        assert self.p <= self.limit, f"register overflow {self.p} > {self.limit}"
        self.hi = max(self.hi, self.p)
        return b
    def mark(self): return self.p
    def release(self, m): self.p = m
```

```python
from asmlib import *
from layout import *
import math, struct

S_WAVE = 3
P_U, P_LA, P_AI, P_CR, P_CI, P_DT, P_D = 16, 18, 20, 22, 24, 26, 28
P_W, P_WO, P_G, P_OUT, P_DBG, P_WS = 32, 34, 36, 38, 40, 42
R_X, R_W, R_WS, R_A, R_B, R_C, R_D = 44, 48, 52, 56, 60, 64, 68

def srd(a, r, p, nbytes):
    a(f"s_mov_b32 s{r}, s{p}\ns_mov_b32 s{r+1}, s{p+1}\ns_mov_b32 s{r+2}, {nbytes}\ns_mov_b32 s{r+3}, 0x20000")

def common_head(a, endlabel):
    a(f"""
    s_cmp_ge_u32 s2, 256
    s_cbranch_scc1 {endlabel}
    s_load_dwordx16 s[16:31], s[0:1], 0
    s_load_dwordx8 s[32:39], s[0:1], 64
    s_load_dwordx4 s[40:43], s[0:1], 96
    v_lshrrev_b32 v2, 6, v0
    v_and_b32 v1, 63, v0
    v_readfirstlane_b32 s{S_WAVE}, v2
    """)

LOG2E = 1.4426950408889634
def f32r(x): return struct.unpack("<f", struct.pack("<f", x))[0]
L_HI = f32r(LOG2E); L_LO = f32r(LOG2E - L_HI)
I2PI = 1.0 / (2 * math.pi)
I_HI = f32r(I2PI); I_LO = f32r(I2PI - I_HI)
LN2 = math.log(2.0)

SLOT = 32768
KG_BASE = 4 * SLOT
KG_STRIDE = 5376
NBAR1 = 9

def gemm_waves(a, st_flags=""):
    sRB, sCT, sJ, sT, sW2, sS0, sS1, sJ0, sU, sTP = 4, 5, 6, 7, 8, 9, 10, 11, 12, 13
    sM = 72
    R = Regs(4, 128)
    t0, t1, t2, t3 = [R.alloc() for _ in range(4)]
    vXs0, vXs1, vWs = R.alloc(), R.alloc(), R.alloc()
    vXa = [[R.alloc() for _ in range(4)] for _ in range(2)]
    vWa = [R.alloc(), R.alloc()]
    vU0, vU1, vUs = R.alloc(), R.alloc(), R.alloc()
    FX = [[R.alloc(4, 4), R.alloc(4, 4)] for _ in range(2)]
    FW = [R.alloc(4, 4) for _ in range(2)]
    ACC = [R.alloc(16, 4), R.alloc(16, 4)]
    UT = R.alloc(4, 4)
    ST = R.alloc(8, 4)
    a.c("---- GEMM waves: address setup")
    a(f"""
    s_and_b32 s{sU}, s{S_WAVE}, 3
    s_lshr_b32 s{sTP}, s{S_WAVE}, 2
    s_lshl_b32 s{sW2}, s{S_WAVE}, 11
    v_lshrrev_b32 v{t0}, 3, v1
    s_lshl_b32 s{sT}, s{sRB}, 3
    s_add_u32 s{sT}, s{sT}, s{S_WAVE}
    s_lshl_b32 s{sT}, s{sT}, 4
    v_add_u32 v{t1}, s{sT}, v{t0}
    v_mul_u32_u24 v{t1}, 1152, v{t1}
    v_lshrrev_b32 v{t2}, 4, v1
    v_and_b32 v{t3}, 7, v1
    v_xor_b32 v{t3}, v{t3}, v{t2}
    v_lshl_add_u32 v{vXs0}, v{t3}, 4, v{t1}
    v_xor_b32 v{t3}, 4, v{t3}
    v_lshl_add_u32 v{vXs1}, v{t3}, 4, v{t1}
    v_add_u32 v{vXs1}, {8*1152-1024}, v{vXs1}
    v_and_b32 v{t0}, 15, v1
    v_lshlrev_b32 v{t1}, 2, v{t2}
    v_xor_b32 v{t0}, v{t0}, v{t1}
    v_lshrrev_b32 v{t1}, 2, v{t0}
    v_and_b32 v{t0}, 3, v{t0}
    v_cmp_eq_u32 vcc, 3, v{t1}
    v_mul_u32_u24 v{t1}, 72, v{t1}
    v_lshrrev_b32 v{t3}, 1, v{t0}
    v_mul_u32_u24 v{t3}, 40, v{t3}
    v_add_u32 v{t1}, v{t1}, v{t3}
    v_and_b32 v{t3}, 1, v{t0}
    v_lshl_add_u32 v{t1}, v{t3}, 4, v{t1}
    v_min_u32 v{t0}, 2, v{t0}
    v_mul_u32_u24 v{t0}, 72, v{t0}
    v_add_u32 v{t0}, 32, v{t0}
    v_cndmask_b32 v{t1}, v{t1}, v{t0}, vcc
    s_lshl_b32 s{sT}, s{S_WAVE}, 3
    v_add_u32 v{t2}, s{sT}, v{t2}
    v_mul_u32_u24 v{t2}, 3456, v{t2}
    s_mul_i32 s{sT}, s{sCT}, 216
    v_add3_u32 v{vWs}, v{t1}, v{t2}, s{sT}
    s_mov_b32 s{sM}, {0xffffffff ^ (1<<15) ^ (1<<27)}
    s_mov_b32 s{sM+1}, {0xffffffff ^ (1<<7) ^ (1<<19)}
    s_mov_b32 s{sJ}, s{sJ0}
    s_waitcnt lgkmcnt(0)
    """)
    srd(a, R_X, P_U, X_BYTES); srd(a, R_W, P_W, W_BYTES); srd(a, R_WS, P_WS, WS_BYTES)
    def issue(it):
        base = (it & 3) * SLOT
        a(f"""
        s_add_u32 m0, s{sW2}, {base}
        s_lshl_b32 s{sT}, s{sJ}, 7
        buffer_load_dwordx4 v{vXs0}, s[{R_X}:{R_X+3}], s{sT} offen lds
        buffer_load_dwordx4 v{vXs1}, s[{R_X}:{R_X+3}], s{sT} offen offset:1024 lds
        s_add_u32 m0, s{sW2}, {base+16384}
        s_mul_i32 s{sT}, s{sJ}, {64*3456}
        s_mov_b64 exec, s[{sM}:{sM+1}]
        buffer_load_dwordx4 v{vWs}, s[{R_W}:{R_W+3}], s{sT} offen lds
        s_add_u32 s{sT}, s{sT}, {4*3456-1024}
        buffer_load_dwordx4 v{vWs}, s[{R_W}:{R_W+3}], s{sT} offen offset:1024 lds
        s_mov_b64 exec, -1
        s_add_u32 s{sJ}, s{sJ}, 1
        s_cmp_eq_u32 s{sJ}, 9
        s_cselect_b32 s{sJ}, 0, s{sJ}
        """)
    for it in range(4):
        issue(it)
    a.c("fragment read addresses")
    a(f"""
    v_and_b32 v{t0}, 31, v1
    v_lshrrev_b32 v{t1}, 5, v1
    v_bfe_u32 v{t2}, v1, 1, 3
    v_xor_b32 v{t2}, v{t2}, v{t1}
    v_lshlrev_b32 v{t2}, 4, v{t2}
    v_lshl_add_u32 v{t2}, v{t0}, 7, v{t2}
    s_lshl_b32 s{sT}, s{sTP}, 13
    v_add_u32 v{vXa[0][0]}, s{sT}, v{t2}
    """)
    for ks in range(1, 4):
        a(f"v_xor_b32 v{vXa[0][ks]}, {32*ks}, v{vXa[0][0]}")
    for ks in range(4):
        a(f"v_add_u32 v{vXa[1][ks]}, 0x10000, v{vXa[0][ks]}")
    a(f"""
    v_bfe_u32 v{t0}, v1, 2, 2
    v_lshl_add_u32 v{t2}, v{t1}, 3, v{t0}
    v_lshlrev_b32 v{t2}, 8, v{t2}
    v_xor_b32 v{t0}, s{sU}, v{t0}
    v_lshl_add_u32 v{t2}, v{t0}, 6, v{t2}
    v_and_b32 v{t0}, 1, v1
    v_lshlrev_b32 v{t0}, 4, v{t0}
    v_and_b32 v{t3}, 2, v1
    v_lshl_add_u32 v{t0}, v{t3}, 2, v{t0}
    v_and_b32 v{t3}, 16, v1
    v_lshl_add_u32 v{t0}, v{t3}, 1, v{t0}
    v_and_b32 v{t3}, 3, v1
    v_lshlrev_b32 v{t3}, 4, v{t3}
    s_cmp_eq_u32 s{sU}, 3
    s_cselect_b64 vcc, -1, 0
    v_cndmask_b32 v{t0}, v{t0}, v{t3}, vcc
    v_add_u32 v{vWa[0]}, v{t2}, v{t0}
    v_add_u32 v{vWa[1]}, 0x10000, v{vWa[0]}
    v_lshrrev_b32 v{t0}, 4, v1
    v_bfe_u32 v{t1}, v1, 2, 2
    v_lshl_add_u32 v{t2}, v{t0}, 3, v{t1}
    v_bfe_u32 v{t3}, v{t2}, 1, 3
    v_bfe_u32 v{t1}, v1, 1, 1
    v_xor_b32 v{t3}, v{t3}, v{t1}
    v_lshlrev_b32 v{t3}, 4, v{t3}
    v_lshl_add_u32 v{t3}, v{t2}, 7, v{t3}
    v_and_b32 v{t1}, 1, v1
    v_lshl_add_u32 v{t3}, v{t1}, 3, v{t3}
    s_lshl_b32 s{sT}, s{sU}, 12
    v_add_u32 v{vU0}, s{sT}, v{t3}
    v_xor_b32 v{vU1}, 32, v{vU0}
    v_add_u32 v{vU1}, 512, v{vU1}
    v_and_b32 v{t1}, 15, v1
    v_lshlrev_b32 v{t1}, 12, v{t1}
    v_lshl_add_u32 v{t1}, v{t0}, 4, v{t1}
    s_lshl_b32 s{sT}, s{sU}, 6
    v_add_u32 v{vUs}, s{sT}, v{t1}
    """)
    def ut_tasks(it):
        for rnd in range(2):
            skip = a.label("utskip")
            if rnd == 0:
                a(f"s_add_u32 s14, s{sS0}, s{sTP}")
            else:
                a(f"s_cmp_lg_u32 s{sTP}, 0\ns_cbranch_scc1 {skip}\ns_add_u32 s14, s{sS0}, 2")
            a(f"""
            s_cmp_ge_u32 s14, s{sS1}
            s_cbranch_scc1 {skip}
            s_lshr_b32 s15, s14, 2
            s_sub_u32 s15, s15, s{sJ0}
            s_cmp_lg_u32 s15, {it}
            s_cbranch_scc1 {skip}
            s_and_b32 s15, s14, 3
            s_lshl_b32 s15, s15, 5
            v_xor_b32 v{t0}, s15, v{vU0}
            v_xor_b32 v{t1}, s15, v{vU1}
            ds_read_b64_tr_b16 {vr(UT,2)}, v{t0} offset:{it*SLOT}
            ds_read_b64_tr_b16 {vr(UT+2,2)}, v{t1} offset:{it*SLOT}
            s_lshl_b32 s14, s14, 16
            s_lshl_b32 s15, s{sRB}, 8
            s_add_u32 s14, s14, s15
            s_add_u32 s14, s14, {UT_OFF}
            s_waitcnt lgkmcnt(0)
            buffer_store_dwordx4 {vr(UT,4)}, v{vUs}, s[{R_WS}:{R_WS+3}], s14 offen{st_flags}
            s_nop 1
            {skip}:
            """)
    def read_frags(s):
        it, ks = s >> 2, s & 3
        slot = it & 3
        hi, lo = slot >> 1, (slot & 1) * SLOT
        b = s & 1
        a(f"ds_read_b64_tr_b16 {vr(FW[b],2)}, v{vWa[hi]} offset:{lo+16384+ks*4096}")
        a(f"ds_read_b64_tr_b16 {vr(FW[b]+2,2)}, v{vWa[hi]} offset:{lo+16384+ks*4096+1024}")
        a(f"ds_read_b128 {vr(FX[b][0],4)}, v{vXa[hi][ks]} offset:{lo}")
        a(f"ds_read_b128 {vr(FX[b][1],4)}, v{vXa[hi][ks]} offset:{lo+4096}")
    a("s_waitcnt vmcnt(12)\ns_barrier")
    ut_tasks(0)
    read_frags(0)
    for s in range(36):
        it = s >> 2
        if s + 1 < 36:
            if (s + 1) & 3 == 0:
                nx = it + 1
                vm = 8 if nx <= 6 else (4 if nx == 7 else 0)
                a(f"s_waitcnt vmcnt({vm}) lgkmcnt(0)\ns_barrier")
                if it + 4 <= 8:
                    issue(it + 4)
                if nx == 1:
                    ut_tasks(1)
                read_frags(s + 1)
            else:
                read_frags(s + 1)
                a("s_waitcnt lgkmcnt(4)")
        else:
            a("s_waitcnt lgkmcnt(0)")
        b = s & 1
        for tt in range(2):
            c = "0" if s == 0 else vr(ACC[tt], 16)
            a(f"v_mfma_f32_32x32x16_bf16 {vr(ACC[tt],16)}, {vr(FW[b],4)}, {vr(FX[b][tt],4)}, {c}")
    a.c("---- GEMM epilogue")
    vL16, vVm, vQx, vKx, vVx = vXa[0][0], vXa[0][1], vXa[0][2], vXa[0][3], vXa[1][0]
    sTile, sP, sTy, sHd, sO, sSc, sB = 14, 15, 74, 75, 76, 77, 78
    a(f"""
    v_lshlrev_b32 v{vL16}, 4, v1
    v_and_b32 v{t0}, 31, v1
    v_lshrrev_b32 v{t1}, 2, v{t0}
    v_mul_u32_u24 v{t1}, 160, v{t1}
    v_and_b32 v{t2}, 3, v1
    v_lshl_add_u32 v{vVm}, v{t2}, 5, v{t1}
    v_lshrrev_b32 v{t3}, 5, v1
    v_lshl_add_u32 v{vVm}, v{t3}, 4, v{vVm}
    v_lshl_add_u32 v{vVx}, v{t2}, 3, v{t1}
    v_lshlrev_b32 v{vQx}, 2, v{t0}
    v_lshlrev_b32 v{vKx}, 3, v{t0}
    s_lshl_b32 s{sTile}, s{sRB}, 1
    s_add_u32 s{sTile}, s{sTile}, s{sTP}
    s_lshl_b32 s{sTile}, s{sTile}, 1
    """)
    Lx, Ldone = a.label("extras"), a.label("gdone")
    a(f"s_cmp_eq_u32 s{sU}, 3\ns_cbranch_scc1 {Lx}")
    a(f"""
    s_mul_i32 s{sP}, s{sCT}, 3
    s_add_u32 s{sP}, s{sP}, s{sU}
    s_lshr_b32 s{sTy}, s{sP}, 4
    s_and_b32 s{sHd}, s{sP}, 15
    s_lshl_b32 s{sHd}, s{sHd}, 1
    s_cmp_eq_u32 s{sTy}, 0
    s_cselect_b32 s{sSc}, {fbits(QSCALE)}, 1.0
    s_lshr_b32 s79, s{sTile}, 3
    s_mul_i32 s79, s79, {BLK}
    s_mul_i32 s80, s{sHd}, {8*BLK}
    s_add_u32 s79, s79, s80
    s_add_u32 s79, s79, {KV_OFF}
    s_and_b32 s80, s{sTile}, 7
    s_lshl_b32 s81, s80, 10
    s_add_u32 s81, s81, s79
    s_mul_i32 s80, s80, 1280
    s_add_u32 s80, s80, s79
    s_add_u32 s80, s80, {V_OFF}
    s_lshl_b32 s79, s{sHd}, 6
    s_add_u32 s79, s79, s{sTile}
    s_lshl_b32 s79, s79, 10
    s_mov_b32 s{sB}, {8*BLK}
    s_cmp_eq_u32 s{sTy}, 0
    s_cselect_b32 s{sO}, s79, s81
    s_cselect_b32 s{sB}, 0x10000, s{sB}
    s_movk_i32 s82, 1024
    s_cmp_eq_u32 s{sTy}, 2
    s_cselect_b32 s{sO}, s80, s{sO}
    s_cselect_b32 s82, 1280, s82
    s_cselect_b64 vcc, -1, 0
    v_cndmask_b32 v{t0}, v{vL16}, v{vVm}, vcc
    """)
    for tt in range(2):
        for i in range(16):
            a(f"v_mul_f32 v{ACC[tt]+i}, s{sSc}, v{ACC[tt]+i}")
        for p in range(2):
            dst = ST + 4 * p
            for i in range(4):
                a(f"v_cvt_pk_bf16_f32 v{dst+i}, v{ACC[tt]+8*p+2*i}, v{ACC[tt]+8*p+2*i+1}")
            if p == 0:
                a(f"buffer_store_dwordx4 {vr(dst,4)}, v{t0}, s[{R_WS}:{R_WS+3}], s{sO} offen{st_flags}")
            else:
                a(f"s_add_u32 s79, s{sO}, s{sB}")
                a(f"buffer_store_dwordx4 {vr(dst,4)}, v{t0}, s[{R_WS}:{R_WS+3}], s79 offen{st_flags}")
        if tt == 0:
            a(f"s_add_u32 s{sO}, s{sO}, s82")
    a(f"s_branch {Ldone}")
    a(f"{Lx}:")
    a(f"v_mov_b32 v{ST+1}, 0x3f80\nv_mov_b32 v{ST+3}, 0x3f80")
    for p in range(3):
        half = p & 1
        rb = 4 * (p >> 1)
        LK, LV, LN = a.label("xk"), a.label("xv"), a.label("xn")
        a(f"""
        s_mov_b32 exec_lo, {0 if half else -1}
        s_mov_b32 exec_hi, {-1 if half else 0}
        s_mul_i32 s{sP}, s{sCT}, 3
        s_add_u32 s{sP}, s{sP}, {p}
        s_lshr_b32 s{sTy}, s{sP}, 4
        s_and_b32 s{sHd}, s{sP}, 15
        s_lshl_b32 s{sHd}, s{sHd}, 1
        s_lshr_b32 s79, s{sTile}, 3
        s_mul_i32 s79, s79, {BLK}
        s_mul_i32 s80, s{sHd}, {8*BLK}
        s_add_u32 s79, s79, s80
        s_cmp_eq_u32 s{sTy}, 1
        s_cbranch_scc1 {LK}
        s_cmp_eq_u32 s{sTy}, 2
        s_cbranch_scc1 {LV}
        ; Q extras
        s_lshl_b32 s79, s{sHd}, 6
        s_add_u32 s79, s79, s{sTile}
        s_lshl_b32 s79, s79, 7
        s_add_u32 s79, s79, {QX_OFF}
        s_add_u32 s80, s79, 8192
        s_mov_b32 s{sSc}, {fbits(QSCALE)}
        """)
        for tt in range(2):
            for i in range(4):
                a(f"v_mul_f32 v{ACC[tt]+rb+i}, s{sSc}, v{ACC[tt]+rb+i}")
            a(f"v_cvt_pk_bf16_f32 v{ST+4+2*tt}, v{ACC[tt]+rb}, v{ACC[tt]+rb+1}")
            a(f"v_cvt_pk_bf16_f32 v{ST+5+2*tt}, v{ACC[tt]+rb+2}, v{ACC[tt]+rb+3}")
            a(f"buffer_store_dword v{ST+4+2*tt}, v{vQx}, s[{R_WS}:{R_WS+3}], s79 offen offset:{128*tt}{st_flags}")
            a(f"buffer_store_dword v{ST+5+2*tt}, v{vQx}, s[{R_WS}:{R_WS+3}], s80 offen offset:{128*tt}{st_flags}")
        a(f"s_branch {LN}")
        a(f"""{LK}:
        s_and_b32 s80, s{sTile}, 6
        s_lshl_b32 s80, s80, 7
        s_add_u32 s79, s79, s80
        s_add_u32 s79, s79, {KV_OFF+KX_OFF}
        s_add_u32 s80, s79, {8*BLK}
        """)
        a(f"v_cvt_pk_bf16_f32 v{ST+4}, v{ACC[0]+rb}, v{ACC[0]+rb+1}")
        a(f"v_cvt_pk_bf16_f32 v{ST+5}, v{ACC[1]+rb}, v{ACC[1]+rb+1}")
        a(f"v_cvt_pk_bf16_f32 v{ST+6}, v{ACC[0]+rb+2}, v{ACC[0]+rb+3}")
        a(f"v_cvt_pk_bf16_f32 v{ST+7}, v{ACC[1]+rb+2}, v{ACC[1]+rb+3}")
        a(f"buffer_store_dwordx2 {vr(ST+4,2)}, v{vKx}, s[{R_WS}:{R_WS+3}], s79 offen{st_flags}")
        a(f"buffer_store_dwordx2 {vr(ST+6,2)}, v{vKx}, s[{R_WS}:{R_WS+3}], s80 offen{st_flags}")
        a(f"s_branch {LN}")
        a(f"""{LV}:
        s_and_b32 s80, s{sTile}, 7
        s_mul_i32 s80, s80, 1280
        s_add_u32 s79, s79, s80
        s_add_u32 s79, s79, {KV_OFF+V_OFF+128}
        s_add_u32 s80, s79, {8*BLK}
        """)
        for tt in range(2):
            a(f"v_cvt_pk_bf16_f32 v{ST}, v{ACC[tt]+rb}, v{ACC[tt]+rb+1}")
            a(f"v_cvt_pk_bf16_f32 v{ST+2}, v{ACC[tt]+rb+2}, v{ACC[tt]+rb+3}")
            a(f"buffer_store_dwordx2 {vr(ST,2)}, v{vVx}, s[{R_WS}:{R_WS+3}], s79 offen offset:{1280*tt}{st_flags}")
            a(f"buffer_store_dwordx2 {vr(ST+2,2)}, v{vVx}, s[{R_WS}:{R_WS+3}], s80 offen offset:{1280*tt}{st_flags}")
            a("s_nop 1")
        a(f"{LN}:")
        a("s_nop 1")
    a(f"""
    s_cmp_lg_u32 s{sCT}, 0
    s_cbranch_scc1 {Ldone}
    s_mov_b32 exec_lo, 0
    s_mov_b32 exec_hi, -1
    s_lshl_b32 s79, s{sTile}, 7
    s_add_u32 s79, s79, {G_OFF}
    buffer_store_dword v{ACC[0]+4}, v{vQx}, s[{R_WS}:{R_WS+3}], s79 offen{st_flags}
    buffer_store_dword v{ACC[1]+4}, v{vQx}, s[{R_WS}:{R_WS+3}], s79 offen offset:128{st_flags}
    {Ldone}:
    s_mov_b64 exec, -1
    """)
    return R.hi

class Seg:
    def __init__(self): self.items = []
    def __call__(self, s):
        for ln in s.split("\n"):
            ln = ln.strip()
            if not ln: continue
            op = ln.split()[0]
            if ln.startswith(";"): c = 0
            elif op in ("v_exp_f32", "v_sin_f32", "v_cos_f32", "v_rcp_f32"): c = 8
            elif op.startswith("v_mfma"): c = 32
            elif op.startswith("ds_"): c = 8
            elif op == "s_waitcnt": c = 60
            else: c = 4
            self.items.append((ln, c))
    def must_barrier(self): self.items.append(("@BAR", 0))
    def nobar(self, on): self.items.append(("@NOBAR" if on else "@OKBAR", 0))
    def emit(self, a, nbar):
        must = sum(1 for l, _ in self.items if l == "@BAR")
        total = sum(c for _, c in self.items)
        per = total / (nbar + 1)
        used = 0; acc = 0; ok = True; must_left = must
        for ln, c in self.items:
            if ln == "@BAR":
                a("s_barrier"); used += 1; must_left -= 1; acc = 0; continue
            if ln == "@NOBAR": ok = False; continue
            if ln == "@OKBAR": ok = True; continue
            if ok and acc >= per and used + must_left < nbar:
                a("s_barrier"); used += 1; acc = 0
            a(ln); acc += c
        while used < nbar:
            a("s_barrier"); used += 1
        return total

def cmul(g, d, x, y, tmp):
    g(f"v_pk_mul_f32 {vr(tmp,2)}, {vr(x,2)}, {vr(y,2)} op_sel:[0,0] op_sel_hi:[0,1]")
    g(f"v_pk_fma_f32 {vr(d,2)}, {vr(x,2)}, {vr(y,2)}, {vr(tmp,2)} op_sel:[1,1,0] op_sel_hi:[1,0,1] neg_lo:[1,0,0]")

def kgen_waves(a, st_flags=""):
    sC, sMH, sBase, sT, sE, sL, sLlo, sI, sIlo, sLn2 = 4, 5, 6, 7, 8, 9, 10, 11, 12, 13
    R = Regs(4, 128)
    t = [R.alloc() for _ in range(6)]
    vWr, vRd = R.alloc(), R.alloc()
    vA2, vBh, vBl, vF = R.alloc(), R.alloc(), R.alloc(), R.alloc()
    vInv, vInvM, vBaseM = R.alloc(), R.alloc(), R.alloc()
    C = R.alloc(2)
    TM = R.alloc(2); PR = R.alloc(2)
    FY = R.alloc(32, 4); FXr = R.alloc(32, 4)
    pool = R.alloc(32, 4)
    Lskip, Lend = a.label("kgskip"), a.label("kgend")
    a(f"""
    s_sub_u32 s{sT}, s{S_WAVE}, 8
    s_mul_i32 s{sBase}, s{sT}, {KG_STRIDE}
    s_add_u32 s{sBase}, s{sBase}, {KG_BASE}
    s_lshr_b32 s{sC}, s{sT}, 1
    s_lshl_b32 s{sC}, s{sC}, 8
    s_add_u32 s{sC}, s{sC}, s2
    s_and_b32 s{sMH}, s{sT}, 1
    s_cmp_ge_u32 s{sC}, 576
    s_cbranch_scc1 {Lskip}
    s_lshl_b32 s{sT}, s{sC}, 1
    s_add_u32 s{sT}, s{sT}, s{sMH}
    s_lshl_b32 s{sT}, s{sT}, 7
    v_lshlrev_b32 v{t[0]}, 1, v1
    s_waitcnt lgkmcnt(0)
    """)
    srd(a, R_A, P_LA, P_BYTES); srd(a, R_B, P_AI, P_BYTES); srd(a, R_C, P_CR, P_BYTES); srd(a, R_D, P_CI, P_BYTES)
    srd(a, R_X, P_DT, 1152); srd(a, R_WS, P_WS, WS_BYTES)
    a(f"""
    buffer_load_ushort v{t[1]}, v{t[0]}, s[{R_A}:{R_A+3}], s{sT} offen
    buffer_load_ushort v{t[2]}, v{t[0]}, s[{R_B}:{R_B+3}], s{sT} offen
    buffer_load_ushort v{C}, v{t[0]}, s[{R_C}:{R_C+3}], s{sT} offen
    buffer_load_ushort v{C+1}, v{t[0]}, s[{R_D}:{R_D+3}], s{sT} offen
    s_lshl_b32 s{sT}, s{sC}, 1
    v_mov_b32 v{t[4]}, s{sT}
    buffer_load_ushort v{t[3]}, v{t[4]}, s[{R_X}:{R_X+3}], 0 offen
    s_mov_b32 s{sL}, {fbits(L_HI)}
    s_mov_b32 s{sLlo}, {fbits(L_LO)}
    s_mov_b32 s{sI}, {fbits(I_HI)}
    s_mov_b32 s{sIlo}, {fbits(I_LO)}
    s_mov_b32 s{sLn2}, {fbits(LN2)}
    v_lshlrev_b32 v{vWr}, 2, v1
    v_add_u32 v{vWr}, s{sBase}, v{vWr}
    v_and_b32 v{t[4]}, 15, v1
    v_mul_u32_u24 v{t[4]}, 272, v{t[4]}
    v_lshrrev_b32 v{t[5]}, 5, v1
    v_lshl_add_u32 v{t[4]}, v{t[5]}, 4, v{t[4]}
    v_add_u32 v{vRd}, s{sBase}, v{t[4]}
    s_lshl_b32 s{sT}, s{sMH}, 6
    s_sub_u32 s{sT}, 127, s{sT}
    v_sub_u32 v{t[4]}, s{sT}, v1
    v_lshlrev_b32 v{t[4]}, 4, v{t[4]}
    v_max_u32 v{t[5]}, 128, v{t[4]}
    v_cvt_f32_u32 v{t[5]}, v{t[5]}
    v_and_b32 v{vInv}, 0x7f800000, v{t[5]}
    v_sub_u32 v{vInv}, {261<<23 & 0xffffffff}, v{vInv}
    v_lshrrev_b32 v{t[5]}, 16, v{t[5]}
    v_subrev_u32 v{t[5]}, {0x4380-256}, v{t[5]}
    v_min_u32 v{t[5]}, v{t[5]}, v{t[4]}
    v_add_u32 v{vBaseM}, 0x4b000010, v{t[5]}
    v_cmp_eq_u32 vcc, 256, v{t[4]}
    s_nop 1
    v_cndmask_b32 v{vInvM}, v{vInv}, 1.0, vcc
    v_cmp_ne_u32 s[74:75], 0, v{t[4]}
    s_barrier
    """)
    g = Seg()
    def expbf(x, tmp1, tmp2):
        g(f"""
        v_lshlrev_b32 v{x}, 16, v{x}
        v_mul_f32 v{tmp1}, s{sL}, v{x}
        v_fma_f32 v{tmp2}, v{x}, s{sL}, -v{tmp1}
        v_exp_f32 v{tmp1}, v{tmp1}
        v_fma_f32 v{tmp2}, v{x}, s{sLlo}, v{tmp2}
        v_mul_f32 v{tmp2}, s{sLn2}, v{tmp2}
        v_fma_f32 v{x}, v{tmp1}, v{tmp2}, v{tmp1}
        v_cvt_pk_bf16_f32 v{x}, v{x}, v{x}
        v_and_b32 v{x}, 0xffff0000, v{x}
        """)
    g("s_waitcnt vmcnt(0)")
    expbf(t[3], t[4], t[5])
    expbf(t[1], t[4], t[5])
    g(f"""
    v_mul_f32 v{t[1]}, v{t[1]}, v{t[3]}
    v_mul_f32 v{vA2}, s{sL}, -v{t[1]}
    v_lshlrev_b32 v{t[2]}, 16, v{t[2]}
    v_mul_f32 v{t[2]}, v{t[2]}, v{t[3]}
    v_mul_f32 v{vBh}, s{sI}, v{t[2]}
    v_fma_f32 v{vBl}, v{t[2]}, s{sI}, -v{vBh}
    v_fma_f32 v{vBl}, v{t[2]}, s{sIlo}, v{vBl}
    v_lshlrev_b32 v{C}, 16, v{C}
    v_lshlrev_b32 v{C+1}, 16, v{C+1}
    v_max_f32 v{t[4]}, |v{C}|, |v{C+1}|
    """)
    g.nobar(True)
    for mod in ("row_shr:1", "row_shr:2", "row_shr:4", "row_shr:8", "row_bcast:15 row_mask:0xa", "row_bcast:31 row_mask:0xc"):
        g(f"s_nop 1\nv_max_u32_dpp v{t[4]}, v{t[4]}, v{t[4]} {mod}")
    g(f"""
    s_nop 1
    v_readlane_b32 s{sE}, v{t[4]}, 63
    s_nop 3
    s_lshr_b32 s{sE}, s{sE}, 23
    s_max_u32 s{sE}, s{sE}, 1
    s_min_u32 s{sE}, s{sE}, 252
    s_sub_u32 s{sT}, 253, s{sE}
    s_lshl_b32 s{sT}, s{sT}, 23
    v_mul_f32 v{C}, s{sT}, v{C}
    v_mul_f32 v{C+1}, s{sT}, v{C+1}
    s_add_u32 s{sE}, s{sE}, 2
    s_lshl_b32 s{sE}, s{sE}, 23
    v_mul_f32 v{vF}, s{sE}, v{t[3]}
    """)
    g.nobar(False)
    def cexp(d, p):
        fp = fbits(float(p))
        g(f"""
        v_mul_f32 v{t[4]}, {fp}, v{vBh}
        v_mul_f32 v{t[5]}, {fp}, v{vA2}
        v_fract_f32 v{t[4]}, v{t[4]}
        v_exp_f32 v{t[5]}, v{t[5]}
        v_fmac_f32 v{t[4]}, {fp}, v{vBl}
        v_cos_f32 v{d}, v{t[4]}
        v_sin_f32 v{d+1}, v{t[4]}
        v_mul_f32 v{d}, v{d}, v{t[5]}
        v_mul_f32 v{d+1}, v{d+1}, v{t[5]}
        """)
    cvtn = [0]
    def put(row, x, conj):
        tt = t[cvtn[0] & 3]; cvtn[0] += 1
        if x is None:
            g(f"v_mov_b32 v{tt}, 0x3c00")
        else:
            g(f"v_cvt_pk_f16_f32 v{tt}, v{x}, {'-' if conj else ''}v{x+1}")
        g(f"ds_write_b32 v{vWr}, v{tt} offset:{(row&15)*272}")
    def fragread(dst, upper):
        m = 0xffff0000 if upper else 0x0000ffff
        g.nobar(True)
        g(f"s_mov_b32 exec_lo, {m}\ns_mov_b32 exec_hi, {m}")
        for ks in range(8):
            g(f"ds_read_b128 {vr(dst+4*ks,4)}, v{vRd} offset:{32*ks}")
        g("s_mov_b64 exec, -1")
        g.nobar(False)
    P = [pool + 2 * i for i in range(16)]
    A1, A2, A3 = P[0], P[1], P[2]
    B = [None, P[3], P[4], P[5], P[6], P[7], P[8], P[9]]
    E256 = P[10]
    cexp(A1, 8); cmul(g, A2, A1, A1, TM); cmul(g, B[1], A2, A2, TM); cmul(g, A3, A1, A2, TM)
    cexp(B[2], 64); cmul(g, B[4], B[2], B[2], TM); cmul(g, E256, B[4], B[4], TM)
    cmul(g, B[3], B[1], B[2], TM)
    A = [None, A1, A2, A3]
    for j in range(32):
        if j == 16:
            fragread(FY, False)
            cmul(g, B[5], B[4], B[1], TM); cmul(g, B[6], B[4], B[2], TM); cmul(g, B[7], B[4], B[3], TM)
        x, y = A[j & 3], B[j >> 2]
        if x is None or y is None:
            put(j, x if y is None else y, True)
        else:
            cmul(g, PR, x, y, TM); put(j, PR, True)
    fragread(FY, True)
    E1, E2, E4, E512, E1024 = P[0], P[1], P[2], P[3], P[4]
    X2, X4, X6, X256, X260, X512, X768, X1024 = P[5], P[6], P[7], P[8], P[9], P[11], P[12], P[13]
    cexp(E1, 1); cmul(g, E2, E1, E1, TM); cmul(g, E4, E2, E2, TM)
    cexp(E512, 512); cmul(g, E1024, E512, E512, TM)
    put(0, C, False)
    cmul(g, PR, C, E1, TM); put(1, PR, False)
    cmul(g, X2, C, E2, TM); put(2, X2, False)
    cmul(g, PR, X2, E1, TM); put(3, PR, False)
    cmul(g, X4, C, E4, TM); put(4, X4, False)
    cmul(g, PR, X4, E1, TM); put(5, PR, False)
    cmul(g, X6, X4, E2, TM); put(6, X6, False)
    cmul(g, PR, X6, E1, TM); put(7, PR, False)
    cmul(g, X256, C, E256, TM); put(8, X256, False)
    cmul(g, PR, X2, E256, TM); put(9, PR, False)
    cmul(g, X260, X4, E256, TM); put(10, X260, False)
    cmul(g, PR, X6, E256, TM); put(11, PR, False)
    cmul(g, X512, C, E512, TM); put(12, X512, False)
    cmul(g, PR, X4, E512, TM); put(13, PR, False)
    cmul(g, X768, X256, E512, TM); put(14, X768, False)
    cmul(g, PR, X260, E512, TM); put(15, PR, False)
    fragread(FXr, False)
    cmul(g, X1024, C, E1024, TM); put(16, X1024, False)
    cmul(g, PR, X256, E1024, TM); put(17, PR, False)
    cmul(g, PR, X512, E1024, TM); put(18, PR, False)
    cmul(g, PR, X768, E1024, TM); put(19, PR, False)
    cmul(g, PR, X1024, E1024, TM); put(20, PR, False)
    fragread(FXr, True)
    ACC = pool
    g(f"""
    v_and_b32 v{t[0]}, 31, v1
    v_lshrrev_b32 v{t[1]}, 5, v1
    v_lshlrev_b32 v{t[2]}, 5, v{t[0]}
    v_lshl_add_u32 v{t[2]}, v{t[1]}, 4, v{t[2]}
    v_add_u32 v{t[2]}, s{sBase}, v{t[2]}
    v_cmp_eq_u32 vcc, 0, v{t[1]}
    v_lshlrev_b32 v{t[3]}, 4, v{t[0]}
    v_lshlrev_b32 v{t[4]}, 3, v{t[0]}
    v_add_u32 v{t[4]}, 512, v{t[4]}
    v_cndmask_b32 v{t[3]}, v{t[4]}, v{t[3]}, vcc
    v_add_u32 v{t[3]}, s{sBase}, v{t[3]}
    v_mul_u32_u24 v{t[4]}, 248, v{t[1]}
    v_add_u32 v{t[4]}, v{t[4]}, v{t[3]}
    v_lshlrev_b32 v{t[5]}, 2, v{t[0]}
    v_lshl_add_u32 v{t[5]}, v{t[1]}, 9, v{t[5]}
    v_add_u32 v{t[5]}, s{sBase}, v{t[5]}
    s_waitcnt lgkmcnt(0)
    """)
    g.nobar(True)
    for ks in range(8):
        c = "0" if ks == 0 else vr(ACC, 16)
        g(f"v_mfma_f32_32x32x16_f16 {vr(ACC,16)}, {vr(FXr+4*ks,4)}, {vr(FY+4*ks,4)}, {c}")
    g("s_nop 15")
    g.nobar(False)
    for i in range(12):
        g(f"v_mul_f32 v{ACC+i}, v{vF}, v{ACC+i}")
    g(f"""
    ds_write_b128 v{t[2]}, {vr(ACC,4)} offset:64
    ds_write_b64 v{t[3]}, {vr(ACC+4,2)} offset:{64+1024}
    ds_write_b64 v{t[4]}, {vr(ACC+6,2)} offset:{64+1024+8}
    """)
    for r in range(4):
        g(f"ds_write_b32 v{t[5]}, v{ACC+8+r} offset:{64+2048+128*r}")
    g(f"""
    s_mul_i32 s{sT}, s{sMH}, {KG_STRIDE}
    s_sub_u32 s{sT}, s{sBase}, s{sT}
    s_sub_u32 s{sT}, s{sT}, {0x2c000000}
    """)
    AD = FXr; VAL = FY
    VAL = [FY + 2 * i for i in range(16)] + [FXr + 20]
    for i in range(17):
        r = 15 - i
        inv = vInv if r >= 0 else vInvM
        g(f"v_fmamk_f32 v{AD+i}, v{inv}, {fbits(float(r))}, v{vBaseM}")
        g(f"v_lshl_add_u32 v{AD+i}, v{AD+i}, 2, s{sT}")
    g("s_waitcnt lgkmcnt(0)")
    g.must_barrier()
    for i in range(17):
        g(f"ds_read2st64_b32 {vr(VAL[i],2)}, v{AD+i} offset0:0 offset1:{KG_STRIDE//256}")
    g(f"""
    v_lshlrev_b32 v{t[0]}, 5, v1
    s_mul_i32 s{sT}, s{sC}, {2*KE_STREAM}
    s_lshl_b32 s{sE}, s{sMH}, 11
    s_add_u32 s{sT}, s{sT}, s{sE}
    s_add_u32 s{sT}, s{sT}, {KE_OFF}
    s_add_u32 s{sE}, s{sT}, {KE_STREAM}
    s_waitcnt lgkmcnt(0)
    """)
    for i in range(17):
        g(f"v_add_f32 v{VAL[i]}, v{VAL[i]}, v{VAL[i]+1}")
    g(f"v_cndmask_b32 v{VAL[16]}, 0, v{VAL[16]}, s[74:75]")
    EV, OD = pool, pool + 8
    for i in range(8):
        g(f"v_cvt_pk_bf16_f32 v{EV+i}, v{VAL[2*i]}, v{VAL[2*i+1]}")
    for i in range(8):
        g(f"v_cvt_pk_bf16_f32 v{OD+i}, v{VAL[2*i+1]}, v{VAL[2*i+2]}")
    g.nobar(True)
    g(f"""
    buffer_store_dwordx4 {vr(EV,4)}, v{t[0]}, s[{R_WS}:{R_WS+3}], s{sT} offen
    buffer_store_dwordx4 {vr(EV+4,4)}, v{t[0]}, s[{R_WS}:{R_WS+3}], s{sT} offen offset:16
    buffer_store_dwordx4 {vr(OD,4)}, v{t[0]}, s[{R_WS}:{R_WS+3}], s{sE} offen
    buffer_store_dwordx4 {vr(OD+4,4)}, v{t[0]}, s[{R_WS}:{R_WS+3}], s{sE} offen offset:16
    v_mov_b32 v{t[1]}, 0
    s_not_b64 exec, s[74:75]
    s_cbranch_execz {Lend}_z
    buffer_store_dword v{t[1]}, v{t[0]}, s[{R_WS}:{R_WS+3}], s{sT} offen offset:32
    buffer_store_dword v{t[1]}, v{t[0]}, s[{R_WS}:{R_WS+3}], s{sE} offen offset:32
    {Lend}_z:
    s_mov_b64 exec, -1
    """)
    g.nobar(False)
    tot = g.emit(a, NBAR1 - 1)
    a.c(f"kgen estimated cost {tot}")
    a(f"s_branch {Lend}")
    a(f"{Lskip}:")
    for _ in range(NBAR1): a("s_barrier")
    a(f"{Lend}:")
    return R.hi

def wt_wave(a, st_flags=""):
    sF, sDt, sKs, sT, sD2 = 4, 5, 6, 7, 8
    a("s_waitcnt lgkmcnt(0)")
    srd(a, R_A, P_WO, WO_BYTES); srd(a, R_WS, P_WS, WS_BYTES)
    a(f"""
    v_lshrrev_b32 v4, 4, v1
    v_lshrrev_b32 v5, 1, v4
    v_mul_u32_u24 v5, 20, v5
    v_and_b32 v6, 1, v4
    v_lshl_add_u32 v5, v6, 3, v5          ; main: (g>>1)*20 + 8(g&1)
    v_mul_u32_u24 v6, 72, v4
    v_add_u32 v6, 16, v6                  ; extras: 72g + 16
    v_mul_u32_u24 v5, 1152, v5
    v_mul_u32_u24 v6, 1152, v6
    v_and_b32 v7, 15, v1
    v_lshl_add_u32 v5, v7, 1, v5
    v_lshl_add_u32 v6, v7, 1, v6
    v_lshlrev_b32 v7, 4, v1
    """)
    Lno, Lend = a.label("wtno"), a.label("wtend")
    for i in range(3):
        D = 12 + 8 * i
        a(f"s_add_u32 s{sF}, s2, {256*i}")
        if i == 2:
            a(f"s_cmp_ge_u32 s2, {648-512}\ns_cbranch_scc1 {Lno}")
        a(f"""
        s_mul_i32 s{sDt}, s{sF}, 3641
        s_lshr_b32 s{sDt}, s{sDt}, 16
        s_mul_i32 s{sKs}, s{sDt}, 18
        s_sub_u32 s{sKs}, s{sF}, s{sKs}
        s_mul_i32 s{sT}, s{sKs}, {36*1152}
        s_sub_u32 s9, s{sKs}, 16
        s_mul_i32 s9, s9, {288*1152}
        s_movk_i32 s{sD2}, {4*1152}
        s_cmp_ge_u32 s{sKs}, 16
        s_cselect_b32 s{sT}, s9, s{sT}
        s_cselect_b32 s{sD2}, {36*1152}, s{sD2}
        s_cselect_b64 vcc, -1, 0
        v_cndmask_b32 v8, v5, v6, vcc
        s_lshl_b32 s{sDt}, s{sDt}, 5
        s_add_u32 s{sT}, s{sT}, s{sDt}
        s_add_u32 s{sD2}, s{sD2}, s{sT}
        """)
        for e in range(8):
            so = sT if e < 4 else sD2
            a(f"buffer_load_ushort v{D+e}, v8, s[{R_A}:{R_A+3}], s{so} offen offset:{(e&3)*1152}")
    a(f"{Lno}:")
    for _ in range(3): a("s_barrier")
    a("s_waitcnt vmcnt(0)")
    for i in range(3):
        D = 12 + 8 * i
        if i == 2:
            a(f"s_cmp_ge_u32 s2, {648-512}\ns_cbranch_scc1 {Lend}")
        for e in range(4):
            a(f"v_lshl_or_b32 v{40+4*i+e}, v{D+2*e+1}, 16, v{D+2*e}")
        a(f"""
        s_lshl_b32 s{sF}, s2, 10
        s_add_u32 s{sF}, s{sF}, {WT_OFF + 256*1024*i}
        buffer_store_dwordx4 {vr(40+4*i,4)}, v7, s[{R_WS}:{R_WS+3}], s{sF} offen{st_flags}
        """)
    a(f"{Lend}:")
    for _ in range(NBAR1 - 3): a("s_barrier")

def gate_wave(a):
    sJ0, sT = 11, 7
    a("s_waitcnt lgkmcnt(0)")
    srd(a, R_A, P_G, 1152)
    a(f"""
    v_lshlrev_b32 v4, 1, v1
    s_mov_b32 s6, s{sJ0}
    """)
    for it in range(9):
        a(f"""
        s_lshl_b32 s{sT}, s6, 7
        buffer_load_ushort v{8+it}, v4, s[{R_A}:{R_A+3}], s{sT} offen
        s_add_u32 s6, s6, 1
        s_cmp_eq_u32 s6, 9
        s_cselect_b32 s6, 0, s6
        """)
    a(f"""
    v_and_b32 v5, 3, v1
    v_xor_b32 v5, 3, v5
    v_lshlrev_b32 v5, 6, v5
    v_lshl_add_u32 v5, v1, 8, v5
    v_add_u32 v6, 0x10000, v5
    s_waitcnt vmcnt(0)
    """)
    def wr(it):
        slot = it & 3
        a(f"ds_write_b16 v{5 + (slot>>1)}, v{8+it} offset:{(slot&1)*SLOT + 16384 + 48}")
    for it in range(4): wr(it)
    for b in range(NBAR1):
        a("s_waitcnt lgkmcnt(0)\ns_barrier")
        if b >= 1 and b + 3 <= 8:
            wr(b + 3)

def phase1(a, st_flags=""):
    Lkg, Lwt, Lgt, Lend = a.label("kg"), a.label("wt"), a.label("gt"), a.label("p1end")
    a(f"""
    s_and_b32 s6, s2, 7
    s_lshr_b32 s7, s2, 3
    s_lshr_b32 s4, s6, 1
    s_lshl_b32 s4, s4, 2
    s_and_b32 s8, s7, 3
    s_add_u32 s4, s4, s8                 ; rb
    s_and_b32 s5, s6, 1
    s_lshl_b32 s5, s5, 3
    s_lshr_b32 s8, s7, 2
    s_add_u32 s5, s5, s8                 ; ct
    s_mul_i32 s9, s5, 9
    s_add_u32 s10, s9, 12
    s_add_u32 s9, s9, 3
    s_lshr_b32 s9, s9, 2                 ; s0
    s_lshr_b32 s10, s10, 2               ; s1
    s_lshr_b32 s11, s9, 2                ; j0
    s_cmp_eq_u32 s{S_WAVE}, 15
    s_cbranch_scc1 {Lgt}
    s_cmp_eq_u32 s{S_WAVE}, 14
    s_cbranch_scc1 {Lwt}
    s_cmp_ge_u32 s{S_WAVE}, 8
    s_cbranch_scc1 {Lkg}
    """)
    h1 = gemm_waves(a, st_flags)
    a(f"s_branch {Lend}")
    a(f"{Lkg}:")
    h2 = kgen_waves(a, st_flags)
    a(f"s_branch {Lend}")
    a(f"{Lwt}:")
    wt_wave(a, st_flags)
    a(f"s_branch {Lend}")
    a(f"{Lgt}:")
    gate_wave(a)
    a(f"{Lend}:")
    return max(h1, h2)
```

```python
from asmlib import *
from layout import *
from k1 import S_WAVE, P_D, P_WS, R_WS, R_A, srd

REG_B = 4 * BLK
CP = 4160
CH = 4 * CP + 512 + 4096
UOFF = 4 * CP

class Lgkm:
    def __init__(self, a): self.a = a; self.q = []; self.done = 0
    def load(self, txt, regs):
        self.a(txt); self.q.append(set(regs))
    def need(self, regs):
        regs = set(regs); last = -1
        for i, s in enumerate(self.q):
            if s & regs: last = i
        if last >= self.done:
            n = len(self.q) - 1 - last
            n = min(n, 15)
            self.a(f"s_waitcnt lgkmcnt({n})")
            self.done = len(self.q) - n
    def all(self):
        self.a("s_waitcnt lgkmcnt(0)"); self.done = len(self.q)

def rng(b, n): return range(b, b + n)

def conv_main(a, tiles, vA, vB, FA, FB, ACC):
    sb = Lgkm(a)
    n = max(tiles) + 1
    def ldA(i, rp):
        off = 4032 - 64 * rp - 512 * i
        sb.load(f"ds_read_b64 {vr(FA+4*i,2)}, v{vA} offset:{off}", rng(FA+4*i, 2))
        sb.load(f"ds_read_b64 {vr(FA+4*i+2,2)}, v{vA} offset:{off+8}", rng(FA+4*i+2, 2))
    def ldB(k, rp):
        sb.load(f"ds_read_b128 {vr(FB+4*k,4)}, v{vB} offset:{480 + 512*k - 64*rp}", rng(FB+4*k, 4))
    order = []
    for i in range(n):
        order.append(("A", i))
        for t in tiles:
            if t - i >= 0 and ("B", t - i) not in order: order.append(("B", t - i))
    for w, i in order:
        (ldA if w == "A" else ldB)(i, 0)
    started = set()
    for rp in range(4):
        for i in range(n):
            for ti, t in enumerate(tiles):
                k = t - i
                if k < 0: continue
                sb.need(list(rng(FA+4*i, 4)) + list(rng(FB+4*k, 4)))
                c = vr(ACC+4*ti, 4) if ti in started else "0"
                started.add(ti)
                a(f"v_mfma_f32_16x16x32_bf16 {vr(ACC+4*ti,4)}, {vr(FA+4*i,4)}, {vr(FB+4*k,4)}, {c}")
            if rp < 3:
                ldA(i, rp + 1); ldB(n - 1 - i, rp + 1)

class AR:
    def __init__(self, R):
        self.S = [R.alloc(16, 4), R.alloc(16, 4)]
        self.O = [R.alloc(16, 4), R.alloc(16, 4)]
        self.K = R.alloc(4, 4)
        self.Kx = R.alloc(4, 2)
        self.V0 = R.alloc(4, 4)
        self.V1 = R.alloc(4, 4)
        self.low_end = R.p
        self.Qm = [R.alloc(4, 4), R.alloc(4, 4)]
        self.Qx = [R.alloc(8, 2), R.alloc(8, 2)]
        self.aK = R.alloc(); self.aKx = R.alloc(); self.aV = R.alloc(); self.idx = R.alloc()

def E(a, base, lo, n=4):
    for i in range(lo, lo + n):
        a(f"v_exp_f32 v{base+i}, v{base+i}")

def k_off(t): return (t & 7) * 1024
def kx_off(g): return KX_OFF + (g & 1) * 512
def v_off(t, s, i): return V_OFF + (t & 7) * 1280 + (4 * s + i) * 160

def attn_loop(a, r, midwait, prio):
    A, B = r.S
    NT = 16
    def smf(o, v, p): a(f"v_smfmac_f32_32x32x32_bf16 {vr(o,16)}, {vr(v,4)}, {vr(p,8)}, v{r.idx}")
    def vread(dst, t, s):
        a(f"ds_read_b64_tr_b16 {vr(dst,2)}, v{r.aV} offset:{v_off(t,s,0)}")
        a(f"ds_read_b64_tr_b16 {vr(dst+2,2)}, v{r.aV} offset:{v_off(t,s,1)}")
    a(f"ds_read_b64 {vr(r.Kx,2)}, v{r.aKx} offset:{kx_off(0)}")
    a(f"ds_read_b128 {vr(r.K,4)}, v{r.aK} offset:{k_off(0)}")
    vread(r.V0, 0, 0)
    for X in range(2):
        for i in range(16): a(f"v_mov_b32 v{r.O[X]+i}, 0")
    a("s_waitcnt lgkmcnt(2)")
    a(f"v_mfma_f32_32x32x8_bf16 {vr(A,16)}, {vr(r.Kx,2)}, {vr(r.Qx[0],2)}, 0")
    a(f"v_mfma_f32_32x32x16_bf16 {vr(A,16)}, {vr(r.K,4)}, {vr(r.Qm[0],4)}, {vr(A,16)}")
    a("s_nop 11")
    E(a, A, 0, 2)
    for t in range(NT):
        if t in prio: a(f"s_setprio {prio[t]}")
        kxp = r.Kx + 2 * ((t >> 2) & 1)
        if t > 0: smf(r.O[1], r.V1, B + 8)
        vread(r.V1, t, 1)
        E(a, A, 2)
        a(f"v_mfma_f32_32x32x8_bf16 {vr(B,16)}, {vr(kxp,2)}, {vr(r.Qx[1]+2*(t&3),2)}, 0")
        n_after = 2
        if (t & 3) == 0 and t + 4 < NT:
            g = (t >> 2) + 1
            if g == 2:
                a(midwait)
                a(f"v_add_u32 v{r.aKx}, {REG_B}, v{r.aKx}")
            a(f"ds_read_b64 {vr(r.Kx+2*(g&1),2)}, v{r.aKx} offset:{kx_off(g)}")
            n_after += 1
        if t == 7:
            a(f"v_add_u32 v{r.aK}, {REG_B}, v{r.aK}")
            a(f"v_add_u32 v{r.aV}, {REG_B}, v{r.aV}")
        E(a, A, 6)
        a(f"v_mfma_f32_32x32x16_bf16 {vr(B,16)}, {vr(r.K,4)}, {vr(r.Qm[1],4)}, {vr(B,16)}")
        last = t == NT - 1
        if not last:
            a(f"ds_read_b128 {vr(r.K,4)}, v{r.aK} offset:{k_off(t+1)}")
            n_after += 1
        else:
            a("s_nop 0")
        E(a, A, 10)
        a(f"s_waitcnt lgkmcnt({n_after})")
        smf(r.O[0], r.V0, A)
        E(a, A, 14, 2)
        a("s_nop 2")
        E(a, B, 0, 1)
        a("s_waitcnt lgkmcnt(0)")
        tn = t + 1
        kxp = r.Kx + 2 * ((tn >> 2) & 1)
        smf(r.O[0], r.V1, A + 8)
        E(a, B, 1, 5)
        if not last:
            a(f"v_mfma_f32_32x32x8_bf16 {vr(A,16)}, {vr(kxp,2)}, {vr(r.Qx[0]+2*(tn&3),2)}, 0")
        E(a, B, 6)
        if not last:
            a(f"v_mfma_f32_32x32x16_bf16 {vr(A,16)}, {vr(r.K,4)}, {vr(r.Qm[0],4)}, {vr(A,16)}")
        E(a, B, 10)
        smf(r.O[1], r.V0, B)
        if not last:
            vread(r.V0, tn, 0)
        E(a, B, 14, 2)
        if not last:
            a("s_nop 2")
            E(a, A, 0, 2)
    a("s_nop 1")
    smf(r.O[1], r.V1, B + 8)

PRIO = {0: 3, 8: 2, 12: 1, 15: 0}

def phase2(a, st_flags="", ld_flags=""):
    sHd, sR, sQP, sKQ, sT, sT2, sC, sCB, sKV, sQt = 4, 5, 6, 7, 8, 9, 10, 11, 12, 13
    sK0, sK1 = 14, 15
    R = Regs(4, 128)
    t = [R.alloc() for _ in range(4)]
    r = AR(R)
    vL16, vD, vQx0, vQx1 = R.alloc(), R.alloc(), R.alloc(), R.alloc()
    WS = f"s[{R_WS}:{R_WS+3}]"
    Lnoc, Lnoc2 = a.label("noconvld"), a.label("noconv")
    a(f"""
    s_and_b32 s{sHd}, s2, 7
    s_lshl_b32 s{sHd}, s{sHd}, 2
    s_bfe_u32 s{sT}, s2, 0x20003
    s_add_u32 s{sHd}, s{sHd}, s{sT}
    s_lshr_b32 s{sR}, s2, 5
    s_and_b32 s{sQP}, s{S_WAVE}, 3
    s_lshr_b32 s{sKQ}, s{S_WAVE}, 2
    v_lshlrev_b32 v{vL16}, 4, v1
    s_lshl_b32 s{sC}, s{sKQ}, 8
    s_add_u32 s{sC}, s{sC}, s2
    s_mul_i32 s{sCB}, s{sKQ}, {CH}
    s_add_u32 s{sCB}, s{sCB}, {REG_B}
    s_waitcnt lgkmcnt(0)
    """)
    srd(a, R_WS, P_WS, WS_BYTES); srd(a, R_A, P_D, 1152)
    a(f"""
    s_cmp_ge_u32 s{sC}, 576
    s_cbranch_scc1 {Lnoc}
    s_mul_i32 s{sT}, s{sC}, {2*KE_STREAM}
    s_and_b32 s{sT2}, s{sQP}, 1
    s_mul_i32 s{sT2}, s{sT2}, {KE_STREAM}
    s_add_u32 s{sT}, s{sT}, s{sT2}
    s_and_b32 s{sT2}, s{sQP}, 2
    s_lshl_b32 s{sT2}, s{sT2}, 1
    s_add_u32 s{sT}, s{sT}, s{sT2}
    s_add_u32 s{sT}, s{sT}, {KE_OFF}
    s_mul_i32 s{sT2}, s{sQP}, {CP}
    s_add_u32 s{sT2}, s{sT2}, s{sCB}
    s_mov_b32 m0, s{sT2}
    v_lshlrev_b32 v{t[0]}, 2, v1
    buffer_load_dwordx4 v{vL16}, {WS}, s{sT} offen lds
    buffer_load_dwordx4 v{vL16}, {WS}, s{sT} offen offset:1024 lds
    buffer_load_dwordx4 v{vL16}, {WS}, s{sT} offen offset:2048 lds
    buffer_load_dwordx4 v{vL16}, {WS}, s{sT} offen offset:3072 lds
    v_add_u32 v{t[1]}, s{sT2}, v{t[0]}
    s_lshl_b32 s{sT}, s{sC}, 2
    s_add_u32 s{sT}, s{sT}, s{sQP}
    s_lshl_b32 s{sT}, s{sT}, 10
    s_add_u32 s{sT}, s{sT}, {UT_OFF}
    s_lshl_b32 s{sT2}, s{sQP}, 10
    s_add_u32 s{sT2}, s{sT2}, s{sCB}
    s_add_u32 m0, s{sT2}, {UOFF+512}
    v_mov_b32 v{t[2]}, 0
    buffer_load_dwordx4 v{vL16}, {WS}, s{sT} offen lds{ld_flags}
    s_lshl_b32 s{sT}, s{sC}, 1
    v_mov_b32 v{t[3]}, s{sT}
    buffer_load_ushort v{vD}, v{t[3]}, s[{R_A}:{R_A+3}], 0 offen
    s_lshl_b32 s{sT2}, s{sQP}, 7
    s_add_u32 s{sT2}, s{sT2}, s{sCB}
    v_add_u32 v{t[0]}, s{sT2}, v{t[0]}
    s_mov_b64 exec, 0xffffffff
    ds_write_b32 v{t[0]}, v{t[2]} offset:{UOFF}
    s_mov_b64 exec, 0xffff
    ds_write_b32 v{t[1]}, v{t[2]} offset:4096
    s_mov_b64 exec, -1
    {Lnoc}:
    s_mul_i32 s{sKV}, s{sHd}, {8*BLK}
    s_add_u32 s{sKV}, s{sKV}, {KV_OFF}
    """)
    def kv_dma(second):
        Ls = a.label("kvs")
        for i in range(5):
            a(f"s_sub_u32 s{sT}, {15+16*i}, s{S_WAVE}")
            if i == 4:
                a(f"s_cmp_ge_u32 s{sT}, 76\ns_cbranch_scc1 {Ls}")
            a(f"""
            s_mul_i32 s{sT2}, s{sT}, 3450
            s_lshr_b32 s{sT2}, s{sT2}, 16
            s_mul_i32 s{sT2}, s{sT2}, {BLK}
            s_lshl_b32 s{sT}, s{sT}, 10
            s_add_u32 m0, s{sT}, {REG_B if second else 0}
            s_add_u32 s{sT}, s{sT}, s{sT2}
            s_add_u32 s{sT}, s{sT}, s{sKV}
            """)
            if second: a(f"s_add_u32 s{sT}, s{sT}, {BLK}")
            a(f"buffer_load_dwordx4 v{vL16}, {WS}, s{sT} offen lds{ld_flags}")
        a(f"{Ls}:")
    a(f"""
    s_lshl_b32 s{sQt}, s{sR}, 2
    s_add_u32 s{sQt}, s{sQt}, s{sQP}
    s_lshl_b32 s{sQt}, s{sQt}, 1
    s_lshl_b32 s{sT}, s{sHd}, 6
    s_add_u32 s{sT}, s{sT}, s{sQt}
    s_lshl_b32 s{sT2}, s{sT}, 10
    buffer_load_dwordx4 {vr(r.Qm[0],4)}, v{vL16}, {WS}, s{sT2} offen{ld_flags}
    buffer_load_dwordx4 {vr(r.Qm[1],4)}, v{vL16}, {WS}, s{sT2} offen offset:1024{ld_flags}
    s_lshl_b32 s{sT2}, s{sT}, 7
    s_add_u32 s{sT2}, s{sT2}, {QX_OFF}
    v_and_b32 v{t[0]}, 31, v1
    v_lshlrev_b32 v{t[0]}, 2, v{t[0]}
    buffer_load_dword v{vQx0}, v{t[0]}, {WS}, s{sT2} offen{ld_flags}
    buffer_load_dword v{vQx1}, v{t[0]}, {WS}, s{sT2} offen offset:128{ld_flags}
    """)
    kv_dma(False)
    FA, FB, ACC = 8, 40, 72
    assert ACC + 16 <= r.low_end
    vA, vB = r.aK, r.aKx
    Lts1, Lcj, Lsw = a.label("ts1"), a.label("cj"), a.label("sw")
    a(f"""
    s_waitcnt vmcnt(8) lgkmcnt(0)
    s_barrier
    s_cmp_ge_u32 s{sC}, 576
    s_cbranch_scc1 {Lnoc2}
    v_and_b32 v{t[0]}, 15, v1
    v_lshrrev_b32 v{t[1]}, 4, v1
    v_sub_u32 v{t[2]}, 15, v{t[0]}
    v_and_b32 v{t[3]}, 3, v{t[2]}
    v_and_b32 v{t[2]}, 12, v{t[2]}
    v_lshlrev_b32 v{t[2]}, 1, v{t[2]}
    v_lshl_add_u32 v{t[2]}, v{t[1]}, 4, v{t[2]}
    v_mul_u32_u24 v{t[3]}, {CP}, v{t[3]}
    s_and_b32 s{sT}, s{sQP}, 1
    s_lshl_b32 s{sT}, s{sT}, 8
    s_sub_u32 s{sT}, s{sCB}, s{sT}
    v_add3_u32 v{vA}, v{t[2]}, v{t[3]}, s{sT}
    v_lshlrev_b32 v{t[2]}, 5, v{t[0]}
    v_lshl_add_u32 v{t[3]}, v{t[1]}, 4, v{t[2]}
    s_add_u32 s{sT}, s{sT}, {UOFF}
    v_add_u32 v{vB}, s{sT}, v{t[3]}
    v_lshl_add_u32 v{r.aV}, v{t[1]}, 3, v{t[2]}
    s_cmp_ge_u32 s{sQP}, 2
    s_cbranch_scc1 {Lts1}
    """)
    T0, T1 = [7, 4, 3, 0], [6, 5, 2, 1]
    conv_main(a, T0, vA, vB, FA, FB, ACC)
    a(f"s_cmp_eq_u32 s{sQP}, 0\ns_cselect_b32 s{sK0}, {T0[0]}, {T0[2]}\ns_cselect_b32 s{sK1}, {T0[1]}, {T0[3]}\ns_branch {Lcj}")
    a(f"{Lts1}:")
    conv_main(a, T1, vA, vB, FA, FB, ACC)
    a(f"s_cmp_eq_u32 s{sQP}, 2\ns_cselect_b32 s{sK0}, {T1[0]}, {T1[2]}\ns_cselect_b32 s{sK1}, {T1[1]}, {T1[3]}")
    a(f"""{Lcj}:
    s_lshl_b32 s{sK0}, s{sK0}, 9
    s_lshl_b32 s{sK1}, s{sK1}, 9
    s_lshl_b32 s{sT}, s{sQP}, 11
    s_add_u32 s{sT}, s{sT}, s{sCB}
    v_add_u32 v{t[0]}, s{sT}, v{vL16}
    s_xor_b32 s{sT}, s{sQP}, 1
    s_lshl_b32 s{sT}, s{sT}, 11
    s_add_u32 s{sT}, s{sT}, s{sCB}
    v_add_u32 v{t[1]}, s{sT}, v{vL16}
    s_add_u32 s{sT}, s{sCB}, s{sK0}
    v_add_u32 v{t[2]}, s{sT}, v{r.aV}
    s_add_u32 s{sT}, s{sCB}, s{sK1}
    v_add_u32 v{t[3]}, s{sT}, v{r.aV}
    ds_read_b64 {vr(FA,2)}, v{t[2]} offset:{UOFF+512}
    ds_read_b64 {vr(FA+2,2)}, v{t[3]} offset:{UOFF+512}
    s_bitcmp0_b32 s{sQP}, 0
    s_cbranch_scc1 {Lsw}
    """)
    for i in range(8):
        a(f"v_swap_b32 v{ACC+i}, v{ACC+8+i}")
    a(f"""{Lsw}:
    s_barrier
    ds_write_b128 v{t[0]}, {vr(ACC+8,4)}
    ds_write_b128 v{t[0]}, {vr(ACC+12,4)} offset:1024
    v_lshlrev_b32 v{vD}, 16, v{vD}
    s_waitcnt lgkmcnt(0)
    s_barrier
    ds_read_b128 {vr(FB,4)}, v{t[1]}
    ds_read_b128 {vr(FB+4,4)}, v{t[1]} offset:1024
    """)
    for j in range(2):
        for h in range(2):
            a(f"v_lshlrev_b32 v{FA+4}, 16, v{FA+2*j+h}")
            a(f"v_and_b32 v{FA+5}, 0xffff0000, v{FA+2*j+h}")
            a(f"v_fmac_f32 v{ACC+4*j+2*h}, v{FA+4}, v{vD}")
            a(f"v_fmac_f32 v{ACC+4*j+2*h+1}, v{FA+5}, v{vD}")
    a(f"""
    s_lshl_b32 s{sT}, s{sC}, 12
    s_add_u32 s{sT}, s{sT}, {AT_OFF}
    s_add_u32 s{sK0}, s{sK0}, s{sT}
    s_add_u32 s{sK1}, s{sK1}, s{sT}
    s_waitcnt lgkmcnt(0)
    """)
    for i in range(8):
        a(f"v_add_f32 v{ACC+i}, v{ACC+i}, v{FB+i}")
    for i in range(4):
        a(f"v_cvt_pk_bf16_f32 v{FA+8+i}, v{ACC+2*i}, v{ACC+2*i+1}")
    Lca = a.label("cafter")
    a(f"""
    buffer_store_dwordx2 {vr(FA+8,2)}, v{r.aV}, {WS}, s{sK0} offen{st_flags}
    buffer_store_dwordx2 {vr(FA+10,2)}, v{r.aV}, {WS}, s{sK1} offen{st_flags}
    s_waitcnt vmcnt(2)
    s_branch {Lca}
    {Lnoc2}:
    s_barrier
    s_barrier
    s_waitcnt vmcnt(0)
    {Lca}:
    s_barrier
    """)
    kv_dma(True)
    a(f"""
    s_mul_i32 s{sT}, s{sKQ}, {BLK}
    v_add_u32 v{r.aK}, s{sT}, v{vL16}
    v_lshlrev_b32 v{t[0]}, 3, v1
    v_add_u32 v{r.aKx}, s{sT}, v{t[0]}
    v_bfe_u32 v{t[0]}, v1, 2, 2
    v_and_b32 v{t[1]}, 1, v1
    v_lshlrev_b32 v{t[1]}, 4, v{t[1]}
    v_and_b32 v{t[2]}, 2, v1
    v_lshl_add_u32 v{t[1]}, v{t[2]}, 2, v{t[1]}
    v_lshl_add_u32 v{t[1]}, v{t[0]}, 5, v{t[1]}
    v_lshlrev_b32 v{t[0]}, 3, v{t[0]}
    v_add_u32 v{t[0]}, 128, v{t[0]}
    v_and_b32 v{t[2]}, 16, v1
    v_cmp_eq_u32 vcc, 0, v{t[2]}
    v_lshrrev_b32 v{t[2]}, 5, v1
    v_mul_u32_u24 v{t[2]}, 320, v{t[2]}
    v_cndmask_b32 v{t[1]}, v{t[0]}, v{t[1]}, vcc
    v_add_u32 v{vD}, v{t[1]}, v{t[2]}
    v_add_u32 v{r.aV}, s{sT}, v{vD}
    v_mov_b32 v{r.idx}, 0xdddddddd
    v_cmp_gt_u32 vcc, 32, v1
    """)
    for X, src in ((0, vQx0), (1, vQx1)):
        q = r.Qx[X]
        a(f"""
        v_mov_b32 v{q+1}, 0
        v_mov_b32 v{q+2}, 0
        v_mov_b32 v{q+5}, 0
        v_mov_b32 v{q+6}, 0
        v_cndmask_b32 v{q+0}, 0, v{src}, vcc
        v_cndmask_b32 v{q+3}, 0, v{src}, vcc
        v_cndmask_b32 v{q+4}, v{src}, 0, vcc
        v_cndmask_b32 v{q+7}, v{src}, 0, vcc
        """)
    attn_loop(a, r, "s_waitcnt vmcnt(0)\ns_barrier", PRIO)
    O0, O1 = r.O
    LwB, Lfin, Lmv, Lend = a.label("wB"), a.label("fin"), a.label("mv"), a.label("p2end")
    a(f"""
    s_mul_i32 s{sT}, s{sQP}, {6*3072}
    s_max_u32 s{sT2}, s{sKQ}, 1
    s_sub_u32 s{sT2}, s{sT2}, 1
    s_mul_i32 s{sT2}, s{sT2}, 3072
    s_add_u32 s{sT2}, s{sT2}, s{sT}
    v_add_u32 v{t[0]}, s{sT2}, v{vL16}
    s_mul_i32 s{sT2}, s{sKQ}, 9216
    s_add_u32 s{sCB}, s{sT}, s{sT2}
    v_add_u32 v{t[1]}, s{sCB}, v{vL16}
    s_nop 4
    s_barrier
    s_cmp_eq_u32 s{sKQ}, 0
    s_cbranch_scc1 {LwB}
    ds_write_b128 v{t[0]}, {vr(O0,4)}
    ds_write_b128 v{t[0]}, {vr(O0+4,4)} offset:1024
    ds_write_b128 v{t[0]}, {vr(O0+8,4)} offset:2048
    s_cmp_eq_u32 s{sKQ}, 1
    s_cbranch_scc1 {Lmv}
    {LwB}:
    ds_write_b128 v{t[0]}, {vr(O1,4)} offset:9216
    ds_write_b128 v{t[0]}, {vr(O1+4,4)} offset:{9216+1024}
    ds_write_b128 v{t[0]}, {vr(O1+8,4)} offset:{9216+2048}
    s_branch {Lfin}
    {Lmv}:
    s_waitcnt lgkmcnt(0)
    """)
    for i in range(12): a(f"v_mov_b32 v{O0+i}, v{O1+i}")
    for i in range(4): a(f"v_mov_b32 v{r.Qm[0]+i}, v{r.Qm[1]+i}")
    a(f"v_mov_b32 v{r.Qx[0]}, v{r.Qx[1]}")
    a(f"""{Lfin}:
    s_waitcnt lgkmcnt(0)
    s_barrier
    s_cmp_ge_u32 s{sKQ}, 2
    s_cbranch_scc1 {Lend}
    """)
    P = [r.S[0], r.S[0] + 12, O1]
    assert r.S[1] == r.S[0] + 16
    for s in range(3):
        for j in range(3):
            a(f"ds_read_b128 {vr(P[s]+4*j,4)}, v{t[1]} offset:{3072*s+1024*j}")
    a(f"s_add_u32 s{sQt}, s{sQt}, s{sKQ}")
    for s in range(3):
        a(f"s_waitcnt lgkmcnt({6-3*s})")
        for i in range(11): a(f"v_add_f32 v{O0+i}, v{O0+i}, v{P[s]+i}")
    Lok, Lnorm = a.label("ok"), a.label("norm")
    a(f"v_add_f32 v{t[2]}, v{O0}, v{O0+1}")
    for i in range(2, 10): a(f"v_add_f32 v{t[2]}, v{t[2]}, v{O0+i}")
    a(f"""
    s_movk_i32 s{sT}, 0x1f8
    v_cmp_class_f32 s[74:75], v{t[2]}, s{sT}
    v_cmp_le_f32 vcc, {fbits(2.0**-40)}, v{O0+10}
    s_and_b64 s[74:75], s[74:75], vcc
    v_cmp_ge_f32 vcc, {fbits(2.0**60)}, v{O0+10}
    s_and_b64 s[74:75], s[74:75], vcc
    s_cmp_eq_u64 s[74:75], -1
    s_cbranch_scc1 {Lnorm}
    """)
    fallback(a, r, t, vL16, vD, sKV, sCB, sT, sT2, WS, ld_flags)
    a(f"""{Lnorm}:
    v_rcp_f32 v{t[2]}, v{O0+10}
    s_mul_i32 s{sT}, s{sQt}, 36
    s_add_u32 s{sT2}, s{sT}, s{sHd}
    s_lshl_b32 s{sT2}, s{sT2}, 10
    s_add_u32 s{sT2}, s{sT2}, {OF_OFF}
    """)
    for i in range(10): a(f"v_mul_f32 v{O0+i}, v{O0+i}, v{t[2]}")
    for i in range(5): a(f"v_cvt_pk_bf16_f32 v{r.S[0]+i}, v{O0+2*i}, v{O0+2*i+1}")
    a(f"""
    buffer_store_dwordx4 {vr(r.S[0],4)}, v{vL16}, {WS}, s{sT2} offen{st_flags}
    s_lshl_b32 s{sT}, s{sT}, 10
    s_and_b32 s{sT2}, s{sHd}, 28
    s_lshl_b32 s{sT2}, s{sT2}, 7
    s_add_u32 s{sT}, s{sT}, s{sT2}
    s_and_b32 s{sT2}, s{sHd}, 3
    s_lshl_b32 s{sT2}, s{sT2}, 2
    s_add_u32 s{sT}, s{sT}, s{sT2}
    s_add_u32 s{sT}, s{sT}, {OF_OFF + 32*1024}
    s_mov_b64 exec, 0xffffffff
    buffer_store_dword v{r.S[0]+4}, v{vL16}, {WS}, s{sT} offen{st_flags}
    s_mov_b64 exec, -1
    {Lend}:
    """)
    return R.hi

def fallback(a, r, t, vL16, vVoff, sKV, sLds, sT, sT2, WS, ld_flags):
    S, NM, O = r.S[0], r.O[1], r.O[0]
    sI, sP = 76, 77
    vM, vKxo = r.aK, r.aKx
    Lp, Lt, Lp2, Lnx, Ldn = a.label("fbpass"), a.label("fbtile"), a.label("fbp2"), a.label("fbnx"), a.label("fbdone")
    a(f"""
    v_mov_b32 v{vM}, 0xff800000
    v_and_b32 v{vKxo}, 31, v1
    v_lshlrev_b32 v{vKxo}, 3, v{vKxo}
    v_add_u32 v{r.aV}, s{sLds}, v{vVoff}
    v_mov_b32 v{r.Kx+1}, 0
    s_mov_b32 s{sP}, 0
    """)
    for i in range(16): a(f"v_mov_b32 v{NM+i}, 0\nv_mov_b32 v{O+i}, 0")
    a(f"""{Lp}:
    s_mov_b32 s{sI}, 0
    {Lt}:
    s_lshr_b32 s{sT}, s{sI}, 3
    s_mul_i32 s{sT}, s{sT}, {BLK}
    s_add_u32 s{sT}, s{sT}, s{sKV}
    s_and_b32 s{sT2}, s{sI}, 7
    s_lshl_b32 s78, s{sT2}, 10
    s_add_u32 s78, s78, s{sT}
    buffer_load_dwordx4 {vr(r.K,4)}, v{vL16}, {WS}, s78 offen{ld_flags}
    s_and_b32 s78, s{sI}, 6
    s_lshl_b32 s78, s78, 7
    s_and_b32 s79, s{sI}, 1
    s_lshl_b32 s79, s79, 2
    s_add_u32 s78, s78, s79
    s_add_u32 s78, s78, s{sT}
    s_add_u32 s78, s78, {KX_OFF}
    buffer_load_dword v{r.Kx}, v{vKxo}, {WS}, s78 offen{ld_flags}
    s_mul_i32 s78, s{sT2}, 1280
    s_add_u32 s78, s78, s{sT}
    s_add_u32 s78, s78, {V_OFF}
    s_mov_b32 m0, s{sLds}
    s_nop 0
    buffer_load_dwordx4 v{vL16}, {WS}, s78 offen lds{ld_flags}
    s_mov_b64 exec, 0xffff
    buffer_load_dwordx4 v{vL16}, {WS}, s78 offen offset:1024 lds{ld_flags}
    s_mov_b64 exec, -1
    s_waitcnt vmcnt(0)
    v_mfma_f32_32x32x8_bf16 {vr(S,16)}, {vr(r.Kx,2)}, {vr(r.Qx[0],2)}, {vr(NM,16)}
    v_mfma_f32_32x32x16_bf16 {vr(S,16)}, {vr(r.K,4)}, {vr(r.Qm[0],4)}, {vr(S,16)}
    ds_read_b64_tr_b16 {vr(r.V0,2)}, v{r.aV}
    ds_read_b64_tr_b16 {vr(r.V0+2,2)}, v{r.aV} offset:160
    ds_read_b64_tr_b16 {vr(r.V1,2)}, v{r.aV} offset:640
    ds_read_b64_tr_b16 {vr(r.V1+2,2)}, v{r.aV} offset:800
    s_waitcnt lgkmcnt(0)
    s_nop 15
    s_cmp_lg_u32 s{sP}, 0
    s_cbranch_scc1 {Lp2}
    """)
    for i in range(8): a(f"v_max3_f32 v{vM}, v{S+2*i}, v{S+2*i+1}, v{vM}")
    a(f"s_branch {Lnx}\n{Lp2}:")
    E(a, S, 0, 16)
    a(f"""
    s_nop 1
    v_smfmac_f32_32x32x32_bf16 {vr(O,16)}, {vr(r.V0,4)}, {vr(S,8)}, v{r.idx}
    v_smfmac_f32_32x32x32_bf16 {vr(O,16)}, {vr(r.V1,4)}, {vr(S+8,8)}, v{r.idx}
    {Lnx}:
    s_add_u32 s{sI}, s{sI}, 1
    s_cmp_lt_u32 s{sI}, 64
    s_cbranch_scc1 {Lt}
    s_cmp_lg_u32 s{sP}, 0
    s_cbranch_scc1 {Ldn}
    v_mov_b32 v{t[2]}, v{vM}
    s_nop 1
    v_permlane32_swap_b32 v{vM}, v{t[2]}
    s_nop 1
    v_max_f32 v{vM}, v{vM}, v{t[2]}
    """)
    for i in range(16): a(f"v_sub_f32 v{NM+i}, 0, v{vM}")
    a(f"""
    s_mov_b32 s{sP}, 1
    s_branch {Lp}
    {Ldn}:
    s_nop 15
    """)
```

```python
from asmlib import *
from layout import *
from k1 import S_WAVE, P_OUT, P_WS, R_WS, R_A, srd, L_HI
from k2 import Lgkm, rng
BLOCK = 576
LDS = 36864 + 9 * 1024

def phase3(a, ld_flags=""):
    sQt, sDt, sT, sT2 = 4, 5, 6, 7
    R = Regs(4, 128)
    t = [R.alloc() for _ in range(4)]
    vL16, vB = R.alloc(), R.alloc()
    G = R.alloc(2)
    FA = R.alloc(72, 4)
    FB = R.alloc(32, 4)
    ACC = R.alloc(8, 4)
    AV = R.alloc(4, 2)
    WS = f"s[{R_WS}:{R_WS+3}]"
    a(f"""
    s_and_b32 s{sQt}, s2, 7
    s_lshl_b32 s{sQt}, s{sQt}, 3
    s_bfe_u32 s{sT}, s2, 0x30003
    s_add_u32 s{sQt}, s{sQt}, s{sT}
    s_lshr_b32 s{sDt}, s2, 6
    s_mul_i32 s{sDt}, s{sDt}, 9
    s_add_u32 s{sDt}, s{sDt}, s{S_WAVE}
    v_lshlrev_b32 v{vL16}, 4, v1
    s_waitcnt lgkmcnt(0)
    """)
    srd(a, R_WS, P_WS, WS_BYTES); srd(a, R_A, P_OUT, X_BYTES)
    a(f"""
    s_mul_i32 s{sT}, s{sQt}, 9
    s_add_u32 s{sT}, s{sT}, s{S_WAVE}
    s_lshl_b32 s{sT}, s{sT}, 12
    s_add_u32 s{sT}, s{sT}, {OF_OFF}
    s_lshl_b32 m0, s{S_WAVE}, 12
    v_lshrrev_b32 v{t[0]}, 2, v1
    """)
    for i in range(4):
        a(f"buffer_load_dwordx4 v{vL16}, {WS}, s{sT} offen offset:{1024*i} lds{ld_flags}")
    a(f"""
    v_lshlrev_b32 v{t[0]}, 12, v{t[0]}
    v_and_b32 v{t[1]}, 3, v1
    v_lshl_add_u32 v{t[0]}, v{t[1]}, 4, v{t[0]}
    s_lshl_b32 s{sT}, s{sDt}, 16
    s_lshl_b32 s{sT2}, s{sQt}, 6
    s_add_u32 s{sT}, s{sT}, s{sT2}
    s_add_u32 s{sT}, s{sT}, {AT_OFF}
    s_lshl_b32 s{sT2}, s{S_WAVE}, 10
    s_add_u32 s{sT2}, s{sT2}, 36864
    s_mov_b32 m0, s{sT2}
    v_and_b32 v{t[2]}, 15, v1
    buffer_load_dwordx4 v{t[0]}, {WS}, s{sT} offen lds{ld_flags}
    v_lshlrev_b32 v{t[3]}, 2, v{t[2]}
    s_lshl_b32 s{sT}, s{sQt}, 7
    s_add_u32 s{sT}, s{sT}, {G_OFF}
    buffer_load_dword v{G}, v{t[3]}, {WS}, s{sT} offen{ld_flags}
    buffer_load_dword v{G+1}, v{t[3]}, {WS}, s{sT} offen offset:64{ld_flags}
    s_mul_i32 s{sT}, s{sDt}, {18*1024}
    s_add_u32 s{sT}, s{sT}, {WT_OFF}
    """)
    for ks in range(18):
        if ks and ks % 4 == 0: a(f"s_add_u32 s{sT}, s{sT}, 4096")
        a(f"buffer_load_dwordx4 {vr(FA+4*ks,4)}, v{vL16}, {WS}, s{sT} offen offset:{1024*(ks%4)}{ld_flags}")
    a(f"""
    v_lshrrev_b32 v{t[3]}, 4, v1
    v_lshlrev_b32 v{vB}, 9, v{t[3]}
    v_lshl_add_u32 v{vB}, v{t[2]}, 4, v{vB}
    v_lshrrev_b32 v{t[0]}, 2, v1
    v_lshlrev_b32 v{t[0]}, 6, v{t[0]}
    v_lshl_add_u32 v{t[0]}, v{t[1]}, 3, v{t[0]}
    v_add_u32 v{t[0]}, s{sT2}, v{t[0]}
    v_mul_u32_u24 v{t[2]}, 1152, v{t[2]}
    v_lshl_add_u32 v{t[2]}, v{t[3]}, 3, v{t[2]}
    s_waitcnt vmcnt(18)
    s_barrier
    """)
    sb = Lgkm(a)
    sb.load(f"ds_read_b64_tr_b16 {vr(AV,2)}, v{t[0]}", rng(AV, 2))
    sb.load(f"ds_read_b64_tr_b16 {vr(AV+2,2)}, v{t[0]} offset:32", rng(AV+2, 2))
    def ldB(n):
        ks, T = n >> 1, n & 1
        d = FB + 4 * (n & 7)
        sb.load(f"ds_read_b128 {vr(d,4)}, v{vB} offset:{ks*2048 + T*256}", rng(d, 4))
    for n in range(8): ldB(n)
    for T in range(2):
        g = G + T
        a(f"""
        v_cvt_pk_bf16_f32 v{g}, v{g}, v{g}
        v_and_b32 v{g}, 0xffff0000, v{g}
        v_mul_f32 v{g}, {fbits(-L_HI)}, v{g}
        v_exp_f32 v{g}, v{g}
        s_nop 0
        v_add_f32 v{g}, 1.0, v{g}
        v_rcp_f32 v{g}, v{g}
        s_nop 0
        v_cvt_pk_bf16_f32 v{g}, v{g}, v{g}
        v_and_b32 v{g}, 0xffff0000, v{g}
        """)
    for n in range(36):
        ks, T = n >> 1, n & 1
        if T == 0: a(f"s_waitcnt vmcnt({17-ks})")
        d = FB + 4 * (n & 7)
        sb.need(rng(d, 4))
        c = "0" if ks == 0 else vr(ACC+4*T, 4)
        a(f"v_mfma_f32_16x16x32_bf16 {vr(ACC+4*T,4)}, {vr(FA+4*ks,4)}, {vr(d,4)}, {c}")
        if n + 8 < 36: ldB(n + 8)
    a(f"""
    s_mul_i32 s{sT}, s{sQt}, {32*1152}
    s_lshl_b32 s{sT2}, s{sDt}, 5
    s_add_u32 s{sT}, s{sT}, s{sT2}
    s_add_u32 s{sT2}, s{sT}, {16*1152}
    """)
    for T in range(2):
        g = G + T
        a(f"""
        v_sub_f32 v{t[3]}, 1.0, v{g}
        v_cvt_pk_bf16_f32 v{t[3]}, v{t[3]}, v{t[3]}
        v_and_b32 v{t[3]}, 0xffff0000, v{t[3]}
        """)
        for h in range(2):
            a(f"""
            v_lshlrev_b32 v{FB+4*T+2*h}, 16, v{AV+2*T+h}
            v_and_b32 v{FB+4*T+2*h+1}, 0xffff0000, v{AV+2*T+h}
            """)
        for i in range(4): a(f"v_mul_f32 v{FB+4*T+i}, v{g}, v{FB+4*T+i}")
        for i in range(4): a(f"v_fmac_f32 v{FB+4*T+i}, v{t[3]}, v{ACC+4*T+i}")
        a(f"""
        v_cvt_pk_bf16_f32 v{FB+8+2*T}, v{FB+4*T}, v{FB+4*T+1}
        v_cvt_pk_bf16_f32 v{FB+9+2*T}, v{FB+4*T+2}, v{FB+4*T+3}
        buffer_store_dwordx2 {vr(FB+8+2*T,2)}, v{t[2]}, s[{R_A}:{R_A+3}], s{sT if T == 0 else sT2} offen
        """)
    return R.hi
```

```python
BLK = 19456
KX_OFF = 8192
V_OFF = 9216
QF_OFF = 0
QX_OFF = QF_OFF + (2 << 20)
KV_OFF = QX_OFF + (256 << 10)
UT_OFF = KV_OFF + 32 * 8 * BLK
KE_STREAM = 4096 + 64
KE_OFF = UT_OFF + 576 * 4096
AT_OFF = KE_OFF + 576 * 2 * KE_STREAM
OF_OFF = AT_OFF + 576 * 4096
WT_OFF = OF_OFF + 64 * 36 * 1024
G_OFF = WT_OFF + 36 * 18 * 1024
FL_OFF = G_OFF + 8192
WS_BYTES = FL_OFF + 65536
X_BYTES = 2048 * 576 * 2
W_BYTES = 576 * 1728 * 2
WO_BYTES = 576 * 576 * 2
P_BYTES = 576 * 128 * 2
QSCALE = 1.4426950408889634 / 18 ** 0.5
import struct
def fbits(x):
    return struct.unpack("<I", struct.pack("<f", x))[0]
```

```python
import sys
sys.path.insert(0, "gen")
from asmlib import *
from layout import *
import k1

NAME = "gated_mix__ssm_conv_s4d__mha_block__prompt"
HEAD = open("cdna_kernels/" + NAME + ".s.ref").read().split("; Override launch")[0]

def kernel(name, body, vgpr):
    acc = (vgpr + 3) // 4 * 4
    return f""".globl {name}
.p2align 8
.type {name},@function
{name}:
{body}
""", f""".amdhsa_kernel {name}
  .amdhsa_next_free_vgpr {vgpr}
  .amdhsa_next_free_sgpr 96
  .amdhsa_accum_offset {acc}
  .amdhsa_group_segment_fixed_size 0
  .amdhsa_kernarg_size 112
  .amdhsa_user_sgpr_count 2
  .amdhsa_user_sgpr_kernarg_segment_ptr 1
  .amdhsa_system_sgpr_workgroup_id_x 1
  .amdhsa_float_denorm_mode_32 3
.end_amdhsa_kernel
"""

def build(which=("k1", "k2", "k3")):
    launches = []; texts = []; descs = []
    a = Asm()
    def add(name, fn, block, lds):
        a.lines = []
        end = f"L_{name}_end"
        k1.common_head(a, end)
        hi = fn(a)
        a(f"{end}:\ns_endpgm")
        t, d = kernel(name + "_kernel", a.text(), hi)
        texts.append(t); descs.append(d)
        launches.append(f"; @launch kernel={name}_kernel grid=(256,1,1) block=({block},1,1) lds={lds}")
    if "k1" in which:
        add("p1", k1.phase1, 1024, 163840)
    if "k2" in which:
        import k2
        add("p2", k2.phase2, 1024, 163840)
    if "k3" in which:
        import k3
        add("p3", k3.phase3, k3.BLOCK, k3.LDS)
    out = HEAD + "\n".join(launches) + "\n.amdgcn_target \"amdgcn-amd-amdhsa--gfx950\"\n.text\n" + "".join(texts)
    out += ".section .rodata,\"a\"\n" + "".join(".p2align 6\n" + d for d in descs)
    return out

if __name__ == "__main__":
    which = sys.argv[2].split(",") if len(sys.argv) > 2 else ("k1", "k2", "k3")
    open(sys.argv[1], "w").write(build(which))
```

```python
class Asm:
    def __init__(self):
        self.lines = []
        self.nlabel = 0
    def __call__(self, s):
        for ln in s.split("\n"):
            ln = ln.strip()
            if ln:
                self.lines.append(ln if ln.endswith(":") else "    " + ln)
    def c(self, s):
        self.lines.append("    ; " + s)
    def label(self, base):
        self.nlabel += 1
        return f"L_{base}_{self.nlabel}"
    diag = False
    def stamp(self, n, real=True):
        if not self.diag: return
        self(f"s_mem{'real' if real else ''}time s[98:99]\ns_waitcnt lgkmcnt(0)\nv_writelane_b32 v2, s98, {n}")
    def bar(self, k):
        if self.diag and 1 <= k <= 8:
            self(f"s_memrealtime s[{84+2*((k-1)&3)}:{85+2*((k-1)&3)}]" if (k - 1) // 4 == self.barset else "s_nop 0")
        self("s_barrier")
    barset = int(__import__('os').environ.get('BARSET', '0'))
    def barflush(self):
        if self.diag:
            self("s_waitcnt lgkmcnt(0)")
            for i in range(4): self(f"v_writelane_b32 v2, s{84+2*i}, {9+i}")
    def text(self):
        return "\n".join(self.lines) + "\n"

def vr(b, n=1):
    return f"v{b}" if n == 1 else f"v[{b}:{b+n-1}]"
def sr(b, n=1):
    return f"s{b}" if n == 1 else f"s[{b}:{b+n-1}]"

class Regs:
    def __init__(self, start, limit):
        self.p = start; self.limit = limit; self.hi = start
    def alloc(self, n=1, align=None):
        if align is None:
            align = 1 if n == 1 else 2
        self.p = (self.p + align - 1) // align * align
        b = self.p
        self.p += n
        assert self.p <= self.limit, f"register overflow {self.p} > {self.limit}"
        self.hi = max(self.hi, self.p)
        return b
    def mark(self): return self.p
    def release(self, m): self.p = m
```

```python
from asmlib import *
from layout import *
import math, struct, os
EXP = os.environ.get('EXP', '').split(',')

S_WAVE = 3
P_U, P_LA, P_AI, P_CR, P_CI, P_DT, P_D = 16, 18, 20, 22, 24, 26, 28
P_W, P_WO, P_G, P_OUT, P_DBG, P_WS = 32, 34, 36, 38, 40, 42
R_X, R_W, R_WS, R_A, R_B, R_C, R_D = 44, 48, 52, 56, 60, 64, 68
S_TAG = 30
S_SPIN = 31
WS = f"s[{R_WS}:{R_WS+3}]"
ST = " sc1"
LD = " sc1"

SLOT = 32768
KG_BASE = 4 * SLOT
KG_STRIDE = 5376
CNT = 163328
C_RDY, C_1, C_2, C_S, C_Q, C_O, C_F, C_E, C_P = 0, 16, 32, 64, 68, 72, 76, 80, 96
REG_B = 4 * BLK
CP = 4160
CH = 4 * CP + 512 + 4096
UOFF = 4 * CP
QST = REG_B + 3 * CH
assert QST + 9216 <= 2 * REG_B
NBAR1 = 9
LEAD = 3 if 'lead3' in EXP else 2
SPIN_MAX = 1 << 20

def srd(a, r, p, nbytes):
    a(f"s_mov_b32 s{r}, s{p}\ns_mov_b32 s{r+1}, s{p+1}\ns_mov_b32 s{r+2}, {nbytes}\ns_mov_b32 s{r+3}, 0x20000")

LOG2E = 1.4426950408889634
def f32r(x): return struct.unpack("<f", struct.pack("<f", x))[0]
L_HI = f32r(LOG2E); L_LO = f32r(LOG2E - L_HI)
I2PI = 1.0 / (2 * math.pi)
I_HI = f32r(I2PI); I_LO = f32r(I2PI - I_HI)
LN2 = math.log(2.0)

def lds_inc(a, va, vb, saddr=None, off=0, rtn=None):
    if saddr is None: a(f"v_mov_b32 v{va}, {CNT}")
    else: a(f"v_mov_b32 v{va}, s{saddr}")
    a(f"v_mov_b32 v{vb}, 1\ns_mov_b64 exec, 1")
    if rtn is None:
        a(f"ds_add_u32 v{va}, v{vb} offset:{off}\ns_mov_b64 exec, -1")
    else:
        a(f"ds_add_rtn_u32 v{vb}, v{va}, v{vb} offset:{off}\ns_mov_b64 exec, -1\ns_waitcnt lgkmcnt(0)\nv_readfirstlane_b32 s{rtn}, v{vb}")

def lds_spin(a, va, vb, target, stmp, saddr=None, off=0):
    L, Ld = a.label("lspin"), a.label("lsdone")
    if saddr is None: a(f"v_mov_b32 v{va}, {CNT}")
    else: a(f"v_mov_b32 v{va}, s{saddr}")
    a(f"""
    s_mov_b32 s{S_SPIN}, {SPIN_MAX}
    {L}:
    ds_read_b32 v{vb}, v{va} offset:{off}
    s_waitcnt lgkmcnt(0)
    v_readfirstlane_b32 s{stmp}, v{vb}
    s_cmp_ge_u32 s{stmp}, {target}
    s_cbranch_scc1 {Ld}
    s_sleep 1
    s_sub_u32 s{S_SPIN}, s{S_SPIN}, 1
    s_cbranch_scc0 {L}
    {Ld}:
    """)

def flag_store(a, vt, soff):
    a(f"""
    v_mov_b32 v{vt}, s{S_TAG}
    s_mov_b64 exec, 1
    buffer_store_dword v{vt}, off, {WS}, s{soff} sc1
    s_mov_b64 exec, -1
    """)

def poll_issue(a, vd, n, voff, off):
    w = {1: "dword", 4: "dwordx4"}[n]
    a(f"buffer_load_{w} {vr(vd,n)}, v{voff}, {WS}, 0 offen offset:{off & 4095} sc1" if off < 4096 else
      f"s_movk_i32 s{S_SPIN}, {off}\nbuffer_load_{w} {vr(vd,n)}, v{voff}, {WS}, s{S_SPIN} offen sc1")

def poll_wait(a, vd, n, voff, soff_or_imm, issued=False):
    L, Lc, Ld = a.label("poll"), a.label("pollchk"), a.label("polld")
    w = {1: "dword", 4: "dwordx4"}[n]
    a(f"s_mov_b32 s{S_SPIN}, {SPIN_MAX}")
    if issued: a(f"s_branch {Lc}")
    a(f"""
    {L}:
    buffer_load_{w} {vr(vd,n)}, v{voff}, {WS}, 0 offen offset:{soff_or_imm} sc1
    {Lc}:
    s_waitcnt vmcnt(0)
    """)
    if n == 4:
        a(f"""
        v_xor_b32 v{vd}, s{S_TAG}, v{vd}
        v_xor_b32 v{vd+1}, s{S_TAG}, v{vd+1}
        v_xor_b32 v{vd+2}, s{S_TAG}, v{vd+2}
        v_xor_b32 v{vd+3}, s{S_TAG}, v{vd+3}
        v_or3_b32 v{vd}, v{vd}, v{vd+1}, v{vd+2}
        v_or_b32 v{vd}, v{vd}, v{vd+3}
        v_cmp_ne_u32 vcc, 0, v{vd}
        """)
    else:
        a(f"v_cmp_ne_u32 vcc, s{S_TAG}, v{vd}")
    a(f"""
    s_cbranch_vccz {Ld}
    s_sleep 2
    s_sub_u32 s{S_SPIN}, s{S_SPIN}, 1
    s_cbranch_scc0 {L}
    {Ld}:
    """)

sRB, sCT, sJ0 = 4, 5, 11

KG_T = [4, 5, 6, 7, 8, 9]
KG_C = 10

def head(a, name, endlabel, Lkg, Lg):
    Lnp, Lnk = a.label("nopf"), a.label("nokg")
    t = KG_T
    a(f"""
    s_cmp_ge_u32 s2, 256
    s_cbranch_scc1 {endlabel}
    s_load_dwordx16 s[16:31], s[0:1], 0
    s_load_dwordx8 s[32:39], s[0:1], 64
    s_load_dwordx4 s[40:43], s[0:1], 96
    v_lshrrev_b32 v3, 6, v0
    v_and_b32 v1, 63, v0
    v_readfirstlane_b32 s{S_WAVE}, v3
    s_getpc_b64 s[8:9]
    L_pc:
    s_lshr_b32 s7, s2, 3
    s_cmp_lg_u32 s{S_WAVE}, 0
    s_cbranch_scc1 {Lnp}
    s_and_b32 s6, s7, 3
    s_lshl_b32 s6, s6, 13
    v_lshl_add_u32 v3, v1, 7, s6
    v_min_u32 v3, {endlabel}-L_pc, v3
    global_load_dword v3, v3, s[8:9]
    {Lnp}:
    s_cmp_ge_u32 s{S_WAVE}, 6
    s_cbranch_scc1 {Lnk}
    s_lshr_b32 s14, s{S_WAVE}, 1
    s_lshl_b32 s4, s14, 8
    s_add_u32 s4, s4, s2
    s_min_u32 s6, s4, 575
    s_lshl_b32 s6, s6, 1
    v_mov_b32 v{t[4]}, s6
    s_and_b32 s5, s{S_WAVE}, 1
    s_add_u32 s6, s6, s5
    s_lshl_b32 s6, s6, 7
    v_lshl_add_u32 v{t[0]}, v1, 1, s6
    s_waitcnt lgkmcnt(0)
    global_load_ushort v{t[3]}, v{t[4]}, s[{P_DT}:{P_DT+1}]
    global_load_ushort v{t[1]}, v{t[0]}, s[{P_LA}:{P_LA+1}]
    global_load_ushort v{t[2]}, v{t[0]}, s[{P_AI}:{P_AI+1}]
    global_load_ushort v{KG_C}, v{t[0]}, s[{P_CR}:{P_CR+1}]
    global_load_ushort v{KG_C+1}, v{t[0]}, s[{P_CI}:{P_CI+1}]
    s_branch {Lkg}
    {Lnk}:
    s_and_b32 s6, s2, 7
    s_lshr_b32 s{sRB}, s6, 1
    s_lshl_b32 s{sRB}, s{sRB}, 2
    s_and_b32 s8, s7, 3
    s_add_u32 s{sRB}, s{sRB}, s8
    s_and_b32 s{sCT}, s6, 1
    s_lshl_b32 s{sCT}, s{sCT}, 3
    s_lshr_b32 s9, s7, 2
    s_add_u32 s{sCT}, s{sCT}, s9
    s_lshl_b32 s8, s8, 1
    s_add_u32 s{sJ0}, s8, s9
    s_sub_u32 s8, s{sJ0}, 9
    s_cmp_ge_u32 s{sJ0}, 9
    s_cselect_b32 s{sJ0}, s8, s{sJ0}
    s_cmp_ge_u32 s{S_WAVE}, 8
    s_cbranch_scc1 {Lg}
    """)

def get_tag(a):
    srd(a, R_WS, P_WS, WS_BYTES)
    a(f"s_load_dword s{S_TAG}, s[{P_WS}:{P_WS+1}], {FL_OFF}")
def tag_done(a):
    a(f"s_waitcnt lgkmcnt(0)\ns_mul_i32 s{S_TAG}, s{S_TAG}, 0x9e3779b1\ns_add_u32 s{S_TAG}, s{S_TAG}, 0x7f4a7c15")

def loader(a):
    sJ, sT, sCm, sAs, sLb, sInc, sXr = 6, 7, 8, 9, 10, 14, 15
    V = [4, 5, 6, 7]; t0, t1, t2, t3 = 8, 9, 10, 11
    Lx, Lc, Lsub, Lover, Lw, Lend = [a.label(x) for x in ("ldx", "ldc", "issue", "over", "ldw", "ldend")]
    a(f"""
    v_lshrrev_b32 v{t2}, 4, v1
    s_mov_b32 s{R_X+3}, 0x20000
    s_mov_b32 s{sJ}, s{sJ0}
    s_cmp_eq_u32 s{S_WAVE}, 6
    s_cbranch_scc1 {Lx}
    v_and_b32 v{t0}, 15, v1
    v_lshlrev_b32 v{t1}, 2, v{t2}
    v_xor_b32 v{t0}, v{t0}, v{t1}
    v_lshrrev_b32 v{t1}, 2, v{t0}
    v_and_b32 v{t0}, 3, v{t0}
    v_cmp_eq_u32 vcc, 3, v{t1}
    v_mul_u32_u24 v{t1}, 9, v{t1}
    v_lshrrev_b32 v{t3}, 1, v{t0}
    v_add_u32 v{t1}, v{t1}, v{t3}
    v_lshl_add_u32 v{t1}, v{t0}, 1, v{t1}
    v_min_u32 v{t0}, 2, v{t0}
    v_mad_u32_u24 v{t0}, v{t0}, 9, 4
    v_cndmask_b32 v{t1}, v{t1}, v{t0}, vcc
    v_mul_u32_u24 v{t2}, 432, v{t2}
    s_mul_i32 s{sT}, s{sCT}, 27
    v_add3_u32 v{t1}, v{t1}, v{t2}, s{sT}
    v_lshlrev_b32 v{V[0]}, 3, v{t1}
    s_mov_b32 s72, {0xffffffff ^ (1<<15) ^ (1<<27)}
    s_mov_b32 s73, {0xffffffff ^ (1<<7) ^ (1<<19)}
    s_mov_b32 s{sCm}, {64*3456}
    s_mov_b32 s{sAs}, 55296
    s_movk_i32 s{sLb}, 16384
    s_movk_i32 s{sInc}, 12800
    s_mov_b32 s{sXr}, 0
    s_mov_b32 s{R_X+2}, {W_BYTES}
    s_waitcnt lgkmcnt(0)
    s_mov_b64 s[{R_X}:{R_X+1}], s[{P_W}:{P_W+1}]
    s_branch {Lc}
    {Lx}:
    v_lshrrev_b32 v{t0}, 3, v1
    s_lshl_b32 s{sT}, s{sRB}, 7
    v_add_u32 v{t1}, s{sT}, v{t0}
    v_mul_u32_u24 v{t1}, 1152, v{t1}
    v_and_b32 v{t3}, 7, v1
    v_xor_b32 v{t3}, v{t3}, v{t2}
    v_lshl_add_u32 v{V[0]}, v{t3}, 4, v{t1}
    s_mov_b64 s[72:73], -1
    s_movk_i32 s{sCm}, 128
    s_mov_b32 s{sAs}, 36864
    s_mov_b32 s{sLb}, 0
    s_movk_i32 s{sInc}, 8192
    s_mov_b32 s{sXr}, 64
    s_mov_b32 s{R_X+2}, {X_BYTES}
    s_waitcnt lgkmcnt(0)
    s_mov_b64 s[{R_X}:{R_X+1}], s[{P_U}:{P_U+1}]
    {Lc}:
    v_xor_b32 v{V[1]}, s{sXr}, v{V[0]}
    v_add_u32 v{V[1]}, s{sInc}, v{V[1]}
    s_lshl_b32 s{sInc}, s{sInc}, 1
    v_add_u32 v{V[2]}, s{sInc}, v{V[0]}
    v_add_u32 v{V[3]}, s{sInc}, v{V[1]}
    """)
    def issue(it):
        a(f"s_add_u32 m0, s{sLb}, {(it & 3) * SLOT}\ns_call_b64 s[12:13], {Lsub}")
    for it in range(LEAD): issue(it)
    a(f"s_branch {Lover}\n{Lsub}:")
    a(f"s_mul_i32 s{sT}, s{sJ}, s{sCm}\ns_mov_b64 exec, s[72:73]")
    for g in range(4):
        for b in range(4):
            a(f"buffer_load_dwordx4 v{V[b]}, s[{R_X}:{R_X+3}], s{sT} offen offset:{1024*b} lds")
        if g < 3:
            a(f"s_add_u32 m0, m0, 4096\ns_add_u32 s{sT}, s{sT}, s{sAs}")
    a(f"""
    s_mov_b64 exec, -1
    s_add_u32 s{sJ}, s{sJ}, 1
    s_cmp_eq_u32 s{sJ}, 9
    s_cselect_b32 s{sJ}, 0, s{sJ}
    s_setpc_b64 s[12:13]
    {Lover}:
    """)
    a.stamp(1)
    get_tag(a)
    a(f"v_lshlrev_b32 v{t0}, 2, v1\nv_add_u32 v{t0}, {CNT}, v{t0}\nv_mov_b32 v{t1}, 0\nds_write_b32 v{t0}, v{t1}")
    a(f"""
    v_lshlrev_b32 v{t2}, 4, v1
    s_sub_u32 s74, s{S_WAVE}, 6
    s_lshl_b32 s74, s74, 8
    s_add_u32 s74, s74, s2
    v_and_b32 v12, 16, v1
    v_lshl_add_u32 v12, v12, 5, s74
    s_movk_i32 s75, 576
    v_cmp_gt_u32 s[76:77], s75, v12
    v_lshrrev_b32 v13, 6, v12
    v_and_b32 v14, 3, v1
    v_lshlrev_b32 v14, 1, v14
    v_sub_u32 v13, v13, v14
    v_add_u32 v14, 9, v13
    v_min_u32 v13, v13, v14
    v_min_u32 v13, 7, v13
    v_and_b32 v12, 32, v12
    v_lshlrev_b32 v12, 2, v12
    v_lshl_add_u32 v12, v13, 4, v12
    v_and_b32 v13, 15, v1
    v_add_lshl_u32 v{t3}, v12, v13, 7
    v_add_u32 v{t3}, {FL_U}, v{t3}
    s_mov_b32 s77, 0
    """)
    tag_done(a)
    extra = 0
    for k in range(9):
        left = min(LEAD - 1, 8 - k)
        n = 16 * left + extra
        a(f"s_waitcnt vmcnt({n})")
        if k == 0: a.stamp(24)
        a.bar(k)
        if k + LEAD <= 8: issue(k + LEAD)
        if k == 3:
            L = a.label("nofu")
            a(f"s_cmp_eq_u32 s{S_WAVE}, 6\ns_cbranch_scc1 {L}\ns_lshl_b32 s74, s{sCT}, 4\ns_add_u32 s74, s74, s{sRB}\ns_lshl_b32 s74, s74, 7\ns_add_u32 s74, s74, {FL_U}")
            flag_store(a, t0, 74)
            a(f"{L}:")
        if k == 6:
            a("s_mov_b64 exec, s[76:77]")
            poll_issue(a, 12, 1, t3, 0); extra = 1
            a("s_mov_b64 exec, -1")
    a.stamp(2)
    a("s_mov_b64 exec, s[76:77]")
    poll_wait(a, 12, 1, t3, 0, issued=True)
    a("s_mov_b64 exec, -1")
    a(f"""
    v_lshlrev_b32 v{t0}, 3, v1
    v_mov_b32 v12, 0
    v_mov_b32 v13, 0
    s_sub_u32 s{sJ}, s{S_WAVE}, 6
    {Lw}:
    s_lshl_b32 s{sT}, s{sJ}, 8
    s_add_u32 s{sT}, s{sT}, s2
    s_lshl_b32 s{sT}, s{sT}, 12
    s_add_u32 s{sT}, s{sT}, {UT_OFF}
    s_mul_i32 s8, s{sJ}, {CH}
    s_add_u32 s8, s8, {REG_B + UOFF}
    s_add_u32 m0, s8, 512
    v_add_u32 v{t1}, s8, v{t0}
    ds_write_b64 v{t1}, v[12:13]
    """)
    for b in range(4):
        a(f"buffer_load_dwordx4 v{t2}, {WS}, s{sT} offen offset:{1024*b}{LD} lds")
    a(f"""
    s_add_u32 s{sJ}, s{sJ}, 2
    s_lshl_b32 s{sT}, s{sJ}, 8
    s_add_u32 s{sT}, s{sT}, s2
    s_cmp_lt_u32 s{sT}, 576
    s_cbranch_scc1 {Lw}
    s_sub_u32 s{sJ}, s{S_WAVE}, 6
    s_lshl_b32 s{sJ}, s{sJ}, 2
    s_add_u32 s{sJ}, s{sJ}, {CNT+C_RDY}
    v_lshl_add_u32 v{t0}, v1, 3, s{sJ}
    v_mov_b32 v{t1}, 1
    s_waitcnt vmcnt(0) lgkmcnt(0)
    s_mov_b64 exec, 3
    ds_add_u32 v{t0}, v{t1}
    s_mov_b64 exec, -1
    """)

def gemm_waves(a):
    sT, sU, sTP = 7, 12, 13
    R = Regs(4, 128)
    t0, t1, t2, t3 = [R.alloc() for _ in range(4)]
    vXa = [[R.alloc() for _ in range(4)] for _ in range(2)]
    vWa = [R.alloc(), R.alloc()]
    vU0, vU1, vUs = R.alloc(), R.alloc(), R.alloc()
    vL16 = R.alloc()
    FX = [[R.alloc(4, 4), R.alloc(4, 4)] for _ in range(2)]
    FW = [R.alloc(4, 4) for _ in range(2)]
    ACC = [R.alloc(16, 4), R.alloc(16, 4)]
    UT = R.alloc(4, 4)
    STG = R.alloc(8, 4)
    WL = R.alloc(9, 4)
    vGa = [R.alloc(), R.alloc()]
    Lnw, Lng = a.label("nowt"), a.label("nogate")
    a(f"""
    s_setprio 2
    s_and_b32 s{sU}, s{S_WAVE}, 3
    s_bfe_u32 s{sTP}, s{S_WAVE}, 0x10002
    v_lshlrev_b32 v{vL16}, 4, v1
    s_sub_u32 s14, s{S_WAVE}, 13
    s_lshl_b32 s14, s14, 8
    s_add_u32 s14, s14, s2
    {"s_movk_i32 s14, 1000" if 'nowt' in EXP else ""}
    s_waitcnt lgkmcnt(0)
    """)
    get_tag(a)
    a(f"""
    s_lshl_b32 s83, s{sCT}, 4
    s_add_u32 s83, s83, s{S_WAVE}
    s_cmp_lg_u32 s83, 8
    s_cbranch_scc1 {Lng}
    s_mov_b32 s8, s{sJ0}
    """)
    for it in range(9):
        a(f"""
        s_lshl_b32 s{sT}, s8, 7
        v_lshl_add_u32 v{t0}, v1, 1, s{sT}
        global_load_ushort v{WL+it}, v{t0}, s[{P_G}:{P_G+1}]
        s_add_u32 s8, s8, 1
        s_cmp_eq_u32 s8, 9
        s_cselect_b32 s8, 0, s8
        """)
    def gw(it):
        slot = it & 3
        a(f"ds_write_b16 v{vGa[slot>>1]}, v{WL+it} offset:{(slot&1)*SLOT + 16384 + 48}")
    a(f"""
    v_and_b32 v{t0}, 3, v1
    v_xor_b32 v{t0}, 3, v{t0}
    v_lshlrev_b32 v{t0}, 6, v{t0}
    v_lshl_add_u32 v{vGa[0]}, v1, 8, v{t0}
    v_add_u32 v{vGa[1]}, 0x10000, v{vGa[0]}
    s_waitcnt vmcnt(0)
    """)
    for it in range(4): gw(it)
    a(f"{Lng}:")
    srd(a, R_A, P_WO, WO_BYTES)
    a(f"""
    s_cmp_ge_u32 s14, 648
    s_cbranch_scc1 {Lnw}
    v_lshrrev_b32 v{t0}, 4, v1
    v_lshrrev_b32 v{t1}, 1, v{t0}
    v_mul_u32_u24 v{t1}, 20, v{t1}
    v_and_b32 v{t2}, 1, v{t0}
    v_lshl_add_u32 v{t1}, v{t2}, 3, v{t1}
    v_mad_u32_u24 v{t2}, v{t0}, 36, 8
    v_lshlrev_b32 v{t2}, 1, v{t2}
    s_mul_i32 s8, s14, 3641
    s_lshr_b32 s8, s8, 16
    s_mul_i32 s9, s8, 18
    s_sub_u32 s9, s14, s9
    s_mul_i32 s{sT}, s9, {36*1152}
    s_sub_u32 s10, s9, 16
    s_mul_i32 s10, s10, {288*1152}
    s_movk_i32 s15, {4*1152}
    s_cmp_ge_u32 s9, 16
    s_cselect_b32 s{sT}, s10, s{sT}
    s_cselect_b32 s15, {36*1152}, s15
    s_cselect_b64 vcc, -1, 0
    v_cndmask_b32 v{t1}, v{t1}, v{t2}, vcc
    v_mul_u32_u24 v{t1}, 1152, v{t1}
    v_and_b32 v{t2}, 15, v1
    v_lshl_add_u32 v{t1}, v{t2}, 1, v{t1}
    s_lshl_b32 s8, s8, 5
    s_add_u32 s{sT}, s{sT}, s8
    s_add_u32 s15, s15, s{sT}
    """)
    for e in range(8):
        a(f"buffer_load_ushort v{WL+e}, v{t1}, s[{R_A}:{R_A+3}], s{sT if e < 4 else 15} offen offset:{(e&3)*1152}")
    a(f"""{Lnw}:
    v_and_b32 v{t0}, 31, v1
    v_lshrrev_b32 v{t1}, 5, v1
    v_bfe_u32 v{t2}, v1, 1, 3
    v_xor_b32 v{t2}, v{t2}, v{t1}
    v_lshlrev_b32 v{t2}, 4, v{t2}
    v_lshl_add_u32 v{t2}, v{t0}, 7, v{t2}
    s_lshl_b32 s{sT}, s{sTP}, 13
    v_add_u32 v{vXa[0][0]}, s{sT}, v{t2}
    """)
    for ks in range(1, 4):
        a(f"v_xor_b32 v{vXa[0][ks]}, {32*ks}, v{vXa[0][0]}")
    for ks in range(4):
        a(f"v_add_u32 v{vXa[1][ks]}, 0x10000, v{vXa[0][ks]}")
    a(f"""
    v_bfe_u32 v{t0}, v1, 2, 2
    v_lshl_add_u32 v{t2}, v{t1}, 3, v{t0}
    v_lshlrev_b32 v{t2}, 8, v{t2}
    v_xor_b32 v{t0}, s{sU}, v{t0}
    v_lshl_add_u32 v{t2}, v{t0}, 6, v{t2}
    v_and_b32 v{t0}, 1, v1
    v_lshlrev_b32 v{t0}, 4, v{t0}
    v_and_b32 v{t3}, 2, v1
    v_lshl_add_u32 v{t0}, v{t3}, 2, v{t0}
    v_and_b32 v{t3}, 16, v1
    v_lshl_add_u32 v{t0}, v{t3}, 1, v{t0}
    v_and_b32 v{t3}, 3, v1
    v_lshlrev_b32 v{t3}, 4, v{t3}
    s_cmp_eq_u32 s{sU}, 3
    s_cselect_b64 vcc, -1, 0
    v_cndmask_b32 v{t0}, v{t0}, v{t3}, vcc
    v_add_u32 v{vWa[0]}, v{t2}, v{t0}
    v_add_u32 v{vWa[1]}, 0x10000, v{vWa[0]}
    s_lshr_b32 s10, s{sCT}, 3
    s_lshl_b32 s10, s10, 1
    s_add_u32 s10, s10, s{sTP}
    v_lshrrev_b32 v{t0}, 4, v1
    v_bfe_u32 v{t1}, v1, 2, 2
    v_lshl_add_u32 v{t2}, v{t0}, 3, v{t1}
    v_bfe_u32 v{t3}, v{t2}, 1, 3
    v_bfe_u32 v{t1}, v1, 1, 1
    v_xor_b32 v{t3}, v{t3}, v{t1}
    v_lshlrev_b32 v{t3}, 4, v{t3}
    v_lshl_add_u32 v{t3}, v{t2}, 7, v{t3}
    v_and_b32 v{t1}, 1, v1
    v_lshl_add_u32 v{t3}, v{t1}, 3, v{t3}
    s_lshl_b32 s{sT}, s10, 5
    v_xor_b32 v{t3}, s{sT}, v{t3}
    s_lshl_b32 s{sT}, s{sU}, 12
    v_add_u32 v{vU0}, s{sT}, v{t3}
    v_xor_b32 v{vU1}, 32, v{vU0}
    v_add_u32 v{vU1}, 512, v{vU1}
    v_and_b32 v{t1}, 15, v1
    v_lshlrev_b32 v{t1}, 12, v{t1}
    v_lshl_add_u32 v{t1}, v{t0}, 4, v{t1}
    s_lshl_b32 s{sT}, s{sU}, 6
    s_lshl_b32 s10, s10, 16
    s_add_u32 s{sT}, s{sT}, s10
    s_lshl_b32 s10, s{sRB}, 8
    s_add_u32 s{sT}, s{sT}, s10
    s_add_u32 s{sT}, s{sT}, {UT_OFF}
    v_add_u32 v{vUs}, s{sT}, v{t1}
    """)
    tag_done(a)
    def ut_task(it):
        if 'nout' in EXP: return
        skip = a.label("utskip")
        if it == 1:
            a(f"s_and_b32 s8, s{sCT}, 7\ns_cmp_lg_u32 s8, 7\ns_cbranch_scc1 {skip}")
            a(f"s_add_u32 s8, s{sJ0}, 1\ns_cmp_eq_u32 s8, 9\ns_cselect_b32 s8, 0, s8\ns_lshl_b32 s8, s8, 18")
        else:
            a(f"s_lshl_b32 s8, s{sJ0}, 18")
        a(f"""
        ds_read_b64_tr_b16 {vr(UT,2)}, v{vU0} offset:{it*SLOT}
        ds_read_b64_tr_b16 {vr(UT+2,2)}, v{vU1} offset:{it*SLOT}
        s_waitcnt lgkmcnt(0)
        buffer_store_dwordx4 {vr(UT,4)}, v{vUs}, {WS}, s8 offen{'' if 'utplain' in EXP else ST}
        {skip}:
        """)
    def wt_store():
        skip = a.label("wtskip")
        a(f"s_cmp_ge_u32 s14, 648\ns_cbranch_scc1 {skip}\ns_waitcnt vmcnt(1)")
        for e in range(4):
            a(f"v_lshl_or_b32 v{STG+e}, v{WL+2*e+1}, 16, v{WL+2*e}")
        a(f"""
        s_lshl_b32 s14, s14, 10
        s_add_u32 s14, s14, {WT_OFF}
        buffer_store_dwordx4 {vr(STG,4)}, v{vL16}, {WS}, s14 offen{ST}
        {skip}:
        """)
    def read_frags(s):
        if 'noread' in EXP: return
        it, ks = s >> 2, s & 3
        slot = it & 3
        hi, lo = slot >> 1, (slot & 1) * SLOT
        b = s & 1
        a(f"ds_read_b64_tr_b16 {vr(FW[b],2)}, v{vWa[hi]} offset:{lo+16384+ks*4096}")
        a(f"ds_read_b64_tr_b16 {vr(FW[b]+2,2)}, v{vWa[hi]} offset:{lo+16384+ks*4096+1024}")
        a(f"ds_read_b128 {vr(FX[b][0],4)}, v{vXa[hi][ks]} offset:{lo}")
        if 'lessrd' in EXP: a(f"ds_read_b32 {vr(FX[b][1],1)}, v{vL16}")
        else: a(f"ds_read_b128 {vr(FX[b][1],4)}, v{vXa[hi][ks]} offset:{lo+4096}")
    a("s_barrier")
    a.stamp(1)
    read_frags(0)
    ut_task(0)
    for s in range(36):
        it = s >> 2
        if s + 1 < 36:
            if (s + 1) & 3 == 0:
                nx = it + 1
                a("s_waitcnt vmcnt(0) lgkmcnt(0)" if nx == 3 else "s_waitcnt lgkmcnt(0)")
                a.bar(nx)
                if a.diag: a("s_waitcnt lgkmcnt(0)")
                if nx + 3 <= 8:
                    L = a.label("ng")
                    a(f"s_cmp_lg_u32 s83, 8\ns_cbranch_scc1 {L}")
                    gw(nx + 3)
                    a(f"{L}:")
                read_frags(s + 1)
            else:
                read_frags(s + 1)
                a("s_waitcnt lgkmcnt(4)")
        else:
            a("s_waitcnt lgkmcnt(0)")
        b = s & 1
        for tt in range(2):
            c = "0" if s == 0 else vr(ACC[tt], 16)
            if 'nomfma' not in EXP: a(f"v_mfma_f32_32x32x16_bf16 {vr(ACC[tt],16)}, {vr(FW[b],4)}, {vr(FX[b][tt],4)}, {c}")
        if s == 2: wt_store()
        if s == 3: ut_task(1)
    a.stamp(3)
    vVm, vQx, vKx, vVx = vXa[0][1], vXa[0][2], vXa[0][3], vXa[1][0]
    sTile, sP, sTy, sHd, sO, sSc, sB = 14, 15, 74, 75, 76, 77, 78
    a(f"""
    v_and_b32 v{t0}, 31, v1
    v_lshrrev_b32 v{t3}, 5, v1
    v_lshlrev_b32 v{vVm}, 5, v{t0}
    v_lshl_add_u32 v{vVm}, v{t3}, 4, v{vVm}
    v_and_b32 v{t1}, 4, v1
    v_xor_b32 v{t1}, 4, v{t1}
    v_lshlrev_b32 v{t1}, 5, v{t1}
    v_and_b32 v{t2}, 24, v1
    v_lshl_add_u32 v{t1}, v{t2}, 2, v{t1}
    v_and_b32 v{t2}, 3, v1
    v_lshl_add_u32 v{vVx}, v{t2}, 3, v{t1}
    v_lshlrev_b32 v{vQx}, 2, v{t0}
    v_lshlrev_b32 v{vKx}, 3, v{t0}
    s_lshl_b32 s{sTile}, s{sRB}, 1
    s_add_u32 s{sTile}, s{sTile}, s{sTP}
    s_lshl_b32 s{sTile}, s{sTile}, 1
    """)
    Lx, Ldone = a.label("extras"), a.label("gdone")
    a(f"s_cmp_eq_u32 s{sU}, 3\ns_cbranch_scc1 {Lx}")
    a(f"""
    s_mul_i32 s{sP}, s{sCT}, 3
    s_add_u32 s{sP}, s{sP}, s{sU}
    s_lshr_b32 s{sTy}, s{sP}, 4
    s_and_b32 s{sHd}, s{sP}, 15
    s_lshl_b32 s{sHd}, s{sHd}, 1
    s_cmp_eq_u32 s{sTy}, 0
    s_cselect_b32 s{sSc}, {fbits(QSCALE)}, 1.0
    s_lshr_b32 s79, s{sTile}, 3
    s_mul_i32 s79, s79, {BLK}
    s_mul_i32 s80, s{sHd}, {8*BLK}
    s_add_u32 s79, s79, s80
    s_add_u32 s79, s79, {KV_OFF}
    s_and_b32 s80, s{sTile}, 7
    s_lshl_b32 s81, s80, 10
    s_add_u32 s81, s81, s79
    s_mul_i32 s80, s80, 1280
    s_add_u32 s80, s80, s79
    s_add_u32 s80, s80, {V_OFF}
    s_lshl_b32 s79, s{sHd}, 6
    s_add_u32 s79, s79, s{sTile}
    s_lshl_b32 s79, s79, 10
    s_add_u32 s79, s79, {QF_OFF}
    s_mov_b32 s{sB}, {8*BLK}
    s_cmp_eq_u32 s{sTy}, 0
    s_cselect_b32 s{sO}, s79, s81
    s_cselect_b32 s{sB}, 0x10000, s{sB}
    s_movk_i32 s82, 1024
    s_cmp_eq_u32 s{sTy}, 2
    s_cselect_b32 s{sO}, s80, s{sO}
    s_cselect_b32 s82, 1280, s82
    s_cselect_b64 vcc, -1, 0
    v_cndmask_b32 v{t0}, v{vL16}, v{vVm}, vcc
    """)
    for tt in range(2):
        for p in range(2):
            for i in range(8):
                a(f"v_mul_f32 v{ACC[tt]+8*p+i}, s{sSc}, v{ACC[tt]+8*p+i}")
            dst = STG + 4 * p
            for i in range(4):
                a(f"v_cvt_pk_bf16_f32 v{dst+i}, v{ACC[tt]+8*p+2*i}, v{ACC[tt]+8*p+2*i+1}")
            if p == 0:
                a(f"buffer_store_dwordx4 {vr(dst,4)}, v{t0}, {WS}, s{sO} offen{ST}")
            else:
                a(f"s_add_u32 s79, s{sO}, s{sB}")
                a(f"buffer_store_dwordx4 {vr(dst,4)}, v{t0}, {WS}, s79 offen{ST}")
        if tt == 0:
            a(f"s_add_u32 s{sO}, s{sO}, s82")
    a(f"s_branch {Ldone}")
    a(f"{Lx}:")
    a(f"v_mov_b32 v{STG+1}, 0x3f80\nv_mov_b32 v{STG+3}, 0x3f80")
    for p in range(3):
        half = p & 1
        rb = 4 * (p >> 1)
        LK, LV, LN = a.label("xk"), a.label("xv"), a.label("xn")
        a(f"""
        s_mov_b32 exec_lo, {0 if half else -1}
        s_mov_b32 exec_hi, {-1 if half else 0}
        s_mul_i32 s{sP}, s{sCT}, 3
        s_add_u32 s{sP}, s{sP}, {p}
        s_lshr_b32 s{sTy}, s{sP}, 4
        s_and_b32 s{sHd}, s{sP}, 15
        s_lshl_b32 s{sHd}, s{sHd}, 1
        s_lshr_b32 s79, s{sTile}, 3
        s_mul_i32 s79, s79, {BLK}
        s_mul_i32 s80, s{sHd}, {8*BLK}
        s_add_u32 s79, s79, s80
        s_cmp_eq_u32 s{sTy}, 1
        s_cbranch_scc1 {LK}
        s_cmp_eq_u32 s{sTy}, 2
        s_cbranch_scc1 {LV}
        s_lshl_b32 s79, s{sHd}, 6
        s_add_u32 s79, s79, s{sTile}
        s_lshl_b32 s79, s79, 7
        s_add_u32 s79, s79, {QX_OFF}
        s_add_u32 s80, s79, 8192
        s_mov_b32 s{sSc}, {fbits(QSCALE)}
        """)
        for tt in range(2):
            for i in range(4):
                a(f"v_mul_f32 v{ACC[tt]+rb+i}, s{sSc}, v{ACC[tt]+rb+i}")
            a(f"v_cvt_pk_bf16_f32 v{STG+4+2*tt}, v{ACC[tt]+rb}, v{ACC[tt]+rb+1}")
            a(f"v_cvt_pk_bf16_f32 v{STG+5+2*tt}, v{ACC[tt]+rb+2}, v{ACC[tt]+rb+3}")
            a(f"buffer_store_dword v{STG+4+2*tt}, v{vQx}, {WS}, s79 offen offset:{128*tt}{ST}")
            a(f"buffer_store_dword v{STG+5+2*tt}, v{vQx}, {WS}, s80 offen offset:{128*tt}{ST}")
        a(f"s_branch {LN}")
        a(f"""{LK}:
        s_and_b32 s80, s{sTile}, 6
        s_lshl_b32 s80, s80, 7
        s_add_u32 s79, s79, s80
        s_add_u32 s79, s79, {KV_OFF+KX_OFF}
        s_add_u32 s80, s79, {8*BLK}
        v_cvt_pk_bf16_f32 v{STG+4}, v{ACC[0]+rb}, v{ACC[0]+rb+1}
        v_cvt_pk_bf16_f32 v{STG+5}, v{ACC[1]+rb}, v{ACC[1]+rb+1}
        v_cvt_pk_bf16_f32 v{STG+6}, v{ACC[0]+rb+2}, v{ACC[0]+rb+3}
        v_cvt_pk_bf16_f32 v{STG+7}, v{ACC[1]+rb+2}, v{ACC[1]+rb+3}
        buffer_store_dwordx2 {vr(STG+4,2)}, v{vKx}, {WS}, s79 offen{ST}
        buffer_store_dwordx2 {vr(STG+6,2)}, v{vKx}, {WS}, s80 offen{ST}
        s_branch {LN}
        {LV}:
        s_and_b32 s80, s{sTile}, 7
        s_mul_i32 s80, s80, 1280
        s_add_u32 s79, s79, s80
        s_add_u32 s79, s79, {KV_OFF+V_OFF+1024}
        s_add_u32 s80, s79, {8*BLK}
        """)
        for tt in range(2):
            a(f"v_cvt_pk_bf16_f32 v{STG}, v{ACC[tt]+rb}, v{ACC[tt]+rb+1}")
            a(f"v_cvt_pk_bf16_f32 v{STG+2}, v{ACC[tt]+rb+2}, v{ACC[tt]+rb+3}")
            a(f"buffer_store_dwordx2 {vr(STG,2)}, v{vVx}, {WS}, s79 offen offset:{1280*tt}{ST}")
            a(f"buffer_store_dwordx2 {vr(STG+2,2)}, v{vVx}, {WS}, s80 offen offset:{1280*tt}{ST}")
            a("s_nop 1")
        a(f"{LN}:")
        a("s_nop 1")
    Lnf = a.label("nofq")
    a(f"""
    s_cmp_lg_u32 s{sCT}, 0
    s_cbranch_scc1 {Ldone}
    s_mov_b32 exec_lo, 0
    s_mov_b32 exec_hi, -1
    s_lshl_b32 s79, s{sTile}, 7
    s_add_u32 s79, s79, {G_OFF}
    buffer_store_dword v{ACC[0]+4}, v{vQx}, {WS}, s79 offen{ST}
    buffer_store_dword v{ACC[1]+4}, v{vQx}, {WS}, s79 offen offset:128{ST}
    {Ldone}:
    s_mov_b64 exec, -1
    s_lshl_b32 s9, s{sCT}, 4
    s_add_u32 s9, s9, s{sRB}
    s_lshl_b32 s9, s9, 7
    s_add_u32 s9, s9, {FL_Q}
    """)
    a.stamp(14)
    a("s_waitcnt vmcnt(0)")
    lds_inc(a, t0, t1, off=C_S, rtn=8)
    a(f"s_cmp_lg_u32 s8, 7\ns_cbranch_scc1 {Lnf}")
    flag_store(a, t0, 9)
    a(f"{Lnf}:\ns_setprio 0")
    a.stamp(4)

class Seg:
    def __init__(self): self.items = []
    def __call__(self, s):
        for ln in s.split("\n"):
            ln = ln.strip()
            if not ln: continue
            op = ln.split()[0]
            if ln.startswith(";"): c = 0
            elif op in ("v_exp_f32", "v_sin_f32", "v_cos_f32", "v_rcp_f32"): c = 8
            elif op.startswith("v_mfma"): c = 40
            elif op.startswith("ds_"): c = 12
            elif op == "s_waitcnt": c = 60
            else: c = 4
            self.items.append((ln, c))
    def must_barrier(self): self.items.append(("@BAR", 0))
    def nobar(self, on): self.items.append(("@NOBAR" if on else "@OKBAR", 0))
    def emit(self, a, nbar):
        must = sum(1 for l, _ in self.items if l == "@BAR")
        total = sum(c for _, c in self.items)
        first = float(os.environ.get('KGFIRST', '0.8')) * total
        per = (total - first) / (nbar - (1 if first else 0))
        used = 0; acc = per - first if first else 0; ok = True; must_left = must
        for ln, c in self.items:
            if ln == "@BAR":
                a.bar(used); used += 1; must_left -= 1; acc = 0; continue
            if ln.startswith("@STAMP"): a.stamp(int(ln[6:])); continue
            if ln == "@NOBAR": ok = False; continue
            if ln == "@OKBAR": ok = True; continue
            if ok and acc >= per and used + must_left < nbar - 1:
                a.bar(used); used += 1; acc = 0
            a(ln); acc += c
        while used < nbar:
            a.bar(used); used += 1
        return total

def kgen_waves(a):
    sC, sMH, sBase, sT, sE, sL, sLlo, sI, sIlo, sLn2, sCS = 4, 5, 6, 7, 8, 9, 10, 11, 12, 13, 14
    R = Regs(4, 128)
    t = [R.alloc() for _ in range(6)]
    C = R.alloc(2)
    assert t == KG_T and C == KG_C
    vWr = [R.alloc() for _ in range(4)]
    vRd = R.alloc()
    vA2, vBh, vBl, vF = R.alloc(), R.alloc(), R.alloc(), R.alloc()
    vInv, vInvM, vBaseM = R.alloc(), R.alloc(), R.alloc()
    FY = R.alloc(32, 4); FXr = R.alloc(32, 4)
    pool = R.alloc(36, 4)
    Lskip, Lend = a.label("kgskip"), a.label("kgend")
    get_tag(a)
    a(f"""
    s_cmp_ge_u32 s{sC}, {0 if 'nokg' in EXP else 576}
    s_cbranch_scc1 {Lskip}
    s_mul_i32 s{sBase}, s{S_WAVE}, {KG_STRIDE}
    s_add_u32 s{sBase}, s{sBase}, {KG_BASE}
    s_mov_b32 s{sL}, {fbits(L_HI)}
    s_mov_b32 s{sLlo}, {fbits(L_LO)}
    s_mov_b32 s{sI}, {fbits(I_HI)}
    s_mov_b32 s{sIlo}, {fbits(I_LO)}
    s_mov_b32 s{sLn2}, {fbits(LN2)}
    v_lshlrev_b32 v{vWr[0]}, 2, v1
    v_add_u32 v{vWr[0]}, s{sBase}, v{vWr[0]}
    v_add_u32 v{vWr[1]}, {4*272}, v{vWr[0]}
    v_add_u32 v{vWr[2]}, {8*272}, v{vWr[0]}
    v_add_u32 v{vWr[3]}, {12*272}, v{vWr[0]}
    v_and_b32 v{t[4]}, 15, v1
    v_mul_u32_u24 v{t[4]}, 272, v{t[4]}
    v_lshrrev_b32 v{t[5]}, 5, v1
    v_lshl_add_u32 v{t[4]}, v{t[5]}, 4, v{t[4]}
    v_add_u32 v{vRd}, s{sBase}, v{t[4]}
    s_lshl_b32 s{sT}, s{sMH}, 6
    s_sub_u32 s{sT}, 127, s{sT}
    v_sub_u32 v{t[4]}, s{sT}, v1
    v_lshlrev_b32 v{t[4]}, 4, v{t[4]}
    v_max_u32 v{t[5]}, 128, v{t[4]}
    v_cvt_f32_u32 v{t[5]}, v{t[5]}
    v_and_b32 v{vInv}, 0x7f800000, v{t[5]}
    v_sub_u32 v{vInv}, {261<<23 & 0xffffffff}, v{vInv}
    v_lshrrev_b32 v{t[5]}, 16, v{t[5]}
    v_subrev_u32 v{t[5]}, {0x4380-256}, v{t[5]}
    v_min_u32 v{t[5]}, v{t[5]}, v{t[4]}
    v_add_u32 v{vBaseM}, 0x4b000010, v{t[5]}
    v_max_u32 v{t[5]}, 129, v{t[4]}
    v_subrev_u32 v{t[5]}, 1, v{t[5]}
    v_cvt_f32_u32 v{t[5]}, v{t[5]}
    v_and_b32 v{vInvM}, 0x7f800000, v{t[5]}
    v_sub_u32 v{vInvM}, {261<<23 & 0xffffffff}, v{vInvM}
    v_cmp_ne_u32 s[74:75], 0, v{t[4]}
    """)
    tag_done(a)
    g = Seg()
    def expbf(x, tmp1, tmp2):
        g(f"""
        v_lshlrev_b32 v{x}, 16, v{x}
        v_mul_f32 v{tmp1}, s{sL}, v{x}
        v_fma_f32 v{tmp2}, v{x}, s{sL}, -v{tmp1}
        v_exp_f32 v{tmp1}, v{tmp1}
        v_fma_f32 v{tmp2}, v{x}, s{sLlo}, v{tmp2}
        v_mul_f32 v{tmp2}, s{sLn2}, v{tmp2}
        v_fma_f32 v{x}, v{tmp1}, v{tmp2}, v{tmp1}
        v_cvt_pk_bf16_f32 v{x}, v{x}, v{x}
        v_and_b32 v{x}, 0xffff0000, v{x}
        """)
    g("s_waitcnt vmcnt(0)")
    g.items.append(("@STAMP22", 0))
    expbf(t[3], t[4], t[5])
    expbf(t[1], t[4], t[5])
    g(f"""
    v_mul_f32 v{t[1]}, v{t[1]}, v{t[3]}
    v_mul_f32 v{vA2}, s{sL}, -v{t[1]}
    v_lshlrev_b32 v{t[2]}, 16, v{t[2]}
    v_mul_f32 v{t[2]}, v{t[2]}, v{t[3]}
    v_mul_f32 v{vBh}, s{sI}, v{t[2]}
    v_fma_f32 v{vBl}, v{t[2]}, s{sI}, -v{vBh}
    v_fma_f32 v{vBl}, v{t[2]}, s{sIlo}, v{vBl}
    v_lshlrev_b32 v{C}, 16, v{C}
    v_lshlrev_b32 v{C+1}, 16, v{C+1}
    v_max_f32 v{t[4]}, |v{C}|, |v{C+1}|
    """)
    for mod in ("row_shr:1", "row_shr:2", "row_shr:4", "row_shr:8", "row_bcast:15 row_mask:0xa", "row_bcast:31 row_mask:0xc"):
        g(f"s_nop 1\nv_max_u32_dpp v{t[4]}, v{t[4]}, v{t[4]} {mod}")
    g(f"""
    s_nop 1
    v_readlane_b32 s{sE}, v{t[4]}, 63
    s_nop 3
    s_lshr_b32 s{sE}, s{sE}, 23
    s_max_u32 s{sE}, s{sE}, 1
    s_min_u32 s{sE}, s{sE}, 252
    s_sub_u32 s{sT}, 253, s{sE}
    s_lshl_b32 s{sT}, s{sT}, 23
    v_mul_f32 v{C}, s{sT}, v{C}
    v_mul_f32 v{C+1}, s{sT}, v{C+1}
    s_add_u32 s{sE}, s{sE}, 2
    s_lshl_b32 s{sE}, s{sE}, 23
    v_mul_f32 v{vF}, s{sE}, v{t[3]}
    """)
    def cexp(d, p):
        fp = fbits(float(p))
        g(f"""
        v_mul_f32 v{t[4]}, {fp}, v{vBh}
        v_mul_f32 v{t[5]}, {fp}, v{vA2}
        v_fract_f32 v{t[4]}, v{t[4]}
        v_exp_f32 v{t[5]}, v{t[5]}
        v_fmac_f32 v{t[4]}, {fp}, v{vBl}
        v_cos_f32 v{d}, v{t[4]}
        v_sin_f32 v{d+1}, v{t[4]}
        v_mul_f32 v{d}, v{d}, v{t[5]}
        v_mul_f32 v{d+1}, v{d+1}, v{t[5]}
        """)
    def cmul(d, x, y):
        g(f"""
        v_mul_f32 v{d}, v{x+1}, v{y+1}
        v_mul_f32 v{d+1}, v{x+1}, v{y}
        v_fma_f32 v{d}, v{x}, v{y}, -v{d}
        v_fmac_f32 v{d+1}, v{x}, v{y+1}
        """)
    def cvt(d, x, conj):
        g(f"v_cvt_pk_f16_f32 v{d}, v{x}, {'-' if conj else ''}v{x+1}")
    def rows(specs, row0):
        for i in range(0, len(specs), 2):
            pair = specs[i:i+2]; src = []
            tt = [t[(i & 2)], t[(i & 2) + 1]]
            for k, (x, y) in enumerate(pair):
                if y is not None: g(f"v_pk_mul_f16 v{tt[k]}, v{x}, v{y} op_sel:[0,0] op_sel_hi:[0,1]")
            for k, (x, y) in enumerate(pair):
                if y is not None:
                    g(f"v_pk_fma_f16 v{tt[k]}, v{x}, v{y}, v{tt[k]} op_sel:[1,1,0] op_sel_hi:[1,0,1] neg_lo:[1,0,0]")
                    src.append(tt[k])
                else: src.append(x)
            r = (row0 + i) & 15
            if len(pair) == 2:
                g(f"ds_write2_b32 v{vWr[r>>2]}, v{src[0]}, v{src[1]} offset0:{68*(r&3)} offset1:{68*(r&3)+68}")
            else:
                g(f"ds_write_b32 v{vWr[r>>2]}, v{src[0]} offset:{272*(r&3)}")
    def fragread(dst, upper):
        m = 0xffff0000 if upper else 0x0000ffff
        g.nobar(True)
        g(f"s_mov_b32 exec_lo, {m}\ns_mov_b32 exec_hi, {m}")
        for ks in range(8):
            g(f"ds_read_b128 {vr(dst+4*ks,4)}, v{vRd} offset:{32*ks}")
        g("s_mov_b64 exec, -1")
        g.nobar(False)
    P = [pool + 2 * i for i in range(12)]
    H = [pool + 24 + i for i in range(12)]
    A1, A2, A3, B1, B2, B3, B4, BT, E256 = P[0], P[1], P[2], P[3], P[4], P[5], P[6], P[7], P[8]
    hA = [H[0], H[1], H[2], H[3]]; hB = [None] + H[4:11]
    g(f"v_mov_b32 v{hA[0]}, 0x3c00")
    cexp(A1, 8); cexp(B2, 64)
    cmul(A2, A1, A1); cmul(B4, B2, B2); cmul(B1, A2, A2); cmul(A3, A1, A2); cmul(E256, B4, B4); cmul(B3, B1, B2)
    for d, x in ((hA[1], A1), (hA[2], A2), (hA[3], A3), (hB[1], B1), (hB[2], B2), (hB[3], B3), (hB[4], B4)): cvt(d, x, True)
    def yspec(j):
        x, y = j & 3, j >> 2
        if y == 0: return (hA[x], None)
        if x == 0: return (hB[y], None)
        return (hA[x], hB[y])
    rows([yspec(j) for j in range(16)], 0)
    fragread(FY, False)
    for i, b in ((5, B1), (6, B2), (7, B3)):
        cmul(BT, B4, b); cvt(hB[i], BT, True)
    rows([yspec(j) for j in range(16, 32)], 16)
    fragread(FY, True)
    g.items.append(("@STAMP23", 0))
    E1, E2, E4, E512, E1024, X2, X4, X6, TT = P[0], P[1], P[2], P[3], P[4], P[5], P[6], P[7], P[9]
    hC, h2, h4, h6, hE1, h256, h512, h768, h1024, hX = H[0:10]
    cexp(E1, 1); cexp(E512, 512)
    cmul(E2, E1, E1); cmul(E1024, E512, E512); cmul(E4, E2, E2); cmul(X2, C, E2); cmul(X4, C, E4); cmul(TT, E256, E512); cmul(X6, X4, E2)
    for d, x in ((hC, C), (hE1, E1), (h2, X2), (h4, X4), (h6, X6), (h256, E256), (h512, E512), (h768, TT), (h1024, E1024)): cvt(d, x, False)
    cmul(TT, C, E1024); cvt(hX, TT, False)
    rows([(hC, None), (hC, hE1), (h2, None), (h2, hE1), (h4, None), (h4, hE1), (h6, None), (h6, hE1),
          (hC, h256), (h2, h256), (h4, h256), (h6, h256), (hC, h512), (h4, h512), (hC, h768), (h4, h768)], 0)
    fragread(FXr, False)
    rows([(hX, None), (hX, h256), (hX, h512), (hX, h768), (hX, h1024)], 16)
    fragread(FXr, True)
    ACC = pool
    g(f"""
    v_and_b32 v{t[0]}, 31, v1
    v_lshrrev_b32 v{t[1]}, 5, v1
    v_lshlrev_b32 v{t[2]}, 5, v{t[0]}
    v_lshl_add_u32 v{t[2]}, v{t[1]}, 4, v{t[2]}
    v_add_u32 v{t[2]}, s{sBase}, v{t[2]}
    v_cmp_eq_u32 vcc, 0, v{t[1]}
    v_lshlrev_b32 v{t[3]}, 4, v{t[0]}
    v_lshlrev_b32 v{t[4]}, 3, v{t[0]}
    v_add_u32 v{t[4]}, 512, v{t[4]}
    v_cndmask_b32 v{t[3]}, v{t[4]}, v{t[3]}, vcc
    v_add_u32 v{t[3]}, s{sBase}, v{t[3]}
    v_mul_u32_u24 v{t[4]}, 248, v{t[1]}
    v_add_u32 v{t[4]}, v{t[4]}, v{t[3]}
    v_lshlrev_b32 v{t[5]}, 2, v{t[0]}
    v_lshl_add_u32 v{t[5]}, v{t[1]}, 9, v{t[5]}
    v_add_u32 v{t[5]}, s{sBase}, v{t[5]}
    s_waitcnt lgkmcnt(0)
    """)
    for ks in range(8):
        c = "0" if ks == 0 else vr(ACC, 16)
        g(f"v_mfma_f32_32x32x16_f16 {vr(ACC,16)}, {vr(FXr+4*ks,4)}, {vr(FY+4*ks,4)}, {c}")
    g(f"""
    s_mul_i32 s{sT}, s{sMH}, {KG_STRIDE}
    s_sub_u32 s{sT}, s{sBase}, s{sT}
    s_sub_u32 s{sT}, s{sT}, {0x2c000000}
    """)
    NV = 19
    AD = pool + 16
    assert AD + NV <= pool + 36
    VAL = [FY + 2 * i for i in range(NV)]
    assert FXr == FY + 32
    for i in range(NV):
        r = 15 - i
        inv = vInv if r >= 0 else vInvM
        g(f"v_fmamk_f32 v{AD+i}, v{inv}, {fbits(float(r))}, v{vBaseM}")
        g(f"v_lshl_add_u32 v{AD+i}, v{AD+i}, 2, s{sT}")
    for i in range(12):
        g(f"v_mul_f32 v{ACC+i}, v{vF}, v{ACC+i}")
    g(f"""
    ds_write_b128 v{t[2]}, {vr(ACC,4)} offset:64
    ds_write_b64 v{t[3]}, {vr(ACC+4,2)} offset:{64+1024}
    ds_write_b64 v{t[4]}, {vr(ACC+6,2)} offset:{64+1024+8}
    """)
    for r in range(4):
        g(f"ds_write_b32 v{t[5]}, v{ACC+8+r} offset:{64+2048+128*r}")
    g("s_waitcnt lgkmcnt(0)")
    g.items.append(("@STAMP24", 0))
    g.must_barrier()
    for i in range(NV):
        g(f"ds_read2st64_b32 {vr(VAL[i],2)}, v{AD+i} offset0:0 offset1:{KG_STRIDE//256}")
    g(f"""
    s_mul_i32 s{sT}, s{sCS}, {CH}
    s_lshl_b32 s{sE}, s{sMH}, 11
    s_add_u32 s{sE}, s{sE}, s{sT}
    s_add_u32 s{sE}, s{sE}, {REG_B}
    v_lshlrev_b32 v{t[0]}, 5, v1
    v_add_u32 v{t[0]}, s{sE}, v{t[0]}
    v_lshrrev_b32 v{t[1]}, 4, v1
    v_mul_u32_u24 v{t[1]}, {CP}, v{t[1]}
    v_and_b32 v{t[2]}, 15, v1
    v_lshl_add_u32 v{t[1]}, v{t[2]}, 2, v{t[1]}
    s_add_u32 s{sT}, s{sT}, {REG_B + 4096}
    v_add_u32 v{t[1]}, s{sT}, v{t[1]}
    v_mov_b32 v{t[2]}, 0
    s_waitcnt lgkmcnt(0)
    """)
    for i in range(NV):
        g(f"v_add_f32 v{VAL[i]}, v{VAL[i]}, v{VAL[i]+1}")
    for i in range(16, NV):
        g(f"v_cndmask_b32 v{VAL[i]}, 0, v{VAL[i]}, s[74:75]")
    OUT = pool
    for s in range(4):
        for i in range(8):
            g(f"v_cvt_pk_bf16_f32 v{OUT+8*s+i}, v{VAL[2*i+s]}, v{VAL[2*i+s+1]}")
    tot = g.emit(a, NBAR1)
    a.c(f"kgen estimated cost {tot}")
    for s in range(4):
        a(f"ds_write_b128 v{t[0]}, {vr(OUT+8*s,4)} offset:{s*CP}")
        a(f"ds_write_b128 v{t[0]}, {vr(OUT+8*s+4,4)} offset:{s*CP+16}")
    a(f"""
    ds_write_b32 v{t[1]}, v{t[2]}
    s_lshl_b32 s{sT}, s{sCS}, 2
    s_add_u32 s{sT}, s{sT}, {CNT+C_RDY}
    s_waitcnt lgkmcnt(0)
    """)
    lds_inc(a, t[0], t[1], saddr=sT)
    a(f"s_branch {Lend}")
    a(f"{Lskip}:")
    tag_done(a)
    for _ in range(NBAR1): a("s_barrier")
    a(f"{Lend}:")
    a.stamp(2)

def phase1(a, name, endlabel):
    Lkg, Lg, Lend = a.label("kg"), a.label("gemm"), a.label("p1end")
    head(a, name, endlabel, Lkg, Lg)
    loader(a)
    a(f"s_branch {Lend}\n{Lkg}:")
    kgen_waves(a)
    a(f"s_branch {Lend}\n{Lg}:")
    gemm_waves(a)
    a(f"{Lend}:")
    a.barflush()
```

```python
from f1 import *

class Lgkm:
    def __init__(self, a): self.a = a; self.q = []; self.done = 0
    def load(self, txt, regs):
        self.a(txt); self.q.append(set(regs))
    def need(self, regs):
        regs = set(regs); last = -1
        for i, s in enumerate(self.q):
            if s & regs: last = i
        if last >= self.done:
            n = min(len(self.q) - 1 - last, 15)
            self.a(f"s_waitcnt lgkmcnt({n})")
            self.done = len(self.q) - n

def rng(b, n): return range(b, b + n)

def conv_main(a, tiles, vA, vB, FA, FB, ACC):
    sb = Lgkm(a)
    n = max(tiles) + 1
    def ldA(i, rp):
        off = 4032 - 64 * rp - 512 * i
        sb.load(f"ds_read_b64 {vr(FA+4*i,2)}, v{vA} offset:{off}", rng(FA+4*i, 2))
        sb.load(f"ds_read_b64 {vr(FA+4*i+2,2)}, v{vA} offset:{off+8}", rng(FA+4*i+2, 2))
    def ldB(k, rp):
        sb.load(f"ds_read_b128 {vr(FB+4*k,4)}, v{vB} offset:{480 + 512*k - 64*rp}", rng(FB+4*k, 4))
    order = []
    for i in range(n):
        order.append(("A", i))
        for t in tiles:
            if t - i >= 0 and ("B", t - i) not in order: order.append(("B", t - i))
    for w, i in order:
        (ldA if w == "A" else ldB)(i, 0)
    started = set()
    for rp in range(4):
        for i in range(n):
            for ti, t in enumerate(tiles):
                k = t - i
                if k < 0: continue
                sb.need(list(rng(FA+4*i, 4)) + list(rng(FB+4*k, 4)))
                c = vr(ACC+4*ti, 4) if ti in started else "0"
                started.add(ti)
                a(f"v_mfma_f32_16x16x32_bf16 {vr(ACC+4*ti,4)}, {vr(FA+4*i,4)}, {vr(FB+4*k,4)}, {c}")
            if rp < 3:
                ldA(i, rp + 1); ldB(n - 1 - i, rp + 1)

class AR:
    def __init__(self, R):
        self.S = [R.alloc(16, 4), R.alloc(16, 4)]
        self.O = [R.alloc(16, 4), R.alloc(16, 4)]
        self.K = R.alloc(4, 4)
        self.Kx = R.alloc(4, 2)
        self.V0 = R.alloc(4, 4)
        self.V1 = R.alloc(4, 4)
        self.Qm = [R.alloc(4, 4), R.alloc(4, 4)]
        self.Qx = [R.alloc(8, 2), R.alloc(8, 2)]
        self.aK = R.alloc(); self.aKx = R.alloc(); self.aV = R.alloc(4, 1); self.idx = R.alloc()

def E(a, base, lo, n=4):
    for i in range(lo, lo + n):
        a(f"v_exp_f32 v{base+i}, v{base+i}")

def k_off(t): return (t & 7) * 1024
def kx_off(g): return KX_OFF + (g & 1) * 512
def v_off(t): return V_OFF + (t & 7) * 1280

def attn_loop(a, r, prio, pre_mid, post_mid):
    A, B = r.S
    NT = 16
    def smf(o, v, p): a(f"v_smfmac_f32_32x32x32_bf16 {vr(o,16)}, {vr(v,4)}, {vr(p,8)}, v{r.idx}")
    def vread(dst, t, s):
        a(f"ds_read_b64_tr_b16 {vr(dst,2)}, v{r.aV+2*s} offset:{v_off(t)}")
        a(f"ds_read_b64_tr_b16 {vr(dst+2,2)}, v{r.aV+2*s+1} offset:{v_off(t)}")
    a(f"v_mfma_f32_32x32x8_bf16 {vr(A,16)}, {vr(r.Kx,2)}, {vr(r.Qx[0],2)}, 0")
    a(f"v_mfma_f32_32x32x16_bf16 {vr(A,16)}, {vr(r.K,4)}, {vr(r.Qm[0],4)}, {vr(A,16)}")
    for X in range(2):
        for i in range(16): a(f"v_mov_b32 v{r.O[X]+i}, 0")
    E(a, A, 0, 2)
    for t in range(NT):
        if t in prio: a(f"s_setprio {prio[t]}")
        kxp = r.Kx + 2 * ((t >> 2) & 1)
        if t > 0: smf(r.O[1], r.V1, B + 8)
        vread(r.V1, t, 1)
        E(a, A, 2)
        a(f"v_mfma_f32_32x32x8_bf16 {vr(B,16)}, {vr(kxp,2)}, {vr(r.Qx[1]+2*(t&3),2)}, 0")
        n_after = 2
        if (t & 7) == 0:
            a(f"ds_read_b64 {vr(r.Kx+2,2)}, v{r.aKx} offset:{kx_off(1)}")
            n_after += 1
        E(a, A, 6)
        a(f"v_mfma_f32_32x32x16_bf16 {vr(B,16)}, {vr(r.K,4)}, {vr(r.Qm[1],4)}, {vr(B,16)}")
        last = t == NT - 1
        if (t & 7) != 7:
            a(f"ds_read_b128 {vr(r.K,4)}, v{r.aK} offset:{k_off(t+1)}")
            n_after += 1
        else:
            a("s_nop 0")
        E(a, A, 10)
        a(f"s_waitcnt lgkmcnt({n_after})")
        smf(r.O[0], r.V0, A)
        if t in pre_mid: pre_mid[t]()
        E(a, A, 14, 2)
        a("s_nop 2")
        E(a, B, 0, 1)
        a("s_waitcnt lgkmcnt(0)")
        if t in post_mid: post_mid[t]()
        if t == 7:
            a(f"""
            v_add_u32 v{r.aK}, {REG_B}, v{r.aK}
            v_add_u32 v{r.aKx}, {REG_B}, v{r.aKx}
            ds_read_b64 {vr(r.Kx,2)}, v{r.aKx} offset:{kx_off(0)}
            ds_read_b128 {vr(r.K,4)}, v{r.aK} offset:{k_off(0)}
            """)
            for i in range(4): a(f"v_add_u32 v{r.aV+i}, {REG_B}, v{r.aV+i}")
        tn = t + 1
        kxp = r.Kx + 2 * ((tn >> 2) & 1)
        smf(r.O[0], r.V1, A + 8)
        E(a, B, 1, 5)
        if t == 7: a("s_waitcnt lgkmcnt(0)")
        if not last:
            a(f"v_mfma_f32_32x32x8_bf16 {vr(A,16)}, {vr(kxp,2)}, {vr(r.Qx[0]+2*(tn&3),2)}, 0")
        E(a, B, 6)
        if not last:
            a(f"v_mfma_f32_32x32x16_bf16 {vr(A,16)}, {vr(r.K,4)}, {vr(r.Qm[0],4)}, {vr(A,16)}")
        E(a, B, 10)
        smf(r.O[1], r.V0, B)
        if not last:
            vread(r.V0, tn, 0)
        E(a, B, 14, 2)
        if not last:
            a("s_nop 2")
            E(a, A, 0, 2)
    a("s_nop 1")
    smf(r.O[1], r.V1, B + 8)

PRIO = {0: 3, 10: 2, 13: 1, 15: 0}
SPARE = 2 * REG_B

def piece_lds(n):
    return n * 1024 if n < 76 else SPARE + (n - 76) * 1024

def phase23(a):
    sHd, sR, sQP, sKQ, sT, sT2, sC, sCB, sKV, sQt = 4, 5, 6, 7, 8, 9, 10, 11, 12, 13
    sK0, sK1 = 14, 15
    sQT3, sDQ = 80, 81
    R = Regs(4, 128)
    t = [R.alloc() for _ in range(4)]
    r = AR(R)
    vL16 = R.alloc()
    PL = R.alloc(8, 4)
    assert PL == 120 and r.aK == 112
    Lld, LX = a.label("kvload"), a.label("X")
    a(f"""
    s_and_b32 s{sHd}, s2, 7
    s_lshl_b32 s{sQT3}, s{sHd}, 3
    s_lshl_b32 s{sHd}, s{sHd}, 2
    s_bfe_u32 s{sT}, s2, 0x20003
    s_add_u32 s{sHd}, s{sHd}, s{sT}
    s_lshr_b32 s{sR}, s2, 5
    s_bfe_u32 s{sT}, s2, 0x30003
    s_add_u32 s{sQT3}, s{sQT3}, s{sT}
    s_lshr_b32 s{sDQ}, s2, 6
    s_and_b32 s{sQP}, s{S_WAVE}, 3
    s_lshr_b32 s{sKQ}, s{S_WAVE}, 2
    v_lshlrev_b32 v{vL16}, 4, v1
    s_lshl_b32 s{sC}, s{sKQ}, 8
    s_add_u32 s{sC}, s{sC}, s2
    s_mul_i32 s{sCB}, s{sKQ}, {CH}
    s_add_u32 s{sCB}, s{sCB}, {REG_B}
    s_mul_i32 s{sKV}, s{sHd}, {8*BLK}
    s_add_u32 s{sKV}, s{sKV}, {KV_OFF}
    s_cmp_eq_u32 s{sKQ}, 3
    s_cbranch_scc1 {Lld}
    s_cmp_ge_u32 s{sC}, 576
    s_cbranch_scc1 {LX}
    """)
    FA, FB, ACC = 8, 40, 72
    vA, vB, vY, vD = r.aK, r.aKx, r.aV, r.aV + 1
    Lts1, Lcj, Lsw = a.label("ts1"), a.label("cj"), a.label("sw")
    a(f"""
    s_lshl_b32 s{sT}, s{sC}, 1
    v_mov_b32 v{t[0]}, s{sT}
    global_load_ushort v{vD}, v{t[0]}, s[{P_D}:{P_D+1}]
    v_and_b32 v{t[0]}, 15, v1
    v_lshrrev_b32 v{t[1]}, 4, v1
    v_sub_u32 v{t[2]}, 15, v{t[0]}
    v_and_b32 v{t[3]}, 3, v{t[2]}
    v_and_b32 v{t[2]}, 12, v{t[2]}
    v_lshlrev_b32 v{t[2]}, 1, v{t[2]}
    v_lshl_add_u32 v{t[2]}, v{t[1]}, 4, v{t[2]}
    v_mul_u32_u24 v{t[3]}, {CP}, v{t[3]}
    s_and_b32 s{sT}, s{sQP}, 1
    s_lshl_b32 s{sT}, s{sT}, 8
    s_sub_u32 s{sT}, s{sCB}, s{sT}
    v_add3_u32 v{vA}, v{t[2]}, v{t[3]}, s{sT}
    v_lshlrev_b32 v{t[2]}, 5, v{t[0]}
    v_lshl_add_u32 v{t[3]}, v{t[1]}, 4, v{t[2]}
    s_add_u32 s{sT}, s{sT}, {UOFF}
    v_add_u32 v{vB}, s{sT}, v{t[3]}
    v_lshl_add_u32 v{vY}, v{t[1]}, 3, v{t[2]}
    s_lshl_b32 s82, s{sKQ}, 2
    s_add_u32 s82, s82, {CNT}
    """)
    lds_spin(a, t[0], t[1], 3, sT, saddr=82, off=C_RDY)
    a.stamp(5)
    a(f"s_cmp_ge_u32 s{sQP}, 2\ns_cbranch_scc1 {Lts1}")
    T0, T1 = [7, 4, 3, 0], [6, 5, 2, 1]
    conv_main(a, T0, vA, vB, FA, FB, ACC)
    a(f"s_cmp_eq_u32 s{sQP}, 0\ns_cselect_b32 s{sK0}, {T0[0]}, {T0[2]}\ns_cselect_b32 s{sK1}, {T0[1]}, {T0[3]}\ns_branch {Lcj}")
    a(f"{Lts1}:")
    conv_main(a, T1, vA, vB, FA, FB, ACC)
    a(f"s_cmp_eq_u32 s{sQP}, 2\ns_cselect_b32 s{sK0}, {T1[0]}, {T1[2]}\ns_cselect_b32 s{sK1}, {T1[1]}, {T1[3]}")
    a(f"{Lcj}:")
    lds_inc(a, FB + 8, FB + 9, saddr=82, off=C_1)
    a(f"""
    s_lshl_b32 s{sK0}, s{sK0}, 9
    s_lshl_b32 s{sK1}, s{sK1}, 9
    s_lshl_b32 s{sT}, s{sQP}, 11
    s_add_u32 s{sT}, s{sT}, s{sCB}
    v_add_u32 v{t[0]}, s{sT}, v{vL16}
    s_xor_b32 s{sT}, s{sQP}, 1
    s_lshl_b32 s{sT}, s{sT}, 11
    s_add_u32 s{sT}, s{sT}, s{sCB}
    v_add_u32 v{t[1]}, s{sT}, v{vL16}
    s_add_u32 s{sT}, s{sCB}, s{sK0}
    v_add_u32 v{t[2]}, s{sT}, v{vY}
    s_add_u32 s{sT}, s{sCB}, s{sK1}
    v_add_u32 v{t[3]}, s{sT}, v{vY}
    ds_read_b64 {vr(FA,2)}, v{t[2]} offset:{UOFF+512}
    ds_read_b64 {vr(FA+2,2)}, v{t[3]} offset:{UOFF+512}
    s_bitcmp0_b32 s{sQP}, 0
    s_cbranch_scc1 {Lsw}
    """)
    for i in range(8):
        a(f"v_swap_b32 v{ACC+i}, v{ACC+8+i}")
    a(f"{Lsw}:")
    lds_spin(a, FB + 8, FB + 9, 4, sT, saddr=82, off=C_1)
    a(f"""
    ds_write_b128 v{t[0]}, {vr(ACC+8,4)}
    ds_write_b128 v{t[0]}, {vr(ACC+12,4)} offset:1024
    """)
    lds_inc(a, FB + 8, FB + 9, saddr=82, off=C_2)
    a(f"s_waitcnt vmcnt(0)\nv_lshlrev_b32 v{vD}, 16, v{vD}")
    for j in range(2):
        for h in range(2):
            a(f"v_lshlrev_b32 v{FA+4}, 16, v{FA+2*j+h}")
            a(f"v_and_b32 v{FA+5}, 0xffff0000, v{FA+2*j+h}")
            a(f"v_fmac_f32 v{ACC+4*j+2*h}, v{FA+4}, v{vD}")
            a(f"v_fmac_f32 v{ACC+4*j+2*h+1}, v{FA+5}, v{vD}")
    lds_spin(a, FB + 8, FB + 9, 4, sT, saddr=82, off=C_2)
    a(f"""
    ds_read_b128 {vr(FB,4)}, v{t[1]}
    ds_read_b128 {vr(FB+4,4)}, v{t[1]} offset:1024
    s_lshl_b32 s{sT}, s{sC}, 12
    s_add_u32 s{sT}, s{sT}, {AT_OFF}
    s_add_u32 s{sK0}, s{sK0}, s{sT}
    s_add_u32 s{sK1}, s{sK1}, s{sT}
    s_waitcnt lgkmcnt(0)
    """)
    for i in range(8):
        a(f"v_add_f32 v{ACC+i}, v{ACC+i}, v{FB+i}")
    for i in range(4):
        a(f"v_cvt_pk_bf16_f32 v{PL+i}, v{ACC+2*i}, v{ACC+2*i+1}")
    a(f"""
    buffer_store_dwordx2 {vr(PL,2)}, v{vY}, {WS}, s{sK0} offen{ST}
    buffer_store_dwordx2 {vr(PL+2,2)}, v{vY}, {WS}, s{sK1} offen{ST}
    s_branch {LX}
    """)
    Lnp, Lgo = a.label("npoll"), a.label("go")
    a(f"""{Lld}:
    s_cmp_lg_u32 s{sQP}, 0
    s_cbranch_scc1 {Lnp}
    v_lshrrev_b32 v{t[0]}, 4, v1
    v_lshl_add_u32 v{t[0]}, v{t[0]}, 5, s{sHd}
    v_mul_u32_u24 v{t[0]}, 43, v{t[0]}
    v_lshrrev_b32 v{t[0]}, 8, v{t[0]}
    v_and_b32 v{t[1]}, 15, v1
    v_lshl_add_u32 v{t[0]}, v{t[0]}, 4, v{t[1]}
    v_lshlrev_b32 v{t[2]}, 7, v{t[0]}
    v_add_u32 v{t[2]}, {FL_Q}, v{t[2]}
    s_lshl_b32 s{sT}, s{sR}, 1
    s_lshl_b32 s{sT}, 3, s{sT}
    s_or_b32 exec_lo, s{sT}, 0xffff0000
    s_mov_b32 exec_hi, 0xffff
    """)
    poll_wait(a, t[3], 1, t[2], 0)
    a("s_mov_b64 exec, -1")
    lds_spin(a, t[0], t[1], 8, sT, off=C_S)
    lds_inc(a, t[0], t[1], off=C_Q)
    a(f"s_branch {Lgo}\n{Lnp}:")
    lds_spin(a, t[0], t[1], 1, sT, off=C_Q)
    a(f"{Lgo}:")
    a.stamp(5)
    Lq = a.label("noqx")
    a(f"""
    s_lshl_b32 s{sT}, s{sHd}, 3
    s_add_u32 s{sT}, s{sT}, s{sR}
    s_lshl_b32 s{sT2}, s{sT}, 13
    s_lshl_b32 s82, s{sQP}, 11
    s_add_u32 s{sT2}, s{sT2}, s82
    s_add_u32 s{sT2}, s{sT2}, {QF_OFF}
    s_add_u32 m0, s82, {QST}
    s_lshl_b32 s{sT}, s{sT}, 10
    buffer_load_dwordx4 v{vL16}, {WS}, s{sT2} offen{LD} lds
    buffer_load_dwordx4 v{vL16}, {WS}, s{sT2} offen offset:1024{LD} lds
    s_cmp_lg_u32 s{sQP}, 0
    s_cbranch_scc1 {Lq}
    s_mov_b32 m0, {QST+8192}
    s_add_u32 s{sT}, s{sT}, {QX_OFF}
    buffer_load_dwordx4 v{vL16}, {WS}, s{sT} offen{LD} lds
    {Lq}:
    s_lshl_b32 s{sT}, s{sQP}, 1
    s_and_b32 s{sT2}, s{sR}, 1
    s_add_u32 s{sT}, s{sT}, s{sT2}
    s_mul_i32 s{sT}, s{sT}, {BLK}
    s_add_u32 s{sT}, s{sT}, s{sKV}
    s_mul_i32 m0, s{sQP}, {BLK}
    s_nop 0
    """)
    for n in range(19):
        a(f"buffer_load_dwordx4 v{vL16}, {WS}, s{sT} offen offset:{1024*(n&3)}{LD} lds")
        if n & 3 == 3:
            a(f"s_add_u32 m0, m0, 4096\ns_add_u32 s{sT}, s{sT}, 4096")
    a(f"{LX}:")
    a(f"""
    s_mul_i32 s{sT}, s{sKQ}, {BLK}
    v_add_u32 v{r.aK}, s{sT}, v{vL16}
    v_lshl_add_u32 v{r.aKx}, v1, 3, s{sT}
    v_bfe_u32 v{t[0]}, v1, 2, 2
    v_and_b32 v{t[1]}, 1, v1
    v_lshlrev_b32 v{t[1]}, 4, v{t[1]}
    v_and_b32 v{t[2]}, 2, v1
    v_lshl_add_u32 v{t[1]}, v{t[2]}, 2, v{t[1]}
    v_lshl_add_u32 v{t[1]}, v{t[0]}, 5, v{t[1]}
    v_and_b32 v{t[3]}, 32, v1
    v_lshl_add_u32 v{t[1]}, v{t[3]}, 3, v{t[1]}
    v_lshl_add_u32 v{t[0]}, v{t[0]}, 3, v{t[3]}
    v_add_u32 v{t[0]}, 1152, v{t[0]}
    v_lshl_add_u32 v{t[0]}, v{t[2]}, 17, v{t[0]}
    v_and_b32 v{t[2]}, 16, v1
    v_cmp_eq_u32 vcc, 0, v{t[2]}
    v_lshlrev_b32 v{t[2]}, 4, v{t[2]}
    v_mov_b32 v{t[3]}, 512
    v_cndmask_b32 v{t[1]}, v{t[0]}, v{t[1]}, vcc
    v_add_u32 v{r.aV}, s{sT}, v{t[1]}
    v_sub_u32 v{t[2]}, 128, v{t[2]}
    v_cndmask_b32 v{t[3]}, 64, v{t[3]}, vcc
    v_add_u32 v{r.aV+1}, v{r.aV}, v{t[2]}
    v_add_u32 v{r.aV+2}, v{r.aV}, v{t[3]}
    v_add_u32 v{r.aV+3}, v{r.aV+2}, v{t[2]}
    v_mov_b32 v{r.idx}, 0xdddddddd
    s_lshl_b32 s{sT}, s{sQP}, 11
    s_add_u32 s{sT}, s{sT}, {QST}
    v_add_u32 v{t[0]}, s{sT}, v{vL16}
    v_and_b32 v{t[1]}, 31, v1
    s_lshl_b32 s{sT}, s{sQP}, 8
    s_add_u32 s{sT}, s{sT}, {QST+8192}
    v_lshl_add_u32 v{t[1]}, v{t[1]}, 2, s{sT}
    v_cmp_gt_u32 vcc, 32, v1
    s_lshl_b32 s{sQt}, s{sR}, 2
    s_add_u32 s{sQt}, s{sQt}, s{sQP}
    """)
    for X in range(2):
        for i in (1, 2, 5, 6): a(f"v_mov_b32 v{r.Qx[X]+i}, 0")
    a("s_waitcnt vmcnt(0)")
    a.stamp(6)
    Lfa = a.label("nofa")
    a(f"""
    s_barrier
    ds_read_b128 {vr(r.Qm[0],4)}, v{t[0]}
    ds_read_b128 {vr(r.Qm[1],4)}, v{t[0]} offset:1024
    ds_read2_b32 {vr(t[2],2)}, v{t[1]} offset0:0 offset1:32
    ds_read_b64 {vr(r.Kx,2)}, v{r.aKx} offset:{kx_off(0)}
    ds_read_b128 {vr(r.K,4)}, v{r.aK} offset:{k_off(0)}
    ds_read_b64_tr_b16 {vr(r.V0,2)}, v{r.aV} offset:{v_off(0)}
    ds_read_b64_tr_b16 {vr(r.V0+2,2)}, v{r.aV+1} offset:{v_off(0)}
    s_cmp_lg_u32 s{S_WAVE}, 15
    s_cbranch_scc1 {Lfa}
    s_lshl_b32 s{sT2}, s2, 2
    s_add_u32 s{sT2}, s{sT2}, {FL_A}
    """)
    flag_store(a, PL, sT2)
    a(f"""{Lfa}:
    s_lshl_b32 s{sT}, s{sKQ}, 1
    s_and_b32 s{sT2}, s{sR}, 1
    s_xor_b32 s{sT2}, s{sT2}, 1
    s_add_u32 s{sT}, s{sT}, s{sT2}
    s_mul_i32 s{sT}, s{sT}, {BLK}
    s_add_u32 s{sT}, s{sT}, s{sKV}
    s_lshl_b32 s{sT2}, s{sQP}, 10
    s_add_u32 s{sT}, s{sT}, s{sT2}
    s_mul_i32 s82, s{sKQ}, {BLK}
    s_add_u32 s82, s82, s{sT2}
    s_add_u32 m0, s82, {REG_B}
    s_waitcnt lgkmcnt(2)
    s_barrier
    """)
    for X in range(2):
        q = r.Qx[X]; src = t[2] + X
        a(f"""
        v_cndmask_b32 v{q+0}, 0, v{src}, vcc
        v_cndmask_b32 v{q+3}, 0, v{src}, vcc
        v_cndmask_b32 v{q+4}, v{src}, 0, vcc
        v_cndmask_b32 v{q+7}, v{src}, 0, vcc
        """)
    def second_blocks():
        Ls = a.label("kvs")
        for i in range(5):
            if i == 4: a(f"s_cmp_eq_u32 s{sQP}, 3\ns_cbranch_scc1 {Ls}")
            a(f"buffer_load_dwordx4 v{vL16}, {WS}, s{sT} offen{LD} lds")
            if i < 4: a(f"s_add_u32 m0, m0, 4096\ns_add_u32 s{sT}, s{sT}, 4096")
        a(f"{Ls}:")
    a("s_nop 1")
    a.stamp(7)
    def poll_post():
        L = a.label("nopa")
        a(f"s_cmp_lg_u32 s{S_WAVE}, 12\ns_cbranch_scc1 {L}")
        poll_issue(a, PL, 4, vL16, FL_A)
        a(f"{L}:")
    def mid_post():
        L = a.label("nopw")
        a(f"s_waitcnt vmcnt(0)\ns_cmp_lg_u32 s{S_WAVE}, 12\ns_cbranch_scc1 {L}")
        poll_wait(a, PL, 4, vL16, FL_A, issued=True)
        a(f"{L}:")
        a.stamp(15)
        a("s_barrier")
        a.stamp(16)
    NLD = 8
    def prefetch_post():
        La, Ld = a.label("pfa"), a.label("pfd")
        a(f"""
        s_cmp_ge_u32 s{S_WAVE}, 9
        s_cbranch_scc1 {La}
        s_mul_i32 s{sT}, s{sDQ}, 9
        s_add_u32 s{sT}, s{sT}, s{S_WAVE}
        s_lshl_b32 m0, s{S_WAVE}, 13
        s_mul_i32 s{sT}, s{sT}, {18*1024}
        s_add_u32 s{sT}, s{sT}, {WT_OFF}
        """)
        for n in range(NLD):
            a(f"buffer_load_dwordx4 v{vL16}, {WS}, s{sT} offen offset:{1024*(n&3)}{LD} lds")
            if n == 3: a(f"s_add_u32 m0, m0, 4096\ns_add_u32 s{sT}, s{sT}, 4096")
        a(f"""
        v_lshrrev_b32 v{t[0]}, 2, v1
        v_lshlrev_b32 v{t[0]}, 12, v{t[0]}
        v_and_b32 v{t[1]}, 3, v1
        v_lshl_add_u32 v{t[0]}, v{t[1]}, 4, v{t[0]}
        s_mul_i32 s{sT}, s{sDQ}, 9
        s_add_u32 s{sT}, s{sT}, s{S_WAVE}
        s_lshl_b32 s{sT}, s{sT}, 16
        s_lshl_b32 s{sT2}, s{sQT3}, 6
        s_add_u32 s{sT}, s{sT}, s{sT2}
        s_add_u32 s{sT}, s{sT}, {AT_OFF}
        s_lshl_b32 s{sK1}, s{S_WAVE}, 10
        s_add_u32 s{sT2}, s{sK1}, {SPARE - 4096}
        s_add_u32 s{sK1}, s{sK1}, {72*1024}
        s_cmp_ge_u32 s{S_WAVE}, 4
        s_cselect_b32 s{sK1}, s{sT2}, s{sK1}
        s_mov_b32 m0, s{sK1}
        s_nop 0
        buffer_load_dwordx4 v{t[0]}, {WS}, s{sT} offen{LD} lds
        {La}:
        """)
    attn_loop(a, r, PRIO, {}, {0: second_blocks, 5: poll_post, 7: mid_post, 8: prefetch_post})
    a.stamp(8)
    O0, O1 = r.O
    PART = 2432
    FD = [72 + 4*i for i in range(10)]
    FL = [8 + 4*i for i in range(8)]
    FA3 = FL + FD
    AV, vG, vB, vOut, ACC3, FB3 = 112, 116, 118, t[3], PL, 40
    Lfin, Lnd, Lp9, LF, Lend = [a.label(x) for x in ("fin", "nd", "p9", "F", "end")]
    a(f"""
    s_lshl_b32 s82, s{sKQ}, 2
    s_add_u32 s82, s82, {CNT}
    """)
    lds_inc(a, t[0], t[1], saddr=82, off=C_E)
    a(f"""
    s_mul_i32 s{sCB}, s{sQP}, {2*PART}
    s_add_u32 s{sCB}, s{sCB}, {REG_B}
    v_and_b32 v{t[3]}, 31, v1
    s_cmp_eq_u32 s{sKQ}, 3
    s_cbranch_scc1 {Lfin}
    s_cmp_ge_u32 s{S_WAVE}, 9
    s_cbranch_scc1 {Lnd}
    v_and_b32 v{t[2]}, 15, v1
    v_lshlrev_b32 v{t[2]}, 2, v{t[2]}
    s_lshl_b32 s{sT}, s{sQT3}, 7
    s_add_u32 s{sT}, s{sT}, {G_OFF}
    buffer_load_dword v{vG}, v{t[2]}, {WS}, s{sT} offen{LD}
    buffer_load_dword v{vG+1}, v{t[2]}, {WS}, s{sT} offen offset:64{LD}
    {Lnd}:
    s_mul_i32 s{sT}, s{sKQ}, {BLK}
    s_add_u32 s{sT}, s{sT}, s{sCB}
    v_add_u32 v{t[2]}, s{sT}, v{vL16}
    v_lshl_add_u32 v{t[3]}, v{t[3]}, 2, s{sT}
    """)
    lds_spin(a, t[0], t[1], 4, sT, saddr=82, off=C_E)
    for X, O in enumerate((O0, O1)):
        a(f"ds_write_b128 v{t[2]}, {vr(O,4)} offset:{X*PART}")
        a(f"ds_write_b128 v{t[2]}, {vr(O+4,4)} offset:{X*PART+1024}")
    a("s_mov_b64 exec, 0xffffffff")
    for X, O in enumerate((O0, O1)):
        for i in range(3):
            a(f"ds_write_b32 v{t[3]}, v{O+8+i} offset:{X*PART+2048+128*i}")
    a(f"s_lshl_b32 s82, s{sQP}, 2\ns_add_u32 s82, s82, {CNT}")
    lds_inc(a, t[0], t[1], saddr=82, off=C_P)
    a.stamp(17)
    a(f"""
    s_cmp_ge_u32 s{S_WAVE}, 9
    s_cbranch_scc1 {Lp9}
    s_mul_i32 s{sK0}, s{sDQ}, 9
    s_add_u32 s{sK0}, s{sK0}, s{S_WAVE}
    s_mul_i32 s{sT}, s{sK0}, {18*1024}
    s_add_u32 s{sT}, s{sT}, {WT_OFF + NLD*1024}
    """)
    for n in range(10):
        a(f"buffer_load_dwordx4 {vr(FD[n],4)}, v{vL16}, {WS}, s{sT} offen offset:{1024*(n&3)}{LD}")
        if n & 3 == 3: a(f"s_add_u32 s{sT}, s{sT}, 4096")
    a(f"""
    s_lshl_b32 s{sT}, s{S_WAVE}, 13
    v_add_u32 v{t[0]}, s{sT}, v{vL16}
    v_lshrrev_b32 v{t[1]}, 2, v1
    v_lshlrev_b32 v{t[1]}, 6, v{t[1]}
    v_and_b32 v{t[2]}, 3, v1
    v_lshl_add_u32 v{t[1]}, v{t[2]}, 3, v{t[1]}
    v_add_u32 v{t[1]}, s{sK1}, v{t[1]}
    s_waitcnt vmcnt(10) lgkmcnt(0)
    """)
    for ks in range(NLD):
        a(f"ds_read_b128 {vr(FL[ks],4)}, v{t[0]} offset:{1024*ks}")
    a(f"""
    ds_read_b64_tr_b16 {vr(AV,2)}, v{t[1]}
    ds_read_b64_tr_b16 {vr(AV+2,2)}, v{t[1]} offset:32
    v_lshrrev_b32 v{t[0]}, 4, v1
    v_and_b32 v{t[2]}, 15, v1
    v_lshlrev_b32 v{vB}, 9, v{t[0]}
    v_add_u32 v{vB}, {REG_B}, v{vB}
    v_lshl_add_u32 v{vB+1}, v{t[2]}, 2, v{vB}
    v_add_u32 v{vB+1}, 32768, v{vB+1}
    v_lshl_add_u32 v{vB}, v{t[2]}, 4, v{vB}
    v_mul_u32_u24 v{vOut}, 1152, v{t[2]}
    v_lshl_add_u32 v{vOut}, v{t[0]}, 3, v{vOut}
    v_add_u32 v{t[2]}, 2048, v{vB+1}
    """)
    for T in range(2):
        g = vG + T
        a(f"""
        v_cvt_pk_bf16_f32 v{g}, v{g}, v{g}
        v_and_b32 v{g}, 0xffff0000, v{g}
        v_mul_f32 v{g}, {fbits(-L_HI)}, v{g}
        v_exp_f32 v{g}, v{g}
        s_nop 0
        v_add_f32 v{g}, 1.0, v{g}
        v_rcp_f32 v{g}, v{g}
        s_nop 0
        v_cvt_pk_bf16_f32 v{g}, v{g}, v{g}
        v_and_b32 v{g}, 0xffff0000, v{g}
        """)
    srd(a, R_A, P_OUT, X_BYTES)
    a(f"""
    s_mul_i32 s{sT}, s{sQT3}, {32*1152}
    s_lshl_b32 s{sT2}, s{sK0}, 5
    s_add_u32 s{sT}, s{sT}, s{sT2}
    s_add_u32 s{sT2}, s{sT}, {16*1152}
    s_waitcnt vmcnt(0) lgkmcnt(0)
    s_barrier
    """)
    a.stamp(21)
    sb = Lgkm(a)
    def ldB(n):
        ks, T = n >> 1, n & 1
        d = FB3 + 4 * (n & 7)
        if ks < 16:
            sb.load(f"ds_read_b128 {vr(d,4)}, v{vB} offset:{ks*2048 + T*256}", rng(d, 4))
        else:
            va = vB + 1 if ks == 16 else t[2]
            sb.load(f"ds_read2_b32 {vr(d,2)}, v{va} offset0:{16*T} offset1:{16*T+32}", rng(d, 2))
            sb.load(f"ds_read2_b32 {vr(d+2,2)}, v{va} offset0:{16*T+64} offset1:{16*T+96}", rng(d+2, 2))
    for n in range(8): ldB(n)
    for n in range(36):
        ks, T = n >> 1, n & 1
        d = FB3 + 4 * (n & 7)
        sb.need(rng(d, 4))
        c = "0" if ks == 0 else vr(ACC3+4*T, 4)
        a(f"v_mfma_f32_16x16x32_bf16 {vr(ACC3+4*T,4)}, {vr(FA3[ks],4)}, {vr(d,4)}, {c}")
        if n + 8 < 36: ldB(n + 8)
    W = 8
    for T in range(2):
        g = vG + T
        a(f"""
        v_sub_f32 v{t[0]}, 1.0, v{g}
        v_cvt_pk_bf16_f32 v{t[0]}, v{t[0]}, v{t[0]}
        v_and_b32 v{t[0]}, 0xffff0000, v{t[0]}
        """)
        for h in range(2):
            a(f"""
            v_lshlrev_b32 v{W+4*T+2*h}, 16, v{AV+2*T+h}
            v_and_b32 v{W+4*T+2*h+1}, 0xffff0000, v{AV+2*T+h}
            """)
        for i in range(4): a(f"v_mul_f32 v{W+4*T+i}, v{g}, v{W+4*T+i}")
        for i in range(4): a(f"v_fmac_f32 v{W+4*T+i}, v{t[0]}, v{ACC3+4*T+i}")
        a(f"""
        v_cvt_pk_bf16_f32 v{W+8+2*T}, v{W+4*T}, v{W+4*T+1}
        v_cvt_pk_bf16_f32 v{W+9+2*T}, v{W+4*T+2}, v{W+4*T+3}
        buffer_store_dwordx2 {vr(W+8+2*T,2)}, v{vOut}, s[{R_A}:{R_A+3}], s{sT if T == 0 else sT2} offen
        """)
    a(f"s_branch {Lend}")
    Lnp2, Lgo2 = a.label("npoll"), a.label("go")
    a(f"""{Lp9}:
    s_cmp_lg_u32 s{S_WAVE}, 9
    s_cbranch_scc1 {Lnp2}
    """)
    lds_spin(a, t[0], t[1], 4, sT, off=C_O)
    a(f"""
    s_lshr_b32 s{sT}, s{sQT3}, 1
    s_lshl_b32 s{sT}, s{sT}, 12
    s_add_u32 s{sT}, s{sT}, {FL_O}
    v_lshl_add_u32 v{t[2]}, v1, 7, s{sT}
    s_mov_b64 exec, 0xffffffff
    """)
    poll_wait(a, t[3], 1, t[2], 0)
    a("s_mov_b64 exec, -1")
    lds_inc(a, t[0], t[1], off=C_F)
    a(f"s_branch {Lgo2}\n{Lnp2}:")
    lds_spin(a, t[0], t[1], 1, sT, off=C_F)
    a(f"{Lgo2}:")
    a.stamp(20)
    a(f"""
    s_sub_u32 s{sT2}, s{S_WAVE}, 9
    s_mul_i32 s{sT2}, s{sT2}, {12*1024}
    s_add_u32 m0, s{sT2}, {REG_B}
    s_mul_i32 s{sT}, s{sQT3}, {36*1024}
    s_add_u32 s{sT}, s{sT}, s{sT2}
    s_add_u32 s{sT}, s{sT}, {OF_OFF}
    """)
    for n in range(12):
        a(f"buffer_load_dwordx4 v{vL16}, {WS}, s{sT} offen offset:{1024*(n&3)}{LD} lds")
        if n & 3 == 3 and n < 11: a(f"s_add_u32 m0, m0, 4096\ns_add_u32 s{sT}, s{sT}, 4096")
    a(f"s_waitcnt vmcnt(0)\ns_barrier\ns_branch {Lend}")
    a(f"""{Lfin}:
    v_add_u32 v{t[2]}, s{sCB}, v{vL16}
    v_lshl_add_u32 v{t[3]}, v{t[3]}, 2, s{sCB}
    s_lshl_b32 s82, s{sQP}, 2
    s_add_u32 s82, s82, {CNT}
    s_lshl_b32 s{sK0}, s{sQt}, 5
    s_add_u32 s{sK0}, s{sK0}, s{sHd}
    s_lshl_b32 s{sK0}, s{sK0}, 7
    s_add_u32 s{sK0}, s{sK0}, {FL_O}
    s_mul_i32 s{sQt}, s{sQt}, {72*1024}
    s_add_u32 s{sQt}, s{sQt}, {OF_OFF}
    s_lshl_b32 s{sT}, s{sHd}, 7
    s_add_u32 s{sK1}, s{sQt}, s{sT}
    s_add_u32 s{sK1}, s{sK1}, 32768
    s_lshl_b32 s{sT}, s{sHd}, 10
    s_add_u32 s{sQt}, s{sQt}, s{sT}
    """)
    lds_spin(a, t[0], t[1], 3, sT, saddr=82, off=C_P)
    a.stamp(18)
    P = [8, 20, 72]
    ret = []
    for X, O in enumerate((O0, O1)):
        for s in range(3):
            o = s * BLK + X * PART
            a(f"ds_read_b128 {vr(P[s],4)}, v{t[2]} offset:{o}")
            a(f"ds_read_b128 {vr(P[s]+4,4)}, v{t[2]} offset:{o+1024}")
            for i in range(3): a(f"ds_read_b32 v{P[s]+8+i}, v{t[3]} offset:{o+2048+128*i}")
        for s in range(3):
            a(f"s_waitcnt lgkmcnt({10-5*s})")
            for i in range(11): a(f"v_add_f32 v{O+i}, v{O+i}, v{P[s]+i}")
    lds_inc(a, t[0], t[1], off=C_O)
    a(f"v_and_b32 v{t[3]}, 31, v1\nv_lshlrev_b32 v{t[3]}, 2, v{t[3]}\ns_movk_i32 s{sT}, 0x1f8\ns_mov_b64 s[74:75], -1")
    a.c("softmax ran without max subtraction: valid only if the row sums stayed in a safe range, else redo with the true max")
    for X, O in enumerate((O0, O1)):
        a(f"v_add_f32 v{t[2]}, v{O}, v{O+1}")
        for i in range(2, 10): a(f"v_add_f32 v{t[2]}, v{t[2]}, v{O+i}")
        a(f"""
        v_cmp_class_f32 vcc, v{t[2]}, s{sT}
        s_and_b64 s[74:75], s[74:75], vcc
        v_cmp_le_f32 vcc, {fbits(2.0**-40)}, v{O+10}
        s_and_b64 s[74:75], s[74:75], vcc
        v_cmp_ge_f32 vcc, {fbits(2.0**60)}, v{O+10}
        s_and_b64 s[74:75], s[74:75], vcc
        """)
    a(f"""
    s_cmp_eq_u64 s[74:75], -1
    s_cbranch_scc0 L_fallback
    L_norm:
    v_rcp_f32 v{t[0]}, v{O0+10}
    v_rcp_f32 v{t[1]}, v{O1+10}
    """)
    for X, O in enumerate((O0, O1)):
        for i in range(10): a(f"v_mul_f32 v{O+i}, v{O+i}, v{t[X]}")
        D = 8 + 8 * X
        for i in range(5): a(f"v_cvt_pk_bf16_f32 v{D+i}, v{O+2*i}, v{O+2*i+1}")
        a(f"buffer_store_dwordx4 {vr(D,4)}, v{vL16}, {WS}, s{sQt} offen{ST}")
        if X == 0: a(f"s_add_u32 s{sQt}, s{sQt}, {36*1024}")
    a(f"""
    s_mov_b64 exec, 0xffffffff
    buffer_store_dword v12, v{t[3]}, {WS}, s{sK1} offen{ST}
    s_add_u32 s{sK1}, s{sK1}, {36*1024}
    buffer_store_dword v20, v{t[3]}, {WS}, s{sK1} offen{ST}
    s_mov_b64 exec, -1
    """)
    a.stamp(19)
    a("s_waitcnt vmcnt(0)")
    flag_store(a, t[0], sK0)
    a.stamp(20)
    a(f"""
    s_lshl_b32 s{sT}, s2, 4
    s_add_u32 s{sT}, s{sT}, s{S_WAVE}
    s_cmp_lg_u32 s{sT}, 12
    s_cbranch_scc1 {Lend}
    s_mov_b32 s{sT2}, {FL_OFF}
    """)
    flag_store(a, t[0], sT2)
    a(f"{Lend}:")
    def cold():
        a("L_fallback:")
        a(f"s_mov_b32 s82, {CNT+12}")
        lds_spin(a, t[0], t[1], 4, sT, saddr=82, off=C_E)
        fallback(a, r, t, vL16, sKV, sQP, sT, sT2)
        a("s_branch L_norm")
    return cold

def fallback(a, r, t, vL16, sKV, sQP, sT, sT2):
    S, NM = r.S[0], r.S[1]
    sI, sP, sLds = 76, 77, 82
    vM, vKxo = r.aK, r.aKx
    a(f"""
    s_lshl_b32 s{sT}, s{sQP}, 11
    s_add_u32 s{sLds}, s{sT}, {REG_B + 3*BLK}
    v_and_b32 v{vKxo}, 31, v1
    v_lshlrev_b32 v{vKxo}, 3, v{vKxo}
    v_mov_b32 v{r.Kx+1}, 0
    """)
    for i in range(4): a(f"v_add_u32 v{r.aV+i}, s{sT}, v{r.aV+i}")
    for X in range(2):
        O = r.O[X]
        Lp, Lt, Lp2, Lnx, Ldn = a.label("fbpass"), a.label("fbtile"), a.label("fbp2"), a.label("fbnx"), a.label("fbdone")
        a(f"v_mov_b32 v{vM}, 0xff800000\ns_mov_b32 s{sP}, 0")
        for i in range(16): a(f"v_mov_b32 v{NM+i}, 0\nv_mov_b32 v{O+i}, 0")
        a(f"""{Lp}:
        s_mov_b32 s{sI}, 0
        {Lt}:
        s_lshr_b32 s{sT}, s{sI}, 3
        s_mul_i32 s{sT}, s{sT}, {BLK}
        s_add_u32 s{sT}, s{sT}, s{sKV}
        s_and_b32 s{sT2}, s{sI}, 7
        s_lshl_b32 s78, s{sT2}, 10
        s_add_u32 s78, s78, s{sT}
        buffer_load_dwordx4 {vr(r.K,4)}, v{vL16}, {WS}, s78 offen{LD}
        s_and_b32 s78, s{sI}, 6
        s_lshl_b32 s78, s78, 7
        s_and_b32 s79, s{sI}, 1
        s_lshl_b32 s79, s79, 2
        s_add_u32 s78, s78, s79
        s_add_u32 s78, s78, s{sT}
        s_add_u32 s78, s78, {KX_OFF}
        buffer_load_dword v{r.Kx}, v{vKxo}, {WS}, s78 offen{LD}
        s_mul_i32 s78, s{sT2}, 1280
        s_add_u32 s78, s78, s{sT}
        s_add_u32 s78, s78, {V_OFF}
        s_mov_b32 m0, s{sLds}
        s_nop 0
        buffer_load_dwordx4 v{vL16}, {WS}, s78 offen{LD} lds
        s_mov_b64 exec, 0xffff
        buffer_load_dwordx4 v{vL16}, {WS}, s78 offen offset:1024{LD} lds
        s_mov_b64 exec, -1
        s_waitcnt vmcnt(0)
        v_mfma_f32_32x32x8_bf16 {vr(S,16)}, {vr(r.Kx,2)}, {vr(r.Qx[X],2)}, {vr(NM,16)}
        v_mfma_f32_32x32x16_bf16 {vr(S,16)}, {vr(r.K,4)}, {vr(r.Qm[X],4)}, {vr(S,16)}
        ds_read_b64_tr_b16 {vr(r.V0,2)}, v{r.aV}
        ds_read_b64_tr_b16 {vr(r.V0+2,2)}, v{r.aV+1}
        ds_read_b64_tr_b16 {vr(r.V1,2)}, v{r.aV+2}
        ds_read_b64_tr_b16 {vr(r.V1+2,2)}, v{r.aV+3}
        s_waitcnt lgkmcnt(0)
        s_nop 15
        s_cmp_lg_u32 s{sP}, 0
        s_cbranch_scc1 {Lp2}
        """)
        for i in range(8): a(f"v_max3_f32 v{vM}, v{S+2*i}, v{S+2*i+1}, v{vM}")
        a(f"s_branch {Lnx}\n{Lp2}:")
        E(a, S, 0, 16)
        a(f"""
        s_nop 1
        v_smfmac_f32_32x32x32_bf16 {vr(O,16)}, {vr(r.V0,4)}, {vr(S,8)}, v{r.idx}
        v_smfmac_f32_32x32x32_bf16 {vr(O,16)}, {vr(r.V1,4)}, {vr(S+8,8)}, v{r.idx}
        {Lnx}:
        s_add_u32 s{sI}, s{sI}, 1
        s_cmp_lt_u32 s{sI}, 64
        s_cbranch_scc1 {Lt}
        s_cmp_lg_u32 s{sP}, 0
        s_cbranch_scc1 {Ldn}
        v_mov_b32 v{t[2]}, v{vM}
        s_nop 1
        v_permlane32_swap_b32 v{vM}, v{t[2]}
        s_nop 1
        v_max_f32 v{vM}, v{vM}, v{t[2]}
        """)
        for i in range(16): a(f"v_sub_f32 v{NM+i}, 0, v{vM}")
        a(f"""
        s_mov_b32 s{sP}, 1
        s_branch {Lp}
        {Ldn}:
        s_nop 15
        """)
```

```python
BLK = 19456
KX_OFF = 8192
V_OFF = 9216
FL_OFF = 0
FL_A = 2048
FL_U = 4096
FL_Q = FL_U + 256 * 128
FL_O = FL_Q + 256 * 128
QF_OFF = FL_O + 1024 * 128
QX_OFF = QF_OFF + (2 << 20)
KV_OFF = QX_OFF + (256 << 10)
UT_OFF = KV_OFF + 32 * 8 * BLK
AT_OFF = UT_OFF + 576 * 4096
OF_OFF = UT_OFF
WT_OFF = AT_OFF + 576 * 4096
G_OFF = WT_OFF + 36 * 18 * 1024
DG_OFF = G_OFF + 8192
FL_P = DG_OFF + 256 * 16 * 128
WS_BYTES = FL_P + 96 * 16 * 128
X_BYTES = 2048 * 576 * 2
W_BYTES = 576 * 1728 * 2
WO_BYTES = 576 * 576 * 2
P_BYTES = 576 * 128 * 2
QSCALE = 1.4426950408889634 / 18 ** 0.5
import struct
def fbits(x):
    return struct.unpack("<I", struct.pack("<f", x))[0]
```

```python
import sys
sys.path.insert(0, "gen")
from asmlib import *
from layout import *
import f1, f2
NAME = "gated_mix__ssm_conv_s4d__mha_block__prompt"
HEAD = open("cdna_kernels/" + NAME + ".s.ref").read().split("; Override launch")[0]

def build(diag=False):
    a = Asm(); a.diag = diag
    name = NAME + "_kernel"
    if diag:
        a("s_memrealtime s[96:97]\ns_memtime s[94:95]\nv_mov_b32 v2, 0")
    f1.phase1(a, name, "L_end")
    if diag:
        a("v_writelane_b32 v2, s96, 0\nv_writelane_b32 v2, s94, 30")
    cold = f2.phase23(a)
    if diag:
        a("s_waitcnt vmcnt(0)")
        a.stamp(29); a.stamp(31, False)
        a(f"""
        s_lshl_b32 s4, s2, 4
        s_add_u32 s4, s4, s3
        s_lshl_b32 s4, s4, 7
        s_add_u32 s4, s4, {DG_OFF}
        v_lshlrev_b32 v3, 2, v1
        s_mov_b64 exec, 0xffffffff
        buffer_store_dword v2, v3, {f1.WS}, s4 offen
        """)
    a("s_endpgm")
    cold()
    a("L_end:\ns_endpgm")
    out = HEAD + "; @launch grid=(256,1,1) block=(1024,1,1) lds=163840\n.amdgcn_target \"amdgcn-amd-amdhsa--gfx950\"\n.text\n"
    out += f".globl {name}\n.p2align 8\n.type {name},@function\n{name}:\n" + a.text()
    out += f""".section .rodata,"a"
.p2align 6
.amdhsa_kernel {name}
  .amdhsa_next_free_vgpr 128
  .amdhsa_next_free_sgpr 100
  .amdhsa_accum_offset 128
  .amdhsa_group_segment_fixed_size 0
  .amdhsa_kernarg_size 112
  .amdhsa_user_sgpr_count 2
  .amdhsa_user_sgpr_kernarg_segment_ptr 1
  .amdhsa_system_sgpr_workgroup_id_x 1
  .amdhsa_float_denorm_mode_32 3
.end_amdhsa_kernel
"""
    return out

if __name__ == "__main__":
    open(sys.argv[1], "w").write(build(diag=len(sys.argv) > 2))
```

```python
from asmlib import *
from layout import *
import math, struct, os
EXP = os.environ.get('EXP', '').split(',')

S_WAVE = 3
P_U, P_LA, P_AI, P_CR, P_CI, P_DT, P_D = 16, 18, 20, 22, 24, 26, 28
P_W, P_WO, P_G, P_OUT, P_DBG, P_WS = 32, 34, 36, 38, 40, 42
R_X, R_W, R_WS, R_A, R_B, R_C, R_D = 44, 48, 52, 56, 60, 64, 68
S_TAG = 30
S_SPIN = 31
S_DV = 70
S_FQ = 67
S_C2 = 68
S_CB = 71
WS = f"s[{R_WS}:{R_WS+3}]"
ST = " sc1"
LD = " sc1"

SLOT = 32768
KG_BASE = 4 * SLOT
KG_STRIDE = 4608
GT = KG_BASE + 6 * KG_STRIDE
CNT = 163328
C_RDY, C_1, C_2, C_Q, C_S, C_O, C_F, C_E, C_P = 0, 16, 32, 48, 64, 72, 76, 80, 96
C_FA = 68
C_TG = 224
C_Y, C_A, C_FREE, C_YR, C_KV = 136, 140, 144, 160, 192
VM_Y = 0
REG_B = 4 * BLK
CP = 4160
CH = 4 * CP + 512 + 4096
UOFF = 4 * CP
CA = 3 * SLOT
QST = REG_B
assert CA + 3 * CH <= CNT and CA + 2 * CH <= GT and QST + 9216 <= CA
NBAR1 = 9
UK = int(os.environ.get('UK', '0'))
LEAD = 3 if 'lead3' in EXP else 2
SPIN_MAX = 1 << 20

def chan(a, d, scs):
    a(f"s_lshl_b32 s{d}, s{scs}, 8\ns_add_u32 s{d}, s{d}, s{S_CB}\ns_cmp_eq_u32 s{scs}, 2\ns_cselect_b32 s{d}, s{S_C2}, s{d}")

def area(a, d, scs):
    a(f"s_mul_i32 s{d}, s{scs}, {CH}\ns_add_u32 s{d}, s{d}, {CA}")

def srd(a, r, p, nbytes):
    a(f"s_mov_b32 s{r}, s{p}\ns_mov_b32 s{r+1}, s{p+1}\ns_mov_b32 s{r+2}, {nbytes}\ns_mov_b32 s{r+3}, 0x20000")

LOG2E = 1.4426950408889634
def f32r(x): return struct.unpack("<f", struct.pack("<f", x))[0]
L_HI = f32r(LOG2E); L_LO = f32r(LOG2E - L_HI)
I2PI = 1.0 / (2 * math.pi)
I_HI = f32r(I2PI); I_LO = f32r(I2PI - I_HI)
LN2 = math.log(2.0)

def lds_inc(a, va, vb, saddr=None, off=0, rtn=None):
    if saddr is None: a(f"v_mov_b32 v{va}, {CNT}")
    else: a(f"v_mov_b32 v{va}, s{saddr}")
    a(f"v_mov_b32 v{vb}, 1\ns_mov_b64 exec, 1")
    if rtn is None:
        a(f"ds_add_u32 v{va}, v{vb} offset:{off}\ns_mov_b64 exec, -1")
    else:
        a(f"ds_add_rtn_u32 v{vb}, v{va}, v{vb} offset:{off}\ns_mov_b64 exec, -1\ns_waitcnt lgkmcnt(0)\nv_readfirstlane_b32 s{rtn}, v{vb}")

def lds_spin(a, va, vb, target, stmp, saddr=None, off=0):
    L, Ld = a.label("lspin"), a.label("lsdone")
    if saddr is None: a(f"v_mov_b32 v{va}, {CNT}")
    else: a(f"v_mov_b32 v{va}, s{saddr}")
    a(f"""
    s_mov_b32 s{S_SPIN}, {SPIN_MAX}
    {L}:
    ds_read_b32 v{vb}, v{va} offset:{off}
    s_waitcnt lgkmcnt(0)
    v_readfirstlane_b32 s{stmp}, v{vb}
    s_cmp_ge_u32 s{stmp}, {target}
    s_cbranch_scc1 {Ld}
    s_sleep {os.environ.get('LSLEEP', '1')}
    s_sub_u32 s{S_SPIN}, s{S_SPIN}, 1
    s_cbranch_scc0 {L}
    {Ld}:
    """)

def flag_line(a, vt, va, soff):
    a(f"""
    v_mov_b32 v{vt}, s{S_TAG}
    v_lshlrev_b32 v{va}, 2, v1
    s_mov_b64 exec, {os.environ.get('FLEX', '0xffff')}
    buffer_store_dword v{vt}, v{va}, {WS}, s{soff} offen sc1
    s_mov_b64 exec, -1
    """)

def flag_store(a, vt, soff):
    a(f"""
    v_mov_b32 v{vt}, s{S_TAG}
    s_mov_b64 exec, 1
    buffer_store_dword v{vt}, off, {WS}, s{soff} sc1
    s_mov_b64 exec, -1
    """)

def poll_issue(a, vd, n, voff, off):
    w = {1: "dword", 4: "dwordx4"}[n]
    a(f"buffer_load_{w} {vr(vd,n)}, v{voff}, {WS}, 0 offen offset:{off & 4095} sc1" if off < 4096 else
      f"s_movk_i32 s{S_SPIN}, {off}\nbuffer_load_{w} {vr(vd,n)}, v{voff}, {WS}, s{S_SPIN} offen sc1")

def poll_wait(a, vd, n, voff, soff_or_imm, issued=False):
    L, Lc, Ld = a.label("poll"), a.label("pollchk"), a.label("polld")
    w = {1: "dword", 4: "dwordx4"}[n]
    a(f"s_mov_b32 s{S_SPIN}, {SPIN_MAX}")
    if issued: a(f"s_branch {Lc}")
    a(f"""
    {L}:
    buffer_load_{w} {vr(vd,n)}, v{voff}, {WS}, 0 offen offset:{soff_or_imm} sc1
    {Lc}:
    s_waitcnt vmcnt(0)
    """)
    if n == 4:
        a(f"""
        v_xor_b32 v{vd}, s{S_TAG}, v{vd}
        v_xor_b32 v{vd+1}, s{S_TAG}, v{vd+1}
        v_xor_b32 v{vd+2}, s{S_TAG}, v{vd+2}
        v_xor_b32 v{vd+3}, s{S_TAG}, v{vd+3}
        v_or3_b32 v{vd}, v{vd}, v{vd+1}, v{vd+2}
        v_or_b32 v{vd}, v{vd}, v{vd+3}
        v_cmp_ne_u32 vcc, 0, v{vd}
        """)
    else:
        a(f"v_cmp_ne_u32 vcc, s{S_TAG}, v{vd}")
    a(f"""
    s_cbranch_vccz {Ld}
    s_sleep {os.environ.get('PSLEEP', '6')}
    s_sub_u32 s{S_SPIN}, s{S_SPIN}, 1
    s_cbranch_scc0 {L}
    {Ld}:
    """)

class Lgkm:
    def __init__(self, a): self.a = a; self.q = []; self.done = 0
    def load(self, txt, regs=()):
        self.a(txt); self.q.append(set(regs))
    def need(self, regs):
        regs = set(regs); last = -1
        for i, s in enumerate(self.q):
            if s & regs: last = i
        if last >= self.done:
            n = min(len(self.q) - 1 - last, 15)
            self.a(f"s_waitcnt lgkmcnt({n})")
            self.done = len(self.q) - n

def rng(b, n): return range(b, b + n)

sRB, sCT, sJ0 = 4, 5, 11

KG_T = [120, 121, 122, 123, 124, 125]
KG_C = 126
sKU, sKC = 65, 66
YB, YS = 32768, 32 * 272

def head(a, name, endlabel, Lkg, Lg):
    Lnp, Lnk = a.label("nopf"), a.label("nokg")
    t = KG_T
    a(f"""
    s_cmp_ge_u32 s2, 256
    s_cbranch_scc1 {endlabel}
    s_load_dwordx16 s[16:31], s[0:1], 0
    s_load_dwordx8 s[32:39], s[0:1], 64
    s_load_dwordx4 s[40:43], s[0:1], 96
    v_lshrrev_b32 v3, 6, v0
    v_and_b32 v1, 63, v0
    v_readfirstlane_b32 s{S_WAVE}, v3
    s_getpc_b64 s[8:9]
    L_pc:
    s_lshr_b32 s7, s2, 3
    s_and_b32 s{S_CB}, s2, 0xc0
    s_and_b32 s6, s7, 7
    s_or_b32 s{S_CB}, s{S_CB}, s6
    s_and_b32 s6, s2, 7
    s_lshl3_add_u32 s{S_CB}, s6, s{S_CB}
    s_and_b32 s{S_C2}, s2, 6
    s_and_b32 s6, s7, 1
    s_or_b32 s{S_C2}, s{S_C2}, s6
    s_lshr_b32 s6, s2, 5
    s_lshl3_add_u32 s{S_C2}, s6, s{S_C2}
    s_andn2_b32 s6, 17, s2
    s_cselect_b32 s{S_C2}, 64, s{S_C2}
    s_addk_i32 s{S_C2}, 512
    s_cmp_lg_u32 s{S_WAVE}, 0
    s_cbranch_scc1 {Lnp}
    s_and_b32 s6, s7, 3
    s_lshl_b32 s6, s6, 13
    v_lshl_add_u32 v3, v1, 7, s6
    v_min_u32 v3, {endlabel}-L_pc, v3
    global_load_dword v3, v3, s[8:9]
    v_lshlrev_b32 v4, 2, v1
    v_add_u32 v4, {CNT}, v4
    v_mov_b32 v5, 0
    ds_write_b32 v4, v5
    {Lnp}:
    s_movk_i32 s{sKC}, 576
    s_mov_b32 s6, 0xcf3f
    s_bitcmp0_b32 s6, s{S_WAVE}
    s_cbranch_scc1 {Lnk}
    s_and_b32 s{sKU}, s{S_WAVE}, 7
    s_sub_u32 s6, s{sKU}, 2
    s_cmp_ge_u32 s{sKU}, 6
    s_cselect_b32 s{sKU}, s6, s{sKU}
    s_lshr_b32 s{sKC}, s{sKU}, 1
    s_lshl_b32 s{sKC}, s{sKC}, 8
    s_add_u32 s{sKC}, s{sKC}, s{S_CB}
    s_cmp_ge_u32 s{sKU}, 4
    s_cselect_b32 s{sKC}, s{S_C2}, s{sKC}
    s_cmp_ge_u32 s{S_WAVE}, 8
    s_cbranch_scc1 {Lnk}
    s_min_u32 s6, s{sKC}, 575
    s_lshl_b32 s6, s6, 1
    v_mov_b32 v{t[4]}, s6
    s_and_b32 s5, s{sKU}, 1
    s_add_u32 s6, s6, s5
    s_lshl_b32 s6, s6, 7
    v_lshl_add_u32 v{t[0]}, v1, 1, s6
    s_waitcnt lgkmcnt(0)
    global_load_ushort v{t[3]}, v{t[4]}, s[{P_DT}:{P_DT+1}]
    global_load_ushort v{t[1]}, v{t[0]}, s[{P_LA}:{P_LA+1}]
    global_load_ushort v{t[2]}, v{t[0]}, s[{P_AI}:{P_AI+1}]
    global_load_ushort v{KG_C}, v{t[0]}, s[{P_CR}:{P_CR+1}]
    global_load_ushort v{KG_C+1}, v{t[0]}, s[{P_CI}:{P_CI+1}]
    s_branch {Lkg}
    {Lnk}:
    s_and_b32 s6, s2, 7
    s_lshr_b32 s{sRB}, s6, 1
    s_lshl_b32 s{sRB}, s{sRB}, 2
    s_and_b32 s8, s7, 3
    s_add_u32 s{sRB}, s{sRB}, s8
    s_and_b32 s{sCT}, s6, 1
    s_lshl_b32 s{sCT}, s{sCT}, 3
    s_lshr_b32 s9, s7, 2
    s_add_u32 s{sCT}, s{sCT}, s9
    s_lshl_b32 s8, s8, 1
    s_add_u32 s{sJ0}, s8, s9
    s_sub_u32 s8, s{sJ0}, 9
    s_cmp_ge_u32 s{sJ0}, 9
    s_cselect_b32 s{sJ0}, s8, s{sJ0}
    s_cmp_lt_u32 s{S_WAVE}, 8
    s_cbranch_scc1 L_ld
    s_lshl_b32 s8, s{sCT}, 4
    s_add_u32 s8, s8, s{S_WAVE}
    s_cmp_eq_u32 s8, 13
    s_cbranch_scc1 L_gate_dma
    s_barrier
    s_branch {Lg}
    L_ld:
    """)

def fetch_tag(a, v):
    a(f"""
    s_load_dword s60, s[{P_WS}:{P_WS+1}], {FL_OFF}
    s_lshr_b32 s69, s{S_CB}, 1
    s_lshl_b32 s69, s69, 2
    s_load_dword s61, s[{P_D}:{P_D+1}], s69
    s_add_u32 s69, s69, 512
    s_load_dword s62, s[{P_D}:{P_D+1}], s69
    s_min_u32 s69, s{S_C2}, 575
    s_lshr_b32 s69, s69, 1
    s_lshl_b32 s69, s69, 2
    s_load_dword s63, s[{P_D}:{P_D+1}], s69
    v_mov_b32 v{v+4}, {CNT}
    s_waitcnt lgkmcnt(0)
    s_mul_i32 s60, s60, 0x9e3779b1
    s_add_u32 s60, s60, 0x7f4a7c15
    v_mov_b32 v{v}, s60
    v_mov_b32 v{v+1}, s61
    v_mov_b32 v{v+2}, s62
    v_mov_b32 v{v+3}, s63
    ds_write_b128 v{v+4}, {vr(v,4)} offset:{C_TG}
    s_waitcnt lgkmcnt(0)
    """)

def get_tag(a, va, vb):
    a(f"""
    s_and_b32 s69, s{S_WAVE}, 12
    s_add_u32 s69, s69, {CNT}
    v_mov_b32 v{va}, {CNT}
    v_mov_b32 v{vb}, s69
    ds_read_b32 v{va}, v{va} offset:{C_TG}
    ds_read_b32 v{vb}, v{vb} offset:{C_TG+4}
    s_waitcnt lgkmcnt(0)
    v_readfirstlane_b32 s{S_TAG}, v{va}
    v_readfirstlane_b32 s{S_DV}, v{vb}
    s_nop 1
    """)

def loader(a):
    sJ, sT, sCm, sAs, sLb, sInc, sXr = 6, 7, 8, 9, 10, 14, 15
    V = [4, 5, 6, 7]; t0, t1, t2, t3 = 8, 9, 10, 11
    Lx, Lc, Lsub, Lover, Lw, Lend = [a.label(x) for x in ("ldx", "ldc", "issue", "over", "ldw", "ldend")]
    a(f"""
    v_lshrrev_b32 v{t2}, 4, v1
    s_setprio 3
    s_mov_b32 s{R_X+3}, 0x20000
    s_mov_b32 s{sJ}, s{sJ0}
    s_cmp_eq_u32 s{S_WAVE}, 6
    s_cbranch_scc1 {Lx}
    v_and_b32 v{t0}, 15, v1
    v_lshlrev_b32 v{t1}, 2, v{t2}
    v_xor_b32 v{t0}, v{t0}, v{t1}
    v_lshrrev_b32 v{t1}, 2, v{t0}
    v_and_b32 v{t0}, 3, v{t0}
    v_cmp_eq_u32 vcc, 3, v{t1}
    v_mul_u32_u24 v{t1}, 9, v{t1}
    v_lshrrev_b32 v{t3}, 1, v{t0}
    v_add_u32 v{t1}, v{t1}, v{t3}
    v_lshl_add_u32 v{t1}, v{t0}, 1, v{t1}
    v_min_u32 v{t0}, 2, v{t0}
    v_mad_u32_u24 v{t0}, v{t0}, 9, 4
    v_cndmask_b32 v{t1}, v{t1}, v{t0}, vcc
    v_mul_u32_u24 v{t2}, 432, v{t2}
    s_mul_i32 s{sT}, s{sCT}, 27
    v_add3_u32 v{t1}, v{t1}, v{t2}, s{sT}
    v_lshlrev_b32 v{V[0]}, 3, v{t1}
    s_mov_b32 s72, {0xffffffff ^ (1<<15) ^ (1<<27)}
    s_mov_b32 s73, {0xffffffff ^ (1<<7) ^ (1<<19)}
    s_mov_b32 s{sCm}, {64*3456}
    s_mov_b32 s{sAs}, 55296
    s_movk_i32 s{sLb}, 16384
    s_movk_i32 s{sInc}, 12800
    s_mov_b32 s{sXr}, 0
    s_mov_b32 s{R_X+2}, {W_BYTES}
    s_waitcnt lgkmcnt(0)
    s_mov_b64 s[{R_X}:{R_X+1}], s[{P_W}:{P_W+1}]
    s_branch {Lc}
    {Lx}:
    v_lshrrev_b32 v{t0}, 3, v1
    s_lshl_b32 s{sT}, s{sRB}, 7
    v_add_u32 v{t1}, s{sT}, v{t0}
    v_mul_u32_u24 v{t1}, 1152, v{t1}
    v_and_b32 v{t3}, 7, v1
    v_xor_b32 v{t3}, v{t3}, v{t2}
    v_lshl_add_u32 v{V[0]}, v{t3}, 4, v{t1}
    s_mov_b64 s[72:73], -1
    s_movk_i32 s{sCm}, 128
    s_mov_b32 s{sAs}, 36864
    s_mov_b32 s{sLb}, 0
    s_movk_i32 s{sInc}, 8192
    s_mov_b32 s{sXr}, 64
    s_mov_b32 s{R_X+2}, {X_BYTES}
    s_waitcnt lgkmcnt(0)
    s_mov_b64 s[{R_X}:{R_X+1}], s[{P_U}:{P_U+1}]
    {Lc}:
    v_xor_b32 v{V[1]}, s{sXr}, v{V[0]}
    v_add_u32 v{V[1]}, s{sInc}, v{V[1]}
    s_lshl_b32 s{sInc}, s{sInc}, 1
    v_add_u32 v{V[2]}, s{sInc}, v{V[0]}
    v_add_u32 v{V[3]}, s{sInc}, v{V[1]}
    """)
    def issue(it):
        a(f"s_add_u32 m0, s{sLb}, {((-it) & 3) * SLOT}\ns_call_b64 s[12:13], {Lsub}")
    a.stamp(22)
    issue(0)
    a("s_barrier")
    a.stamp(23)
    for it in range(1, LEAD): issue(it)
    a(f"s_branch {Lover}\n{Lsub}:")
    a(f"s_mul_i32 s{sT}, s{sJ}, s{sCm}\ns_mov_b64 exec, s[72:73]")
    THR = int(os.environ.get('THR', '20')); THR1 = int(os.environ.get('THR1', '0'))
    for g in range(4):
        if THR: a(f"s_waitcnt vmcnt({THR})")
        for b in range(4):
            if THR1: a(f"s_waitcnt vmcnt({THR1})")
            a(f"buffer_load_dwordx4 v{V[b]}, s[{R_X}:{R_X+3}], s{sT} offen offset:{1024*b} lds")
        if g < 3:
            a(f"s_add_u32 m0, m0, 4096\ns_add_u32 s{sT}, s{sT}, s{sAs}")
    a(f"""
    s_mov_b64 exec, -1
    s_add_u32 s{sJ}, s{sJ}, 1
    s_cmp_eq_u32 s{sJ}, 9
    s_cselect_b32 s{sJ}, 0, s{sJ}
    s_setpc_b64 s[12:13]
    {Lover}:
    """)
    a.stamp(1)
    srd(a, R_WS, P_WS, WS_BYTES)
    a(f"""
    v_lshlrev_b32 v{t2}, 4, v1
    v_lshrrev_b32 v16, 4, v1
    v_bfe_u32 v17, v1, 2, 2
    v_lshl_add_u32 v18, v16, 3, v17
    v_bfe_u32 v19, v18, 1, 3
    v_bfe_u32 v17, v1, 1, 1
    v_xor_b32 v19, v19, v17
    v_lshlrev_b32 v19, 4, v19
    v_lshl_add_u32 v19, v18, 7, v19
    v_and_b32 v17, 1, v1
    v_lshl_add_u32 v19, v17, 3, v19
    s_and_b32 s74, s{sCT}, 8
    s_lshl_b32 s75, s74, 3
    v_xor_b32 v20, s75, v19
    v_xor_b32 v21, 32, v20
    v_and_b32 v17, 15, v1
    v_lshlrev_b32 v17, 6, v17
    v_lshl_add_u32 v17, v16, 4, v17
    s_lshl_b32 s74, s74, 10
    s_mul_i32 s75, s{sRB}, {36*4096}
    s_add_u32 s74, s74, s75
    s_add_u32 s74, s74, {UT_OFF}
    v_add_u32 v22, s74, v17
    """)
    def ut_task(it):
        skip = a.label("utskip")
        a(f"s_mov_b32 s78, 0\ns_cmp_lg_u32 s{S_WAVE}, 6\ns_cbranch_scc1 {skip}")
        if it == 1:
            a(f"s_and_b32 s74, s{sCT}, 7\ns_cmp_lg_u32 s74, 7\ns_cbranch_scc1 {skip}")
            a(f"s_add_u32 s74, s{sJ0}, 1\ns_cmp_eq_u32 s74, 9\ns_cselect_b32 s74, 0, s74\ns_lshl_b32 s74, s74, 14\nv_add_u32 v20, {3*SLOT}, v20\nv_add_u32 v21, {3*SLOT}, v21")
        else:
            a(f"s_lshl_b32 s74, s{sJ0}, 14")
        for m in range(2):
            for i in range(4):
                d = 24 + 32 * it + 16 * m + 4 * i
                a(f"ds_read_b64_tr_b16 {vr(d,2)}, v{20+m} offset:{4096*i}")
                a(f"ds_read_b64_tr_b16 {vr(d+2,2)}, v{21-m} offset:{4096*i + 512}")
            a("s_waitcnt lgkmcnt(0)")
            for i in range(4):
                d = 24 + 32 * it + 16 * m + 4 * i
                a(f"buffer_store_dwordx4 {vr(d,4)}, v22, {WS}, s74 offen offset:{1024*i}{ST}")
            if m == 0: a("s_add_u32 s74, s74, 4096\ns_mov_b32 s78, 1")
        a(f"{skip}:")
    assert LEAD == 2
    for k in range(9):
        left = min(LEAD - 1, 8 - k)
        if k in (UK + 1, UK + 2):
            L = a.label("w24")
            a(f"s_waitcnt vmcnt(24)\ns_cmp_eq_u32 s78, 1\ns_cbranch_scc1 {L}\ns_waitcnt vmcnt(16)\n{L}:")
        else:
            a(f"s_waitcnt vmcnt({16 * left})")
        if 'ldst' in EXP: a.stamp([24, 9, 10, 11, 12, 13, 26, 27, 28][k])
        a("s_barrier")
        n = k + LEAD
        if n <= 8: issue(n)
        if k == 7: get_tag(a, t0, t1)
        if k in (UK, UK + 1): ut_task(k - UK)
    a.stamp(2)

def wt_load(a, sF, sT, sD2, s8, s9, s10, t0, t1, t2, WL):
    skip = a.label("nowt")
    srd(a, R_A, P_WO, WO_BYTES)
    a(f"""
    s_cmp_ge_u32 s{sF}, 648
    s_cbranch_scc1 {skip}
    v_lshrrev_b32 v{t0}, 4, v1
    v_lshrrev_b32 v{t1}, 1, v{t0}
    v_mul_u32_u24 v{t1}, 20, v{t1}
    v_and_b32 v{t2}, 1, v{t0}
    v_lshl_add_u32 v{t1}, v{t2}, 3, v{t1}
    v_mad_u32_u24 v{t2}, v{t0}, 36, 8
    v_lshlrev_b32 v{t2}, 1, v{t2}
    s_mul_i32 s{s8}, s{sF}, 3641
    s_lshr_b32 s{s8}, s{s8}, 16
    s_mul_i32 s{s9}, s{s8}, 18
    s_sub_u32 s{s9}, s{sF}, s{s9}
    s_mul_i32 s{sT}, s{s9}, {36*1152}
    s_sub_u32 s{s10}, s{s9}, 16
    s_mul_i32 s{s10}, s{s10}, {288*1152}
    s_movk_i32 s{sD2}, {4*1152}
    s_cmp_ge_u32 s{s9}, 16
    s_cselect_b32 s{sT}, s{s10}, s{sT}
    s_cselect_b32 s{sD2}, {36*1152}, s{sD2}
    s_cselect_b64 vcc, -1, 0
    v_cndmask_b32 v{t1}, v{t1}, v{t2}, vcc
    v_mul_u32_u24 v{t1}, 1152, v{t1}
    v_and_b32 v{t2}, 15, v1
    v_lshl_add_u32 v{t1}, v{t2}, 1, v{t1}
    s_lshl_b32 s{s8}, s{s8}, 5
    s_add_u32 s{sT}, s{sT}, s{s8}
    s_add_u32 s{sD2}, s{sD2}, s{sT}
    """)
    for e in range(8):
        a(f"buffer_load_ushort v{WL+e}, v{t1}, s[{R_A}:{R_A+3}], s{sT if e < 4 else sD2} offen offset:{(e&3)*1152}")
    a(f"{skip}:")

def wt_store(a, sF, WL, vL16):
    skip = a.label("wtskip")
    a(f"s_cmp_ge_u32 s{sF}, 648\ns_cbranch_scc1 {skip}")
    for e in range(4):
        a(f"v_lshl_or_b32 v{WL+e}, v{WL+2*e+1}, 16, v{WL+2*e}")
    a(f"""
    s_lshl_b32 s{sF}, s{sF}, 10
    s_add_u32 s{sF}, s{sF}, {WT_OFF}
    buffer_store_dwordx4 {vr(WL,4)}, v{vL16}, {WS}, s{sF} offen{ST}
    {skip}:
    """)

def gemm_waves(a):
    sT, sU, sTP = 7, 12, 13
    R = Regs(4, 120)
    t0, t1, t2, t3 = [R.alloc() for _ in range(4)]
    vXa = [[R.alloc() for _ in range(4)]]
    vWa = [R.alloc()]
    vFr = R.alloc()
    vL16 = R.alloc()
    NB = 2
    FX = [[R.alloc(4, 4), R.alloc(4, 4)] for _ in range(NB)]
    FW = [R.alloc(4, 4) for _ in range(NB)]
    ACC = [R.alloc(16, 4), R.alloc(16, 4)]
    STG = FX[0][0]
    WL = R.alloc()
    vGa = [R.alloc()]
    Lnw, Lng = a.label("nowt"), a.label("nogate")
    vCn, vOne, CV = R.alloc(), R.alloc(), R.alloc(2, 2)
    vSt = R.alloc()
    a(f"""
    v_mov_b32 v{vCn}, {CNT}
    v_mov_b32 v{vOne}, 1
    s_and_b32 s{sU}, s{S_WAVE}, 3
    s_bfe_u32 s{sTP}, s{S_WAVE}, 0x10002
    v_lshlrev_b32 v{vL16}, 4, v1
    s_waitcnt lgkmcnt(0)
    """)
    a(f"s_lshl_b32 s83, s{sCT}, 4\ns_add_u32 s83, s83, s{sU}")
    Lnt, Lnu = a.label("notouch"), a.label("notlb")
    a(f"""
    s_cmp_lg_u32 s{S_WAVE}, 12
    s_cbranch_scc1 {Lnt}
    s_and_b32 s8, s{sCT}, 7
    s_add_u32 s8, s8, 8
    s_sub_u32 s9, s8, 9
    s_cmp_ge_u32 s8, 9
    s_cselect_b32 s8, s9, s8
    s_lshl_b32 s8, s8, 2
    s_and_b32 s9, s{sRB}, 3
    s_add_u32 s8, s8, s9
    s_mul_i32 s8, s8, {16*3456}
    s_mul_i32 s9, s{sCT}, 216
    s_add_u32 s8, s8, s9
    v_lshrrev_b32 v{t0}, 2, v1
    v_mul_u32_u24 v{t0}, 3456, v{t0}
    v_and_b32 v{t1}, 3, v1
    v_mul_u32_u24 v{t1}, 68, v{t1}
    v_add3_u32 v{t0}, v{t0}, v{t1}, s8
    global_load_dword v{WL}, v{t0}, s[{P_W}:{P_W+1}]
    """)
    fetch_tag(a, FX[0][0])
    a(f"{Lnt}:")
    a(f"""    v_and_b32 v{t0}, 31, v1
    v_lshrrev_b32 v{t1}, 5, v1
    v_bfe_u32 v{t2}, v1, 1, 3
    v_xor_b32 v{t2}, v{t2}, v{t1}
    v_lshlrev_b32 v{t2}, 4, v{t2}
    v_lshl_add_u32 v{t2}, v{t0}, 7, v{t2}
    s_lshl_b32 s{sT}, s{sTP}, 13
    v_add_u32 v{vXa[0][0]}, s{sT}, v{t2}
    """)
    for ks in range(1, 4):
        a(f"v_xor_b32 v{vXa[0][ks]}, {32*ks}, v{vXa[0][0]}")
    a(f"""
    v_bfe_u32 v{t0}, v1, 2, 2
    v_lshl_add_u32 v{t2}, v{t1}, 3, v{t0}
    v_lshlrev_b32 v{t2}, 8, v{t2}
    v_xor_b32 v{t0}, s{sU}, v{t0}
    v_lshl_add_u32 v{t2}, v{t0}, 6, v{t2}
    v_and_b32 v{t0}, 1, v1
    v_lshlrev_b32 v{t0}, 4, v{t0}
    v_and_b32 v{t3}, 2, v1
    v_lshl_add_u32 v{t0}, v{t3}, 2, v{t0}
    v_and_b32 v{t3}, 16, v1
    v_lshl_add_u32 v{t0}, v{t3}, 1, v{t0}
    v_lshlrev_b32 v{vWa[0]}, {28 if 'nooob' in EXP else 14}, v{t3}
    v_and_b32 v{t3}, 3, v1
    v_lshl_add_u32 v{t3}, v{t3}, 4, v{vWa[0]}
    s_cmp_eq_u32 s{sU}, 3
    s_cselect_b64 vcc, -1, 0
    v_cndmask_b32 v{t0}, v{t0}, v{t3}, vcc
    v_add_u32 v{vWa[0]}, v{t2}, v{t0}
    """)
    vVm, vQx, vKx, vVx = R.alloc(), R.alloc(), R.alloc(), R.alloc()
    sTile, sP, sTy, sHd, sO, sSc, sB = 10, 15, 74, 75, 76, 77, 78
    def epi_setup():
        a(f"""
        v_and_b32 v{t0}, 31, v1
        v_lshrrev_b32 v{t3}, 5, v1
        v_lshlrev_b32 v{vVm}, 5, v{t0}
        v_lshl_add_u32 v{vVm}, v{t3}, 4, v{vVm}
        v_and_b32 v{t1}, 4, v1
        v_xor_b32 v{t1}, 4, v{t1}
        v_lshlrev_b32 v{t1}, 5, v{t1}
        v_and_b32 v{t2}, 24, v1
        v_lshl_add_u32 v{t1}, v{t2}, 2, v{t1}
        v_and_b32 v{t2}, 3, v1
        v_lshl_add_u32 v{vVx}, v{t2}, 3, v{t1}
        v_lshlrev_b32 v{vQx}, 2, v{t0}
        v_lshlrev_b32 v{vKx}, 3, v{t0}
        s_lshl_b32 s{sTile}, s{sRB}, 1
        s_add_u32 s{sTile}, s{sTile}, s{sTP}
        s_lshl_b32 s{sTile}, s{sTile}, 1
        """)
        a(f"""
        s_mul_i32 s{sP}, s{sCT}, 3
        s_add_u32 s{sP}, s{sP}, s{sU}
        s_lshr_b32 s{sTy}, s{sP}, 4
        s_and_b32 s{sHd}, s{sP}, 15
        s_lshl_b32 s{sHd}, s{sHd}, 1
        s_cmp_eq_u32 s{sTy}, 0
        s_cselect_b32 s{sSc}, {fbits(QSCALE)}, 1.0
        s_lshr_b32 s79, s{sTile}, 3
        s_mul_i32 s79, s79, {BLK}
        s_mul_i32 s80, s{sHd}, {8*BLK}
        s_add_u32 s79, s79, s80
        s_add_u32 s79, s79, {KV_OFF}
        s_and_b32 s80, s{sTile}, 7
        s_lshl_b32 s81, s80, 10
        s_add_u32 s81, s81, s79
        s_mul_i32 s80, s80, 1280
        s_add_u32 s80, s80, s79
        s_add_u32 s80, s80, {V_OFF}
        s_lshl_b32 s79, s{sHd}, 6
        s_add_u32 s79, s79, s{sTile}
        s_lshl_b32 s79, s79, 10
        s_add_u32 s79, s79, {QF_OFF}
        s_mov_b32 s{sB}, {8*BLK}
        s_cmp_eq_u32 s{sTy}, 0
        s_cselect_b32 s{sO}, s79, s81
        s_cselect_b32 s{sB}, 0x10000, s{sB}
        s_movk_i32 s82, 1024
        s_cmp_eq_u32 s{sTy}, 2
        s_cselect_b32 s{sO}, s80, s{sO}
        s_cselect_b32 s82, 1280, s82
        s_cselect_b64 vcc, -1, 0
        v_cndmask_b32 v{vSt}, v{vL16}, v{vVm}, vcc
        s_lshl_b32 s9, s{sCT}, 4
        s_add_u32 s9, s9, s{sRB}
        s_lshl_b32 s9, s9, 7
        s_add_u32 s9, s9, {FL_Q}
        """)
    sN, sX, sG = 14, 8, 6
    slow = []
    epi_setup()
    XS = [(44, 45, 46), (47, 48, 49), (50, 51, 59)]
    def extras_setup():
        L = a.label("nx")
        a(f"s_cmp_lg_u32 s{sU}, 3\ns_cbranch_scc1 {L}")
        for p in range(3):
            sTp, sA, sBb = XS[p]
            a(f"""
            s_mul_i32 s{sP}, s{sCT}, 3
            s_add_u32 s{sP}, s{sP}, {p}
            s_lshr_b32 s{sTp}, s{sP}, 4
            s_and_b32 s{sHd}, s{sP}, 15
            s_lshl_b32 s{sHd}, s{sHd}, 1
            s_lshr_b32 s79, s{sTile}, 3
            s_mul_i32 s79, s79, {BLK}
            s_mul_i32 s80, s{sHd}, {8*BLK}
            s_add_u32 s79, s79, s80
            s_and_b32 s80, s{sTile}, 6
            s_lshl_b32 s80, s80, 7
            s_add_u32 s80, s80, {KV_OFF+KX_OFF}
            s_and_b32 s81, s{sTile}, 7
            s_mul_i32 s81, s81, 1280
            s_add_u32 s81, s81, {KV_OFF+V_OFF+1024}
            s_cmp_eq_u32 s{sTp}, 1
            s_cselect_b32 s80, s80, s81
            s_add_u32 s79, s79, s80
            s_lshl_b32 s80, s{sHd}, 6
            s_add_u32 s80, s80, s{sTile}
            s_lshl_b32 s80, s80, 7
            s_add_u32 s80, s80, {QX_OFF}
            s_mov_b32 s81, {8*BLK}
            s_cmp_eq_u32 s{sTp}, 0
            s_cselect_b32 s{sA}, s80, s79
            s_cselect_b32 s81, 0x2000, s81
            s_add_u32 s{sBb}, s{sA}, s81
            """)
        a(f"{L}:")
    assert ACC[1] + 16 == FX[0][0] + 56
    srd(a, R_WS, P_WS, WS_BYTES)
    extras_setup()
    kgen_y(a, FX[0][0])
    a.stamp(23)
    a('s_setprio 3')
    for tt in range(2):
        for i in range(16): a(f"v_mov_b32 v{ACC[tt]+i}, 0")
    a(f"""
    s_mov_b32 s{sN}, 1
    s_mov_b32 s{sX}, 0x18000
    s_mov_b32 s72, 0xffff0000
    s_mov_b32 s73, 0xffff0000
    v_lshrrev_b32 v{vFr}, 5, v1
    v_lshlrev_b32 v{vFr}, 4, v{vFr}
    v_add_u32 v{vFr}, {GT}, v{vFr}
    s_lshl_b32 s{sG}, s{sJ0}, 7
    v_add_u32 v{vGa[0]}, s{sG}, v{vFr}
    """)
    Lgate, Lj = a.label("gatel"), a.label("gj")
    def mainloop(gate):
        e = 1 if gate else 0
        Lloop = a.label("gloop")
        def Wrd(b, nk):
            a(f"ds_read_b64_tr_b16 {vr(FW[b],2)}, v{vWa[0]} offset:{16384+nk*4096}")
            a(f"ds_read_b64_tr_b16 {vr(FW[b]+2,2)}, v{vWa[0]} offset:{16384+nk*4096+1024}")
            if gate:
                a(f"s_mov_b64 exec, s[72:73]\nds_read_b128 {vr(FW[b],4)}, v{vGa[0]} offset:{32*nk}\ns_mov_b64 exec, -1")
        def step(ks, n, nk, mid=None):
            b = ks & 1
            a(f"s_waitcnt lgkmcnt({n})")
            a(f"v_mfma_f32_32x32x16_bf16 {vr(ACC[0],16)}, {vr(FW[b],4)}, {vr(FX[b][0],4)}, {vr(ACC[0],16)}")
            if mid: mid()
            if nk is not None: a(f"ds_read_b128 {vr(FX[b][0],4)}, v{vXa[0][nk]}")
            a(f"v_mfma_f32_32x32x16_bf16 {vr(ACC[1],16)}, {vr(FW[b],4)}, {vr(FX[b][1],4)}, {vr(ACC[1],16)}")
            if nk is not None:
                Wrd(b, nk)
                a(f"ds_read_b128 {vr(FX[b][1],4)}, v{vXa[0][nk]} offset:4096")
        a("s_barrier")
        a.stamp(1)
        for ks in range(2):
            Wrd(ks, ks)
            a(f"ds_read_b128 {vr(FX[ks][0],4)}, v{vXa[0][ks]}\nds_read_b128 {vr(FX[ks][1],4)}, v{vXa[0][ks]} offset:4096")
        a(f".p2align 3\n{Lloop}:")
        step(0, 4 + e, 2, mid=lambda: a(f"s_add_u32 s{sN}, s{sN}, 1\ns_add_u32 s{sG}, s{sG}, 128\ns_cmp_eq_u32 s{sG}, 1152\ns_cselect_b32 s{sG}, 0, s{sG}" if gate else f"s_add_u32 s{sN}, s{sN}, 1"))
        step(1, 4 + e, 3, mid=lambda: a(f"v_xor_b32 v{vXa[0][0]}, s{sX}, v{vXa[0][0]}\nv_xor_b32 v{vXa[0][1]}, s{sX}, v{vXa[0][1]}"))
        step(2, 4 + e, 0, mid=lambda: a(f"v_xor_b32 v{vWa[0]}, s{sX}, v{vWa[0]}\n" + (f"v_add_u32 v{vGa[0]}, s{sG}, v{vFr}\n" if gate else "") + "s_barrier"))
        step(3, 4 + e, 1, mid=lambda: a(f"v_xor_b32 v{vXa[0][2]}, s{sX}, v{vXa[0][2]}\nv_xor_b32 v{vXa[0][3]}, s{sX}, v{vXa[0][3]}"))
        a(f"s_xor_b32 s{sX}, s{sX}, 0x10000\ns_cmp_lt_u32 s{sN}, 9\ns_cbranch_scc1 {Lloop}")
        if 'early' in EXP:
            a(f"s_mov_b64 exec, 1\nds_add_u32 v{vCn}, v{vOne} offset:{C_FREE}\ns_mov_b64 exec, -1")
        step(0, 4 + e, 2); step(1, 4 + e, 3); step(2, 4 + e, None); step(3, 0, None)
    a(f"s_cmp_eq_u32 s83, 3\ns_cbranch_scc1 {Lgate}")
    mainloop(False)
    a(f"{Lj}:")
    a.stamp(3)
    def cold_gate():
        a(f"{Lgate}:")
        mainloop(True)
        a(f"s_branch {Lj}")
    Lx, Ldone, Lns = a.label("extras"), a.label("gdone"), a.label("noscale")
    a(f"s_setprio 3\ns_nop 6\ns_cmp_eq_u32 s{sU}, 3\ns_cbranch_scc1 {Lx}\ns_cmp_lg_u32 s{sTy}, 0\ns_cbranch_scc1 {Lns}")
    for tt in range(2):
        for i in range(16):
            a(f"v_mul_f32 v{ACC[tt]+i}, s{sSc}, v{ACC[tt]+i}")
    a(f"{Lns}:")
    for tt in range(2):
        for p in range(2):
            dst = FX[tt][p]
            for i in range(4):
                a(f"v_cvt_pk_bf16_f32 v{dst+i}, v{ACC[tt]+8*p+2*i}, v{ACC[tt]+8*p+2*i+1}")
            if p == 0:
                a(f"buffer_store_dwordx4 {vr(dst,4)}, v{vSt}, {WS}, s{sO} offen{ST}")
            else:
                a(f"s_add_u32 s79, s{sO}, s{sB}")
                a(f"buffer_store_dwordx4 {vr(dst,4)}, v{vSt}, {WS}, s79 offen{ST}")
        if tt == 0:
            a(f"s_add_u32 s{sO}, s{sO}, s82")
    a(f"s_branch {Ldone}")
    cold_gate()
    a(f"{Lx}:")
    a(f"v_mov_b32 v{STG+1}, 0x3f80\nv_mov_b32 v{STG+3}, 0x3f80")
    for p in range(3):
        half = p & 1
        rb = 4 * (p >> 1)
        sTp, sA, sBb = XS[p]
        LK, LV, LN = a.label("xk"), a.label("xv"), a.label("xn")
        a(f"""
        s_mov_b32 exec_lo, {0 if half else -1}
        s_mov_b32 exec_hi, {-1 if half else 0}
        s_cmp_eq_u32 s{sTp}, 1
        s_cbranch_scc1 {LK}
        s_cmp_eq_u32 s{sTp}, 2
        s_cbranch_scc1 {LV}
        """)
        for tt in range(2):
            for i in range(4):
                a(f"v_mul_f32 v{ACC[tt]+rb+i}, {fbits(QSCALE)}, v{ACC[tt]+rb+i}")
            a(f"v_cvt_pk_bf16_f32 v{STG+4+2*tt}, v{ACC[tt]+rb}, v{ACC[tt]+rb+1}")
            a(f"v_cvt_pk_bf16_f32 v{STG+5+2*tt}, v{ACC[tt]+rb+2}, v{ACC[tt]+rb+3}")
            a(f"buffer_store_dword v{STG+4+2*tt}, v{vQx}, {WS}, s{sA} offen offset:{128*tt}{ST}")
            a(f"buffer_store_dword v{STG+5+2*tt}, v{vQx}, {WS}, s{sBb} offen offset:{128*tt}{ST}")
        a(f"""
        s_branch {LN}
        {LK}:
        v_cvt_pk_bf16_f32 v{STG+4}, v{ACC[0]+rb}, v{ACC[0]+rb+1}
        v_cvt_pk_bf16_f32 v{STG+5}, v{ACC[1]+rb}, v{ACC[1]+rb+1}
        v_cvt_pk_bf16_f32 v{STG+6}, v{ACC[0]+rb+2}, v{ACC[0]+rb+3}
        v_cvt_pk_bf16_f32 v{STG+7}, v{ACC[1]+rb+2}, v{ACC[1]+rb+3}
        buffer_store_dwordx2 {vr(STG+4,2)}, v{vKx}, {WS}, s{sA} offen{ST}
        buffer_store_dwordx2 {vr(STG+6,2)}, v{vKx}, {WS}, s{sBb} offen{ST}
        s_branch {LN}
        {LV}:
        """)
        for tt in range(2):
            a(f"v_cvt_pk_bf16_f32 v{STG}, v{ACC[tt]+rb}, v{ACC[tt]+rb+1}")
            a(f"v_cvt_pk_bf16_f32 v{STG+2}, v{ACC[tt]+rb+2}, v{ACC[tt]+rb+3}")
            a(f"buffer_store_dwordx2 {vr(STG,2)}, v{vVx}, {WS}, s{sA} offen offset:{1280*tt}{ST}")
            a(f"buffer_store_dwordx2 {vr(STG+2,2)}, v{vVx}, {WS}, s{sBb} offen offset:{1280*tt}{ST}")
        a(f"{LN}:")
    Lnf = a.label("nofq")
    a(f"""
    s_cmp_lg_u32 s{sCT}, 0
    s_cbranch_scc1 {Ldone}
    s_lshl_b32 s79, s{sTile}, 7
    s_add_u32 s79, s79, {G_OFF}
    buffer_store_dword v{ACC[0]+8}, v{vQx}, {WS}, s79 offen{ST}
    buffer_store_dword v{ACC[1]+8}, v{vQx}, {WS}, s79 offen offset:128{ST}
    {Ldone}:
    s_mov_b64 exec, -1
    """)
    if 'early' not in EXP:
        a(f"s_mov_b64 exec, 1\nds_add_u32 v{vCn}, v{vOne} offset:{C_FREE}\ns_mov_b64 exec, -1")
    a.stamp(14)
    get_tag(a, t0, t1)
    a(f"""
    s_mov_b32 s{S_FQ}, s9
    s_cmp_ge_u32 s{S_WAVE}, 12
    s_cselect_b32 s8, 576, s{S_C2}
    s_cmp_lt_u32 s8, 576
    s_cbranch_scc1 {Lnf}
    """)
    publish_q(a, t0, t1, 8)
    a(f"{Lnf}:")
    a.stamp(4)

def publish_q(a, t0, t1, st):
    L = a.label("nofq")
    a("s_waitcnt vmcnt(0)")
    lds_inc(a, t0, t1, off=C_S, rtn=st)
    a(f"s_cmp_lg_u32 s{st}, 7\ns_cbranch_scc1 {L}")
    flag_line(a, t0, t1, S_FQ)
    a(f"{L}:")

class Seg:
    def __init__(self): self.items = []
    def __call__(self, s):
        for ln in s.split("\n"):
            ln = ln.strip()
            if not ln: continue
            op = ln.split()[0]
            if ln.startswith(";"): c = 0
            elif op in ("v_exp_f32", "v_sin_f32", "v_cos_f32", "v_rcp_f32"): c = 8
            elif op.startswith("v_mfma"): c = 40
            elif op.startswith("ds_"): c = 12
            elif op == "s_waitcnt": c = 60
            else: c = 4
            self.items.append((ln, c))
    nl = 0
    def label(self, base):
        Seg.nl += 1
        return f"L_sg{base}_{Seg.nl}"
    def must_barrier(self): self.items.append(("@BAR", 0))
    def nobar(self, on): self.items.append(("@NOBAR" if on else "@OKBAR", 0))
    def emit(self, a, nbar, after=lambda k: None):
        must = sum(1 for l, _ in self.items if l == "@BAR")
        total = sum(c for _, c in self.items)
        first = float(os.environ.get('KGFIRST', '0.9')) * total
        first = min(first, sum(c for _, c in self.items[:[l for l, _ in self.items].index('@BAR')]) + 1)
        per = (total - first) / (nbar - (1 if first else 0))
        used = 0; acc = per - first if first else 0; ok = True; must_left = must
        for ln, c in self.items:
            if ln == "@BAR":
                a("s_barrier"); after(used); used += 1; must_left -= 1; acc = 0; continue
            if ln.startswith("@STAMP"): a.stamp(int(ln[6:])); continue
            if ln == "@NOBAR": ok = False; continue
            if ln == "@OKBAR": ok = True; continue
            if ok and acc >= per and used + must_left < nbar - 1:
                a("s_barrier"); after(used); used += 1; acc = 0
            a(ln); acc += c
        while used < nbar:
            a("s_barrier"); after(used); used += 1
        return total

def ilv(*seqs):
    seqs = [[l.strip() for l in x.strip().split("\n") if l.strip()] for x in seqs]
    out = []
    for i in range(max(len(x) for x in seqs)):
        for x in seqs:
            if i < len(x): out.append(x[i])
    return "\n".join(out)

class KG:
    def __init__(self, g, sK, tmp, vA2, vBh, vBl):
        self.g = g; self.t = KG_T; self.tmp = tmp
        self.sL, self.sLlo, self.sI, self.sIlo, self.sLn2 = range(sK, sK + 5)
        self.vA2, self.vBh, self.vBl = vA2, vBh, vBl
    def consts(self):
        return f"""
        s_mov_b32 s{self.sL}, {fbits(L_HI)}
        s_mov_b32 s{self.sLlo}, {fbits(L_LO)}
        s_mov_b32 s{self.sI}, {fbits(I_HI)}
        s_mov_b32 s{self.sIlo}, {fbits(I_LO)}
        s_mov_b32 s{self.sLn2}, {fbits(LN2)}
        """
    def expbf(self, x, t1, t2):
        return f"""
        v_lshlrev_b32 v{x}, 16, v{x}
        v_mul_f32 v{t1}, s{self.sL}, v{x}
        v_fma_f32 v{t2}, v{x}, s{self.sL}, -v{t1}
        v_exp_f32 v{t1}, v{t1}
        v_fma_f32 v{t2}, v{x}, s{self.sLlo}, v{t2}
        v_mul_f32 v{t2}, s{self.sLn2}, v{t2}
        v_fma_f32 v{x}, v{t1}, v{t2}, v{t1}
        v_cvt_pk_bf16_f32 v{x}, v{x}, v{x}
        v_and_b32 v{x}, 0xffff0000, v{x}
        """
    def prep(self):
        t, m = self.t, self.tmp
        return ilv(self.expbf(t[3], m[0], m[1]), self.expbf(t[1], m[2], m[3])) + f"""
        v_lshlrev_b32 v{t[2]}, 16, v{t[2]}
        v_mul_f32 v{t[1]}, v{t[1]}, v{t[3]}
        v_mul_f32 v{t[2]}, v{t[2]}, v{t[3]}
        v_mul_f32 v{self.vA2}, s{self.sL}, -v{t[1]}
        v_mul_f32 v{self.vBh}, s{self.sI}, v{t[2]}
        v_fma_f32 v{self.vBl}, v{t[2]}, s{self.sI}, -v{self.vBh}
        v_fma_f32 v{self.vBl}, v{t[2]}, s{self.sIlo}, v{self.vBl}
        """
    def cexp(self, d, p, k):
        fp = fbits(float(p)); r, e = self.tmp[2*k], self.tmp[2*k+1]
        return f"""
        v_mul_f32 v{r}, {fp}, v{self.vBh}
        v_mul_f32 v{e}, {fp}, v{self.vA2}
        v_fract_f32 v{r}, v{r}
        v_exp_f32 v{e}, v{e}
        v_fmac_f32 v{r}, {fp}, v{self.vBl}
        v_cos_f32 v{d}, v{r}
        v_sin_f32 v{d+1}, v{r}
        v_mul_f32 v{d}, v{d}, v{e}
        v_mul_f32 v{d+1}, v{d+1}, v{e}
        """
    def cmul(self, d, x, y):
        return f"""
        v_mul_f32 v{d}, v{x+1}, v{y+1}
        v_mul_f32 v{d+1}, v{x+1}, v{y}
        v_fma_f32 v{d}, v{x}, v{y}, -v{d}
        v_fmac_f32 v{d+1}, v{x}, v{y+1}
        """
    def cvt(self, d, x, conj):
        return f"v_cvt_pk_f16_f32 v{d}, v{x}, {'-' if conj else ''}v{x+1}"
    def rows(self, specs, vWr):
        g = self.g
        for i in range(0, len(specs), 4):
            grp = specs[i:i+4]; tt = self.tmp[(i & 4):(i & 4) + 4]
            for k, (x, y) in enumerate(grp):
                if y is not None: g(f"v_pk_mul_f16 v{tt[k]}, v{x}, v{y} op_sel:[0,0] op_sel_hi:[0,1]")
            for k, (x, y) in enumerate(grp):
                if y is not None: g(f"v_pk_fma_f16 v{tt[k]}, v{x}, v{y}, v{tt[k]} op_sel:[1,1,0] op_sel_hi:[1,0,1] neg_lo:[1,0,0]")
            src = [tt[k] if y is not None else x for k, (x, y) in enumerate(grp)]
            for k in range(0, len(grp), 2):
                if k + 1 < len(grp): g(f"ds_write2_b32 v{vWr[i>>2]}, v{src[k]}, v{src[k+1]} offset0:{68*k} offset1:{68*k+68}")
                else: g(f"ds_write_b32 v{vWr[i>>2]}, v{src[k]} offset:{272*k}")

def kgen_y(a, base):
    R = Regs(base, base + 56)
    tmp = [R.alloc() for _ in range(8)]
    vWr = [R.alloc() for _ in range(8)]
    vA2, vBh, vBl = R.alloc(), R.alloc(), R.alloc()
    H = [R.alloc() for _ in range(11)]
    A1, A2, A3, B1, B2, B3, B4, B5, B6, B7 = [R.alloc(2) for _ in range(10)]
    k = KG(a, 60, tmp, vA2, vBh, vBl)
    L = a.label("noy")
    a(f"s_cmp_ge_u32 s{sKC}, {0 if 'nokg' in EXP else 576}\ns_cbranch_scc1 {L}")
    a(f"s_mul_i32 s67, s{sKU}, {YS}\ns_add_u32 s67, s67, {YB}\nv_lshl_add_u32 v{vWr[0]}, v1, 2, s67")
    for i in range(1, 8): a(f"v_add_u32 v{vWr[i]}, {i*4*272}, v{vWr[0]}")
    hA = H[0:4]; hB = [None] + H[4:11]
    a(f"v_mov_b32 v{hA[0]}, 0x3c00\ns_lshl_b32 s67, s{sKU}, 2\ns_add_u32 s67, s67, {CNT}")
    lds_spin(a, tmp[0], tmp[1], 1, 64, saddr=67, off=C_YR)
    a(f"ds_read_b32 v{vA2}, v{vWr[0]}\nds_read_b32 v{vBh}, v{vWr[0]} offset:272\nds_read_b32 v{vBl}, v{vWr[0]} offset:544\ns_waitcnt lgkmcnt(0)")
    a(ilv(k.cexp(A1, 8, 0), k.cexp(B2, 64, 1)))
    a(ilv(k.cmul(A2, A1, A1), k.cmul(B4, B2, B2)))
    a(ilv(k.cmul(B1, A2, A2), k.cmul(A3, A1, A2), k.cmul(B6, B4, B2)))
    a(ilv(k.cmul(B3, B1, B2), k.cmul(B5, B4, B1), k.cmul(B7, B6, B1)))
    for d, x in zip(hA[1:] + hB[1:], (A1, A2, A3, B1, B2, B3, B4, B5, B6, B7)): a(k.cvt(d, x, True))
    def yspec(j):
        x, y = j & 3, j >> 2
        if y == 0: return (hA[x], None)
        if x == 0: return (hB[y], None)
        return (hA[x], hB[y])
    k.rows([yspec(j) for j in range(32)], vWr)
    lds_inc(a, tmp[0], tmp[1], saddr=67, off=C_YR)
    a(f"{L}:")

def kgen_waves(a):
    sMH, sBase, sT, sE, sCS = 5, 6, 7, 8, 14
    R = Regs(4, 120)
    t = KG_T; C = KG_C
    vWr = [R.alloc() for _ in range(4)]
    vRd, vRy = R.alloc(), R.alloc()
    vA2, vBh, vBl, vF = R.alloc(), R.alloc(), R.alloc(), R.alloc()
    vInv, vInvM, vBaseM, vPw = R.alloc(), R.alloc(), R.alloc(), R.alloc()
    FY = R.alloc(32, 4); FXr = R.alloc(32, 4)
    pool = R.alloc(36, 4)
    tmp = [FY + i for i in range(8)]
    g = Seg()
    k = KG(g, 9, tmp, vA2, vBh, vBl)
    Lskip, Lend = a.label("kgskip"), a.label("kgend")
    a(f"""
    s_cmp_ge_u32 s{sKC}, {0 if 'nokg' in EXP else 576}
    s_cbranch_scc1 {Lskip}
    s_lshr_b32 s{sCS}, s{S_WAVE}, 1
    s_mul_i32 s{sBase}, s{S_WAVE}, {KG_STRIDE}
    s_add_u32 s{sBase}, s{sBase}, {KG_BASE}
    """ + k.consts() + f"""
    v_lshl_add_u32 v{vWr[0]}, v1, 2, s{sBase}
    v_add_u32 v{vWr[1]}, {4*272}, v{vWr[0]}
    v_add_u32 v{vWr[2]}, {8*272}, v{vWr[0]}
    v_add_u32 v{vWr[3]}, {12*272}, v{vWr[0]}
    v_lshrrev_b32 v{t[5]}, 5, v1
    v_lshlrev_b32 v{t[5]}, 4, v{t[5]}
    v_and_b32 v{t[4]}, 15, v1
    v_mul_u32_u24 v{t[4]}, 272, v{t[4]}
    v_add3_u32 v{vRd}, v{t[4]}, v{t[5]}, s{sBase}
    v_and_b32 v{t[4]}, 31, v1
    v_mul_u32_u24 v{t[4]}, 272, v{t[4]}
    s_mul_i32 s{sT}, s{S_WAVE}, {YS}
    s_add_u32 s{sT}, s{sT}, {YB}
    v_add3_u32 v{vRy}, v{t[4]}, v{t[5]}, s{sT}
    v_lshl_add_u32 v{vPw}, v1, 2, s{sT}
    s_lshl_b32 s15, s{S_WAVE}, 2
    s_add_u32 s15, s15, {CNT}
    s_barrier
    """)
    g("s_waitcnt vmcnt(0)")
    g.items.append(("@STAMP22", 0))
    P = [pool + 2 * i for i in range(12)]
    H = [pool + 24 + i for i in range(12)]
    E1, E2, E4, E256, E512, E1024, X2, X4, X6, E768, X1024 = P[0:11]
    hC, h2, h4, h6, hE1, h256, h512, h768, h1024, hX = H[0:10]
    dpp = [f"v_max_u32_dpp v{t[4]}, v{t[4]}, v{t[4]} {m}" for m in ("row_shr:1", "row_shr:2", "row_shr:4", "row_shr:8", "row_bcast:15 row_mask:0xa", "row_bcast:31 row_mask:0xc")]
    g(f"v_lshlrev_b32 v{C}, 16, v{C}\nv_lshlrev_b32 v{C+1}, 16, v{C+1}\nv_max_f32 v{t[4]}, |v{C}|, |v{C+1}|")
    pl = [l.strip() for l in k.prep().split("\n") if l.strip()]
    for i, l in enumerate(pl):
        g(l)
        if i % 3 == 2 and dpp: g(dpp.pop(0))
    assert not dpp
    g(f"ds_write2_b32 v{vPw}, v{vA2}, v{vBh} offset0:0 offset1:68\nds_write_b32 v{vPw}, v{vBl} offset:544")
    lds_inc(g, tmp[6], tmp[7], saddr=15, off=C_YR)
    g(f"v_readlane_b32 s{sE}, v{t[4]}, 63")
    g(ilv(k.cexp(E1, 1, 0), k.cexp(E256, 256, 1), k.cexp(E1024, 1024, 2)))
    g(f"""
    s_lshr_b32 s{sE}, s{sE}, 23
    s_max_u32 s{sE}, s{sE}, 1
    s_min_u32 s{sE}, s{sE}, 252
    s_sub_u32 s{sT}, 253, s{sE}
    s_lshl_b32 s{sT}, s{sT}, 23
    v_mul_f32 v{C}, s{sT}, v{C}
    v_mul_f32 v{C+1}, s{sT}, v{C+1}
    s_add_u32 s{sE}, s{sE}, 2
    s_lshl_b32 s{sE}, s{sE}, 23
    v_mul_f32 v{vF}, s{sE}, v{t[3]}
    """)
    g(ilv(k.cmul(E2, E1, E1), k.cmul(E512, E256, E256), k.cmul(X1024, C, E1024)))
    g(ilv(k.cmul(E4, E2, E2), k.cmul(X2, C, E2), k.cmul(E768, E256, E512)))
    g(ilv(k.cmul(X4, C, E4), k.cmul(X6, X2, E4)))
    for d, x in ((hC, C), (hE1, E1), (h2, X2), (h256, E256), (h512, E512), (h768, E768), (h1024, E1024), (hX, X1024), (h4, X4), (h6, X6)): g(k.cvt(d, x, False))
    def fragread(dst, upper):
        m = 0xffff0000 if upper else 0x0000ffff
        g(f"s_mov_b32 exec_lo, {m}\ns_mov_b32 exec_hi, {m}")
        for ks in range(8):
            g(f"ds_read_b128 {vr(dst+4*ks,4)}, v{vRd} offset:{32*ks}")
        g("s_mov_b64 exec, -1")
    k.rows([(hX, None), (hX, h256), (hX, h512), (hX, h768), (hX, h1024)], vWr)
    fragread(FXr, True)
    k.rows([(hC, None), (hC, hE1), (h2, None), (h2, hE1), (h4, None), (h4, hE1), (h6, None), (h6, hE1),
          (hC, h256), (h2, h256), (h4, h256), (h6, h256), (hC, h512), (h4, h512), (hC, h768), (h4, h768)], vWr)
    fragread(FXr, False)
    ACC = pool
    g(f"""
    v_and_b32 v{t[0]}, 31, v1
    v_lshrrev_b32 v{t[1]}, 5, v1
    v_lshlrev_b32 v{t[2]}, 3, v{t[0]}
    v_lshl_add_u32 v{t[2]}, v{t[1]}, 2, v{t[2]}
    v_cmp_eq_u32 vcc, 0, v{t[1]}
    v_lshlrev_b32 v{t[3]}, 2, v{t[0]}
    v_lshlrev_b32 v{t[4]}, 1, v{t[0]}
    v_add_u32 v{t[4]}, 128, v{t[4]}
    v_cndmask_b32 v{t[3]}, v{t[4]}, v{t[3]}, vcc
    v_lshl_add_u32 v{t[5]}, v{t[1]}, 7, v{t[0]}
    v_and_b32 v{t[0]}, 0xff0, v{t[2]}
    v_lshl_add_u32 v{t[2]}, v{t[2]}, 2, v{t[0]}
    v_add_u32 v{t[2]}, s{sBase}, v{t[2]}
    v_and_b32 v{t[0]}, 0xff0, v{t[3]}
    v_lshl_add_u32 v{t[3]}, v{t[3]}, 2, v{t[0]}
    v_add_u32 v{t[3]}, s{sBase}, v{t[3]}
    v_mul_u32_u24 v{t[4]}, 312, v{t[1]}
    v_add_u32 v{t[4]}, v{t[4]}, v{t[3]}
    v_and_b32 v{t[0]}, 0xff0, v{t[5]}
    v_lshl_add_u32 v{t[5]}, v{t[5]}, 2, v{t[0]}
    v_add_u32 v{t[5]}, s{sBase}, v{t[5]}
    """)
    g.items.append(("@STAMP23", 0))
    lds_spin(g, tmp[0], tmp[1], 2, sE, saddr=15, off=C_YR)
    for ks in range(8):
        g(f"ds_read_b128 {vr(FY+4*ks,4)}, v{vRy} offset:{32*ks}")
    for ks in range(8):
        c = "0" if ks == 0 else vr(ACC, 16)
        g(f"s_waitcnt lgkmcnt({7-ks})")
        g(f"v_mfma_f32_32x32x16_f16 {vr(ACC,16)}, {vr(FXr+4*ks,4)}, {vr(FY+4*ks,4)}, {c}")
    g(f"""
    s_mul_i32 s{sT}, s{sMH}, {KG_STRIDE}
    s_sub_u32 s{sT}, s{sBase}, s{sT}
    s_sub_u32 s{sT}, s{sT}, {0x2c000000}
    """)
    NV = 22
    AD = pool
    VAL = [FY + 2 * i for i in range(NV)]
    assert FXr == FY + 32
    g("s_nop 12")
    for i in range(12):
        g(f"v_mul_f32 v{ACC+i}, v{vF}, v{ACC+i}")
    g(f"""
    ds_write_b128 v{t[2]}, {vr(ACC,4)} offset:80
    ds_write_b64 v{t[3]}, {vr(ACC+4,2)} offset:{80+1280}
    ds_write_b64 v{t[4]}, {vr(ACC+6,2)} offset:{80+1280+8}
    """)
    for r in range(4):
        g(f"ds_write_b32 v{t[5]}, v{ACC+8+r} offset:{80+2560+160*r}")
    g("s_waitcnt lgkmcnt(0)")
    g.items.append(("@STAMP24", 0))
    g.must_barrier()
    for run in range(2):
        g(f"""
        s_lshl_b32 s{sE}, s{sMH}, 7
        s_sub_u32 s{sE}, {255 - 64*run}, s{sE}
        v_sub_u32 v{t[4]}, s{sE}, v1
        v_lshlrev_b32 v{t[4]}, 3, v{t[4]}
        v_max_u32 v{t[5]}, 128, v{t[4]}
        v_cvt_f32_u32 v{t[5]}, v{t[5]}
        v_and_b32 v{vInv}, 0x7f800000, v{t[5]}
        v_sub_u32 v{vInv}, {261<<23 & 0xffffffff}, v{vInv}
        v_lshrrev_b32 v{t[5]}, 16, v{t[5]}
        v_subrev_u32 v{t[5]}, {0x4380-256}, v{t[5]}
        v_min_u32 v{t[5]}, v{t[5]}, v{t[4]}
        v_add_u32 v{vBaseM}, 0x4b000010, v{t[5]}
        v_max_u32 v{t[5]}, 129, v{t[4]}
        v_subrev_u32 v{t[5]}, 1, v{t[5]}
        v_cvt_f32_u32 v{t[5]}, v{t[5]}
        v_and_b32 v{vInvM}, 0x7f800000, v{t[5]}
        v_sub_u32 v{vInvM}, {261<<23 & 0xffffffff}, v{vInvM}
        """)
        if run == 1: g(f"v_cmp_ne_u32 s[74:75], 0, v{t[4]}")
        for j in range(11):
            i = 11 * run + j
            r = 7 - j
            inv = vInv if r >= 0 else vInvM
            g(f"v_fmamk_f32 v{AD+i}, v{inv}, {fbits(float(r))}, v{vBaseM}")
            g(f"v_and_b32 v{t[i&1]}, 0xff0, v{AD+i}")
            g(f"v_lshl_add_u32 v{AD+i}, v{AD+i}, 2, s{sT}")
            g(f"v_add_u32 v{AD+i}, v{AD+i}, v{t[i&1]}")
            g(f"ds_read2st64_b32 {vr(VAL[i],2)}, v{AD+i} offset0:0 offset1:{KG_STRIDE//256}")
    g.nobar(True); area(g, sBase, sCS); g.nobar(False)
    g(f"""
    s_lshr_b32 s{sT}, s{sKC}, 6
    v_and_b32 v{vA2}, 3, v1
    v_lshlrev_b32 v{vA2}, 1, v{vA2}
    v_sub_u32 v{vA2}, s{sT}, v{vA2}
    v_add_u32 v{vBh}, 9, v{vA2}
    v_min3_u32 v{vA2}, v{vA2}, v{vBh}, 7
    s_and_b32 s{sT}, s{sKC}, 32
    s_lshl_b32 s{sT}, s{sT}, 2
    v_lshl_add_u32 v{vA2}, v{vA2}, 4, s{sT}
    v_add_lshl_u32 v{vA2}, v{vA2}, v1, 7
    v_add_u32 v{vA2}, {FL_U}, v{vA2}
    v_lshrrev_b32 v{vBl}, 4, v1
    v_mul_u32_u24 v{vBl}, {36*4096}, v{vBl}
    v_and_b32 v{vF}, 12, v1
    v_lshl_add_u32 v{vBl}, v{vF}, 8, v{vBl}
    v_and_b32 v{vF}, 3, v1
    v_lshl_add_u32 v{vBl}, v{vF}, 4, v{vBl}
    s_and_b32 s10, s{sKC}, 15
    s_lshl_b32 s10, s10, 6
    s_lshr_b32 s9, s{sKC}, 4
    s_lshl_b32 s9, s9, 12
    s_add_u32 s9, s9, s10
    s_add_u32 s9, s9, {UT_OFF}
    v_lshl_add_u32 v{vF}, v1, 3, s{sBase}
    v_mov_b32 v{t[3]}, 0
    s_lshl_b32 s{sE}, s{sMH}, 11
    s_add_u32 s{sE}, s{sE}, s{sBase}
    v_lshl_add_u32 v{t[0]}, v1, 4, s{sE}
    v_lshrrev_b32 v{t[1]}, 4, v1
    v_mul_u32_u24 v{t[1]}, {CP}, v{t[1]}
    v_and_b32 v{t[2]}, 15, v1
    v_lshl_add_u32 v{t[1]}, v{t[2]}, 2, v{t[1]}
    s_add_u32 s{sT}, s{sBase}, 4096
    v_add_u32 v{t[1]}, s{sT}, v{t[1]}
    v_mov_b32 v{t[2]}, 0
    s_waitcnt lgkmcnt(0)
    """)
    for i in range(NV):
        g(f"v_add_f32 v{VAL[i]}, v{VAL[i]}, v{VAL[i]+1}")
    for i in range(19, NV):
        g(f"v_cndmask_b32 v{VAL[i]}, 0, v{VAL[i]}, s[74:75]")
    OUT = pool
    for s in range(4):
        for i in range(8):
            b = 11 * (i >> 2) + 2 * (i & 3) + s
            g(f"v_cvt_pk_bf16_f32 v{OUT+8*s+i}, v{VAL[b]}, v{VAL[b+1]}")
    def after(kb):
        if kb == 0: srd(a, R_WS, P_WS, WS_BYTES); get_tag(a, vWr[0], vWr[1])
        if kb == UK + 3:
            L = a.label("nofu")
            a(f"""
            s_cmp_lg_u32 s{S_WAVE}, 0
            s_cbranch_scc1 {L}
            s_and_b32 s76, s2, 1
            s_lshl_b32 s76, s76, 3
            s_lshr_b32 s77, s2, 5
            s_add_u32 s76, s76, s77
            s_lshl_b32 s76, s76, 2
            s_bfe_u32 s77, s2, 0x20001
            s_add_u32 s76, s76, s77
            s_lshl_b32 s76, s76, 2
            s_bfe_u32 s77, s2, 0x20003
            s_add_u32 s76, s76, s77
            s_lshl_b32 s76, s76, 7
            s_add_u32 s76, s76, {FL_U}
            """)
            flag_line(a, vWr[0], vWr[1], 76)
            a(f"{L}:")
    tot = g.emit(a, NBAR1 - 3, after)
    a.stamp(25)
    Lnp, L2, L3, Lnu2, Lno, Lre, Lw = [a.label(x) for x in ("np", "kc", "kd", "nu", "no", "re", "uw")]
    def u_dma():
        a(f"s_mov_b64 exec, -1\ns_add_u32 m0, s{sBase}, {UOFF + 512}\ns_nop 0")
        for b in range(4):
            a(f"buffer_load_dwordx4 v{vBl}, {WS}, s9 offen offset:{1024*b}{LD} lds")
            if b < 3: a(f"s_add_u32 s9, s9, {4*36*4096 - 1024}")
    a(f"s_mov_b32 s10, s{sMH}\ns_cmp_lg_u32 s{sMH}, 0\ns_cbranch_scc1 {Lnp}\ns_mov_b64 exec, 0xffff")
    poll_issue(a, vBh, 1, vA2, 0)
    a(f"""
    s_mov_b64 exec, -1
    {Lnp}:
    s_setprio {os.environ.get('KPRIO', '3')}
    s_barrier
    s_barrier
    s_cmp_lg_u32 s10, 0
    s_cbranch_scc1 {Lno}
    s_mov_b64 exec, 0xffff
    s_waitcnt vmcnt(0)
    v_cmp_ne_u32 vcc, s{S_TAG}, v{vBh}
    s_cbranch_vccnz {Lre}
    s_mov_b32 s10, 1
    """)
    u_dma()
    a(f"s_branch {Lno}\n{Lre}:")
    poll_issue(a, vBh, 1, vA2, 0)
    a(f"s_mov_b64 exec, -1\n{Lno}:")
    a("s_barrier")
    for s in range(4):
        a(f"ds_write_b128 v{t[0]}, {vr(OUT+8*s,4)} offset:{s*CP}")
        a(f"ds_write_b128 v{t[0]}, {vr(OUT+8*s+4,4)} offset:{s*CP+1024}")
    assert t[2] % 2 == 0
    a(f"""
    ds_write_b32 v{t[1]}, v{t[2]}
    ds_write_b64 v{vF}, {vr(t[2],2)} offset:{UOFF}
    s_cmp_lg_u32 s10, 0
    s_cbranch_scc1 {Lw}
    s_mov_b64 exec, 0xffff
    """)
    poll_wait(a, vBh, 1, vA2, 0, issued=True)
    u_dma()
    a(f"""
    {Lw}:
    s_waitcnt vmcnt(0)
    s_lshl_b32 s{sT}, s{sCS}, 2
    s_add_u32 s{sT}, s{sT}, {CNT+C_RDY}
    """)
    lds_inc(a, t[0], t[1], saddr=sT)
    a(f"s_branch {Lend}")
    a(f"{Lskip}:\ns_barrier")
    TB = int(os.environ.get('TLBAT', '1'))
    for _ in range(TB): a("s_barrier")
    if 'tlb' in EXP:
        Lnu = a.label("notlb")
        a(f"""
        s_lshr_b32 s8, s2, 3
        s_lshl_b32 s8, s8, 1
        s_add_u32 s8, s8, s{sMH}
        s_cmp_lg_u32 s8, 16
        s_cbranch_scc1 {Lnu}
        """)
        for i in sorted(range(1, (WS_BYTES >> 21) + 1), key=lambda i: abs(i - (UT_OFF >> 21) - 0.4)):
            a(f"s_mov_b32 s8, {i << 21}\ns_load_dword s{59+i}, s[{P_WS}:{P_WS+1}], s8")
        a(f"s_load_dword s72, s[{P_WO}:{P_WO+1}], 0\ns_load_dword s73, s[{P_OUT}:{P_OUT+1}], 0\ns_mov_b32 s8, {X_BYTES-4}\ns_load_dword s74, s[{P_OUT}:{P_OUT+1}], s8")
        a(f"{Lnu}:")
    for _ in range(NBAR1 - TB): a("s_barrier")
    srd(a, R_WS, P_WS, WS_BYTES); get_tag(a, t[0], t[1])
    a(f"{Lend}:")
    a.stamp(2)

def phase1(a, name, endlabel):
    Lkg, Lg, Lend = a.label("kg"), a.label("gemm"), a.label("p1end")
    head(a, name, endlabel, Lkg, Lg)
    loader(a)
    a(f"s_branch {Lend}\n{Lkg}:")
    kgen_waves(a)
    a(f"s_branch {Lend}\nL_gate_dma:\ns_waitcnt lgkmcnt(0)")
    srd(a, R_A, P_G, 1152)
    a(f"""
    v_lshlrev_b32 v4, 4, v1
    s_mov_b32 m0, {GT}
    s_nop 0
    buffer_load_dwordx4 v4, s[{R_A}:{R_A+3}], 0 offen lds
    s_mov_b64 exec, 0xff
    buffer_load_dwordx4 v4, s[{R_A}:{R_A+3}], 0 offen offset:1024 lds
    s_mov_b64 exec, -1
    s_barrier
    s_waitcnt vmcnt(0)
    {Lg}:
    """)
    gemm_waves(a)
    a(f"{Lend}:")
```

```python
from f1 import *

def conv_main(a, tiles, vA, vB, FA, FB, ACC):
    sb = Lgkm(a)
    n = max(tiles) + 1
    def ldA(i, rp):
        off = 4032 - 64 * rp - 512 * i
        sb.load(f"ds_read_b64 {vr(FA+4*i,2)}, v{vA} offset:{off}", rng(FA+4*i, 2))
        sb.load(f"ds_read_b64 {vr(FA+4*i+2,2)}, v{vA} offset:{off+8}", rng(FA+4*i+2, 2))
    def ldB(k, rp):
        sb.load(f"ds_read_b128 {vr(FB+4*k,4)}, v{vB} offset:{480 + 512*k - 64*rp}", rng(FB+4*k, 4))
    order = []
    for i in range(n):
        order.append(("A", i))
        for t in tiles:
            if t - i >= 0 and ("B", t - i) not in order: order.append(("B", t - i))
    for w, i in order:
        (ldA if w == "A" else ldB)(i, 0)
    started = set()
    for rp in range(4):
        for i in range(n):
            for ti, t in enumerate(tiles):
                k = t - i
                if k < 0: continue
                sb.need(list(rng(FA+4*i, 4)) + list(rng(FB+4*k, 4)))
                c = vr(ACC+4*ti, 4) if ti in started else "0"
                started.add(ti)
                a(f"v_mfma_f32_16x16x32_bf16 {vr(ACC+4*ti,4)}, {vr(FA+4*i,4)}, {vr(FB+4*k,4)}, {c}")
            if rp < 3:
                ldA(i, rp + 1); ldB(n - 1 - i, rp + 1)

class AR:
    def __init__(self, R):
        self.S = [R.alloc(16, 4), R.alloc(16, 4)]
        self.O = [R.alloc(16, 4), R.alloc(16, 4)]
        self.K = R.alloc(4, 4)
        self.Kx = R.alloc(4, 2)
        self.V0 = R.alloc(4, 4)
        self.V1 = R.alloc(4, 4)
        self.Qm = [R.alloc(4, 4), R.alloc(4, 4)]
        self.Qx = [R.alloc(8, 2), R.alloc(8, 2)]
        self.aK = R.alloc(); self.aKx = R.alloc(); self.aV = R.alloc(4, 1); self.idx = R.alloc()

def E(a, base, lo, n=4):
    for i in range(lo, lo + n):
        a(f"v_exp_f32 v{base+i}, v{base+i}")

def k_off(t): return (t & 7) * 1024
def kx_off(g): return KX_OFF + (g & 1) * 512
def v_off(t): return V_OFF + (t & 7) * 1280

def attn_loop(a, r, prio, pre_mid, post_mid):
    A, B = r.S
    NT = 16
    def smf(o, v, p): a(f"v_smfmac_f32_32x32x32_bf16 {vr(o,16)}, {vr(v,4)}, {vr(p,8)}, v{r.idx}")
    def vread(dst, t, s):
        a(f"ds_read_b64_tr_b16 {vr(dst,2)}, v{r.aV+2*s} offset:{v_off(t)}")
        a(f"ds_read_b64_tr_b16 {vr(dst+2,2)}, v{r.aV+2*s+1} offset:{v_off(t)}")
    a(f"v_mfma_f32_32x32x8_bf16 {vr(A,16)}, {vr(r.Kx,2)}, {vr(r.Qx[0],2)}, 0")
    a(f"v_mfma_f32_32x32x16_bf16 {vr(A,16)}, {vr(r.K,4)}, {vr(r.Qm[0],4)}, {vr(A,16)}")
    for X in range(2):
        for i in range(16): a(f"v_mov_b32 v{r.O[X]+i}, 0")
    E(a, A, 0, 2)
    for t in range(NT):
        if t in prio: a(f"s_setprio {prio[t]}")
        kxp = r.Kx + 2 * ((t >> 2) & 1)
        if t > 0: smf(r.O[1], r.V1, B + 8)
        vread(r.V1, t, 1)
        E(a, A, 2)
        a(f"v_mfma_f32_32x32x8_bf16 {vr(B,16)}, {vr(kxp,2)}, {vr(r.Qx[1]+2*(t&3),2)}, 0")
        n_after = 2
        if (t & 7) == 0:
            a(f"ds_read_b64 {vr(r.Kx+2,2)}, v{r.aKx} offset:{kx_off(1)}")
            n_after += 1
        E(a, A, 6)
        a(f"v_mfma_f32_32x32x16_bf16 {vr(B,16)}, {vr(r.K,4)}, {vr(r.Qm[1],4)}, {vr(B,16)}")
        last = t == NT - 1
        if (t & 7) != 7:
            a(f"ds_read_b128 {vr(r.K,4)}, v{r.aK} offset:{k_off(t+1)}")
            n_after += 1
        else:
            a("s_nop 0")
        E(a, A, 10)
        a(f"s_waitcnt lgkmcnt({n_after})")
        smf(r.O[0], r.V0, A)
        if t in pre_mid: pre_mid[t]()
        E(a, A, 14, 2)
        a("s_nop 2")
        E(a, B, 0, 1)
        a("s_waitcnt lgkmcnt(0)")
        if t in post_mid: post_mid[t]()
        if t == 7:
            a(f"""
            v_add_u32 v{r.aK}, {REG_B}, v{r.aK}
            v_add_u32 v{r.aKx}, {REG_B}, v{r.aKx}
            ds_read_b64 {vr(r.Kx,2)}, v{r.aKx} offset:{kx_off(0)}
            ds_read_b128 {vr(r.K,4)}, v{r.aK} offset:{k_off(0)}
            """)
            for i in range(4): a(f"v_add_u32 v{r.aV+i}, {REG_B}, v{r.aV+i}")
        tn = t + 1
        kxp = r.Kx + 2 * ((tn >> 2) & 1)
        smf(r.O[0], r.V1, A + 8)
        E(a, B, 1, 5)
        if t == 7: a("s_waitcnt lgkmcnt(0)")
        if not last:
            a(f"v_mfma_f32_32x32x8_bf16 {vr(A,16)}, {vr(kxp,2)}, {vr(r.Qx[0]+2*(tn&3),2)}, 0")
        E(a, B, 6)
        if not last:
            a(f"v_mfma_f32_32x32x16_bf16 {vr(A,16)}, {vr(r.K,4)}, {vr(r.Qm[0],4)}, {vr(A,16)}")
        E(a, B, 10)
        smf(r.O[1], r.V0, B)
        if not last:
            vread(r.V0, tn, 0)
        E(a, B, 14, 2)
        if not last:
            a("s_nop 2")
            E(a, A, 0, 2)
    a("s_nop 1")
    smf(r.O[1], r.V1, B + 8)

PRIO = eval(os.environ.get('PRIO', '{0: 1, 6: 0, "M": 3, 11: 2, 13: 1, 14: 0}'))
SPARE = 2 * REG_B

def piece_lds(n):
    return n * 1024 if n < 76 else SPARE + (n - 76) * 1024

def phase23(a):
    sHd, sR, sQP, sKQ, sT, sT2, sC, sCB, sKV, sQt = 4, 5, 6, 7, 8, 9, 10, 11, 12, 13
    sK0, sK1 = 14, 15
    sQT3, sDQ = 80, 81
    R = Regs(4, 128)
    t = [R.alloc() for _ in range(4)]
    r = AR(R)
    vL16 = R.alloc()
    PL = R.alloc(8, 4)
    assert PL == 120 and r.aK == 112
    Lld, LX = a.label("kvload"), a.label("X")
    a(f"""
    s_and_b32 s{sHd}, s2, 7
    s_lshl_b32 s{sQT3}, s{sHd}, 3
    s_lshl_b32 s{sHd}, s{sHd}, 2
    s_bfe_u32 s{sT}, s2, 0x20003
    s_add_u32 s{sHd}, s{sHd}, s{sT}
    s_lshr_b32 s{sR}, s2, 5
    s_bfe_u32 s{sT}, s2, 0x30003
    s_add_u32 s{sQT3}, s{sQT3}, s{sT}
    s_lshr_b32 s{sDQ}, s2, 6
    s_and_b32 s{sQP}, s{S_WAVE}, 3
    s_lshr_b32 s{sKQ}, s{S_WAVE}, 2
    v_lshlrev_b32 v{vL16}, 4, v1
    v_mov_b32 v{PL+4}, 0
    """)
    chan(a, sC, sKQ); area(a, sCB, sKQ)
    a(f"""
    s_mul_i32 s{sKV}, s{sHd}, {8*BLK}
    s_add_u32 s{sKV}, s{sKV}, {KV_OFF}
    s_cmp_eq_u32 s{sKQ}, 3
    s_cbranch_scc1 {Lld}
    s_cmp_ge_u32 s{sC}, 576
    s_cbranch_scc1 {LX}
    """)
    FA, FB, ACC = 8, 40, 72
    vA, vB, vY, vD = r.aK, r.aKx, r.aV, r.aV + 1
    Lts1, Lcj, Lsw = a.label("ts1"), a.label("cj"), a.label("sw")
    a(f"""
    s_lshl_b32 s{sT}, s{S_DV}, 16
    s_and_b32 s{S_DV}, s{S_DV}, 0xffff0000
    s_bitcmp0_b32 s{sC}, 0
    s_cselect_b32 s{S_DV}, s{sT}, s{S_DV}
    v_and_b32 v{t[0]}, 15, v1
    v_lshrrev_b32 v{t[1]}, 4, v1
    v_sub_u32 v{t[2]}, 15, v{t[0]}
    v_and_b32 v{t[3]}, 3, v{t[2]}
    v_and_b32 v{t[2]}, 12, v{t[2]}
    v_lshlrev_b32 v{t[2]}, 1, v{t[2]}
    v_lshl_add_u32 v{t[2]}, v{t[1]}, 4, v{t[2]}
    v_mul_u32_u24 v{t[3]}, {CP}, v{t[3]}
    s_and_b32 s{sT}, s{sQP}, 1
    s_lshl_b32 s{sT}, s{sT}, 8
    s_sub_u32 s{sT}, s{sCB}, s{sT}
    v_add3_u32 v{vA}, v{t[2]}, v{t[3]}, s{sT}
    v_lshlrev_b32 v{t[2]}, 5, v{t[0]}
    v_lshl_add_u32 v{t[3]}, v{t[1]}, 4, v{t[2]}
    s_add_u32 s{sT}, s{sT}, {UOFF}
    v_add_u32 v{vB}, s{sT}, v{t[3]}
    v_lshl_add_u32 v{vY}, v{t[1]}, 3, v{t[2]}
    s_lshl_b32 s82, s{sKQ}, 2
    s_add_u32 s82, s82, {CNT}
    """)
    lds_spin(a, t[0], t[1], 2, sT, saddr=82, off=C_RDY)
    a.stamp(5)
    a("s_setprio 2")
    if os.environ.get('C3PRIO'): a(f"s_cmp_lt_u32 s{sKQ}, 2\ns_cbranch_scc1 L_c3\ns_setprio {os.environ['C3PRIO']}\nL_c3:")
    a(f"s_cmp_ge_u32 s{sQP}, 2\ns_cbranch_scc1 {Lts1}")
    T0, T1 = [7, 4, 3, 0], [6, 5, 2, 1]
    conv_main(a, T0, vA, vB, FA, FB, ACC)
    a(f"s_cmp_eq_u32 s{sQP}, 0\ns_cselect_b32 s{sK0}, {T0[0]}, {T0[2]}\ns_cselect_b32 s{sK1}, {T0[1]}, {T0[3]}\ns_branch {Lcj}")
    a(f"{Lts1}:")
    conv_main(a, T1, vA, vB, FA, FB, ACC)
    a(f"s_cmp_eq_u32 s{sQP}, 2\ns_cselect_b32 s{sK0}, {T1[0]}, {T1[2]}\ns_cselect_b32 s{sK1}, {T1[1]}, {T1[3]}")
    a(f"{Lcj}:")
    lds_inc(a, FB + 8, FB + 9, saddr=82, off=C_1)
    a(f"s_cmp_lt_u32 s{sKQ}, 2\ns_cbranch_scc1 L_npq")
    publish_q(a, FB + 8, FB + 9, sT)
    a("L_npq:")
    a(f"""
    s_lshl_b32 s{sK0}, s{sK0}, 9
    s_lshl_b32 s{sK1}, s{sK1}, 9
    s_lshl_b32 s{sT}, s{sQP}, 11
    s_add_u32 s{sT}, s{sT}, s{sCB}
    v_add_u32 v{t[0]}, s{sT}, v{vL16}
    s_xor_b32 s{sT}, s{sQP}, 1
    s_lshl_b32 s{sT}, s{sT}, 11
    s_add_u32 s{sT}, s{sT}, s{sCB}
    v_add_u32 v{t[1]}, s{sT}, v{vL16}
    s_add_u32 s{sT}, s{sCB}, s{sK0}
    v_add_u32 v{t[2]}, s{sT}, v{vY}
    s_add_u32 s{sT}, s{sCB}, s{sK1}
    v_add_u32 v{t[3]}, s{sT}, v{vY}
    ds_read_b64 {vr(FA,2)}, v{t[2]} offset:{UOFF+512}
    ds_read_b64 {vr(FA+2,2)}, v{t[3]} offset:{UOFF+512}
    s_bitcmp0_b32 s{sQP}, 0
    s_cbranch_scc1 {Lsw}
    """)
    for i in range(8):
        a(f"v_swap_b32 v{ACC+i}, v{ACC+8+i}")
    a(f"{Lsw}:")
    lds_spin(a, FB + 8, FB + 9, 4, sT, saddr=82, off=C_1)
    a(f"""
    ds_write_b128 v{t[0]}, {vr(ACC+8,4)}
    ds_write_b128 v{t[0]}, {vr(ACC+12,4)} offset:1024
    """)
    lds_inc(a, FB + 8, FB + 9, saddr=82, off=C_2)

    for j in range(2):
        for h in range(2):
            a(f"v_lshlrev_b32 v{FA+4}, 16, v{FA+2*j+h}")
            a(f"v_and_b32 v{FA+5}, 0xffff0000, v{FA+2*j+h}")
            a(f"v_fmac_f32 v{ACC+4*j+2*h}, s{S_DV}, v{FA+4}")
            a(f"v_fmac_f32 v{ACC+4*j+2*h+1}, s{S_DV}, v{FA+5}")
    lds_spin(a, FB + 8, FB + 9, 4, sT, saddr=82, off=C_2)
    a(f"""
    ds_read_b128 {vr(FB,4)}, v{t[1]}
    ds_read_b128 {vr(FB+4,4)}, v{t[1]} offset:1024
    s_lshl_b32 s{sT}, s{sC}, 12
    s_add_u32 s{sT}, s{sT}, {AT_OFF}
    s_add_u32 s{sK0}, s{sK0}, s{sT}
    s_add_u32 s{sK1}, s{sK1}, s{sT}
    s_waitcnt lgkmcnt(0)
    """)
    for i in range(8):
        a(f"v_add_f32 v{ACC+i}, v{ACC+i}, v{FB+i}")
    for i in range(4):
        a(f"v_cvt_pk_bf16_f32 v{PL+i}, v{ACC+2*i}, v{ACC+2*i+1}")
    a(f"""
    buffer_store_dwordx2 {vr(PL,2)}, v{vY}, {WS}, s{sK0} offen{ST}
    buffer_store_dwordx2 {vr(PL+2,2)}, v{vY}, {WS}, s{sK1} offen{ST}
    s_cmp_lt_u32 s{sKQ}, 2
    s_cbranch_scc1 {LX}
    s_waitcnt vmcnt(0)
    """)
    def publish_a(Lskip):
        lds_inc(a, t[0], t[1], off=C_A, rtn=sT)
        a(f"""
        s_cmp_lt_u32 s{S_C2}, 576
        s_cselect_b32 s{sT2}, 11, 7
        s_cmp_lg_u32 s{sT}, s{sT2}
        s_cbranch_scc1 {Lskip}
        """)
        lds_spin(a, t[0], t[1], 8, sT, off=C_S)
        a(f"s_lshl_b32 s{sT2}, s2, 2\ns_add_u32 s{sT2}, s{sT2}, {FL_A}")
        flag_store(a, t[0], sT2)
    publish_a(LX)
    a(f"s_branch {LX}")
    Lp, Lc, Lq, Lnq, Lgo = [a.label(x) for x in ("kp", "kc", "noqx", "nq", "go")]
    def kv_flags(vd, vt, quarter):
        a(f"""
        v_and_b32 v{vd}, 1, v1
        v_lshlrev_b32 v{vd}, 5, v{vd}
        v_add3_u32 v{vd}, v{vd}, 32, s{sHd}
        v_lshrrev_b32 v{vt}, 1, v1
        s_lshl_b32 s{sT}, s{quarter}, 2
        v_add_u32 v{vt}, s{sT}, v{vt}
        s_lshl_b32 s{sT}, s{sR}, 1
        s_lshr_b32 s{sT2}, s{sQP}, 1
        s_add_u32 s{sT}, s{sT}, s{sT2}
        v_writelane_b32 v{vd}, s{sHd}, 8
        v_writelane_b32 v{vt}, s{sT}, 8
        v_mul_u32_u24 v{vd}, 43, v{vd}
        v_lshrrev_b32 v{vd}, 8, v{vd}
        v_lshl_add_u32 v{vd}, v{vd}, 4, v{vt}
        v_lshlrev_b32 v{vd}, 7, v{vd}
        v_add_u32 v{vd}, {FL_Q}, v{vd}
        """)
    a(f"{Lld}:")
    kv_flags(t[2], t[3], sQP)
    lds_spin(a, t[0], t[1], 8, sT, off=C_S if 'early' in EXP else C_FREE)
    a(f"""
    s_lshl_b32 s74, s{sHd}, 3
    s_add_u32 s74, s74, s{sR}
    s_lshl_b32 s75, s74, 2
    s_add_u32 s75, s75, s{sQP}
    s_mov_b32 s76, 0
    s_lshl_b32 s82, s{sQP}, 2
    s_add_u32 s82, s82, {CNT + C_Q}
    v_mov_b32 v{PL}, s82
    v_mov_b32 v{PL+1}, 1
    s_mov_b32 s{S_SPIN}, {SPIN_MAX}
    {Lp}:
    s_mov_b64 exec, 0x1ff
    buffer_load_dword v{t[3]}, v{t[2]}, {WS}, 0 offen sc1
    s_cmp_lg_u32 s76, 1
    s_cbranch_scc1 {Lq}
    s_mov_b32 s76, 2
    s_waitcnt vmcnt(1)
    ds_write_b32 v{PL}, v{PL+1}
    {Lq}:
    s_waitcnt vmcnt(0)
    v_cmp_ne_u32 vcc, s{S_TAG}, v{t[3]}
    s_mov_b64 exec, -1
    s_sub_u32 s{S_SPIN}, s{S_SPIN}, 1
    s_cselect_b32 vcc_lo, 0, vcc_lo
    s_bitcmp1_b32 vcc_lo, 8
    s_cbranch_scc1 {Lc}
    s_cmp_lg_u32 s76, 0
    s_cbranch_scc1 {Lnq}
    s_mov_b32 s76, 1
    s_lshl_b32 s{sT}, s{sQP}, 11
    s_add_u32 m0, s{sT}, {QST}
    s_lshl_b32 s{sT2}, s75, 11
    s_add_u32 s{sT2}, s{sT2}, {QF_OFF}
    buffer_load_dwordx4 v{vL16}, {WS}, s{sT2} offen{LD} lds
    buffer_load_dwordx4 v{vL16}, {WS}, s{sT2} offen offset:1024{LD} lds
    s_lshl_b32 s{sT}, s{sQP}, 8
    s_add_u32 m0, s{sT}, {QST+8192}
    s_lshl_b32 s{sT2}, s75, 8
    s_add_u32 s{sT2}, s{sT2}, {QX_OFF}
    s_mov_b64 exec, 0xffff
    buffer_load_dwordx4 v{vL16}, {WS}, s{sT2} offen{LD} lds
    s_mov_b64 exec, -1
    {Lnq}:
    s_mov_b32 s77, 0
    s_and_b32 s{sT}, vcc_lo, 0x0f
    s_cbranch_scc0 {Lgo}
    s_mov_b32 s77, 1
    s_and_b32 s{sT}, vcc_lo, 0xf0
    s_cbranch_scc0 {Lgo}
    {Lc}:
    s_sleep {os.environ.get('PSLEEP', '3')}
    s_branch {Lp}
    {Lgo}:
    """)
    a.stamp(5)
    a(f"""
    s_lshl_b32 s{sT}, s{sQP}, 1
    s_add_u32 s{sT}, s{sT}, s77
    s_mul_i32 s{sT}, s{sT}, {BLK}
    s_add_u32 s{sT}, s{sT}, s{sKV}
    s_mul_i32 s82, s{sQP}, {BLK}
    """)
    def run(first, n):
        a(f"s_add_u32 m0, s82, {first*1024}\ns_add_u32 s{sT2}, s{sT}, {first*1024}")
        for i in range(n):
            a(f"buffer_load_dwordx4 v{vL16}, {WS}, s{sT2} offen offset:{1024*i}{LD} lds")
    run(0, 2); run(8, 4)
    a(f"""
    s_lshl_b32 s78, s{sQP}, 3
    s_add_u32 s78, s78, {CNT + C_KV}
    v_mov_b32 v{t[0]}, s78
    v_mov_b32 v{t[2]}, 1
    v_mov_b32 v{t[3]}, s77
    v_mov_b32 v{t[1]}, 2
    s_waitcnt vmcnt(0)
    ds_write_b32 v{PL}, v{PL+1}
    ds_write_b64 v{t[0]}, {vr(t[2],2)}
    s_waitcnt lgkmcnt(0)
    """)
    run(2, 4); run(12, 4); run(6, 2); run(16, 3)
    a(f"s_waitcnt vmcnt(0)\nds_write_b32 v{t[0]}, v{t[1]}")
    a(f"{LX}:")
    a(f"""
    s_mul_i32 s{sT}, s{sKQ}, {BLK}
    v_add_u32 v{r.aK}, s{sT}, v{vL16}
    v_lshl_add_u32 v{r.aKx}, v1, 3, s{sT}
    v_bfe_u32 v{t[0]}, v1, 2, 2
    v_and_b32 v{t[1]}, 1, v1
    v_lshlrev_b32 v{t[1]}, 4, v{t[1]}
    v_and_b32 v{t[2]}, 2, v1
    v_lshl_add_u32 v{t[1]}, v{t[2]}, 2, v{t[1]}
    v_lshl_add_u32 v{t[1]}, v{t[0]}, 5, v{t[1]}
    v_and_b32 v{t[3]}, 32, v1
    v_lshl_add_u32 v{t[1]}, v{t[3]}, 3, v{t[1]}
    v_lshl_add_u32 v{t[0]}, v{t[0]}, 3, v{t[3]}
    v_add_u32 v{t[0]}, 1152, v{t[0]}
    v_lshl_add_u32 v{t[0]}, v{t[2]}, 17, v{t[0]}
    v_and_b32 v{t[2]}, 16, v1
    v_cmp_eq_u32 vcc, 0, v{t[2]}
    v_lshlrev_b32 v{t[2]}, 4, v{t[2]}
    v_mov_b32 v{t[3]}, 512
    v_cndmask_b32 v{t[1]}, v{t[0]}, v{t[1]}, vcc
    v_add_u32 v{r.aV}, s{sT}, v{t[1]}
    v_sub_u32 v{t[2]}, 128, v{t[2]}
    v_cndmask_b32 v{t[3]}, 64, v{t[3]}, vcc
    v_add_u32 v{r.aV+1}, v{r.aV}, v{t[2]}
    v_add_u32 v{r.aV+2}, v{r.aV}, v{t[3]}
    v_add_u32 v{r.aV+3}, v{r.aV+2}, v{t[2]}
    v_mov_b32 v{r.idx}, 0xdddddddd
    s_mov_b32 s72, {fbits(2.0**-40)}
    s_mov_b32 s73, {fbits(2.0**60)}
    s_movk_i32 s64, 0x1f8
    s_mov_b64 s[62:63], 0
    s_lshl_b32 s{sT}, s{sQP}, 11
    s_add_u32 s{sT}, s{sT}, {QST}
    v_add_u32 v{t[0]}, s{sT}, v{vL16}
    v_and_b32 v{t[1]}, 31, v1
    s_lshl_b32 s{sT}, s{sQP}, 8
    s_add_u32 s{sT}, s{sT}, {QST+8192}
    v_lshl_add_u32 v{t[1]}, v{t[1]}, 2, s{sT}
    v_cmp_gt_u32 vcc, 32, v1
    s_lshl_b32 s{sQt}, s{sR}, 2
    s_add_u32 s{sQt}, s{sQt}, s{sQP}
    """)
    for X in range(2):
        for i in (1, 2, 5, 6): a(f"v_mov_b32 v{r.Qx[X]+i}, 0")
    a.stamp(6)
    a(f"s_lshl_b32 s82, s{sQP}, 2\ns_add_u32 s82, s82, {CNT}\ns_lshl_b32 s83, s{sKQ}, 3\ns_add_u32 s83, s83, {CNT}")
    lds_spin(a, PL, PL + 1, 1, sT, saddr=82, off=C_Q)
    a(f"""
    ds_read_b128 {vr(r.Qm[0],4)}, v{t[0]}
    ds_read_b128 {vr(r.Qm[1],4)}, v{t[0]} offset:1024
    ds_read2_b32 {vr(t[2],2)}, v{t[1]} offset0:0 offset1:32
    """)
    lds_inc(a, PL, PL + 1, off=C_Y)
    lds_spin(a, PL, PL + 1, 1, sT, saddr=83, off=C_KV)
    a(f"""
    ds_read_b64 {vr(r.Kx,2)}, v{r.aKx} offset:{kx_off(0)}
    ds_read_b128 {vr(r.K,4)}, v{r.aK} offset:{k_off(0)}
    ds_read_b64_tr_b16 {vr(r.V0,2)}, v{r.aV} offset:{v_off(0)}
    ds_read_b64_tr_b16 {vr(r.V0+2,2)}, v{r.aV+1} offset:{v_off(0)}
    """)
    for X in range(2):
        q = r.Qx[X]; src = t[2] + X
        a(f"""
        v_cndmask_b32 v{q+0}, 0, v{src}, vcc
        v_cndmask_b32 v{q+3}, 0, v{src}, vcc
        v_cndmask_b32 v{q+4}, v{src}, 0, vcc
        v_cndmask_b32 v{q+7}, v{src}, 0, vcc
        """)
    def stage2_pre():
        a(f"v_mov_b32 v{t[0]}, s83\nds_read_b32 v{t[1]}, v{t[0]} offset:{C_KV}")
    def stage2_post():
        L = a.label("cok")
        a(f"v_cmp_gt_u32 vcc, 2, v{t[1]}\ns_cbranch_vccz {L}")
        lds_spin(a, t[0], t[1], 2, sT, saddr=83, off=C_KV)
        a(f"{L}:")
    def wt_issue():
        L = a.label("nw")
        a(f"s_cmp_ge_u32 s{S_WAVE}, 3\ns_cbranch_scc1 {L}\ns_lshl_b32 s79, s{S_WAVE}, 8\ns_add_u32 s79, s79, s2")
        wt_load(a, 79, sT, 78, 77, 76, 75, t[0], t[1], t[2], PL)
        a(f"{L}:")
    def wt_put():
        L, Ls = a.label("nw"), a.label("ns")
        a(f"s_cmp_ge_u32 s{S_WAVE}, 8\ns_cbranch_scc1 {Ls}\ns_cmp_ge_u32 s{S_WAVE}, 3\ns_cbranch_scc1 {L}\ns_waitcnt vmcnt(0)")
        wt_store(a, 79, PL, vL16)
        a(f"{L}:\ns_lshr_b32 s78, s{S_WAVE}, 1")
        kv_flags(PL + 4, PL + 5, 78)
        a("s_mov_b64 exec, 0xff")
        poll_issue(a, PL + 5, 1, PL + 4, 0)
        a(f"s_mov_b64 exec, -1\n{Ls}:")
    def second_blocks():
        Ls, Lw = a.label("kvs"), a.label("nw")
        a(f"s_cmp_ge_u32 s{S_WAVE}, 8\ns_cbranch_scc1 {Ls}\ns_mov_b64 exec, 0xff")
        poll_wait(a, PL + 5, 1, PL + 4, 0, issued=True)
        a("s_mov_b64 exec, -1")
        publish_a(Lw)
        a(f"{Lw}:")
        lds_spin(a, t[0], t[1], 16, sT, off=C_Y)
        a(f"s_lshl_b32 s82, s78, 3\ns_add_u32 s82, s82, {CNT}")
        lds_spin(a, t[0], t[1], 1, sT, saddr=82, off=C_KV)
        a(f"""
        ds_read_b32 v{t[1]}, v{t[0]} offset:{C_KV+4}
        s_and_b32 s{sT}, s{S_WAVE}, 6
        s_waitcnt lgkmcnt(0)
        v_readfirstlane_b32 s{sT2}, v{t[1]}
        s_xor_b32 s{sT2}, s{sT2}, 1
        s_and_b32 s{sT2}, s{sT2}, 1
        s_add_u32 s{sT}, s{sT}, s{sT2}
        s_mul_i32 s{sT}, s{sT}, {BLK}
        s_add_u32 s{sT}, s{sT}, s{sKV}
        s_and_b32 s{sT2}, s{S_WAVE}, 1
        s_mul_i32 s{sT2}, s{sT2}, 9216
        s_add_u32 s{sT}, s{sT}, s{sT2}
        s_mul_i32 s82, s78, {BLK}
        s_add_u32 s82, s82, s{sT2}
        s_add_u32 m0, s82, {REG_B}
        s_nop 0
        """)
        for i in range(10):
            a(f"buffer_load_dwordx4 v{vL16}, {WS}, s{sT} offen offset:{1024*(i&3)}{LD} lds")
            if i & 3 == 3: a(f"s_add_u32 m0, m0, 4096\ns_add_u32 s{sT}, s{sT}, 4096")
        a(f"{Ls}:")
    a("s_waitcnt lgkmcnt(2)\ns_nop 0")
    a.stamp(7)
    def poll_post():
        L = a.label("nopa")
        a(f"s_cmp_lg_u32 s{S_WAVE}, 0\ns_cbranch_scc1 {L}")
        poll_issue(a, PL, 4, vL16, FL_A)
        a(f"{L}:")
    def poll_check():
        L = a.label("nopw")
        a(f"s_cmp_lg_u32 s{S_WAVE}, 0\ns_cbranch_scc1 {L}")
        poll_wait(a, PL, 4, vL16, FL_A, issued=True)
        lds_inc(a, t[0], t[1], off=C_FA)
        a(f"{L}:")
    def mid_post():
        a("s_waitcnt vmcnt(0)")
        a.stamp(15)
        a(f"s_setprio {PRIO['M']}\ns_barrier")
        a.stamp(16)
    NLD = 8
    def prefetch_post():
        La, Ld = a.label("pfa"), a.label("pfd")
        a(f"""
        s_cmp_ge_u32 s{S_WAVE}, {0 if 'nopf' in EXP else 9}
        s_cbranch_scc1 {La}
        """)
        lds_spin(a, t[0], t[1], 1, sT, off=C_FA)
        a(f"""
        s_mul_i32 s{sT}, s{sDQ}, 9
        s_add_u32 s{sT}, s{sT}, s{S_WAVE}
        s_lshl_b32 m0, s{S_WAVE}, 13
        s_mul_i32 s{sT}, s{sT}, {18*1024}
        s_add_u32 s{sT}, s{sT}, {WT_OFF}
        """)
        for n in range(NLD):
            a(f"buffer_load_dwordx4 v{vL16}, {WS}, s{sT} offen offset:{1024*(n&3)}{LD} lds")
            if n == 3: a(f"s_add_u32 m0, m0, 4096\ns_add_u32 s{sT}, s{sT}, 4096")
        a(f"""
        v_lshrrev_b32 v{t[0]}, 2, v1
        v_lshlrev_b32 v{t[0]}, 12, v{t[0]}
        v_and_b32 v{t[1]}, 3, v1
        v_lshl_add_u32 v{t[0]}, v{t[1]}, 4, v{t[0]}
        s_mul_i32 s{sT}, s{sDQ}, 9
        s_add_u32 s{sT}, s{sT}, s{S_WAVE}
        s_lshl_b32 s{sT}, s{sT}, 16
        s_lshl_b32 s{sT2}, s{sQT3}, 6
        s_add_u32 s{sT}, s{sT}, s{sT2}
        s_add_u32 s{sT}, s{sT}, {AT_OFF}
        s_lshl_b32 s{sK1}, s{S_WAVE}, 10
        s_add_u32 s{sT2}, s{sK1}, {SPARE - 4096}
        s_add_u32 s{sK1}, s{sK1}, {72*1024}
        s_cmp_ge_u32 s{S_WAVE}, 4
        s_cselect_b32 s{sK1}, s{sT2}, s{sK1}
        s_mov_b32 m0, s{sK1}
        s_nop 0
        buffer_load_dwordx4 v{t[0]}, {WS}, s{sT} offen{LD} lds
        {La}:
        """)
    attn_loop(a, r, PRIO, {0: stage2_pre}, {0: lambda: (stage2_post(), wt_issue()), 3: wt_put, 5: second_blocks, 7: mid_post, 8: poll_post, 10: poll_check, 11: prefetch_post})
    a('s_setprio 3')
    a.stamp(8)
    O0, O1 = r.O
    FD = [72 + 4*i for i in range(10)]
    FL = [8 + 4*i for i in range(8)]
    FA3 = FL + FD
    AV, vG, vB, vOut, ACC3, FB3 = 112, 116, 118, t[3], PL, 40
    OZ = REG_B + BLK
    Lfin, Lp9, Lend, Lfirst, Lwr = [a.label(x) for x in ("fin", "p9", "end", "first", "wr")]
    a(f"""
    s_lshl_b32 s82, s{sKQ}, 2
    s_add_u32 s82, s82, {CNT}
    """)
    lds_inc(a, t[0], t[1], saddr=82, off=C_E)
    a(f"""
    s_lshl_b32 s83, s{sQP}, 2
    s_add_u32 s83, s83, {CNT}
    s_mul_i32 s{sCB}, s{sQP}, 4864
    s_add_u32 s{sCB}, s{sCB}, {REG_B}
    v_cmp_gt_u32 vcc, 32, v1
    v_add_u32 v{t[2]}, s{sCB}, v{vL16}
    v_lshl_add_u32 v{t[3]}, v1, 3, s{sCB}
    v_lshl_add_u32 v{r.aK}, v1, 2, s{sCB}
    """)
    for i in range(3): a(f"v_cndmask_b32 v{O0+8+i}, v{O1+8+i}, v{O0+8+i}, vcc")
    a(f"s_cmp_eq_u32 s{sKQ}, 0\ns_cbranch_scc1 {Lfirst}")
    lds_spin(a, t[0], t[1], f"s{sKQ}", sT, saddr=83, off=C_P)
    a.stamp(18)
    a(f"""
    ds_read_b64 v[24:25], v{t[3]} offset:4096
    ds_read_b32 v26, v{r.aK} offset:4608
    ds_read_b128 v[8:11], v{t[2]}
    ds_read_b128 v[12:15], v{t[2]} offset:1024
    ds_read_b128 v[16:19], v{t[2]} offset:2048
    ds_read_b128 v[20:23], v{t[2]} offset:3072
    s_waitcnt lgkmcnt(4)
    """)
    for i in range(3): a(f"v_add_f32 v{O0+8+i}, v{O0+8+i}, v{24+i}")
    a(f"s_cmp_eq_u32 s{sKQ}, 3\ns_cbranch_scc1 {Lfin}\ns_waitcnt lgkmcnt(2)")
    for i in range(8): a(f"v_add_f32 v{O0+i}, v{O0+i}, v{8+i}")
    a("s_waitcnt lgkmcnt(0)")
    for i in range(8): a(f"v_add_f32 v{O1+i}, v{O1+i}, v{16+i}")
    a(f"s_branch {Lwr}\n{Lfirst}:")
    lds_spin(a, t[0], t[1], 4, sT, saddr=82, off=C_E)
    a(f"""{Lwr}:
    ds_write_b128 v{t[2]}, {vr(O0,4)}
    ds_write_b128 v{t[2]}, {vr(O0+4,4)} offset:1024
    ds_write_b128 v{t[2]}, {vr(O1,4)} offset:2048
    ds_write_b128 v{t[2]}, {vr(O1+4,4)} offset:3072
    ds_write_b64 v{t[3]}, {vr(O0+8,2)} offset:4096
    ds_write_b32 v{r.aK}, v{O0+10} offset:4608
    """)
    lds_inc(a, t[0], t[1], saddr=83, off=C_P)
    a("s_setprio 0")
    a.stamp(17)
    a(f"""
    s_cmp_ge_u32 s{S_WAVE}, 9
    s_cbranch_scc1 {Lp9}
    v_and_b32 v{t[2]}, 15, v1
    v_lshlrev_b32 v{t[2]}, 2, v{t[2]}
    s_lshl_b32 s{sT}, s{sQT3}, 7
    s_add_u32 s{sT}, s{sT}, {G_OFF}
    s_waitcnt lgkmcnt(0)
    buffer_load_dword v{vG}, v{t[2]}, {WS}, s{sT} offen{LD}
    buffer_load_dword v{vG+1}, v{t[2]}, {WS}, s{sT} offen offset:64{LD}
    s_mul_i32 s{sK0}, s{sDQ}, 9
    s_add_u32 s{sK0}, s{sK0}, s{S_WAVE}
    s_mul_i32 s{sT}, s{sK0}, {18*1024}
    s_add_u32 s{sT}, s{sT}, {WT_OFF + NLD*1024}
    """)
    for n in range(10):
        a(f"buffer_load_dwordx4 {vr(FD[n],4)}, v{vL16}, {WS}, s{sT} offen offset:{1024*(n&3)}{LD}")
        if n & 3 == 3: a(f"s_add_u32 s{sT}, s{sT}, 4096")
    a(f"""
    s_lshl_b32 s{sT}, s{S_WAVE}, 13
    v_add_u32 v{t[0]}, s{sT}, v{vL16}
    v_lshrrev_b32 v{t[1]}, 2, v1
    v_lshlrev_b32 v{t[1]}, 6, v{t[1]}
    v_and_b32 v{t[2]}, 3, v1
    v_lshl_add_u32 v{t[1]}, v{t[2]}, 3, v{t[1]}
    v_add_u32 v{t[1]}, s{sK1}, v{t[1]}
    s_waitcnt vmcnt(10)
    """)
    for ks in range(NLD):
        a(f"ds_read_b128 {vr(FL[ks],4)}, v{t[0]} offset:{1024*ks}")
    a(f"""
    ds_read_b64_tr_b16 {vr(AV,2)}, v{t[1]}
    ds_read_b64_tr_b16 {vr(AV+2,2)}, v{t[1]} offset:32
    v_lshrrev_b32 v{t[0]}, 4, v1
    v_and_b32 v{t[2]}, 15, v1
    v_lshlrev_b32 v{vB}, 9, v{t[0]}
    v_add_u32 v{vB}, {OZ}, v{vB}
    v_lshl_add_u32 v{vB+1}, v{t[2]}, 2, v{vB}
    v_add_u32 v{vB+1}, 32768, v{vB+1}
    v_lshl_add_u32 v{vB}, v{t[2]}, 4, v{vB}
    v_mul_u32_u24 v{vOut}, 1152, v{t[2]}
    v_lshl_add_u32 v{vOut}, v{t[0]}, 3, v{vOut}
    v_add_u32 v{t[2]}, 2048, v{vB+1}
    """)
    GA, OM = 60, 68
    for T in range(2):
        g = vG + T
        a(f"""
        v_cvt_pk_bf16_f32 v{g}, v{g}, v{g}
        v_and_b32 v{g}, 0xffff0000, v{g}
        v_mul_f32 v{g}, {fbits(-L_HI)}, v{g}
        v_exp_f32 v{g}, v{g}
        s_nop 0
        v_add_f32 v{g}, 1.0, v{g}
        v_rcp_f32 v{g}, v{g}
        s_nop 0
        v_cvt_pk_bf16_f32 v{g}, v{g}, v{g}
        v_and_b32 v{g}, 0xffff0000, v{g}
        v_sub_f32 v{OM+T}, 1.0, v{g}
        v_cvt_pk_bf16_f32 v{OM+T}, v{OM+T}, v{OM+T}
        v_and_b32 v{OM+T}, 0xffff0000, v{OM+T}
        """)
    for i in range(8): a(f"v_mov_b32 v{ACC3+i}, 0")
    a("s_waitcnt lgkmcnt(0)")
    for T in range(2):
        for h in range(2):
            a(f"v_lshlrev_b32 v{GA+4*T+2*h}, 16, v{AV+2*T+h}\nv_and_b32 v{GA+4*T+2*h+1}, 0xffff0000, v{AV+2*T+h}")
        for i in range(4): a(f"v_mul_f32 v{GA+4*T+i}, v{vG+T}, v{GA+4*T+i}")
    srd(a, R_A, P_OUT, X_BYTES)
    Lscan, Lall = a.label("scan"), a.label("all")
    a(f"""
    s_mul_i32 s{sT}, s{sQT3}, {32*1152}
    s_lshl_b32 s{sT2}, s{sK0}, 5
    s_add_u32 s{sK0}, s{sT}, s{sT2}
    s_add_u32 s{sK1}, s{sK0}, {16*1152}
    v_mov_b32 v{t[0]}, {CNT}
    s_mov_b32 s74, 0
    s_mov_b32 s{S_SPIN}, {SPIN_MAX}
    s_waitcnt vmcnt(0)
    s_setprio 2
    {Lscan}:
    ds_read_b32 v{t[1]}, v{t[0]} offset:{C_F}
    s_sub_u32 s{S_SPIN}, s{S_SPIN}, 1
    s_cbranch_scc1 {Lall}
    s_waitcnt lgkmcnt(0)
    v_readfirstlane_b32 s75, v{t[1]}
    s_andn2_b32 s76, s75, s74
    s_cbranch_scc1 {Lscan}_n
    s_sleep 1
    s_branch {Lscan}
    {Lscan}_n:
    s_mov_b32 s74, s75
    """)
    for g in range(8):
        L = a.label("grp")
        a(f"s_bitcmp0_b32 s76, {g}\ns_cbranch_scc1 {L}")
        for n in range(4):
            a(f"ds_read_b128 {vr(FB3+4*n,4)}, v{vB} offset:{(2*g+(n>>1))*2048 + (n&1)*256}")
        for n in range(4):
            T = n & 1
            a(f"s_waitcnt lgkmcnt({3-n})\nv_mfma_f32_16x16x32_bf16 {vr(ACC3+4*T,4)}, {vr(FA3[2*g+(n>>1)],4)}, {vr(FB3+4*n,4)}, {vr(ACC3+4*T,4)}")
        a(f"{L}:")
    a(f"s_cmp_lg_u32 s74, 0xff\ns_cbranch_scc1 {Lscan}\n{Lall}:")
    a.stamp(21)
    for n in range(4):
        va = vB + 1 if n < 2 else t[2]; T = n & 1; d = FB3 + 4 * n
        a(f"ds_read2_b32 {vr(d,2)}, v{va} offset0:{16*T} offset1:{16*T+32}")
        a(f"ds_read2_b32 {vr(d+2,2)}, v{va} offset0:{16*T+64} offset1:{16*T+96}")
    for n in range(4):
        T = n & 1
        a(f"s_waitcnt lgkmcnt({6-2*n})\nv_mfma_f32_16x16x32_bf16 {vr(ACC3+4*T,4)}, {vr(FA3[16+(n>>1)],4)}, {vr(FB3+4*n,4)}, {vr(ACC3+4*T,4)}")
    a("s_nop 6")
    for T in range(2):
        for i in range(4): a(f"v_fmac_f32 v{GA+4*T+i}, v{OM+T}, v{ACC3+4*T+i}")
        a(f"""
        v_cvt_pk_bf16_f32 v{8+2*T}, v{GA+4*T}, v{GA+4*T+1}
        v_cvt_pk_bf16_f32 v{9+2*T}, v{GA+4*T+2}, v{GA+4*T+3}
        buffer_store_dwordx2 {vr(8+2*T,2)}, v{vOut}, s[{R_A}:{R_A+3}], s{sK0 if T == 0 else sK1} offen
        """)
    a(f"s_branch {Lend}")
    Lpl, Lpc, Lpd = a.label("pl"), a.label("pc"), a.label("pd")
    a(f"{Lp9}:")
    lds_spin(a, t[0], t[1], 4, sT, off=C_E + 4)
    lds_spin(a, t[0], t[1], 4, sT, off=C_E + 8)
    a(f"""
    s_setprio 3
    s_sub_u32 s77, s{S_WAVE}, 9
    v_lshrrev_b32 v{t[2]}, 2, v1
    v_mul_u32_u24 v{t[2]}, 12, v{t[2]}
    v_and_b32 v{t[3]}, 3, v1
    s_lshl_b32 s{sT}, s77, 2
    v_add3_u32 v{t[2]}, v{t[2]}, v{t[3]}, s{sT}
    s_lshr_b32 s{sT}, s{sQT3}, 1
    s_lshl_b32 s{sT}, s{sT}, 12
    s_add_u32 s{sT}, s{sT}, {FL_O}
    v_lshl_add_u32 v{t[2]}, v{t[2]}, 7, s{sT}
    s_cmp_eq_u32 s77, 2
    s_movk_i32 s74, 0xfff
    s_cselect_b32 s74, 0xff, s74
    s_mov_b32 s75, 0
    s_mul_i32 s78, s{sQT3}, {36*1024}
    s_add_u32 s78, s78, {OF_OFF}
    v_mov_b32 v{t[0]}, {CNT}
    s_mov_b32 s{S_SPIN}, {SPIN_MAX}
    {Lpl}:
    s_mov_b32 exec_lo, s74
    s_mov_b32 exec_hi, 0
    buffer_load_dword v{t[3]}, v{t[2]}, {WS}, 0 offen sc1
    s_waitcnt vmcnt(0)
    v_cmp_ne_u32 vcc, s{S_TAG}, v{t[3]}
    s_mov_b64 exec, -1
    s_sub_u32 s{S_SPIN}, s{S_SPIN}, 1
    s_cselect_b32 vcc_lo, 0, vcc_lo
    s_orn2_b32 s76, vcc_lo, s74
    s_mov_b32 s75, 0
    """)
    for i in range(3):
        L = a.label("og")
        a(f"""
        s_and_b32 s{sT}, s76, {0xf << (4*i)}
        s_cbranch_scc1 {L}
        s_andn2_b32 s74, s74, {0xf << (4*i)}
        s_add_u32 s{sT}, s77, {3*i}
        s_bitset1_b32 s75, s{sT}
        s_lshl_b32 s{sT2}, s{sT}, 12
        s_add_u32 m0, s{sT2}, {OZ}
        s_add_u32 s{sT2}, s{sT2}, s78
        """)
        for n in range(4):
            a(f"buffer_load_dwordx4 v{vL16}, {WS}, s{sT2} offen offset:{1024*n}{LD} lds")
        a(f"""
        s_lshl_b32 s{sT2}, s{sT}, 9
        s_add_u32 m0, s{sT2}, {OZ + 32768}
        s_add_u32 s{sT2}, s{sT2}, s78
        s_add_u32 s{sT2}, s{sT2}, 32768
        s_mov_b64 exec, 0xffffffff
        buffer_load_dwordx4 v{vL16}, {WS}, s{sT2} offen{LD} lds
        s_mov_b64 exec, -1
        {L}:
        """)
    a(f"""
    s_cmp_eq_u32 s75, 0
    s_cbranch_scc1 {Lpc}
    v_mov_b32 v{t[1]}, s75
    s_mov_b64 exec, 1
    s_waitcnt vmcnt(0)
    ds_or_b32 v{t[0]}, v{t[1]} offset:{C_F}
    s_mov_b64 exec, -1
    s_cmp_eq_u32 s74, 0
    s_cbranch_scc0 {Lpl}
    """)
    a.stamp(20)
    a(f"""
    s_branch {Lend}
    {Lpc}:
    s_sleep {os.environ.get('OSLEEP', '3')}
    s_branch {Lpl}
    """)
    a(f"""{Lfin}:
    v_mov_b32 v{O1+10}, v{O0+10}
    s_lshl_b32 s{sK0}, s{sQt}, 5
    s_add_u32 s{sK0}, s{sK0}, s{sHd}
    v_permlane32_swap_b32 v{O0+10}, v{O1+10}
    s_lshl_b32 s{sK0}, s{sK0}, 7
    s_add_u32 s{sK0}, s{sK0}, {FL_O}
    s_mul_i32 s{sQt}, s{sQt}, {72*1024}
    s_add_u32 s{sQt}, s{sQt}, {OF_OFF}
    s_lshl_b32 s{sT}, s{sHd}, 7
    s_add_u32 s{sK1}, s{sQt}, s{sT}
    s_add_u32 s{sK1}, s{sK1}, 32768
    s_lshl_b32 s{sT}, s{sHd}, 10
    s_add_u32 s{sQt}, s{sQt}, s{sT}
    s_waitcnt lgkmcnt(2)
    """)
    for i in range(8): a(f"v_add_f32 v{O0+i}, v{O0+i}, v{8+i}")
    a("s_waitcnt lgkmcnt(0)")
    for i in range(8): a(f"v_add_f32 v{O1+i}, v{O1+i}, v{16+i}")
    a.c("softmax ran without max subtraction: valid only if the row sums stayed in a safe range, else redo with the true max")
    a(f"""
    L_norm:
    v_rcp_f32 v{t[0]}, v{O0+10}
    v_rcp_f32 v{t[1]}, v{O1+10}
    v_min_f32 v{t[2]}, v{O0+10}, v{O1+10}
    v_max_f32 v{t[3]}, v{O0+10}, v{O1+10}
    v_cmp_le_f32 s[74:75], {fbits(2.0**-40) if False else 's72'}, v{t[2]}
    v_cmp_ge_f32 s[76:77], s73, v{t[3]}
    v_cmp_gt_u32 vcc, 32, v1
    """)
    for X, O in enumerate((O0, O1)):
        for i in range(8): a(f"v_mul_f32 v{O+i}, v{O+i}, v{t[X]}")
    a(f"""
    v_cndmask_b32 v{t[0]}, v{t[1]}, v{t[0]}, vcc
    s_and_b64 s[74:75], s[74:75], s[76:77]
    v_mul_f32 v{O0+8}, v{O0+8}, v{t[0]}
    v_mul_f32 v{O0+9}, v{O0+9}, v{t[0]}
    """)
    for X, O in enumerate((O0, O1)):
        for i in range(4): a(f"v_cvt_pk_bf16_f32 v{8+4*X+i}, v{O+2*i}, v{O+2*i+1}")
    a(f"v_cvt_pk_bf16_f32 v16, v{O0+8}, v{O0+9}")
    a(f"""
    v_add_f32 v{t[2]}, v{O0+8}, v{O0+9}
    """)
    for i in range(0, 8, 2):
        a(f"v_add3_f32 v{t[2]}, v{t[2]}, v{O0+i}, v{O0+i+1}" if False else f"v_add_f32 v{O0+i}, v{O0+i}, v{O0+i+1}\nv_add_f32 v{O1+i}, v{O1+i}, v{O1+i+1}")
    a(f"""
    v_add_f32 v{O0}, v{O0}, v{O0+2}
    v_add_f32 v{O0+4}, v{O0+4}, v{O0+6}
    v_add_f32 v{O1}, v{O1}, v{O1+2}
    v_add_f32 v{O1+4}, v{O1+4}, v{O1+6}
    v_add_f32 v{O0}, v{O0}, v{O0+4}
    v_add_f32 v{O1}, v{O1}, v{O1+4}
    v_add_f32 v{t[2]}, v{t[2]}, v{O0}
    v_add_f32 v{t[2]}, v{t[2]}, v{O1}
    v_and_b32 v{t[3]}, 31, v1
    v_cmp_class_f32 vcc, v{t[2]}, s64
    v_lshrrev_b32 v{t[1]}, 5, v1
    v_mul_u32_u24 v{t[1]}, {36*1024}, v{t[1]}
    s_and_b64 s[74:75], s[74:75], vcc
    s_or_b64 s[74:75], s[74:75], s[62:63]
    v_lshl_add_u32 v{t[3]}, v{t[3]}, 2, v{t[1]}
    s_cmp_eq_u64 s[74:75], -1
    s_cbranch_scc0 L_fallback
    buffer_store_dwordx4 v[8:11], v{vL16}, {WS}, s{sQt} offen{ST}
    s_add_u32 s{sQt}, s{sQt}, {36*1024}
    buffer_store_dwordx4 v[12:15], v{vL16}, {WS}, s{sQt} offen{ST}
    buffer_store_dword v16, v{t[3]}, {WS}, s{sK1} offen{ST}
    """)
    a.stamp(19)
    a(f"v_mov_b32 v{t[0]}, s{S_TAG}\nv_lshlrev_b32 v{t[1]}, 2, v1\ns_mov_b64 exec, 0xffff\ns_waitcnt vmcnt(0)\nbuffer_store_dword v{t[0]}, v{t[1]}, {WS}, s{sK0} offen sc1\ns_mov_b64 exec, -1")
    a.stamp(20)
    a(f"""
    s_lshl_b32 s{sT}, s2, 4
    s_add_u32 s{sT}, s{sT}, s{S_WAVE}
    s_cmp_lg_u32 s{sT}, 12
    s_cbranch_scc1 {Lend}
    s_mov_b32 s{sT2}, {FL_OFF}
    """)
    flag_store(a, t[0], sT2)
    a(f"{Lend}:")
    def cold():
        a("L_fallback:")
        a(f"s_mov_b32 s82, {CNT+12}")
        lds_spin(a, t[0], t[1], 4, sT, saddr=82, off=C_E)
        fallback(a, r, t, vL16, sKV, sQP, sT, sT2)
        a(f"""
        v_cmp_gt_u32 vcc, 32, v1
        s_mov_b64 s[62:63], -1
        s_nop 0
        v_cndmask_b32 v{O0+8}, v{O1+8}, v{O0+8}, vcc
        v_cndmask_b32 v{O0+9}, v{O1+9}, v{O0+9}, vcc
        s_branch L_norm
        """)
    return cold

def fallback(a, r, t, vL16, sKV, sQP, sT, sT2):
    S, NM = r.S[0], r.S[1]
    sI, sP, sLds = 76, 77, 82
    vM, vKxo = r.aK, r.aKx
    a(f"""
    s_lshl_b32 s{sT}, s{sQP}, 11
    s_add_u32 s{sLds}, s{sT}, {REG_B + 3*BLK}
    v_and_b32 v{vKxo}, 31, v1
    v_lshlrev_b32 v{vKxo}, 3, v{vKxo}
    v_mov_b32 v{r.Kx+1}, 0
    """)
    for i in range(4): a(f"v_add_u32 v{r.aV+i}, s{sT}, v{r.aV+i}")
    for X in range(2):
        O = r.O[X]
        Lp, Lt, Lp2, Lnx, Ldn = a.label("fbpass"), a.label("fbtile"), a.label("fbp2"), a.label("fbnx"), a.label("fbdone")
        a(f"v_mov_b32 v{vM}, 0xff800000\ns_mov_b32 s{sP}, 0")
        for i in range(16): a(f"v_mov_b32 v{NM+i}, 0\nv_mov_b32 v{O+i}, 0")
        a(f"""{Lp}:
        s_mov_b32 s{sI}, 0
        {Lt}:
        s_lshr_b32 s{sT}, s{sI}, 3
        s_mul_i32 s{sT}, s{sT}, {BLK}
        s_add_u32 s{sT}, s{sT}, s{sKV}
        s_and_b32 s{sT2}, s{sI}, 7
        s_lshl_b32 s78, s{sT2}, 10
        s_add_u32 s78, s78, s{sT}
        buffer_load_dwordx4 {vr(r.K,4)}, v{vL16}, {WS}, s78 offen{LD}
        s_and_b32 s78, s{sI}, 6
        s_lshl_b32 s78, s78, 7
        s_and_b32 s79, s{sI}, 1
        s_lshl_b32 s79, s79, 2
        s_add_u32 s78, s78, s79
        s_add_u32 s78, s78, s{sT}
        s_add_u32 s78, s78, {KX_OFF}
        buffer_load_dword v{r.Kx}, v{vKxo}, {WS}, s78 offen{LD}
        s_mul_i32 s78, s{sT2}, 1280
        s_add_u32 s78, s78, s{sT}
        s_add_u32 s78, s78, {V_OFF}
        s_mov_b32 m0, s{sLds}
        s_nop 0
        buffer_load_dwordx4 v{vL16}, {WS}, s78 offen{LD} lds
        s_mov_b64 exec, 0xffff
        buffer_load_dwordx4 v{vL16}, {WS}, s78 offen offset:1024{LD} lds
        s_mov_b64 exec, -1
        s_waitcnt vmcnt(0)
        v_mfma_f32_32x32x8_bf16 {vr(S,16)}, {vr(r.Kx,2)}, {vr(r.Qx[X],2)}, {vr(NM,16)}
        v_mfma_f32_32x32x16_bf16 {vr(S,16)}, {vr(r.K,4)}, {vr(r.Qm[X],4)}, {vr(S,16)}
        ds_read_b64_tr_b16 {vr(r.V0,2)}, v{r.aV}
        ds_read_b64_tr_b16 {vr(r.V0+2,2)}, v{r.aV+1}
        ds_read_b64_tr_b16 {vr(r.V1,2)}, v{r.aV+2}
        ds_read_b64_tr_b16 {vr(r.V1+2,2)}, v{r.aV+3}
        s_waitcnt lgkmcnt(0)
        s_nop 15
        s_cmp_lg_u32 s{sP}, 0
        s_cbranch_scc1 {Lp2}
        """)
        for i in range(8): a(f"v_max3_f32 v{vM}, v{S+2*i}, v{S+2*i+1}, v{vM}")
        a(f"s_branch {Lnx}\n{Lp2}:")
        E(a, S, 0, 16)
        a(f"""
        s_nop 1
        v_smfmac_f32_32x32x32_bf16 {vr(O,16)}, {vr(r.V0,4)}, {vr(S,8)}, v{r.idx}
        v_smfmac_f32_32x32x32_bf16 {vr(O,16)}, {vr(r.V1,4)}, {vr(S+8,8)}, v{r.idx}
        {Lnx}:
        s_add_u32 s{sI}, s{sI}, 1
        s_cmp_lt_u32 s{sI}, 64
        s_cbranch_scc1 {Lt}
        s_cmp_lg_u32 s{sP}, 0
        s_cbranch_scc1 {Ldn}
        v_mov_b32 v{t[2]}, v{vM}
        s_nop 1
        v_permlane32_swap_b32 v{vM}, v{t[2]}
        s_nop 1
        v_max_f32 v{vM}, v{vM}, v{t[2]}
        """)
        for i in range(16): a(f"v_sub_f32 v{NM+i}, 0, v{vM}")
        a(f"""
        s_mov_b32 s{sP}, 1
        s_branch {Lp}
        {Ldn}:
        s_nop 15
        """)
```

```python
class Asm:
    def __init__(self):
        self.lines = []
        self.nlabel = 0
    def __call__(self, s):
        for ln in s.split("\n"):
            ln = ln.strip()
            if ln:
                self.lines.append(ln if ln.endswith(":") else "    " + ln)
    def c(self, s):
        self.lines.append("    ; " + s)
    def label(self, base):
        self.nlabel += 1
        return f"L_{base}_{self.nlabel}"
    diag = False
    probe = None
    lite = False
    def stamp(self, n, real=True):
        if self.probe is not None and self.probe == n:
            self("s_memrealtime s[94:95]\ns_waitcnt lgkmcnt(0)")
        if n >= 32 or not self.diag or (self.lite and n not in (29, 31)): return
        self(f"s_mem{'real' if real else ''}time s[98:99]\ns_waitcnt lgkmcnt(0)\nv_writelane_b32 v2, s98, {n}")
    def bar(self, k):
        if self.diag and 1 <= k <= 8:
            self(f"s_memrealtime s[{84+2*((k-1)&3)}:{85+2*((k-1)&3)}]" if (k - 1) // 4 == self.barset else "s_nop 0")
        self("s_barrier")
    barset = int(__import__('os').environ.get('BARSET', '0'))
    def barflush(self):
        if self.diag:
            self("s_waitcnt lgkmcnt(0)")
            for i in range(4): self(f"v_writelane_b32 v2, s{84+2*i}, {9+i}")
    def text(self):
        return "\n".join(self.lines) + "\n"

def vr(b, n=1):
    return f"v{b}" if n == 1 else f"v[{b}:{b+n-1}]"
def sr(b, n=1):
    return f"s{b}" if n == 1 else f"s[{b}:{b+n-1}]"

class Regs:
    def __init__(self, start, limit):
        self.p = start; self.limit = limit; self.hi = start
    def alloc(self, n=1, align=None):
        if align is None:
            align = 1 if n == 1 else 2
        self.p = (self.p + align - 1) // align * align
        b = self.p
        self.p += n
        assert self.p <= self.limit, f"register overflow {self.p} > {self.limit}"
        self.hi = max(self.hi, self.p)
        return b
    def mark(self): return self.p
    def release(self, m): self.p = m
```

```python
import sys
sys.path.insert(0, "gen")
from asmlib import *
from layout import *
import f1, f2
NAME = "gated_mix__ssm_conv_s4d__mha_block__prompt"
HEAD = open("cdna_kernels/" + NAME + ".s.ref").read().split("; Override launch")[0]

def build(diag=False):
    a = Asm(); a.diag = diag; a.lite = len(sys.argv) > 2 and sys.argv[2] == 'lite'
    import os
    probe = os.environ.get("PROBE")
    if probe is not None:
        a.probe = int(probe)
        a("s_memrealtime s[96:97]\ns_waitcnt lgkmcnt(0)\ns_mov_b32 s94, s96")
    name = NAME + "_kernel"
    if diag:
        a("s_memrealtime s[96:97]\ns_memtime s[94:95]\nv_mov_b32 v2, 0")
    f1.phase1(a, name, "L_end")
    if diag:
        a("v_writelane_b32 v2, s96, 0\nv_writelane_b32 v2, s94, 30")
    cold = f2.phase23(a)
    if diag:
        a("s_waitcnt vmcnt(0)")
        a.stamp(29); a.stamp(31, False)
        a(f"""
        s_lshl_b32 s4, s2, 4
        s_add_u32 s4, s4, s3
        s_lshl_b32 s4, s4, 7
        s_add_u32 s4, s4, {DG_OFF}
        v_lshlrev_b32 v3, 2, v1
        s_mov_b64 exec, 0xffffffff
        buffer_store_dword v2, v3, {f1.WS}, s4 offen
        """)
    if probe is not None:
        a("s_waitcnt vmcnt(0)")
        a.stamp(29)
        a("""
        s_sub_u32 s94, s94, s96
        s_lshl_b32 s94, s94, 2
        s_add_u32 s94, s94, 6000
        L_pad:
        s_sleep 4
        s_memrealtime s[98:99]
        s_waitcnt lgkmcnt(0)
        s_sub_u32 s98, s98, s96
        s_cmp_lt_u32 s98, s94
        s_cbranch_scc1 L_pad
        """)
    a("s_endpgm")
    cold()
    a("L_end:\ns_endpgm")
    out = HEAD + "; @launch grid=(256,1,1) block=(1024,1,1) lds=163840\n.amdgcn_target \"amdgcn-amd-amdhsa--gfx950\"\n.text\n"
    out += f".globl {name}\n.p2align 8\n.type {name},@function\n{name}:\n" + a.text()
    out += f""".section .rodata,"a"
.p2align 6
.amdhsa_kernel {name}
  .amdhsa_next_free_vgpr 128
  .amdhsa_next_free_sgpr 100
  .amdhsa_accum_offset 128
  .amdhsa_group_segment_fixed_size 0
  .amdhsa_kernarg_size 112
  .amdhsa_user_sgpr_count 2
  .amdhsa_user_sgpr_kernarg_segment_ptr 1
  .amdhsa_system_sgpr_workgroup_id_x 1
  .amdhsa_float_denorm_mode_32 3
.end_amdhsa_kernel
"""
    return out

if __name__ == "__main__":
    open(sys.argv[1], "w").write(build(diag=len(sys.argv) > 2))
```

```python
from asmlib import *
from layout import *
import math, struct, os
EXP = os.environ.get('EXP', '').split(',')

S_WAVE = 3
P_U, P_LA, P_AI, P_CR, P_CI, P_DT, P_D = 16, 18, 20, 22, 24, 26, 28
P_W, P_WO, P_G, P_OUT, P_DBG, P_WS = 32, 34, 36, 38, 40, 42
R_X, R_W, R_WS, R_A, R_B, R_C, R_D = 44, 48, 52, 56, 60, 64, 68
S_TAG = 30
S_SPIN = 31
S_DV = 70
S_FQ = 67
S_C2 = 68
S_CB = 71
WS = f"s[{R_WS}:{R_WS+3}]"
ST = " sc1"
LD = " sc1"

SLOT = 32768
KG_BASE = 4 * SLOT
KG_STRIDE = 4608
GT = KG_BASE + 6 * KG_STRIDE
CNT = 163328
C_RDY, C_1, C_2, C_Q, C_S, C_O, C_F, C_E, C_P = 0, 16, 32, 48, 64, 72, 76, 80, 96
C_FA = 68
C_TG = 224
C_Y, C_A, C_FREE, C_YR, C_KV = 136, 140, 144, 160, 192
VM_Y = 0
REG_B = 4 * BLK
CP = 4160
CH = 4 * CP + 512 + 4096
UOFF = 4 * CP
CA = 3 * SLOT
QST = REG_B
assert CA + 3 * CH <= CNT and CA + 2 * CH <= GT and QST + 9216 <= CA
NBAR1 = 9
UK = int(os.environ.get('UK', '0'))
LEAD = 3 if 'lead3' in EXP else 2
SPIN_MAX = 1 << 20

def chan(a, d, scs):
    a(f"s_lshl_b32 s{d}, s{scs}, 8\ns_add_u32 s{d}, s{d}, s{S_CB}\ns_cmp_eq_u32 s{scs}, 2\ns_cselect_b32 s{d}, s{S_C2}, s{d}")

def area(a, d, scs):
    a(f"s_mul_i32 s{d}, s{scs}, {CH}\ns_add_u32 s{d}, s{d}, {CA}")

def srd(a, r, p, nbytes):
    a(f"s_mov_b32 s{r}, s{p}\ns_mov_b32 s{r+1}, s{p+1}\ns_mov_b32 s{r+2}, {nbytes}\ns_mov_b32 s{r+3}, 0x20000")

LOG2E = 1.4426950408889634
def f32r(x): return struct.unpack("<f", struct.pack("<f", x))[0]
L_HI = f32r(LOG2E); L_LO = f32r(LOG2E - L_HI)
I2PI = 1.0 / (2 * math.pi)
I_HI = f32r(I2PI); I_LO = f32r(I2PI - I_HI)
LN2 = math.log(2.0)

def lds_inc(a, va, vb, saddr=None, off=0, rtn=None):
    if saddr is None: a(f"v_mov_b32 v{va}, {CNT}")
    else: a(f"v_mov_b32 v{va}, s{saddr}")
    a(f"v_mov_b32 v{vb}, 1\ns_mov_b64 exec, 1")
    if rtn is None:
        a(f"ds_add_u32 v{va}, v{vb} offset:{off}\ns_mov_b64 exec, -1")
    else:
        a(f"ds_add_rtn_u32 v{vb}, v{va}, v{vb} offset:{off}\ns_mov_b64 exec, -1\ns_waitcnt lgkmcnt(0)\nv_readfirstlane_b32 s{rtn}, v{vb}")

def lds_spin(a, va, vb, target, stmp, saddr=None, off=0):
    L, Ld = a.label("lspin"), a.label("lsdone")
    if saddr is None: a(f"v_mov_b32 v{va}, {CNT}")
    else: a(f"v_mov_b32 v{va}, s{saddr}")
    a(f"""
    s_mov_b32 s{S_SPIN}, {SPIN_MAX}
    {L}:
    ds_read_b32 v{vb}, v{va} offset:{off}
    s_waitcnt lgkmcnt(0)
    v_readfirstlane_b32 s{stmp}, v{vb}
    s_cmp_ge_u32 s{stmp}, {target}
    s_cbranch_scc1 {Ld}
    s_sleep {os.environ.get('LSLEEP', '1')}
    s_sub_u32 s{S_SPIN}, s{S_SPIN}, 1
    s_cbranch_scc0 {L}
    {Ld}:
    """)

def flag_line(a, vt, va, soff):
    a(f"""
    v_mov_b32 v{vt}, s{S_TAG}
    v_lshlrev_b32 v{va}, 2, v1
    s_mov_b64 exec, {os.environ.get('FLEX', '0xffff')}
    buffer_store_dword v{vt}, v{va}, {WS}, s{soff} offen sc1
    s_mov_b64 exec, -1
    """)

def flag_store(a, vt, soff):
    a(f"""
    v_mov_b32 v{vt}, s{S_TAG}
    s_mov_b64 exec, 1
    buffer_store_dword v{vt}, off, {WS}, s{soff} sc1
    s_mov_b64 exec, -1
    """)

def poll_issue(a, vd, n, voff, off):
    w = {1: "dword", 4: "dwordx4"}[n]
    a(f"buffer_load_{w} {vr(vd,n)}, v{voff}, {WS}, 0 offen offset:{off & 4095} sc1" if off < 4096 else
      f"s_movk_i32 s{S_SPIN}, {off}\nbuffer_load_{w} {vr(vd,n)}, v{voff}, {WS}, s{S_SPIN} offen sc1")

def poll_wait(a, vd, n, voff, soff_or_imm, issued=False):
    L, Lc, Ld = a.label("poll"), a.label("pollchk"), a.label("polld")
    w = {1: "dword", 4: "dwordx4"}[n]
    a(f"s_mov_b32 s{S_SPIN}, {SPIN_MAX}")
    if issued: a(f"s_branch {Lc}")
    a(f"""
    {L}:
    buffer_load_{w} {vr(vd,n)}, v{voff}, {WS}, 0 offen offset:{soff_or_imm} sc1
    {Lc}:
    s_waitcnt vmcnt(0)
    """)
    if n == 4:
        a(f"""
        v_xor_b32 v{vd}, s{S_TAG}, v{vd}
        v_xor_b32 v{vd+1}, s{S_TAG}, v{vd+1}
        v_xor_b32 v{vd+2}, s{S_TAG}, v{vd+2}
        v_xor_b32 v{vd+3}, s{S_TAG}, v{vd+3}
        v_or3_b32 v{vd}, v{vd}, v{vd+1}, v{vd+2}
        v_or_b32 v{vd}, v{vd}, v{vd+3}
        v_cmp_ne_u32 vcc, 0, v{vd}
        """)
    else:
        a(f"v_cmp_ne_u32 vcc, s{S_TAG}, v{vd}")
    a(f"""
    s_cbranch_vccz {Ld}
    s_sleep {os.environ.get('PSLEEP', '6')}
    s_sub_u32 s{S_SPIN}, s{S_SPIN}, 1
    s_cbranch_scc0 {L}
    {Ld}:
    """)

class Lgkm:
    def __init__(self, a): self.a = a; self.q = []; self.done = 0
    def load(self, txt, regs=()):
        self.a(txt); self.q.append(set(regs))
    def need(self, regs):
        regs = set(regs); last = -1
        for i, s in enumerate(self.q):
            if s & regs: last = i
        if last >= self.done:
            n = min(len(self.q) - 1 - last, 15)
            self.a(f"s_waitcnt lgkmcnt({n})")
            self.done = len(self.q) - n

def rng(b, n): return range(b, b + n)

sRB, sCT, sJ0 = 4, 5, 11

KG_T = [120, 121, 122, 123, 124, 125]
KG_C = 126
sKU, sKC = 65, 66
YB, YS = 32768, 32 * 272

def head(a, name, endlabel, Lkg, Lg):
    Lnp, Lnk = a.label("nopf"), a.label("nokg")
    t = KG_T
    a(f"""
    s_cmp_ge_u32 s2, 256
    s_cbranch_scc1 {endlabel}
    s_load_dwordx16 s[16:31], s[0:1], 0
    s_load_dwordx8 s[32:39], s[0:1], 64
    s_load_dwordx4 s[40:43], s[0:1], 96
    v_lshrrev_b32 v3, 6, v0
    v_and_b32 v1, 63, v0
    v_readfirstlane_b32 s{S_WAVE}, v3
    s_getpc_b64 s[8:9]
    L_pc:
    s_lshr_b32 s7, s2, 3
    s_and_b32 s{S_CB}, s2, 0xc0
    s_and_b32 s6, s7, 7
    s_or_b32 s{S_CB}, s{S_CB}, s6
    s_and_b32 s6, s2, 7
    s_lshl3_add_u32 s{S_CB}, s6, s{S_CB}
    s_lshr_b32 s{sRB}, s6, 1
    s_and_b32 s10, s7, 3
    s_lshl2_add_u32 s{sRB}, s{sRB}, s10
    s_and_b32 s{sCT}, s6, 1
    s_lshr_b32 s12, s7, 2
    s_lshl3_add_u32 s{sCT}, s{sCT}, s12
    s_mul_i32 s{S_C2}, s{sCT}, 43
    s_lshr_b32 s{S_C2}, s{S_C2}, 7
    s_lshl4_add_u32 s{S_C2}, s{S_C2}, s{sRB}
    s_addk_i32 s{S_C2}, 480
    s_bitcmp1_b32 0x9240, s{sCT}
    s_cselect_b32 s{S_C2}, s{S_C2}, 576
    s_cmp_lg_u32 s{S_WAVE}, 0
    s_cbranch_scc1 {Lnp}
    s_and_b32 s6, s7, 3
    s_lshl_b32 s6, s6, 13
    v_lshl_add_u32 v3, v1, 7, s6
    v_min_u32 v3, {endlabel}-L_pc, v3
    global_load_dword v3, v3, s[8:9]
    v_lshlrev_b32 v4, 2, v1
    v_add_u32 v4, {CNT}, v4
    v_mov_b32 v5, 0
    ds_write_b32 v4, v5
    {Lnp}:
    s_movk_i32 s{sKC}, 576
    s_mov_b32 s6, 0xcf3f
    s_bitcmp0_b32 s6, s{S_WAVE}
    s_cbranch_scc1 {Lnk}
    s_and_b32 s{sKU}, s{S_WAVE}, 7
    s_sub_u32 s6, s{sKU}, 2
    s_cmp_ge_u32 s{sKU}, 6
    s_cselect_b32 s{sKU}, s6, s{sKU}
    s_lshr_b32 s{sKC}, s{sKU}, 1
    s_lshl_b32 s{sKC}, s{sKC}, 8
    s_add_u32 s{sKC}, s{sKC}, s{S_CB}
    s_cmp_ge_u32 s{sKU}, 4
    s_cselect_b32 s{sKC}, s{S_C2}, s{sKC}
    s_cmp_ge_u32 s{S_WAVE}, 8
    s_cbranch_scc1 {Lnk}
    s_min_u32 s6, s{sKC}, 575
    s_lshl_b32 s6, s6, 1
    v_mov_b32 v{t[4]}, s6
    s_and_b32 s5, s{sKU}, 1
    s_add_u32 s6, s6, s5
    s_lshl_b32 s6, s6, 7
    v_lshl_add_u32 v{t[0]}, v1, 1, s6
    s_waitcnt lgkmcnt(0)
    global_load_ushort v{t[3]}, v{t[4]}, s[{P_DT}:{P_DT+1}]
    global_load_ushort v{t[1]}, v{t[0]}, s[{P_LA}:{P_LA+1}]
    global_load_ushort v{t[2]}, v{t[0]}, s[{P_AI}:{P_AI+1}]
    global_load_ushort v{KG_C}, v{t[0]}, s[{P_CR}:{P_CR+1}]
    global_load_ushort v{KG_C+1}, v{t[0]}, s[{P_CI}:{P_CI+1}]
    s_branch {Lkg}
    {Lnk}:
    s_lshl1_add_u32 s{sJ0}, s10, s12
    s_sub_u32 s8, s{sJ0}, 9
    s_cmp_ge_u32 s{sJ0}, 9
    s_cselect_b32 s{sJ0}, s8, s{sJ0}
    s_cmp_lt_u32 s{S_WAVE}, 8
    s_cbranch_scc1 L_ld
    s_lshl_b32 s8, s{sCT}, 4
    s_add_u32 s8, s8, s{S_WAVE}
    s_cmp_eq_u32 s8, 13
    s_cbranch_scc1 L_gate_dma
    s_barrier
    s_branch {Lg}
    L_ld:
    """)

def fetch_tag(a, v):
    a(f"""
    s_load_dword s60, s[{P_WS}:{P_WS+1}], {FL_OFF}
    s_lshr_b32 s69, s{S_CB}, 1
    s_lshl_b32 s69, s69, 2
    s_load_dword s61, s[{P_D}:{P_D+1}], s69
    s_add_u32 s69, s69, 512
    s_load_dword s62, s[{P_D}:{P_D+1}], s69
    s_min_u32 s69, s{S_C2}, 575
    s_lshr_b32 s69, s69, 1
    s_lshl_b32 s69, s69, 2
    s_load_dword s63, s[{P_D}:{P_D+1}], s69
    v_mov_b32 v{v+4}, {CNT}
    s_waitcnt lgkmcnt(0)
    s_mul_i32 s60, s60, 0x9e3779b1
    s_add_u32 s60, s60, 0x7f4a7c15
    v_mov_b32 v{v}, s60
    v_mov_b32 v{v+1}, s61
    v_mov_b32 v{v+2}, s62
    v_mov_b32 v{v+3}, s63
    ds_write_b128 v{v+4}, {vr(v,4)} offset:{C_TG}
    s_waitcnt lgkmcnt(0)
    """)

def get_tag(a, va, vb):
    a(f"""
    s_and_b32 s69, s{S_WAVE}, 12
    s_add_u32 s69, s69, {CNT}
    v_mov_b32 v{va}, {CNT}
    v_mov_b32 v{vb}, s69
    ds_read_b32 v{va}, v{va} offset:{C_TG}
    ds_read_b32 v{vb}, v{vb} offset:{C_TG+4}
    s_waitcnt lgkmcnt(0)
    v_readfirstlane_b32 s{S_TAG}, v{va}
    v_readfirstlane_b32 s{S_DV}, v{vb}
    s_nop 1
    """)

def loader(a):
    sJ, sT, sCm, sAs, sLb, sInc, sXr = 6, 7, 8, 9, 10, 14, 15
    V = [4, 5, 6, 7]; t0, t1, t2, t3 = 8, 9, 10, 11
    Lx, Lc, Lsub, Lover, Lw, Lend = [a.label(x) for x in ("ldx", "ldc", "issue", "over", "ldw", "ldend")]
    a(f"""
    v_lshrrev_b32 v{t2}, 4, v1
    s_setprio 3
    s_mov_b32 s{R_X+3}, 0x20000
    s_mov_b32 s{sJ}, s{sJ0}
    s_cmp_eq_u32 s{S_WAVE}, 6
    s_cbranch_scc1 {Lx}
    v_and_b32 v{t0}, 15, v1
    v_lshlrev_b32 v{t1}, 2, v{t2}
    v_xor_b32 v{t0}, v{t0}, v{t1}
    v_lshrrev_b32 v{t1}, 2, v{t0}
    v_and_b32 v{t0}, 3, v{t0}
    v_cmp_eq_u32 vcc, 3, v{t1}
    v_mul_u32_u24 v{t1}, 9, v{t1}
    v_lshrrev_b32 v{t3}, 1, v{t0}
    v_add_u32 v{t1}, v{t1}, v{t3}
    v_lshl_add_u32 v{t1}, v{t0}, 1, v{t1}
    v_min_u32 v{t0}, 2, v{t0}
    v_mad_u32_u24 v{t0}, v{t0}, 9, 4
    v_cndmask_b32 v{t1}, v{t1}, v{t0}, vcc
    v_mul_u32_u24 v{t2}, 432, v{t2}
    s_mul_i32 s{sT}, s{sCT}, 27
    v_add3_u32 v{t1}, v{t1}, v{t2}, s{sT}
    v_lshlrev_b32 v{V[0]}, 3, v{t1}
    s_mov_b32 s72, {0xffffffff ^ (1<<15) ^ (1<<27)}
    s_mov_b32 s73, {0xffffffff ^ (1<<7) ^ (1<<19)}
    s_mov_b32 s{sCm}, {64*3456}
    s_mov_b32 s{sAs}, 55296
    s_movk_i32 s{sLb}, 16384
    s_movk_i32 s{sInc}, 12800
    s_mov_b32 s{sXr}, 0
    s_mov_b32 s{R_X+2}, {W_BYTES}
    s_waitcnt lgkmcnt(0)
    s_mov_b64 s[{R_X}:{R_X+1}], s[{P_W}:{P_W+1}]
    s_branch {Lc}
    {Lx}:
    v_lshrrev_b32 v{t0}, 3, v1
    s_lshl_b32 s{sT}, s{sRB}, 7
    v_add_u32 v{t1}, s{sT}, v{t0}
    v_mul_u32_u24 v{t1}, 1152, v{t1}
    v_and_b32 v{t3}, 7, v1
    v_xor_b32 v{t3}, v{t3}, v{t2}
    v_lshl_add_u32 v{V[0]}, v{t3}, 4, v{t1}
    s_mov_b64 s[72:73], -1
    s_movk_i32 s{sCm}, 128
    s_mov_b32 s{sAs}, 36864
    s_mov_b32 s{sLb}, 0
    s_movk_i32 s{sInc}, 8192
    s_mov_b32 s{sXr}, 64
    s_mov_b32 s{R_X+2}, {X_BYTES}
    s_waitcnt lgkmcnt(0)
    s_mov_b64 s[{R_X}:{R_X+1}], s[{P_U}:{P_U+1}]
    {Lc}:
    v_xor_b32 v{V[1]}, s{sXr}, v{V[0]}
    v_add_u32 v{V[1]}, s{sInc}, v{V[1]}
    s_lshl_b32 s{sInc}, s{sInc}, 1
    v_add_u32 v{V[2]}, s{sInc}, v{V[0]}
    v_add_u32 v{V[3]}, s{sInc}, v{V[1]}
    """)
    def issue(it):
        a(f"s_add_u32 m0, s{sLb}, {((-it) & 3) * SLOT}\ns_call_b64 s[12:13], {Lsub}")
    a.stamp(22)
    issue(0)
    a("s_barrier")
    a.stamp(23)
    for it in range(1, LEAD): issue(it)
    a(f"s_branch {Lover}\n{Lsub}:")
    a(f"s_mul_i32 s{sT}, s{sJ}, s{sCm}\ns_mov_b64 exec, s[72:73]")
    THR = int(os.environ.get('THR', '20')); THR1 = int(os.environ.get('THR1', '0'))
    for g in range(4):
        if THR: a(f"s_waitcnt vmcnt({THR})")
        for b in range(4):
            if THR1: a(f"s_waitcnt vmcnt({THR1})")
            a(f"buffer_load_dwordx4 v{V[b]}, s[{R_X}:{R_X+3}], s{sT} offen offset:{1024*b} lds")
        if g < 3:
            a(f"s_add_u32 m0, m0, 4096\ns_add_u32 s{sT}, s{sT}, s{sAs}")
    a(f"""
    s_mov_b64 exec, -1
    s_add_u32 s{sJ}, s{sJ}, 1
    s_cmp_eq_u32 s{sJ}, 9
    s_cselect_b32 s{sJ}, 0, s{sJ}
    s_setpc_b64 s[12:13]
    {Lover}:
    """)
    a.stamp(1)
    srd(a, R_WS, P_WS, WS_BYTES)
    a(f"""
    v_lshlrev_b32 v{t2}, 4, v1
    v_lshrrev_b32 v16, 4, v1
    v_bfe_u32 v17, v1, 2, 2
    v_lshl_add_u32 v18, v16, 3, v17
    v_bfe_u32 v19, v18, 1, 3
    v_bfe_u32 v17, v1, 1, 1
    v_xor_b32 v19, v19, v17
    v_lshlrev_b32 v19, 4, v19
    v_lshl_add_u32 v19, v18, 7, v19
    v_and_b32 v17, 1, v1
    v_lshl_add_u32 v19, v17, 3, v19
    s_and_b32 s74, s{sCT}, 8
    s_lshl_b32 s75, s74, 3
    v_xor_b32 v20, s75, v19
    v_xor_b32 v21, 32, v20
    v_and_b32 v17, 15, v1
    v_lshlrev_b32 v17, 6, v17
    v_lshl_add_u32 v17, v16, 4, v17
    s_lshl_b32 s74, s74, 10
    s_mul_i32 s75, s{sRB}, {36*4096}
    s_add_u32 s74, s74, s75
    s_add_u32 s74, s74, {UT_OFF}
    v_add_u32 v22, s74, v17
    """)
    def ut_task(it):
        skip = a.label("utskip")
        a(f"s_mov_b32 s78, 0\ns_cmp_lg_u32 s{S_WAVE}, 6\ns_cbranch_scc1 {skip}")
        if it == 1:
            a(f"s_and_b32 s74, s{sCT}, 7\ns_cmp_lg_u32 s74, 7\ns_cbranch_scc1 {skip}")
            a(f"s_add_u32 s74, s{sJ0}, 1\ns_cmp_eq_u32 s74, 9\ns_cselect_b32 s74, 0, s74\ns_lshl_b32 s74, s74, 14\nv_add_u32 v20, {3*SLOT}, v20\nv_add_u32 v21, {3*SLOT}, v21")
        else:
            a(f"s_lshl_b32 s74, s{sJ0}, 14")
        for m in range(2):
            for i in range(4):
                d = 24 + 32 * it + 16 * m + 4 * i
                a(f"ds_read_b64_tr_b16 {vr(d,2)}, v{20+m} offset:{4096*i}")
                a(f"ds_read_b64_tr_b16 {vr(d+2,2)}, v{21-m} offset:{4096*i + 512}")
            a("s_waitcnt lgkmcnt(0)")
            for i in range(4):
                d = 24 + 32 * it + 16 * m + 4 * i
                a(f"buffer_store_dwordx4 {vr(d,4)}, v22, {WS}, s74 offen offset:{1024*i}{ST}")
            if m == 0: a("s_add_u32 s74, s74, 4096\ns_mov_b32 s78, 1")
        a(f"{skip}:")
    assert LEAD == 2
    for k in range(9):
        left = min(LEAD - 1, 8 - k)
        if k in (UK + 1, UK + 2):
            L = a.label("w24")
            a(f"s_waitcnt vmcnt(24)\ns_cmp_eq_u32 s78, 1\ns_cbranch_scc1 {L}\ns_waitcnt vmcnt(16)\n{L}:")
        else:
            a(f"s_waitcnt vmcnt({16 * left})")
        if 'ldst' in EXP: a.stamp([24, 9, 10, 11, 12, 13, 26, 27, 28][k])
        a("s_barrier")
        n = k + LEAD
        if n <= 8: issue(n)
        if k == 7: get_tag(a, t0, t1)
        if k in (UK, UK + 1): ut_task(k - UK)
    a.stamp(2)

def wt_load(a, sF, sT, sD2, s8, s9, s10, t0, t1, t2, WL):
    skip = a.label("nowt")
    srd(a, R_A, P_WO, WO_BYTES)
    a(f"""
    s_cmp_ge_u32 s{sF}, 648
    s_cbranch_scc1 {skip}
    v_lshrrev_b32 v{t0}, 4, v1
    v_lshrrev_b32 v{t1}, 1, v{t0}
    v_mul_u32_u24 v{t1}, 20, v{t1}
    v_and_b32 v{t2}, 1, v{t0}
    v_lshl_add_u32 v{t1}, v{t2}, 3, v{t1}
    v_mad_u32_u24 v{t2}, v{t0}, 36, 8
    v_lshlrev_b32 v{t2}, 1, v{t2}
    s_mul_i32 s{s8}, s{sF}, 3641
    s_lshr_b32 s{s8}, s{s8}, 16
    s_mul_i32 s{s9}, s{s8}, 18
    s_sub_u32 s{s9}, s{sF}, s{s9}
    s_mul_i32 s{sT}, s{s9}, {36*1152}
    s_sub_u32 s{s10}, s{s9}, 16
    s_mul_i32 s{s10}, s{s10}, {288*1152}
    s_movk_i32 s{sD2}, {4*1152}
    s_cmp_ge_u32 s{s9}, 16
    s_cselect_b32 s{sT}, s{s10}, s{sT}
    s_cselect_b32 s{sD2}, {36*1152}, s{sD2}
    s_cselect_b64 vcc, -1, 0
    v_cndmask_b32 v{t1}, v{t1}, v{t2}, vcc
    v_mul_u32_u24 v{t1}, 1152, v{t1}
    v_and_b32 v{t2}, 15, v1
    v_lshl_add_u32 v{t1}, v{t2}, 1, v{t1}
    s_lshl_b32 s{s8}, s{s8}, 5
    s_add_u32 s{sT}, s{sT}, s{s8}
    s_add_u32 s{sD2}, s{sD2}, s{sT}
    """)
    for e in range(8):
        a(f"buffer_load_ushort v{WL+e}, v{t1}, s[{R_A}:{R_A+3}], s{sT if e < 4 else sD2} offen offset:{(e&3)*1152}")
    a(f"{skip}:")

def wt_store(a, sF, WL, vL16):
    skip = a.label("wtskip")
    a(f"s_cmp_ge_u32 s{sF}, 648\ns_cbranch_scc1 {skip}")
    for e in range(4):
        a(f"v_lshl_or_b32 v{WL+e}, v{WL+2*e+1}, 16, v{WL+2*e}")
    a(f"""
    s_lshl_b32 s{sF}, s{sF}, 10
    s_add_u32 s{sF}, s{sF}, {WT_OFF}
    buffer_store_dwordx4 {vr(WL,4)}, v{vL16}, {WS}, s{sF} offen{ST}
    {skip}:
    """)

def gemm_waves(a):
    sT, sU, sTP = 7, 12, 13
    R = Regs(4, 120)
    t0, t1, t2, t3 = [R.alloc() for _ in range(4)]
    vXa = [[R.alloc() for _ in range(4)]]
    vWa = [R.alloc()]
    vFr = R.alloc()
    vL16 = R.alloc()
    NB = 2
    FX = [[R.alloc(4, 4), R.alloc(4, 4)] for _ in range(NB)]
    FW = [R.alloc(4, 4) for _ in range(NB)]
    ACC = [R.alloc(16, 4), R.alloc(16, 4)]
    STG = FX[0][0]
    WL = R.alloc()
    vGa = [R.alloc()]
    Lnw, Lng = a.label("nowt"), a.label("nogate")
    vCn, vOne, CV = R.alloc(), R.alloc(), R.alloc(2, 2)
    vSt = R.alloc()
    a(f"""
    v_mov_b32 v{vCn}, {CNT}
    v_mov_b32 v{vOne}, 1
    s_and_b32 s{sU}, s{S_WAVE}, 3
    s_bfe_u32 s{sTP}, s{S_WAVE}, 0x10002
    v_lshlrev_b32 v{vL16}, 4, v1
    s_waitcnt lgkmcnt(0)
    """)
    a(f"s_lshl_b32 s83, s{sCT}, 4\ns_add_u32 s83, s83, s{sU}")
    Lnt, Lnu = a.label("notouch"), a.label("notlb")
    a(f"""
    s_cmp_lg_u32 s{S_WAVE}, 12
    s_cbranch_scc1 {Lnt}
    s_and_b32 s8, s{sCT}, 7
    s_add_u32 s8, s8, 8
    s_sub_u32 s9, s8, 9
    s_cmp_ge_u32 s8, 9
    s_cselect_b32 s8, s9, s8
    s_lshl_b32 s8, s8, 2
    s_and_b32 s9, s{sRB}, 3
    s_add_u32 s8, s8, s9
    s_mul_i32 s8, s8, {16*3456}
    s_mul_i32 s9, s{sCT}, 216
    s_add_u32 s8, s8, s9
    v_lshrrev_b32 v{t0}, 2, v1
    v_mul_u32_u24 v{t0}, 3456, v{t0}
    v_and_b32 v{t1}, 3, v1
    v_mul_u32_u24 v{t1}, 68, v{t1}
    v_add3_u32 v{t0}, v{t0}, v{t1}, s8
    global_load_dword v{WL}, v{t0}, s[{P_W}:{P_W+1}]
    """)
    fetch_tag(a, FX[0][0])
    a(f"{Lnt}:")
    a(f"""    v_and_b32 v{t0}, 31, v1
    v_lshrrev_b32 v{t1}, 5, v1
    v_bfe_u32 v{t2}, v1, 1, 3
    v_xor_b32 v{t2}, v{t2}, v{t1}
    v_lshlrev_b32 v{t2}, 4, v{t2}
    v_lshl_add_u32 v{t2}, v{t0}, 7, v{t2}
    s_lshl_b32 s{sT}, s{sTP}, 13
    v_add_u32 v{vXa[0][0]}, s{sT}, v{t2}
    """)
    for ks in range(1, 4):
        a(f"v_xor_b32 v{vXa[0][ks]}, {32*ks}, v{vXa[0][0]}")
    a(f"""
    v_bfe_u32 v{t0}, v1, 2, 2
    v_lshl_add_u32 v{t2}, v{t1}, 3, v{t0}
    v_lshlrev_b32 v{t2}, 8, v{t2}
    v_xor_b32 v{t0}, s{sU}, v{t0}
    v_lshl_add_u32 v{t2}, v{t0}, 6, v{t2}
    v_and_b32 v{t0}, 1, v1
    v_lshlrev_b32 v{t0}, 4, v{t0}
    v_and_b32 v{t3}, 2, v1
    v_lshl_add_u32 v{t0}, v{t3}, 2, v{t0}
    v_and_b32 v{t3}, 16, v1
    v_lshl_add_u32 v{t0}, v{t3}, 1, v{t0}
    v_lshlrev_b32 v{vWa[0]}, {28 if 'nooob' in EXP else 14}, v{t3}
    v_and_b32 v{t3}, 3, v1
    v_lshl_add_u32 v{t3}, v{t3}, 4, v{vWa[0]}
    s_cmp_eq_u32 s{sU}, 3
    s_cselect_b64 vcc, -1, 0
    v_cndmask_b32 v{t0}, v{t0}, v{t3}, vcc
    v_add_u32 v{vWa[0]}, v{t2}, v{t0}
    """)
    vVm, vQx, vKx, vVx = R.alloc(), R.alloc(), R.alloc(), R.alloc()
    sTile, sP, sTy, sHd, sO, sSc, sB = 10, 15, 74, 75, 76, 77, 78
    def epi_setup():
        a(f"""
        v_and_b32 v{t0}, 31, v1
        v_lshrrev_b32 v{t3}, 5, v1
        v_lshlrev_b32 v{vVm}, 5, v{t0}
        v_lshl_add_u32 v{vVm}, v{t3}, 4, v{vVm}
        v_and_b32 v{t1}, 4, v1
        v_xor_b32 v{t1}, 4, v{t1}
        v_lshlrev_b32 v{t1}, 5, v{t1}
        v_and_b32 v{t2}, 24, v1
        v_lshl_add_u32 v{t1}, v{t2}, 2, v{t1}
        v_and_b32 v{t2}, 3, v1
        v_lshl_add_u32 v{vVx}, v{t2}, 3, v{t1}
        v_lshlrev_b32 v{vQx}, 2, v{t0}
        v_lshlrev_b32 v{vKx}, 3, v{t0}
        s_lshl_b32 s{sTile}, s{sRB}, 1
        s_add_u32 s{sTile}, s{sTile}, s{sTP}
        s_lshl_b32 s{sTile}, s{sTile}, 1
        """)
        a(f"""
        s_mul_i32 s{sP}, s{sCT}, 3
        s_add_u32 s{sP}, s{sP}, s{sU}
        s_lshr_b32 s{sTy}, s{sP}, 4
        s_and_b32 s{sHd}, s{sP}, 15
        s_lshl_b32 s{sHd}, s{sHd}, 1
        s_cmp_eq_u32 s{sTy}, 0
        s_cselect_b32 s{sSc}, {fbits(QSCALE)}, 1.0
        s_lshr_b32 s79, s{sTile}, 3
        s_mul_i32 s79, s79, {BLK}
        s_mul_i32 s80, s{sHd}, {8*BLK}
        s_add_u32 s79, s79, s80
        s_add_u32 s79, s79, {KV_OFF}
        s_and_b32 s80, s{sTile}, 7
        s_lshl_b32 s81, s80, 10
        s_add_u32 s81, s81, s79
        s_mul_i32 s80, s80, 1280
        s_add_u32 s80, s80, s79
        s_add_u32 s80, s80, {V_OFF}
        s_lshl_b32 s79, s{sHd}, 6
        s_add_u32 s79, s79, s{sTile}
        s_lshl_b32 s79, s79, 10
        s_add_u32 s79, s79, {QF_OFF}
        s_mov_b32 s{sB}, {8*BLK}
        s_cmp_eq_u32 s{sTy}, 0
        s_cselect_b32 s{sO}, s79, s81
        s_cselect_b32 s{sB}, 0x10000, s{sB}
        s_movk_i32 s82, 1024
        s_cmp_eq_u32 s{sTy}, 2
        s_cselect_b32 s{sO}, s80, s{sO}
        s_cselect_b32 s82, 1280, s82
        s_cselect_b64 vcc, -1, 0
        v_cndmask_b32 v{vSt}, v{vL16}, v{vVm}, vcc
        s_lshl_b32 s9, s{sCT}, 4
        s_add_u32 s9, s9, s{sRB}
        s_lshl_b32 s9, s9, 7
        s_add_u32 s9, s9, {FL_Q}
        """)
    sN, sX, sG = 14, 8, 6
    slow = []
    epi_setup()
    XS = [(44, 45, 46), (47, 48, 49), (50, 51, 59)]
    def extras_setup():
        L = a.label("nx")
        a(f"s_cmp_lg_u32 s{sU}, 3\ns_cbranch_scc1 {L}")
        for p in range(3):
            sTp, sA, sBb = XS[p]
            a(f"""
            s_mul_i32 s{sP}, s{sCT}, 3
            s_add_u32 s{sP}, s{sP}, {p}
            s_lshr_b32 s{sTp}, s{sP}, 4
            s_and_b32 s{sHd}, s{sP}, 15
            s_lshl_b32 s{sHd}, s{sHd}, 1
            s_lshr_b32 s79, s{sTile}, 3
            s_mul_i32 s79, s79, {BLK}
            s_mul_i32 s80, s{sHd}, {8*BLK}
            s_add_u32 s79, s79, s80
            s_and_b32 s80, s{sTile}, 6
            s_lshl_b32 s80, s80, 7
            s_add_u32 s80, s80, {KV_OFF+KX_OFF}
            s_and_b32 s81, s{sTile}, 7
            s_mul_i32 s81, s81, 1280
            s_add_u32 s81, s81, {KV_OFF+V_OFF+1024}
            s_cmp_eq_u32 s{sTp}, 1
            s_cselect_b32 s80, s80, s81
            s_add_u32 s79, s79, s80
            s_lshl_b32 s80, s{sHd}, 6
            s_add_u32 s80, s80, s{sTile}
            s_lshl_b32 s80, s80, 7
            s_add_u32 s80, s80, {QX_OFF}
            s_mov_b32 s81, {8*BLK}
            s_cmp_eq_u32 s{sTp}, 0
            s_cselect_b32 s{sA}, s80, s79
            s_cselect_b32 s81, 0x2000, s81
            s_add_u32 s{sBb}, s{sA}, s81
            """)
        a(f"{L}:")
    assert ACC[1] + 16 == FX[0][0] + 56
    srd(a, R_WS, P_WS, WS_BYTES)
    extras_setup()
    kgen_y(a, FX[0][0])
    a.stamp(23)
    a('s_setprio 3')
    for tt in range(2):
        for i in range(16): a(f"v_mov_b32 v{ACC[tt]+i}, 0")
    a(f"""
    s_mov_b32 s{sN}, 1
    s_mov_b32 s{sX}, 0x18000
    s_mov_b32 s72, 0xffff0000
    s_mov_b32 s73, 0xffff0000
    v_lshrrev_b32 v{vFr}, 5, v1
    v_lshlrev_b32 v{vFr}, 4, v{vFr}
    v_add_u32 v{vFr}, {GT}, v{vFr}
    s_lshl_b32 s{sG}, s{sJ0}, 7
    v_add_u32 v{vGa[0]}, s{sG}, v{vFr}
    """)
    Lgate, Lj = a.label("gatel"), a.label("gj")
    def mainloop(gate):
        e = 1 if gate else 0
        Lloop = a.label("gloop")
        def Wrd(b, nk):
            a(f"ds_read_b64_tr_b16 {vr(FW[b],2)}, v{vWa[0]} offset:{16384+nk*4096}")
            a(f"ds_read_b64_tr_b16 {vr(FW[b]+2,2)}, v{vWa[0]} offset:{16384+nk*4096+1024}")
            if gate:
                a(f"s_mov_b64 exec, s[72:73]\nds_read_b128 {vr(FW[b],4)}, v{vGa[0]} offset:{32*nk}\ns_mov_b64 exec, -1")
        def step(ks, n, nk, mid=None):
            b = ks & 1
            a(f"s_waitcnt lgkmcnt({n})")
            a(f"v_mfma_f32_32x32x16_bf16 {vr(ACC[0],16)}, {vr(FW[b],4)}, {vr(FX[b][0],4)}, {vr(ACC[0],16)}")
            if mid: mid()
            if nk is not None: a(f"ds_read_b128 {vr(FX[b][0],4)}, v{vXa[0][nk]}")
            a(f"v_mfma_f32_32x32x16_bf16 {vr(ACC[1],16)}, {vr(FW[b],4)}, {vr(FX[b][1],4)}, {vr(ACC[1],16)}")
            if nk is not None:
                Wrd(b, nk)
                a(f"ds_read_b128 {vr(FX[b][1],4)}, v{vXa[0][nk]} offset:4096")
        a("s_barrier")
        a.stamp(1)
        for ks in range(2):
            Wrd(ks, ks)
            a(f"ds_read_b128 {vr(FX[ks][0],4)}, v{vXa[0][ks]}\nds_read_b128 {vr(FX[ks][1],4)}, v{vXa[0][ks]} offset:4096")
        a(f".p2align 3\n{Lloop}:")
        step(0, 4 + e, 2, mid=lambda: a(f"s_add_u32 s{sN}, s{sN}, 1\ns_add_u32 s{sG}, s{sG}, 128\ns_cmp_eq_u32 s{sG}, 1152\ns_cselect_b32 s{sG}, 0, s{sG}" if gate else f"s_add_u32 s{sN}, s{sN}, 1"))
        step(1, 4 + e, 3, mid=lambda: a(f"v_xor_b32 v{vXa[0][0]}, s{sX}, v{vXa[0][0]}\nv_xor_b32 v{vXa[0][1]}, s{sX}, v{vXa[0][1]}"))
        step(2, 4 + e, 0, mid=lambda: a(f"v_xor_b32 v{vWa[0]}, s{sX}, v{vWa[0]}\n" + (f"v_add_u32 v{vGa[0]}, s{sG}, v{vFr}\n" if gate else "") + "s_barrier"))
        step(3, 4 + e, 1, mid=lambda: a(f"v_xor_b32 v{vXa[0][2]}, s{sX}, v{vXa[0][2]}\nv_xor_b32 v{vXa[0][3]}, s{sX}, v{vXa[0][3]}"))
        a(f"s_xor_b32 s{sX}, s{sX}, 0x10000\ns_cmp_lt_u32 s{sN}, 9\ns_cbranch_scc1 {Lloop}")
        if 'early' in EXP:
            a(f"s_mov_b64 exec, 1\nds_add_u32 v{vCn}, v{vOne} offset:{C_FREE}\ns_mov_b64 exec, -1")
        step(0, 4 + e, 2); step(1, 4 + e, 3); step(2, 4 + e, None); step(3, 0, None)
    a(f"s_cmp_eq_u32 s83, 3\ns_cbranch_scc1 {Lgate}")
    mainloop(False)
    a(f"{Lj}:")
    a.stamp(3)
    def cold_gate():
        a(f"{Lgate}:")
        mainloop(True)
        a(f"s_branch {Lj}")
    Lx, Ldone, Lns = a.label("extras"), a.label("gdone"), a.label("noscale")
    a(f"s_setprio 3\ns_nop 6\ns_cmp_eq_u32 s{sU}, 3\ns_cbranch_scc1 {Lx}\ns_cmp_lg_u32 s{sTy}, 0\ns_cbranch_scc1 {Lns}")
    for tt in range(2):
        for i in range(16):
            a(f"v_mul_f32 v{ACC[tt]+i}, s{sSc}, v{ACC[tt]+i}")
    a(f"{Lns}:")
    for tt in range(2):
        for p in range(2):
            dst = FX[tt][p]
            for i in range(4):
                a(f"v_cvt_pk_bf16_f32 v{dst+i}, v{ACC[tt]+8*p+2*i}, v{ACC[tt]+8*p+2*i+1}")
            if p == 0:
                a(f"buffer_store_dwordx4 {vr(dst,4)}, v{vSt}, {WS}, s{sO} offen{ST}")
            else:
                a(f"s_add_u32 s79, s{sO}, s{sB}")
                a(f"buffer_store_dwordx4 {vr(dst,4)}, v{vSt}, {WS}, s79 offen{ST}")
        if tt == 0:
            a(f"s_add_u32 s{sO}, s{sO}, s82")
    a(f"s_branch {Ldone}")
    cold_gate()
    a(f"{Lx}:")
    a(f"v_mov_b32 v{STG+1}, 0x3f80\nv_mov_b32 v{STG+3}, 0x3f80")
    for p in range(3):
        half = p & 1
        rb = 4 * (p >> 1)
        sTp, sA, sBb = XS[p]
        LK, LV, LN = a.label("xk"), a.label("xv"), a.label("xn")
        a(f"""
        s_mov_b32 exec_lo, {0 if half else -1}
        s_mov_b32 exec_hi, {-1 if half else 0}
        s_cmp_eq_u32 s{sTp}, 1
        s_cbranch_scc1 {LK}
        s_cmp_eq_u32 s{sTp}, 2
        s_cbranch_scc1 {LV}
        """)
        for tt in range(2):
            for i in range(4):
                a(f"v_mul_f32 v{ACC[tt]+rb+i}, {fbits(QSCALE)}, v{ACC[tt]+rb+i}")
            a(f"v_cvt_pk_bf16_f32 v{STG+4+2*tt}, v{ACC[tt]+rb}, v{ACC[tt]+rb+1}")
            a(f"v_cvt_pk_bf16_f32 v{STG+5+2*tt}, v{ACC[tt]+rb+2}, v{ACC[tt]+rb+3}")
            a(f"buffer_store_dword v{STG+4+2*tt}, v{vQx}, {WS}, s{sA} offen offset:{128*tt}{ST}")
            a(f"buffer_store_dword v{STG+5+2*tt}, v{vQx}, {WS}, s{sBb} offen offset:{128*tt}{ST}")
        a(f"""
        s_branch {LN}
        {LK}:
        v_cvt_pk_bf16_f32 v{STG+4}, v{ACC[0]+rb}, v{ACC[0]+rb+1}
        v_cvt_pk_bf16_f32 v{STG+5}, v{ACC[1]+rb}, v{ACC[1]+rb+1}
        v_cvt_pk_bf16_f32 v{STG+6}, v{ACC[0]+rb+2}, v{ACC[0]+rb+3}
        v_cvt_pk_bf16_f32 v{STG+7}, v{ACC[1]+rb+2}, v{ACC[1]+rb+3}
        buffer_store_dwordx2 {vr(STG+4,2)}, v{vKx}, {WS}, s{sA} offen{ST}
        buffer_store_dwordx2 {vr(STG+6,2)}, v{vKx}, {WS}, s{sBb} offen{ST}
        s_branch {LN}
        {LV}:
        """)
        for tt in range(2):
            a(f"v_cvt_pk_bf16_f32 v{STG}, v{ACC[tt]+rb}, v{ACC[tt]+rb+1}")
            a(f"v_cvt_pk_bf16_f32 v{STG+2}, v{ACC[tt]+rb+2}, v{ACC[tt]+rb+3}")
            a(f"buffer_store_dwordx2 {vr(STG,2)}, v{vVx}, {WS}, s{sA} offen offset:{1280*tt}{ST}")
            a(f"buffer_store_dwordx2 {vr(STG+2,2)}, v{vVx}, {WS}, s{sBb} offen offset:{1280*tt}{ST}")
        a(f"{LN}:")
    Lnf = a.label("nofq")
    a(f"""
    s_cmp_lg_u32 s{sCT}, 0
    s_cbranch_scc1 {Ldone}
    s_lshl_b32 s79, s{sTile}, 7
    s_add_u32 s79, s79, {G_OFF}
    buffer_store_dword v{ACC[0]+8}, v{vQx}, {WS}, s79 offen{ST}
    buffer_store_dword v{ACC[1]+8}, v{vQx}, {WS}, s79 offen offset:128{ST}
    {Ldone}:
    s_mov_b64 exec, -1
    """)
    if 'early' not in EXP:
        a(f"s_mov_b64 exec, 1\nds_add_u32 v{vCn}, v{vOne} offset:{C_FREE}\ns_mov_b64 exec, -1")
    a.stamp(14)
    get_tag(a, t0, t1)
    a(f"""
    s_mov_b32 s{S_FQ}, s9
    s_cmp_ge_u32 s{S_WAVE}, 12
    s_cselect_b32 s8, 576, s{S_C2}
    s_cmp_lt_u32 s8, 576
    s_cbranch_scc1 {Lnf}
    """)
    publish_q(a, t0, t1, 8)
    a(f"{Lnf}:")
    a.stamp(4)

def publish_q(a, t0, t1, st):
    L = a.label("nofq")
    a("s_waitcnt vmcnt(0)")
    lds_inc(a, t0, t1, off=C_S, rtn=st)
    a(f"s_cmp_lg_u32 s{st}, 7\ns_cbranch_scc1 {L}")
    flag_line(a, t0, t1, S_FQ)
    a(f"{L}:")

class Seg:
    def __init__(self): self.items = []
    def __call__(self, s):
        for ln in s.split("\n"):
            ln = ln.strip()
            if not ln: continue
            op = ln.split()[0]
            if ln.startswith(";"): c = 0
            elif op in ("v_exp_f32", "v_sin_f32", "v_cos_f32", "v_rcp_f32"): c = 8
            elif op.startswith("v_mfma"): c = 40
            elif op.startswith("ds_"): c = 12
            elif op == "s_waitcnt": c = 60
            else: c = 4
            self.items.append((ln, c))
    nl = 0
    def label(self, base):
        Seg.nl += 1
        return f"L_sg{base}_{Seg.nl}"
    def must_barrier(self): self.items.append(("@BAR", 0))
    def nobar(self, on): self.items.append(("@NOBAR" if on else "@OKBAR", 0))
    def emit(self, a, nbar, after=lambda k: None):
        must = sum(1 for l, _ in self.items if l == "@BAR")
        total = sum(c for _, c in self.items)
        first = float(os.environ.get('KGFIRST', '0.9')) * total
        first = min(first, sum(c for _, c in self.items[:[l for l, _ in self.items].index('@BAR')]) + 1)
        per = (total - first) / (nbar - (1 if first else 0))
        used = 0; acc = per - first if first else 0; ok = True; must_left = must
        for ln, c in self.items:
            if ln == "@BAR":
                a("s_barrier"); after(used); used += 1; must_left -= 1; acc = 0; continue
            if ln.startswith("@STAMP"): a.stamp(int(ln[6:])); continue
            if ln == "@NOBAR": ok = False; continue
            if ln == "@OKBAR": ok = True; continue
            if ok and acc >= per and used + must_left < nbar - 1:
                a("s_barrier"); after(used); used += 1; acc = 0
            a(ln); acc += c
        while used < nbar:
            a("s_barrier"); after(used); used += 1
        return total

def ilv(*seqs):
    seqs = [[l.strip() for l in x.strip().split("\n") if l.strip()] for x in seqs]
    out = []
    for i in range(max(len(x) for x in seqs)):
        for x in seqs:
            if i < len(x): out.append(x[i])
    return "\n".join(out)

class KG:
    def __init__(self, g, sK, tmp, vA2, vBh, vBl):
        self.g = g; self.t = KG_T; self.tmp = tmp
        self.sL, self.sLlo, self.sI, self.sIlo, self.sLn2 = range(sK, sK + 5)
        self.vA2, self.vBh, self.vBl = vA2, vBh, vBl
    def consts(self):
        return f"""
        s_mov_b32 s{self.sL}, {fbits(L_HI)}
        s_mov_b32 s{self.sLlo}, {fbits(L_LO)}
        s_mov_b32 s{self.sI}, {fbits(I_HI)}
        s_mov_b32 s{self.sIlo}, {fbits(I_LO)}
        s_mov_b32 s{self.sLn2}, {fbits(LN2)}
        """
    def expbf(self, x, t1, t2):
        return f"""
        v_lshlrev_b32 v{x}, 16, v{x}
        v_mul_f32 v{t1}, s{self.sL}, v{x}
        v_fma_f32 v{t2}, v{x}, s{self.sL}, -v{t1}
        v_exp_f32 v{t1}, v{t1}
        v_fma_f32 v{t2}, v{x}, s{self.sLlo}, v{t2}
        v_mul_f32 v{t2}, s{self.sLn2}, v{t2}
        v_fma_f32 v{x}, v{t1}, v{t2}, v{t1}
        v_cvt_pk_bf16_f32 v{x}, v{x}, v{x}
        v_and_b32 v{x}, 0xffff0000, v{x}
        """
    def prep(self):
        t, m = self.t, self.tmp
        return ilv(self.expbf(t[3], m[0], m[1]), self.expbf(t[1], m[2], m[3])) + f"""
        v_lshlrev_b32 v{t[2]}, 16, v{t[2]}
        v_mul_f32 v{t[1]}, v{t[1]}, v{t[3]}
        v_mul_f32 v{t[2]}, v{t[2]}, v{t[3]}
        v_mul_f32 v{self.vA2}, s{self.sL}, -v{t[1]}
        v_mul_f32 v{self.vBh}, s{self.sI}, v{t[2]}
        v_fma_f32 v{self.vBl}, v{t[2]}, s{self.sI}, -v{self.vBh}
        v_fma_f32 v{self.vBl}, v{t[2]}, s{self.sIlo}, v{self.vBl}
        """
    def cexp(self, d, p, k):
        fp = fbits(float(p)); r, e = self.tmp[2*k], self.tmp[2*k+1]
        return f"""
        v_mul_f32 v{r}, {fp}, v{self.vBh}
        v_mul_f32 v{e}, {fp}, v{self.vA2}
        v_fract_f32 v{r}, v{r}
        v_exp_f32 v{e}, v{e}
        v_fmac_f32 v{r}, {fp}, v{self.vBl}
        v_cos_f32 v{d}, v{r}
        v_sin_f32 v{d+1}, v{r}
        v_mul_f32 v{d}, v{d}, v{e}
        v_mul_f32 v{d+1}, v{d+1}, v{e}
        """
    def cmul(self, d, x, y):
        return f"""
        v_mul_f32 v{d}, v{x+1}, v{y+1}
        v_mul_f32 v{d+1}, v{x+1}, v{y}
        v_fma_f32 v{d}, v{x}, v{y}, -v{d}
        v_fmac_f32 v{d+1}, v{x}, v{y+1}
        """
    def cvt(self, d, x, conj):
        return f"v_cvt_pk_f16_f32 v{d}, v{x}, {'-' if conj else ''}v{x+1}"
    def rows(self, specs, vWr):
        g = self.g
        for i in range(0, len(specs), 4):
            grp = specs[i:i+4]; tt = self.tmp[(i & 4):(i & 4) + 4]
            for k, (x, y) in enumerate(grp):
                if y is not None: g(f"v_pk_mul_f16 v{tt[k]}, v{x}, v{y} op_sel:[0,0] op_sel_hi:[0,1]")
            for k, (x, y) in enumerate(grp):
                if y is not None: g(f"v_pk_fma_f16 v{tt[k]}, v{x}, v{y}, v{tt[k]} op_sel:[1,1,0] op_sel_hi:[1,0,1] neg_lo:[1,0,0]")
            src = [tt[k] if y is not None else x for k, (x, y) in enumerate(grp)]
            for k in range(0, len(grp), 2):
                if k + 1 < len(grp): g(f"ds_write2_b32 v{vWr[i>>2]}, v{src[k]}, v{src[k+1]} offset0:{68*k} offset1:{68*k+68}")
                else: g(f"ds_write_b32 v{vWr[i>>2]}, v{src[k]} offset:{272*k}")

def kgen_y(a, base):
    R = Regs(base, base + 56)
    tmp = [R.alloc() for _ in range(8)]
    vWr = [R.alloc() for _ in range(8)]
    vA2, vBh, vBl = R.alloc(), R.alloc(), R.alloc()
    H = [R.alloc() for _ in range(11)]
    A1, A2, A3, B1, B2, B3, B4, B5, B6, B7 = [R.alloc(2) for _ in range(10)]
    k = KG(a, 60, tmp, vA2, vBh, vBl)
    L = a.label("noy")
    a(f"s_cmp_ge_u32 s{sKC}, {0 if 'nokg' in EXP else 576}\ns_cbranch_scc1 {L}")
    a(f"s_mul_i32 s67, s{sKU}, {YS}\ns_add_u32 s67, s67, {YB}\nv_lshl_add_u32 v{vWr[0]}, v1, 2, s67")
    for i in range(1, 8): a(f"v_add_u32 v{vWr[i]}, {i*4*272}, v{vWr[0]}")
    hA = H[0:4]; hB = [None] + H[4:11]
    a(f"v_mov_b32 v{hA[0]}, 0x3c00\ns_lshl_b32 s67, s{sKU}, 2\ns_add_u32 s67, s67, {CNT}")
    lds_spin(a, tmp[0], tmp[1], 1, 64, saddr=67, off=C_YR)
    a(f"ds_read_b32 v{vA2}, v{vWr[0]}\nds_read_b32 v{vBh}, v{vWr[0]} offset:272\nds_read_b32 v{vBl}, v{vWr[0]} offset:544\ns_waitcnt lgkmcnt(0)")
    a(ilv(k.cexp(A1, 8, 0), k.cexp(B2, 64, 1)))
    a(ilv(k.cmul(A2, A1, A1), k.cmul(B4, B2, B2)))
    a(ilv(k.cmul(B1, A2, A2), k.cmul(A3, A1, A2), k.cmul(B6, B4, B2)))
    a(ilv(k.cmul(B3, B1, B2), k.cmul(B5, B4, B1), k.cmul(B7, B6, B1)))
    for d, x in zip(hA[1:] + hB[1:], (A1, A2, A3, B1, B2, B3, B4, B5, B6, B7)): a(k.cvt(d, x, True))
    def yspec(j):
        x, y = j & 3, j >> 2
        if y == 0: return (hA[x], None)
        if x == 0: return (hB[y], None)
        return (hA[x], hB[y])
    k.rows([yspec(j) for j in range(32)], vWr)
    lds_inc(a, tmp[0], tmp[1], saddr=67, off=C_YR)
    a(f"{L}:")

def kgen_waves(a):
    sMH, sBase, sT, sE, sCS = 5, 6, 7, 8, 14
    R = Regs(4, 120)
    t = KG_T; C = KG_C
    vWr = [R.alloc() for _ in range(4)]
    vRd, vRy = R.alloc(), R.alloc()
    vA2, vBh, vBl, vF = R.alloc(), R.alloc(), R.alloc(), R.alloc()
    vInv, vInvM, vBaseM, vPw = R.alloc(), R.alloc(), R.alloc(), R.alloc()
    FY = R.alloc(32, 4); FXr = R.alloc(32, 4)
    pool = R.alloc(36, 4)
    tmp = [FY + i for i in range(8)]
    g = Seg()
    k = KG(g, 9, tmp, vA2, vBh, vBl)
    Lskip, Lend = a.label("kgskip"), a.label("kgend")
    a(f"""
    s_cmp_ge_u32 s{sKC}, {0 if 'nokg' in EXP else 576}
    s_cbranch_scc1 {Lskip}
    s_lshr_b32 s{sCS}, s{S_WAVE}, 1
    s_mul_i32 s{sBase}, s{S_WAVE}, {KG_STRIDE}
    s_add_u32 s{sBase}, s{sBase}, {KG_BASE}
    """ + k.consts() + f"""
    v_lshl_add_u32 v{vWr[0]}, v1, 2, s{sBase}
    v_add_u32 v{vWr[1]}, {4*272}, v{vWr[0]}
    v_add_u32 v{vWr[2]}, {8*272}, v{vWr[0]}
    v_add_u32 v{vWr[3]}, {12*272}, v{vWr[0]}
    v_lshrrev_b32 v{t[5]}, 5, v1
    v_lshlrev_b32 v{t[5]}, 4, v{t[5]}
    v_and_b32 v{t[4]}, 15, v1
    v_mul_u32_u24 v{t[4]}, 272, v{t[4]}
    v_add3_u32 v{vRd}, v{t[4]}, v{t[5]}, s{sBase}
    v_and_b32 v{t[4]}, 31, v1
    v_mul_u32_u24 v{t[4]}, 272, v{t[4]}
    s_mul_i32 s{sT}, s{S_WAVE}, {YS}
    s_add_u32 s{sT}, s{sT}, {YB}
    v_add3_u32 v{vRy}, v{t[4]}, v{t[5]}, s{sT}
    v_lshl_add_u32 v{vPw}, v1, 2, s{sT}
    s_lshl_b32 s15, s{S_WAVE}, 2
    s_add_u32 s15, s15, {CNT}
    s_barrier
    """)
    g("s_waitcnt vmcnt(0)")
    g.items.append(("@STAMP22", 0))
    P = [pool + 2 * i for i in range(12)]
    H = [pool + 24 + i for i in range(12)]
    E1, E2, E4, E256, E512, E1024, X2, X4, X6, E768, X1024 = P[0:11]
    hC, h2, h4, h6, hE1, h256, h512, h768, h1024, hX = H[0:10]
    dpp = [f"v_max_u32_dpp v{t[4]}, v{t[4]}, v{t[4]} {m}" for m in ("row_shr:1", "row_shr:2", "row_shr:4", "row_shr:8", "row_bcast:15 row_mask:0xa", "row_bcast:31 row_mask:0xc")]
    g(f"v_lshlrev_b32 v{C}, 16, v{C}\nv_lshlrev_b32 v{C+1}, 16, v{C+1}\nv_max_f32 v{t[4]}, |v{C}|, |v{C+1}|")
    pl = [l.strip() for l in k.prep().split("\n") if l.strip()]
    for i, l in enumerate(pl):
        g(l)
        if i % 3 == 2 and dpp: g(dpp.pop(0))
    assert not dpp
    g(f"ds_write2_b32 v{vPw}, v{vA2}, v{vBh} offset0:0 offset1:68\nds_write_b32 v{vPw}, v{vBl} offset:544")
    lds_inc(g, tmp[6], tmp[7], saddr=15, off=C_YR)
    g(f"v_readlane_b32 s{sE}, v{t[4]}, 63")
    g(ilv(k.cexp(E1, 1, 0), k.cexp(E256, 256, 1), k.cexp(E1024, 1024, 2)))
    g(f"""
    s_lshr_b32 s{sE}, s{sE}, 23
    s_max_u32 s{sE}, s{sE}, 1
    s_min_u32 s{sE}, s{sE}, 252
    s_sub_u32 s{sT}, 253, s{sE}
    s_lshl_b32 s{sT}, s{sT}, 23
    v_mul_f32 v{C}, s{sT}, v{C}
    v_mul_f32 v{C+1}, s{sT}, v{C+1}
    s_add_u32 s{sE}, s{sE}, 2
    s_lshl_b32 s{sE}, s{sE}, 23
    v_mul_f32 v{vF}, s{sE}, v{t[3]}
    """)
    g(ilv(k.cmul(E2, E1, E1), k.cmul(E512, E256, E256), k.cmul(X1024, C, E1024)))
    g(ilv(k.cmul(E4, E2, E2), k.cmul(X2, C, E2), k.cmul(E768, E256, E512)))
    g(ilv(k.cmul(X4, C, E4), k.cmul(X6, X2, E4)))
    for d, x in ((hC, C), (hE1, E1), (h2, X2), (h256, E256), (h512, E512), (h768, E768), (h1024, E1024), (hX, X1024), (h4, X4), (h6, X6)): g(k.cvt(d, x, False))
    def fragread(dst, upper):
        m = 0xffff0000 if upper else 0x0000ffff
        g(f"s_mov_b32 exec_lo, {m}\ns_mov_b32 exec_hi, {m}")
        for ks in range(8):
            g(f"ds_read_b128 {vr(dst+4*ks,4)}, v{vRd} offset:{32*ks}")
        g("s_mov_b64 exec, -1")
    k.rows([(hX, None), (hX, h256), (hX, h512), (hX, h768), (hX, h1024)], vWr)
    fragread(FXr, True)
    k.rows([(hC, None), (hC, hE1), (h2, None), (h2, hE1), (h4, None), (h4, hE1), (h6, None), (h6, hE1),
          (hC, h256), (h2, h256), (h4, h256), (h6, h256), (hC, h512), (h4, h512), (hC, h768), (h4, h768)], vWr)
    fragread(FXr, False)
    ACC = pool
    g(f"""
    v_and_b32 v{t[0]}, 31, v1
    v_lshrrev_b32 v{t[1]}, 5, v1
    v_lshlrev_b32 v{t[2]}, 3, v{t[0]}
    v_lshl_add_u32 v{t[2]}, v{t[1]}, 2, v{t[2]}
    v_cmp_eq_u32 vcc, 0, v{t[1]}
    v_lshlrev_b32 v{t[3]}, 2, v{t[0]}
    v_lshlrev_b32 v{t[4]}, 1, v{t[0]}
    v_add_u32 v{t[4]}, 128, v{t[4]}
    v_cndmask_b32 v{t[3]}, v{t[4]}, v{t[3]}, vcc
    v_lshl_add_u32 v{t[5]}, v{t[1]}, 7, v{t[0]}
    v_and_b32 v{t[0]}, 0xff0, v{t[2]}
    v_lshl_add_u32 v{t[2]}, v{t[2]}, 2, v{t[0]}
    v_add_u32 v{t[2]}, s{sBase}, v{t[2]}
    v_and_b32 v{t[0]}, 0xff0, v{t[3]}
    v_lshl_add_u32 v{t[3]}, v{t[3]}, 2, v{t[0]}
    v_add_u32 v{t[3]}, s{sBase}, v{t[3]}
    v_mul_u32_u24 v{t[4]}, 312, v{t[1]}
    v_add_u32 v{t[4]}, v{t[4]}, v{t[3]}
    v_and_b32 v{t[0]}, 0xff0, v{t[5]}
    v_lshl_add_u32 v{t[5]}, v{t[5]}, 2, v{t[0]}
    v_add_u32 v{t[5]}, s{sBase}, v{t[5]}
    """)
    g.items.append(("@STAMP23", 0))
    lds_spin(g, tmp[0], tmp[1], 2, sE, saddr=15, off=C_YR)
    for ks in range(8):
        g(f"ds_read_b128 {vr(FY+4*ks,4)}, v{vRy} offset:{32*ks}")
    for ks in range(8):
        c = "0" if ks == 0 else vr(ACC, 16)
        g(f"s_waitcnt lgkmcnt({7-ks})")
        g(f"v_mfma_f32_32x32x16_f16 {vr(ACC,16)}, {vr(FXr+4*ks,4)}, {vr(FY+4*ks,4)}, {c}")
    g(f"""
    s_mul_i32 s{sT}, s{sMH}, {KG_STRIDE}
    s_sub_u32 s{sT}, s{sBase}, s{sT}
    s_sub_u32 s{sT}, s{sT}, {0x2c000000}
    """)
    NV = 22
    AD = pool
    VAL = [FY + 2 * i for i in range(NV)]
    assert FXr == FY + 32
    g("s_nop 12")
    for i in range(12):
        g(f"v_mul_f32 v{ACC+i}, v{vF}, v{ACC+i}")
    g(f"""
    ds_write_b128 v{t[2]}, {vr(ACC,4)} offset:80
    ds_write_b64 v{t[3]}, {vr(ACC+4,2)} offset:{80+1280}
    ds_write_b64 v{t[4]}, {vr(ACC+6,2)} offset:{80+1280+8}
    """)
    for r in range(4):
        g(f"ds_write_b32 v{t[5]}, v{ACC+8+r} offset:{80+2560+160*r}")
    g("s_waitcnt lgkmcnt(0)")
    g.items.append(("@STAMP24", 0))
    g.must_barrier()
    for run in range(2):
        g(f"""
        s_lshl_b32 s{sE}, s{sMH}, 7
        s_sub_u32 s{sE}, {255 - 64*run}, s{sE}
        v_sub_u32 v{t[4]}, s{sE}, v1
        v_lshlrev_b32 v{t[4]}, 3, v{t[4]}
        v_max_u32 v{t[5]}, 128, v{t[4]}
        v_cvt_f32_u32 v{t[5]}, v{t[5]}
        v_and_b32 v{vInv}, 0x7f800000, v{t[5]}
        v_sub_u32 v{vInv}, {261<<23 & 0xffffffff}, v{vInv}
        v_lshrrev_b32 v{t[5]}, 16, v{t[5]}
        v_subrev_u32 v{t[5]}, {0x4380-256}, v{t[5]}
        v_min_u32 v{t[5]}, v{t[5]}, v{t[4]}
        v_add_u32 v{vBaseM}, 0x4b000010, v{t[5]}
        v_max_u32 v{t[5]}, 129, v{t[4]}
        v_subrev_u32 v{t[5]}, 1, v{t[5]}
        v_cvt_f32_u32 v{t[5]}, v{t[5]}
        v_and_b32 v{vInvM}, 0x7f800000, v{t[5]}
        v_sub_u32 v{vInvM}, {261<<23 & 0xffffffff}, v{vInvM}
        """)
        if run == 1: g(f"v_cmp_ne_u32 s[74:75], 0, v{t[4]}")
        for j in range(11):
            i = 11 * run + j
            r = 7 - j
            inv = vInv if r >= 0 else vInvM
            g(f"v_fmamk_f32 v{AD+i}, v{inv}, {fbits(float(r))}, v{vBaseM}")
            g(f"v_and_b32 v{t[i&1]}, 0xff0, v{AD+i}")
            g(f"v_lshl_add_u32 v{AD+i}, v{AD+i}, 2, s{sT}")
            g(f"v_add_u32 v{AD+i}, v{AD+i}, v{t[i&1]}")
            g(f"ds_read2st64_b32 {vr(VAL[i],2)}, v{AD+i} offset0:0 offset1:{KG_STRIDE//256}")
    g.nobar(True); area(g, sBase, sCS); g.nobar(False)
    g(f"""
    s_lshr_b32 s{sT}, s{sKC}, 6
    v_and_b32 v{vA2}, 3, v1
    v_lshlrev_b32 v{vA2}, 1, v{vA2}
    v_sub_u32 v{vA2}, s{sT}, v{vA2}
    v_add_u32 v{vBh}, 9, v{vA2}
    v_min3_u32 v{vA2}, v{vA2}, v{vBh}, 7
    s_and_b32 s{sT}, s{sKC}, 32
    s_lshl_b32 s{sT}, s{sT}, 2
    v_lshl_add_u32 v{vA2}, v{vA2}, 4, s{sT}
    v_add_lshl_u32 v{vA2}, v{vA2}, v1, 7
    v_add_u32 v{vA2}, {FL_U}, v{vA2}
    v_lshrrev_b32 v{vBl}, 4, v1
    v_mul_u32_u24 v{vBl}, {36*4096}, v{vBl}
    v_and_b32 v{vF}, 12, v1
    v_lshl_add_u32 v{vBl}, v{vF}, 8, v{vBl}
    v_and_b32 v{vF}, 3, v1
    v_lshl_add_u32 v{vBl}, v{vF}, 4, v{vBl}
    s_and_b32 s10, s{sKC}, 15
    s_lshl_b32 s10, s10, 6
    s_lshr_b32 s9, s{sKC}, 4
    s_lshl_b32 s9, s9, 12
    s_add_u32 s9, s9, s10
    s_add_u32 s9, s9, {UT_OFF}
    v_lshl_add_u32 v{vF}, v1, 3, s{sBase}
    v_mov_b32 v{t[3]}, 0
    s_lshl_b32 s{sE}, s{sMH}, 11
    s_add_u32 s{sE}, s{sE}, s{sBase}
    v_lshl_add_u32 v{t[0]}, v1, 4, s{sE}
    v_lshrrev_b32 v{t[1]}, 4, v1
    v_mul_u32_u24 v{t[1]}, {CP}, v{t[1]}
    v_and_b32 v{t[2]}, 15, v1
    v_lshl_add_u32 v{t[1]}, v{t[2]}, 2, v{t[1]}
    s_add_u32 s{sT}, s{sBase}, 4096
    v_add_u32 v{t[1]}, s{sT}, v{t[1]}
    v_mov_b32 v{t[2]}, 0
    s_waitcnt lgkmcnt(0)
    """)
    for i in range(NV):
        g(f"v_add_f32 v{VAL[i]}, v{VAL[i]}, v{VAL[i]+1}")
    for i in range(19, NV):
        g(f"v_cndmask_b32 v{VAL[i]}, 0, v{VAL[i]}, s[74:75]")
    OUT = pool
    for s in range(4):
        for i in range(8):
            b = 11 * (i >> 2) + 2 * (i & 3) + s
            g(f"v_cvt_pk_bf16_f32 v{OUT+8*s+i}, v{VAL[b]}, v{VAL[b+1]}")
    def after(kb):
        if kb == 0: srd(a, R_WS, P_WS, WS_BYTES); get_tag(a, vWr[0], vWr[1])
        if kb == UK + 3:
            L = a.label("nofu")
            a(f"""
            s_cmp_lg_u32 s{S_WAVE}, 0
            s_cbranch_scc1 {L}
            s_and_b32 s76, s2, 1
            s_lshl_b32 s76, s76, 3
            s_lshr_b32 s77, s2, 5
            s_add_u32 s76, s76, s77
            s_lshl_b32 s76, s76, 2
            s_bfe_u32 s77, s2, 0x20001
            s_add_u32 s76, s76, s77
            s_lshl_b32 s76, s76, 2
            s_bfe_u32 s77, s2, 0x20003
            s_add_u32 s76, s76, s77
            s_lshl_b32 s76, s76, 7
            s_add_u32 s76, s76, {FL_U}
            """)
            flag_line(a, vWr[0], vWr[1], 76)
            a(f"{L}:")
    tot = g.emit(a, NBAR1 - 3, after)
    a.stamp(25)
    Lnp, L2, L3, Lnu2, Lno, Lre, Lw = [a.label(x) for x in ("np", "kc", "kd", "nu", "no", "re", "uw")]
    def u_dma():
        a(f"s_mov_b64 exec, -1\ns_add_u32 m0, s{sBase}, {UOFF + 512}\ns_nop 0")
        for b in range(4):
            a(f"buffer_load_dwordx4 v{vBl}, {WS}, s9 offen offset:{1024*b}{LD} lds")
            if b < 3: a(f"s_add_u32 s9, s9, {4*36*4096 - 1024}")
    a(f"s_mov_b32 s10, s{sMH}\ns_cmp_lg_u32 s{sMH}, 0\ns_cbranch_scc1 {Lnp}\ns_mov_b64 exec, 0xffff")
    poll_issue(a, vBh, 1, vA2, 0)
    a(f"""
    s_mov_b64 exec, -1
    {Lnp}:
    s_setprio {os.environ.get('KPRIO', '3')}
    s_barrier
    s_barrier
    s_cmp_lg_u32 s10, 0
    s_cbranch_scc1 {Lno}
    s_mov_b64 exec, 0xffff
    s_waitcnt vmcnt(0)
    v_cmp_ne_u32 vcc, s{S_TAG}, v{vBh}
    s_cbranch_vccnz {Lre}
    s_mov_b32 s10, 1
    """)
    u_dma()
    a(f"s_branch {Lno}\n{Lre}:")
    poll_issue(a, vBh, 1, vA2, 0)
    a(f"s_mov_b64 exec, -1\n{Lno}:")
    a("s_barrier")
    for s in range(4):
        a(f"ds_write_b128 v{t[0]}, {vr(OUT+8*s,4)} offset:{s*CP}")
        a(f"ds_write_b128 v{t[0]}, {vr(OUT+8*s+4,4)} offset:{s*CP+1024}")
    assert t[2] % 2 == 0
    a(f"""
    ds_write_b32 v{t[1]}, v{t[2]}
    ds_write_b64 v{vF}, {vr(t[2],2)} offset:{UOFF}
    s_cmp_lg_u32 s10, 0
    s_cbranch_scc1 {Lw}
    s_mov_b64 exec, 0xffff
    """)
    poll_wait(a, vBh, 1, vA2, 0, issued=True)
    u_dma()
    a(f"""
    {Lw}:
    s_waitcnt vmcnt(0)
    s_lshl_b32 s{sT}, s{sCS}, 2
    s_add_u32 s{sT}, s{sT}, {CNT+C_RDY}
    """)
    lds_inc(a, t[0], t[1], saddr=sT)
    a(f"s_branch {Lend}")
    a(f"{Lskip}:\ns_barrier")
    TB = int(os.environ.get('TLBAT', '1'))
    for _ in range(TB): a("s_barrier")
    if 'tlb' in EXP:
        Lnu = a.label("notlb")
        a(f"""
        s_lshr_b32 s8, s2, 3
        s_lshl_b32 s8, s8, 1
        s_add_u32 s8, s8, s{sMH}
        s_cmp_lg_u32 s8, 16
        s_cbranch_scc1 {Lnu}
        """)
        for i in sorted(range(1, (WS_BYTES >> 21) + 1), key=lambda i: abs(i - (UT_OFF >> 21) - 0.4)):
            a(f"s_mov_b32 s8, {i << 21}\ns_load_dword s{59+i}, s[{P_WS}:{P_WS+1}], s8")
        a(f"s_load_dword s72, s[{P_WO}:{P_WO+1}], 0\ns_load_dword s73, s[{P_OUT}:{P_OUT+1}], 0\ns_mov_b32 s8, {X_BYTES-4}\ns_load_dword s74, s[{P_OUT}:{P_OUT+1}], s8")
        a(f"{Lnu}:")
    for _ in range(NBAR1 - TB): a("s_barrier")
    srd(a, R_WS, P_WS, WS_BYTES); get_tag(a, t[0], t[1])
    a(f"{Lend}:")
    a.stamp(2)

def phase1(a, name, endlabel):
    Lkg, Lg, Lend = a.label("kg"), a.label("gemm"), a.label("p1end")
    head(a, name, endlabel, Lkg, Lg)
    loader(a)
    a(f"s_branch {Lend}\n{Lkg}:")
    kgen_waves(a)
    a(f"s_branch {Lend}\nL_gate_dma:\ns_waitcnt lgkmcnt(0)")
    srd(a, R_A, P_G, 1152)
    a(f"""
    v_lshlrev_b32 v4, 4, v1
    s_mov_b32 m0, {GT}
    s_nop 0
    buffer_load_dwordx4 v4, s[{R_A}:{R_A+3}], 0 offen lds
    s_mov_b64 exec, 0xff
    buffer_load_dwordx4 v4, s[{R_A}:{R_A+3}], 0 offen offset:1024 lds
    s_mov_b64 exec, -1
    s_barrier
    s_waitcnt vmcnt(0)
    {Lg}:
    """)
    gemm_waves(a)
    a(f"{Lend}:")
```

```python
from f1 import *

def conv_main(a, tiles, vA, vB, FA, FB, ACC, hook):
    sb = Lgkm(a)
    n = max(tiles) + 1
    def ldA(i, rp):
        off = 4032 - 64 * rp - 512 * i
        sb.load(f"ds_read_b64 {vr(FA+4*i,2)}, v{vA} offset:{off}", rng(FA+4*i, 2))
        sb.load(f"ds_read_b64 {vr(FA+4*i+2,2)}, v{vA} offset:{off+8}", rng(FA+4*i+2, 2))
    def ldB(k, rp):
        sb.load(f"ds_read_b128 {vr(FB+4*k,4)}, v{vB} offset:{480 + 512*k - 64*rp}", rng(FB+4*k, 4))
    order = []
    for i in range(n):
        order.append(("A", i))
        for t in tiles:
            if t - i >= 0 and ("B", t - i) not in order: order.append(("B", t - i))
    for w, i in order:
        (ldA if w == "A" else ldB)(i, 0)
    started = set()
    for rp in range(4):
        for i in range(n):
            for ti, t in enumerate(tiles):
                k = t - i
                if k < 0: continue
                sb.need(list(rng(FA+4*i, 4)) + list(rng(FB+4*k, 4)))
                c = vr(ACC+4*ti, 4) if ti in started else "0"
                started.add(ti)
                a(f"v_mfma_f32_16x16x32_bf16 {vr(ACC+4*ti,4)}, {vr(FA+4*i,4)}, {vr(FB+4*k,4)}, {c}")
            if rp < 3:
                ldA(i, rp + 1); ldB(n - 1 - i, rp + 1)
        if rp == int(os.environ.get('PQAT', '0')): hook()

class AR:
    def __init__(self, R):
        self.S = [R.alloc(16, 4), R.alloc(16, 4)]
        self.O = [R.alloc(16, 4), R.alloc(16, 4)]
        self.K = R.alloc(4, 4)
        self.Kx = R.alloc(4, 2)
        self.V0 = R.alloc(4, 4)
        self.V1 = R.alloc(4, 4)
        self.Qm = [R.alloc(4, 4), R.alloc(4, 4)]
        self.Qx = [R.alloc(8, 2), R.alloc(8, 2)]
        self.aK = R.alloc(); self.aKx = R.alloc(); self.aV = R.alloc(4, 1); self.idx = R.alloc()

def E(a, base, lo, n=4):
    for i in range(lo, lo + n):
        a(f"v_exp_f32 v{base+i}, v{base+i}")

def k_off(t): return (t & 7) * 1024
def kx_off(g): return KX_OFF + (g & 1) * 512
def v_off(t): return V_OFF + (t & 7) * 1280

def attn_loop(a, r, prio, pre_mid, post_mid):
    A, B = r.S
    NT = 16
    def smf(o, v, p): a(f"v_smfmac_f32_32x32x32_bf16 {vr(o,16)}, {vr(v,4)}, {vr(p,8)}, v{r.idx}")
    def vread(dst, t, s):
        a(f"ds_read_b64_tr_b16 {vr(dst,2)}, v{r.aV+2*s} offset:{v_off(t)}")
        a(f"ds_read_b64_tr_b16 {vr(dst+2,2)}, v{r.aV+2*s+1} offset:{v_off(t)}")
    a(f"v_mfma_f32_32x32x8_bf16 {vr(A,16)}, {vr(r.Kx,2)}, {vr(r.Qx[0],2)}, 0")
    a(f"v_mfma_f32_32x32x16_bf16 {vr(A,16)}, {vr(r.K,4)}, {vr(r.Qm[0],4)}, {vr(A,16)}")
    for X in range(2):
        for i in range(16): a(f"v_mov_b32 v{r.O[X]+i}, 0")
    E(a, A, 0, 2)
    for t in range(NT):
        if t in prio: a(f"s_setprio {prio[t]}")
        kxp = r.Kx + 2 * ((t >> 2) & 1)
        if t > 0: smf(r.O[1], r.V1, B + 8)
        vread(r.V1, t, 1)
        E(a, A, 2)
        a(f"v_mfma_f32_32x32x8_bf16 {vr(B,16)}, {vr(kxp,2)}, {vr(r.Qx[1]+2*(t&3),2)}, 0")
        n_after = 2
        if (t & 7) == 0:
            a(f"ds_read_b64 {vr(r.Kx+2,2)}, v{r.aKx} offset:{kx_off(1)}")
            n_after += 1
        E(a, A, 6)
        a(f"v_mfma_f32_32x32x16_bf16 {vr(B,16)}, {vr(r.K,4)}, {vr(r.Qm[1],4)}, {vr(B,16)}")
        last = t == NT - 1
        if (t & 7) != 7:
            a(f"ds_read_b128 {vr(r.K,4)}, v{r.aK} offset:{k_off(t+1)}")
            n_after += 1
        else:
            a("s_nop 0")
        E(a, A, 10)
        a(f"s_waitcnt lgkmcnt({n_after})")
        smf(r.O[0], r.V0, A)
        if t in pre_mid: pre_mid[t]()
        E(a, A, 14, 2)
        a("s_nop 2")
        E(a, B, 0, 1)
        a("s_waitcnt lgkmcnt(0)")
        if t in post_mid: post_mid[t]()
        if t == 7:
            a(f"""
            v_add_u32 v{r.aK}, {REG_B}, v{r.aK}
            v_add_u32 v{r.aKx}, {REG_B}, v{r.aKx}
            ds_read_b64 {vr(r.Kx,2)}, v{r.aKx} offset:{kx_off(0)}
            ds_read_b128 {vr(r.K,4)}, v{r.aK} offset:{k_off(0)}
            """)
            for i in range(4): a(f"v_add_u32 v{r.aV+i}, {REG_B}, v{r.aV+i}")
        tn = t + 1
        kxp = r.Kx + 2 * ((tn >> 2) & 1)
        smf(r.O[0], r.V1, A + 8)
        E(a, B, 1, 5)
        if t == 7: a("s_waitcnt lgkmcnt(0)")
        if not last:
            a(f"v_mfma_f32_32x32x8_bf16 {vr(A,16)}, {vr(kxp,2)}, {vr(r.Qx[0]+2*(tn&3),2)}, 0")
        E(a, B, 6)
        if not last:
            a(f"v_mfma_f32_32x32x16_bf16 {vr(A,16)}, {vr(r.K,4)}, {vr(r.Qm[0],4)}, {vr(A,16)}")
        E(a, B, 10)
        smf(r.O[1], r.V0, B)
        if not last:
            vread(r.V0, tn, 0)
        E(a, B, 14, 2)
        if not last:
            a("s_nop 2")
            E(a, A, 0, 2)
    a("s_nop 1")
    smf(r.O[1], r.V1, B + 8)

PRIO = eval(os.environ.get('PRIO', '{0: 1, 6: 0, "M": 3, 11: 2, 13: 1, 14: 0}'))
SPARE = 2 * REG_B

def piece_lds(n):
    return n * 1024 if n < 76 else SPARE + (n - 76) * 1024

def phase23(a):
    sHd, sR, sQP, sKQ, sT, sT2, sC, sCB, sKV, sQt = 4, 5, 6, 7, 8, 9, 10, 11, 12, 13
    sK0, sK1 = 14, 15
    sQT3, sDQ = 80, 81
    R = Regs(4, 128)
    t = [R.alloc() for _ in range(4)]
    r = AR(R)
    vL16 = R.alloc()
    PL = R.alloc(8, 4)
    assert PL == 120 and r.aK == 112
    Lld, LX = a.label("kvload"), a.label("X")
    a(f"""
    s_and_b32 s{sHd}, s2, 7
    s_lshl_b32 s{sQT3}, s{sHd}, 3
    s_lshl_b32 s{sHd}, s{sHd}, 2
    s_bfe_u32 s{sT}, s2, 0x20003
    s_add_u32 s{sHd}, s{sHd}, s{sT}
    s_lshr_b32 s{sR}, s2, 5
    s_bfe_u32 s{sT}, s2, 0x30003
    s_add_u32 s{sQT3}, s{sQT3}, s{sT}
    s_lshr_b32 s{sDQ}, s2, 6
    s_and_b32 s{sQP}, s{S_WAVE}, 3
    s_lshr_b32 s{sKQ}, s{S_WAVE}, 2
    v_lshlrev_b32 v{vL16}, 4, v1
    v_mov_b32 v{PL+4}, 0
    """)
    chan(a, sC, sKQ); area(a, sCB, sKQ)
    a(f"""
    s_mul_i32 s{sKV}, s{sHd}, {8*BLK}
    s_add_u32 s{sKV}, s{sKV}, {KV_OFF}
    s_cmp_eq_u32 s{sKQ}, 3
    s_cbranch_scc1 {Lld}
    s_cmp_ge_u32 s{sC}, 576
    s_cbranch_scc1 {LX}
    """)
    FA, FB, ACC = 8, 40, 72
    vA, vB, vY, vD = r.aK, r.aKx, r.aV, r.aV + 1
    Lts1, Lcj, Lsw = a.label("ts1"), a.label("cj"), a.label("sw")
    a(f"""
    s_lshl_b32 s{sT}, s{S_DV}, 16
    s_and_b32 s{S_DV}, s{S_DV}, 0xffff0000
    s_bitcmp0_b32 s{sC}, 0
    s_cselect_b32 s{S_DV}, s{sT}, s{S_DV}
    v_and_b32 v{t[0]}, 15, v1
    v_lshrrev_b32 v{t[1]}, 4, v1
    v_sub_u32 v{t[2]}, 15, v{t[0]}
    v_and_b32 v{t[3]}, 3, v{t[2]}
    v_and_b32 v{t[2]}, 12, v{t[2]}
    v_lshlrev_b32 v{t[2]}, 1, v{t[2]}
    v_lshl_add_u32 v{t[2]}, v{t[1]}, 4, v{t[2]}
    v_mul_u32_u24 v{t[3]}, {CP}, v{t[3]}
    s_and_b32 s{sT}, s{sQP}, 1
    s_lshl_b32 s{sT}, s{sT}, 8
    s_sub_u32 s{sT}, s{sCB}, s{sT}
    v_add3_u32 v{vA}, v{t[2]}, v{t[3]}, s{sT}
    v_lshlrev_b32 v{t[2]}, 5, v{t[0]}
    v_lshl_add_u32 v{t[3]}, v{t[1]}, 4, v{t[2]}
    s_add_u32 s{sT}, s{sT}, {UOFF}
    v_add_u32 v{vB}, s{sT}, v{t[3]}
    v_lshl_add_u32 v{vY}, v{t[1]}, 3, v{t[2]}
    s_lshl_b32 s82, s{sKQ}, 2
    s_add_u32 s82, s82, {CNT}
    """)
    lds_spin(a, t[0], t[1], 2, sT, saddr=82, off=C_RDY)
    a.stamp(5)
    a("s_setprio 2")
    if os.environ.get('C3PRIO'): a(f"s_cmp_lt_u32 s{sKQ}, 2\ns_cbranch_scc1 L_c3\ns_setprio {os.environ['C3PRIO']}\nL_c3:")
    T0, T1 = [7, 4, 3, 0], [6, 5, 2, 1]
    def pq():
        L = a.label("npq")
        a(f"s_cmp_lt_u32 s{sKQ}, 2\ns_cbranch_scc1 {L}")
        publish_q(a, t[0], t[1], sT)
        a(f"{L}:")
    if os.environ.get('PQAT') == '-1': pq()
    a(f"s_cmp_ge_u32 s{sQP}, 2\ns_cbranch_scc1 {Lts1}")
    conv_main(a, T0, vA, vB, FA, FB, ACC, pq)
    a(f"s_cmp_eq_u32 s{sQP}, 0\ns_cselect_b32 s{sK0}, {T0[0]}, {T0[2]}\ns_cselect_b32 s{sK1}, {T0[1]}, {T0[3]}\ns_branch {Lcj}")
    a(f"{Lts1}:")
    conv_main(a, T1, vA, vB, FA, FB, ACC, pq)
    a(f"s_cmp_eq_u32 s{sQP}, 2\ns_cselect_b32 s{sK0}, {T1[0]}, {T1[2]}\ns_cselect_b32 s{sK1}, {T1[1]}, {T1[3]}")
    a(f"{Lcj}:")
    lds_inc(a, FB + 8, FB + 9, saddr=82, off=C_1)
    a(f"""
    s_lshl_b32 s{sK0}, s{sK0}, 9
    s_lshl_b32 s{sK1}, s{sK1}, 9
    s_lshl_b32 s{sT}, s{sQP}, 11
    s_add_u32 s{sT}, s{sT}, s{sCB}
    v_add_u32 v{t[0]}, s{sT}, v{vL16}
    s_xor_b32 s{sT}, s{sQP}, 1
    s_lshl_b32 s{sT}, s{sT}, 11
    s_add_u32 s{sT}, s{sT}, s{sCB}
    v_add_u32 v{t[1]}, s{sT}, v{vL16}
    s_add_u32 s{sT}, s{sCB}, s{sK0}
    v_add_u32 v{t[2]}, s{sT}, v{vY}
    s_add_u32 s{sT}, s{sCB}, s{sK1}
    v_add_u32 v{t[3]}, s{sT}, v{vY}
    ds_read_b64 {vr(FA,2)}, v{t[2]} offset:{UOFF+512}
    ds_read_b64 {vr(FA+2,2)}, v{t[3]} offset:{UOFF+512}
    s_bitcmp0_b32 s{sQP}, 0
    s_cbranch_scc1 {Lsw}
    """)
    for i in range(8):
        a(f"v_swap_b32 v{ACC+i}, v{ACC+8+i}")
    a(f"{Lsw}:")
    lds_spin(a, FB + 8, FB + 9, 4, sT, saddr=82, off=C_1)
    a(f"""
    ds_write_b128 v{t[0]}, {vr(ACC+8,4)}
    ds_write_b128 v{t[0]}, {vr(ACC+12,4)} offset:1024
    """)
    lds_inc(a, FB + 8, FB + 9, saddr=82, off=C_2)

    for j in range(2):
        for h in range(2):
            a(f"v_lshlrev_b32 v{FA+4}, 16, v{FA+2*j+h}")
            a(f"v_and_b32 v{FA+5}, 0xffff0000, v{FA+2*j+h}")
            a(f"v_fmac_f32 v{ACC+4*j+2*h}, s{S_DV}, v{FA+4}")
            a(f"v_fmac_f32 v{ACC+4*j+2*h+1}, s{S_DV}, v{FA+5}")
    lds_spin(a, FB + 8, FB + 9, 4, sT, saddr=82, off=C_2)
    a(f"""
    ds_read_b128 {vr(FB,4)}, v{t[1]}
    ds_read_b128 {vr(FB+4,4)}, v{t[1]} offset:1024
    s_lshl_b32 s{sT}, s{sC}, 12
    s_add_u32 s{sT}, s{sT}, {AT_OFF}
    s_add_u32 s{sK0}, s{sK0}, s{sT}
    s_add_u32 s{sK1}, s{sK1}, s{sT}
    s_waitcnt lgkmcnt(0)
    """)
    for i in range(8):
        a(f"v_add_f32 v{ACC+i}, v{ACC+i}, v{FB+i}")
    for i in range(4):
        a(f"v_cvt_pk_bf16_f32 v{PL+i}, v{ACC+2*i}, v{ACC+2*i+1}")
    a(f"""
    buffer_store_dwordx2 {vr(PL,2)}, v{vY}, {WS}, s{sK0} offen{ST}
    buffer_store_dwordx2 {vr(PL+2,2)}, v{vY}, {WS}, s{sK1} offen{ST}
    s_cmp_lt_u32 s{sKQ}, 2
    s_cbranch_scc1 {LX}
    s_waitcnt vmcnt(0)
    """)
    def publish_a(Lskip):
        lds_inc(a, t[0], t[1], off=C_A, rtn=sT)
        a(f"""
        s_cmp_lt_u32 s{S_C2}, 576
        s_cselect_b32 s{sT2}, 11, 7
        s_cmp_lg_u32 s{sT}, s{sT2}
        s_cbranch_scc1 {Lskip}
        """)
        lds_spin(a, t[0], t[1], 8, sT, off=C_S)
        a(f"s_lshl_b32 s{sT2}, s2, 2\ns_add_u32 s{sT2}, s{sT2}, {FL_A}")
        flag_store(a, t[0], sT2)
    publish_a(LX)
    a(f"s_branch {LX}")
    Lp, Lc, Lq, Lnq, Lgo = [a.label(x) for x in ("kp", "kc", "noqx", "nq", "go")]
    def kv_flags(vd, vt, quarter):
        a(f"""
        v_and_b32 v{vd}, 1, v1
        v_lshlrev_b32 v{vd}, 5, v{vd}
        v_add3_u32 v{vd}, v{vd}, 32, s{sHd}
        v_lshrrev_b32 v{vt}, 1, v1
        s_lshl_b32 s{sT}, s{quarter}, 2
        v_add_u32 v{vt}, s{sT}, v{vt}
        s_lshl_b32 s{sT}, s{sR}, 1
        s_lshr_b32 s{sT2}, s{sQP}, 1
        s_add_u32 s{sT}, s{sT}, s{sT2}
        v_writelane_b32 v{vd}, s{sHd}, 8
        v_writelane_b32 v{vt}, s{sT}, 8
        v_mul_u32_u24 v{vd}, 43, v{vd}
        v_lshrrev_b32 v{vd}, 8, v{vd}
        v_lshl_add_u32 v{vd}, v{vd}, 4, v{vt}
        v_lshlrev_b32 v{vd}, 7, v{vd}
        v_add_u32 v{vd}, {FL_Q}, v{vd}
        """)
    a(f"{Lld}:")
    kv_flags(t[2], t[3], sQP)
    lds_spin(a, t[0], t[1], 8, sT, off=C_S if 'early' in EXP else C_FREE)
    a(f"""
    s_lshl_b32 s74, s{sHd}, 3
    s_add_u32 s74, s74, s{sR}
    s_lshl_b32 s75, s74, 2
    s_add_u32 s75, s75, s{sQP}
    s_mov_b32 s76, 0
    s_lshl_b32 s82, s{sQP}, 2
    s_add_u32 s82, s82, {CNT + C_Q}
    v_mov_b32 v{PL}, s82
    v_mov_b32 v{PL+1}, 1
    s_mov_b32 s{S_SPIN}, {SPIN_MAX}
    {Lp}:
    s_mov_b64 exec, 0x1ff
    buffer_load_dword v{t[3]}, v{t[2]}, {WS}, 0 offen sc1
    s_cmp_lg_u32 s76, 1
    s_cbranch_scc1 {Lq}
    s_mov_b32 s76, 2
    s_waitcnt vmcnt(1)
    ds_write_b32 v{PL}, v{PL+1}
    {Lq}:
    s_waitcnt vmcnt(0)
    v_cmp_ne_u32 vcc, s{S_TAG}, v{t[3]}
    s_mov_b64 exec, -1
    s_sub_u32 s{S_SPIN}, s{S_SPIN}, 1
    s_cselect_b32 vcc_lo, 0, vcc_lo
    s_bitcmp1_b32 vcc_lo, 8
    s_cbranch_scc1 {Lc}
    s_cmp_lg_u32 s76, 0
    s_cbranch_scc1 {Lnq}
    s_mov_b32 s76, 1
    s_lshl_b32 s{sT}, s{sQP}, 11
    s_add_u32 m0, s{sT}, {QST}
    s_lshl_b32 s{sT2}, s75, 11
    s_add_u32 s{sT2}, s{sT2}, {QF_OFF}
    buffer_load_dwordx4 v{vL16}, {WS}, s{sT2} offen{LD} lds
    buffer_load_dwordx4 v{vL16}, {WS}, s{sT2} offen offset:1024{LD} lds
    s_lshl_b32 s{sT}, s{sQP}, 8
    s_add_u32 m0, s{sT}, {QST+8192}
    s_lshl_b32 s{sT2}, s75, 8
    s_add_u32 s{sT2}, s{sT2}, {QX_OFF}
    s_mov_b64 exec, 0xffff
    buffer_load_dwordx4 v{vL16}, {WS}, s{sT2} offen{LD} lds
    s_mov_b64 exec, -1
    {Lnq}:
    s_mov_b32 s77, 0
    s_and_b32 s{sT}, vcc_lo, 0x0f
    s_cbranch_scc0 {Lgo}
    s_mov_b32 s77, 1
    s_and_b32 s{sT}, vcc_lo, 0xf0
    s_cbranch_scc0 {Lgo}
    {Lc}:
    s_sleep {os.environ.get('PSLEEP', '3')}
    s_branch {Lp}
    {Lgo}:
    """)
    a.stamp(5)
    a(f"""
    s_lshl_b32 s{sT}, s{sQP}, 1
    s_add_u32 s{sT}, s{sT}, s77
    s_mul_i32 s{sT}, s{sT}, {BLK}
    s_add_u32 s{sT}, s{sT}, s{sKV}
    s_mul_i32 s82, s{sQP}, {BLK}
    """)
    def run(first, n):
        a(f"s_add_u32 m0, s82, {first*1024}\ns_add_u32 s{sT2}, s{sT}, {first*1024}")
        for i in range(n):
            a(f"buffer_load_dwordx4 v{vL16}, {WS}, s{sT2} offen offset:{1024*i}{LD} lds")
    run(0, 2); run(8, 4)
    a(f"""
    s_lshl_b32 s78, s{sQP}, 3
    s_add_u32 s78, s78, {CNT + C_KV}
    v_mov_b32 v{t[0]}, s78
    v_mov_b32 v{t[2]}, 1
    v_mov_b32 v{t[3]}, s77
    v_mov_b32 v{t[1]}, 2
    s_waitcnt vmcnt(0)
    ds_write_b32 v{PL}, v{PL+1}
    ds_write_b64 v{t[0]}, {vr(t[2],2)}
    s_waitcnt lgkmcnt(0)
    """)
    run(2, 4); run(12, 4); run(6, 2); run(16, 3)
    a(f"s_waitcnt vmcnt(0)\nds_write_b32 v{t[0]}, v{t[1]}")
    a(f"{LX}:")
    a(f"""
    s_mul_i32 s{sT}, s{sKQ}, {BLK}
    v_add_u32 v{r.aK}, s{sT}, v{vL16}
    v_lshl_add_u32 v{r.aKx}, v1, 3, s{sT}
    v_bfe_u32 v{t[0]}, v1, 2, 2
    v_and_b32 v{t[1]}, 1, v1
    v_lshlrev_b32 v{t[1]}, 4, v{t[1]}
    v_and_b32 v{t[2]}, 2, v1
    v_lshl_add_u32 v{t[1]}, v{t[2]}, 2, v{t[1]}
    v_lshl_add_u32 v{t[1]}, v{t[0]}, 5, v{t[1]}
    v_and_b32 v{t[3]}, 32, v1
    v_lshl_add_u32 v{t[1]}, v{t[3]}, 3, v{t[1]}
    v_lshl_add_u32 v{t[0]}, v{t[0]}, 3, v{t[3]}
    v_add_u32 v{t[0]}, 1152, v{t[0]}
    v_lshl_add_u32 v{t[0]}, v{t[2]}, 17, v{t[0]}
    v_and_b32 v{t[2]}, 16, v1
    v_cmp_eq_u32 vcc, 0, v{t[2]}
    v_lshlrev_b32 v{t[2]}, 4, v{t[2]}
    v_mov_b32 v{t[3]}, 512
    v_cndmask_b32 v{t[1]}, v{t[0]}, v{t[1]}, vcc
    v_add_u32 v{r.aV}, s{sT}, v{t[1]}
    v_sub_u32 v{t[2]}, 128, v{t[2]}
    v_cndmask_b32 v{t[3]}, 64, v{t[3]}, vcc
    v_add_u32 v{r.aV+1}, v{r.aV}, v{t[2]}
    v_add_u32 v{r.aV+2}, v{r.aV}, v{t[3]}
    v_add_u32 v{r.aV+3}, v{r.aV+2}, v{t[2]}
    v_mov_b32 v{r.idx}, 0xdddddddd
    s_mov_b32 s72, {fbits(2.0**-40)}
    s_mov_b32 s73, {fbits(2.0**60)}
    s_movk_i32 s64, 0x1f8
    s_mov_b64 s[62:63], 0
    s_lshl_b32 s{sT}, s{sQP}, 11
    s_add_u32 s{sT}, s{sT}, {QST}
    v_add_u32 v{t[0]}, s{sT}, v{vL16}
    v_and_b32 v{t[1]}, 31, v1
    s_lshl_b32 s{sT}, s{sQP}, 8
    s_add_u32 s{sT}, s{sT}, {QST+8192}
    v_lshl_add_u32 v{t[1]}, v{t[1]}, 2, s{sT}
    v_cmp_gt_u32 vcc, 32, v1
    s_lshl_b32 s{sQt}, s{sR}, 2
    s_add_u32 s{sQt}, s{sQt}, s{sQP}
    """)
    for X in range(2):
        for i in (1, 2, 5, 6): a(f"v_mov_b32 v{r.Qx[X]+i}, 0")
    a.stamp(6)
    a(f"s_lshl_b32 s82, s{sQP}, 2\ns_add_u32 s82, s82, {CNT}\ns_lshl_b32 s83, s{sKQ}, 3\ns_add_u32 s83, s83, {CNT}")
    lds_spin(a, PL, PL + 1, 1, sT, saddr=82, off=C_Q)
    a(f"""
    ds_read_b128 {vr(r.Qm[0],4)}, v{t[0]}
    ds_read_b128 {vr(r.Qm[1],4)}, v{t[0]} offset:1024
    ds_read2_b32 {vr(t[2],2)}, v{t[1]} offset0:0 offset1:32
    """)
    lds_inc(a, PL, PL + 1, off=C_Y)
    lds_spin(a, PL, PL + 1, 1, sT, saddr=83, off=C_KV)
    a(f"""
    ds_read_b64 {vr(r.Kx,2)}, v{r.aKx} offset:{kx_off(0)}
    ds_read_b128 {vr(r.K,4)}, v{r.aK} offset:{k_off(0)}
    ds_read_b64_tr_b16 {vr(r.V0,2)}, v{r.aV} offset:{v_off(0)}
    ds_read_b64_tr_b16 {vr(r.V0+2,2)}, v{r.aV+1} offset:{v_off(0)}
    """)
    for X in range(2):
        q = r.Qx[X]; src = t[2] + X
        a(f"""
        v_cndmask_b32 v{q+0}, 0, v{src}, vcc
        v_cndmask_b32 v{q+3}, 0, v{src}, vcc
        v_cndmask_b32 v{q+4}, v{src}, 0, vcc
        v_cndmask_b32 v{q+7}, v{src}, 0, vcc
        """)
    def stage2_pre():
        a(f"v_mov_b32 v{t[0]}, s83\nds_read_b32 v{t[1]}, v{t[0]} offset:{C_KV}")
    def stage2_post():
        L = a.label("cok")
        a(f"v_cmp_gt_u32 vcc, 2, v{t[1]}\ns_cbranch_vccz {L}")
        lds_spin(a, t[0], t[1], 2, sT, saddr=83, off=C_KV)
        a(f"{L}:")
    def wt_issue():
        L = a.label("nw")
        a(f"s_cmp_ge_u32 s{S_WAVE}, 3\ns_cbranch_scc1 {L}\ns_lshl_b32 s79, s{S_WAVE}, 8\ns_add_u32 s79, s79, s2")
        wt_load(a, 79, sT, 78, 77, 76, 75, t[0], t[1], t[2], PL)
        a(f"{L}:")
    def wt_put():
        L, Ls = a.label("nw"), a.label("ns")
        a(f"s_cmp_ge_u32 s{S_WAVE}, 8\ns_cbranch_scc1 {Ls}\ns_cmp_ge_u32 s{S_WAVE}, 3\ns_cbranch_scc1 {L}\ns_waitcnt vmcnt(0)")
        wt_store(a, 79, PL, vL16)
        a(f"{L}:\ns_lshr_b32 s78, s{S_WAVE}, 1")
        kv_flags(PL + 4, PL + 5, 78)
        a("s_mov_b64 exec, 0xff")
        poll_issue(a, PL + 5, 1, PL + 4, 0)
        a(f"s_mov_b64 exec, -1\n{Ls}:")
    def second_blocks():
        Ls, Lw = a.label("kvs"), a.label("nw")
        a(f"s_cmp_ge_u32 s{S_WAVE}, 8\ns_cbranch_scc1 {Ls}\ns_mov_b64 exec, 0xff")
        poll_wait(a, PL + 5, 1, PL + 4, 0, issued=True)
        a("s_mov_b64 exec, -1")
        publish_a(Lw)
        a(f"{Lw}:")
        lds_spin(a, t[0], t[1], 16, sT, off=C_Y)
        a(f"s_lshl_b32 s82, s78, 3\ns_add_u32 s82, s82, {CNT}")
        lds_spin(a, t[0], t[1], 1, sT, saddr=82, off=C_KV)
        a(f"""
        ds_read_b32 v{t[1]}, v{t[0]} offset:{C_KV+4}
        s_and_b32 s{sT}, s{S_WAVE}, 6
        s_waitcnt lgkmcnt(0)
        v_readfirstlane_b32 s{sT2}, v{t[1]}
        s_xor_b32 s{sT2}, s{sT2}, 1
        s_and_b32 s{sT2}, s{sT2}, 1
        s_add_u32 s{sT}, s{sT}, s{sT2}
        s_mul_i32 s{sT}, s{sT}, {BLK}
        s_add_u32 s{sT}, s{sT}, s{sKV}
        s_and_b32 s{sT2}, s{S_WAVE}, 1
        s_mul_i32 s{sT2}, s{sT2}, 9216
        s_add_u32 s{sT}, s{sT}, s{sT2}
        s_mul_i32 s82, s78, {BLK}
        s_add_u32 s82, s82, s{sT2}
        s_add_u32 m0, s82, {REG_B}
        s_nop 0
        """)
        for i in range(10):
            a(f"buffer_load_dwordx4 v{vL16}, {WS}, s{sT} offen offset:{1024*(i&3)}{LD} lds")
            if i & 3 == 3: a(f"s_add_u32 m0, m0, 4096\ns_add_u32 s{sT}, s{sT}, 4096")
        a(f"{Ls}:")
    a("s_waitcnt lgkmcnt(2)\ns_nop 0")
    a.stamp(7)
    def poll_post():
        L = a.label("nopa")
        a(f"s_cmp_lg_u32 s{S_WAVE}, 0\ns_cbranch_scc1 {L}")
        poll_issue(a, PL, 4, vL16, FL_A)
        a(f"{L}:")
    def poll_check():
        L = a.label("nopw")
        a(f"s_cmp_lg_u32 s{S_WAVE}, 0\ns_cbranch_scc1 {L}")
        poll_wait(a, PL, 4, vL16, FL_A, issued=True)
        lds_inc(a, t[0], t[1], off=C_FA)
        a(f"{L}:")
    def mid_post():
        a("s_waitcnt vmcnt(0)")
        a.stamp(15)
        a(f"s_setprio {PRIO['M']}\ns_barrier")
        a.stamp(16)
    NLD = 8
    def prefetch_post():
        La, Ld = a.label("pfa"), a.label("pfd")
        a(f"""
        s_cmp_ge_u32 s{S_WAVE}, {0 if 'nopf' in EXP else 9}
        s_cbranch_scc1 {La}
        """)
        lds_spin(a, t[0], t[1], 1, sT, off=C_FA)
        a(f"""
        s_mul_i32 s{sT}, s{sDQ}, 9
        s_add_u32 s{sT}, s{sT}, s{S_WAVE}
        s_lshl_b32 m0, s{S_WAVE}, 13
        s_mul_i32 s{sT}, s{sT}, {18*1024}
        s_add_u32 s{sT}, s{sT}, {WT_OFF}
        """)
        for n in range(NLD):
            a(f"buffer_load_dwordx4 v{vL16}, {WS}, s{sT} offen offset:{1024*(n&3)}{LD} lds")
            if n == 3: a(f"s_add_u32 m0, m0, 4096\ns_add_u32 s{sT}, s{sT}, 4096")
        a(f"""
        v_lshrrev_b32 v{t[0]}, 2, v1
        v_lshlrev_b32 v{t[0]}, 12, v{t[0]}
        v_and_b32 v{t[1]}, 3, v1
        v_lshl_add_u32 v{t[0]}, v{t[1]}, 4, v{t[0]}
        s_mul_i32 s{sT}, s{sDQ}, 9
        s_add_u32 s{sT}, s{sT}, s{S_WAVE}
        s_lshl_b32 s{sT}, s{sT}, 16
        s_lshl_b32 s{sT2}, s{sQT3}, 6
        s_add_u32 s{sT}, s{sT}, s{sT2}
        s_add_u32 s{sT}, s{sT}, {AT_OFF}
        s_lshl_b32 s{sK1}, s{S_WAVE}, 10
        s_add_u32 s{sT2}, s{sK1}, {SPARE - 4096}
        s_add_u32 s{sK1}, s{sK1}, {72*1024}
        s_cmp_ge_u32 s{S_WAVE}, 4
        s_cselect_b32 s{sK1}, s{sT2}, s{sK1}
        s_mov_b32 m0, s{sK1}
        s_nop 0
        buffer_load_dwordx4 v{t[0]}, {WS}, s{sT} offen{LD} lds
        {La}:
        """)
    attn_loop(a, r, PRIO, {0: stage2_pre}, {0: lambda: (stage2_post(), wt_issue()), 3: wt_put, 5: second_blocks, 7: mid_post, 8: poll_post, 10: poll_check, 11: prefetch_post})
    a('s_setprio 3')
    a.stamp(8)
    O0, O1 = r.O
    FD = [72 + 4*i for i in range(10)]
    FL = [8 + 4*i for i in range(8)]
    FA3 = FL + FD
    AV, vG, vB, vOut, ACC3, FB3 = 112, 116, 118, t[3], PL, 40
    OZ = REG_B + BLK
    Lfin, Lp9, Lend, Lfirst, Lwr = [a.label(x) for x in ("fin", "p9", "end", "first", "wr")]
    a(f"""
    s_lshl_b32 s82, s{sKQ}, 2
    s_add_u32 s82, s82, {CNT}
    """)
    lds_inc(a, t[0], t[1], saddr=82, off=C_E)
    a(f"""
    s_lshl_b32 s83, s{sQP}, 2
    s_add_u32 s83, s83, {CNT}
    s_mul_i32 s{sCB}, s{sQP}, 4864
    s_add_u32 s{sCB}, s{sCB}, {REG_B}
    v_cmp_gt_u32 vcc, 32, v1
    v_add_u32 v{t[2]}, s{sCB}, v{vL16}
    v_lshl_add_u32 v{t[3]}, v1, 3, s{sCB}
    v_lshl_add_u32 v{r.aK}, v1, 2, s{sCB}
    """)
    for i in range(3): a(f"v_cndmask_b32 v{O0+8+i}, v{O1+8+i}, v{O0+8+i}, vcc")
    a(f"s_cmp_eq_u32 s{sKQ}, 0\ns_cbranch_scc1 {Lfirst}")
    lds_spin(a, t[0], t[1], f"s{sKQ}", sT, saddr=83, off=C_P)
    a.stamp(18)
    a(f"""
    ds_read_b64 v[24:25], v{t[3]} offset:4096
    ds_read_b32 v26, v{r.aK} offset:4608
    ds_read_b128 v[8:11], v{t[2]}
    ds_read_b128 v[12:15], v{t[2]} offset:1024
    ds_read_b128 v[16:19], v{t[2]} offset:2048
    ds_read_b128 v[20:23], v{t[2]} offset:3072
    s_waitcnt lgkmcnt(4)
    """)
    for i in range(3): a(f"v_add_f32 v{O0+8+i}, v{O0+8+i}, v{24+i}")
    a(f"s_cmp_eq_u32 s{sKQ}, 3\ns_cbranch_scc1 {Lfin}\ns_waitcnt lgkmcnt(2)")
    for i in range(8): a(f"v_add_f32 v{O0+i}, v{O0+i}, v{8+i}")
    a("s_waitcnt lgkmcnt(0)")
    for i in range(8): a(f"v_add_f32 v{O1+i}, v{O1+i}, v{16+i}")
    a(f"s_branch {Lwr}\n{Lfirst}:")
    lds_spin(a, t[0], t[1], 4, sT, saddr=82, off=C_E)
    a(f"""{Lwr}:
    ds_write_b128 v{t[2]}, {vr(O0,4)}
    ds_write_b128 v{t[2]}, {vr(O0+4,4)} offset:1024
    ds_write_b128 v{t[2]}, {vr(O1,4)} offset:2048
    ds_write_b128 v{t[2]}, {vr(O1+4,4)} offset:3072
    ds_write_b64 v{t[3]}, {vr(O0+8,2)} offset:4096
    ds_write_b32 v{r.aK}, v{O0+10} offset:4608
    """)
    lds_inc(a, t[0], t[1], saddr=83, off=C_P)
    a("s_setprio 0")
    a.stamp(17)
    a(f"""
    s_cmp_ge_u32 s{S_WAVE}, 9
    s_cbranch_scc1 {Lp9}
    v_and_b32 v{t[2]}, 15, v1
    v_lshlrev_b32 v{t[2]}, 2, v{t[2]}
    s_lshl_b32 s{sT}, s{sQT3}, 7
    s_add_u32 s{sT}, s{sT}, {G_OFF}
    s_waitcnt lgkmcnt(0)
    buffer_load_dword v{vG}, v{t[2]}, {WS}, s{sT} offen{LD}
    buffer_load_dword v{vG+1}, v{t[2]}, {WS}, s{sT} offen offset:64{LD}
    s_mul_i32 s{sK0}, s{sDQ}, 9
    s_add_u32 s{sK0}, s{sK0}, s{S_WAVE}
    s_mul_i32 s{sT}, s{sK0}, {18*1024}
    s_add_u32 s{sT}, s{sT}, {WT_OFF + NLD*1024}
    """)
    for n in range(10):
        a(f"buffer_load_dwordx4 {vr(FD[n],4)}, v{vL16}, {WS}, s{sT} offen offset:{1024*(n&3)}{LD}")
        if n & 3 == 3: a(f"s_add_u32 s{sT}, s{sT}, 4096")
    a(f"""
    s_lshl_b32 s{sT}, s{S_WAVE}, 13
    v_add_u32 v{t[0]}, s{sT}, v{vL16}
    v_lshrrev_b32 v{t[1]}, 2, v1
    v_lshlrev_b32 v{t[1]}, 6, v{t[1]}
    v_and_b32 v{t[2]}, 3, v1
    v_lshl_add_u32 v{t[1]}, v{t[2]}, 3, v{t[1]}
    v_add_u32 v{t[1]}, s{sK1}, v{t[1]}
    s_waitcnt vmcnt(10)
    """)
    for ks in range(NLD):
        a(f"ds_read_b128 {vr(FL[ks],4)}, v{t[0]} offset:{1024*ks}")
    a(f"""
    ds_read_b64_tr_b16 {vr(AV,2)}, v{t[1]}
    ds_read_b64_tr_b16 {vr(AV+2,2)}, v{t[1]} offset:32
    v_lshrrev_b32 v{t[0]}, 4, v1
    v_and_b32 v{t[2]}, 15, v1
    v_lshlrev_b32 v{vB}, 9, v{t[0]}
    v_add_u32 v{vB}, {OZ}, v{vB}
    v_lshl_add_u32 v{vB+1}, v{t[2]}, 2, v{vB}
    v_add_u32 v{vB+1}, 32768, v{vB+1}
    v_lshl_add_u32 v{vB}, v{t[2]}, 4, v{vB}
    v_mul_u32_u24 v{vOut}, 1152, v{t[2]}
    v_lshl_add_u32 v{vOut}, v{t[0]}, 3, v{vOut}
    v_add_u32 v{t[2]}, 2048, v{vB+1}
    """)
    GA, OM = 60, 68
    for T in range(2):
        g = vG + T
        a(f"""
        v_cvt_pk_bf16_f32 v{g}, v{g}, v{g}
        v_and_b32 v{g}, 0xffff0000, v{g}
        v_mul_f32 v{g}, {fbits(-L_HI)}, v{g}
        v_exp_f32 v{g}, v{g}
        s_nop 0
        v_add_f32 v{g}, 1.0, v{g}
        v_rcp_f32 v{g}, v{g}
        s_nop 0
        v_cvt_pk_bf16_f32 v{g}, v{g}, v{g}
        v_and_b32 v{g}, 0xffff0000, v{g}
        v_sub_f32 v{OM+T}, 1.0, v{g}
        v_cvt_pk_bf16_f32 v{OM+T}, v{OM+T}, v{OM+T}
        v_and_b32 v{OM+T}, 0xffff0000, v{OM+T}
        """)
    for i in range(8): a(f"v_mov_b32 v{ACC3+i}, 0")
    a("s_waitcnt lgkmcnt(0)")
    for T in range(2):
        for h in range(2):
            a(f"v_lshlrev_b32 v{GA+4*T+2*h}, 16, v{AV+2*T+h}\nv_and_b32 v{GA+4*T+2*h+1}, 0xffff0000, v{AV+2*T+h}")
        for i in range(4): a(f"v_mul_f32 v{GA+4*T+i}, v{vG+T}, v{GA+4*T+i}")
    srd(a, R_A, P_OUT, X_BYTES)
    Lscan, Lall = a.label("scan"), a.label("all")
    a(f"""
    s_mul_i32 s{sT}, s{sQT3}, {32*1152}
    s_lshl_b32 s{sT2}, s{sK0}, 5
    s_add_u32 s{sK0}, s{sT}, s{sT2}
    s_add_u32 s{sK1}, s{sK0}, {16*1152}
    v_mov_b32 v{t[0]}, {CNT}
    s_mov_b32 s74, 0
    s_mov_b32 s{S_SPIN}, {SPIN_MAX}
    s_waitcnt vmcnt(0)
    s_setprio 2
    {Lscan}:
    ds_read_b32 v{t[1]}, v{t[0]} offset:{C_F}
    s_sub_u32 s{S_SPIN}, s{S_SPIN}, 1
    s_cbranch_scc1 {Lall}
    s_waitcnt lgkmcnt(0)
    v_readfirstlane_b32 s75, v{t[1]}
    s_andn2_b32 s76, s75, s74
    s_cbranch_scc1 {Lscan}_n
    s_sleep 1
    s_branch {Lscan}
    {Lscan}_n:
    s_mov_b32 s74, s75
    """)
    for g in range(8):
        L = a.label("grp")
        a(f"s_bitcmp0_b32 s76, {g}\ns_cbranch_scc1 {L}")
        for n in range(4):
            a(f"ds_read_b128 {vr(FB3+4*n,4)}, v{vB} offset:{(2*g+(n>>1))*2048 + (n&1)*256}")
        for n in range(4):
            T = n & 1
            a(f"s_waitcnt lgkmcnt({3-n})\nv_mfma_f32_16x16x32_bf16 {vr(ACC3+4*T,4)}, {vr(FA3[2*g+(n>>1)],4)}, {vr(FB3+4*n,4)}, {vr(ACC3+4*T,4)}")
        a(f"{L}:")
    a(f"s_cmp_lg_u32 s74, 0xff\ns_cbranch_scc1 {Lscan}\n{Lall}:")
    a.stamp(21)
    for n in range(4):
        va = vB + 1 if n < 2 else t[2]; T = n & 1; d = FB3 + 4 * n
        a(f"ds_read2_b32 {vr(d,2)}, v{va} offset0:{16*T} offset1:{16*T+32}")
        a(f"ds_read2_b32 {vr(d+2,2)}, v{va} offset0:{16*T+64} offset1:{16*T+96}")
    for n in range(4):
        T = n & 1
        a(f"s_waitcnt lgkmcnt({6-2*n})\nv_mfma_f32_16x16x32_bf16 {vr(ACC3+4*T,4)}, {vr(FA3[16+(n>>1)],4)}, {vr(FB3+4*n,4)}, {vr(ACC3+4*T,4)}")
    a("s_nop 6")
    for T in range(2):
        for i in range(4): a(f"v_fmac_f32 v{GA+4*T+i}, v{OM+T}, v{ACC3+4*T+i}")
        a(f"""
        v_cvt_pk_bf16_f32 v{8+2*T}, v{GA+4*T}, v{GA+4*T+1}
        v_cvt_pk_bf16_f32 v{9+2*T}, v{GA+4*T+2}, v{GA+4*T+3}
        buffer_store_dwordx2 {vr(8+2*T,2)}, v{vOut}, s[{R_A}:{R_A+3}], s{sK0 if T == 0 else sK1} offen
        """)
    a(f"s_branch {Lend}")
    Lpl, Lpc, Lpd = a.label("pl"), a.label("pc"), a.label("pd")
    a(f"{Lp9}:")
    lds_spin(a, t[0], t[1], 4, sT, off=C_E + 4)
    lds_spin(a, t[0], t[1], 4, sT, off=C_E + 8)
    a(f"""
    s_setprio 3
    s_sub_u32 s77, s{S_WAVE}, 9
    v_lshrrev_b32 v{t[2]}, 2, v1
    v_mul_u32_u24 v{t[2]}, 12, v{t[2]}
    v_and_b32 v{t[3]}, 3, v1
    s_lshl_b32 s{sT}, s77, 2
    v_add3_u32 v{t[2]}, v{t[2]}, v{t[3]}, s{sT}
    s_lshr_b32 s{sT}, s{sQT3}, 1
    s_lshl_b32 s{sT}, s{sT}, 12
    s_add_u32 s{sT}, s{sT}, {FL_O}
    v_lshl_add_u32 v{t[2]}, v{t[2]}, 7, s{sT}
    s_cmp_eq_u32 s77, 2
    s_movk_i32 s74, 0xfff
    s_cselect_b32 s74, 0xff, s74
    s_mov_b32 s75, 0
    s_mul_i32 s78, s{sQT3}, {36*1024}
    s_add_u32 s78, s78, {OF_OFF}
    v_mov_b32 v{t[0]}, {CNT}
    s_mov_b32 s{S_SPIN}, {SPIN_MAX}
    {Lpl}:
    s_mov_b32 exec_lo, s74
    s_mov_b32 exec_hi, 0
    buffer_load_dword v{t[3]}, v{t[2]}, {WS}, 0 offen sc1
    s_waitcnt vmcnt(0)
    v_cmp_ne_u32 vcc, s{S_TAG}, v{t[3]}
    s_mov_b64 exec, -1
    s_sub_u32 s{S_SPIN}, s{S_SPIN}, 1
    s_cselect_b32 vcc_lo, 0, vcc_lo
    s_orn2_b32 s76, vcc_lo, s74
    s_mov_b32 s75, 0
    """)
    for i in range(3):
        L = a.label("og")
        a(f"""
        s_and_b32 s{sT}, s76, {0xf << (4*i)}
        s_cbranch_scc1 {L}
        s_andn2_b32 s74, s74, {0xf << (4*i)}
        s_add_u32 s{sT}, s77, {3*i}
        s_bitset1_b32 s75, s{sT}
        s_lshl_b32 s{sT2}, s{sT}, 12
        s_add_u32 m0, s{sT2}, {OZ}
        s_add_u32 s{sT2}, s{sT2}, s78
        """)
        for n in range(4):
            a(f"buffer_load_dwordx4 v{vL16}, {WS}, s{sT2} offen offset:{1024*n}{LD} lds")
        a(f"""
        s_lshl_b32 s{sT2}, s{sT}, 9
        s_add_u32 m0, s{sT2}, {OZ + 32768}
        s_add_u32 s{sT2}, s{sT2}, s78
        s_add_u32 s{sT2}, s{sT2}, 32768
        s_mov_b64 exec, 0xffffffff
        buffer_load_dwordx4 v{vL16}, {WS}, s{sT2} offen{LD} lds
        s_mov_b64 exec, -1
        {L}:
        """)
    a(f"""
    s_cmp_eq_u32 s75, 0
    s_cbranch_scc1 {Lpc}
    v_mov_b32 v{t[1]}, s75
    s_mov_b64 exec, 1
    s_waitcnt vmcnt(0)
    ds_or_b32 v{t[0]}, v{t[1]} offset:{C_F}
    s_mov_b64 exec, -1
    s_cmp_eq_u32 s74, 0
    s_cbranch_scc0 {Lpl}
    """)
    a.stamp(20)
    a(f"""
    s_branch {Lend}
    {Lpc}:
    s_sleep {os.environ.get('OSLEEP', '3')}
    s_branch {Lpl}
    """)
    a(f"""{Lfin}:
    v_mov_b32 v{O1+10}, v{O0+10}
    s_lshl_b32 s{sK0}, s{sQt}, 5
    s_add_u32 s{sK0}, s{sK0}, s{sHd}
    v_permlane32_swap_b32 v{O0+10}, v{O1+10}
    s_lshl_b32 s{sK0}, s{sK0}, 7
    s_add_u32 s{sK0}, s{sK0}, {FL_O}
    s_mul_i32 s{sQt}, s{sQt}, {72*1024}
    s_add_u32 s{sQt}, s{sQt}, {OF_OFF}
    s_lshl_b32 s{sT}, s{sHd}, 7
    s_add_u32 s{sK1}, s{sQt}, s{sT}
    s_add_u32 s{sK1}, s{sK1}, 32768
    s_lshl_b32 s{sT}, s{sHd}, 10
    s_add_u32 s{sQt}, s{sQt}, s{sT}
    s_waitcnt lgkmcnt(2)
    """)
    for i in range(8): a(f"v_add_f32 v{O0+i}, v{O0+i}, v{8+i}")
    a("s_waitcnt lgkmcnt(0)")
    for i in range(8): a(f"v_add_f32 v{O1+i}, v{O1+i}, v{16+i}")
    a.c("softmax ran without max subtraction: valid only if the row sums stayed in a safe range, else redo with the true max")
    a(f"""
    L_norm:
    v_rcp_f32 v{t[0]}, v{O0+10}
    v_rcp_f32 v{t[1]}, v{O1+10}
    v_min_f32 v{t[2]}, v{O0+10}, v{O1+10}
    v_max_f32 v{t[3]}, v{O0+10}, v{O1+10}
    v_cmp_le_f32 s[74:75], {fbits(2.0**-40) if False else 's72'}, v{t[2]}
    v_cmp_ge_f32 s[76:77], s73, v{t[3]}
    v_cmp_gt_u32 vcc, 32, v1
    """)
    for X, O in enumerate((O0, O1)):
        for i in range(8): a(f"v_mul_f32 v{O+i}, v{O+i}, v{t[X]}")
    a(f"""
    v_cndmask_b32 v{t[0]}, v{t[1]}, v{t[0]}, vcc
    s_and_b64 s[74:75], s[74:75], s[76:77]
    v_mul_f32 v{O0+8}, v{O0+8}, v{t[0]}
    v_mul_f32 v{O0+9}, v{O0+9}, v{t[0]}
    """)
    for X, O in enumerate((O0, O1)):
        for i in range(4): a(f"v_cvt_pk_bf16_f32 v{8+4*X+i}, v{O+2*i}, v{O+2*i+1}")
    a(f"v_cvt_pk_bf16_f32 v16, v{O0+8}, v{O0+9}")
    a(f"""
    v_add_f32 v{t[2]}, v{O0+8}, v{O0+9}
    """)
    for i in range(0, 8, 2):
        a(f"v_add3_f32 v{t[2]}, v{t[2]}, v{O0+i}, v{O0+i+1}" if False else f"v_add_f32 v{O0+i}, v{O0+i}, v{O0+i+1}\nv_add_f32 v{O1+i}, v{O1+i}, v{O1+i+1}")
    a(f"""
    v_add_f32 v{O0}, v{O0}, v{O0+2}
    v_add_f32 v{O0+4}, v{O0+4}, v{O0+6}
    v_add_f32 v{O1}, v{O1}, v{O1+2}
    v_add_f32 v{O1+4}, v{O1+4}, v{O1+6}
    v_add_f32 v{O0}, v{O0}, v{O0+4}
    v_add_f32 v{O1}, v{O1}, v{O1+4}
    v_add_f32 v{t[2]}, v{t[2]}, v{O0}
    v_add_f32 v{t[2]}, v{t[2]}, v{O1}
    v_and_b32 v{t[3]}, 31, v1
    v_cmp_class_f32 vcc, v{t[2]}, s64
    v_lshrrev_b32 v{t[1]}, 5, v1
    v_mul_u32_u24 v{t[1]}, {36*1024}, v{t[1]}
    s_and_b64 s[74:75], s[74:75], vcc
    s_or_b64 s[74:75], s[74:75], s[62:63]
    v_lshl_add_u32 v{t[3]}, v{t[3]}, 2, v{t[1]}
    s_cmp_eq_u64 s[74:75], -1
    s_cbranch_scc0 L_fallback
    buffer_store_dwordx4 v[8:11], v{vL16}, {WS}, s{sQt} offen{ST}
    s_add_u32 s{sQt}, s{sQt}, {36*1024}
    buffer_store_dwordx4 v[12:15], v{vL16}, {WS}, s{sQt} offen{ST}
    buffer_store_dword v16, v{t[3]}, {WS}, s{sK1} offen{ST}
    """)
    a.stamp(19)
    a(f"v_mov_b32 v{t[0]}, s{S_TAG}\nv_lshlrev_b32 v{t[1]}, 2, v1\ns_mov_b64 exec, 0xffff\ns_waitcnt vmcnt(0)\nbuffer_store_dword v{t[0]}, v{t[1]}, {WS}, s{sK0} offen sc1\ns_mov_b64 exec, -1")
    a.stamp(20)
    a(f"""
    s_lshl_b32 s{sT}, s2, 4
    s_add_u32 s{sT}, s{sT}, s{S_WAVE}
    s_cmp_lg_u32 s{sT}, 12
    s_cbranch_scc1 {Lend}
    s_mov_b32 s{sT2}, {FL_OFF}
    """)
    flag_store(a, t[0], sT2)
    a(f"{Lend}:")
    def cold():
        a("L_fallback:")
        a(f"s_mov_b32 s82, {CNT+12}")
        lds_spin(a, t[0], t[1], 4, sT, saddr=82, off=C_E)
        fallback(a, r, t, vL16, sKV, sQP, sT, sT2)
        a(f"""
        v_cmp_gt_u32 vcc, 32, v1
        s_mov_b64 s[62:63], -1
        s_nop 0
        v_cndmask_b32 v{O0+8}, v{O1+8}, v{O0+8}, vcc
        v_cndmask_b32 v{O0+9}, v{O1+9}, v{O0+9}, vcc
        s_branch L_norm
        """)
    return cold

def fallback(a, r, t, vL16, sKV, sQP, sT, sT2):
    S, NM = r.S[0], r.S[1]
    sI, sP, sLds = 76, 77, 82
    vM, vKxo = r.aK, r.aKx
    a(f"""
    s_lshl_b32 s{sT}, s{sQP}, 11
    s_add_u32 s{sLds}, s{sT}, {REG_B + 3*BLK}
    v_and_b32 v{vKxo}, 31, v1
    v_lshlrev_b32 v{vKxo}, 3, v{vKxo}
    v_mov_b32 v{r.Kx+1}, 0
    """)
    for i in range(4): a(f"v_add_u32 v{r.aV+i}, s{sT}, v{r.aV+i}")
    for X in range(2):
        O = r.O[X]
        Lp, Lt, Lp2, Lnx, Ldn = a.label("fbpass"), a.label("fbtile"), a.label("fbp2"), a.label("fbnx"), a.label("fbdone")
        a(f"v_mov_b32 v{vM}, 0xff800000\ns_mov_b32 s{sP}, 0")
        for i in range(16): a(f"v_mov_b32 v{NM+i}, 0\nv_mov_b32 v{O+i}, 0")
        a(f"""{Lp}:
        s_mov_b32 s{sI}, 0
        {Lt}:
        s_lshr_b32 s{sT}, s{sI}, 3
        s_mul_i32 s{sT}, s{sT}, {BLK}
        s_add_u32 s{sT}, s{sT}, s{sKV}
        s_and_b32 s{sT2}, s{sI}, 7
        s_lshl_b32 s78, s{sT2}, 10
        s_add_u32 s78, s78, s{sT}
        buffer_load_dwordx4 {vr(r.K,4)}, v{vL16}, {WS}, s78 offen{LD}
        s_and_b32 s78, s{sI}, 6
        s_lshl_b32 s78, s78, 7
        s_and_b32 s79, s{sI}, 1
        s_lshl_b32 s79, s79, 2
        s_add_u32 s78, s78, s79
        s_add_u32 s78, s78, s{sT}
        s_add_u32 s78, s78, {KX_OFF}
        buffer_load_dword v{r.Kx}, v{vKxo}, {WS}, s78 offen{LD}
        s_mul_i32 s78, s{sT2}, 1280
        s_add_u32 s78, s78, s{sT}
        s_add_u32 s78, s78, {V_OFF}
        s_mov_b32 m0, s{sLds}
        s_nop 0
        buffer_load_dwordx4 v{vL16}, {WS}, s78 offen{LD} lds
        s_mov_b64 exec, 0xffff
        buffer_load_dwordx4 v{vL16}, {WS}, s78 offen offset:1024{LD} lds
        s_mov_b64 exec, -1
        s_waitcnt vmcnt(0)
        v_mfma_f32_32x32x8_bf16 {vr(S,16)}, {vr(r.Kx,2)}, {vr(r.Qx[X],2)}, {vr(NM,16)}
        v_mfma_f32_32x32x16_bf16 {vr(S,16)}, {vr(r.K,4)}, {vr(r.Qm[X],4)}, {vr(S,16)}
        ds_read_b64_tr_b16 {vr(r.V0,2)}, v{r.aV}
        ds_read_b64_tr_b16 {vr(r.V0+2,2)}, v{r.aV+1}
        ds_read_b64_tr_b16 {vr(r.V1,2)}, v{r.aV+2}
        ds_read_b64_tr_b16 {vr(r.V1+2,2)}, v{r.aV+3}
        s_waitcnt lgkmcnt(0)
        s_nop 15
        s_cmp_lg_u32 s{sP}, 0
        s_cbranch_scc1 {Lp2}
        """)
        for i in range(8): a(f"v_max3_f32 v{vM}, v{S+2*i}, v{S+2*i+1}, v{vM}")
        a(f"s_branch {Lnx}\n{Lp2}:")
        E(a, S, 0, 16)
        a(f"""
        s_nop 1
        v_smfmac_f32_32x32x32_bf16 {vr(O,16)}, {vr(r.V0,4)}, {vr(S,8)}, v{r.idx}
        v_smfmac_f32_32x32x32_bf16 {vr(O,16)}, {vr(r.V1,4)}, {vr(S+8,8)}, v{r.idx}
        {Lnx}:
        s_add_u32 s{sI}, s{sI}, 1
        s_cmp_lt_u32 s{sI}, 64
        s_cbranch_scc1 {Lt}
        s_cmp_lg_u32 s{sP}, 0
        s_cbranch_scc1 {Ldn}
        v_mov_b32 v{t[2]}, v{vM}
        s_nop 1
        v_permlane32_swap_b32 v{vM}, v{t[2]}
        s_nop 1
        v_max_f32 v{vM}, v{vM}, v{t[2]}
        """)
        for i in range(16): a(f"v_sub_f32 v{NM+i}, 0, v{vM}")
        a(f"""
        s_mov_b32 s{sP}, 1
        s_branch {Lp}
        {Ldn}:
        s_nop 15
        """)
```

```python
from asmlib import *
from layout import *
import math, struct, os
EXP = os.environ.get('EXP', '').split(',')

S_WAVE = 3
P_U, P_LA, P_AI, P_CR, P_CI, P_DT, P_D = 16, 18, 20, 22, 24, 26, 28
P_W, P_WO, P_G, P_OUT, P_DBG, P_WS = 32, 34, 36, 38, 40, 42
R_X, R_W, R_WS, R_A, R_B, R_C, R_D = 44, 48, 52, 56, 60, 64, 68
S_TAG = 30
S_SPIN = 31
S_DV = 70
S_FQ = 67
S_C2 = 68
S_CB = 71
WS = f"s[{R_WS}:{R_WS+3}]"
ST = " sc1"
LD = " sc1"

SLOT = 32768
KG_BASE = 4 * SLOT
KG_STRIDE = 4608
GT = KG_BASE + 6 * KG_STRIDE
CNT = 163328
C_RDY, C_1, C_2, C_Q, C_S, C_O, C_F, C_E, C_P = 0, 16, 32, 48, 64, 72, 76, 80, 96
C_FA = 68
C_TG = 224
C_Y, C_A, C_FREE, C_YR, C_KV = 136, 140, 144, 160, 192
VM_Y = 0
REG_B = 4 * BLK
CP = 4160
CH = 4 * CP + 512 + 4096
UOFF = 4 * CP
CA = 3 * SLOT
QST = REG_B
assert CA + 3 * CH <= CNT and CA + 2 * CH <= GT and QST + 9216 <= CA
NBAR1 = 9
UK = int(os.environ.get('UK', '0'))
LEAD = 3 if 'lead3' in EXP else 2
SPIN_MAX = 1 << 20

def chan(a, d, scs):
    a(f"s_lshl_b32 s{d}, s{scs}, 8\ns_add_u32 s{d}, s{d}, s{S_CB}\ns_cmp_eq_u32 s{scs}, 2\ns_cselect_b32 s{d}, s{S_C2}, s{d}")

def area(a, d, scs):
    a(f"s_mul_i32 s{d}, s{scs}, {CH}\ns_add_u32 s{d}, s{d}, {CA}")

def srd(a, r, p, nbytes):
    a(f"s_mov_b32 s{r}, s{p}\ns_mov_b32 s{r+1}, s{p+1}\ns_mov_b32 s{r+2}, {nbytes}\ns_mov_b32 s{r+3}, 0x20000")

LOG2E = 1.4426950408889634
def f32r(x): return struct.unpack("<f", struct.pack("<f", x))[0]
L_HI = f32r(LOG2E); L_LO = f32r(LOG2E - L_HI)
I2PI = 1.0 / (2 * math.pi)
I_HI = f32r(I2PI); I_LO = f32r(I2PI - I_HI)
LN2 = math.log(2.0)

def lds_inc(a, va, vb, saddr=None, off=0, rtn=None):
    if saddr is None: a(f"v_mov_b32 v{va}, {CNT}")
    else: a(f"v_mov_b32 v{va}, s{saddr}")
    a(f"v_mov_b32 v{vb}, 1\ns_mov_b64 exec, 1")
    if rtn is None:
        a(f"ds_add_u32 v{va}, v{vb} offset:{off}\ns_mov_b64 exec, -1")
    else:
        a(f"ds_add_rtn_u32 v{vb}, v{va}, v{vb} offset:{off}\ns_mov_b64 exec, -1\ns_waitcnt lgkmcnt(0)\nv_readfirstlane_b32 s{rtn}, v{vb}")

def lds_spin(a, va, vb, target, stmp, saddr=None, off=0):
    L, Ld = a.label("lspin"), a.label("lsdone")
    if saddr is None: a(f"v_mov_b32 v{va}, {CNT}")
    else: a(f"v_mov_b32 v{va}, s{saddr}")
    a(f"""
    s_mov_b32 s{S_SPIN}, {SPIN_MAX}
    {L}:
    ds_read_b32 v{vb}, v{va} offset:{off}
    s_waitcnt lgkmcnt(0)
    v_readfirstlane_b32 s{stmp}, v{vb}
    s_cmp_ge_u32 s{stmp}, {target}
    s_cbranch_scc1 {Ld}
    s_sleep {os.environ.get('LSLEEP', '1')}
    s_sub_u32 s{S_SPIN}, s{S_SPIN}, 1
    s_cbranch_scc0 {L}
    {Ld}:
    """)

def flag_line(a, vt, va, soff):
    a(f"""
    v_mov_b32 v{vt}, s{S_TAG}
    v_lshlrev_b32 v{va}, 2, v1
    s_mov_b64 exec, {os.environ.get('FLEX', '0xffff')}
    buffer_store_dword v{vt}, v{va}, {WS}, s{soff} offen sc1
    s_mov_b64 exec, -1
    """)

def flag_store(a, vt, soff):
    a(f"""
    v_mov_b32 v{vt}, s{S_TAG}
    s_mov_b64 exec, 1
    buffer_store_dword v{vt}, off, {WS}, s{soff} sc1
    s_mov_b64 exec, -1
    """)

def poll_issue(a, vd, n, voff, off):
    w = {1: "dword", 4: "dwordx4"}[n]
    a(f"buffer_load_{w} {vr(vd,n)}, v{voff}, {WS}, 0 offen offset:{off & 4095} sc1" if off < 4096 else
      f"s_movk_i32 s{S_SPIN}, {off}\nbuffer_load_{w} {vr(vd,n)}, v{voff}, {WS}, s{S_SPIN} offen sc1")

def poll_wait(a, vd, n, voff, soff_or_imm, issued=False):
    L, Lc, Ld = a.label("poll"), a.label("pollchk"), a.label("polld")
    w = {1: "dword", 4: "dwordx4"}[n]
    a(f"s_mov_b32 s{S_SPIN}, {SPIN_MAX}")
    if issued: a(f"s_branch {Lc}")
    a(f"""
    {L}:
    buffer_load_{w} {vr(vd,n)}, v{voff}, {WS}, 0 offen offset:{soff_or_imm} sc1
    {Lc}:
    s_waitcnt vmcnt(0)
    """)
    if n == 4:
        a(f"""
        v_xor_b32 v{vd}, s{S_TAG}, v{vd}
        v_xor_b32 v{vd+1}, s{S_TAG}, v{vd+1}
        v_xor_b32 v{vd+2}, s{S_TAG}, v{vd+2}
        v_xor_b32 v{vd+3}, s{S_TAG}, v{vd+3}
        v_or3_b32 v{vd}, v{vd}, v{vd+1}, v{vd+2}
        v_or_b32 v{vd}, v{vd}, v{vd+3}
        v_cmp_ne_u32 vcc, 0, v{vd}
        """)
    else:
        a(f"v_cmp_ne_u32 vcc, s{S_TAG}, v{vd}")
    a(f"""
    s_cbranch_vccz {Ld}
    s_sleep {os.environ.get('PSLEEP', '6')}
    s_sub_u32 s{S_SPIN}, s{S_SPIN}, 1
    s_cbranch_scc0 {L}
    {Ld}:
    """)

class Lgkm:
    def __init__(self, a): self.a = a; self.q = []; self.done = 0
    def load(self, txt, regs=()):
        self.a(txt); self.q.append(set(regs))
    def need(self, regs):
        regs = set(regs); last = -1
        for i, s in enumerate(self.q):
            if s & regs: last = i
        if last >= self.done:
            n = min(len(self.q) - 1 - last, 15)
            self.a(f"s_waitcnt lgkmcnt({n})")
            self.done = len(self.q) - n

def rng(b, n): return range(b, b + n)

sRB, sCT, sJ0 = 4, 5, 11

KG_T = [120, 121, 122, 123, 124, 125]
KG_C = 126
sKU, sKC = 65, 66
YB, YS = 32768, 32 * 272

def head(a, name, endlabel, Lkg, Lg):
    Lnp, Lnk = a.label("nopf"), a.label("nokg")
    t = KG_T
    a(f"""
    s_cmp_ge_u32 s2, 256
    s_cbranch_scc1 {endlabel}
    s_load_dwordx16 s[16:31], s[0:1], 0
    s_load_dwordx8 s[32:39], s[0:1], 64
    s_load_dwordx4 s[40:43], s[0:1], 96
    v_lshrrev_b32 v3, 6, v0
    v_and_b32 v1, 63, v0
    v_readfirstlane_b32 s{S_WAVE}, v3
    s_getpc_b64 s[8:9]
    L_pc:
    s_lshr_b32 s7, s2, 3
    s_and_b32 s{S_CB}, s2, 0xc0
    s_and_b32 s6, s7, 7
    s_or_b32 s{S_CB}, s{S_CB}, s6
    s_and_b32 s6, s2, 7
    s_lshl3_add_u32 s{S_CB}, s6, s{S_CB}
    s_lshr_b32 s{sRB}, s6, 1
    s_and_b32 s10, s7, 3
    s_lshl2_add_u32 s{sRB}, s{sRB}, s10
    s_and_b32 s{sCT}, s6, 1
    s_lshr_b32 s12, s7, 2
    s_lshl3_add_u32 s{sCT}, s{sCT}, s12
    s_mul_i32 s{S_C2}, s{sCT}, 43
    s_lshr_b32 s{S_C2}, s{S_C2}, 7
    s_lshl4_add_u32 s{S_C2}, s{S_C2}, s{sRB}
    s_addk_i32 s{S_C2}, 480
    s_bitcmp1_b32 0x9240, s{sCT}
    s_cselect_b32 s{S_C2}, s{S_C2}, 576
    s_cmp_lg_u32 s{S_WAVE}, 0
    s_cbranch_scc1 {Lnp}
    s_and_b32 s6, s7, 3
    s_lshl_b32 s6, s6, 13
    v_lshl_add_u32 v3, v1, 7, s6
    v_min_u32 v3, {endlabel}-L_pc, v3
    global_load_dword v3, v3, s[8:9]
    v_lshlrev_b32 v4, 2, v1
    v_add_u32 v4, {CNT}, v4
    v_mov_b32 v5, 0
    ds_write_b32 v4, v5
    {Lnp}:
    s_movk_i32 s{sKC}, 576
    s_mov_b32 s6, 0xcf3f
    s_bitcmp0_b32 s6, s{S_WAVE}
    s_cbranch_scc1 {Lnk}
    s_and_b32 s{sKU}, s{S_WAVE}, 7
    s_sub_u32 s6, s{sKU}, 2
    s_cmp_ge_u32 s{sKU}, 6
    s_cselect_b32 s{sKU}, s6, s{sKU}
    s_lshr_b32 s{sKC}, s{sKU}, 1
    s_lshl_b32 s{sKC}, s{sKC}, 8
    s_add_u32 s{sKC}, s{sKC}, s{S_CB}
    s_cmp_ge_u32 s{sKU}, 4
    s_cselect_b32 s{sKC}, s{S_C2}, s{sKC}
    s_cmp_ge_u32 s{S_WAVE}, 8
    s_cbranch_scc1 {Lnk}
    s_min_u32 s6, s{sKC}, 575
    s_lshl_b32 s6, s6, 1
    v_mov_b32 v{t[4]}, s6
    s_and_b32 s5, s{sKU}, 1
    s_add_u32 s6, s6, s5
    s_lshl_b32 s6, s6, 7
    v_lshl_add_u32 v{t[0]}, v1, 1, s6
    s_waitcnt lgkmcnt(0)
    global_load_ushort v{t[3]}, v{t[4]}, s[{P_DT}:{P_DT+1}]
    global_load_ushort v{t[1]}, v{t[0]}, s[{P_LA}:{P_LA+1}]
    global_load_ushort v{t[2]}, v{t[0]}, s[{P_AI}:{P_AI+1}]
    global_load_ushort v{KG_C}, v{t[0]}, s[{P_CR}:{P_CR+1}]
    global_load_ushort v{KG_C+1}, v{t[0]}, s[{P_CI}:{P_CI+1}]
    s_branch {Lkg}
    {Lnk}:
    s_lshl1_add_u32 s{sJ0}, s10, s12
    s_sub_u32 s8, s{sJ0}, 9
    s_cmp_ge_u32 s{sJ0}, 9
    s_cselect_b32 s{sJ0}, s8, s{sJ0}
    s_cmp_lt_u32 s{S_WAVE}, 8
    s_cbranch_scc1 L_ld
    s_lshl_b32 s8, s{sCT}, 4
    s_add_u32 s8, s8, s{S_WAVE}
    s_cmp_eq_u32 s8, 13
    s_cbranch_scc1 L_gate_dma
    s_barrier
    s_branch {Lg}
    L_ld:
    """)

def fetch_tag(a, v):
    a(f"""
    s_load_dword s60, s[{P_WS}:{P_WS+1}], {FL_OFF}
    s_lshr_b32 s69, s{S_CB}, 1
    s_lshl_b32 s69, s69, 2
    s_load_dword s61, s[{P_D}:{P_D+1}], s69
    s_add_u32 s69, s69, 512
    s_load_dword s62, s[{P_D}:{P_D+1}], s69
    s_min_u32 s69, s{S_C2}, 575
    s_lshr_b32 s69, s69, 1
    s_lshl_b32 s69, s69, 2
    s_load_dword s63, s[{P_D}:{P_D+1}], s69
    v_mov_b32 v{v+4}, {CNT}
    s_waitcnt lgkmcnt(0)
    s_mul_i32 s60, s60, 0x9e3779b1
    s_add_u32 s60, s60, 0x7f4a7c15
    v_mov_b32 v{v}, s60
    v_mov_b32 v{v+1}, s61
    v_mov_b32 v{v+2}, s62
    v_mov_b32 v{v+3}, s63
    ds_write_b128 v{v+4}, {vr(v,4)} offset:{C_TG}
    s_waitcnt lgkmcnt(0)
    """)

def get_tag(a, va, vb):
    a(f"""
    s_and_b32 s69, s{S_WAVE}, 12
    s_add_u32 s69, s69, {CNT}
    v_mov_b32 v{va}, {CNT}
    v_mov_b32 v{vb}, s69
    ds_read_b32 v{va}, v{va} offset:{C_TG}
    ds_read_b32 v{vb}, v{vb} offset:{C_TG+4}
    s_waitcnt lgkmcnt(0)
    v_readfirstlane_b32 s{S_TAG}, v{va}
    v_readfirstlane_b32 s{S_DV}, v{vb}
    s_nop 1
    """)

def loader(a):
    sJ, sT, sCm, sAs, sLb, sInc, sXr = 6, 7, 8, 9, 10, 14, 15
    V = [4, 5, 6, 7]; t0, t1, t2, t3 = 8, 9, 10, 11
    Lx, Lc, Lsub, Lover, Lw, Lend = [a.label(x) for x in ("ldx", "ldc", "issue", "over", "ldw", "ldend")]
    a(f"""
    v_lshrrev_b32 v{t2}, 4, v1
    s_setprio 3
    s_mov_b32 s{R_X+3}, 0x20000
    s_mov_b32 s{sJ}, s{sJ0}
    s_cmp_eq_u32 s{S_WAVE}, 6
    s_cbranch_scc1 {Lx}
    v_and_b32 v{t0}, 15, v1
    v_lshlrev_b32 v{t1}, 2, v{t2}
    v_xor_b32 v{t0}, v{t0}, v{t1}
    v_lshrrev_b32 v{t1}, 2, v{t0}
    v_and_b32 v{t0}, 3, v{t0}
    v_cmp_eq_u32 vcc, 3, v{t1}
    v_mul_u32_u24 v{t1}, 9, v{t1}
    v_lshrrev_b32 v{t3}, 1, v{t0}
    v_add_u32 v{t1}, v{t1}, v{t3}
    v_lshl_add_u32 v{t1}, v{t0}, 1, v{t1}
    v_min_u32 v{t0}, 2, v{t0}
    v_mad_u32_u24 v{t0}, v{t0}, 9, 4
    v_cndmask_b32 v{t1}, v{t1}, v{t0}, vcc
    v_mul_u32_u24 v{t2}, 432, v{t2}
    s_mul_i32 s{sT}, s{sCT}, 27
    v_add3_u32 v{t1}, v{t1}, v{t2}, s{sT}
    v_lshlrev_b32 v{V[0]}, 3, v{t1}
    s_mov_b32 s72, {0xffffffff ^ (1<<15) ^ (1<<27)}
    s_mov_b32 s73, {0xffffffff ^ (1<<7) ^ (1<<19)}
    s_mov_b32 s{sCm}, {64*3456}
    s_mov_b32 s{sAs}, 55296
    s_movk_i32 s{sLb}, 16384
    s_movk_i32 s{sInc}, 12800
    s_mov_b32 s{sXr}, 0
    s_mov_b32 s{R_X+2}, {W_BYTES}
    s_waitcnt lgkmcnt(0)
    s_mov_b64 s[{R_X}:{R_X+1}], s[{P_W}:{P_W+1}]
    s_branch {Lc}
    {Lx}:
    v_lshrrev_b32 v{t0}, 3, v1
    s_lshl_b32 s{sT}, s{sRB}, 7
    v_add_u32 v{t1}, s{sT}, v{t0}
    v_mul_u32_u24 v{t1}, 1152, v{t1}
    v_and_b32 v{t3}, 7, v1
    v_xor_b32 v{t3}, v{t3}, v{t2}
    v_lshl_add_u32 v{V[0]}, v{t3}, 4, v{t1}
    s_mov_b64 s[72:73], -1
    s_movk_i32 s{sCm}, 128
    s_mov_b32 s{sAs}, 36864
    s_mov_b32 s{sLb}, 0
    s_movk_i32 s{sInc}, 8192
    s_mov_b32 s{sXr}, 64
    s_mov_b32 s{R_X+2}, {X_BYTES}
    s_waitcnt lgkmcnt(0)
    s_mov_b64 s[{R_X}:{R_X+1}], s[{P_U}:{P_U+1}]
    {Lc}:
    v_xor_b32 v{V[1]}, s{sXr}, v{V[0]}
    v_add_u32 v{V[1]}, s{sInc}, v{V[1]}
    s_lshl_b32 s{sInc}, s{sInc}, 1
    v_add_u32 v{V[2]}, s{sInc}, v{V[0]}
    v_add_u32 v{V[3]}, s{sInc}, v{V[1]}
    """)
    def issue(it):
        a(f"s_add_u32 m0, s{sLb}, {((-it) & 3) * SLOT}\ns_call_b64 s[12:13], {Lsub}")
    a.stamp(22)
    issue(0)
    a("s_barrier")
    a.stamp(23)
    for it in range(1, LEAD): issue(it)
    a(f"s_branch {Lover}\n{Lsub}:")
    a(f"s_mul_i32 s{sT}, s{sJ}, s{sCm}\ns_mov_b64 exec, s[72:73]")
    THR = int(os.environ.get('THR', '20')); THR1 = int(os.environ.get('THR1', '0'))
    for g in range(4):
        if THR: a(f"s_waitcnt vmcnt({THR})")
        for b in range(4):
            if THR1: a(f"s_waitcnt vmcnt({THR1})")
            a(f"buffer_load_dwordx4 v{V[b]}, s[{R_X}:{R_X+3}], s{sT} offen offset:{1024*b} lds")
        if g < 3:
            a(f"s_add_u32 m0, m0, 4096\ns_add_u32 s{sT}, s{sT}, s{sAs}")
    a(f"""
    s_mov_b64 exec, -1
    s_add_u32 s{sJ}, s{sJ}, 1
    s_cmp_eq_u32 s{sJ}, 9
    s_cselect_b32 s{sJ}, 0, s{sJ}
    s_setpc_b64 s[12:13]
    {Lover}:
    """)
    a.stamp(1)
    srd(a, R_WS, P_WS, WS_BYTES)
    a(f"""
    v_lshlrev_b32 v{t2}, 4, v1
    v_lshrrev_b32 v16, 4, v1
    v_bfe_u32 v17, v1, 2, 2
    v_lshl_add_u32 v18, v16, 3, v17
    v_bfe_u32 v19, v18, 1, 3
    v_bfe_u32 v17, v1, 1, 1
    v_xor_b32 v19, v19, v17
    v_lshlrev_b32 v19, 4, v19
    v_lshl_add_u32 v19, v18, 7, v19
    v_and_b32 v17, 1, v1
    v_lshl_add_u32 v19, v17, 3, v19
    s_and_b32 s74, s{sCT}, 8
    s_lshl_b32 s75, s74, 3
    v_xor_b32 v20, s75, v19
    v_xor_b32 v21, 32, v20
    v_and_b32 v17, 15, v1
    v_lshlrev_b32 v17, 6, v17
    v_lshl_add_u32 v17, v16, 4, v17
    s_lshl_b32 s74, s74, 10
    s_mul_i32 s75, s{sRB}, {36*4096}
    s_add_u32 s74, s74, s75
    s_add_u32 s74, s74, {UT_OFF}
    v_add_u32 v22, s74, v17
    """)
    def ut_task(it):
        skip = a.label("utskip")
        a(f"s_mov_b32 s78, 0\ns_cmp_lg_u32 s{S_WAVE}, 6\ns_cbranch_scc1 {skip}")
        if it == 1:
            a(f"s_and_b32 s74, s{sCT}, 7\ns_cmp_lg_u32 s74, 7\ns_cbranch_scc1 {skip}")
            a(f"s_add_u32 s74, s{sJ0}, 1\ns_cmp_eq_u32 s74, 9\ns_cselect_b32 s74, 0, s74\ns_lshl_b32 s74, s74, 14\nv_add_u32 v20, {3*SLOT}, v20\nv_add_u32 v21, {3*SLOT}, v21")
        else:
            a(f"s_lshl_b32 s74, s{sJ0}, 14")
        for m in range(2):
            for i in range(4):
                d = 24 + 32 * it + 16 * m + 4 * i
                a(f"ds_read_b64_tr_b16 {vr(d,2)}, v{20+m} offset:{4096*i}")
                a(f"ds_read_b64_tr_b16 {vr(d+2,2)}, v{21-m} offset:{4096*i + 512}")
            a("s_waitcnt lgkmcnt(0)")
            for i in range(4):
                d = 24 + 32 * it + 16 * m + 4 * i
                a(f"buffer_store_dwordx4 {vr(d,4)}, v22, {WS}, s74 offen offset:{1024*i}{ST}")
            if m == 0: a("s_add_u32 s74, s74, 4096\ns_mov_b32 s78, 1")
        a(f"{skip}:")
    assert LEAD == 2
    for k in range(9):
        left = min(LEAD - 1, 8 - k)
        if k in (UK + 1, UK + 2):
            L = a.label("w24")
            a(f"s_waitcnt vmcnt(24)\ns_cmp_eq_u32 s78, 1\ns_cbranch_scc1 {L}\ns_waitcnt vmcnt(16)\n{L}:")
        else:
            a(f"s_waitcnt vmcnt({16 * left})")
        if 'ldst' in EXP: a.stamp([24, 9, 10, 11, 12, 13, 26, 27, 28][k])
        a("s_barrier")
        n = k + LEAD
        if n <= 8: issue(n)
        if k == 7: get_tag(a, t0, t1)
        if k in (UK, UK + 1): ut_task(k - UK)
    a.stamp(2)

def wt_load(a, sF, sT, sD2, s8, s9, s10, t0, t1, t2, WL):
    skip = a.label("nowt")
    srd(a, R_A, P_WO, WO_BYTES)
    a(f"""
    s_cmp_ge_u32 s{sF}, 648
    s_cbranch_scc1 {skip}
    v_lshrrev_b32 v{t0}, 4, v1
    v_lshrrev_b32 v{t1}, 1, v{t0}
    v_mul_u32_u24 v{t1}, 20, v{t1}
    v_and_b32 v{t2}, 1, v{t0}
    v_lshl_add_u32 v{t1}, v{t2}, 3, v{t1}
    v_mad_u32_u24 v{t2}, v{t0}, 36, 8
    v_lshlrev_b32 v{t2}, 1, v{t2}
    s_mul_i32 s{s8}, s{sF}, 3641
    s_lshr_b32 s{s8}, s{s8}, 16
    s_mul_i32 s{s9}, s{s8}, 18
    s_sub_u32 s{s9}, s{sF}, s{s9}
    s_mul_i32 s{sT}, s{s9}, {36*1152}
    s_sub_u32 s{s10}, s{s9}, 16
    s_mul_i32 s{s10}, s{s10}, {288*1152}
    s_movk_i32 s{sD2}, {4*1152}
    s_cmp_ge_u32 s{s9}, 16
    s_cselect_b32 s{sT}, s{s10}, s{sT}
    s_cselect_b32 s{sD2}, {36*1152}, s{sD2}
    s_cselect_b64 vcc, -1, 0
    v_cndmask_b32 v{t1}, v{t1}, v{t2}, vcc
    v_mul_u32_u24 v{t1}, 1152, v{t1}
    v_and_b32 v{t2}, 15, v1
    v_lshl_add_u32 v{t1}, v{t2}, 1, v{t1}
    s_lshl_b32 s{s8}, s{s8}, 5
    s_add_u32 s{sT}, s{sT}, s{s8}
    s_add_u32 s{sD2}, s{sD2}, s{sT}
    """)
    for e in range(8):
        a(f"buffer_load_ushort v{WL+e}, v{t1}, s[{R_A}:{R_A+3}], s{sT if e < 4 else sD2} offen offset:{(e&3)*1152}")
    a(f"{skip}:")

def wt_store(a, sF, WL, vL16):
    skip = a.label("wtskip")
    a(f"s_cmp_ge_u32 s{sF}, 648\ns_cbranch_scc1 {skip}")
    for e in range(4):
        a(f"v_lshl_or_b32 v{WL+e}, v{WL+2*e+1}, 16, v{WL+2*e}")
    a(f"""
    s_lshl_b32 s{sF}, s{sF}, 10
    s_add_u32 s{sF}, s{sF}, {WT_OFF}
    buffer_store_dwordx4 {vr(WL,4)}, v{vL16}, {WS}, s{sF} offen{ST}
    {skip}:
    """)

def gemm_waves(a):
    sT, sU, sTP = 7, 12, 13
    R = Regs(4, 120)
    t0, t1, t2, t3 = [R.alloc() for _ in range(4)]
    vXa = [[R.alloc() for _ in range(4)]]
    vWa = [R.alloc()]
    vFr = R.alloc()
    vL16 = R.alloc()
    NB = 2
    FX = [[R.alloc(4, 4), R.alloc(4, 4)] for _ in range(NB)]
    FW = [R.alloc(4, 4) for _ in range(NB)]
    ACC = [R.alloc(16, 4), R.alloc(16, 4)]
    STG = FX[0][0]
    WL = R.alloc()
    vGa = [R.alloc()]
    Lnw, Lng = a.label("nowt"), a.label("nogate")
    vCn, vOne, CV = R.alloc(), R.alloc(), R.alloc(2, 2)
    vSt = R.alloc()
    a(f"""
    v_mov_b32 v{vCn}, {CNT}
    v_mov_b32 v{vOne}, 1
    s_and_b32 s{sU}, s{S_WAVE}, 3
    s_bfe_u32 s{sTP}, s{S_WAVE}, 0x10002
    v_lshlrev_b32 v{vL16}, 4, v1
    s_waitcnt lgkmcnt(0)
    """)
    a(f"s_lshl_b32 s83, s{sCT}, 4\ns_add_u32 s83, s83, s{sU}")
    Lnt, Lnu = a.label("notouch"), a.label("notlb")
    a(f"""
    s_cmp_lg_u32 s{S_WAVE}, 12
    s_cbranch_scc1 {Lnt}
    s_and_b32 s8, s{sCT}, 7
    s_add_u32 s8, s8, 8
    s_sub_u32 s9, s8, 9
    s_cmp_ge_u32 s8, 9
    s_cselect_b32 s8, s9, s8
    s_lshl_b32 s8, s8, 2
    s_and_b32 s9, s{sRB}, 3
    s_add_u32 s8, s8, s9
    s_mul_i32 s8, s8, {16*3456}
    s_mul_i32 s9, s{sCT}, 216
    s_add_u32 s8, s8, s9
    v_lshrrev_b32 v{t0}, 2, v1
    v_mul_u32_u24 v{t0}, 3456, v{t0}
    v_and_b32 v{t1}, 3, v1
    v_mul_u32_u24 v{t1}, 68, v{t1}
    v_add3_u32 v{t0}, v{t0}, v{t1}, s8
    global_load_dword v{WL}, v{t0}, s[{P_W}:{P_W+1}]
    """)
    fetch_tag(a, FX[0][0])
    a(f"{Lnt}:")
    a(f"""    v_and_b32 v{t0}, 31, v1
    v_lshrrev_b32 v{t1}, 5, v1
    v_bfe_u32 v{t2}, v1, 1, 3
    v_xor_b32 v{t2}, v{t2}, v{t1}
    v_lshlrev_b32 v{t2}, 4, v{t2}
    v_lshl_add_u32 v{t2}, v{t0}, 7, v{t2}
    s_lshl_b32 s{sT}, s{sTP}, 13
    v_add_u32 v{vXa[0][0]}, s{sT}, v{t2}
    """)
    for ks in range(1, 4):
        a(f"v_xor_b32 v{vXa[0][ks]}, {32*ks}, v{vXa[0][0]}")
    a(f"""
    v_bfe_u32 v{t0}, v1, 2, 2
    v_lshl_add_u32 v{t2}, v{t1}, 3, v{t0}
    v_lshlrev_b32 v{t2}, 8, v{t2}
    v_xor_b32 v{t0}, s{sU}, v{t0}
    v_lshl_add_u32 v{t2}, v{t0}, 6, v{t2}
    v_and_b32 v{t0}, 1, v1
    v_lshlrev_b32 v{t0}, 4, v{t0}
    v_and_b32 v{t3}, 2, v1
    v_lshl_add_u32 v{t0}, v{t3}, 2, v{t0}
    v_and_b32 v{t3}, 16, v1
    v_lshl_add_u32 v{t0}, v{t3}, 1, v{t0}
    v_lshlrev_b32 v{vWa[0]}, {28 if 'nooob' in EXP else 14}, v{t3}
    v_and_b32 v{t3}, 3, v1
    v_lshl_add_u32 v{t3}, v{t3}, 4, v{vWa[0]}
    s_cmp_eq_u32 s{sU}, 3
    s_cselect_b64 vcc, -1, 0
    v_cndmask_b32 v{t0}, v{t0}, v{t3}, vcc
    v_add_u32 v{vWa[0]}, v{t2}, v{t0}
    """)
    vVm, vQx, vKx, vVx = R.alloc(), R.alloc(), R.alloc(), R.alloc()
    sTile, sP, sTy, sHd, sO, sSc, sB = 10, 15, 74, 75, 76, 77, 78
    def epi_setup():
        a(f"""
        v_and_b32 v{t0}, 31, v1
        v_lshrrev_b32 v{t3}, 5, v1
        v_lshlrev_b32 v{vVm}, 5, v{t0}
        v_lshl_add_u32 v{vVm}, v{t3}, 4, v{vVm}
        v_and_b32 v{t1}, 4, v1
        v_xor_b32 v{t1}, 4, v{t1}
        v_lshlrev_b32 v{t1}, 5, v{t1}
        v_and_b32 v{t2}, 24, v1
        v_lshl_add_u32 v{t1}, v{t2}, 2, v{t1}
        v_and_b32 v{t2}, 3, v1
        v_lshl_add_u32 v{vVx}, v{t2}, 3, v{t1}
        v_lshlrev_b32 v{vQx}, 2, v{t0}
        v_lshlrev_b32 v{vKx}, 3, v{t0}
        s_lshl_b32 s{sTile}, s{sRB}, 1
        s_add_u32 s{sTile}, s{sTile}, s{sTP}
        s_lshl_b32 s{sTile}, s{sTile}, 1
        """)
        a(f"""
        s_mul_i32 s{sP}, s{sCT}, 3
        s_add_u32 s{sP}, s{sP}, s{sU}
        s_lshr_b32 s{sTy}, s{sP}, 4
        s_and_b32 s{sHd}, s{sP}, 15
        s_lshl_b32 s{sHd}, s{sHd}, 1
        s_cmp_eq_u32 s{sTy}, 0
        s_cselect_b32 s{sSc}, {fbits(QSCALE)}, 1.0
        s_lshr_b32 s79, s{sTile}, 3
        s_mul_i32 s79, s79, {BLK}
        s_mul_i32 s80, s{sHd}, {8*BLK}
        s_add_u32 s79, s79, s80
        s_add_u32 s79, s79, {KV_OFF}
        s_and_b32 s80, s{sTile}, 7
        s_lshl_b32 s81, s80, 10
        s_add_u32 s81, s81, s79
        s_mul_i32 s80, s80, 1280
        s_add_u32 s80, s80, s79
        s_add_u32 s80, s80, {V_OFF}
        s_lshl_b32 s79, s{sHd}, 6
        s_add_u32 s79, s79, s{sTile}
        s_lshl_b32 s79, s79, 10
        s_add_u32 s79, s79, {QF_OFF}
        s_mov_b32 s{sB}, {8*BLK}
        s_cmp_eq_u32 s{sTy}, 0
        s_cselect_b32 s{sO}, s79, s81
        s_cselect_b32 s{sB}, 0x10000, s{sB}
        s_movk_i32 s82, 1024
        s_cmp_eq_u32 s{sTy}, 2
        s_cselect_b32 s{sO}, s80, s{sO}
        s_cselect_b32 s82, 1280, s82
        s_cselect_b64 vcc, -1, 0
        v_cndmask_b32 v{vSt}, v{vL16}, v{vVm}, vcc
        s_lshl_b32 s9, s{sCT}, 4
        s_add_u32 s9, s9, s{sRB}
        s_lshl_b32 s9, s9, 7
        s_add_u32 s9, s9, {FL_Q}
        """)
    sN, sX, sG = 14, 8, 6
    slow = []
    epi_setup()
    XS = [(44, 45, 46), (47, 48, 49), (50, 51, 59)]
    def extras_setup():
        L = a.label("nx")
        a(f"s_cmp_lg_u32 s{sU}, 3\ns_cbranch_scc1 {L}")
        for p in range(3):
            sTp, sA, sBb = XS[p]
            a(f"""
            s_mul_i32 s{sP}, s{sCT}, 3
            s_add_u32 s{sP}, s{sP}, {p}
            s_lshr_b32 s{sTp}, s{sP}, 4
            s_and_b32 s{sHd}, s{sP}, 15
            s_lshl_b32 s{sHd}, s{sHd}, 1
            s_lshr_b32 s79, s{sTile}, 3
            s_mul_i32 s79, s79, {BLK}
            s_mul_i32 s80, s{sHd}, {8*BLK}
            s_add_u32 s79, s79, s80
            s_and_b32 s80, s{sTile}, 6
            s_lshl_b32 s80, s80, 7
            s_add_u32 s80, s80, {KV_OFF+KX_OFF}
            s_and_b32 s81, s{sTile}, 7
            s_mul_i32 s81, s81, 1280
            s_add_u32 s81, s81, {KV_OFF+V_OFF+1024}
            s_cmp_eq_u32 s{sTp}, 1
            s_cselect_b32 s80, s80, s81
            s_add_u32 s79, s79, s80
            s_lshl_b32 s80, s{sHd}, 6
            s_add_u32 s80, s80, s{sTile}
            s_lshl_b32 s80, s80, 7
            s_add_u32 s80, s80, {QX_OFF}
            s_mov_b32 s81, {8*BLK}
            s_cmp_eq_u32 s{sTp}, 0
            s_cselect_b32 s{sA}, s80, s79
            s_cselect_b32 s81, 0x2000, s81
            s_add_u32 s{sBb}, s{sA}, s81
            """)
        a(f"{L}:")
    assert ACC[1] + 16 == FX[0][0] + 56
    srd(a, R_WS, P_WS, WS_BYTES)
    extras_setup()
    kgen_y(a, FX[0][0])
    a.stamp(23)
    a('s_setprio 3')
    for tt in range(2):
        for i in range(16): a(f"v_mov_b32 v{ACC[tt]+i}, 0")
    a(f"""
    s_mov_b32 s{sN}, 1
    s_mov_b32 s{sX}, 0x18000
    s_mov_b32 s72, 0xffff0000
    s_mov_b32 s73, 0xffff0000
    v_lshrrev_b32 v{vFr}, 5, v1
    v_lshlrev_b32 v{vFr}, 4, v{vFr}
    v_add_u32 v{vFr}, {GT}, v{vFr}
    s_lshl_b32 s{sG}, s{sJ0}, 7
    v_add_u32 v{vGa[0]}, s{sG}, v{vFr}
    """)
    Lgate, Lj = a.label("gatel"), a.label("gj")
    def mainloop(gate):
        e = 1 if gate else 0
        Lloop = a.label("gloop")
        def Wrd(b, nk):
            a(f"ds_read_b64_tr_b16 {vr(FW[b],2)}, v{vWa[0]} offset:{16384+nk*4096}")
            a(f"ds_read_b64_tr_b16 {vr(FW[b]+2,2)}, v{vWa[0]} offset:{16384+nk*4096+1024}")
            if gate:
                a(f"s_mov_b64 exec, s[72:73]\nds_read_b128 {vr(FW[b],4)}, v{vGa[0]} offset:{32*nk}\ns_mov_b64 exec, -1")
        def step(ks, n, nk, mid=None):
            b = ks & 1
            a(f"s_waitcnt lgkmcnt({n})")
            a(f"v_mfma_f32_32x32x16_bf16 {vr(ACC[0],16)}, {vr(FW[b],4)}, {vr(FX[b][0],4)}, {vr(ACC[0],16)}")
            if mid: mid()
            if nk is not None: a(f"ds_read_b128 {vr(FX[b][0],4)}, v{vXa[0][nk]}")
            a(f"v_mfma_f32_32x32x16_bf16 {vr(ACC[1],16)}, {vr(FW[b],4)}, {vr(FX[b][1],4)}, {vr(ACC[1],16)}")
            if nk is not None:
                Wrd(b, nk)
                a(f"ds_read_b128 {vr(FX[b][1],4)}, v{vXa[0][nk]} offset:4096")
        a("s_barrier")
        a.stamp(1)
        for ks in range(2):
            Wrd(ks, ks)
            a(f"ds_read_b128 {vr(FX[ks][0],4)}, v{vXa[0][ks]}\nds_read_b128 {vr(FX[ks][1],4)}, v{vXa[0][ks]} offset:4096")
        a(f".p2align 3\n{Lloop}:")
        step(0, 4 + e, 2, mid=lambda: a(f"s_add_u32 s{sN}, s{sN}, 1\ns_add_u32 s{sG}, s{sG}, 128\ns_cmp_eq_u32 s{sG}, 1152\ns_cselect_b32 s{sG}, 0, s{sG}" if gate else f"s_add_u32 s{sN}, s{sN}, 1"))
        step(1, 4 + e, 3, mid=lambda: a(f"v_xor_b32 v{vXa[0][0]}, s{sX}, v{vXa[0][0]}\nv_xor_b32 v{vXa[0][1]}, s{sX}, v{vXa[0][1]}"))
        step(2, 4 + e, 0, mid=lambda: a(f"v_xor_b32 v{vWa[0]}, s{sX}, v{vWa[0]}\n" + (f"v_add_u32 v{vGa[0]}, s{sG}, v{vFr}\n" if gate else "") + "s_barrier"))
        step(3, 4 + e, 1, mid=lambda: a(f"v_xor_b32 v{vXa[0][2]}, s{sX}, v{vXa[0][2]}\nv_xor_b32 v{vXa[0][3]}, s{sX}, v{vXa[0][3]}"))
        a(f"s_xor_b32 s{sX}, s{sX}, 0x10000\ns_cmp_lt_u32 s{sN}, 9\ns_cbranch_scc1 {Lloop}")
        if 'early' in EXP:
            a(f"s_mov_b64 exec, 1\nds_add_u32 v{vCn}, v{vOne} offset:{C_FREE}\ns_mov_b64 exec, -1")
        step(0, 4 + e, 2); step(1, 4 + e, 3); step(2, 4 + e, None); step(3, 0, None)
    a(f"s_cmp_eq_u32 s83, 3\ns_cbranch_scc1 {Lgate}")
    mainloop(False)
    a(f"{Lj}:")
    a.stamp(3)
    def cold_gate():
        a(f"{Lgate}:")
        mainloop(True)
        a(f"s_branch {Lj}")
    Lx, Ldone, Lns = a.label("extras"), a.label("gdone"), a.label("noscale")
    a(f"s_setprio 3\ns_nop 6\ns_cmp_eq_u32 s{sU}, 3\ns_cbranch_scc1 {Lx}\ns_cmp_lg_u32 s{sTy}, 0\ns_cbranch_scc1 {Lns}")
    for tt in range(2):
        for i in range(16):
            a(f"v_mul_f32 v{ACC[tt]+i}, s{sSc}, v{ACC[tt]+i}")
    a(f"{Lns}:")
    for tt in range(2):
        for p in range(2):
            dst = FX[tt][p]
            for i in range(4):
                a(f"v_cvt_pk_bf16_f32 v{dst+i}, v{ACC[tt]+8*p+2*i}, v{ACC[tt]+8*p+2*i+1}")
            if p == 0:
                a(f"buffer_store_dwordx4 {vr(dst,4)}, v{vSt}, {WS}, s{sO} offen{ST}")
            else:
                a(f"s_add_u32 s79, s{sO}, s{sB}")
                a(f"buffer_store_dwordx4 {vr(dst,4)}, v{vSt}, {WS}, s79 offen{ST}")
        if tt == 0:
            a(f"s_add_u32 s{sO}, s{sO}, s82")
    a(f"s_branch {Ldone}")
    cold_gate()
    a(f"{Lx}:")
    a(f"v_mov_b32 v{STG+1}, 0x3f80\nv_mov_b32 v{STG+3}, 0x3f80")
    for p in range(3):
        half = p & 1
        rb = 4 * (p >> 1)
        sTp, sA, sBb = XS[p]
        LK, LV, LN = a.label("xk"), a.label("xv"), a.label("xn")
        a(f"""
        s_mov_b32 exec_lo, {0 if half else -1}
        s_mov_b32 exec_hi, {-1 if half else 0}
        s_cmp_eq_u32 s{sTp}, 1
        s_cbranch_scc1 {LK}
        s_cmp_eq_u32 s{sTp}, 2
        s_cbranch_scc1 {LV}
        """)
        for tt in range(2):
            for i in range(4):
                a(f"v_mul_f32 v{ACC[tt]+rb+i}, {fbits(QSCALE)}, v{ACC[tt]+rb+i}")
            a(f"v_cvt_pk_bf16_f32 v{STG+4+2*tt}, v{ACC[tt]+rb}, v{ACC[tt]+rb+1}")
            a(f"v_cvt_pk_bf16_f32 v{STG+5+2*tt}, v{ACC[tt]+rb+2}, v{ACC[tt]+rb+3}")
            a(f"buffer_store_dword v{STG+4+2*tt}, v{vQx}, {WS}, s{sA} offen offset:{128*tt}{ST}")
            a(f"buffer_store_dword v{STG+5+2*tt}, v{vQx}, {WS}, s{sBb} offen offset:{128*tt}{ST}")
        a(f"""
        s_branch {LN}
        {LK}:
        v_cvt_pk_bf16_f32 v{STG+4}, v{ACC[0]+rb}, v{ACC[0]+rb+1}
        v_cvt_pk_bf16_f32 v{STG+5}, v{ACC[1]+rb}, v{ACC[1]+rb+1}
        v_cvt_pk_bf16_f32 v{STG+6}, v{ACC[0]+rb+2}, v{ACC[0]+rb+3}
        v_cvt_pk_bf16_f32 v{STG+7}, v{ACC[1]+rb+2}, v{ACC[1]+rb+3}
        buffer_store_dwordx2 {vr(STG+4,2)}, v{vKx}, {WS}, s{sA} offen{ST}
        buffer_store_dwordx2 {vr(STG+6,2)}, v{vKx}, {WS}, s{sBb} offen{ST}
        s_branch {LN}
        {LV}:
        """)
        for tt in range(2):
            a(f"v_cvt_pk_bf16_f32 v{STG}, v{ACC[tt]+rb}, v{ACC[tt]+rb+1}")
            a(f"v_cvt_pk_bf16_f32 v{STG+2}, v{ACC[tt]+rb+2}, v{ACC[tt]+rb+3}")
            a(f"buffer_store_dwordx2 {vr(STG,2)}, v{vVx}, {WS}, s{sA} offen offset:{1280*tt}{ST}")
            a(f"buffer_store_dwordx2 {vr(STG+2,2)}, v{vVx}, {WS}, s{sBb} offen offset:{1280*tt}{ST}")
        a(f"{LN}:")
    Lnf = a.label("nofq")
    a(f"""
    s_cmp_lg_u32 s{sCT}, 0
    s_cbranch_scc1 {Ldone}
    s_lshl_b32 s79, s{sTile}, 7
    s_add_u32 s79, s79, {G_OFF}
    buffer_store_dword v{ACC[0]+8}, v{vQx}, {WS}, s79 offen{ST}
    buffer_store_dword v{ACC[1]+8}, v{vQx}, {WS}, s79 offen offset:128{ST}
    {Ldone}:
    s_mov_b64 exec, -1
    """)
    if 'early' not in EXP:
        a(f"s_mov_b64 exec, 1\nds_add_u32 v{vCn}, v{vOne} offset:{C_FREE}\ns_mov_b64 exec, -1")
    a.stamp(14)
    get_tag(a, t0, t1)
    a(f"s_mov_b32 s{S_FQ}, s9")
    publish_q(a, t0, t1, 8)
    a.stamp(4)

def publish_q(a, t0, t1, st):
    L = a.label("nofq")
    a("s_waitcnt vmcnt(0)")
    lds_inc(a, t0, t1, off=C_S, rtn=st)
    a(f"s_cmp_lg_u32 s{st}, 7\ns_cbranch_scc1 {L}")
    flag_line(a, t0, t1, S_FQ)
    a(f"{L}:")

class Seg:
    def __init__(self): self.items = []
    def __call__(self, s):
        for ln in s.split("\n"):
            ln = ln.strip()
            if not ln: continue
            op = ln.split()[0]
            if ln.startswith(";"): c = 0
            elif op in ("v_exp_f32", "v_sin_f32", "v_cos_f32", "v_rcp_f32"): c = 8
            elif op.startswith("v_mfma"): c = 40
            elif op.startswith("ds_"): c = 12
            elif op == "s_waitcnt": c = 60
            else: c = 4
            self.items.append((ln, c))
    nl = 0
    def label(self, base):
        Seg.nl += 1
        return f"L_sg{base}_{Seg.nl}"
    def must_barrier(self): self.items.append(("@BAR", 0))
    def nobar(self, on): self.items.append(("@NOBAR" if on else "@OKBAR", 0))
    def emit(self, a, nbar, after=lambda k: None):
        must = sum(1 for l, _ in self.items if l == "@BAR")
        total = sum(c for _, c in self.items)
        first = float(os.environ.get('KGFIRST', '0.9')) * total
        first = min(first, sum(c for _, c in self.items[:[l for l, _ in self.items].index('@BAR')]) + 1)
        per = (total - first) / (nbar - (1 if first else 0))
        used = 0; acc = per - first if first else 0; ok = True; must_left = must
        for ln, c in self.items:
            if ln == "@BAR":
                a("s_barrier"); after(used); used += 1; must_left -= 1; acc = 0; continue
            if ln.startswith("@STAMP"): a.stamp(int(ln[6:])); continue
            if ln == "@NOBAR": ok = False; continue
            if ln == "@OKBAR": ok = True; continue
            if ok and acc >= per and used + must_left < nbar - 1:
                a("s_barrier"); after(used); used += 1; acc = 0
            a(ln); acc += c
        while used < nbar:
            a("s_barrier"); after(used); used += 1
        return total

def ilv(*seqs):
    seqs = [[l.strip() for l in x.strip().split("\n") if l.strip()] for x in seqs]
    out = []
    for i in range(max(len(x) for x in seqs)):
        for x in seqs:
            if i < len(x): out.append(x[i])
    return "\n".join(out)

class KG:
    def __init__(self, g, sK, tmp, vA2, vBh, vBl):
        self.g = g; self.t = KG_T; self.tmp = tmp
        self.sL, self.sLlo, self.sI, self.sIlo, self.sLn2 = range(sK, sK + 5)
        self.vA2, self.vBh, self.vBl = vA2, vBh, vBl
    def consts(self):
        return f"""
        s_mov_b32 s{self.sL}, {fbits(L_HI)}
        s_mov_b32 s{self.sLlo}, {fbits(L_LO)}
        s_mov_b32 s{self.sI}, {fbits(I_HI)}
        s_mov_b32 s{self.sIlo}, {fbits(I_LO)}
        s_mov_b32 s{self.sLn2}, {fbits(LN2)}
        """
    def expbf(self, x, t1, t2):
        return f"""
        v_lshlrev_b32 v{x}, 16, v{x}
        v_mul_f32 v{t1}, s{self.sL}, v{x}
        v_fma_f32 v{t2}, v{x}, s{self.sL}, -v{t1}
        v_exp_f32 v{t1}, v{t1}
        v_fma_f32 v{t2}, v{x}, s{self.sLlo}, v{t2}
        v_mul_f32 v{t2}, s{self.sLn2}, v{t2}
        v_fma_f32 v{x}, v{t1}, v{t2}, v{t1}
        v_cvt_pk_bf16_f32 v{x}, v{x}, v{x}
        v_and_b32 v{x}, 0xffff0000, v{x}
        """
    def prep(self):
        t, m = self.t, self.tmp
        return ilv(self.expbf(t[3], m[0], m[1]), self.expbf(t[1], m[2], m[3])) + f"""
        v_lshlrev_b32 v{t[2]}, 16, v{t[2]}
        v_mul_f32 v{t[1]}, v{t[1]}, v{t[3]}
        v_mul_f32 v{t[2]}, v{t[2]}, v{t[3]}
        v_mul_f32 v{self.vA2}, s{self.sL}, -v{t[1]}
        v_mul_f32 v{self.vBh}, s{self.sI}, v{t[2]}
        v_fma_f32 v{self.vBl}, v{t[2]}, s{self.sI}, -v{self.vBh}
        v_fma_f32 v{self.vBl}, v{t[2]}, s{self.sIlo}, v{self.vBl}
        """
    def cexp(self, d, p, k):
        fp = fbits(float(p)); r, e = self.tmp[2*k], self.tmp[2*k+1]
        return f"""
        v_mul_f32 v{r}, {fp}, v{self.vBh}
        v_mul_f32 v{e}, {fp}, v{self.vA2}
        v_fract_f32 v{r}, v{r}
        v_exp_f32 v{e}, v{e}
        v_fmac_f32 v{r}, {fp}, v{self.vBl}
        v_cos_f32 v{d}, v{r}
        v_sin_f32 v{d+1}, v{r}
        v_mul_f32 v{d}, v{d}, v{e}
        v_mul_f32 v{d+1}, v{d+1}, v{e}
        """
    def cmul(self, d, x, y):
        return f"""
        v_mul_f32 v{d}, v{x+1}, v{y+1}
        v_mul_f32 v{d+1}, v{x+1}, v{y}
        v_fma_f32 v{d}, v{x}, v{y}, -v{d}
        v_fmac_f32 v{d+1}, v{x}, v{y+1}
        """
    def cvt(self, d, x, conj):
        return f"v_cvt_pk_f16_f32 v{d}, v{x}, {'-' if conj else ''}v{x+1}"
    def rows(self, specs, vWr):
        g = self.g
        for i in range(0, len(specs), 4):
            grp = specs[i:i+4]; tt = self.tmp[(i & 4):(i & 4) + 4]
            for k, (x, y) in enumerate(grp):
                if y is not None: g(f"v_pk_mul_f16 v{tt[k]}, v{x}, v{y} op_sel:[0,0] op_sel_hi:[0,1]")
            for k, (x, y) in enumerate(grp):
                if y is not None: g(f"v_pk_fma_f16 v{tt[k]}, v{x}, v{y}, v{tt[k]} op_sel:[1,1,0] op_sel_hi:[1,0,1] neg_lo:[1,0,0]")
            src = [tt[k] if y is not None else x for k, (x, y) in enumerate(grp)]
            for k in range(0, len(grp), 2):
                if k + 1 < len(grp): g(f"ds_write2_b32 v{vWr[i>>2]}, v{src[k]}, v{src[k+1]} offset0:{68*k} offset1:{68*k+68}")
                else: g(f"ds_write_b32 v{vWr[i>>2]}, v{src[k]} offset:{272*k}")

def kgen_y(a, base):
    R = Regs(base, base + 56)
    tmp = [R.alloc() for _ in range(8)]
    vWr = [R.alloc() for _ in range(8)]
    vA2, vBh, vBl = R.alloc(), R.alloc(), R.alloc()
    H = [R.alloc() for _ in range(11)]
    A1, A2, A3, B1, B2, B3, B4, B5, B6, B7 = [R.alloc(2) for _ in range(10)]
    k = KG(a, 60, tmp, vA2, vBh, vBl)
    L = a.label("noy")
    a(f"s_cmp_ge_u32 s{sKC}, {0 if 'nokg' in EXP else 576}\ns_cbranch_scc1 {L}")
    a(f"s_mul_i32 s67, s{sKU}, {YS}\ns_add_u32 s67, s67, {YB}\nv_lshl_add_u32 v{vWr[0]}, v1, 2, s67")
    for i in range(1, 8): a(f"v_add_u32 v{vWr[i]}, {i*4*272}, v{vWr[0]}")
    hA = H[0:4]; hB = [None] + H[4:11]
    a(f"v_mov_b32 v{hA[0]}, 0x3c00\ns_lshl_b32 s67, s{sKU}, 2\ns_add_u32 s67, s67, {CNT}")
    lds_spin(a, tmp[0], tmp[1], 1, 64, saddr=67, off=C_YR)
    a(f"ds_read_b32 v{vA2}, v{vWr[0]}\nds_read_b32 v{vBh}, v{vWr[0]} offset:272\nds_read_b32 v{vBl}, v{vWr[0]} offset:544\ns_waitcnt lgkmcnt(0)")
    a(ilv(k.cexp(A1, 8, 0), k.cexp(B2, 64, 1)))
    a(ilv(k.cmul(A2, A1, A1), k.cmul(B4, B2, B2)))
    a(ilv(k.cmul(B1, A2, A2), k.cmul(A3, A1, A2), k.cmul(B6, B4, B2)))
    a(ilv(k.cmul(B3, B1, B2), k.cmul(B5, B4, B1), k.cmul(B7, B6, B1)))
    for d, x in zip(hA[1:] + hB[1:], (A1, A2, A3, B1, B2, B3, B4, B5, B6, B7)): a(k.cvt(d, x, True))
    def yspec(j):
        x, y = j & 3, j >> 2
        if y == 0: return (hA[x], None)
        if x == 0: return (hB[y], None)
        return (hA[x], hB[y])
    k.rows([yspec(j) for j in range(32)], vWr)
    lds_inc(a, tmp[0], tmp[1], saddr=67, off=C_YR)
    a(f"{L}:")

def kgen_waves(a):
    sMH, sBase, sT, sE, sCS = 5, 6, 7, 8, 14
    R = Regs(4, 120)
    t = KG_T; C = KG_C
    vWr = [R.alloc() for _ in range(4)]
    vRd, vRy = R.alloc(), R.alloc()
    vA2, vBh, vBl, vF = R.alloc(), R.alloc(), R.alloc(), R.alloc()
    vInv, vInvM, vBaseM, vPw = R.alloc(), R.alloc(), R.alloc(), R.alloc()
    FY = R.alloc(32, 4); FXr = R.alloc(32, 4)
    pool = R.alloc(36, 4)
    tmp = [FY + i for i in range(8)]
    g = Seg()
    k = KG(g, 9, tmp, vA2, vBh, vBl)
    Lskip, Lend = a.label("kgskip"), a.label("kgend")
    a(f"""
    s_cmp_ge_u32 s{sKC}, {0 if 'nokg' in EXP else 576}
    s_cbranch_scc1 {Lskip}
    s_lshr_b32 s{sCS}, s{S_WAVE}, 1
    s_mul_i32 s{sBase}, s{S_WAVE}, {KG_STRIDE}
    s_add_u32 s{sBase}, s{sBase}, {KG_BASE}
    """ + k.consts() + f"""
    v_lshl_add_u32 v{vWr[0]}, v1, 2, s{sBase}
    v_add_u32 v{vWr[1]}, {4*272}, v{vWr[0]}
    v_add_u32 v{vWr[2]}, {8*272}, v{vWr[0]}
    v_add_u32 v{vWr[3]}, {12*272}, v{vWr[0]}
    v_lshrrev_b32 v{t[5]}, 5, v1
    v_lshlrev_b32 v{t[5]}, 4, v{t[5]}
    v_and_b32 v{t[4]}, 15, v1
    v_mul_u32_u24 v{t[4]}, 272, v{t[4]}
    v_add3_u32 v{vRd}, v{t[4]}, v{t[5]}, s{sBase}
    v_and_b32 v{t[4]}, 31, v1
    v_mul_u32_u24 v{t[4]}, 272, v{t[4]}
    s_mul_i32 s{sT}, s{S_WAVE}, {YS}
    s_add_u32 s{sT}, s{sT}, {YB}
    v_add3_u32 v{vRy}, v{t[4]}, v{t[5]}, s{sT}
    v_lshl_add_u32 v{vPw}, v1, 2, s{sT}
    s_lshl_b32 s15, s{S_WAVE}, 2
    s_add_u32 s15, s15, {CNT}
    s_barrier
    """)
    g("s_waitcnt vmcnt(0)")
    g.items.append(("@STAMP22", 0))
    P = [pool + 2 * i for i in range(12)]
    H = [pool + 24 + i for i in range(12)]
    E1, E2, E4, E256, E512, E1024, X2, X4, X6, E768, X1024 = P[0:11]
    hC, h2, h4, h6, hE1, h256, h512, h768, h1024, hX = H[0:10]
    dpp = [f"v_max_u32_dpp v{t[4]}, v{t[4]}, v{t[4]} {m}" for m in ("row_shr:1", "row_shr:2", "row_shr:4", "row_shr:8", "row_bcast:15 row_mask:0xa", "row_bcast:31 row_mask:0xc")]
    g(f"v_lshlrev_b32 v{C}, 16, v{C}\nv_lshlrev_b32 v{C+1}, 16, v{C+1}\nv_max_f32 v{t[4]}, |v{C}|, |v{C+1}|")
    pl = [l.strip() for l in k.prep().split("\n") if l.strip()]
    for i, l in enumerate(pl):
        g(l)
        if i % 3 == 2 and dpp: g(dpp.pop(0))
    assert not dpp
    g(f"ds_write2_b32 v{vPw}, v{vA2}, v{vBh} offset0:0 offset1:68\nds_write_b32 v{vPw}, v{vBl} offset:544")
    lds_inc(g, tmp[6], tmp[7], saddr=15, off=C_YR)
    g(f"v_readlane_b32 s{sE}, v{t[4]}, 63")
    g(ilv(k.cexp(E1, 1, 0), k.cexp(E256, 256, 1), k.cexp(E1024, 1024, 2)))
    g(f"""
    s_lshr_b32 s{sE}, s{sE}, 23
    s_max_u32 s{sE}, s{sE}, 1
    s_min_u32 s{sE}, s{sE}, 252
    s_sub_u32 s{sT}, 253, s{sE}
    s_lshl_b32 s{sT}, s{sT}, 23
    v_mul_f32 v{C}, s{sT}, v{C}
    v_mul_f32 v{C+1}, s{sT}, v{C+1}
    s_add_u32 s{sE}, s{sE}, 2
    s_lshl_b32 s{sE}, s{sE}, 23
    v_mul_f32 v{vF}, s{sE}, v{t[3]}
    """)
    g(ilv(k.cmul(E2, E1, E1), k.cmul(E512, E256, E256), k.cmul(X1024, C, E1024)))
    g(ilv(k.cmul(E4, E2, E2), k.cmul(X2, C, E2), k.cmul(E768, E256, E512)))
    g(ilv(k.cmul(X4, C, E4), k.cmul(X6, X2, E4)))
    for d, x in ((hC, C), (hE1, E1), (h2, X2), (h256, E256), (h512, E512), (h768, E768), (h1024, E1024), (hX, X1024), (h4, X4), (h6, X6)): g(k.cvt(d, x, False))
    def fragread(dst, upper):
        m = 0xffff0000 if upper else 0x0000ffff
        g(f"s_mov_b32 exec_lo, {m}\ns_mov_b32 exec_hi, {m}")
        for ks in range(8):
            g(f"ds_read_b128 {vr(dst+4*ks,4)}, v{vRd} offset:{32*ks}")
        g("s_mov_b64 exec, -1")
    k.rows([(hX, None), (hX, h256), (hX, h512), (hX, h768), (hX, h1024)], vWr)
    fragread(FXr, True)
    k.rows([(hC, None), (hC, hE1), (h2, None), (h2, hE1), (h4, None), (h4, hE1), (h6, None), (h6, hE1),
          (hC, h256), (h2, h256), (h4, h256), (h6, h256), (hC, h512), (h4, h512), (hC, h768), (h4, h768)], vWr)
    fragread(FXr, False)
    ACC = pool
    g(f"""
    v_and_b32 v{t[0]}, 31, v1
    v_lshrrev_b32 v{t[1]}, 5, v1
    v_lshlrev_b32 v{t[2]}, 3, v{t[0]}
    v_lshl_add_u32 v{t[2]}, v{t[1]}, 2, v{t[2]}
    v_cmp_eq_u32 vcc, 0, v{t[1]}
    v_lshlrev_b32 v{t[3]}, 2, v{t[0]}
    v_lshlrev_b32 v{t[4]}, 1, v{t[0]}
    v_add_u32 v{t[4]}, 128, v{t[4]}
    v_cndmask_b32 v{t[3]}, v{t[4]}, v{t[3]}, vcc
    v_lshl_add_u32 v{t[5]}, v{t[1]}, 7, v{t[0]}
    v_and_b32 v{t[0]}, 0xff0, v{t[2]}
    v_lshl_add_u32 v{t[2]}, v{t[2]}, 2, v{t[0]}
    v_add_u32 v{t[2]}, s{sBase}, v{t[2]}
    v_and_b32 v{t[0]}, 0xff0, v{t[3]}
    v_lshl_add_u32 v{t[3]}, v{t[3]}, 2, v{t[0]}
    v_add_u32 v{t[3]}, s{sBase}, v{t[3]}
    v_mul_u32_u24 v{t[4]}, 312, v{t[1]}
    v_add_u32 v{t[4]}, v{t[4]}, v{t[3]}
    v_and_b32 v{t[0]}, 0xff0, v{t[5]}
    v_lshl_add_u32 v{t[5]}, v{t[5]}, 2, v{t[0]}
    v_add_u32 v{t[5]}, s{sBase}, v{t[5]}
    """)
    g.items.append(("@STAMP23", 0))
    lds_spin(g, tmp[0], tmp[1], 2, sE, saddr=15, off=C_YR)
    for ks in range(8):
        g(f"ds_read_b128 {vr(FY+4*ks,4)}, v{vRy} offset:{32*ks}")
    for ks in range(8):
        c = "0" if ks == 0 else vr(ACC, 16)
        g(f"s_waitcnt lgkmcnt({7-ks})")
        g(f"v_mfma_f32_32x32x16_f16 {vr(ACC,16)}, {vr(FXr+4*ks,4)}, {vr(FY+4*ks,4)}, {c}")
    g(f"""
    s_mul_i32 s{sT}, s{sMH}, {KG_STRIDE}
    s_sub_u32 s{sT}, s{sBase}, s{sT}
    s_sub_u32 s{sT}, s{sT}, {0x2c000000}
    """)
    NV = 22
    AD = pool
    VAL = [FY + 2 * i for i in range(NV)]
    assert FXr == FY + 32
    g("s_nop 12")
    for i in range(12):
        g(f"v_mul_f32 v{ACC+i}, v{vF}, v{ACC+i}")
    g(f"""
    ds_write_b128 v{t[2]}, {vr(ACC,4)} offset:80
    ds_write_b64 v{t[3]}, {vr(ACC+4,2)} offset:{80+1280}
    ds_write_b64 v{t[4]}, {vr(ACC+6,2)} offset:{80+1280+8}
    """)
    for r in range(4):
        g(f"ds_write_b32 v{t[5]}, v{ACC+8+r} offset:{80+2560+160*r}")
    g("s_waitcnt lgkmcnt(0)")
    g.items.append(("@STAMP24", 0))
    g.must_barrier()
    for run in range(2):
        g(f"""
        s_lshl_b32 s{sE}, s{sMH}, 7
        s_sub_u32 s{sE}, {255 - 64*run}, s{sE}
        v_sub_u32 v{t[4]}, s{sE}, v1
        v_lshlrev_b32 v{t[4]}, 3, v{t[4]}
        v_max_u32 v{t[5]}, 128, v{t[4]}
        v_cvt_f32_u32 v{t[5]}, v{t[5]}
        v_and_b32 v{vInv}, 0x7f800000, v{t[5]}
        v_sub_u32 v{vInv}, {261<<23 & 0xffffffff}, v{vInv}
        v_lshrrev_b32 v{t[5]}, 16, v{t[5]}
        v_subrev_u32 v{t[5]}, {0x4380-256}, v{t[5]}
        v_min_u32 v{t[5]}, v{t[5]}, v{t[4]}
        v_add_u32 v{vBaseM}, 0x4b000010, v{t[5]}
        v_max_u32 v{t[5]}, 129, v{t[4]}
        v_subrev_u32 v{t[5]}, 1, v{t[5]}
        v_cvt_f32_u32 v{t[5]}, v{t[5]}
        v_and_b32 v{vInvM}, 0x7f800000, v{t[5]}
        v_sub_u32 v{vInvM}, {261<<23 & 0xffffffff}, v{vInvM}
        """)
        if run == 1: g(f"v_cmp_ne_u32 s[74:75], 0, v{t[4]}")
        for j in range(11):
            i = 11 * run + j
            r = 7 - j
            inv = vInv if r >= 0 else vInvM
            g(f"v_fmamk_f32 v{AD+i}, v{inv}, {fbits(float(r))}, v{vBaseM}")
            g(f"v_and_b32 v{t[i&1]}, 0xff0, v{AD+i}")
            g(f"v_lshl_add_u32 v{AD+i}, v{AD+i}, 2, s{sT}")
            g(f"v_add_u32 v{AD+i}, v{AD+i}, v{t[i&1]}")
            g(f"ds_read2st64_b32 {vr(VAL[i],2)}, v{AD+i} offset0:0 offset1:{KG_STRIDE//256}")
    g.nobar(True); area(g, sBase, sCS); g.nobar(False)
    g(f"""
    s_lshr_b32 s{sT}, s{sKC}, 6
    v_and_b32 v{vA2}, 3, v1
    v_lshlrev_b32 v{vA2}, 1, v{vA2}
    v_sub_u32 v{vA2}, s{sT}, v{vA2}
    v_add_u32 v{vBh}, 9, v{vA2}
    v_min3_u32 v{vA2}, v{vA2}, v{vBh}, 7
    s_and_b32 s{sT}, s{sKC}, 32
    s_lshl_b32 s{sT}, s{sT}, 2
    v_lshl_add_u32 v{vA2}, v{vA2}, 4, s{sT}
    v_add_lshl_u32 v{vA2}, v{vA2}, v1, 7
    v_add_u32 v{vA2}, {FL_U}, v{vA2}
    v_lshrrev_b32 v{vBl}, 4, v1
    v_mul_u32_u24 v{vBl}, {36*4096}, v{vBl}
    v_and_b32 v{vF}, 12, v1
    v_lshl_add_u32 v{vBl}, v{vF}, 8, v{vBl}
    v_and_b32 v{vF}, 3, v1
    v_lshl_add_u32 v{vBl}, v{vF}, 4, v{vBl}
    s_and_b32 s10, s{sKC}, 15
    s_lshl_b32 s10, s10, 6
    s_lshr_b32 s9, s{sKC}, 4
    s_lshl_b32 s9, s9, 12
    s_add_u32 s9, s9, s10
    s_add_u32 s9, s9, {UT_OFF}
    v_lshl_add_u32 v{vF}, v1, 3, s{sBase}
    v_mov_b32 v{t[3]}, 0
    s_lshl_b32 s{sE}, s{sMH}, 11
    s_add_u32 s{sE}, s{sE}, s{sBase}
    v_lshl_add_u32 v{t[0]}, v1, 4, s{sE}
    v_lshrrev_b32 v{t[1]}, 4, v1
    v_mul_u32_u24 v{t[1]}, {CP}, v{t[1]}
    v_and_b32 v{t[2]}, 15, v1
    v_lshl_add_u32 v{t[1]}, v{t[2]}, 2, v{t[1]}
    s_add_u32 s{sT}, s{sBase}, 4096
    v_add_u32 v{t[1]}, s{sT}, v{t[1]}
    v_mov_b32 v{t[2]}, 0
    s_waitcnt lgkmcnt(0)
    """)
    for i in range(NV):
        g(f"v_add_f32 v{VAL[i]}, v{VAL[i]}, v{VAL[i]+1}")
    for i in range(19, NV):
        g(f"v_cndmask_b32 v{VAL[i]}, 0, v{VAL[i]}, s[74:75]")
    OUT = pool
    for s in range(4):
        for i in range(8):
            b = 11 * (i >> 2) + 2 * (i & 3) + s
            g(f"v_cvt_pk_bf16_f32 v{OUT+8*s+i}, v{VAL[b]}, v{VAL[b+1]}")
    def after(kb):
        if kb == 0: srd(a, R_WS, P_WS, WS_BYTES); get_tag(a, vWr[0], vWr[1])
        if kb == UK + 3:
            L = a.label("nofu")
            a(f"""
            s_cmp_lg_u32 s{S_WAVE}, 0
            s_cbranch_scc1 {L}
            s_and_b32 s76, s2, 1
            s_lshl_b32 s76, s76, 3
            s_lshr_b32 s77, s2, 5
            s_add_u32 s76, s76, s77
            s_lshl_b32 s76, s76, 2
            s_bfe_u32 s77, s2, 0x20001
            s_add_u32 s76, s76, s77
            s_lshl_b32 s76, s76, 2
            s_bfe_u32 s77, s2, 0x20003
            s_add_u32 s76, s76, s77
            s_lshl_b32 s76, s76, 7
            s_add_u32 s76, s76, {FL_U}
            """)
            flag_line(a, vWr[0], vWr[1], 76)
            a(f"{L}:")
    tot = g.emit(a, NBAR1 - 3, after)
    a.stamp(25)
    Lnp, L2, L3, Lnu2, Lno, Lre, Lw = [a.label(x) for x in ("np", "kc", "kd", "nu", "no", "re", "uw")]
    def u_dma():
        a(f"s_mov_b64 exec, -1\ns_add_u32 m0, s{sBase}, {UOFF + 512}\ns_nop 0")
        for b in range(4):
            a(f"buffer_load_dwordx4 v{vBl}, {WS}, s9 offen offset:{1024*b}{LD} lds")
            if b < 3: a(f"s_add_u32 s9, s9, {4*36*4096 - 1024}")
    a(f"s_mov_b32 s10, s{sMH}\ns_cmp_lg_u32 s{sMH}, 0\ns_cbranch_scc1 {Lnp}\ns_mov_b64 exec, 0xffff")
    poll_issue(a, vBh, 1, vA2, 0)
    a(f"""
    s_mov_b64 exec, -1
    {Lnp}:
    s_setprio {os.environ.get('KPRIO', '3')}
    s_barrier
    s_barrier
    s_cmp_lg_u32 s10, 0
    s_cbranch_scc1 {Lno}
    s_mov_b64 exec, 0xffff
    s_waitcnt vmcnt(0)
    v_cmp_ne_u32 vcc, s{S_TAG}, v{vBh}
    s_cbranch_vccnz {Lre}
    s_mov_b32 s10, 1
    """)
    u_dma()
    a(f"s_branch {Lno}\n{Lre}:")
    poll_issue(a, vBh, 1, vA2, 0)
    a(f"s_mov_b64 exec, -1\n{Lno}:")
    a("s_barrier")
    for s in range(4):
        a(f"ds_write_b128 v{t[0]}, {vr(OUT+8*s,4)} offset:{s*CP}")
        a(f"ds_write_b128 v{t[0]}, {vr(OUT+8*s+4,4)} offset:{s*CP+1024}")
    assert t[2] % 2 == 0
    a(f"""
    ds_write_b32 v{t[1]}, v{t[2]}
    ds_write_b64 v{vF}, {vr(t[2],2)} offset:{UOFF}
    s_cmp_lg_u32 s10, 0
    s_cbranch_scc1 {Lw}
    s_mov_b64 exec, 0xffff
    """)
    poll_wait(a, vBh, 1, vA2, 0, issued=True)
    u_dma()
    a(f"""
    {Lw}:
    s_waitcnt vmcnt(0)
    s_lshl_b32 s{sT}, s{sCS}, 2
    s_add_u32 s{sT}, s{sT}, {CNT+C_RDY}
    """)
    lds_inc(a, t[0], t[1], saddr=sT)
    a(f"s_branch {Lend}")
    a(f"{Lskip}:\ns_barrier")
    TB = int(os.environ.get('TLBAT', '1'))
    for _ in range(TB): a("s_barrier")
    if 'tlb' in EXP:
        Lnu = a.label("notlb")
        a(f"""
        s_lshr_b32 s8, s2, 3
        s_lshl_b32 s8, s8, 1
        s_add_u32 s8, s8, s{sMH}
        s_cmp_lg_u32 s8, 16
        s_cbranch_scc1 {Lnu}
        """)
        for i in sorted(range(1, (WS_BYTES >> 21) + 1), key=lambda i: abs(i - (UT_OFF >> 21) - 0.4)):
            a(f"s_mov_b32 s8, {i << 21}\ns_load_dword s{59+i}, s[{P_WS}:{P_WS+1}], s8")
        a(f"s_load_dword s72, s[{P_WO}:{P_WO+1}], 0\ns_load_dword s73, s[{P_OUT}:{P_OUT+1}], 0\ns_mov_b32 s8, {X_BYTES-4}\ns_load_dword s74, s[{P_OUT}:{P_OUT+1}], s8")
        a(f"{Lnu}:")
    for _ in range(NBAR1 - TB): a("s_barrier")
    srd(a, R_WS, P_WS, WS_BYTES); get_tag(a, t[0], t[1])
    a(f"{Lend}:")
    a.stamp(2)

def phase1(a, name, endlabel):
    Lkg, Lg, Lend = a.label("kg"), a.label("gemm"), a.label("p1end")
    head(a, name, endlabel, Lkg, Lg)
    loader(a)
    a(f"s_branch {Lend}\n{Lkg}:")
    kgen_waves(a)
    a(f"s_branch {Lend}\nL_gate_dma:\ns_waitcnt lgkmcnt(0)")
    srd(a, R_A, P_G, 1152)
    a(f"""
    v_lshlrev_b32 v4, 4, v1
    s_mov_b32 m0, {GT}
    s_nop 0
    buffer_load_dwordx4 v4, s[{R_A}:{R_A+3}], 0 offen lds
    s_mov_b64 exec, 0xff
    buffer_load_dwordx4 v4, s[{R_A}:{R_A+3}], 0 offen offset:1024 lds
    s_mov_b64 exec, -1
    s_barrier
    s_waitcnt vmcnt(0)
    {Lg}:
    """)
    gemm_waves(a)
    a(f"{Lend}:")
```

```python
from f1 import *

def conv_main(a, tiles, vA, vB, bufs, ACC):
    sb = Lgkm(a)
    n = max(tiles) + 1
    ops = []
    for rp in range(4):
        for i in range(n):
            for ti, t in enumerate(tiles):
                if t - i >= 0: ops.append((ti, ("A", i, rp), ("B", t - i, rp)))
    order, last = [], {}
    for k, (ti, x, y) in enumerate(ops):
        for f in (x, y):
            if f not in last: order.append(f)
            last[f] = k
    free = list(bufs); where = {}; nxt = [0]
    MAXO = int(os.environ.get('CMAXO', '13'))
    def try_load(force=False):
        if nxt[0] >= len(order) or not free: return False
        f = order[nxt[0]]
        cost = 2 if f[0] == "A" else 1
        if not force and len(sb.q) - sb.done + cost > MAXO: return False
        d = free.pop(0); where[f] = d; nxt[0] += 1
        w, i, rp = f
        if w == "A":
            off = 4032 - 64 * rp - 512 * i
            sb.load(f"ds_read_b64 {vr(d,2)}, v{vA} offset:{off}", rng(d, 2))
            sb.load(f"ds_read_b64 {vr(d+2,2)}, v{vA} offset:{off+8}", rng(d+2, 2))
        else:
            sb.load(f"ds_read_b128 {vr(d,4)}, v{vB} offset:{480 + 512*i - 64*rp}", rng(d, 4))
        return True
    while try_load(): pass
    started = set()
    for k, (ti, x, y) in enumerate(ops):
        while x not in where or y not in where:
            assert try_load(True)
        sb.need(list(rng(where[x], 4)) + list(rng(where[y], 4)))
        c = vr(ACC+4*ti, 4) if ti in started else "0"
        started.add(ti)
        a(f"v_mfma_f32_16x16x32_bf16 {vr(ACC+4*ti,4)}, {vr(where[x],4)}, {vr(where[y],4)}, {c}")
        for f in (x, y):
            if last[f] == k: free.append(where[f])
        if not try_load():
            if nxt[0] < len(order) and free and len(sb.q) - sb.done > MAXO - 3:
                keep = MAXO - 4
                a(f"s_waitcnt lgkmcnt({keep})"); sb.done = len(sb.q) - keep
                try_load()

class AR:
    def __init__(self, R):
        self.S = [R.alloc(16, 4), R.alloc(16, 4)]
        self.O = [R.alloc(16, 4), R.alloc(16, 4)]
        self.K = R.alloc(4, 4)
        self.Kx = R.alloc(4, 2)
        self.V0 = R.alloc(4, 4)
        self.V1 = R.alloc(4, 4)
        self.Qm = [R.alloc(4, 4), R.alloc(4, 4)]
        self.Qx = [R.alloc(8, 2), R.alloc(8, 2)]
        self.aK = R.alloc(); self.aKx = R.alloc(); self.aV = R.alloc(4, 1); self.idx = R.alloc()

def E(a, base, lo, n=4):
    for i in range(lo, lo + n):
        a(f"v_exp_f32 v{base+i}, v{base+i}")

def k_off(t): return (t & 7) * 1024
def kx_off(g): return KX_OFF + (g & 1) * 512
def v_off(t): return V_OFF + (t & 7) * 1280

def attn_loop(a, r, prio, pre_mid, post_mid):
    A, B = r.S
    NT = 16
    def smf(o, v, p): a(f"v_smfmac_f32_32x32x32_bf16 {vr(o,16)}, {vr(v,4)}, {vr(p,8)}, v{r.idx}")
    def vread(dst, t, s):
        a(f"ds_read_b64_tr_b16 {vr(dst,2)}, v{r.aV+2*s} offset:{v_off(t)}")
        a(f"ds_read_b64_tr_b16 {vr(dst+2,2)}, v{r.aV+2*s+1} offset:{v_off(t)}")
    a(f"v_mfma_f32_32x32x8_bf16 {vr(A,16)}, {vr(r.Kx,2)}, {vr(r.Qx[0],2)}, 0")
    a(f"v_mfma_f32_32x32x16_bf16 {vr(A,16)}, {vr(r.K,4)}, {vr(r.Qm[0],4)}, {vr(A,16)}")
    for X in range(2):
        for i in range(16): a(f"v_mov_b32 v{r.O[X]+i}, 0")
    E(a, A, 0, 2)
    for t in range(NT):
        if t in prio: a(f"s_setprio {prio[t]}")
        kxp = r.Kx + 2 * ((t >> 2) & 1)
        if t > 0: smf(r.O[1], r.V1, B + 8)
        vread(r.V1, t, 1)
        E(a, A, 2)
        a(f"v_mfma_f32_32x32x8_bf16 {vr(B,16)}, {vr(kxp,2)}, {vr(r.Qx[1]+2*(t&3),2)}, 0")
        n_after = 2
        if (t & 7) == 0:
            a(f"ds_read_b64 {vr(r.Kx+2,2)}, v{r.aKx} offset:{kx_off(1)}")
            n_after += 1
        E(a, A, 6)
        a(f"v_mfma_f32_32x32x16_bf16 {vr(B,16)}, {vr(r.K,4)}, {vr(r.Qm[1],4)}, {vr(B,16)}")
        last = t == NT - 1
        if (t & 7) != 7:
            a(f"ds_read_b128 {vr(r.K,4)}, v{r.aK} offset:{k_off(t+1)}")
            n_after += 1
        else:
            a("s_nop 0")
        E(a, A, 10)
        a(f"s_waitcnt lgkmcnt({n_after})")
        smf(r.O[0], r.V0, A)
        if t in pre_mid: pre_mid[t]()
        E(a, A, 14, 2)
        a("s_nop 2")
        E(a, B, 0, 1)
        a("s_waitcnt lgkmcnt(0)")
        if t in post_mid: post_mid[t]()
        if t == 7:
            a(f"""
            v_add_u32 v{r.aK}, {REG_B}, v{r.aK}
            v_add_u32 v{r.aKx}, {REG_B}, v{r.aKx}
            ds_read_b64 {vr(r.Kx,2)}, v{r.aKx} offset:{kx_off(0)}
            ds_read_b128 {vr(r.K,4)}, v{r.aK} offset:{k_off(0)}
            """)
            for i in range(4): a(f"v_add_u32 v{r.aV+i}, {REG_B}, v{r.aV+i}")
        tn = t + 1
        kxp = r.Kx + 2 * ((tn >> 2) & 1)
        smf(r.O[0], r.V1, A + 8)
        E(a, B, 1, 5)
        if t == 7: a("s_waitcnt lgkmcnt(0)")
        if not last:
            a(f"v_mfma_f32_32x32x8_bf16 {vr(A,16)}, {vr(kxp,2)}, {vr(r.Qx[0]+2*(tn&3),2)}, 0")
        E(a, B, 6)
        if not last:
            a(f"v_mfma_f32_32x32x16_bf16 {vr(A,16)}, {vr(r.K,4)}, {vr(r.Qm[0],4)}, {vr(A,16)}")
        E(a, B, 10)
        smf(r.O[1], r.V0, B)
        if not last:
            vread(r.V0, tn, 0)
        E(a, B, 14, 2)
        if not last:
            a("s_nop 2")
            E(a, A, 0, 2)
    a("s_nop 1")
    smf(r.O[1], r.V1, B + 8)

PRIO = eval(os.environ.get('PRIO', '{0: 1, 6: 0, "M": 3, 11: 2, 13: 1, 14: 0}'))
SPARE = 2 * REG_B

def piece_lds(n):
    return n * 1024 if n < 76 else SPARE + (n - 76) * 1024

def phase23(a):
    sHd, sR, sQP, sKQ, sT, sT2, sC, sCB, sKV, sQt = 4, 5, 6, 7, 8, 9, 10, 11, 12, 13
    sK0, sK1 = 14, 15
    sQT3, sDQ = 80, 81
    R = Regs(4, 128)
    t = [R.alloc() for _ in range(4)]
    r = AR(R)
    vL16 = R.alloc()
    PL = R.alloc(8, 4)
    assert PL == 120 and r.aK == 112
    Lld, LX = a.label("kvload"), a.label("X")
    a(f"""
    s_and_b32 s{sHd}, s2, 7
    s_lshl_b32 s{sQT3}, s{sHd}, 3
    s_lshl_b32 s{sHd}, s{sHd}, 2
    s_bfe_u32 s{sT}, s2, 0x20003
    s_add_u32 s{sHd}, s{sHd}, s{sT}
    s_lshr_b32 s{sR}, s2, 5
    s_bfe_u32 s{sT}, s2, 0x30003
    s_add_u32 s{sQT3}, s{sQT3}, s{sT}
    s_lshr_b32 s{sDQ}, s2, 6
    s_and_b32 s{sQP}, s{S_WAVE}, 3
    s_lshr_b32 s{sKQ}, s{S_WAVE}, 2
    v_lshlrev_b32 v{vL16}, 4, v1
    v_mov_b32 v{PL+4}, 0
    """)
    chan(a, sC, sKQ); area(a, sCB, sKQ)
    a(f"""
    s_mul_i32 s{sKV}, s{sHd}, {8*BLK}
    s_add_u32 s{sKV}, s{sKV}, {KV_OFF}
    s_cmp_eq_u32 s{sKQ}, 3
    s_cbranch_scc1 {Lld}
    s_cmp_ge_u32 s{sC}, 576
    s_cbranch_scc1 {LX}
    """)
    FA, FB, ACC = 8, 40, 72
    vA, vB, vY, vD = r.aK, r.aKx, r.aV, r.aV + 1
    Lts1, Lcj, Lsw = a.label("ts1"), a.label("cj"), a.label("sw")
    a(f"""
    s_lshl_b32 s{sT}, s{S_DV}, 16
    s_and_b32 s{S_DV}, s{S_DV}, 0xffff0000
    s_bitcmp0_b32 s{sC}, 0
    s_cselect_b32 s{S_DV}, s{sT}, s{S_DV}
    v_and_b32 v{t[0]}, 15, v1
    v_lshrrev_b32 v{t[1]}, 4, v1
    v_sub_u32 v{t[2]}, 15, v{t[0]}
    v_and_b32 v{t[3]}, 3, v{t[2]}
    v_and_b32 v{t[2]}, 12, v{t[2]}
    v_lshlrev_b32 v{t[2]}, 1, v{t[2]}
    v_lshl_add_u32 v{t[2]}, v{t[1]}, 4, v{t[2]}
    v_mul_u32_u24 v{t[3]}, {CP}, v{t[3]}
    s_and_b32 s{sT}, s{sQP}, 1
    s_lshl_b32 s{sT}, s{sT}, 8
    s_sub_u32 s{sT}, s{sCB}, s{sT}
    v_add3_u32 v{vA}, v{t[2]}, v{t[3]}, s{sT}
    v_lshlrev_b32 v{t[2]}, 5, v{t[0]}
    v_lshl_add_u32 v{t[3]}, v{t[1]}, 4, v{t[2]}
    s_add_u32 s{sT}, s{sT}, {UOFF}
    v_add_u32 v{vB}, s{sT}, v{t[3]}
    v_lshl_add_u32 v{vY}, v{t[1]}, 3, v{t[2]}
    s_lshl_b32 s82, s{sKQ}, 2
    s_add_u32 s82, s82, {CNT}
    """)
    lds_spin(a, t[0], t[1], 2, sT, saddr=82, off=C_RDY)
    a.stamp(5)
    a("s_setprio 2")
    if os.environ.get('C3PRIO'): a(f"s_cmp_lt_u32 s{sKQ}, 2\ns_cbranch_scc1 L_c3\ns_setprio {os.environ['C3PRIO']}\nL_c3:")
    T0, T1 = [7, 4, 3, 0], [6, 5, 2, 1]
    BUFS = list(range(8, 72, 4)) + list(range(88, 112, 4))
    a(f"s_cmp_ge_u32 s{sQP}, 2\ns_cbranch_scc1 {Lts1}")
    conv_main(a, T0, vA, vB, BUFS, ACC)
    a(f"s_cmp_eq_u32 s{sQP}, 0\ns_cselect_b32 s{sK0}, {T0[0]}, {T0[2]}\ns_cselect_b32 s{sK1}, {T0[1]}, {T0[3]}\ns_branch {Lcj}")
    a(f"{Lts1}:")
    conv_main(a, T1, vA, vB, BUFS, ACC)
    a(f"s_cmp_eq_u32 s{sQP}, 2\ns_cselect_b32 s{sK0}, {T1[0]}, {T1[2]}\ns_cselect_b32 s{sK1}, {T1[1]}, {T1[3]}")
    a(f"{Lcj}:")
    a.stamp(13)
    lds_inc(a, FB + 8, FB + 9, saddr=82, off=C_1)
    a(f"""
    s_lshl_b32 s{sK0}, s{sK0}, 9
    s_lshl_b32 s{sK1}, s{sK1}, 9
    s_lshl_b32 s{sT}, s{sQP}, 11
    s_add_u32 s{sT}, s{sT}, s{sCB}
    v_add_u32 v{t[0]}, s{sT}, v{vL16}
    s_xor_b32 s{sT}, s{sQP}, 1
    s_lshl_b32 s{sT}, s{sT}, 11
    s_add_u32 s{sT}, s{sT}, s{sCB}
    v_add_u32 v{t[1]}, s{sT}, v{vL16}
    s_add_u32 s{sT}, s{sCB}, s{sK0}
    v_add_u32 v{t[2]}, s{sT}, v{vY}
    s_add_u32 s{sT}, s{sCB}, s{sK1}
    v_add_u32 v{t[3]}, s{sT}, v{vY}
    ds_read_b64 {vr(FA,2)}, v{t[2]} offset:{UOFF+512}
    ds_read_b64 {vr(FA+2,2)}, v{t[3]} offset:{UOFF+512}
    s_bitcmp0_b32 s{sQP}, 0
    s_cbranch_scc1 {Lsw}
    """)
    for i in range(8):
        a(f"v_swap_b32 v{ACC+i}, v{ACC+8+i}")
    a(f"{Lsw}:")
    lds_spin(a, FB + 8, FB + 9, 4, sT, saddr=82, off=C_1)
    a(f"""
    ds_write_b128 v{t[0]}, {vr(ACC+8,4)}
    ds_write_b128 v{t[0]}, {vr(ACC+12,4)} offset:1024
    """)
    lds_inc(a, FB + 8, FB + 9, saddr=82, off=C_2)

    for j in range(2):
        for h in range(2):
            a(f"v_lshlrev_b32 v{FA+4}, 16, v{FA+2*j+h}")
            a(f"v_and_b32 v{FA+5}, 0xffff0000, v{FA+2*j+h}")
            a(f"v_fmac_f32 v{ACC+4*j+2*h}, s{S_DV}, v{FA+4}")
            a(f"v_fmac_f32 v{ACC+4*j+2*h+1}, s{S_DV}, v{FA+5}")
    lds_spin(a, FB + 8, FB + 9, 4, sT, saddr=82, off=C_2)
    a(f"""
    ds_read_b128 {vr(FB,4)}, v{t[1]}
    ds_read_b128 {vr(FB+4,4)}, v{t[1]} offset:1024
    s_lshl_b32 s{sT}, s{sC}, 12
    s_add_u32 s{sT}, s{sT}, {AT_OFF}
    s_add_u32 s{sK0}, s{sK0}, s{sT}
    s_add_u32 s{sK1}, s{sK1}, s{sT}
    s_waitcnt lgkmcnt(0)
    """)
    for i in range(8):
        a(f"v_add_f32 v{ACC+i}, v{ACC+i}, v{FB+i}")
    for i in range(4):
        a(f"v_cvt_pk_bf16_f32 v{PL+i}, v{ACC+2*i}, v{ACC+2*i+1}")
    a(f"""
    buffer_store_dwordx2 {vr(PL,2)}, v{vY}, {WS}, s{sK0} offen{ST}
    buffer_store_dwordx2 {vr(PL+2,2)}, v{vY}, {WS}, s{sK1} offen{ST}
    s_cmp_lt_u32 s{sKQ}, 2
    s_cbranch_scc1 {LX}
    s_waitcnt vmcnt(0)
    """)
    def publish_a(Lskip):
        lds_inc(a, t[0], t[1], off=C_A, rtn=sT)
        a(f"""
        s_cmp_lt_u32 s{S_C2}, 576
        s_cselect_b32 s{sT2}, 11, 7
        s_cmp_lg_u32 s{sT}, s{sT2}
        s_cbranch_scc1 {Lskip}
        """)
        lds_spin(a, t[0], t[1], 8, sT, off=C_S)
        a(f"s_lshl_b32 s{sT2}, s2, 2\ns_add_u32 s{sT2}, s{sT2}, {FL_A}")
        flag_store(a, t[0], sT2)
    publish_a(LX)
    a(f"s_branch {LX}")
    Lp, Lc, Lq, Lnq, Lgo = [a.label(x) for x in ("kp", "kc", "noqx", "nq", "go")]
    def kv_flags(vd, vt, quarter):
        a(f"""
        v_and_b32 v{vd}, 1, v1
        v_lshlrev_b32 v{vd}, 5, v{vd}
        v_add3_u32 v{vd}, v{vd}, 32, s{sHd}
        v_lshrrev_b32 v{vt}, 1, v1
        s_lshl_b32 s{sT}, s{quarter}, 2
        v_add_u32 v{vt}, s{sT}, v{vt}
        s_lshl_b32 s{sT}, s{sR}, 1
        s_lshr_b32 s{sT2}, s{sQP}, 1
        s_add_u32 s{sT}, s{sT}, s{sT2}
        v_writelane_b32 v{vd}, s{sHd}, 8
        v_writelane_b32 v{vt}, s{sT}, 8
        v_mul_u32_u24 v{vd}, 43, v{vd}
        v_lshrrev_b32 v{vd}, 8, v{vd}
        v_lshl_add_u32 v{vd}, v{vd}, 4, v{vt}
        v_lshlrev_b32 v{vd}, 7, v{vd}
        v_add_u32 v{vd}, {FL_Q}, v{vd}
        """)
    a(f"{Lld}:")
    kv_flags(t[2], t[3], sQP)
    lds_spin(a, t[0], t[1], 8, sT, off=C_S if 'early' in EXP else C_FREE)
    a(f"""
    s_lshl_b32 s74, s{sHd}, 3
    s_add_u32 s74, s74, s{sR}
    s_lshl_b32 s75, s74, 2
    s_add_u32 s75, s75, s{sQP}
    s_mov_b32 s76, 0
    s_lshl_b32 s82, s{sQP}, 2
    s_add_u32 s82, s82, {CNT + C_Q}
    v_mov_b32 v{PL}, s82
    v_mov_b32 v{PL+1}, 1
    s_mov_b32 s{S_SPIN}, {SPIN_MAX}
    {Lp}:
    s_mov_b64 exec, 0x1ff
    buffer_load_dword v{t[3]}, v{t[2]}, {WS}, 0 offen sc1
    s_cmp_lg_u32 s76, 1
    s_cbranch_scc1 {Lq}
    s_mov_b32 s76, 2
    s_waitcnt vmcnt(1)
    ds_write_b32 v{PL}, v{PL+1}
    {Lq}:
    s_waitcnt vmcnt(0)
    v_cmp_ne_u32 vcc, s{S_TAG}, v{t[3]}
    s_mov_b64 exec, -1
    s_sub_u32 s{S_SPIN}, s{S_SPIN}, 1
    s_cselect_b32 vcc_lo, 0, vcc_lo
    s_bitcmp1_b32 vcc_lo, 8
    s_cbranch_scc1 {Lc}
    s_cmp_lg_u32 s76, 0
    s_cbranch_scc1 {Lnq}
    s_mov_b32 s76, 1
    s_lshl_b32 s{sT}, s{sQP}, 11
    s_add_u32 m0, s{sT}, {QST}
    s_lshl_b32 s{sT2}, s75, 11
    s_add_u32 s{sT2}, s{sT2}, {QF_OFF}
    buffer_load_dwordx4 v{vL16}, {WS}, s{sT2} offen{LD} lds
    buffer_load_dwordx4 v{vL16}, {WS}, s{sT2} offen offset:1024{LD} lds
    s_lshl_b32 s{sT}, s{sQP}, 8
    s_add_u32 m0, s{sT}, {QST+8192}
    s_lshl_b32 s{sT2}, s75, 8
    s_add_u32 s{sT2}, s{sT2}, {QX_OFF}
    s_mov_b64 exec, 0xffff
    buffer_load_dwordx4 v{vL16}, {WS}, s{sT2} offen{LD} lds
    s_mov_b64 exec, -1
    {Lnq}:
    s_mov_b32 s77, 0
    s_and_b32 s{sT}, vcc_lo, 0x0f
    s_cbranch_scc0 {Lgo}
    s_mov_b32 s77, 1
    s_and_b32 s{sT}, vcc_lo, 0xf0
    s_cbranch_scc0 {Lgo}
    {Lc}:
    s_sleep {os.environ.get('PSLEEP', '3')}
    s_branch {Lp}
    {Lgo}:
    """)
    a.stamp(5)
    a(f"""
    s_lshl_b32 s{sT}, s{sQP}, 1
    s_add_u32 s{sT}, s{sT}, s77
    s_mul_i32 s{sT}, s{sT}, {BLK}
    s_add_u32 s{sT}, s{sT}, s{sKV}
    s_mul_i32 s82, s{sQP}, {BLK}
    """)
    def run(first, n):
        a(f"s_add_u32 m0, s82, {first*1024}\ns_add_u32 s{sT2}, s{sT}, {first*1024}")
        for i in range(n):
            a(f"buffer_load_dwordx4 v{vL16}, {WS}, s{sT2} offen offset:{1024*i}{LD} lds")
    run(0, 2); run(8, 4)
    a(f"""
    s_lshl_b32 s78, s{sQP}, 3
    s_add_u32 s78, s78, {CNT + C_KV}
    v_mov_b32 v{t[0]}, s78
    v_mov_b32 v{t[2]}, 1
    v_mov_b32 v{t[3]}, s77
    v_mov_b32 v{t[1]}, 2
    s_waitcnt vmcnt(0)
    ds_write_b32 v{PL}, v{PL+1}
    ds_write_b64 v{t[0]}, {vr(t[2],2)}
    s_waitcnt lgkmcnt(0)
    """)
    run(2, 4); run(12, 4); run(6, 2); run(16, 3)
    a(f"s_waitcnt vmcnt(0)\nds_write_b32 v{t[0]}, v{t[1]}")
    a(f"{LX}:")
    a(f"""
    s_mul_i32 s{sT}, s{sKQ}, {BLK}
    v_add_u32 v{r.aK}, s{sT}, v{vL16}
    v_lshl_add_u32 v{r.aKx}, v1, 3, s{sT}
    v_bfe_u32 v{t[0]}, v1, 2, 2
    v_and_b32 v{t[1]}, 1, v1
    v_lshlrev_b32 v{t[1]}, 4, v{t[1]}
    v_and_b32 v{t[2]}, 2, v1
    v_lshl_add_u32 v{t[1]}, v{t[2]}, 2, v{t[1]}
    v_lshl_add_u32 v{t[1]}, v{t[0]}, 5, v{t[1]}
    v_and_b32 v{t[3]}, 32, v1
    v_lshl_add_u32 v{t[1]}, v{t[3]}, 3, v{t[1]}
    v_lshl_add_u32 v{t[0]}, v{t[0]}, 3, v{t[3]}
    v_add_u32 v{t[0]}, 1152, v{t[0]}
    v_lshl_add_u32 v{t[0]}, v{t[2]}, 17, v{t[0]}
    v_and_b32 v{t[2]}, 16, v1
    v_cmp_eq_u32 vcc, 0, v{t[2]}
    v_lshlrev_b32 v{t[2]}, 4, v{t[2]}
    v_mov_b32 v{t[3]}, 512
    v_cndmask_b32 v{t[1]}, v{t[0]}, v{t[1]}, vcc
    v_add_u32 v{r.aV}, s{sT}, v{t[1]}
    v_sub_u32 v{t[2]}, 128, v{t[2]}
    v_cndmask_b32 v{t[3]}, 64, v{t[3]}, vcc
    v_add_u32 v{r.aV+1}, v{r.aV}, v{t[2]}
    v_add_u32 v{r.aV+2}, v{r.aV}, v{t[3]}
    v_add_u32 v{r.aV+3}, v{r.aV+2}, v{t[2]}
    v_mov_b32 v{r.idx}, 0xdddddddd
    s_mov_b32 s72, {fbits(2.0**-40)}
    s_mov_b32 s73, {fbits(2.0**60)}
    s_movk_i32 s64, 0x1f8
    s_mov_b64 s[62:63], 0
    s_lshl_b32 s{sT}, s{sQP}, 11
    s_add_u32 s{sT}, s{sT}, {QST}
    v_add_u32 v{t[0]}, s{sT}, v{vL16}
    v_and_b32 v{t[1]}, 31, v1
    s_lshl_b32 s{sT}, s{sQP}, 8
    s_add_u32 s{sT}, s{sT}, {QST+8192}
    v_lshl_add_u32 v{t[1]}, v{t[1]}, 2, s{sT}
    v_cmp_gt_u32 vcc, 32, v1
    s_lshl_b32 s{sQt}, s{sR}, 2
    s_add_u32 s{sQt}, s{sQt}, s{sQP}
    """)
    for X in range(2):
        for i in (1, 2, 5, 6): a(f"v_mov_b32 v{r.Qx[X]+i}, 0")
    a.stamp(6)
    a(f"s_lshl_b32 s82, s{sQP}, 2\ns_add_u32 s82, s82, {CNT}\ns_lshl_b32 s83, s{sKQ}, 3\ns_add_u32 s83, s83, {CNT}")
    lds_spin(a, PL, PL + 1, 1, sT, saddr=82, off=C_Q)
    a(f"""
    ds_read_b128 {vr(r.Qm[0],4)}, v{t[0]}
    ds_read_b128 {vr(r.Qm[1],4)}, v{t[0]} offset:1024
    ds_read2_b32 {vr(t[2],2)}, v{t[1]} offset0:0 offset1:32
    """)
    lds_inc(a, PL, PL + 1, off=C_Y)
    lds_spin(a, PL, PL + 1, 1, sT, saddr=83, off=C_KV)
    a(f"""
    ds_read_b64 {vr(r.Kx,2)}, v{r.aKx} offset:{kx_off(0)}
    ds_read_b128 {vr(r.K,4)}, v{r.aK} offset:{k_off(0)}
    ds_read_b64_tr_b16 {vr(r.V0,2)}, v{r.aV} offset:{v_off(0)}
    ds_read_b64_tr_b16 {vr(r.V0+2,2)}, v{r.aV+1} offset:{v_off(0)}
    """)
    for X in range(2):
        q = r.Qx[X]; src = t[2] + X
        a(f"""
        v_cndmask_b32 v{q+0}, 0, v{src}, vcc
        v_cndmask_b32 v{q+3}, 0, v{src}, vcc
        v_cndmask_b32 v{q+4}, v{src}, 0, vcc
        v_cndmask_b32 v{q+7}, v{src}, 0, vcc
        """)
    def stage2_pre():
        a(f"v_mov_b32 v{t[0]}, s83\nds_read_b32 v{t[1]}, v{t[0]} offset:{C_KV}")
    def stage2_post():
        L = a.label("cok")
        a(f"v_cmp_gt_u32 vcc, 2, v{t[1]}\ns_cbranch_vccz {L}")
        lds_spin(a, t[0], t[1], 2, sT, saddr=83, off=C_KV)
        a(f"{L}:")
    def wt_issue():
        L = a.label("nw")
        a(f"s_cmp_ge_u32 s{S_WAVE}, 3\ns_cbranch_scc1 {L}\ns_lshl_b32 s79, s{S_WAVE}, 8\ns_add_u32 s79, s79, s2")
        wt_load(a, 79, sT, 78, 77, 76, 75, t[0], t[1], t[2], PL)
        a(f"{L}:")
    def wt_put():
        L, Ls = a.label("nw"), a.label("ns")
        a(f"s_cmp_ge_u32 s{S_WAVE}, 8\ns_cbranch_scc1 {Ls}\ns_cmp_ge_u32 s{S_WAVE}, 3\ns_cbranch_scc1 {L}\ns_waitcnt vmcnt(0)")
        wt_store(a, 79, PL, vL16)
        a(f"{L}:\ns_lshr_b32 s78, s{S_WAVE}, 1")
        kv_flags(PL + 4, PL + 5, 78)
        a("s_mov_b64 exec, 0xff")
        poll_issue(a, PL + 5, 1, PL + 4, 0)
        a(f"s_mov_b64 exec, -1\n{Ls}:")
    def second_blocks():
        Ls, Lw = a.label("kvs"), a.label("nw")
        a(f"s_cmp_ge_u32 s{S_WAVE}, 8\ns_cbranch_scc1 {Ls}\ns_mov_b64 exec, 0xff")
        poll_wait(a, PL + 5, 1, PL + 4, 0, issued=True)
        a("s_mov_b64 exec, -1")
        publish_a(Lw)
        a(f"{Lw}:")
        lds_spin(a, t[0], t[1], 16, sT, off=C_Y)
        a(f"s_lshl_b32 s82, s78, 3\ns_add_u32 s82, s82, {CNT}")
        lds_spin(a, t[0], t[1], 1, sT, saddr=82, off=C_KV)
        a(f"""
        ds_read_b32 v{t[1]}, v{t[0]} offset:{C_KV+4}
        s_and_b32 s{sT}, s{S_WAVE}, 6
        s_waitcnt lgkmcnt(0)
        v_readfirstlane_b32 s{sT2}, v{t[1]}
        s_xor_b32 s{sT2}, s{sT2}, 1
        s_and_b32 s{sT2}, s{sT2}, 1
        s_add_u32 s{sT}, s{sT}, s{sT2}
        s_mul_i32 s{sT}, s{sT}, {BLK}
        s_add_u32 s{sT}, s{sT}, s{sKV}
        s_and_b32 s{sT2}, s{S_WAVE}, 1
        s_mul_i32 s{sT2}, s{sT2}, 9216
        s_add_u32 s{sT}, s{sT}, s{sT2}
        s_mul_i32 s82, s78, {BLK}
        s_add_u32 s82, s82, s{sT2}
        s_add_u32 m0, s82, {REG_B}
        s_nop 0
        """)
        for i in range(10):
            a(f"buffer_load_dwordx4 v{vL16}, {WS}, s{sT} offen offset:{1024*(i&3)}{LD} lds")
            if i & 3 == 3: a(f"s_add_u32 m0, m0, 4096\ns_add_u32 s{sT}, s{sT}, 4096")
        a(f"{Ls}:")
    a("s_waitcnt lgkmcnt(2)\ns_nop 0")
    a.stamp(7)
    def poll_post():
        L = a.label("nopa")
        a(f"s_cmp_lg_u32 s{S_WAVE}, 0\ns_cbranch_scc1 {L}")
        poll_issue(a, PL, 4, vL16, FL_A)
        a(f"{L}:")
    def poll_check():
        L = a.label("nopw")
        a(f"s_cmp_lg_u32 s{S_WAVE}, 0\ns_cbranch_scc1 {L}")
        poll_wait(a, PL, 4, vL16, FL_A, issued=True)
        lds_inc(a, t[0], t[1], off=C_FA)
        a(f"{L}:")
    def mid_post():
        a("s_waitcnt vmcnt(0)")
        a.stamp(15)
        a(f"s_setprio {PRIO['M']}\ns_barrier")
        a.stamp(16)
    NLD = 8
    def prefetch_post():
        La, Ld = a.label("pfa"), a.label("pfd")
        a(f"""
        s_cmp_ge_u32 s{S_WAVE}, {0 if 'nopf' in EXP else 9}
        s_cbranch_scc1 {La}
        """)
        lds_spin(a, t[0], t[1], 1, sT, off=C_FA)
        a(f"""
        s_mul_i32 s{sT}, s{sDQ}, 9
        s_add_u32 s{sT}, s{sT}, s{S_WAVE}
        s_lshl_b32 m0, s{S_WAVE}, 13
        s_mul_i32 s{sT}, s{sT}, {18*1024}
        s_add_u32 s{sT}, s{sT}, {WT_OFF}
        """)
        for n in range(NLD):
            a(f"buffer_load_dwordx4 v{vL16}, {WS}, s{sT} offen offset:{1024*(n&3)}{LD} lds")
            if n == 3: a(f"s_add_u32 m0, m0, 4096\ns_add_u32 s{sT}, s{sT}, 4096")
        a(f"""
        v_lshrrev_b32 v{t[0]}, 2, v1
        v_lshlrev_b32 v{t[0]}, 12, v{t[0]}
        v_and_b32 v{t[1]}, 3, v1
        v_lshl_add_u32 v{t[0]}, v{t[1]}, 4, v{t[0]}
        s_mul_i32 s{sT}, s{sDQ}, 9
        s_add_u32 s{sT}, s{sT}, s{S_WAVE}
        s_lshl_b32 s{sT}, s{sT}, 16
        s_lshl_b32 s{sT2}, s{sQT3}, 6
        s_add_u32 s{sT}, s{sT}, s{sT2}
        s_add_u32 s{sT}, s{sT}, {AT_OFF}
        s_lshl_b32 s{sK1}, s{S_WAVE}, 10
        s_add_u32 s{sT2}, s{sK1}, {SPARE - 4096}
        s_add_u32 s{sK1}, s{sK1}, {72*1024}
        s_cmp_ge_u32 s{S_WAVE}, 4
        s_cselect_b32 s{sK1}, s{sT2}, s{sK1}
        s_mov_b32 m0, s{sK1}
        s_nop 0
        buffer_load_dwordx4 v{t[0]}, {WS}, s{sT} offen{LD} lds
        {La}:
        """)
    attn_loop(a, r, PRIO, {0: stage2_pre}, {0: lambda: (stage2_post(), wt_issue()), 3: wt_put, 5: second_blocks, 7: mid_post, 8: poll_post, 10: poll_check, 11: prefetch_post})
    a('s_setprio 3')
    a.stamp(8)
    O0, O1 = r.O
    FD = [72 + 4*i for i in range(10)]
    FL = [8 + 4*i for i in range(8)]
    FA3 = FL + FD
    AV, vG, vB, vOut, ACC3, FB3 = 112, 116, 118, t[3], PL, 40
    OZ = REG_B + BLK
    Lfin, Lp9, Lend, Lfirst, Lwr = [a.label(x) for x in ("fin", "p9", "end", "first", "wr")]
    a(f"""
    s_lshl_b32 s82, s{sKQ}, 2
    s_add_u32 s82, s82, {CNT}
    """)
    lds_inc(a, t[0], t[1], saddr=82, off=C_E)
    a(f"""
    s_lshl_b32 s83, s{sQP}, 2
    s_add_u32 s83, s83, {CNT}
    s_mul_i32 s{sCB}, s{sQP}, 4864
    s_add_u32 s{sCB}, s{sCB}, {REG_B}
    v_cmp_gt_u32 vcc, 32, v1
    v_add_u32 v{t[2]}, s{sCB}, v{vL16}
    v_lshl_add_u32 v{t[3]}, v1, 3, s{sCB}
    v_lshl_add_u32 v{r.aK}, v1, 2, s{sCB}
    """)
    for i in range(3): a(f"v_cndmask_b32 v{O0+8+i}, v{O1+8+i}, v{O0+8+i}, vcc")
    a(f"s_cmp_eq_u32 s{sKQ}, 0\ns_cbranch_scc1 {Lfirst}")
    lds_spin(a, t[0], t[1], f"s{sKQ}", sT, saddr=83, off=C_P)
    a.stamp(18)
    a(f"""
    ds_read_b64 v[24:25], v{t[3]} offset:4096
    ds_read_b32 v26, v{r.aK} offset:4608
    ds_read_b128 v[8:11], v{t[2]}
    ds_read_b128 v[12:15], v{t[2]} offset:1024
    ds_read_b128 v[16:19], v{t[2]} offset:2048
    ds_read_b128 v[20:23], v{t[2]} offset:3072
    s_waitcnt lgkmcnt(4)
    """)
    for i in range(3): a(f"v_add_f32 v{O0+8+i}, v{O0+8+i}, v{24+i}")
    a(f"s_cmp_eq_u32 s{sKQ}, 3\ns_cbranch_scc1 {Lfin}\ns_waitcnt lgkmcnt(2)")
    for i in range(8): a(f"v_add_f32 v{O0+i}, v{O0+i}, v{8+i}")
    a("s_waitcnt lgkmcnt(0)")
    for i in range(8): a(f"v_add_f32 v{O1+i}, v{O1+i}, v{16+i}")
    a(f"s_branch {Lwr}\n{Lfirst}:")
    lds_spin(a, t[0], t[1], 4, sT, saddr=82, off=C_E)
    a(f"""{Lwr}:
    ds_write_b128 v{t[2]}, {vr(O0,4)}
    ds_write_b128 v{t[2]}, {vr(O0+4,4)} offset:1024
    ds_write_b128 v{t[2]}, {vr(O1,4)} offset:2048
    ds_write_b128 v{t[2]}, {vr(O1+4,4)} offset:3072
    ds_write_b64 v{t[3]}, {vr(O0+8,2)} offset:4096
    ds_write_b32 v{r.aK}, v{O0+10} offset:4608
    """)
    lds_inc(a, t[0], t[1], saddr=83, off=C_P)
    a("s_setprio 0")
    a.stamp(17)
    a(f"""
    s_cmp_ge_u32 s{S_WAVE}, 9
    s_cbranch_scc1 {Lp9}
    v_and_b32 v{t[2]}, 15, v1
    v_lshlrev_b32 v{t[2]}, 2, v{t[2]}
    s_lshl_b32 s{sT}, s{sQT3}, 7
    s_add_u32 s{sT}, s{sT}, {G_OFF}
    s_waitcnt lgkmcnt(0)
    buffer_load_dword v{vG}, v{t[2]}, {WS}, s{sT} offen{LD}
    buffer_load_dword v{vG+1}, v{t[2]}, {WS}, s{sT} offen offset:64{LD}
    s_mul_i32 s{sK0}, s{sDQ}, 9
    s_add_u32 s{sK0}, s{sK0}, s{S_WAVE}
    s_mul_i32 s{sT}, s{sK0}, {18*1024}
    s_add_u32 s{sT}, s{sT}, {WT_OFF + NLD*1024}
    """)
    for n in range(10):
        a(f"buffer_load_dwordx4 {vr(FD[n],4)}, v{vL16}, {WS}, s{sT} offen offset:{1024*(n&3)}{LD}")
        if n & 3 == 3: a(f"s_add_u32 s{sT}, s{sT}, 4096")
    a(f"""
    s_lshl_b32 s{sT}, s{S_WAVE}, 13
    v_add_u32 v{t[0]}, s{sT}, v{vL16}
    v_lshrrev_b32 v{t[1]}, 2, v1
    v_lshlrev_b32 v{t[1]}, 6, v{t[1]}
    v_and_b32 v{t[2]}, 3, v1
    v_lshl_add_u32 v{t[1]}, v{t[2]}, 3, v{t[1]}
    v_add_u32 v{t[1]}, s{sK1}, v{t[1]}
    s_waitcnt vmcnt(10)
    """)
    for ks in range(NLD):
        a(f"ds_read_b128 {vr(FL[ks],4)}, v{t[0]} offset:{1024*ks}")
    a(f"""
    ds_read_b64_tr_b16 {vr(AV,2)}, v{t[1]}
    ds_read_b64_tr_b16 {vr(AV+2,2)}, v{t[1]} offset:32
    v_lshrrev_b32 v{t[0]}, 4, v1
    v_and_b32 v{t[2]}, 15, v1
    v_lshlrev_b32 v{vB}, 9, v{t[0]}
    v_add_u32 v{vB}, {OZ}, v{vB}
    v_lshl_add_u32 v{vB+1}, v{t[2]}, 2, v{vB}
    v_add_u32 v{vB+1}, 32768, v{vB+1}
    v_lshl_add_u32 v{vB}, v{t[2]}, 4, v{vB}
    v_mul_u32_u24 v{vOut}, 1152, v{t[2]}
    v_lshl_add_u32 v{vOut}, v{t[0]}, 3, v{vOut}
    v_add_u32 v{t[2]}, 2048, v{vB+1}
    """)
    GA, OM = 60, 68
    for T in range(2):
        g = vG + T
        a(f"""
        v_cvt_pk_bf16_f32 v{g}, v{g}, v{g}
        v_and_b32 v{g}, 0xffff0000, v{g}
        v_mul_f32 v{g}, {fbits(-L_HI)}, v{g}
        v_exp_f32 v{g}, v{g}
        s_nop 0
        v_add_f32 v{g}, 1.0, v{g}
        v_rcp_f32 v{g}, v{g}
        s_nop 0
        v_cvt_pk_bf16_f32 v{g}, v{g}, v{g}
        v_and_b32 v{g}, 0xffff0000, v{g}
        v_sub_f32 v{OM+T}, 1.0, v{g}
        v_cvt_pk_bf16_f32 v{OM+T}, v{OM+T}, v{OM+T}
        v_and_b32 v{OM+T}, 0xffff0000, v{OM+T}
        """)
    for i in range(8): a(f"v_mov_b32 v{ACC3+i}, 0")
    a("s_waitcnt lgkmcnt(0)")
    for T in range(2):
        for h in range(2):
            a(f"v_lshlrev_b32 v{GA+4*T+2*h}, 16, v{AV+2*T+h}\nv_and_b32 v{GA+4*T+2*h+1}, 0xffff0000, v{AV+2*T+h}")
        for i in range(4): a(f"v_mul_f32 v{GA+4*T+i}, v{vG+T}, v{GA+4*T+i}")
    srd(a, R_A, P_OUT, X_BYTES)
    Lscan, Lall = a.label("scan"), a.label("all")
    a(f"""
    s_mul_i32 s{sT}, s{sQT3}, {32*1152}
    s_lshl_b32 s{sT2}, s{sK0}, 5
    s_add_u32 s{sK0}, s{sT}, s{sT2}
    s_add_u32 s{sK1}, s{sK0}, {16*1152}
    v_mov_b32 v{t[0]}, {CNT}
    s_mov_b32 s74, 0
    s_mov_b32 s{S_SPIN}, {SPIN_MAX}
    s_waitcnt vmcnt(0)
    s_setprio 2
    {Lscan}:
    ds_read_b32 v{t[1]}, v{t[0]} offset:{C_F}
    s_sub_u32 s{S_SPIN}, s{S_SPIN}, 1
    s_cbranch_scc1 {Lall}
    s_waitcnt lgkmcnt(0)
    v_readfirstlane_b32 s75, v{t[1]}
    s_andn2_b32 s76, s75, s74
    s_cbranch_scc1 {Lscan}_n
    s_sleep 1
    s_branch {Lscan}
    {Lscan}_n:
    s_mov_b32 s74, s75
    """)
    for g in range(8):
        L = a.label("grp")
        a(f"s_bitcmp0_b32 s76, {g}\ns_cbranch_scc1 {L}")
        for n in range(4):
            a(f"ds_read_b128 {vr(FB3+4*n,4)}, v{vB} offset:{(2*g+(n>>1))*2048 + (n&1)*256}")
        for n in range(4):
            T = n & 1
            a(f"s_waitcnt lgkmcnt({3-n})\nv_mfma_f32_16x16x32_bf16 {vr(ACC3+4*T,4)}, {vr(FA3[2*g+(n>>1)],4)}, {vr(FB3+4*n,4)}, {vr(ACC3+4*T,4)}")
        a(f"{L}:")
    a(f"s_cmp_lg_u32 s74, 0xff\ns_cbranch_scc1 {Lscan}\n{Lall}:")
    a.stamp(21)
    for n in range(4):
        va = vB + 1 if n < 2 else t[2]; T = n & 1; d = FB3 + 4 * n
        a(f"ds_read2_b32 {vr(d,2)}, v{va} offset0:{16*T} offset1:{16*T+32}")
        a(f"ds_read2_b32 {vr(d+2,2)}, v{va} offset0:{16*T+64} offset1:{16*T+96}")
    for n in range(4):
        T = n & 1
        a(f"s_waitcnt lgkmcnt({6-2*n})\nv_mfma_f32_16x16x32_bf16 {vr(ACC3+4*T,4)}, {vr(FA3[16+(n>>1)],4)}, {vr(FB3+4*n,4)}, {vr(ACC3+4*T,4)}")
    a("s_nop 6")
    for T in range(2):
        for i in range(4): a(f"v_fmac_f32 v{GA+4*T+i}, v{OM+T}, v{ACC3+4*T+i}")
        a(f"""
        v_cvt_pk_bf16_f32 v{8+2*T}, v{GA+4*T}, v{GA+4*T+1}
        v_cvt_pk_bf16_f32 v{9+2*T}, v{GA+4*T+2}, v{GA+4*T+3}
        buffer_store_dwordx2 {vr(8+2*T,2)}, v{vOut}, s[{R_A}:{R_A+3}], s{sK0 if T == 0 else sK1} offen
        """)
    a(f"s_branch {Lend}")
    Lpl, Lpc, Lpd = a.label("pl"), a.label("pc"), a.label("pd")
    a(f"{Lp9}:")
    lds_spin(a, t[0], t[1], 4, sT, off=C_E + 4)
    lds_spin(a, t[0], t[1], 4, sT, off=C_E + 8)
    a(f"""
    s_setprio 3
    s_sub_u32 s77, s{S_WAVE}, 9
    v_lshrrev_b32 v{t[2]}, 2, v1
    v_mul_u32_u24 v{t[2]}, 12, v{t[2]}
    v_and_b32 v{t[3]}, 3, v1
    s_lshl_b32 s{sT}, s77, 2
    v_add3_u32 v{t[2]}, v{t[2]}, v{t[3]}, s{sT}
    s_lshr_b32 s{sT}, s{sQT3}, 1
    s_lshl_b32 s{sT}, s{sT}, 12
    s_add_u32 s{sT}, s{sT}, {FL_O}
    v_lshl_add_u32 v{t[2]}, v{t[2]}, 7, s{sT}
    s_cmp_eq_u32 s77, 2
    s_movk_i32 s74, 0xfff
    s_cselect_b32 s74, 0xff, s74
    s_mov_b32 s75, 0
    s_mul_i32 s78, s{sQT3}, {36*1024}
    s_add_u32 s78, s78, {OF_OFF}
    v_mov_b32 v{t[0]}, {CNT}
    s_mov_b32 s{S_SPIN}, {SPIN_MAX}
    {Lpl}:
    s_mov_b32 exec_lo, s74
    s_mov_b32 exec_hi, 0
    buffer_load_dword v{t[3]}, v{t[2]}, {WS}, 0 offen sc1
    s_waitcnt vmcnt(0)
    v_cmp_ne_u32 vcc, s{S_TAG}, v{t[3]}
    s_mov_b64 exec, -1
    s_sub_u32 s{S_SPIN}, s{S_SPIN}, 1
    s_cselect_b32 vcc_lo, 0, vcc_lo
    s_orn2_b32 s76, vcc_lo, s74
    s_mov_b32 s75, 0
    """)
    for i in range(3):
        L = a.label("og")
        a(f"""
        s_and_b32 s{sT}, s76, {0xf << (4*i)}
        s_cbranch_scc1 {L}
        s_andn2_b32 s74, s74, {0xf << (4*i)}
        s_add_u32 s{sT}, s77, {3*i}
        s_bitset1_b32 s75, s{sT}
        s_lshl_b32 s{sT2}, s{sT}, 12
        s_add_u32 m0, s{sT2}, {OZ}
        s_add_u32 s{sT2}, s{sT2}, s78
        """)
        for n in range(4):
            a(f"buffer_load_dwordx4 v{vL16}, {WS}, s{sT2} offen offset:{1024*n}{LD} lds")
        a(f"""
        s_lshl_b32 s{sT2}, s{sT}, 9
        s_add_u32 m0, s{sT2}, {OZ + 32768}
        s_add_u32 s{sT2}, s{sT2}, s78
        s_add_u32 s{sT2}, s{sT2}, 32768
        s_mov_b64 exec, 0xffffffff
        buffer_load_dwordx4 v{vL16}, {WS}, s{sT2} offen{LD} lds
        s_mov_b64 exec, -1
        {L}:
        """)
    a(f"""
    s_cmp_eq_u32 s75, 0
    s_cbranch_scc1 {Lpc}
    v_mov_b32 v{t[1]}, s75
    s_mov_b64 exec, 1
    s_waitcnt vmcnt(0)
    ds_or_b32 v{t[0]}, v{t[1]} offset:{C_F}
    s_mov_b64 exec, -1
    s_cmp_eq_u32 s74, 0
    s_cbranch_scc0 {Lpl}
    """)
    a.stamp(20)
    a(f"""
    s_branch {Lend}
    {Lpc}:
    s_sleep {os.environ.get('OSLEEP', '3')}
    s_branch {Lpl}
    """)
    a(f"""{Lfin}:
    v_mov_b32 v{O1+10}, v{O0+10}
    s_lshl_b32 s{sK0}, s{sQt}, 5
    s_add_u32 s{sK0}, s{sK0}, s{sHd}
    v_permlane32_swap_b32 v{O0+10}, v{O1+10}
    s_lshl_b32 s{sK0}, s{sK0}, 7
    s_add_u32 s{sK0}, s{sK0}, {FL_O}
    s_mul_i32 s{sQt}, s{sQt}, {72*1024}
    s_add_u32 s{sQt}, s{sQt}, {OF_OFF}
    s_lshl_b32 s{sT}, s{sHd}, 7
    s_add_u32 s{sK1}, s{sQt}, s{sT}
    s_add_u32 s{sK1}, s{sK1}, 32768
    s_lshl_b32 s{sT}, s{sHd}, 10
    s_add_u32 s{sQt}, s{sQt}, s{sT}
    s_waitcnt lgkmcnt(2)
    """)
    for i in range(8): a(f"v_add_f32 v{O0+i}, v{O0+i}, v{8+i}")
    a("s_waitcnt lgkmcnt(0)")
    for i in range(8): a(f"v_add_f32 v{O1+i}, v{O1+i}, v{16+i}")
    a.c("softmax ran without max subtraction: valid only if the row sums stayed in a safe range, else redo with the true max")
    a(f"""
    L_norm:
    v_rcp_f32 v{t[0]}, v{O0+10}
    v_rcp_f32 v{t[1]}, v{O1+10}
    v_min_f32 v{t[2]}, v{O0+10}, v{O1+10}
    v_max_f32 v{t[3]}, v{O0+10}, v{O1+10}
    v_cmp_le_f32 s[74:75], {fbits(2.0**-40) if False else 's72'}, v{t[2]}
    v_cmp_ge_f32 s[76:77], s73, v{t[3]}
    v_cmp_gt_u32 vcc, 32, v1
    """)
    for X, O in enumerate((O0, O1)):
        for i in range(8): a(f"v_mul_f32 v{O+i}, v{O+i}, v{t[X]}")
    a(f"""
    v_cndmask_b32 v{t[0]}, v{t[1]}, v{t[0]}, vcc
    s_and_b64 s[74:75], s[74:75], s[76:77]
    v_mul_f32 v{O0+8}, v{O0+8}, v{t[0]}
    v_mul_f32 v{O0+9}, v{O0+9}, v{t[0]}
    """)
    for X, O in enumerate((O0, O1)):
        for i in range(4): a(f"v_cvt_pk_bf16_f32 v{8+4*X+i}, v{O+2*i}, v{O+2*i+1}")
    a(f"v_cvt_pk_bf16_f32 v16, v{O0+8}, v{O0+9}")
    a(f"""
    v_add_f32 v{t[2]}, v{O0+8}, v{O0+9}
    """)
    for i in range(0, 8, 2):
        a(f"v_add3_f32 v{t[2]}, v{t[2]}, v{O0+i}, v{O0+i+1}" if False else f"v_add_f32 v{O0+i}, v{O0+i}, v{O0+i+1}\nv_add_f32 v{O1+i}, v{O1+i}, v{O1+i+1}")
    a(f"""
    v_add_f32 v{O0}, v{O0}, v{O0+2}
    v_add_f32 v{O0+4}, v{O0+4}, v{O0+6}
    v_add_f32 v{O1}, v{O1}, v{O1+2}
    v_add_f32 v{O1+4}, v{O1+4}, v{O1+6}
    v_add_f32 v{O0}, v{O0}, v{O0+4}
    v_add_f32 v{O1}, v{O1}, v{O1+4}
    v_add_f32 v{t[2]}, v{t[2]}, v{O0}
    v_add_f32 v{t[2]}, v{t[2]}, v{O1}
    v_and_b32 v{t[3]}, 31, v1
    v_cmp_class_f32 vcc, v{t[2]}, s64
    v_lshrrev_b32 v{t[1]}, 5, v1
    v_mul_u32_u24 v{t[1]}, {36*1024}, v{t[1]}
    s_and_b64 s[74:75], s[74:75], vcc
    s_or_b64 s[74:75], s[74:75], s[62:63]
    v_lshl_add_u32 v{t[3]}, v{t[3]}, 2, v{t[1]}
    s_cmp_eq_u64 s[74:75], -1
    s_cbranch_scc0 L_fallback
    buffer_store_dwordx4 v[8:11], v{vL16}, {WS}, s{sQt} offen{ST}
    s_add_u32 s{sQt}, s{sQt}, {36*1024}
    buffer_store_dwordx4 v[12:15], v{vL16}, {WS}, s{sQt} offen{ST}
    buffer_store_dword v16, v{t[3]}, {WS}, s{sK1} offen{ST}
    """)
    a.stamp(19)
    a(f"v_mov_b32 v{t[0]}, s{S_TAG}\nv_lshlrev_b32 v{t[1]}, 2, v1\ns_mov_b64 exec, 0xffff\ns_waitcnt vmcnt(0)\nbuffer_store_dword v{t[0]}, v{t[1]}, {WS}, s{sK0} offen sc1\ns_mov_b64 exec, -1")
    a.stamp(20)
    a(f"""
    s_lshl_b32 s{sT}, s2, 4
    s_add_u32 s{sT}, s{sT}, s{S_WAVE}
    s_cmp_lg_u32 s{sT}, 12
    s_cbranch_scc1 {Lend}
    s_mov_b32 s{sT2}, {FL_OFF}
    """)
    flag_store(a, t[0], sT2)
    a(f"{Lend}:")
    def cold():
        a("L_fallback:")
        a(f"s_mov_b32 s82, {CNT+12}")
        lds_spin(a, t[0], t[1], 4, sT, saddr=82, off=C_E)
        fallback(a, r, t, vL16, sKV, sQP, sT, sT2)
        a(f"""
        v_cmp_gt_u32 vcc, 32, v1
        s_mov_b64 s[62:63], -1
        s_nop 0
        v_cndmask_b32 v{O0+8}, v{O1+8}, v{O0+8}, vcc
        v_cndmask_b32 v{O0+9}, v{O1+9}, v{O0+9}, vcc
        s_branch L_norm
        """)
    return cold

def fallback(a, r, t, vL16, sKV, sQP, sT, sT2):
    S, NM = r.S[0], r.S[1]
    sI, sP, sLds = 76, 77, 82
    vM, vKxo = r.aK, r.aKx
    a(f"""
    s_lshl_b32 s{sT}, s{sQP}, 11
    s_add_u32 s{sLds}, s{sT}, {REG_B + 3*BLK}
    v_and_b32 v{vKxo}, 31, v1
    v_lshlrev_b32 v{vKxo}, 3, v{vKxo}
    v_mov_b32 v{r.Kx+1}, 0
    """)
    for i in range(4): a(f"v_add_u32 v{r.aV+i}, s{sT}, v{r.aV+i}")
    for X in range(2):
        O = r.O[X]
        Lp, Lt, Lp2, Lnx, Ldn = a.label("fbpass"), a.label("fbtile"), a.label("fbp2"), a.label("fbnx"), a.label("fbdone")
        a(f"v_mov_b32 v{vM}, 0xff800000\ns_mov_b32 s{sP}, 0")
        for i in range(16): a(f"v_mov_b32 v{NM+i}, 0\nv_mov_b32 v{O+i}, 0")
        a(f"""{Lp}:
        s_mov_b32 s{sI}, 0
        {Lt}:
        s_lshr_b32 s{sT}, s{sI}, 3
        s_mul_i32 s{sT}, s{sT}, {BLK}
        s_add_u32 s{sT}, s{sT}, s{sKV}
        s_and_b32 s{sT2}, s{sI}, 7
        s_lshl_b32 s78, s{sT2}, 10
        s_add_u32 s78, s78, s{sT}
        buffer_load_dwordx4 {vr(r.K,4)}, v{vL16}, {WS}, s78 offen{LD}
        s_and_b32 s78, s{sI}, 6
        s_lshl_b32 s78, s78, 7
        s_and_b32 s79, s{sI}, 1
        s_lshl_b32 s79, s79, 2
        s_add_u32 s78, s78, s79
        s_add_u32 s78, s78, s{sT}
        s_add_u32 s78, s78, {KX_OFF}
        buffer_load_dword v{r.Kx}, v{vKxo}, {WS}, s78 offen{LD}
        s_mul_i32 s78, s{sT2}, 1280
        s_add_u32 s78, s78, s{sT}
        s_add_u32 s78, s78, {V_OFF}
        s_mov_b32 m0, s{sLds}
        s_nop 0
        buffer_load_dwordx4 v{vL16}, {WS}, s78 offen{LD} lds
        s_mov_b64 exec, 0xffff
        buffer_load_dwordx4 v{vL16}, {WS}, s78 offen offset:1024{LD} lds
        s_mov_b64 exec, -1
        s_waitcnt vmcnt(0)
        v_mfma_f32_32x32x8_bf16 {vr(S,16)}, {vr(r.Kx,2)}, {vr(r.Qx[X],2)}, {vr(NM,16)}
        v_mfma_f32_32x32x16_bf16 {vr(S,16)}, {vr(r.K,4)}, {vr(r.Qm[X],4)}, {vr(S,16)}
        ds_read_b64_tr_b16 {vr(r.V0,2)}, v{r.aV}
        ds_read_b64_tr_b16 {vr(r.V0+2,2)}, v{r.aV+1}
        ds_read_b64_tr_b16 {vr(r.V1,2)}, v{r.aV+2}
        ds_read_b64_tr_b16 {vr(r.V1+2,2)}, v{r.aV+3}
        s_waitcnt lgkmcnt(0)
        s_nop 15
        s_cmp_lg_u32 s{sP}, 0
        s_cbranch_scc1 {Lp2}
        """)
        for i in range(8): a(f"v_max3_f32 v{vM}, v{S+2*i}, v{S+2*i+1}, v{vM}")
        a(f"s_branch {Lnx}\n{Lp2}:")
        E(a, S, 0, 16)
        a(f"""
        s_nop 1
        v_smfmac_f32_32x32x32_bf16 {vr(O,16)}, {vr(r.V0,4)}, {vr(S,8)}, v{r.idx}
        v_smfmac_f32_32x32x32_bf16 {vr(O,16)}, {vr(r.V1,4)}, {vr(S+8,8)}, v{r.idx}
        {Lnx}:
        s_add_u32 s{sI}, s{sI}, 1
        s_cmp_lt_u32 s{sI}, 64
        s_cbranch_scc1 {Lt}
        s_cmp_lg_u32 s{sP}, 0
        s_cbranch_scc1 {Ldn}
        v_mov_b32 v{t[2]}, v{vM}
        s_nop 1
        v_permlane32_swap_b32 v{vM}, v{t[2]}
        s_nop 1
        v_max_f32 v{vM}, v{vM}, v{t[2]}
        """)
        for i in range(16): a(f"v_sub_f32 v{NM+i}, 0, v{vM}")
        a(f"""
        s_mov_b32 s{sP}, 1
        s_branch {Lp}
        {Ldn}:
        s_nop 15
        """)
```

```python
from f1 import *

def conv_main(a, tiles, vA, vB, bufs, ACC):
    sb = Lgkm(a)
    n = max(tiles) + 1
    ops = []
    for rp in range(4):
        for i in range(n):
            for ti, t in enumerate(tiles):
                if t - i >= 0: ops.append((ti, ("A", i, rp), ("B", t - i, rp)))
    order, last = [], {}
    for k, (ti, x, y) in enumerate(ops):
        for f in (x, y):
            if f not in last: order.append(f)
            last[f] = k
    free = list(bufs); where = {}; nxt = [0]
    MAXO = int(os.environ.get('CMAXO', '15'))
    def try_load(force=False):
        if nxt[0] >= len(order) or not free: return False
        f = order[nxt[0]]
        cost = 2 if f[0] == "A" else 1
        if not force and len(sb.q) - sb.done + cost > MAXO: return False
        d = free.pop(0); where[f] = d; nxt[0] += 1
        w, i, rp = f
        if w == "A":
            off = 4032 - 64 * rp - 512 * i
            sb.load(f"ds_read_b64 {vr(d,2)}, v{vA} offset:{off}", rng(d, 2))
            sb.load(f"ds_read_b64 {vr(d+2,2)}, v{vA} offset:{off+8}", rng(d+2, 2))
        else:
            sb.load(f"ds_read_b128 {vr(d,4)}, v{vB} offset:{480 + 512*i - 64*rp}", rng(d, 4))
        return True
    while try_load(): pass
    started = set()
    for k, (ti, x, y) in enumerate(ops):
        while x not in where or y not in where:
            assert try_load(True)
        sb.need(list(rng(where[x], 4)) + list(rng(where[y], 4)))
        c = vr(ACC+4*ti, 4) if ti in started else "0"
        started.add(ti)
        a(f"v_mfma_f32_16x16x32_bf16 {vr(ACC+4*ti,4)}, {vr(where[x],4)}, {vr(where[y],4)}, {c}")
        for f in (x, y):
            if last[f] == k: free.append(where[f])
        if not try_load():
            if nxt[0] < len(order) and free and len(sb.q) - sb.done > MAXO - 3:
                keep = MAXO - 4
                a(f"s_waitcnt lgkmcnt({keep})"); sb.done = len(sb.q) - keep
                try_load()

class AR:
    def __init__(self, R):
        self.S = [R.alloc(16, 4), R.alloc(16, 4)]
        self.O = [R.alloc(16, 4), R.alloc(16, 4)]
        self.K = R.alloc(4, 4)
        self.Kx = R.alloc(4, 2)
        self.V0 = R.alloc(4, 4)
        self.V1 = R.alloc(4, 4)
        self.Qm = [R.alloc(4, 4), R.alloc(4, 4)]
        self.Qx = [R.alloc(8, 2), R.alloc(8, 2)]
        self.aK = R.alloc(); self.aKx = R.alloc(); self.aV = R.alloc(4, 1); self.idx = R.alloc()

def E(a, base, lo, n=4):
    for i in range(lo, lo + n):
        a(f"v_exp_f32 v{base+i}, v{base+i}")

def k_off(t): return (t & 7) * 1024
def kx_off(g): return KX_OFF + (g & 1) * 512
def v_off(t): return V_OFF + (t & 7) * 1280

class Al:
    def __init__(self, a, mode):
        self.a = a; self.mode = mode; self.sync()
    def sync(self):
        if self.mode: self.a(".p2align 3")
        if self.mode == 2: self.a("s_nop 0")
        self.par = 0; self.last_exp = None
    def __call__(self, txt):
        for ln in txt.split("\n"):
            ln = ln.strip()
            if not ln: continue
            op = ln.split()[0]
            big = op.startswith(("v_mfma", "v_smfmac", "ds_")) or (op == "v_add_u32")
            if big:
                if self.par and self.mode:
                    if self.last_exp is not None:
                        self.a.lines[self.last_exp] = self.a.lines[self.last_exp].replace("v_exp_f32", "v_exp_f32_e64")
                    else:
                        self.a("s_nop 0")
                    self.par = 0
                self.last_exp = None
                self.a(ln)
            else:
                self.a(ln); self.par ^= 1
                if op == "v_exp_f32": self.last_exp = len(self.a.lines) - 1

def attn_loop(a0, r, prio, pre_mid, post_mid):
    a = Al(a0, int(os.environ.get('ALIGN', '1')))
    A, B = r.S
    NT = 16
    def smf(o, v, p): a(f"v_smfmac_f32_32x32x32_bf16 {vr(o,16)}, {vr(v,4)}, {vr(p,8)}, v{r.idx}")
    def vread(dst, t, s):
        a(f"ds_read_b64_tr_b16 {vr(dst,2)}, v{r.aV+2*s} offset:{v_off(t)}")
        a(f"ds_read_b64_tr_b16 {vr(dst+2,2)}, v{r.aV+2*s+1} offset:{v_off(t)}")
    a(f"v_mfma_f32_32x32x8_bf16 {vr(A,16)}, {vr(r.Kx,2)}, {vr(r.Qx[0],2)}, 0")
    a(f"v_mfma_f32_32x32x16_bf16 {vr(A,16)}, {vr(r.K,4)}, {vr(r.Qm[0],4)}, {vr(A,16)}")
    for X in range(2):
        for i in range(16): a(f"v_mov_b32 v{r.O[X]+i}, 0")
    E(a, A, 0, 2)
    for t in range(NT):
        if t in prio: a(f"s_setprio {prio[t]}")
        kxp = r.Kx + 2 * ((t >> 2) & 1)
        if t > 0: smf(r.O[1], r.V1, B + 8)
        vread(r.V1, t, 1)
        E(a, A, 2)
        a(f"v_mfma_f32_32x32x8_bf16 {vr(B,16)}, {vr(kxp,2)}, {vr(r.Qx[1]+2*(t&3),2)}, 0")
        n_after = 2
        if (t & 7) == 0:
            a(f"ds_read_b64 {vr(r.Kx+2,2)}, v{r.aKx} offset:{kx_off(1)}")
            n_after += 1
        E(a, A, 6)
        a(f"v_mfma_f32_32x32x16_bf16 {vr(B,16)}, {vr(r.K,4)}, {vr(r.Qm[1],4)}, {vr(B,16)}")
        last = t == NT - 1
        if (t & 7) != 7:
            a(f"ds_read_b128 {vr(r.K,4)}, v{r.aK} offset:{k_off(t+1)}")
            n_after += 1
        else:
            a("s_nop 0")
        E(a, A, 10)
        a(f"s_waitcnt lgkmcnt({n_after})")
        smf(r.O[0], r.V0, A)
        if t in pre_mid: pre_mid[t](); a.sync()
        E(a, A, 14, 2)
        if 'nonop' not in EXP: a("s_nop 2")
        E(a, B, 0, 1)
        a("s_waitcnt lgkmcnt(0)")
        if t in post_mid: post_mid[t](); a.sync()
        if t == 7:
            a(f"""
            v_add_u32 v{r.aK}, {REG_B}, v{r.aK}
            v_add_u32 v{r.aKx}, {REG_B}, v{r.aKx}
            ds_read_b64 {vr(r.Kx,2)}, v{r.aKx} offset:{kx_off(0)}
            ds_read_b128 {vr(r.K,4)}, v{r.aK} offset:{k_off(0)}
            """)
            for i in range(4): a(f"v_add_u32 v{r.aV+i}, {REG_B}, v{r.aV+i}")
        tn = t + 1
        kxp = r.Kx + 2 * ((tn >> 2) & 1)
        smf(r.O[0], r.V1, A + 8)
        E(a, B, 1, 5)
        if t == 7: a("s_waitcnt lgkmcnt(0)")
        if not last:
            a(f"v_mfma_f32_32x32x8_bf16 {vr(A,16)}, {vr(kxp,2)}, {vr(r.Qx[0]+2*(tn&3),2)}, 0")
        E(a, B, 6)
        if not last:
            a(f"v_mfma_f32_32x32x16_bf16 {vr(A,16)}, {vr(r.K,4)}, {vr(r.Qm[0],4)}, {vr(A,16)}")
        E(a, B, 10)
        smf(r.O[1], r.V0, B)
        if not last:
            vread(r.V0, tn, 0)
        E(a, B, 14, 2)
        if not last:
            if 'nonop' not in EXP: a("s_nop 2")
            E(a, A, 0, 2)
    a("s_nop 1")
    smf(r.O[1], r.V1, B + 8)

PRIO = eval(os.environ.get('PRIO', '{0: 1, 6: 0, "M": 3, 11: 2, 13: 1, 14: 0}'))
SPARE = 2 * REG_B

def piece_lds(n):
    return n * 1024 if n < 76 else SPARE + (n - 76) * 1024

def phase23(a):
    sHd, sR, sQP, sKQ, sT, sT2, sC, sCB, sKV, sQt = 4, 5, 6, 7, 8, 9, 10, 11, 12, 13
    sK0, sK1 = 14, 15
    sQT3, sDQ = 80, 81
    R = Regs(4, 128)
    t = [R.alloc() for _ in range(4)]
    r = AR(R)
    vL16 = R.alloc()
    PL = R.alloc(8, 4)
    assert PL == 120 and r.aK == 112
    Lld, LX = a.label("kvload"), a.label("X")
    a(f"""
    s_and_b32 s{sHd}, s2, 7
    s_lshl_b32 s{sQT3}, s{sHd}, 3
    s_lshl_b32 s{sHd}, s{sHd}, 2
    s_bfe_u32 s{sT}, s2, 0x20003
    s_add_u32 s{sHd}, s{sHd}, s{sT}
    s_lshr_b32 s{sR}, s2, 5
    s_bfe_u32 s{sT}, s2, 0x30003
    s_add_u32 s{sQT3}, s{sQT3}, s{sT}
    s_lshr_b32 s{sDQ}, s2, 6
    s_and_b32 s{sQP}, s{S_WAVE}, 3
    s_lshr_b32 s{sKQ}, s{S_WAVE}, 2
    v_lshlrev_b32 v{vL16}, 4, v1
    v_mov_b32 v{PL+4}, 0
    """)
    chan(a, sC, sKQ); area(a, sCB, sKQ)
    a(f"""
    s_mul_i32 s{sKV}, s{sHd}, {8*BLK}
    s_add_u32 s{sKV}, s{sKV}, {KV_OFF}
    s_cmp_eq_u32 s{sKQ}, 3
    s_cbranch_scc1 {Lld}
    s_cmp_ge_u32 s{sC}, 576
    s_cbranch_scc1 {LX}
    """)
    FA, FB, ACC = 8, 40, 72
    vA, vB, vY, vD = r.aK, r.aKx, r.aV, r.aV + 1
    Lts1, Lcj, Lsw = a.label("ts1"), a.label("cj"), a.label("sw")
    a(f"""
    s_lshl_b32 s{sT}, s{S_DV}, 16
    s_and_b32 s{S_DV}, s{S_DV}, 0xffff0000
    s_bitcmp0_b32 s{sC}, 0
    s_cselect_b32 s{S_DV}, s{sT}, s{S_DV}
    v_and_b32 v{t[0]}, 15, v1
    v_lshrrev_b32 v{t[1]}, 4, v1
    v_sub_u32 v{t[2]}, 15, v{t[0]}
    v_and_b32 v{t[3]}, 3, v{t[2]}
    v_and_b32 v{t[2]}, 12, v{t[2]}
    v_lshlrev_b32 v{t[2]}, 1, v{t[2]}
    v_lshl_add_u32 v{t[2]}, v{t[1]}, 4, v{t[2]}
    v_mul_u32_u24 v{t[3]}, {CP}, v{t[3]}
    s_and_b32 s{sT}, s{sQP}, 1
    s_lshl_b32 s{sT}, s{sT}, 8
    s_sub_u32 s{sT}, s{sCB}, s{sT}
    v_add3_u32 v{vA}, v{t[2]}, v{t[3]}, s{sT}
    v_lshlrev_b32 v{t[2]}, 5, v{t[0]}
    v_lshl_add_u32 v{t[3]}, v{t[1]}, 4, v{t[2]}
    s_add_u32 s{sT}, s{sT}, {UOFF}
    v_add_u32 v{vB}, s{sT}, v{t[3]}
    v_lshl_add_u32 v{vY}, v{t[1]}, 3, v{t[2]}
    s_lshl_b32 s82, s{sKQ}, 2
    s_add_u32 s82, s82, {CNT}
    """)
    lds_spin(a, t[0], t[1], 2, sT, saddr=82, off=C_RDY)
    a.stamp(5)
    a("s_setprio 2")
    if os.environ.get('C3PRIO'): a(f"s_cmp_lt_u32 s{sKQ}, 2\ns_cbranch_scc1 L_c3\ns_setprio {os.environ['C3PRIO']}\nL_c3:")
    T0, T1 = [7, 4, 3, 0], [6, 5, 2, 1]
    BUFS = list(range(8, 72, 4)) + list(range(88, 112, 4))
    a(f"s_cmp_ge_u32 s{sQP}, 2\ns_cbranch_scc1 {Lts1}")
    conv_main(a, T0, vA, vB, BUFS, ACC)
    a(f"s_cmp_eq_u32 s{sQP}, 0\ns_cselect_b32 s{sK0}, {T0[0]}, {T0[2]}\ns_cselect_b32 s{sK1}, {T0[1]}, {T0[3]}\ns_branch {Lcj}")
    a(f"{Lts1}:")
    conv_main(a, T1, vA, vB, BUFS, ACC)
    a(f"s_cmp_eq_u32 s{sQP}, 2\ns_cselect_b32 s{sK0}, {T1[0]}, {T1[2]}\ns_cselect_b32 s{sK1}, {T1[1]}, {T1[3]}")
    a(f"{Lcj}:")
    a.stamp(13)
    lds_inc(a, FB + 8, FB + 9, saddr=82, off=C_1)
    a(f"""
    s_lshl_b32 s{sK0}, s{sK0}, 9
    s_lshl_b32 s{sK1}, s{sK1}, 9
    s_lshl_b32 s{sT}, s{sQP}, 11
    s_add_u32 s{sT}, s{sT}, s{sCB}
    v_add_u32 v{t[0]}, s{sT}, v{vL16}
    s_xor_b32 s{sT}, s{sQP}, 1
    s_lshl_b32 s{sT}, s{sT}, 11
    s_add_u32 s{sT}, s{sT}, s{sCB}
    v_add_u32 v{t[1]}, s{sT}, v{vL16}
    s_add_u32 s{sT}, s{sCB}, s{sK0}
    v_add_u32 v{t[2]}, s{sT}, v{vY}
    s_add_u32 s{sT}, s{sCB}, s{sK1}
    v_add_u32 v{t[3]}, s{sT}, v{vY}
    ds_read_b64 {vr(FA,2)}, v{t[2]} offset:{UOFF+512}
    ds_read_b64 {vr(FA+2,2)}, v{t[3]} offset:{UOFF+512}
    s_bitcmp0_b32 s{sQP}, 0
    s_cbranch_scc1 {Lsw}
    """)
    for i in range(8):
        a(f"v_swap_b32 v{ACC+i}, v{ACC+8+i}")
    a(f"{Lsw}:")
    lds_spin(a, FB + 8, FB + 9, 4, sT, saddr=82, off=C_1)
    a(f"""
    ds_write_b128 v{t[0]}, {vr(ACC+8,4)}
    ds_write_b128 v{t[0]}, {vr(ACC+12,4)} offset:1024
    """)
    lds_inc(a, FB + 8, FB + 9, saddr=82, off=C_2)

    for j in range(2):
        for h in range(2):
            a(f"v_lshlrev_b32 v{FA+4}, 16, v{FA+2*j+h}")
            a(f"v_and_b32 v{FA+5}, 0xffff0000, v{FA+2*j+h}")
            a(f"v_fmac_f32 v{ACC+4*j+2*h}, s{S_DV}, v{FA+4}")
            a(f"v_fmac_f32 v{ACC+4*j+2*h+1}, s{S_DV}, v{FA+5}")
    lds_spin(a, FB + 8, FB + 9, 4, sT, saddr=82, off=C_2)
    a(f"""
    ds_read_b128 {vr(FB,4)}, v{t[1]}
    ds_read_b128 {vr(FB+4,4)}, v{t[1]} offset:1024
    s_lshl_b32 s{sT}, s{sC}, 12
    s_add_u32 s{sT}, s{sT}, {AT_OFF}
    s_add_u32 s{sK0}, s{sK0}, s{sT}
    s_add_u32 s{sK1}, s{sK1}, s{sT}
    s_waitcnt lgkmcnt(0)
    """)
    for i in range(8):
        a(f"v_add_f32 v{ACC+i}, v{ACC+i}, v{FB+i}")
    for i in range(4):
        a(f"v_cvt_pk_bf16_f32 v{PL+i}, v{ACC+2*i}, v{ACC+2*i+1}")
    a(f"""
    buffer_store_dwordx2 {vr(PL,2)}, v{vY}, {WS}, s{sK0} offen{ST}
    buffer_store_dwordx2 {vr(PL+2,2)}, v{vY}, {WS}, s{sK1} offen{ST}
    s_cmp_lt_u32 s{sKQ}, 2
    s_cbranch_scc1 {LX}
    s_waitcnt vmcnt(0)
    """)
    def publish_a(Lskip):
        lds_inc(a, t[0], t[1], off=C_A, rtn=sT)
        a(f"""
        s_cmp_lt_u32 s{S_C2}, 576
        s_cselect_b32 s{sT2}, 11, 7
        s_cmp_lg_u32 s{sT}, s{sT2}
        s_cbranch_scc1 {Lskip}
        """)
        lds_spin(a, t[0], t[1], 8, sT, off=C_S)
        a(f"s_lshl_b32 s{sT2}, s2, 2\ns_add_u32 s{sT2}, s{sT2}, {FL_A}")
        flag_store(a, t[0], sT2)
    publish_a(LX)
    a(f"s_branch {LX}")
    Lp, Lc, Lq, Lnq, Lgo = [a.label(x) for x in ("kp", "kc", "noqx", "nq", "go")]
    def kv_flags(vd, vt, quarter):
        a(f"""
        v_and_b32 v{vd}, 1, v1
        v_lshlrev_b32 v{vd}, 5, v{vd}
        v_add3_u32 v{vd}, v{vd}, 32, s{sHd}
        v_lshrrev_b32 v{vt}, 1, v1
        s_lshl_b32 s{sT}, s{quarter}, 2
        v_add_u32 v{vt}, s{sT}, v{vt}
        s_lshl_b32 s{sT}, s{sR}, 1
        s_lshr_b32 s{sT2}, s{sQP}, 1
        s_add_u32 s{sT}, s{sT}, s{sT2}
        v_writelane_b32 v{vd}, s{sHd}, 8
        v_writelane_b32 v{vt}, s{sT}, 8
        v_mul_u32_u24 v{vd}, 43, v{vd}
        v_lshrrev_b32 v{vd}, 8, v{vd}
        v_lshl_add_u32 v{vd}, v{vd}, 4, v{vt}
        v_lshlrev_b32 v{vd}, 7, v{vd}
        v_add_u32 v{vd}, {FL_Q}, v{vd}
        """)
    a(f"{Lld}:")
    kv_flags(t[2], t[3], sQP)
    lds_spin(a, t[0], t[1], 8, sT, off=C_S if 'early' in EXP else C_FREE)
    a(f"""
    s_lshl_b32 s74, s{sHd}, 3
    s_add_u32 s74, s74, s{sR}
    s_lshl_b32 s75, s74, 2
    s_add_u32 s75, s75, s{sQP}
    s_mov_b32 s76, 0
    s_lshl_b32 s82, s{sQP}, 2
    s_add_u32 s82, s82, {CNT + C_Q}
    v_mov_b32 v{PL}, s82
    v_mov_b32 v{PL+1}, 1
    s_mov_b32 s{S_SPIN}, {SPIN_MAX}
    {Lp}:
    s_mov_b64 exec, 0x1ff
    buffer_load_dword v{t[3]}, v{t[2]}, {WS}, 0 offen sc1
    s_cmp_lg_u32 s76, 1
    s_cbranch_scc1 {Lq}
    s_mov_b32 s76, 2
    s_waitcnt vmcnt(1)
    ds_write_b32 v{PL}, v{PL+1}
    {Lq}:
    s_waitcnt vmcnt(0)
    v_cmp_ne_u32 vcc, s{S_TAG}, v{t[3]}
    s_mov_b64 exec, -1
    s_sub_u32 s{S_SPIN}, s{S_SPIN}, 1
    s_cselect_b32 vcc_lo, 0, vcc_lo
    s_bitcmp1_b32 vcc_lo, 8
    s_cbranch_scc1 {Lc}
    s_cmp_lg_u32 s76, 0
    s_cbranch_scc1 {Lnq}
    s_mov_b32 s76, 1
    s_lshl_b32 s{sT}, s{sQP}, 11
    s_add_u32 m0, s{sT}, {QST}
    s_lshl_b32 s{sT2}, s75, 11
    s_add_u32 s{sT2}, s{sT2}, {QF_OFF}
    buffer_load_dwordx4 v{vL16}, {WS}, s{sT2} offen{LD} lds
    buffer_load_dwordx4 v{vL16}, {WS}, s{sT2} offen offset:1024{LD} lds
    s_lshl_b32 s{sT}, s{sQP}, 8
    s_add_u32 m0, s{sT}, {QST+8192}
    s_lshl_b32 s{sT2}, s75, 8
    s_add_u32 s{sT2}, s{sT2}, {QX_OFF}
    s_mov_b64 exec, 0xffff
    buffer_load_dwordx4 v{vL16}, {WS}, s{sT2} offen{LD} lds
    s_mov_b64 exec, -1
    {Lnq}:
    s_mov_b32 s77, 0
    s_and_b32 s{sT}, vcc_lo, 0x0f
    s_cbranch_scc0 {Lgo}
    s_mov_b32 s77, 1
    s_and_b32 s{sT}, vcc_lo, 0xf0
    s_cbranch_scc0 {Lgo}
    {Lc}:
    s_sleep {os.environ.get('PSLEEP', '3')}
    s_branch {Lp}
    {Lgo}:
    """)
    a.stamp(5)
    a(f"""
    s_lshl_b32 s{sT}, s{sQP}, 1
    s_add_u32 s{sT}, s{sT}, s77
    s_mul_i32 s{sT}, s{sT}, {BLK}
    s_add_u32 s{sT}, s{sT}, s{sKV}
    s_mul_i32 s82, s{sQP}, {BLK}
    """)
    def run(first, n):
        a(f"s_add_u32 m0, s82, {first*1024}\ns_add_u32 s{sT2}, s{sT}, {first*1024}")
        for i in range(n):
            a(f"buffer_load_dwordx4 v{vL16}, {WS}, s{sT2} offen offset:{1024*i}{LD} lds")
    run(0, 2); run(8, 4)
    a(f"""
    s_lshl_b32 s78, s{sQP}, 3
    s_add_u32 s78, s78, {CNT + C_KV}
    v_mov_b32 v{t[0]}, s78
    v_mov_b32 v{t[2]}, 1
    v_mov_b32 v{t[3]}, s77
    v_mov_b32 v{t[1]}, 2
    s_waitcnt vmcnt(0)
    ds_write_b32 v{PL}, v{PL+1}
    ds_write_b64 v{t[0]}, {vr(t[2],2)}
    s_waitcnt lgkmcnt(0)
    """)
    run(2, 4); run(12, 4); run(6, 2); run(16, 3)
    a(f"s_waitcnt vmcnt(0)\nds_write_b32 v{t[0]}, v{t[1]}")
    a(f"{LX}:")
    a(f"""
    s_mul_i32 s{sT}, s{sKQ}, {BLK}
    v_add_u32 v{r.aK}, s{sT}, v{vL16}
    v_lshl_add_u32 v{r.aKx}, v1, 3, s{sT}
    v_bfe_u32 v{t[0]}, v1, 2, 2
    v_and_b32 v{t[1]}, 1, v1
    v_lshlrev_b32 v{t[1]}, 4, v{t[1]}
    v_and_b32 v{t[2]}, 2, v1
    v_lshl_add_u32 v{t[1]}, v{t[2]}, 2, v{t[1]}
    v_lshl_add_u32 v{t[1]}, v{t[0]}, 5, v{t[1]}
    v_and_b32 v{t[3]}, 32, v1
    v_lshl_add_u32 v{t[1]}, v{t[3]}, 3, v{t[1]}
    v_lshl_add_u32 v{t[0]}, v{t[0]}, 3, v{t[3]}
    v_add_u32 v{t[0]}, 1152, v{t[0]}
    v_lshl_add_u32 v{t[0]}, v{t[2]}, 17, v{t[0]}
    v_and_b32 v{t[2]}, 16, v1
    v_cmp_eq_u32 vcc, 0, v{t[2]}
    v_lshlrev_b32 v{t[2]}, 4, v{t[2]}
    v_mov_b32 v{t[3]}, 512
    v_cndmask_b32 v{t[1]}, v{t[0]}, v{t[1]}, vcc
    v_add_u32 v{r.aV}, s{sT}, v{t[1]}
    v_sub_u32 v{t[2]}, 128, v{t[2]}
    v_cndmask_b32 v{t[3]}, 64, v{t[3]}, vcc
    v_add_u32 v{r.aV+1}, v{r.aV}, v{t[2]}
    v_add_u32 v{r.aV+2}, v{r.aV}, v{t[3]}
    v_add_u32 v{r.aV+3}, v{r.aV+2}, v{t[2]}
    v_mov_b32 v{r.idx}, 0xdddddddd
    s_mov_b32 s72, {fbits(2.0**-40)}
    s_mov_b32 s73, {fbits(2.0**60)}
    s_movk_i32 s64, 0x1f8
    s_mov_b64 s[62:63], 0
    s_lshl_b32 s{sT}, s{sQP}, 11
    s_add_u32 s{sT}, s{sT}, {QST}
    v_add_u32 v{t[0]}, s{sT}, v{vL16}
    v_and_b32 v{t[1]}, 31, v1
    s_lshl_b32 s{sT}, s{sQP}, 8
    s_add_u32 s{sT}, s{sT}, {QST+8192}
    v_lshl_add_u32 v{t[1]}, v{t[1]}, 2, s{sT}
    v_cmp_gt_u32 vcc, 32, v1
    s_lshl_b32 s{sQt}, s{sR}, 2
    s_add_u32 s{sQt}, s{sQt}, s{sQP}
    """)
    for X in range(2):
        for i in (1, 2, 5, 6): a(f"v_mov_b32 v{r.Qx[X]+i}, 0")
    a.stamp(6)
    a(f"s_lshl_b32 s82, s{sQP}, 2\ns_add_u32 s82, s82, {CNT}\ns_lshl_b32 s83, s{sKQ}, 3\ns_add_u32 s83, s83, {CNT}")
    lds_spin(a, PL, PL + 1, 1, sT, saddr=82, off=C_Q)
    a(f"""
    ds_read_b128 {vr(r.Qm[0],4)}, v{t[0]}
    ds_read_b128 {vr(r.Qm[1],4)}, v{t[0]} offset:1024
    ds_read2_b32 {vr(t[2],2)}, v{t[1]} offset0:0 offset1:32
    """)
    lds_inc(a, PL, PL + 1, off=C_Y)
    lds_spin(a, PL, PL + 1, 1, sT, saddr=83, off=C_KV)
    a(f"""
    ds_read_b64 {vr(r.Kx,2)}, v{r.aKx} offset:{kx_off(0)}
    ds_read_b128 {vr(r.K,4)}, v{r.aK} offset:{k_off(0)}
    ds_read_b64_tr_b16 {vr(r.V0,2)}, v{r.aV} offset:{v_off(0)}
    ds_read_b64_tr_b16 {vr(r.V0+2,2)}, v{r.aV+1} offset:{v_off(0)}
    """)
    for X in range(2):
        q = r.Qx[X]; src = t[2] + X
        a(f"""
        v_cndmask_b32 v{q+0}, 0, v{src}, vcc
        v_cndmask_b32 v{q+3}, 0, v{src}, vcc
        v_cndmask_b32 v{q+4}, v{src}, 0, vcc
        v_cndmask_b32 v{q+7}, v{src}, 0, vcc
        """)
    def stage2_pre():
        a(f"v_mov_b32 v{t[0]}, s83\nds_read_b32 v{t[1]}, v{t[0]} offset:{C_KV}")
    def stage2_post():
        L = a.label("cok")
        a(f"v_cmp_gt_u32 vcc, 2, v{t[1]}\ns_cbranch_vccz {L}")
        lds_spin(a, t[0], t[1], 2, sT, saddr=83, off=C_KV)
        a(f"{L}:")
    def wt_issue():
        L = a.label("nw")
        a(f"s_cmp_ge_u32 s{S_WAVE}, 3\ns_cbranch_scc1 {L}\ns_lshl_b32 s79, s{S_WAVE}, 8\ns_add_u32 s79, s79, s2")
        wt_load(a, 79, sT, 78, 77, 76, 75, t[0], t[1], t[2], PL)
        a(f"{L}:")
    def wt_put():
        L, Ls = a.label("nw"), a.label("ns")
        a(f"s_cmp_ge_u32 s{S_WAVE}, 8\ns_cbranch_scc1 {Ls}\ns_cmp_ge_u32 s{S_WAVE}, 3\ns_cbranch_scc1 {L}\ns_waitcnt vmcnt(0)")
        wt_store(a, 79, PL, vL16)
        a(f"{L}:\ns_lshr_b32 s78, s{S_WAVE}, 1")
        kv_flags(PL + 4, PL + 5, 78)
        a("s_mov_b64 exec, 0xff")
        poll_issue(a, PL + 5, 1, PL + 4, 0)
        a(f"s_mov_b64 exec, -1\n{Ls}:")
    def second_blocks():
        Ls, Lw = a.label("kvs"), a.label("nw")
        a(f"s_cmp_ge_u32 s{S_WAVE}, 8\ns_cbranch_scc1 {Ls}\ns_mov_b64 exec, 0xff")
        poll_wait(a, PL + 5, 1, PL + 4, 0, issued=True)
        a("s_mov_b64 exec, -1")
        publish_a(Lw)
        a(f"{Lw}:")
        lds_spin(a, t[0], t[1], 16, sT, off=C_Y)
        a(f"s_lshl_b32 s82, s78, 3\ns_add_u32 s82, s82, {CNT}")
        lds_spin(a, t[0], t[1], 1, sT, saddr=82, off=C_KV)
        a(f"""
        ds_read_b32 v{t[1]}, v{t[0]} offset:{C_KV+4}
        s_and_b32 s{sT}, s{S_WAVE}, 6
        s_waitcnt lgkmcnt(0)
        v_readfirstlane_b32 s{sT2}, v{t[1]}
        s_xor_b32 s{sT2}, s{sT2}, 1
        s_and_b32 s{sT2}, s{sT2}, 1
        s_add_u32 s{sT}, s{sT}, s{sT2}
        s_mul_i32 s{sT}, s{sT}, {BLK}
        s_add_u32 s{sT}, s{sT}, s{sKV}
        s_and_b32 s{sT2}, s{S_WAVE}, 1
        s_mul_i32 s{sT2}, s{sT2}, 9216
        s_add_u32 s{sT}, s{sT}, s{sT2}
        s_mul_i32 s82, s78, {BLK}
        s_add_u32 s82, s82, s{sT2}
        s_add_u32 m0, s82, {REG_B}
        s_nop 0
        """)
        for i in range(10):
            a(f"buffer_load_dwordx4 v{vL16}, {WS}, s{sT} offen offset:{1024*(i&3)}{LD} lds")
            if i & 3 == 3: a(f"s_add_u32 m0, m0, 4096\ns_add_u32 s{sT}, s{sT}, 4096")
        a(f"{Ls}:")
    a("s_waitcnt lgkmcnt(2)\ns_nop 0")
    a.stamp(7)
    def poll_post():
        L = a.label("nopa")
        a(f"s_cmp_lg_u32 s{S_WAVE}, 0\ns_cbranch_scc1 {L}")
        poll_issue(a, PL, 4, vL16, FL_A)
        a(f"{L}:")
    def poll_check():
        L = a.label("nopw")
        a(f"s_cmp_lg_u32 s{S_WAVE}, 0\ns_cbranch_scc1 {L}")
        poll_wait(a, PL, 4, vL16, FL_A, issued=True)
        lds_inc(a, t[0], t[1], off=C_FA)
        a(f"{L}:")
    def mid_post():
        a("s_waitcnt vmcnt(0)")
        a.stamp(15)
        a(f"s_setprio {PRIO['M']}\ns_barrier")
        a.stamp(16)
    NLD = 8
    def prefetch_post():
        La, Ld = a.label("pfa"), a.label("pfd")
        a(f"""
        s_cmp_ge_u32 s{S_WAVE}, {0 if 'nopf' in EXP else 9}
        s_cbranch_scc1 {La}
        """)
        lds_spin(a, t[0], t[1], 1, sT, off=C_FA)
        a(f"""
        s_mul_i32 s{sT}, s{sDQ}, 9
        s_add_u32 s{sT}, s{sT}, s{S_WAVE}
        s_lshl_b32 m0, s{S_WAVE}, 13
        s_mul_i32 s{sT}, s{sT}, {18*1024}
        s_add_u32 s{sT}, s{sT}, {WT_OFF}
        """)
        for n in range(NLD):
            a(f"buffer_load_dwordx4 v{vL16}, {WS}, s{sT} offen offset:{1024*(n&3)}{LD} lds")
            if n == 3: a(f"s_add_u32 m0, m0, 4096\ns_add_u32 s{sT}, s{sT}, 4096")
        a(f"""
        v_lshrrev_b32 v{t[0]}, 2, v1
        v_lshlrev_b32 v{t[0]}, 12, v{t[0]}
        v_and_b32 v{t[1]}, 3, v1
        v_lshl_add_u32 v{t[0]}, v{t[1]}, 4, v{t[0]}
        s_mul_i32 s{sT}, s{sDQ}, 9
        s_add_u32 s{sT}, s{sT}, s{S_WAVE}
        s_lshl_b32 s{sT}, s{sT}, 16
        s_lshl_b32 s{sT2}, s{sQT3}, 6
        s_add_u32 s{sT}, s{sT}, s{sT2}
        s_add_u32 s{sT}, s{sT}, {AT_OFF}
        s_lshl_b32 s{sK1}, s{S_WAVE}, 10
        s_add_u32 s{sT2}, s{sK1}, {SPARE - 4096}
        s_add_u32 s{sK1}, s{sK1}, {72*1024}
        s_cmp_ge_u32 s{S_WAVE}, 4
        s_cselect_b32 s{sK1}, s{sT2}, s{sK1}
        s_mov_b32 m0, s{sK1}
        s_nop 0
        buffer_load_dwordx4 v{t[0]}, {WS}, s{sT} offen{LD} lds
        {La}:
        """)
    attn_loop(a, r, PRIO, {0: stage2_pre}, {0: lambda: (stage2_post(), wt_issue()), 3: wt_put, 5: second_blocks, 7: mid_post, 8: poll_post, 10: poll_check, 11: prefetch_post})
    a('s_setprio 3')
    a.stamp(8)
    O0, O1 = r.O
    FD = [72 + 4*i for i in range(10)]
    FL = [8 + 4*i for i in range(8)]
    FA3 = FL + FD
    AV, vG, vB, vOut, ACC3, FB3 = 112, 116, 118, t[3], PL, 40
    OZ = REG_B + BLK
    Lfin, Lp9, Lend, Lfirst, Lwr = [a.label(x) for x in ("fin", "p9", "end", "first", "wr")]
    a(f"""
    s_lshl_b32 s82, s{sKQ}, 2
    s_add_u32 s82, s82, {CNT}
    """)
    lds_inc(a, t[0], t[1], saddr=82, off=C_E)
    a(f"""
    s_lshl_b32 s83, s{sQP}, 2
    s_add_u32 s83, s83, {CNT}
    s_mul_i32 s{sCB}, s{sQP}, 4864
    s_add_u32 s{sCB}, s{sCB}, {REG_B}
    v_cmp_gt_u32 vcc, 32, v1
    v_add_u32 v{t[2]}, s{sCB}, v{vL16}
    v_lshl_add_u32 v{t[3]}, v1, 3, s{sCB}
    v_lshl_add_u32 v{r.aK}, v1, 2, s{sCB}
    """)
    for i in range(3): a(f"v_cndmask_b32 v{O0+8+i}, v{O1+8+i}, v{O0+8+i}, vcc")
    a(f"s_cmp_eq_u32 s{sKQ}, 0\ns_cbranch_scc1 {Lfirst}")
    lds_spin(a, t[0], t[1], f"s{sKQ}", sT, saddr=83, off=C_P)
    a.stamp(18)
    a(f"""
    ds_read_b64 v[24:25], v{t[3]} offset:4096
    ds_read_b32 v26, v{r.aK} offset:4608
    ds_read_b128 v[8:11], v{t[2]}
    ds_read_b128 v[12:15], v{t[2]} offset:1024
    ds_read_b128 v[16:19], v{t[2]} offset:2048
    ds_read_b128 v[20:23], v{t[2]} offset:3072
    s_waitcnt lgkmcnt(4)
    """)
    for i in range(3): a(f"v_add_f32 v{O0+8+i}, v{O0+8+i}, v{24+i}")
    a(f"s_cmp_eq_u32 s{sKQ}, 3\ns_cbranch_scc1 {Lfin}\ns_waitcnt lgkmcnt(2)")
    for i in range(8): a(f"v_add_f32 v{O0+i}, v{O0+i}, v{8+i}")
    a("s_waitcnt lgkmcnt(0)")
    for i in range(8): a(f"v_add_f32 v{O1+i}, v{O1+i}, v{16+i}")
    a(f"s_branch {Lwr}\n{Lfirst}:")
    lds_spin(a, t[0], t[1], 4, sT, saddr=82, off=C_E)
    a(f"""{Lwr}:
    ds_write_b128 v{t[2]}, {vr(O0,4)}
    ds_write_b128 v{t[2]}, {vr(O0+4,4)} offset:1024
    ds_write_b128 v{t[2]}, {vr(O1,4)} offset:2048
    ds_write_b128 v{t[2]}, {vr(O1+4,4)} offset:3072
    ds_write_b64 v{t[3]}, {vr(O0+8,2)} offset:4096
    ds_write_b32 v{r.aK}, v{O0+10} offset:4608
    """)
    lds_inc(a, t[0], t[1], saddr=83, off=C_P)
    a("s_setprio 0")
    a.stamp(17)
    a(f"""
    s_cmp_ge_u32 s{S_WAVE}, 9
    s_cbranch_scc1 {Lp9}
    v_and_b32 v{t[2]}, 15, v1
    v_lshlrev_b32 v{t[2]}, 2, v{t[2]}
    s_lshl_b32 s{sT}, s{sQT3}, 7
    s_add_u32 s{sT}, s{sT}, {G_OFF}
    s_waitcnt lgkmcnt(0)
    buffer_load_dword v{vG}, v{t[2]}, {WS}, s{sT} offen{LD}
    buffer_load_dword v{vG+1}, v{t[2]}, {WS}, s{sT} offen offset:64{LD}
    s_mul_i32 s{sK0}, s{sDQ}, 9
    s_add_u32 s{sK0}, s{sK0}, s{S_WAVE}
    s_mul_i32 s{sT}, s{sK0}, {18*1024}
    s_add_u32 s{sT}, s{sT}, {WT_OFF + NLD*1024}
    """)
    for n in range(10):
        a(f"buffer_load_dwordx4 {vr(FD[n],4)}, v{vL16}, {WS}, s{sT} offen offset:{1024*(n&3)}{LD}")
        if n & 3 == 3: a(f"s_add_u32 s{sT}, s{sT}, 4096")
    a(f"""
    s_lshl_b32 s{sT}, s{S_WAVE}, 13
    v_add_u32 v{t[0]}, s{sT}, v{vL16}
    v_lshrrev_b32 v{t[1]}, 2, v1
    v_lshlrev_b32 v{t[1]}, 6, v{t[1]}
    v_and_b32 v{t[2]}, 3, v1
    v_lshl_add_u32 v{t[1]}, v{t[2]}, 3, v{t[1]}
    v_add_u32 v{t[1]}, s{sK1}, v{t[1]}
    s_waitcnt vmcnt(10)
    """)
    for ks in range(NLD):
        a(f"ds_read_b128 {vr(FL[ks],4)}, v{t[0]} offset:{1024*ks}")
    a(f"""
    ds_read_b64_tr_b16 {vr(AV,2)}, v{t[1]}
    ds_read_b64_tr_b16 {vr(AV+2,2)}, v{t[1]} offset:32
    v_lshrrev_b32 v{t[0]}, 4, v1
    v_and_b32 v{t[2]}, 15, v1
    v_lshlrev_b32 v{vB}, 9, v{t[0]}
    v_add_u32 v{vB}, {OZ}, v{vB}
    v_lshl_add_u32 v{vB+1}, v{t[2]}, 2, v{vB}
    v_add_u32 v{vB+1}, 32768, v{vB+1}
    v_lshl_add_u32 v{vB}, v{t[2]}, 4, v{vB}
    v_mul_u32_u24 v{vOut}, 1152, v{t[2]}
    v_lshl_add_u32 v{vOut}, v{t[0]}, 3, v{vOut}
    v_add_u32 v{t[2]}, 2048, v{vB+1}
    """)
    GA, OM = 60, 68
    for T in range(2):
        g = vG + T
        a(f"""
        v_cvt_pk_bf16_f32 v{g}, v{g}, v{g}
        v_and_b32 v{g}, 0xffff0000, v{g}
        v_mul_f32 v{g}, {fbits(-L_HI)}, v{g}
        v_exp_f32 v{g}, v{g}
        s_nop 0
        v_add_f32 v{g}, 1.0, v{g}
        v_rcp_f32 v{g}, v{g}
        s_nop 0
        v_cvt_pk_bf16_f32 v{g}, v{g}, v{g}
        v_and_b32 v{g}, 0xffff0000, v{g}
        v_sub_f32 v{OM+T}, 1.0, v{g}
        v_cvt_pk_bf16_f32 v{OM+T}, v{OM+T}, v{OM+T}
        v_and_b32 v{OM+T}, 0xffff0000, v{OM+T}
        """)
    for i in range(8): a(f"v_mov_b32 v{ACC3+i}, 0")
    a("s_waitcnt lgkmcnt(0)")
    for T in range(2):
        for h in range(2):
            a(f"v_lshlrev_b32 v{GA+4*T+2*h}, 16, v{AV+2*T+h}\nv_and_b32 v{GA+4*T+2*h+1}, 0xffff0000, v{AV+2*T+h}")
        for i in range(4): a(f"v_mul_f32 v{GA+4*T+i}, v{vG+T}, v{GA+4*T+i}")
    srd(a, R_A, P_OUT, X_BYTES)
    Lscan, Lall = a.label("scan"), a.label("all")
    a(f"""
    s_mul_i32 s{sT}, s{sQT3}, {32*1152}
    s_lshl_b32 s{sT2}, s{sK0}, 5
    s_add_u32 s{sK0}, s{sT}, s{sT2}
    s_add_u32 s{sK1}, s{sK0}, {16*1152}
    v_mov_b32 v{t[0]}, {CNT}
    s_mov_b32 s74, 0
    s_mov_b32 s{S_SPIN}, {SPIN_MAX}
    s_waitcnt vmcnt(0)
    s_setprio 2
    {Lscan}:
    ds_read_b32 v{t[1]}, v{t[0]} offset:{C_F}
    s_sub_u32 s{S_SPIN}, s{S_SPIN}, 1
    s_cbranch_scc1 {Lall}
    s_waitcnt lgkmcnt(0)
    v_readfirstlane_b32 s75, v{t[1]}
    s_andn2_b32 s76, s75, s74
    s_cbranch_scc1 {Lscan}_n
    s_sleep 1
    s_branch {Lscan}
    {Lscan}_n:
    s_mov_b32 s74, s75
    """)
    for g in range(8):
        L = a.label("grp")
        a(f"s_bitcmp0_b32 s76, {g}\ns_cbranch_scc1 {L}")
        for n in range(4):
            a(f"ds_read_b128 {vr(FB3+4*n,4)}, v{vB} offset:{(2*g+(n>>1))*2048 + (n&1)*256}")
        for n in range(4):
            T = n & 1
            a(f"s_waitcnt lgkmcnt({3-n})\nv_mfma_f32_16x16x32_bf16 {vr(ACC3+4*T,4)}, {vr(FA3[2*g+(n>>1)],4)}, {vr(FB3+4*n,4)}, {vr(ACC3+4*T,4)}")
        a(f"{L}:")
    a(f"s_cmp_lg_u32 s74, 0xff\ns_cbranch_scc1 {Lscan}\n{Lall}:")
    a.stamp(21)
    for n in range(4):
        va = vB + 1 if n < 2 else t[2]; T = n & 1; d = FB3 + 4 * n
        a(f"ds_read2_b32 {vr(d,2)}, v{va} offset0:{16*T} offset1:{16*T+32}")
        a(f"ds_read2_b32 {vr(d+2,2)}, v{va} offset0:{16*T+64} offset1:{16*T+96}")
    for n in range(4):
        T = n & 1
        a(f"s_waitcnt lgkmcnt({6-2*n})\nv_mfma_f32_16x16x32_bf16 {vr(ACC3+4*T,4)}, {vr(FA3[16+(n>>1)],4)}, {vr(FB3+4*n,4)}, {vr(ACC3+4*T,4)}")
    a("s_nop 6")
    for T in range(2):
        for i in range(4): a(f"v_fmac_f32 v{GA+4*T+i}, v{OM+T}, v{ACC3+4*T+i}")
        a(f"""
        v_cvt_pk_bf16_f32 v{8+2*T}, v{GA+4*T}, v{GA+4*T+1}
        v_cvt_pk_bf16_f32 v{9+2*T}, v{GA+4*T+2}, v{GA+4*T+3}
        buffer_store_dwordx2 {vr(8+2*T,2)}, v{vOut}, s[{R_A}:{R_A+3}], s{sK0 if T == 0 else sK1} offen
        """)
    a(f"s_branch {Lend}")
    Lpl, Lpc, Lpd = a.label("pl"), a.label("pc"), a.label("pd")
    a(f"{Lp9}:")
    lds_spin(a, t[0], t[1], 4, sT, off=C_E + 4)
    lds_spin(a, t[0], t[1], 4, sT, off=C_E + 8)
    a(f"""
    s_setprio 3
    s_sub_u32 s77, s{S_WAVE}, 9
    v_lshrrev_b32 v{t[2]}, 2, v1
    v_mul_u32_u24 v{t[2]}, 12, v{t[2]}
    v_and_b32 v{t[3]}, 3, v1
    s_lshl_b32 s{sT}, s77, 2
    v_add3_u32 v{t[2]}, v{t[2]}, v{t[3]}, s{sT}
    s_lshr_b32 s{sT}, s{sQT3}, 1
    s_lshl_b32 s{sT}, s{sT}, 12
    s_add_u32 s{sT}, s{sT}, {FL_O}
    v_lshl_add_u32 v{t[2]}, v{t[2]}, 7, s{sT}
    s_cmp_eq_u32 s77, 2
    s_movk_i32 s74, 0xfff
    s_cselect_b32 s74, 0xff, s74
    s_mov_b32 s75, 0
    s_mul_i32 s78, s{sQT3}, {36*1024}
    s_add_u32 s78, s78, {OF_OFF}
    v_mov_b32 v{t[0]}, {CNT}
    s_mov_b32 s{S_SPIN}, {SPIN_MAX}
    {Lpl}:
    s_mov_b32 exec_lo, s74
    s_mov_b32 exec_hi, 0
    buffer_load_dword v{t[3]}, v{t[2]}, {WS}, 0 offen sc1
    s_waitcnt vmcnt(0)
    v_cmp_ne_u32 vcc, s{S_TAG}, v{t[3]}
    s_mov_b64 exec, -1
    s_sub_u32 s{S_SPIN}, s{S_SPIN}, 1
    s_cselect_b32 vcc_lo, 0, vcc_lo
    s_orn2_b32 s76, vcc_lo, s74
    s_mov_b32 s75, 0
    """)
    for i in range(3):
        L = a.label("og")
        a(f"""
        s_and_b32 s{sT}, s76, {0xf << (4*i)}
        s_cbranch_scc1 {L}
        s_andn2_b32 s74, s74, {0xf << (4*i)}
        s_add_u32 s{sT}, s77, {3*i}
        s_bitset1_b32 s75, s{sT}
        s_lshl_b32 s{sT2}, s{sT}, 12
        s_add_u32 m0, s{sT2}, {OZ}
        s_add_u32 s{sT2}, s{sT2}, s78
        """)
        for n in range(4):
            a(f"buffer_load_dwordx4 v{vL16}, {WS}, s{sT2} offen offset:{1024*n}{LD} lds")
        a(f"""
        s_lshl_b32 s{sT2}, s{sT}, 9
        s_add_u32 m0, s{sT2}, {OZ + 32768}
        s_add_u32 s{sT2}, s{sT2}, s78
        s_add_u32 s{sT2}, s{sT2}, 32768
        s_mov_b64 exec, 0xffffffff
        buffer_load_dwordx4 v{vL16}, {WS}, s{sT2} offen{LD} lds
        s_mov_b64 exec, -1
        {L}:
        """)
    a(f"""
    s_cmp_eq_u32 s75, 0
    s_cbranch_scc1 {Lpc}
    v_mov_b32 v{t[1]}, s75
    s_mov_b64 exec, 1
    s_waitcnt vmcnt(0)
    ds_or_b32 v{t[0]}, v{t[1]} offset:{C_F}
    s_mov_b64 exec, -1
    s_cmp_eq_u32 s74, 0
    s_cbranch_scc0 {Lpl}
    """)
    a.stamp(20)
    a(f"""
    s_branch {Lend}
    {Lpc}:
    s_sleep {os.environ.get('OSLEEP', '3')}
    s_branch {Lpl}
    """)
    a(f"""{Lfin}:
    v_mov_b32 v{O1+10}, v{O0+10}
    s_lshl_b32 s{sK0}, s{sQt}, 5
    s_add_u32 s{sK0}, s{sK0}, s{sHd}
    v_permlane32_swap_b32 v{O0+10}, v{O1+10}
    s_lshl_b32 s{sK0}, s{sK0}, 7
    s_add_u32 s{sK0}, s{sK0}, {FL_O}
    s_mul_i32 s{sQt}, s{sQt}, {72*1024}
    s_add_u32 s{sQt}, s{sQt}, {OF_OFF}
    s_lshl_b32 s{sT}, s{sHd}, 7
    s_add_u32 s{sK1}, s{sQt}, s{sT}
    s_add_u32 s{sK1}, s{sK1}, 32768
    s_lshl_b32 s{sT}, s{sHd}, 10
    s_add_u32 s{sQt}, s{sQt}, s{sT}
    s_waitcnt lgkmcnt(2)
    """)
    for i in range(8): a(f"v_add_f32 v{O0+i}, v{O0+i}, v{8+i}")
    a("s_waitcnt lgkmcnt(0)")
    for i in range(8): a(f"v_add_f32 v{O1+i}, v{O1+i}, v{16+i}")
    a.c("softmax ran without max subtraction: valid only if the row sums stayed in a safe range, else redo with the true max")
    a(f"""
    L_norm:
    v_rcp_f32 v{t[0]}, v{O0+10}
    v_rcp_f32 v{t[1]}, v{O1+10}
    v_min_f32 v{t[2]}, v{O0+10}, v{O1+10}
    v_max_f32 v{t[3]}, v{O0+10}, v{O1+10}
    v_cmp_le_f32 s[74:75], {fbits(2.0**-40) if False else 's72'}, v{t[2]}
    v_cmp_ge_f32 s[76:77], s73, v{t[3]}
    v_cmp_gt_u32 vcc, 32, v1
    """)
    for X, O in enumerate((O0, O1)):
        for i in range(8): a(f"v_mul_f32 v{O+i}, v{O+i}, v{t[X]}")
    a(f"""
    v_cndmask_b32 v{t[0]}, v{t[1]}, v{t[0]}, vcc
    s_and_b64 s[74:75], s[74:75], s[76:77]
    v_mul_f32 v{O0+8}, v{O0+8}, v{t[0]}
    v_mul_f32 v{O0+9}, v{O0+9}, v{t[0]}
    """)
    for X, O in enumerate((O0, O1)):
        for i in range(4): a(f"v_cvt_pk_bf16_f32 v{8+4*X+i}, v{O+2*i}, v{O+2*i+1}")
    a(f"v_cvt_pk_bf16_f32 v16, v{O0+8}, v{O0+9}")
    a(f"""
    v_add_f32 v{t[2]}, v{O0+8}, v{O0+9}
    """)
    for i in range(0, 8, 2):
        a(f"v_add3_f32 v{t[2]}, v{t[2]}, v{O0+i}, v{O0+i+1}" if False else f"v_add_f32 v{O0+i}, v{O0+i}, v{O0+i+1}\nv_add_f32 v{O1+i}, v{O1+i}, v{O1+i+1}")
    a(f"""
    v_add_f32 v{O0}, v{O0}, v{O0+2}
    v_add_f32 v{O0+4}, v{O0+4}, v{O0+6}
    v_add_f32 v{O1}, v{O1}, v{O1+2}
    v_add_f32 v{O1+4}, v{O1+4}, v{O1+6}
    v_add_f32 v{O0}, v{O0}, v{O0+4}
    v_add_f32 v{O1}, v{O1}, v{O1+4}
    v_add_f32 v{t[2]}, v{t[2]}, v{O0}
    v_add_f32 v{t[2]}, v{t[2]}, v{O1}
    v_and_b32 v{t[3]}, 31, v1
    v_cmp_class_f32 vcc, v{t[2]}, s64
    v_lshrrev_b32 v{t[1]}, 5, v1
    v_mul_u32_u24 v{t[1]}, {36*1024}, v{t[1]}
    s_and_b64 s[74:75], s[74:75], vcc
    s_or_b64 s[74:75], s[74:75], s[62:63]
    v_lshl_add_u32 v{t[3]}, v{t[3]}, 2, v{t[1]}
    s_cmp_eq_u64 s[74:75], -1
    s_cbranch_scc0 L_fallback
    buffer_store_dwordx4 v[8:11], v{vL16}, {WS}, s{sQt} offen{ST}
    s_add_u32 s{sQt}, s{sQt}, {36*1024}
    buffer_store_dwordx4 v[12:15], v{vL16}, {WS}, s{sQt} offen{ST}
    buffer_store_dword v16, v{t[3]}, {WS}, s{sK1} offen{ST}
    """)
    a.stamp(19)
    a(f"v_mov_b32 v{t[0]}, s{S_TAG}\nv_lshlrev_b32 v{t[1]}, 2, v1\ns_mov_b64 exec, 0xffff\ns_waitcnt vmcnt(0)\nbuffer_store_dword v{t[0]}, v{t[1]}, {WS}, s{sK0} offen sc1\ns_mov_b64 exec, -1")
    a.stamp(20)
    a(f"""
    s_lshl_b32 s{sT}, s2, 4
    s_add_u32 s{sT}, s{sT}, s{S_WAVE}
    s_cmp_lg_u32 s{sT}, 12
    s_cbranch_scc1 {Lend}
    s_mov_b32 s{sT2}, {FL_OFF}
    """)
    flag_store(a, t[0], sT2)
    a(f"{Lend}:")
    def cold():
        a("L_fallback:")
        a(f"s_mov_b32 s82, {CNT+12}")
        lds_spin(a, t[0], t[1], 4, sT, saddr=82, off=C_E)
        fallback(a, r, t, vL16, sKV, sQP, sT, sT2)
        a(f"""
        v_cmp_gt_u32 vcc, 32, v1
        s_mov_b64 s[62:63], -1
        s_nop 0
        v_cndmask_b32 v{O0+8}, v{O1+8}, v{O0+8}, vcc
        v_cndmask_b32 v{O0+9}, v{O1+9}, v{O0+9}, vcc
        s_branch L_norm
        """)
    return cold

def fallback(a, r, t, vL16, sKV, sQP, sT, sT2):
    S, NM = r.S[0], r.S[1]
    sI, sP, sLds = 76, 77, 82
    vM, vKxo = r.aK, r.aKx
    a(f"""
    s_lshl_b32 s{sT}, s{sQP}, 11
    s_add_u32 s{sLds}, s{sT}, {REG_B + 3*BLK}
    v_and_b32 v{vKxo}, 31, v1
    v_lshlrev_b32 v{vKxo}, 3, v{vKxo}
    v_mov_b32 v{r.Kx+1}, 0
    """)
    for i in range(4): a(f"v_add_u32 v{r.aV+i}, s{sT}, v{r.aV+i}")
    for X in range(2):
        O = r.O[X]
        Lp, Lt, Lp2, Lnx, Ldn = a.label("fbpass"), a.label("fbtile"), a.label("fbp2"), a.label("fbnx"), a.label("fbdone")
        a(f"v_mov_b32 v{vM}, 0xff800000\ns_mov_b32 s{sP}, 0")
        for i in range(16): a(f"v_mov_b32 v{NM+i}, 0\nv_mov_b32 v{O+i}, 0")
        a(f"""{Lp}:
        s_mov_b32 s{sI}, 0
        {Lt}:
        s_lshr_b32 s{sT}, s{sI}, 3
        s_mul_i32 s{sT}, s{sT}, {BLK}
        s_add_u32 s{sT}, s{sT}, s{sKV}
        s_and_b32 s{sT2}, s{sI}, 7
        s_lshl_b32 s78, s{sT2}, 10
        s_add_u32 s78, s78, s{sT}
        buffer_load_dwordx4 {vr(r.K,4)}, v{vL16}, {WS}, s78 offen{LD}
        s_and_b32 s78, s{sI}, 6
        s_lshl_b32 s78, s78, 7
        s_and_b32 s79, s{sI}, 1
        s_lshl_b32 s79, s79, 2
        s_add_u32 s78, s78, s79
        s_add_u32 s78, s78, s{sT}
        s_add_u32 s78, s78, {KX_OFF}
        buffer_load_dword v{r.Kx}, v{vKxo}, {WS}, s78 offen{LD}
        s_mul_i32 s78, s{sT2}, 1280
        s_add_u32 s78, s78, s{sT}
        s_add_u32 s78, s78, {V_OFF}
        s_mov_b32 m0, s{sLds}
        s_nop 0
        buffer_load_dwordx4 v{vL16}, {WS}, s78 offen{LD} lds
        s_mov_b64 exec, 0xffff
        buffer_load_dwordx4 v{vL16}, {WS}, s78 offen offset:1024{LD} lds
        s_mov_b64 exec, -1
        s_waitcnt vmcnt(0)
        v_mfma_f32_32x32x8_bf16 {vr(S,16)}, {vr(r.Kx,2)}, {vr(r.Qx[X],2)}, {vr(NM,16)}
        v_mfma_f32_32x32x16_bf16 {vr(S,16)}, {vr(r.K,4)}, {vr(r.Qm[X],4)}, {vr(S,16)}
        ds_read_b64_tr_b16 {vr(r.V0,2)}, v{r.aV}
        ds_read_b64_tr_b16 {vr(r.V0+2,2)}, v{r.aV+1}
        ds_read_b64_tr_b16 {vr(r.V1,2)}, v{r.aV+2}
        ds_read_b64_tr_b16 {vr(r.V1+2,2)}, v{r.aV+3}
        s_waitcnt lgkmcnt(0)
        s_nop 15
        s_cmp_lg_u32 s{sP}, 0
        s_cbranch_scc1 {Lp2}
        """)
        for i in range(8): a(f"v_max3_f32 v{vM}, v{S+2*i}, v{S+2*i+1}, v{vM}")
        a(f"s_branch {Lnx}\n{Lp2}:")
        E(a, S, 0, 16)
        a(f"""
        s_nop 1
        v_smfmac_f32_32x32x32_bf16 {vr(O,16)}, {vr(r.V0,4)}, {vr(S,8)}, v{r.idx}
        v_smfmac_f32_32x32x32_bf16 {vr(O,16)}, {vr(r.V1,4)}, {vr(S+8,8)}, v{r.idx}
        {Lnx}:
        s_add_u32 s{sI}, s{sI}, 1
        s_cmp_lt_u32 s{sI}, 64
        s_cbranch_scc1 {Lt}
        s_cmp_lg_u32 s{sP}, 0
        s_cbranch_scc1 {Ldn}
        v_mov_b32 v{t[2]}, v{vM}
        s_nop 1
        v_permlane32_swap_b32 v{vM}, v{t[2]}
        s_nop 1
        v_max_f32 v{vM}, v{vM}, v{t[2]}
        """)
        for i in range(16): a(f"v_sub_f32 v{NM+i}, 0, v{vM}")
        a(f"""
        s_mov_b32 s{sP}, 1
        s_branch {Lp}
        {Ldn}:
        s_nop 15
        """)
```

```python
from asmlib import *
from layout import *
import math, struct, os
EXP = os.environ.get('EXP', '').split(',')

S_WAVE = 3
P_U, P_LA, P_AI, P_CR, P_CI, P_DT, P_D = 16, 18, 20, 22, 24, 26, 28
P_W, P_WO, P_G, P_OUT, P_DBG, P_WS = 32, 34, 36, 38, 40, 42
R_X, R_W, R_WS, R_A, R_B, R_C, R_D = 44, 48, 52, 56, 60, 64, 68
S_TAG = 30
S_SPIN = 31
S_DV = 70
S_FQ = 67
S_C2 = 68
S_CB = 71
WS = f"s[{R_WS}:{R_WS+3}]"
ST = " sc1"
LD = " sc1"

SLOT = 32768
KG_BASE = 4 * SLOT
KG_STRIDE = 4608
GT = KG_BASE + 6 * KG_STRIDE
CNT = 163328
C_RDY, C_1, C_2, C_Q, C_S, C_O, C_F, C_E, C_P = 0, 16, 32, 48, 64, 72, 76, 80, 96
C_FA = 68
C_TG = 224
C_Y, C_A, C_FREE, C_YR, C_KV = 136, 140, 144, 160, 192
VM_Y = 0
REG_B = 4 * BLK
CP = 4160
CH = 4 * CP + 512 + 4096
UOFF = 4 * CP
CA = 3 * SLOT
QST = REG_B
assert CA + 3 * CH <= CNT and CA + 2 * CH <= GT and QST + 9216 <= CA
NBAR1 = 9
UK = int(os.environ.get('UK', '0'))
LEAD = 3 if 'lead3' in EXP else 2
SPIN_MAX = 1 << 20

def chan(a, d, scs):
    a(f"s_lshl_b32 s{d}, s{scs}, 8\ns_add_u32 s{d}, s{d}, s{S_CB}\ns_cmp_eq_u32 s{scs}, 2\ns_cselect_b32 s{d}, s{S_C2}, s{d}")

def area(a, d, scs):
    a(f"s_mul_i32 s{d}, s{scs}, {CH}\ns_add_u32 s{d}, s{d}, {CA}")

def srd(a, r, p, nbytes):
    a(f"s_mov_b32 s{r}, s{p}\ns_mov_b32 s{r+1}, s{p+1}\ns_mov_b32 s{r+2}, {nbytes}\ns_mov_b32 s{r+3}, 0x20000")

LOG2E = 1.4426950408889634
def f32r(x): return struct.unpack("<f", struct.pack("<f", x))[0]
L_HI = f32r(LOG2E); L_LO = f32r(LOG2E - L_HI)
I2PI = 1.0 / (2 * math.pi)
I_HI = f32r(I2PI); I_LO = f32r(I2PI - I_HI)
LN2 = math.log(2.0)

def lds_inc(a, va, vb, saddr=None, off=0, rtn=None):
    if saddr is None: a(f"v_mov_b32 v{va}, {CNT}")
    else: a(f"v_mov_b32 v{va}, s{saddr}")
    a(f"v_mov_b32 v{vb}, 1\ns_mov_b64 exec, 1")
    if rtn is None:
        a(f"ds_add_u32 v{va}, v{vb} offset:{off}\ns_mov_b64 exec, -1")
    else:
        a(f"ds_add_rtn_u32 v{vb}, v{va}, v{vb} offset:{off}\ns_mov_b64 exec, -1\ns_waitcnt lgkmcnt(0)\nv_readfirstlane_b32 s{rtn}, v{vb}")

def lds_spin(a, va, vb, target, stmp, saddr=None, off=0):
    L, Ld = a.label("lspin"), a.label("lsdone")
    if saddr is None: a(f"v_mov_b32 v{va}, {CNT}")
    else: a(f"v_mov_b32 v{va}, s{saddr}")
    a(f"""
    s_mov_b32 s{S_SPIN}, {SPIN_MAX}
    {L}:
    ds_read_b32 v{vb}, v{va} offset:{off}
    s_waitcnt lgkmcnt(0)
    v_readfirstlane_b32 s{stmp}, v{vb}
    s_cmp_ge_u32 s{stmp}, {target}
    s_cbranch_scc1 {Ld}
    s_sleep {os.environ.get('LSLEEP', '1')}
    s_sub_u32 s{S_SPIN}, s{S_SPIN}, 1
    s_cbranch_scc0 {L}
    {Ld}:
    """)

def flag_line(a, vt, va, soff):
    a(f"""
    v_mov_b32 v{vt}, s{S_TAG}
    v_lshlrev_b32 v{va}, 2, v1
    s_mov_b64 exec, {os.environ.get('FLEX', '0xffff')}
    buffer_store_dword v{vt}, v{va}, {WS}, s{soff} offen sc1
    s_mov_b64 exec, -1
    """)

def flag_store(a, vt, soff):
    a(f"""
    v_mov_b32 v{vt}, s{S_TAG}
    s_mov_b64 exec, 1
    buffer_store_dword v{vt}, off, {WS}, s{soff} sc1
    s_mov_b64 exec, -1
    """)

def poll_issue(a, vd, n, voff, off):
    w = {1: "dword", 4: "dwordx4"}[n]
    a(f"buffer_load_{w} {vr(vd,n)}, v{voff}, {WS}, 0 offen offset:{off & 4095} sc1" if off < 4096 else
      f"s_movk_i32 s{S_SPIN}, {off}\nbuffer_load_{w} {vr(vd,n)}, v{voff}, {WS}, s{S_SPIN} offen sc1")

def poll_wait(a, vd, n, voff, soff_or_imm, issued=False):
    L, Lc, Ld = a.label("poll"), a.label("pollchk"), a.label("polld")
    w = {1: "dword", 4: "dwordx4"}[n]
    a(f"s_mov_b32 s{S_SPIN}, {SPIN_MAX}")
    if issued: a(f"s_branch {Lc}")
    a(f"""
    {L}:
    buffer_load_{w} {vr(vd,n)}, v{voff}, {WS}, 0 offen offset:{soff_or_imm} sc1
    {Lc}:
    s_waitcnt vmcnt(0)
    """)
    if n == 4:
        a(f"""
        v_xor_b32 v{vd}, s{S_TAG}, v{vd}
        v_xor_b32 v{vd+1}, s{S_TAG}, v{vd+1}
        v_xor_b32 v{vd+2}, s{S_TAG}, v{vd+2}
        v_xor_b32 v{vd+3}, s{S_TAG}, v{vd+3}
        v_or3_b32 v{vd}, v{vd}, v{vd+1}, v{vd+2}
        v_or_b32 v{vd}, v{vd}, v{vd+3}
        v_cmp_ne_u32 vcc, 0, v{vd}
        """)
    else:
        a(f"v_cmp_ne_u32 vcc, s{S_TAG}, v{vd}")
    a(f"""
    s_cbranch_vccz {Ld}
    s_sleep {os.environ.get('PSLEEP', '6')}
    s_sub_u32 s{S_SPIN}, s{S_SPIN}, 1
    s_cbranch_scc0 {L}
    {Ld}:
    """)

class Lgkm:
    def __init__(self, a): self.a = a; self.q = []; self.done = 0
    def load(self, txt, regs=()):
        self.a(txt); self.q.append(set(regs))
    def need(self, regs):
        regs = set(regs); last = -1
        for i, s in enumerate(self.q):
            if s & regs: last = i
        if last >= self.done:
            n = min(len(self.q) - 1 - last, 15)
            self.a(f"s_waitcnt lgkmcnt({n})")
            self.done = len(self.q) - n

def rng(b, n): return range(b, b + n)

sRB, sCT, sJ0 = 4, 5, 11

KG_T = [120, 121, 122, 123, 124, 125]
KG_C = 126
sKU, sKC = 65, 66
YB, YS = 32768, 32 * 272

def head(a, name, endlabel, Lkg, Lg):
    Lnp, Lnk = a.label("nopf"), a.label("nokg")
    t = KG_T
    a(f"""
    s_cmp_ge_u32 s2, 256
    s_cbranch_scc1 {endlabel}
    s_load_dwordx16 s[16:31], s[0:1], 0
    s_load_dwordx8 s[32:39], s[0:1], 64
    s_load_dwordx4 s[40:43], s[0:1], 96
    v_lshrrev_b32 v3, 6, v0
    v_and_b32 v1, 63, v0
    v_readfirstlane_b32 s{S_WAVE}, v3
    s_getpc_b64 s[8:9]
    L_pc:
    s_lshr_b32 s7, s2, 3
    s_and_b32 s{S_CB}, s2, 0xc0
    s_and_b32 s6, s7, 7
    s_or_b32 s{S_CB}, s{S_CB}, s6
    s_and_b32 s6, s2, 7
    s_lshl3_add_u32 s{S_CB}, s6, s{S_CB}
    s_lshr_b32 s{sRB}, s6, 1
    s_and_b32 s10, s7, 3
    s_lshl2_add_u32 s{sRB}, s{sRB}, s10
    s_and_b32 s{sCT}, s6, 1
    s_lshr_b32 s12, s7, 2
    s_lshl3_add_u32 s{sCT}, s{sCT}, s12
    s_mul_i32 s{S_C2}, s{sCT}, 43
    s_lshr_b32 s{S_C2}, s{S_C2}, 7
    s_lshl4_add_u32 s{S_C2}, s{S_C2}, s{sRB}
    s_addk_i32 s{S_C2}, 480
    s_bitcmp1_b32 {0x10000 if 'no3' in EXP else 0x9240}, s{sCT}
    s_cselect_b32 s{S_C2}, s{S_C2}, 576
    s_cmp_lg_u32 s{S_WAVE}, 0
    s_cbranch_scc1 {Lnp}
    s_and_b32 s6, s7, 3
    s_lshl_b32 s6, s6, 13
    v_lshl_add_u32 v3, v1, 7, s6
    v_min_u32 v3, {endlabel}-L_pc, v3
    global_load_dword v3, v3, s[8:9]
    v_lshlrev_b32 v4, 2, v1
    v_add_u32 v4, {CNT}, v4
    v_mov_b32 v5, 0
    ds_write_b32 v4, v5
    {Lnp}:
    s_movk_i32 s{sKC}, 576
    s_mov_b32 s6, 0xcf3f
    s_bitcmp0_b32 s6, s{S_WAVE}
    s_cbranch_scc1 {Lnk}
    s_and_b32 s{sKU}, s{S_WAVE}, 7
    s_sub_u32 s6, s{sKU}, 2
    s_cmp_ge_u32 s{sKU}, 6
    s_cselect_b32 s{sKU}, s6, s{sKU}
    s_lshr_b32 s{sKC}, s{sKU}, 1
    s_lshl_b32 s{sKC}, s{sKC}, 8
    s_add_u32 s{sKC}, s{sKC}, s{S_CB}
    s_cmp_ge_u32 s{sKU}, 4
    s_cselect_b32 s{sKC}, s{S_C2}, s{sKC}
    s_cmp_ge_u32 s{S_WAVE}, 8
    s_cbranch_scc1 {Lnk}
    s_min_u32 s6, s{sKC}, 575
    s_lshl_b32 s6, s6, 1
    v_mov_b32 v{t[4]}, s6
    s_and_b32 s5, s{sKU}, 1
    s_add_u32 s6, s6, s5
    s_lshl_b32 s6, s6, 7
    v_lshl_add_u32 v{t[0]}, v1, 1, s6
    s_waitcnt lgkmcnt(0)
    global_load_ushort v{t[3]}, v{t[4]}, s[{P_DT}:{P_DT+1}]
    global_load_ushort v{t[1]}, v{t[0]}, s[{P_LA}:{P_LA+1}]
    global_load_ushort v{t[2]}, v{t[0]}, s[{P_AI}:{P_AI+1}]
    global_load_ushort v{KG_C}, v{t[0]}, s[{P_CR}:{P_CR+1}]
    global_load_ushort v{KG_C+1}, v{t[0]}, s[{P_CI}:{P_CI+1}]
    s_branch {Lkg}
    {Lnk}:
    s_lshl1_add_u32 s{sJ0}, s10, s12
    s_sub_u32 s8, s{sJ0}, 9
    s_cmp_ge_u32 s{sJ0}, 9
    s_cselect_b32 s{sJ0}, s8, s{sJ0}
    s_cmp_lt_u32 s{S_WAVE}, 8
    s_cbranch_scc1 L_ld
    s_lshl_b32 s8, s{sCT}, 4
    s_add_u32 s8, s8, s{S_WAVE}
    s_cmp_eq_u32 s8, 13
    s_cbranch_scc1 L_gate_dma
    s_barrier
    s_branch {Lg}
    L_ld:
    """)

def fetch_tag(a, v):
    a(f"""
    s_load_dword s60, s[{P_WS}:{P_WS+1}], {FL_OFF}
    s_lshr_b32 s69, s{S_CB}, 1
    s_lshl_b32 s69, s69, 2
    s_load_dword s61, s[{P_D}:{P_D+1}], s69
    s_add_u32 s69, s69, 512
    s_load_dword s62, s[{P_D}:{P_D+1}], s69
    s_min_u32 s69, s{S_C2}, 575
    s_lshr_b32 s69, s69, 1
    s_lshl_b32 s69, s69, 2
    s_load_dword s63, s[{P_D}:{P_D+1}], s69
    v_mov_b32 v{v+4}, {CNT}
    s_waitcnt lgkmcnt(0)
    s_mul_i32 s60, s60, 0x9e3779b1
    s_add_u32 s60, s60, 0x7f4a7c15
    v_mov_b32 v{v}, s60
    v_mov_b32 v{v+1}, s61
    v_mov_b32 v{v+2}, s62
    v_mov_b32 v{v+3}, s63
    ds_write_b128 v{v+4}, {vr(v,4)} offset:{C_TG}
    s_waitcnt lgkmcnt(0)
    """)

def get_tag(a, va, vb):
    a(f"""
    s_and_b32 s69, s{S_WAVE}, 12
    s_add_u32 s69, s69, {CNT}
    v_mov_b32 v{va}, {CNT}
    v_mov_b32 v{vb}, s69
    ds_read_b32 v{va}, v{va} offset:{C_TG}
    ds_read_b32 v{vb}, v{vb} offset:{C_TG+4}
    s_waitcnt lgkmcnt(0)
    v_readfirstlane_b32 s{S_TAG}, v{va}
    v_readfirstlane_b32 s{S_DV}, v{vb}
    s_nop 1
    """)

def loader(a):
    sJ, sT, sCm, sAs, sLb, sInc, sXr = 6, 7, 8, 9, 10, 14, 15
    V = [4, 5, 6, 7]; t0, t1, t2, t3 = 8, 9, 10, 11
    Lx, Lc, Lsub, Lover, Lw, Lend = [a.label(x) for x in ("ldx", "ldc", "issue", "over", "ldw", "ldend")]
    a(f"""
    v_lshrrev_b32 v{t2}, 4, v1
    s_setprio 3
    s_mov_b32 s{R_X+3}, 0x20000
    s_mov_b32 s{sJ}, s{sJ0}
    s_cmp_eq_u32 s{S_WAVE}, 6
    s_cbranch_scc1 {Lx}
    v_and_b32 v{t0}, 15, v1
    v_lshlrev_b32 v{t1}, 2, v{t2}
    v_xor_b32 v{t0}, v{t0}, v{t1}
    v_lshrrev_b32 v{t1}, 2, v{t0}
    v_and_b32 v{t0}, 3, v{t0}
    v_cmp_eq_u32 vcc, 3, v{t1}
    v_mul_u32_u24 v{t1}, 9, v{t1}
    v_lshrrev_b32 v{t3}, 1, v{t0}
    v_add_u32 v{t1}, v{t1}, v{t3}
    v_lshl_add_u32 v{t1}, v{t0}, 1, v{t1}
    v_min_u32 v{t0}, 2, v{t0}
    v_mad_u32_u24 v{t0}, v{t0}, 9, 4
    v_cndmask_b32 v{t1}, v{t1}, v{t0}, vcc
    v_mul_u32_u24 v{t2}, 432, v{t2}
    s_mul_i32 s{sT}, s{sCT}, 27
    v_add3_u32 v{t1}, v{t1}, v{t2}, s{sT}
    v_lshlrev_b32 v{V[0]}, 3, v{t1}
    s_mov_b32 s72, {0xffffffff ^ (1<<15) ^ (1<<27)}
    s_mov_b32 s73, {0xffffffff ^ (1<<7) ^ (1<<19)}
    s_mov_b32 s{sCm}, {64*3456}
    s_mov_b32 s{sAs}, 55296
    s_movk_i32 s{sLb}, 16384
    s_movk_i32 s{sInc}, 12800
    s_mov_b32 s{sXr}, 0
    s_mov_b32 s{R_X+2}, {W_BYTES}
    s_waitcnt lgkmcnt(0)
    s_mov_b64 s[{R_X}:{R_X+1}], s[{P_W}:{P_W+1}]
    s_branch {Lc}
    {Lx}:
    v_lshrrev_b32 v{t0}, 3, v1
    s_lshl_b32 s{sT}, s{sRB}, 7
    v_add_u32 v{t1}, s{sT}, v{t0}
    v_mul_u32_u24 v{t1}, 1152, v{t1}
    v_and_b32 v{t3}, 7, v1
    v_xor_b32 v{t3}, v{t3}, v{t2}
    v_lshl_add_u32 v{V[0]}, v{t3}, 4, v{t1}
    s_mov_b64 s[72:73], -1
    s_movk_i32 s{sCm}, 128
    s_mov_b32 s{sAs}, 36864
    s_mov_b32 s{sLb}, 0
    s_movk_i32 s{sInc}, 8192
    s_mov_b32 s{sXr}, 64
    s_mov_b32 s{R_X+2}, {X_BYTES}
    s_waitcnt lgkmcnt(0)
    s_mov_b64 s[{R_X}:{R_X+1}], s[{P_U}:{P_U+1}]
    {Lc}:
    v_xor_b32 v{V[1]}, s{sXr}, v{V[0]}
    v_add_u32 v{V[1]}, s{sInc}, v{V[1]}
    s_lshl_b32 s{sInc}, s{sInc}, 1
    v_add_u32 v{V[2]}, s{sInc}, v{V[0]}
    v_add_u32 v{V[3]}, s{sInc}, v{V[1]}
    """)
    def issue(it):
        a(f"s_add_u32 m0, s{sLb}, {((-it) & 3) * SLOT}\ns_call_b64 s[12:13], {Lsub}")
    a.stamp(22)
    issue(0)
    a("s_barrier")
    a.stamp(23)
    for it in range(1, LEAD): issue(it)
    a(f"s_branch {Lover}\n{Lsub}:")
    a(f"s_mul_i32 s{sT}, s{sJ}, s{sCm}\ns_mov_b64 exec, s[72:73]")
    THR = int(os.environ.get('THR', '20')); THR1 = int(os.environ.get('THR1', '0'))
    for g in range(4):
        if THR: a(f"s_waitcnt vmcnt({THR})")
        for b in range(4):
            if THR1: a(f"s_waitcnt vmcnt({THR1})")
            a(f"buffer_load_dwordx4 v{V[b]}, s[{R_X}:{R_X+3}], s{sT} offen offset:{1024*b} lds")
        if g < 3:
            a(f"s_add_u32 m0, m0, 4096\ns_add_u32 s{sT}, s{sT}, s{sAs}")
    a(f"""
    s_mov_b64 exec, -1
    s_add_u32 s{sJ}, s{sJ}, 1
    s_cmp_eq_u32 s{sJ}, 9
    s_cselect_b32 s{sJ}, 0, s{sJ}
    s_setpc_b64 s[12:13]
    {Lover}:
    """)
    a.stamp(1)
    srd(a, R_WS, P_WS, WS_BYTES)
    a(f"""
    v_lshlrev_b32 v{t2}, 4, v1
    v_lshrrev_b32 v16, 4, v1
    v_bfe_u32 v17, v1, 2, 2
    v_lshl_add_u32 v18, v16, 3, v17
    v_bfe_u32 v19, v18, 1, 3
    v_bfe_u32 v17, v1, 1, 1
    v_xor_b32 v19, v19, v17
    v_lshlrev_b32 v19, 4, v19
    v_lshl_add_u32 v19, v18, 7, v19
    v_and_b32 v17, 1, v1
    v_lshl_add_u32 v19, v17, 3, v19
    s_and_b32 s74, s{sCT}, 8
    s_lshl_b32 s75, s74, 3
    v_xor_b32 v20, s75, v19
    v_xor_b32 v21, 32, v20
    v_and_b32 v17, 15, v1
    v_lshlrev_b32 v17, 6, v17
    v_lshl_add_u32 v17, v16, 4, v17
    s_lshl_b32 s74, s74, 10
    s_mul_i32 s75, s{sRB}, {36*4096}
    s_add_u32 s74, s74, s75
    s_add_u32 s74, s74, {UT_OFF}
    v_add_u32 v22, s74, v17
    """)
    def ut_task(it):
        skip = a.label("utskip")
        a(f"s_mov_b32 s78, 0\ns_cmp_lg_u32 s{S_WAVE}, 6\ns_cbranch_scc1 {skip}")
        if it == 1:
            a(f"s_and_b32 s74, s{sCT}, 7\ns_cmp_lg_u32 s74, 7\ns_cbranch_scc1 {skip}")
            a(f"s_add_u32 s74, s{sJ0}, 1\ns_cmp_eq_u32 s74, 9\ns_cselect_b32 s74, 0, s74\ns_lshl_b32 s74, s74, 14\nv_add_u32 v20, {3*SLOT}, v20\nv_add_u32 v21, {3*SLOT}, v21")
        else:
            a(f"s_lshl_b32 s74, s{sJ0}, 14")
        for m in range(2):
            for i in range(4):
                d = 24 + 32 * it + 16 * m + 4 * i
                a(f"ds_read_b64_tr_b16 {vr(d,2)}, v{20+m} offset:{4096*i}")
                a(f"ds_read_b64_tr_b16 {vr(d+2,2)}, v{21-m} offset:{4096*i + 512}")
            a("s_waitcnt lgkmcnt(0)")
            for i in range(4):
                d = 24 + 32 * it + 16 * m + 4 * i
                a(f"buffer_store_dwordx4 {vr(d,4)}, v22, {WS}, s74 offen offset:{1024*i}{ST}")
            if m == 0: a("s_add_u32 s74, s74, 4096\ns_mov_b32 s78, 1")
        a(f"{skip}:")
    assert LEAD == 2
    for k in range(9):
        left = min(LEAD - 1, 8 - k)
        if k in (UK + 1, UK + 2):
            L = a.label("w24")
            a(f"s_waitcnt vmcnt(24)\ns_cmp_eq_u32 s78, 1\ns_cbranch_scc1 {L}\ns_waitcnt vmcnt(16)\n{L}:")
        else:
            a(f"s_waitcnt vmcnt({16 * left})")
        if 'ldst' in EXP: a.stamp([24, 9, 10, 11, 12, 13, 26, 27, 28][k])
        if k == 0: a.stamp(40)
        a("s_barrier")
        n = k + LEAD
        if n <= 8: issue(n)
        if k == 7: get_tag(a, t0, t1)
        if k in (UK, UK + 1):
            if 'nout' in EXP: a('s_mov_b32 s78, 0')
            else: ut_task(k - UK)
    a.stamp(2)

def wt_load(a, sF, sT, sD2, s8, s9, s10, t0, t1, t2, WL):
    skip = a.label("nowt")
    srd(a, R_A, P_WO, WO_BYTES)
    a(f"""
    s_cmp_ge_u32 s{sF}, 648
    s_cbranch_scc1 {skip}
    v_lshrrev_b32 v{t0}, 4, v1
    v_lshrrev_b32 v{t1}, 1, v{t0}
    v_mul_u32_u24 v{t1}, 20, v{t1}
    v_and_b32 v{t2}, 1, v{t0}
    v_lshl_add_u32 v{t1}, v{t2}, 3, v{t1}
    v_mad_u32_u24 v{t2}, v{t0}, 36, 8
    v_lshlrev_b32 v{t2}, 1, v{t2}
    s_mul_i32 s{s8}, s{sF}, 3641
    s_lshr_b32 s{s8}, s{s8}, 16
    s_mul_i32 s{s9}, s{s8}, 18
    s_sub_u32 s{s9}, s{sF}, s{s9}
    s_mul_i32 s{sT}, s{s9}, {36*1152}
    s_sub_u32 s{s10}, s{s9}, 16
    s_mul_i32 s{s10}, s{s10}, {288*1152}
    s_movk_i32 s{sD2}, {4*1152}
    s_cmp_ge_u32 s{s9}, 16
    s_cselect_b32 s{sT}, s{s10}, s{sT}
    s_cselect_b32 s{sD2}, {36*1152}, s{sD2}
    s_cselect_b64 vcc, -1, 0
    v_cndmask_b32 v{t1}, v{t1}, v{t2}, vcc
    v_mul_u32_u24 v{t1}, 1152, v{t1}
    v_and_b32 v{t2}, 15, v1
    v_lshl_add_u32 v{t1}, v{t2}, 1, v{t1}
    s_lshl_b32 s{s8}, s{s8}, 5
    s_add_u32 s{sT}, s{sT}, s{s8}
    s_add_u32 s{sD2}, s{sD2}, s{sT}
    """)
    for e in range(8):
        a(f"buffer_load_ushort v{WL+e}, v{t1}, s[{R_A}:{R_A+3}], s{sT if e < 4 else sD2} offen offset:{(e&3)*1152}")
    a(f"{skip}:")

def wt_store(a, sF, WL, vL16):
    skip = a.label("wtskip")
    a(f"s_cmp_ge_u32 s{sF}, 648\ns_cbranch_scc1 {skip}")
    for e in range(4):
        a(f"v_lshl_or_b32 v{WL+e}, v{WL+2*e+1}, 16, v{WL+2*e}")
    a(f"""
    s_lshl_b32 s{sF}, s{sF}, 10
    s_add_u32 s{sF}, s{sF}, {WT_OFF}
    buffer_store_dwordx4 {vr(WL,4)}, v{vL16}, {WS}, s{sF} offen{ST}
    {skip}:
    """)

def gemm_waves(a):
    sT, sU, sTP = 7, 12, 13
    R = Regs(4, 120)
    t0, t1, t2, t3 = [R.alloc() for _ in range(4)]
    vXa = [[R.alloc() for _ in range(4)]]
    vWa = [R.alloc()]
    vFr = R.alloc()
    vL16 = R.alloc()
    NB = 2
    FX = [[R.alloc(4, 4), R.alloc(4, 4)] for _ in range(NB)]
    FW = [R.alloc(4, 4) for _ in range(NB)]
    ACC = [R.alloc(16, 4), R.alloc(16, 4)]
    STG = FX[0][0]
    WL = R.alloc()
    vGa = [R.alloc()]
    Lnw, Lng = a.label("nowt"), a.label("nogate")
    vCn, vOne, CV = R.alloc(), R.alloc(), R.alloc(2, 2)
    vSt = R.alloc()
    a(f"""
    v_mov_b32 v{vCn}, {CNT}
    v_mov_b32 v{vOne}, 1
    s_and_b32 s{sU}, s{S_WAVE}, 3
    s_bfe_u32 s{sTP}, s{S_WAVE}, 0x10002
    v_lshlrev_b32 v{vL16}, 4, v1
    s_waitcnt lgkmcnt(0)
    """)
    a(f"s_lshl_b32 s83, s{sCT}, 4\ns_add_u32 s83, s83, s{sU}")
    Lnt, Lnu = a.label("notouch"), a.label("notlb")
    a(f"""
    s_cmp_lg_u32 s{S_WAVE}, 12
    s_cbranch_scc1 {Lnt}
    s_and_b32 s8, s{sCT}, 7
    s_add_u32 s8, s8, 8
    s_sub_u32 s9, s8, 9
    s_cmp_ge_u32 s8, 9
    s_cselect_b32 s8, s9, s8
    s_lshl_b32 s8, s8, 2
    s_and_b32 s9, s{sRB}, 3
    s_add_u32 s8, s8, s9
    s_mul_i32 s8, s8, {16*3456}
    s_mul_i32 s9, s{sCT}, 216
    s_add_u32 s8, s8, s9
    v_lshrrev_b32 v{t0}, 2, v1
    v_mul_u32_u24 v{t0}, 3456, v{t0}
    v_and_b32 v{t1}, 3, v1
    v_mul_u32_u24 v{t1}, 68, v{t1}
    v_add3_u32 v{t0}, v{t0}, v{t1}, s8
    global_load_dword v{WL}, v{t0}, s[{P_W}:{P_W+1}]
    """)
    fetch_tag(a, FX[0][0])
    a(f"{Lnt}:")
    a(f"""    v_and_b32 v{t0}, 31, v1
    v_lshrrev_b32 v{t1}, 5, v1
    v_bfe_u32 v{t2}, v1, 1, 3
    v_xor_b32 v{t2}, v{t2}, v{t1}
    v_lshlrev_b32 v{t2}, 4, v{t2}
    v_lshl_add_u32 v{t2}, v{t0}, 7, v{t2}
    s_lshl_b32 s{sT}, s{sTP}, 13
    v_add_u32 v{vXa[0][0]}, s{sT}, v{t2}
    """)
    for ks in range(1, 4):
        a(f"v_xor_b32 v{vXa[0][ks]}, {32*ks}, v{vXa[0][0]}")
    a(f"""
    v_bfe_u32 v{t0}, v1, 2, 2
    v_lshl_add_u32 v{t2}, v{t1}, 3, v{t0}
    v_lshlrev_b32 v{t2}, 8, v{t2}
    v_xor_b32 v{t0}, s{sU}, v{t0}
    v_lshl_add_u32 v{t2}, v{t0}, 6, v{t2}
    v_and_b32 v{t0}, 1, v1
    v_lshlrev_b32 v{t0}, 4, v{t0}
    v_and_b32 v{t3}, 2, v1
    v_lshl_add_u32 v{t0}, v{t3}, 2, v{t0}
    v_and_b32 v{t3}, 16, v1
    v_lshl_add_u32 v{t0}, v{t3}, 1, v{t0}
    v_lshlrev_b32 v{vWa[0]}, {28 if 'nooob' in EXP else 14}, v{t3}
    v_and_b32 v{t3}, 3, v1
    v_lshl_add_u32 v{t3}, v{t3}, 4, v{vWa[0]}
    s_cmp_eq_u32 s{sU}, 3
    s_cselect_b64 vcc, -1, 0
    v_cndmask_b32 v{t0}, v{t0}, v{t3}, vcc
    v_add_u32 v{vWa[0]}, v{t2}, v{t0}
    """)
    vVm, vQx, vKx, vVx = R.alloc(), R.alloc(), R.alloc(), R.alloc()
    sTile, sP, sTy, sHd, sO, sSc, sB = 10, 15, 74, 75, 76, 77, 78
    def epi_setup():
        a(f"""
        v_and_b32 v{t0}, 31, v1
        v_lshrrev_b32 v{t3}, 5, v1
        v_lshlrev_b32 v{vVm}, 5, v{t0}
        v_lshl_add_u32 v{vVm}, v{t3}, 4, v{vVm}
        v_and_b32 v{t1}, 4, v1
        v_xor_b32 v{t1}, 4, v{t1}
        v_lshlrev_b32 v{t1}, 5, v{t1}
        v_and_b32 v{t2}, 24, v1
        v_lshl_add_u32 v{t1}, v{t2}, 2, v{t1}
        v_and_b32 v{t2}, 3, v1
        v_lshl_add_u32 v{vVx}, v{t2}, 3, v{t1}
        v_lshlrev_b32 v{vQx}, 2, v{t0}
        v_lshlrev_b32 v{vKx}, 3, v{t0}
        s_lshl_b32 s{sTile}, s{sRB}, 1
        s_add_u32 s{sTile}, s{sTile}, s{sTP}
        s_lshl_b32 s{sTile}, s{sTile}, 1
        """)
        a(f"""
        s_mul_i32 s{sP}, s{sCT}, 3
        s_add_u32 s{sP}, s{sP}, s{sU}
        s_lshr_b32 s{sTy}, s{sP}, 4
        s_and_b32 s{sHd}, s{sP}, 15
        s_lshl_b32 s{sHd}, s{sHd}, 1
        s_cmp_eq_u32 s{sTy}, 0
        s_cselect_b32 s{sSc}, {fbits(QSCALE)}, 1.0
        s_lshr_b32 s79, s{sTile}, 3
        s_mul_i32 s79, s79, {BLK}
        s_mul_i32 s80, s{sHd}, {8*BLK}
        s_add_u32 s79, s79, s80
        s_add_u32 s79, s79, {KV_OFF}
        s_and_b32 s80, s{sTile}, 7
        s_lshl_b32 s81, s80, 10
        s_add_u32 s81, s81, s79
        s_mul_i32 s80, s80, 1280
        s_add_u32 s80, s80, s79
        s_add_u32 s80, s80, {V_OFF}
        s_lshl_b32 s79, s{sHd}, 6
        s_add_u32 s79, s79, s{sTile}
        s_lshl_b32 s79, s79, 10
        s_add_u32 s79, s79, {QF_OFF}
        s_mov_b32 s{sB}, {8*BLK}
        s_cmp_eq_u32 s{sTy}, 0
        s_cselect_b32 s{sO}, s79, s81
        s_cselect_b32 s{sB}, 0x10000, s{sB}
        s_movk_i32 s82, 1024
        s_cmp_eq_u32 s{sTy}, 2
        s_cselect_b32 s{sO}, s80, s{sO}
        s_cselect_b32 s82, 1280, s82
        s_cselect_b64 vcc, -1, 0
        v_cndmask_b32 v{vSt}, v{vL16}, v{vVm}, vcc
        s_lshl_b32 s9, s{sCT}, 4
        s_add_u32 s9, s9, s{sRB}
        s_lshl_b32 s9, s9, 7
        s_add_u32 s9, s9, {FL_Q}
        """)
    sN, sX, sG = 14, 8, 6
    slow = []
    epi_setup()
    XS = [(44, 45, 46), (47, 48, 49), (50, 51, 59)]
    def extras_setup():
        L = a.label("nx")
        a(f"s_cmp_lg_u32 s{sU}, 3\ns_cbranch_scc1 {L}")
        for p in range(3):
            sTp, sA, sBb = XS[p]
            a(f"""
            s_mul_i32 s{sP}, s{sCT}, 3
            s_add_u32 s{sP}, s{sP}, {p}
            s_lshr_b32 s{sTp}, s{sP}, 4
            s_and_b32 s{sHd}, s{sP}, 15
            s_lshl_b32 s{sHd}, s{sHd}, 1
            s_lshr_b32 s79, s{sTile}, 3
            s_mul_i32 s79, s79, {BLK}
            s_mul_i32 s80, s{sHd}, {8*BLK}
            s_add_u32 s79, s79, s80
            s_and_b32 s80, s{sTile}, 6
            s_lshl_b32 s80, s80, 7
            s_add_u32 s80, s80, {KV_OFF+KX_OFF}
            s_and_b32 s81, s{sTile}, 7
            s_mul_i32 s81, s81, 1280
            s_add_u32 s81, s81, {KV_OFF+V_OFF+1024}
            s_cmp_eq_u32 s{sTp}, 1
            s_cselect_b32 s80, s80, s81
            s_add_u32 s79, s79, s80
            s_lshl_b32 s80, s{sHd}, 6
            s_add_u32 s80, s80, s{sTile}
            s_lshl_b32 s80, s80, 7
            s_add_u32 s80, s80, {QX_OFF}
            s_mov_b32 s81, {8*BLK}
            s_cmp_eq_u32 s{sTp}, 0
            s_cselect_b32 s{sA}, s80, s79
            s_cselect_b32 s81, 0x2000, s81
            s_add_u32 s{sBb}, s{sA}, s81
            """)
        a(f"{L}:")
    assert ACC[1] + 16 == FX[0][0] + 56
    srd(a, R_WS, P_WS, WS_BYTES)
    extras_setup()
    kgen_y(a, FX[0][0])
    a.stamp(23)
    a('s_setprio 3')
    for tt in range(2):
        for i in range(16): a(f"v_mov_b32 v{ACC[tt]+i}, 0")
    a(f"""
    s_mov_b32 s{sN}, 1
    s_mov_b32 s{sX}, 0x18000
    s_mov_b32 s72, 0xffff0000
    s_mov_b32 s73, 0xffff0000
    v_lshrrev_b32 v{vFr}, 5, v1
    v_lshlrev_b32 v{vFr}, 4, v{vFr}
    v_add_u32 v{vFr}, {GT}, v{vFr}
    s_lshl_b32 s{sG}, s{sJ0}, 7
    v_add_u32 v{vGa[0]}, s{sG}, v{vFr}
    """)
    Lgate, Lj = a.label("gatel"), a.label("gj")
    def mainloop(gate):
        e = 1 if gate else 0
        Lloop = a.label("gloop")
        def Wrd(b, nk):
            a(f"ds_read_b64_tr_b16 {vr(FW[b],2)}, v{vWa[0]} offset:{16384+nk*4096}")
            a(f"ds_read_b64_tr_b16 {vr(FW[b]+2,2)}, v{vWa[0]} offset:{16384+nk*4096+1024}")
            if gate:
                a(f"s_mov_b64 exec, s[72:73]\nds_read_b128 {vr(FW[b],4)}, v{vGa[0]} offset:{32*nk}\ns_mov_b64 exec, -1")
        def step(ks, n, nk, mid=None):
            b = ks & 1
            a(f"s_waitcnt lgkmcnt({n})")
            a(f"v_mfma_f32_32x32x16_bf16 {vr(ACC[0],16)}, {vr(FW[b],4)}, {vr(FX[b][0],4)}, {vr(ACC[0],16)}")
            if mid: mid()
            if nk is not None: a(f"ds_read_b128 {vr(FX[b][0],4)}, v{vXa[0][nk]}")
            a(f"v_mfma_f32_32x32x16_bf16 {vr(ACC[1],16)}, {vr(FW[b],4)}, {vr(FX[b][1],4)}, {vr(ACC[1],16)}")
            if nk is not None:
                Wrd(b, nk)
                a(f"ds_read_b128 {vr(FX[b][1],4)}, v{vXa[0][nk]} offset:4096")
        a("s_barrier")
        a.stamp(1)
        for ks in range(2):
            Wrd(ks, ks)
            a(f"ds_read_b128 {vr(FX[ks][0],4)}, v{vXa[0][ks]}\nds_read_b128 {vr(FX[ks][1],4)}, v{vXa[0][ks]} offset:4096")
        a(f".p2align 3\n{Lloop}:")
        step(0, 4 + e, 2, mid=lambda: a(f"s_add_u32 s{sN}, s{sN}, 1\ns_add_u32 s{sG}, s{sG}, 128\ns_cmp_eq_u32 s{sG}, 1152\ns_cselect_b32 s{sG}, 0, s{sG}" if gate else f"s_add_u32 s{sN}, s{sN}, 1"))
        step(1, 4 + e, 3, mid=lambda: a(f"v_xor_b32 v{vXa[0][0]}, s{sX}, v{vXa[0][0]}\nv_xor_b32 v{vXa[0][1]}, s{sX}, v{vXa[0][1]}"))
        step(2, 4 + e, 0, mid=lambda: a(f"v_xor_b32 v{vWa[0]}, s{sX}, v{vWa[0]}\n" + (f"v_add_u32 v{vGa[0]}, s{sG}, v{vFr}\n" if gate else "") + "s_barrier"))
        step(3, 4 + e, 1, mid=lambda: a(f"v_xor_b32 v{vXa[0][2]}, s{sX}, v{vXa[0][2]}\nv_xor_b32 v{vXa[0][3]}, s{sX}, v{vXa[0][3]}"))
        a(f"s_xor_b32 s{sX}, s{sX}, 0x10000\ns_cmp_lt_u32 s{sN}, 9\ns_cbranch_scc1 {Lloop}")
        if 'early' in EXP:
            a(f"s_mov_b64 exec, 1\nds_add_u32 v{vCn}, v{vOne} offset:{C_FREE}\ns_mov_b64 exec, -1")
        step(0, 4 + e, 2); step(1, 4 + e, 3); step(2, 4 + e, None); step(3, 0, None)
    a(f"s_cmp_eq_u32 s83, 3\ns_cbranch_scc1 {Lgate}")
    mainloop(False)
    a(f"{Lj}:")
    a.stamp(3)
    def cold_gate():
        a(f"{Lgate}:")
        mainloop(True)
        a(f"s_branch {Lj}")
    Lx, Ldone, Lns = a.label("extras"), a.label("gdone"), a.label("noscale")
    a(f"s_setprio 3\ns_nop 6\ns_cmp_eq_u32 s{sU}, 3\ns_cbranch_scc1 {Lx}\ns_cmp_lg_u32 s{sTy}, 0\ns_cbranch_scc1 {Lns}")
    for tt in range(2):
        for i in range(16):
            a(f"v_mul_f32 v{ACC[tt]+i}, s{sSc}, v{ACC[tt]+i}")
    a(f"{Lns}:")
    for tt in range(2):
        for p in range(2):
            dst = FX[tt][p]
            for i in range(4):
                a(f"v_cvt_pk_bf16_f32 v{dst+i}, v{ACC[tt]+8*p+2*i}, v{ACC[tt]+8*p+2*i+1}")
            if p == 0:
                a(f"buffer_store_dwordx4 {vr(dst,4)}, v{vSt}, {WS}, s{sO} offen{ST}")
            else:
                a(f"s_add_u32 s79, s{sO}, s{sB}")
                a(f"buffer_store_dwordx4 {vr(dst,4)}, v{vSt}, {WS}, s79 offen{ST}")
        if tt == 0:
            a(f"s_add_u32 s{sO}, s{sO}, s82")
    a(f"s_branch {Ldone}")
    cold_gate()
    a(f"{Lx}:")
    a(f"v_mov_b32 v{STG+1}, 0x3f80\nv_mov_b32 v{STG+3}, 0x3f80")
    for p in range(3):
        half = p & 1
        rb = 4 * (p >> 1)
        sTp, sA, sBb = XS[p]
        LK, LV, LN = a.label("xk"), a.label("xv"), a.label("xn")
        a(f"""
        s_mov_b32 exec_lo, {0 if half else -1}
        s_mov_b32 exec_hi, {-1 if half else 0}
        s_cmp_eq_u32 s{sTp}, 1
        s_cbranch_scc1 {LK}
        s_cmp_eq_u32 s{sTp}, 2
        s_cbranch_scc1 {LV}
        """)
        for tt in range(2):
            for i in range(4):
                a(f"v_mul_f32 v{ACC[tt]+rb+i}, {fbits(QSCALE)}, v{ACC[tt]+rb+i}")
            a(f"v_cvt_pk_bf16_f32 v{STG+4+2*tt}, v{ACC[tt]+rb}, v{ACC[tt]+rb+1}")
            a(f"v_cvt_pk_bf16_f32 v{STG+5+2*tt}, v{ACC[tt]+rb+2}, v{ACC[tt]+rb+3}")
            a(f"buffer_store_dword v{STG+4+2*tt}, v{vQx}, {WS}, s{sA} offen offset:{128*tt}{ST}")
            a(f"buffer_store_dword v{STG+5+2*tt}, v{vQx}, {WS}, s{sBb} offen offset:{128*tt}{ST}")
        a(f"""
        s_branch {LN}
        {LK}:
        v_cvt_pk_bf16_f32 v{STG+4}, v{ACC[0]+rb}, v{ACC[0]+rb+1}
        v_cvt_pk_bf16_f32 v{STG+5}, v{ACC[1]+rb}, v{ACC[1]+rb+1}
        v_cvt_pk_bf16_f32 v{STG+6}, v{ACC[0]+rb+2}, v{ACC[0]+rb+3}
        v_cvt_pk_bf16_f32 v{STG+7}, v{ACC[1]+rb+2}, v{ACC[1]+rb+3}
        buffer_store_dwordx2 {vr(STG+4,2)}, v{vKx}, {WS}, s{sA} offen{ST}
        buffer_store_dwordx2 {vr(STG+6,2)}, v{vKx}, {WS}, s{sBb} offen{ST}
        s_branch {LN}
        {LV}:
        """)
        for tt in range(2):
            a(f"v_cvt_pk_bf16_f32 v{STG}, v{ACC[tt]+rb}, v{ACC[tt]+rb+1}")
            a(f"v_cvt_pk_bf16_f32 v{STG+2}, v{ACC[tt]+rb+2}, v{ACC[tt]+rb+3}")
            a(f"buffer_store_dwordx2 {vr(STG,2)}, v{vVx}, {WS}, s{sA} offen offset:{1280*tt}{ST}")
            a(f"buffer_store_dwordx2 {vr(STG+2,2)}, v{vVx}, {WS}, s{sBb} offen offset:{1280*tt}{ST}")
        a(f"{LN}:")
    Lnf = a.label("nofq")
    a(f"""
    s_cmp_lg_u32 s{sCT}, 0
    s_cbranch_scc1 {Ldone}
    s_lshl_b32 s79, s{sTile}, 7
    s_add_u32 s79, s79, {G_OFF}
    buffer_store_dword v{ACC[0]+8}, v{vQx}, {WS}, s79 offen{ST}
    buffer_store_dword v{ACC[1]+8}, v{vQx}, {WS}, s79 offen offset:128{ST}
    {Ldone}:
    s_mov_b64 exec, -1
    """)
    if 'early' not in EXP:
        a(f"s_mov_b64 exec, 1\nds_add_u32 v{vCn}, v{vOne} offset:{C_FREE}\ns_mov_b64 exec, -1")
    a.stamp(14)
    get_tag(a, t0, t1)
    a(f"s_mov_b32 s{S_FQ}, s9")
    publish_q(a, t0, t1, 8)
    a.stamp(4)

def publish_q(a, t0, t1, st):
    L = a.label("nofq")
    a("s_waitcnt vmcnt(0)")
    lds_inc(a, t0, t1, off=C_S, rtn=st)
    a(f"s_cmp_lg_u32 s{st}, 7\ns_cbranch_scc1 {L}")
    flag_line(a, t0, t1, S_FQ)
    a(f"{L}:")

class Seg:
    def __init__(self): self.items = []
    def __call__(self, s):
        for ln in s.split("\n"):
            ln = ln.strip()
            if not ln: continue
            op = ln.split()[0]
            if ln.startswith(";"): c = 0
            elif op in ("v_exp_f32", "v_sin_f32", "v_cos_f32", "v_rcp_f32"): c = 8
            elif op.startswith("v_mfma"): c = 40
            elif op.startswith("ds_"): c = 12
            elif op == "s_waitcnt": c = 60
            else: c = 4
            self.items.append((ln, c))
    nl = 0
    def label(self, base):
        Seg.nl += 1
        return f"L_sg{base}_{Seg.nl}"
    def must_barrier(self): self.items.append(("@BAR", 0))
    def nobar(self, on): self.items.append(("@NOBAR" if on else "@OKBAR", 0))
    def emit(self, a, nbar, after=lambda k: None):
        must = sum(1 for l, _ in self.items if l == "@BAR")
        total = sum(c for _, c in self.items)
        first = float(os.environ.get('KGFIRST', '0.9')) * total
        first = min(first, sum(c for _, c in self.items[:[l for l, _ in self.items].index('@BAR')]) + 1)
        per = (total - first) / (nbar - (1 if first else 0))
        used = 0; acc = per - first if first else 0; ok = True; must_left = must
        for ln, c in self.items:
            if ln == "@BAR":
                a("s_barrier"); after(used); used += 1; must_left -= 1; acc = 0; continue
            if ln.startswith("@STAMP"): a.stamp(int(ln[6:])); continue
            if ln == "@NOBAR": ok = False; continue
            if ln == "@OKBAR": ok = True; continue
            if ok and acc >= per and used + must_left < nbar - 1:
                a("s_barrier"); after(used); used += 1; acc = 0
            a(ln); acc += c
        while used < nbar:
            a("s_barrier"); after(used); used += 1
        return total

def ilv(*seqs):
    seqs = [[l.strip() for l in x.strip().split("\n") if l.strip()] for x in seqs]
    out = []
    for i in range(max(len(x) for x in seqs)):
        for x in seqs:
            if i < len(x): out.append(x[i])
    return "\n".join(out)

class KG:
    def __init__(self, g, sK, tmp, vA2, vBh, vBl):
        self.g = g; self.t = KG_T; self.tmp = tmp
        self.sL, self.sLlo, self.sI, self.sIlo, self.sLn2 = range(sK, sK + 5)
        self.vA2, self.vBh, self.vBl = vA2, vBh, vBl
    def consts(self):
        return f"""
        s_mov_b32 s{self.sL}, {fbits(L_HI)}
        s_mov_b32 s{self.sLlo}, {fbits(L_LO)}
        s_mov_b32 s{self.sI}, {fbits(I_HI)}
        s_mov_b32 s{self.sIlo}, {fbits(I_LO)}
        s_mov_b32 s{self.sLn2}, {fbits(LN2)}
        """
    def expbf(self, x, t1, t2):
        return f"""
        v_lshlrev_b32 v{x}, 16, v{x}
        v_mul_f32 v{t1}, s{self.sL}, v{x}
        v_fma_f32 v{t2}, v{x}, s{self.sL}, -v{t1}
        v_exp_f32 v{t1}, v{t1}
        v_fma_f32 v{t2}, v{x}, s{self.sLlo}, v{t2}
        v_mul_f32 v{t2}, s{self.sLn2}, v{t2}
        v_fma_f32 v{x}, v{t1}, v{t2}, v{t1}
        v_cvt_pk_bf16_f32 v{x}, v{x}, v{x}
        v_and_b32 v{x}, 0xffff0000, v{x}
        """
    def prep(self):
        t, m = self.t, self.tmp
        return ilv(self.expbf(t[3], m[0], m[1]), self.expbf(t[1], m[2], m[3])) + f"""
        v_lshlrev_b32 v{t[2]}, 16, v{t[2]}
        v_mul_f32 v{t[1]}, v{t[1]}, v{t[3]}
        v_mul_f32 v{t[2]}, v{t[2]}, v{t[3]}
        v_mul_f32 v{self.vA2}, s{self.sL}, -v{t[1]}
        v_mul_f32 v{self.vBh}, s{self.sI}, v{t[2]}
        v_fma_f32 v{self.vBl}, v{t[2]}, s{self.sI}, -v{self.vBh}
        v_fma_f32 v{self.vBl}, v{t[2]}, s{self.sIlo}, v{self.vBl}
        """
    def cexp(self, d, p, k):
        fp = fbits(float(p)); r, e = self.tmp[2*k], self.tmp[2*k+1]
        return f"""
        v_mul_f32 v{r}, {fp}, v{self.vBh}
        v_mul_f32 v{e}, {fp}, v{self.vA2}
        v_fract_f32 v{r}, v{r}
        v_exp_f32 v{e}, v{e}
        v_fmac_f32 v{r}, {fp}, v{self.vBl}
        v_cos_f32 v{d}, v{r}
        v_sin_f32 v{d+1}, v{r}
        v_mul_f32 v{d}, v{d}, v{e}
        v_mul_f32 v{d+1}, v{d+1}, v{e}
        """
    def cmul(self, d, x, y):
        return f"""
        v_mul_f32 v{d}, v{x+1}, v{y+1}
        v_mul_f32 v{d+1}, v{x+1}, v{y}
        v_fma_f32 v{d}, v{x}, v{y}, -v{d}
        v_fmac_f32 v{d+1}, v{x}, v{y+1}
        """
    def cvt(self, d, x, conj):
        return f"v_cvt_pk_f16_f32 v{d}, v{x}, {'-' if conj else ''}v{x+1}"
    def rows(self, specs, vWr):
        g = self.g
        for i in range(0, len(specs), 4):
            grp = specs[i:i+4]; tt = self.tmp[(i & 4):(i & 4) + 4]
            for k, (x, y) in enumerate(grp):
                if y is not None: g(f"v_pk_mul_f16 v{tt[k]}, v{x}, v{y} op_sel:[0,0] op_sel_hi:[0,1]")
            for k, (x, y) in enumerate(grp):
                if y is not None: g(f"v_pk_fma_f16 v{tt[k]}, v{x}, v{y}, v{tt[k]} op_sel:[1,1,0] op_sel_hi:[1,0,1] neg_lo:[1,0,0]")
            src = [tt[k] if y is not None else x for k, (x, y) in enumerate(grp)]
            for k in range(0, len(grp), 2):
                if k + 1 < len(grp): g(f"ds_write2_b32 v{vWr[i>>2]}, v{src[k]}, v{src[k+1]} offset0:{68*k} offset1:{68*k+68}")
                else: g(f"ds_write_b32 v{vWr[i>>2]}, v{src[k]} offset:{272*k}")

def kgen_y(a, base):
    R = Regs(base, base + 56)
    tmp = [R.alloc() for _ in range(8)]
    vWr = [R.alloc() for _ in range(8)]
    vA2, vBh, vBl = R.alloc(), R.alloc(), R.alloc()
    H = [R.alloc() for _ in range(11)]
    A1, A2, A3, B1, B2, B3, B4, B5, B6, B7 = [R.alloc(2) for _ in range(10)]
    k = KG(a, 60, tmp, vA2, vBh, vBl)
    L = a.label("noy")
    a(f"s_cmp_ge_u32 s{sKC}, {0 if 'nokg' in EXP else 576}\ns_cbranch_scc1 {L}")
    a(f"s_mul_i32 s67, s{sKU}, {YS}\ns_add_u32 s67, s67, {YB}\nv_lshl_add_u32 v{vWr[0]}, v1, 2, s67")
    for i in range(1, 8): a(f"v_add_u32 v{vWr[i]}, {i*4*272}, v{vWr[0]}")
    hA = H[0:4]; hB = [None] + H[4:11]
    a(f"v_mov_b32 v{hA[0]}, 0x3c00\ns_lshl_b32 s67, s{sKU}, 2\ns_add_u32 s67, s67, {CNT}")
    lds_spin(a, tmp[0], tmp[1], 1, 64, saddr=67, off=C_YR)
    a(f"ds_read_b32 v{vA2}, v{vWr[0]}\nds_read_b32 v{vBh}, v{vWr[0]} offset:272\nds_read_b32 v{vBl}, v{vWr[0]} offset:544\ns_waitcnt lgkmcnt(0)")
    a(ilv(k.cexp(A1, 8, 0), k.cexp(B2, 64, 1)))
    a(ilv(k.cmul(A2, A1, A1), k.cmul(B4, B2, B2)))
    a(ilv(k.cmul(B1, A2, A2), k.cmul(A3, A1, A2), k.cmul(B6, B4, B2)))
    a(ilv(k.cmul(B3, B1, B2), k.cmul(B5, B4, B1), k.cmul(B7, B6, B1)))
    for d, x in zip(hA[1:] + hB[1:], (A1, A2, A3, B1, B2, B3, B4, B5, B6, B7)): a(k.cvt(d, x, True))
    def yspec(j):
        x, y = j & 3, j >> 2
        if y == 0: return (hA[x], None)
        if x == 0: return (hB[y], None)
        return (hA[x], hB[y])
    k.rows([yspec(j) for j in range(32)], vWr)
    lds_inc(a, tmp[0], tmp[1], saddr=67, off=C_YR)
    a(f"{L}:")

def kgen_waves(a):
    sMH, sBase, sT, sE, sCS = 5, 6, 7, 8, 14
    R = Regs(4, 120)
    t = KG_T; C = KG_C
    vWr = [R.alloc() for _ in range(4)]
    vRd, vRy = R.alloc(), R.alloc()
    vA2, vBh, vBl, vF = R.alloc(), R.alloc(), R.alloc(), R.alloc()
    vInv, vInvM, vBaseM, vPw = R.alloc(), R.alloc(), R.alloc(), R.alloc()
    FY = R.alloc(32, 4); FXr = R.alloc(32, 4)
    pool = R.alloc(36, 4)
    tmp = [FY + i for i in range(8)]
    g = Seg()
    k = KG(g, 9, tmp, vA2, vBh, vBl)
    Lskip, Lend = a.label("kgskip"), a.label("kgend")
    a(f"""
    s_cmp_ge_u32 s{sKC}, {0 if 'nokg' in EXP else 576}
    s_cbranch_scc1 {Lskip}
    s_lshr_b32 s{sCS}, s{S_WAVE}, 1
    s_mul_i32 s{sBase}, s{S_WAVE}, {KG_STRIDE}
    s_add_u32 s{sBase}, s{sBase}, {KG_BASE}
    """ + k.consts() + f"""
    v_lshl_add_u32 v{vWr[0]}, v1, 2, s{sBase}
    v_add_u32 v{vWr[1]}, {4*272}, v{vWr[0]}
    v_add_u32 v{vWr[2]}, {8*272}, v{vWr[0]}
    v_add_u32 v{vWr[3]}, {12*272}, v{vWr[0]}
    v_lshrrev_b32 v{t[5]}, 5, v1
    v_lshlrev_b32 v{t[5]}, 4, v{t[5]}
    v_and_b32 v{t[4]}, 15, v1
    v_mul_u32_u24 v{t[4]}, 272, v{t[4]}
    v_add3_u32 v{vRd}, v{t[4]}, v{t[5]}, s{sBase}
    v_and_b32 v{t[4]}, 31, v1
    v_mul_u32_u24 v{t[4]}, 272, v{t[4]}
    s_mul_i32 s{sT}, s{S_WAVE}, {YS}
    s_add_u32 s{sT}, s{sT}, {YB}
    v_add3_u32 v{vRy}, v{t[4]}, v{t[5]}, s{sT}
    v_lshl_add_u32 v{vPw}, v1, 2, s{sT}
    s_lshl_b32 s15, s{S_WAVE}, 2
    s_add_u32 s15, s15, {CNT}
    s_barrier
    """)
    g("s_waitcnt vmcnt(0)")
    g.items.append(("@STAMP22", 0))
    P = [pool + 2 * i for i in range(12)]
    H = [pool + 24 + i for i in range(12)]
    E1, E2, E4, E256, E512, E1024, X2, X4, X6, E768, X1024 = P[0:11]
    hC, h2, h4, h6, hE1, h256, h512, h768, h1024, hX = H[0:10]
    dpp = [f"v_max_u32_dpp v{t[4]}, v{t[4]}, v{t[4]} {m}" for m in ("row_shr:1", "row_shr:2", "row_shr:4", "row_shr:8", "row_bcast:15 row_mask:0xa", "row_bcast:31 row_mask:0xc")]
    g(f"v_lshlrev_b32 v{C}, 16, v{C}\nv_lshlrev_b32 v{C+1}, 16, v{C+1}\nv_max_f32 v{t[4]}, |v{C}|, |v{C+1}|")
    pl = [l.strip() for l in k.prep().split("\n") if l.strip()]
    for i, l in enumerate(pl):
        g(l)
        if i % 3 == 2 and dpp: g(dpp.pop(0))
    assert not dpp
    g(f"ds_write2_b32 v{vPw}, v{vA2}, v{vBh} offset0:0 offset1:68\nds_write_b32 v{vPw}, v{vBl} offset:544")
    lds_inc(g, tmp[6], tmp[7], saddr=15, off=C_YR)
    g(f"v_readlane_b32 s{sE}, v{t[4]}, 63")
    g(ilv(k.cexp(E1, 1, 0), k.cexp(E256, 256, 1), k.cexp(E1024, 1024, 2)))
    g(f"""
    s_lshr_b32 s{sE}, s{sE}, 23
    s_max_u32 s{sE}, s{sE}, 1
    s_min_u32 s{sE}, s{sE}, 252
    s_sub_u32 s{sT}, 253, s{sE}
    s_lshl_b32 s{sT}, s{sT}, 23
    v_mul_f32 v{C}, s{sT}, v{C}
    v_mul_f32 v{C+1}, s{sT}, v{C+1}
    s_add_u32 s{sE}, s{sE}, 2
    s_lshl_b32 s{sE}, s{sE}, 23
    v_mul_f32 v{vF}, s{sE}, v{t[3]}
    """)
    g(ilv(k.cmul(E2, E1, E1), k.cmul(E512, E256, E256), k.cmul(X1024, C, E1024)))
    g(ilv(k.cmul(E4, E2, E2), k.cmul(X2, C, E2), k.cmul(E768, E256, E512)))
    g(ilv(k.cmul(X4, C, E4), k.cmul(X6, X2, E4)))
    for d, x in ((hC, C), (hE1, E1), (h2, X2), (h256, E256), (h512, E512), (h768, E768), (h1024, E1024), (hX, X1024), (h4, X4), (h6, X6)): g(k.cvt(d, x, False))
    def fragread(dst, upper):
        m = 0xffff0000 if upper else 0x0000ffff
        g(f"s_mov_b32 exec_lo, {m}\ns_mov_b32 exec_hi, {m}")
        for ks in range(8):
            g(f"ds_read_b128 {vr(dst+4*ks,4)}, v{vRd} offset:{32*ks}")
        g("s_mov_b64 exec, -1")
    k.rows([(hX, None), (hX, h256), (hX, h512), (hX, h768), (hX, h1024)], vWr)
    fragread(FXr, True)
    k.rows([(hC, None), (hC, hE1), (h2, None), (h2, hE1), (h4, None), (h4, hE1), (h6, None), (h6, hE1),
          (hC, h256), (h2, h256), (h4, h256), (h6, h256), (hC, h512), (h4, h512), (hC, h768), (h4, h768)], vWr)
    fragread(FXr, False)
    ACC = pool
    g(f"""
    v_and_b32 v{t[0]}, 31, v1
    v_lshrrev_b32 v{t[1]}, 5, v1
    v_lshlrev_b32 v{t[2]}, 3, v{t[0]}
    v_lshl_add_u32 v{t[2]}, v{t[1]}, 2, v{t[2]}
    v_cmp_eq_u32 vcc, 0, v{t[1]}
    v_lshlrev_b32 v{t[3]}, 2, v{t[0]}
    v_lshlrev_b32 v{t[4]}, 1, v{t[0]}
    v_add_u32 v{t[4]}, 128, v{t[4]}
    v_cndmask_b32 v{t[3]}, v{t[4]}, v{t[3]}, vcc
    v_lshl_add_u32 v{t[5]}, v{t[1]}, 7, v{t[0]}
    v_and_b32 v{t[0]}, 0xff0, v{t[2]}
    v_lshl_add_u32 v{t[2]}, v{t[2]}, 2, v{t[0]}
    v_add_u32 v{t[2]}, s{sBase}, v{t[2]}
    v_and_b32 v{t[0]}, 0xff0, v{t[3]}
    v_lshl_add_u32 v{t[3]}, v{t[3]}, 2, v{t[0]}
    v_add_u32 v{t[3]}, s{sBase}, v{t[3]}
    v_mul_u32_u24 v{t[4]}, 312, v{t[1]}
    v_add_u32 v{t[4]}, v{t[4]}, v{t[3]}
    v_and_b32 v{t[0]}, 0xff0, v{t[5]}
    v_lshl_add_u32 v{t[5]}, v{t[5]}, 2, v{t[0]}
    v_add_u32 v{t[5]}, s{sBase}, v{t[5]}
    """)
    g.items.append(("@STAMP23", 0))
    lds_spin(g, tmp[0], tmp[1], 2, sE, saddr=15, off=C_YR)
    for ks in range(8):
        g(f"ds_read_b128 {vr(FY+4*ks,4)}, v{vRy} offset:{32*ks}")
    for ks in range(8):
        c = "0" if ks == 0 else vr(ACC, 16)
        g(f"s_waitcnt lgkmcnt({7-ks})")
        g(f"v_mfma_f32_32x32x16_f16 {vr(ACC,16)}, {vr(FXr+4*ks,4)}, {vr(FY+4*ks,4)}, {c}")
    g(f"""
    s_mul_i32 s{sT}, s{sMH}, {KG_STRIDE}
    s_sub_u32 s{sT}, s{sBase}, s{sT}
    s_sub_u32 s{sT}, s{sT}, {0x2c000000}
    """)
    NV = 22
    AD = pool
    VAL = [FY + 2 * i for i in range(NV)]
    assert FXr == FY + 32
    g("s_nop 12")
    for i in range(12):
        g(f"v_mul_f32 v{ACC+i}, v{vF}, v{ACC+i}")
    g(f"""
    ds_write_b128 v{t[2]}, {vr(ACC,4)} offset:80
    ds_write_b64 v{t[3]}, {vr(ACC+4,2)} offset:{80+1280}
    ds_write_b64 v{t[4]}, {vr(ACC+6,2)} offset:{80+1280+8}
    """)
    for r in range(4):
        g(f"ds_write_b32 v{t[5]}, v{ACC+8+r} offset:{80+2560+160*r}")
    g("s_waitcnt lgkmcnt(0)")
    g.items.append(("@STAMP24", 0))
    g.must_barrier()
    for run in range(2):
        g(f"""
        s_lshl_b32 s{sE}, s{sMH}, 7
        s_sub_u32 s{sE}, {255 - 64*run}, s{sE}
        v_sub_u32 v{t[4]}, s{sE}, v1
        v_lshlrev_b32 v{t[4]}, 3, v{t[4]}
        v_max_u32 v{t[5]}, 128, v{t[4]}
        v_cvt_f32_u32 v{t[5]}, v{t[5]}
        v_and_b32 v{vInv}, 0x7f800000, v{t[5]}
        v_sub_u32 v{vInv}, {261<<23 & 0xffffffff}, v{vInv}
        v_lshrrev_b32 v{t[5]}, 16, v{t[5]}
        v_subrev_u32 v{t[5]}, {0x4380-256}, v{t[5]}
        v_min_u32 v{t[5]}, v{t[5]}, v{t[4]}
        v_add_u32 v{vBaseM}, 0x4b000010, v{t[5]}
        v_max_u32 v{t[5]}, 129, v{t[4]}
        v_subrev_u32 v{t[5]}, 1, v{t[5]}
        v_cvt_f32_u32 v{t[5]}, v{t[5]}
        v_and_b32 v{vInvM}, 0x7f800000, v{t[5]}
        v_sub_u32 v{vInvM}, {261<<23 & 0xffffffff}, v{vInvM}
        """)
        if run == 1: g(f"v_cmp_ne_u32 s[74:75], 0, v{t[4]}")
        for j in range(11):
            i = 11 * run + j
            r = 7 - j
            inv = vInv if r >= 0 else vInvM
            g(f"v_fmamk_f32 v{AD+i}, v{inv}, {fbits(float(r))}, v{vBaseM}")
            g(f"v_and_b32 v{t[i&1]}, 0xff0, v{AD+i}")
            g(f"v_lshl_add_u32 v{AD+i}, v{AD+i}, 2, s{sT}")
            g(f"v_add_u32 v{AD+i}, v{AD+i}, v{t[i&1]}")
            g(f"ds_read2st64_b32 {vr(VAL[i],2)}, v{AD+i} offset0:0 offset1:{KG_STRIDE//256}")
    g.nobar(True); area(g, sBase, sCS); g.nobar(False)
    g(f"""
    s_lshr_b32 s{sT}, s{sKC}, 6
    v_and_b32 v{vA2}, 3, v1
    v_lshlrev_b32 v{vA2}, 1, v{vA2}
    v_sub_u32 v{vA2}, s{sT}, v{vA2}
    v_add_u32 v{vBh}, 9, v{vA2}
    v_min3_u32 v{vA2}, v{vA2}, v{vBh}, 7
    s_and_b32 s{sT}, s{sKC}, 32
    s_lshl_b32 s{sT}, s{sT}, 2
    v_lshl_add_u32 v{vA2}, v{vA2}, 4, s{sT}
    v_add_lshl_u32 v{vA2}, v{vA2}, v1, 7
    v_add_u32 v{vA2}, {FL_U}, v{vA2}
    v_lshrrev_b32 v{vBl}, 4, v1
    v_mul_u32_u24 v{vBl}, {36*4096}, v{vBl}
    v_and_b32 v{vF}, 12, v1
    v_lshl_add_u32 v{vBl}, v{vF}, 8, v{vBl}
    v_and_b32 v{vF}, 3, v1
    v_lshl_add_u32 v{vBl}, v{vF}, 4, v{vBl}
    s_and_b32 s10, s{sKC}, 15
    s_lshl_b32 s10, s10, 6
    s_lshr_b32 s9, s{sKC}, 4
    s_lshl_b32 s9, s9, 12
    s_add_u32 s9, s9, s10
    s_add_u32 s9, s9, {UT_OFF}
    v_lshl_add_u32 v{vF}, v1, 3, s{sBase}
    v_mov_b32 v{t[3]}, 0
    s_lshl_b32 s{sE}, s{sMH}, 11
    s_add_u32 s{sE}, s{sE}, s{sBase}
    v_lshl_add_u32 v{t[0]}, v1, 4, s{sE}
    v_lshrrev_b32 v{t[1]}, 4, v1
    v_mul_u32_u24 v{t[1]}, {CP}, v{t[1]}
    v_and_b32 v{t[2]}, 15, v1
    v_lshl_add_u32 v{t[1]}, v{t[2]}, 2, v{t[1]}
    s_add_u32 s{sT}, s{sBase}, 4096
    v_add_u32 v{t[1]}, s{sT}, v{t[1]}
    v_mov_b32 v{t[2]}, 0
    s_waitcnt lgkmcnt(0)
    """)
    for i in range(NV):
        g(f"v_add_f32 v{VAL[i]}, v{VAL[i]}, v{VAL[i]+1}")
    for i in range(19, NV):
        g(f"v_cndmask_b32 v{VAL[i]}, 0, v{VAL[i]}, s[74:75]")
    OUT = pool
    for s in range(4):
        for i in range(8):
            b = 11 * (i >> 2) + 2 * (i & 3) + s
            g(f"v_cvt_pk_bf16_f32 v{OUT+8*s+i}, v{VAL[b]}, v{VAL[b+1]}")
    def after(kb):
        if kb == 0: srd(a, R_WS, P_WS, WS_BYTES); get_tag(a, vWr[0], vWr[1])
        if kb == UK + 3:
            L = a.label("nofu")
            a(f"""
            s_cmp_lg_u32 s{S_WAVE}, 0
            s_cbranch_scc1 {L}
            s_and_b32 s76, s2, 1
            s_lshl_b32 s76, s76, 3
            s_lshr_b32 s77, s2, 5
            s_add_u32 s76, s76, s77
            s_lshl_b32 s76, s76, 2
            s_bfe_u32 s77, s2, 0x20001
            s_add_u32 s76, s76, s77
            s_lshl_b32 s76, s76, 2
            s_bfe_u32 s77, s2, 0x20003
            s_add_u32 s76, s76, s77
            s_lshl_b32 s76, s76, 7
            s_add_u32 s76, s76, {FL_U}
            """)
            flag_line(a, vWr[0], vWr[1], 76)
            a(f"{L}:")
    tot = g.emit(a, NBAR1 - 3, after)
    a.stamp(25)
    Lnp, L2, L3, Lnu2, Lno, Lre, Lw = [a.label(x) for x in ("np", "kc", "kd", "nu", "no", "re", "uw")]
    def u_dma():
        a(f"s_mov_b64 exec, -1\ns_add_u32 m0, s{sBase}, {UOFF + 512}\ns_nop 0")
        for b in range(4):
            a(f"buffer_load_dwordx4 v{vBl}, {WS}, s9 offen offset:{1024*b}{LD} lds")
            if b < 3: a(f"s_add_u32 s9, s9, {4*36*4096 - 1024}")
    a(f"s_mov_b32 s10, s{sMH}\ns_cmp_lg_u32 s{sMH}, 0\ns_cbranch_scc1 {Lnp}\ns_mov_b64 exec, 0xffff")
    poll_issue(a, vBh, 1, vA2, 0)
    a(f"""
    s_mov_b64 exec, -1
    {Lnp}:
    s_setprio {os.environ.get('KPRIO', '3')}
    s_barrier
    s_barrier
    s_cmp_lg_u32 s10, 0
    s_cbranch_scc1 {Lno}
    s_mov_b64 exec, 0xffff
    s_waitcnt vmcnt(0)
    v_cmp_ne_u32 vcc, s{S_TAG}, v{vBh}
    s_cbranch_vccnz {Lre}
    s_mov_b32 s10, 1
    """)
    u_dma()
    a(f"s_branch {Lno}\n{Lre}:")
    poll_issue(a, vBh, 1, vA2, 0)
    a(f"s_mov_b64 exec, -1\n{Lno}:")
    a("s_barrier")
    for s in range(4):
        a(f"ds_write_b128 v{t[0]}, {vr(OUT+8*s,4)} offset:{s*CP}")
        a(f"ds_write_b128 v{t[0]}, {vr(OUT+8*s+4,4)} offset:{s*CP+1024}")
    assert t[2] % 2 == 0
    a(f"""
    ds_write_b32 v{t[1]}, v{t[2]}
    ds_write_b64 v{vF}, {vr(t[2],2)} offset:{UOFF}
    s_cmp_lg_u32 s10, 0
    s_cbranch_scc1 {Lw}
    s_mov_b64 exec, 0xffff
    """)
    poll_wait(a, vBh, 1, vA2, 0, issued=True)
    u_dma()
    a(f"""
    {Lw}:
    s_waitcnt vmcnt(0)
    s_lshl_b32 s{sT}, s{sCS}, 2
    s_add_u32 s{sT}, s{sT}, {CNT+C_RDY}
    """)
    lds_inc(a, t[0], t[1], saddr=sT)
    a(f"s_branch {Lend}")
    a(f"{Lskip}:\ns_barrier")
    TB = int(os.environ.get('TLBAT', '1'))
    for _ in range(TB): a("s_barrier")
    if 'tlb' in EXP:
        Lnu = a.label("notlb")
        a(f"""
        s_lshr_b32 s8, s2, 3
        s_lshl_b32 s8, s8, 1
        s_add_u32 s8, s8, s{sMH}
        s_cmp_lg_u32 s8, 16
        s_cbranch_scc1 {Lnu}
        """)
        for i in sorted(range(1, (WS_BYTES >> 21) + 1), key=lambda i: abs(i - (UT_OFF >> 21) - 0.4)):
            a(f"s_mov_b32 s8, {i << 21}\ns_load_dword s{59+i}, s[{P_WS}:{P_WS+1}], s8")
        a(f"s_load_dword s72, s[{P_WO}:{P_WO+1}], 0\ns_load_dword s73, s[{P_OUT}:{P_OUT+1}], 0\ns_mov_b32 s8, {X_BYTES-4}\ns_load_dword s74, s[{P_OUT}:{P_OUT+1}], s8")
        a(f"{Lnu}:")
    for _ in range(NBAR1 - TB): a("s_barrier")
    srd(a, R_WS, P_WS, WS_BYTES); get_tag(a, t[0], t[1])
    a(f"{Lend}:")
    a.stamp(2)

def phase1(a, name, endlabel):
    Lkg, Lg, Lend = a.label("kg"), a.label("gemm"), a.label("p1end")
    head(a, name, endlabel, Lkg, Lg)
    loader(a)
    a(f"s_branch {Lend}\n{Lkg}:")
    kgen_waves(a)
    a(f"s_branch {Lend}\nL_gate_dma:\ns_waitcnt lgkmcnt(0)")
    srd(a, R_A, P_G, 1152)
    a(f"""
    v_lshlrev_b32 v4, 4, v1
    s_mov_b32 m0, {GT}
    s_nop 0
    buffer_load_dwordx4 v4, s[{R_A}:{R_A+3}], 0 offen lds
    s_mov_b64 exec, 0xff
    buffer_load_dwordx4 v4, s[{R_A}:{R_A+3}], 0 offen offset:1024 lds
    s_mov_b64 exec, -1
    s_barrier
    s_waitcnt vmcnt(0)
    {Lg}:
    """)
    gemm_waves(a)
    a(f"{Lend}:")
```

```python
from f1 import *

def conv_main(a, tiles, vA, vB, bufs, ACC):
    sb = Lgkm(a)
    n = max(tiles) + 1
    ops = []
    for rp in range(1 if 'conv1' in EXP else 4):
        for i in range(n):
            for ti, t in enumerate(tiles):
                if t - i >= 0: ops.append((ti, ("A", i, rp), ("B", t - i, rp)))
    order, last = [], {}
    for k, (ti, x, y) in enumerate(ops):
        for f in (x, y):
            if f not in last: order.append(f)
            last[f] = k
    free = list(bufs); where = {}; nxt = [0]
    MAXO = int(os.environ.get('CMAXO', '15'))
    def try_load(force=False):
        if nxt[0] >= len(order) or not free: return False
        f = order[nxt[0]]
        cost = 2 if f[0] == "A" else 1
        if not force and len(sb.q) - sb.done + cost > MAXO: return False
        d = free.pop(0); where[f] = d; nxt[0] += 1
        w, i, rp = f
        if w == "A":
            off = 4032 - 64 * rp - 512 * i
            sb.load(f"ds_read_b64 {vr(d,2)}, v{vA} offset:{off}", rng(d, 2))
            sb.load(f"ds_read_b64 {vr(d+2,2)}, v{vA} offset:{off+8}", rng(d+2, 2))
        else:
            sb.load(f"ds_read_b128 {vr(d,4)}, v{vB} offset:{480 + 512*i - 64*rp}", rng(d, 4))
        return True
    while try_load(): pass
    started = set()
    for k, (ti, x, y) in enumerate(ops):
        while x not in where or y not in where:
            assert try_load(True)
        sb.need(list(rng(where[x], 4)) + list(rng(where[y], 4)))
        c = vr(ACC+4*ti, 4) if ti in started else "0"
        started.add(ti)
        a(f"v_mfma_f32_16x16x32_bf16 {vr(ACC+4*ti,4)}, {vr(where[x],4)}, {vr(where[y],4)}, {c}")
        for f in (x, y):
            if last[f] == k: free.append(where[f])
        if not try_load():
            if nxt[0] < len(order) and free and len(sb.q) - sb.done > MAXO - 3:
                keep = MAXO - 4
                a(f"s_waitcnt lgkmcnt({keep})"); sb.done = len(sb.q) - keep
                try_load()

class AR:
    def __init__(self, R):
        self.S = [R.alloc(16, 4), R.alloc(16, 4)]
        self.O = [R.alloc(16, 4), R.alloc(16, 4)]
        self.K = R.alloc(4, 4)
        self.Kx = R.alloc(4, 2)
        self.V0 = R.alloc(4, 4)
        self.V1 = R.alloc(4, 4)
        self.Qm = [R.alloc(4, 4), R.alloc(4, 4)]
        self.Qx = [R.alloc(8, 2), R.alloc(8, 2)]
        self.aK = R.alloc(); self.aKx = R.alloc(); self.aV = R.alloc(4, 1); self.idx = R.alloc()

def E(a, base, lo, n=4):
    for i in range(lo, lo + n):
        a(f"v_exp_f32 v{base+i}, v{base+i}")

def k_off(t): return (t & 7) * 1024
def kx_off(g): return KX_OFF + (g & 1) * 512
def v_off(t): return V_OFF + (t & 7) * 1280

class Al:
    def __init__(self, a, mode):
        self.a = a; self.mode = mode; self.sync()
    def sync(self):
        if self.mode: self.a(".p2align 3")
        if self.mode == 2: self.a("s_nop 0")
        self.par = 0; self.last_exp = None
    def __call__(self, txt):
        for ln in txt.split("\n"):
            ln = ln.strip()
            if not ln: continue
            op = ln.split()[0]
            big = op.startswith(("v_mfma", "v_smfmac", "ds_")) or (op == "v_add_u32")
            if big:
                if self.par and self.mode:
                    if self.last_exp is not None:
                        self.a.lines[self.last_exp] = self.a.lines[self.last_exp].replace("v_exp_f32", "v_exp_f32_e64")
                    else:
                        self.a("s_nop 0")
                    self.par = 0
                self.last_exp = None
                self.a(ln)
            else:
                self.a(ln); self.par ^= 1
                if op == "v_exp_f32": self.last_exp = len(self.a.lines) - 1

def attn_loop(a0, r, prio, pre_mid, post_mid):
    a = Al(a0, int(os.environ.get('ALIGN', '1')))
    A, B = r.S
    NT = 16
    def smf(o, v, p): a(f"v_smfmac_f32_32x32x32_bf16 {vr(o,16)}, {vr(v,4)}, {vr(p,8)}, v{r.idx}")
    def vread(dst, t, s):
        a(f"ds_read_b64_tr_b16 {vr(dst,2)}, v{r.aV+2*s} offset:{v_off(t)}")
        a(f"ds_read_b64_tr_b16 {vr(dst+2,2)}, v{r.aV+2*s+1} offset:{v_off(t)}")
    a(f"v_mfma_f32_32x32x8_bf16 {vr(A,16)}, {vr(r.Kx,2)}, {vr(r.Qx[0],2)}, 0")
    a(f"v_mfma_f32_32x32x16_bf16 {vr(A,16)}, {vr(r.K,4)}, {vr(r.Qm[0],4)}, {vr(A,16)}")
    for X in range(2):
        for i in range(16): a(f"v_mov_b32 v{r.O[X]+i}, 0")
    E(a, A, 0, 2)
    for t in range(NT):
        if t in prio: a(f"s_setprio {prio[t]}")
        kxp = r.Kx + 2 * ((t >> 2) & 1)
        if t > 0: smf(r.O[1], r.V1, B + 8)
        vread(r.V1, t, 1)
        E(a, A, 2)
        a(f"v_mfma_f32_32x32x8_bf16 {vr(B,16)}, {vr(kxp,2)}, {vr(r.Qx[1]+2*(t&3),2)}, 0")
        n_after = 2
        if (t & 7) == 0:
            a(f"ds_read_b64 {vr(r.Kx+2,2)}, v{r.aKx} offset:{kx_off(1)}")
            n_after += 1
        E(a, A, 6)
        a(f"v_mfma_f32_32x32x16_bf16 {vr(B,16)}, {vr(r.K,4)}, {vr(r.Qm[1],4)}, {vr(B,16)}")
        last = t == NT - 1
        if (t & 7) != 7:
            a(f"ds_read_b128 {vr(r.K,4)}, v{r.aK} offset:{k_off(t+1)}")
            n_after += 1
        else:
            a("s_nop 0")
        E(a, A, 10)
        a(f"s_waitcnt lgkmcnt({n_after})")
        smf(r.O[0], r.V0, A)
        if t in pre_mid: pre_mid[t](); a.sync()
        E(a, A, 14, 2)
        if 'nonop' not in EXP: a("s_nop 2")
        E(a, B, 0, 1)
        a("s_waitcnt lgkmcnt(0)")
        if t in post_mid: post_mid[t](); a.sync()
        if t == 7:
            a(f"""
            v_add_u32 v{r.aK}, {REG_B}, v{r.aK}
            v_add_u32 v{r.aKx}, {REG_B}, v{r.aKx}
            ds_read_b64 {vr(r.Kx,2)}, v{r.aKx} offset:{kx_off(0)}
            ds_read_b128 {vr(r.K,4)}, v{r.aK} offset:{k_off(0)}
            """)
            for i in range(4): a(f"v_add_u32 v{r.aV+i}, {REG_B}, v{r.aV+i}")
        tn = t + 1
        kxp = r.Kx + 2 * ((tn >> 2) & 1)
        smf(r.O[0], r.V1, A + 8)
        E(a, B, 1, 5)
        if t == 7: a("s_waitcnt lgkmcnt(0)")
        if not last:
            a(f"v_mfma_f32_32x32x8_bf16 {vr(A,16)}, {vr(kxp,2)}, {vr(r.Qx[0]+2*(tn&3),2)}, 0")
        E(a, B, 6)
        if not last:
            a(f"v_mfma_f32_32x32x16_bf16 {vr(A,16)}, {vr(r.K,4)}, {vr(r.Qm[0],4)}, {vr(A,16)}")
        E(a, B, 10)
        smf(r.O[1], r.V0, B)
        if not last:
            vread(r.V0, tn, 0)
        E(a, B, 14, 2)
        if not last:
            if 'nonop' not in EXP: a("s_nop 2")
            E(a, A, 0, 2)
    a("s_nop 1")
    smf(r.O[1], r.V1, B + 8)

PRIO = eval(os.environ.get('PRIO', '{0: 1, 6: 0, "M": 3, 11: 2, 13: 1, 14: 0}'))
SPARE = 2 * REG_B

def piece_lds(n):
    return n * 1024 if n < 76 else SPARE + (n - 76) * 1024

def phase23(a):
    sHd, sR, sQP, sKQ, sT, sT2, sC, sCB, sKV, sQt = 4, 5, 6, 7, 8, 9, 10, 11, 12, 13
    sK0, sK1 = 14, 15
    sQT3, sDQ = 80, 81
    R = Regs(4, 128)
    t = [R.alloc() for _ in range(4)]
    r = AR(R)
    vL16 = R.alloc()
    PL = R.alloc(8, 4)
    assert PL == 120 and r.aK == 112
    Lld, LX = a.label("kvload"), a.label("X")
    a(f"""
    s_and_b32 s{sHd}, s2, 7
    s_lshl_b32 s{sQT3}, s{sHd}, 3
    s_lshl_b32 s{sHd}, s{sHd}, 2
    s_bfe_u32 s{sT}, s2, 0x20003
    s_add_u32 s{sHd}, s{sHd}, s{sT}
    s_lshr_b32 s{sR}, s2, 5
    s_bfe_u32 s{sT}, s2, 0x30003
    s_add_u32 s{sQT3}, s{sQT3}, s{sT}
    s_lshr_b32 s{sDQ}, s2, 6
    s_and_b32 s{sQP}, s{S_WAVE}, 3
    s_lshr_b32 s{sKQ}, s{S_WAVE}, 2
    v_lshlrev_b32 v{vL16}, 4, v1
    v_mov_b32 v{PL+4}, 0
    """)
    chan(a, sC, sKQ); area(a, sCB, sKQ)
    a(f"""
    s_mul_i32 s{sKV}, s{sHd}, {8*BLK}
    s_add_u32 s{sKV}, s{sKV}, {KV_OFF}
    s_cmp_eq_u32 s{sKQ}, 3
    s_cbranch_scc1 {Lld}
    s_cmp_ge_u32 s{sC}, 576
    s_cbranch_scc1 {LX}
    """)
    FA, FB, ACC = 8, 40, 72
    vA, vB, vY, vD = r.aK, r.aKx, r.aV, r.aV + 1
    Lts1, Lcj, Lsw = a.label("ts1"), a.label("cj"), a.label("sw")
    a(f"""
    s_lshl_b32 s{sT}, s{S_DV}, 16
    s_and_b32 s{S_DV}, s{S_DV}, 0xffff0000
    s_bitcmp0_b32 s{sC}, 0
    s_cselect_b32 s{S_DV}, s{sT}, s{S_DV}
    v_and_b32 v{t[0]}, 15, v1
    v_lshrrev_b32 v{t[1]}, 4, v1
    v_sub_u32 v{t[2]}, 15, v{t[0]}
    v_and_b32 v{t[3]}, 3, v{t[2]}
    v_and_b32 v{t[2]}, 12, v{t[2]}
    v_lshlrev_b32 v{t[2]}, 1, v{t[2]}
    v_lshl_add_u32 v{t[2]}, v{t[1]}, 4, v{t[2]}
    v_mul_u32_u24 v{t[3]}, {CP}, v{t[3]}
    s_and_b32 s{sT}, s{sQP}, 1
    s_lshl_b32 s{sT}, s{sT}, 8
    s_sub_u32 s{sT}, s{sCB}, s{sT}
    v_add3_u32 v{vA}, v{t[2]}, v{t[3]}, s{sT}
    v_lshlrev_b32 v{t[2]}, 5, v{t[0]}
    v_lshl_add_u32 v{t[3]}, v{t[1]}, 4, v{t[2]}
    s_add_u32 s{sT}, s{sT}, {UOFF}
    v_add_u32 v{vB}, s{sT}, v{t[3]}
    v_lshl_add_u32 v{vY}, v{t[1]}, 3, v{t[2]}
    s_lshl_b32 s82, s{sKQ}, 2
    s_add_u32 s82, s82, {CNT}
    """)
    if 'nokg' in EXP: a(f's_branch {LX}')
    lds_spin(a, t[0], t[1], 2, sT, saddr=82, off=C_RDY)
    a.stamp(5)
    a("s_setprio 2")
    if os.environ.get('C3PRIO'): a(f"s_cmp_lt_u32 s{sKQ}, 2\ns_cbranch_scc1 L_c3\ns_setprio {os.environ['C3PRIO']}\nL_c3:")
    T0, T1 = [7, 4, 3, 0], [6, 5, 2, 1]
    BUFS = list(range(8, 72, 4)) + list(range(88, 112, 4))
    a(f"s_cmp_ge_u32 s{sQP}, 2\ns_cbranch_scc1 {Lts1}")
    conv_main(a, T0, vA, vB, BUFS, ACC)
    a(f"s_cmp_eq_u32 s{sQP}, 0\ns_cselect_b32 s{sK0}, {T0[0]}, {T0[2]}\ns_cselect_b32 s{sK1}, {T0[1]}, {T0[3]}\ns_branch {Lcj}")
    a(f"{Lts1}:")
    conv_main(a, T1, vA, vB, BUFS, ACC)
    a(f"s_cmp_eq_u32 s{sQP}, 2\ns_cselect_b32 s{sK0}, {T1[0]}, {T1[2]}\ns_cselect_b32 s{sK1}, {T1[1]}, {T1[3]}")
    a(f"{Lcj}:")
    a.stamp(13)
    lds_inc(a, FB + 8, FB + 9, saddr=82, off=C_1)
    a(f"""
    s_lshl_b32 s{sK0}, s{sK0}, 9
    s_lshl_b32 s{sK1}, s{sK1}, 9
    s_lshl_b32 s{sT}, s{sQP}, 11
    s_add_u32 s{sT}, s{sT}, s{sCB}
    v_add_u32 v{t[0]}, s{sT}, v{vL16}
    s_xor_b32 s{sT}, s{sQP}, 1
    s_lshl_b32 s{sT}, s{sT}, 11
    s_add_u32 s{sT}, s{sT}, s{sCB}
    v_add_u32 v{t[1]}, s{sT}, v{vL16}
    s_add_u32 s{sT}, s{sCB}, s{sK0}
    v_add_u32 v{t[2]}, s{sT}, v{vY}
    s_add_u32 s{sT}, s{sCB}, s{sK1}
    v_add_u32 v{t[3]}, s{sT}, v{vY}
    ds_read_b64 {vr(FA,2)}, v{t[2]} offset:{UOFF+512}
    ds_read_b64 {vr(FA+2,2)}, v{t[3]} offset:{UOFF+512}
    s_bitcmp0_b32 s{sQP}, 0
    s_cbranch_scc1 {Lsw}
    """)
    for i in range(8):
        a(f"v_swap_b32 v{ACC+i}, v{ACC+8+i}")
    a(f"{Lsw}:")
    lds_spin(a, FB + 8, FB + 9, 4, sT, saddr=82, off=C_1)
    a(f"""
    ds_write_b128 v{t[0]}, {vr(ACC+8,4)}
    ds_write_b128 v{t[0]}, {vr(ACC+12,4)} offset:1024
    """)
    lds_inc(a, FB + 8, FB + 9, saddr=82, off=C_2)

    for j in range(2):
        for h in range(2):
            a(f"v_lshlrev_b32 v{FA+4}, 16, v{FA+2*j+h}")
            a(f"v_and_b32 v{FA+5}, 0xffff0000, v{FA+2*j+h}")
            a(f"v_fmac_f32 v{ACC+4*j+2*h}, s{S_DV}, v{FA+4}")
            a(f"v_fmac_f32 v{ACC+4*j+2*h+1}, s{S_DV}, v{FA+5}")
    lds_spin(a, FB + 8, FB + 9, 4, sT, saddr=82, off=C_2)
    a(f"""
    ds_read_b128 {vr(FB,4)}, v{t[1]}
    ds_read_b128 {vr(FB+4,4)}, v{t[1]} offset:1024
    s_lshl_b32 s{sT}, s{sC}, 12
    s_add_u32 s{sT}, s{sT}, {AT_OFF}
    s_add_u32 s{sK0}, s{sK0}, s{sT}
    s_add_u32 s{sK1}, s{sK1}, s{sT}
    s_waitcnt lgkmcnt(0)
    """)
    for i in range(8):
        a(f"v_add_f32 v{ACC+i}, v{ACC+i}, v{FB+i}")
    for i in range(4):
        a(f"v_cvt_pk_bf16_f32 v{PL+i}, v{ACC+2*i}, v{ACC+2*i+1}")
    a(f"""
    buffer_store_dwordx2 {vr(PL,2)}, v{vY}, {WS}, s{sK0} offen{ST}
    buffer_store_dwordx2 {vr(PL+2,2)}, v{vY}, {WS}, s{sK1} offen{ST}
    s_cmp_lt_u32 s{sKQ}, 2
    s_cbranch_scc1 {LX}
    s_waitcnt vmcnt(0)
    """)
    def publish_a(Lskip):
        lds_inc(a, t[0], t[1], off=C_A, rtn=sT)
        a(f"""
        s_cmp_lt_u32 s{S_C2}, 576
        s_cselect_b32 s{sT2}, {7 if 'nokg' in EXP else 11}, 7
        s_cmp_lg_u32 s{sT}, s{sT2}
        s_cbranch_scc1 {Lskip}
        """)
        lds_spin(a, t[0], t[1], 8, sT, off=C_S)
        a(f"s_lshl_b32 s{sT2}, s2, 2\ns_add_u32 s{sT2}, s{sT2}, {FL_A}")
        flag_store(a, t[0], sT2)
    publish_a(LX)
    a(f"s_branch {LX}")
    Lp, Lc, Lq, Lnq, Lgo = [a.label(x) for x in ("kp", "kc", "noqx", "nq", "go")]
    def kv_flags(vd, vt, quarter):
        a(f"""
        v_and_b32 v{vd}, 1, v1
        v_lshlrev_b32 v{vd}, 5, v{vd}
        v_add3_u32 v{vd}, v{vd}, 32, s{sHd}
        v_lshrrev_b32 v{vt}, 1, v1
        s_lshl_b32 s{sT}, s{quarter}, 2
        v_add_u32 v{vt}, s{sT}, v{vt}
        s_lshl_b32 s{sT}, s{sR}, 1
        s_lshr_b32 s{sT2}, s{sQP}, 1
        s_add_u32 s{sT}, s{sT}, s{sT2}
        v_writelane_b32 v{vd}, s{sHd}, 8
        v_writelane_b32 v{vt}, s{sT}, 8
        v_mul_u32_u24 v{vd}, 43, v{vd}
        v_lshrrev_b32 v{vd}, 8, v{vd}
        v_lshl_add_u32 v{vd}, v{vd}, 4, v{vt}
        v_lshlrev_b32 v{vd}, 7, v{vd}
        v_add_u32 v{vd}, {FL_Q}, v{vd}
        """)
    a(f"{Lld}:")
    kv_flags(t[2], t[3], sQP)
    lds_spin(a, t[0], t[1], 8, sT, off=C_S if 'early' in EXP else C_FREE)
    a(f"""
    s_lshl_b32 s74, s{sHd}, 3
    s_add_u32 s74, s74, s{sR}
    s_lshl_b32 s75, s74, 2
    s_add_u32 s75, s75, s{sQP}
    s_mov_b32 s76, 0
    s_lshl_b32 s82, s{sQP}, 2
    s_add_u32 s82, s82, {CNT + C_Q}
    v_mov_b32 v{PL}, s82
    v_mov_b32 v{PL+1}, 1
    s_mov_b32 s{S_SPIN}, {SPIN_MAX}
    {Lp}:
    s_mov_b64 exec, 0x1ff
    buffer_load_dword v{t[3]}, v{t[2]}, {WS}, 0 offen sc1
    s_cmp_lg_u32 s76, 1
    s_cbranch_scc1 {Lq}
    s_mov_b32 s76, 2
    s_waitcnt vmcnt(1)
    ds_write_b32 v{PL}, v{PL+1}
    {Lq}:
    s_waitcnt vmcnt(0)
    v_cmp_ne_u32 vcc, s{S_TAG}, v{t[3]}
    s_mov_b64 exec, -1
    s_sub_u32 s{S_SPIN}, s{S_SPIN}, 1
    s_cselect_b32 vcc_lo, 0, vcc_lo
    s_bitcmp1_b32 vcc_lo, 8
    s_cbranch_scc1 {Lc}
    s_cmp_lg_u32 s76, 0
    s_cbranch_scc1 {Lnq}
    s_mov_b32 s76, 1
    s_lshl_b32 s{sT}, s{sQP}, 11
    s_add_u32 m0, s{sT}, {QST}
    s_lshl_b32 s{sT2}, s75, 11
    s_add_u32 s{sT2}, s{sT2}, {QF_OFF}
    buffer_load_dwordx4 v{vL16}, {WS}, s{sT2} offen{LD} lds
    buffer_load_dwordx4 v{vL16}, {WS}, s{sT2} offen offset:1024{LD} lds
    s_lshl_b32 s{sT}, s{sQP}, 8
    s_add_u32 m0, s{sT}, {QST+8192}
    s_lshl_b32 s{sT2}, s75, 8
    s_add_u32 s{sT2}, s{sT2}, {QX_OFF}
    s_mov_b64 exec, 0xffff
    buffer_load_dwordx4 v{vL16}, {WS}, s{sT2} offen{LD} lds
    s_mov_b64 exec, -1
    {Lnq}:
    s_mov_b32 s77, 0
    s_and_b32 s{sT}, vcc_lo, 0x0f
    s_cbranch_scc0 {Lgo}
    s_mov_b32 s77, 1
    s_and_b32 s{sT}, vcc_lo, 0xf0
    s_cbranch_scc0 {Lgo}
    {Lc}:
    s_sleep {os.environ.get('PSLEEP', '3')}
    s_branch {Lp}
    {Lgo}:
    """)
    a.stamp(5)
    a(f"""
    s_lshl_b32 s{sT}, s{sQP}, 1
    s_add_u32 s{sT}, s{sT}, s77
    s_mul_i32 s{sT}, s{sT}, {BLK}
    s_add_u32 s{sT}, s{sT}, s{sKV}
    s_mul_i32 s82, s{sQP}, {BLK}
    """)
    def run(first, n):
        a(f"s_add_u32 m0, s82, {first*1024}\ns_add_u32 s{sT2}, s{sT}, {first*1024}")
        for i in range(n):
            a(f"buffer_load_dwordx4 v{vL16}, {WS}, s{sT2} offen offset:{1024*i}{LD} lds")
    run(0, 2); run(8, 4)
    a(f"""
    s_lshl_b32 s78, s{sQP}, 3
    s_add_u32 s78, s78, {CNT + C_KV}
    v_mov_b32 v{t[0]}, s78
    v_mov_b32 v{t[2]}, 1
    v_mov_b32 v{t[3]}, s77
    v_mov_b32 v{t[1]}, 2
    s_waitcnt vmcnt(0)
    ds_write_b32 v{PL}, v{PL+1}
    ds_write_b64 v{t[0]}, {vr(t[2],2)}
    s_waitcnt lgkmcnt(0)
    """)
    run(2, 4); run(12, 4); run(6, 2); run(16, 3)
    a(f"s_waitcnt vmcnt(0)\nds_write_b32 v{t[0]}, v{t[1]}")
    a(f"{LX}:")
    a(f"""
    s_mul_i32 s{sT}, s{sKQ}, {BLK}
    v_add_u32 v{r.aK}, s{sT}, v{vL16}
    v_lshl_add_u32 v{r.aKx}, v1, 3, s{sT}
    v_bfe_u32 v{t[0]}, v1, 2, 2
    v_and_b32 v{t[1]}, 1, v1
    v_lshlrev_b32 v{t[1]}, 4, v{t[1]}
    v_and_b32 v{t[2]}, 2, v1
    v_lshl_add_u32 v{t[1]}, v{t[2]}, 2, v{t[1]}
    v_lshl_add_u32 v{t[1]}, v{t[0]}, 5, v{t[1]}
    v_and_b32 v{t[3]}, 32, v1
    v_lshl_add_u32 v{t[1]}, v{t[3]}, 3, v{t[1]}
    v_lshl_add_u32 v{t[0]}, v{t[0]}, 3, v{t[3]}
    v_add_u32 v{t[0]}, 1152, v{t[0]}
    v_lshl_add_u32 v{t[0]}, v{t[2]}, 17, v{t[0]}
    v_and_b32 v{t[2]}, 16, v1
    v_cmp_eq_u32 vcc, 0, v{t[2]}
    v_lshlrev_b32 v{t[2]}, 4, v{t[2]}
    v_mov_b32 v{t[3]}, 512
    v_cndmask_b32 v{t[1]}, v{t[0]}, v{t[1]}, vcc
    v_add_u32 v{r.aV}, s{sT}, v{t[1]}
    v_sub_u32 v{t[2]}, 128, v{t[2]}
    v_cndmask_b32 v{t[3]}, 64, v{t[3]}, vcc
    v_add_u32 v{r.aV+1}, v{r.aV}, v{t[2]}
    v_add_u32 v{r.aV+2}, v{r.aV}, v{t[3]}
    v_add_u32 v{r.aV+3}, v{r.aV+2}, v{t[2]}
    v_mov_b32 v{r.idx}, 0xdddddddd
    s_mov_b32 s72, {fbits(2.0**-40)}
    s_mov_b32 s73, {fbits(2.0**60)}
    s_movk_i32 s64, 0x1f8
    s_mov_b64 s[62:63], 0
    s_lshl_b32 s{sT}, s{sQP}, 11
    s_add_u32 s{sT}, s{sT}, {QST}
    v_add_u32 v{t[0]}, s{sT}, v{vL16}
    v_and_b32 v{t[1]}, 31, v1
    s_lshl_b32 s{sT}, s{sQP}, 8
    s_add_u32 s{sT}, s{sT}, {QST+8192}
    v_lshl_add_u32 v{t[1]}, v{t[1]}, 2, s{sT}
    v_cmp_gt_u32 vcc, 32, v1
    s_lshl_b32 s{sQt}, s{sR}, 2
    s_add_u32 s{sQt}, s{sQt}, s{sQP}
    """)
    for X in range(2):
        for i in (1, 2, 5, 6): a(f"v_mov_b32 v{r.Qx[X]+i}, 0")
    a.stamp(6)
    a(f"s_lshl_b32 s82, s{sQP}, 2\ns_add_u32 s82, s82, {CNT}\ns_lshl_b32 s83, s{sKQ}, 3\ns_add_u32 s83, s83, {CNT}")
    lds_spin(a, PL, PL + 1, 1, sT, saddr=82, off=C_Q)
    a(f"""
    ds_read_b128 {vr(r.Qm[0],4)}, v{t[0]}
    ds_read_b128 {vr(r.Qm[1],4)}, v{t[0]} offset:1024
    ds_read2_b32 {vr(t[2],2)}, v{t[1]} offset0:0 offset1:32
    """)
    lds_inc(a, PL, PL + 1, off=C_Y)
    lds_spin(a, PL, PL + 1, 1, sT, saddr=83, off=C_KV)
    a(f"""
    ds_read_b64 {vr(r.Kx,2)}, v{r.aKx} offset:{kx_off(0)}
    ds_read_b128 {vr(r.K,4)}, v{r.aK} offset:{k_off(0)}
    ds_read_b64_tr_b16 {vr(r.V0,2)}, v{r.aV} offset:{v_off(0)}
    ds_read_b64_tr_b16 {vr(r.V0+2,2)}, v{r.aV+1} offset:{v_off(0)}
    """)
    for X in range(2):
        q = r.Qx[X]; src = t[2] + X
        a(f"""
        v_cndmask_b32 v{q+0}, 0, v{src}, vcc
        v_cndmask_b32 v{q+3}, 0, v{src}, vcc
        v_cndmask_b32 v{q+4}, v{src}, 0, vcc
        v_cndmask_b32 v{q+7}, v{src}, 0, vcc
        """)
    def stage2_pre():
        a(f"v_mov_b32 v{t[0]}, s83\nds_read_b32 v{t[1]}, v{t[0]} offset:{C_KV}")
    def stage2_post():
        L = a.label("cok")
        a(f"v_cmp_gt_u32 vcc, 2, v{t[1]}\ns_cbranch_vccz {L}")
        lds_spin(a, t[0], t[1], 2, sT, saddr=83, off=C_KV)
        a(f"{L}:")
    def wt_issue():
        L = a.label("nw")
        a(f"s_cmp_ge_u32 s{S_WAVE}, 3\ns_cbranch_scc1 {L}\ns_lshl_b32 s79, s{S_WAVE}, 8\ns_add_u32 s79, s79, s2")
        if 'nowt' in EXP: a("s_movk_i32 s79, 1000")
        wt_load(a, 79, sT, 78, 77, 76, 75, t[0], t[1], t[2], PL)
        a(f"{L}:")
    def wt_put():
        L, Ls = a.label("nw"), a.label("ns")
        a(f"s_cmp_ge_u32 s{S_WAVE}, 8\ns_cbranch_scc1 {Ls}\ns_cmp_ge_u32 s{S_WAVE}, 3\ns_cbranch_scc1 {L}\ns_waitcnt vmcnt(0)")
        wt_store(a, 79, PL, vL16)
        a(f"{L}:\ns_lshr_b32 s78, s{S_WAVE}, 1")
        kv_flags(PL + 4, PL + 5, 78)
        a("s_mov_b64 exec, 0xff")
        poll_issue(a, PL + 5, 1, PL + 4, 0)
        a(f"s_mov_b64 exec, -1\n{Ls}:")
    def second_blocks():
        Ls, Lw = a.label("kvs"), a.label("nw")
        a(f"s_cmp_ge_u32 s{S_WAVE}, 8\ns_cbranch_scc1 {Ls}\ns_mov_b64 exec, 0xff")
        poll_wait(a, PL + 5, 1, PL + 4, 0, issued=True)
        a("s_mov_b64 exec, -1")
        publish_a(Lw)
        a(f"{Lw}:")
        lds_spin(a, t[0], t[1], 16, sT, off=C_Y)
        a(f"s_lshl_b32 s82, s78, 3\ns_add_u32 s82, s82, {CNT}")
        lds_spin(a, t[0], t[1], 1, sT, saddr=82, off=C_KV)
        a(f"""
        ds_read_b32 v{t[1]}, v{t[0]} offset:{C_KV+4}
        s_and_b32 s{sT}, s{S_WAVE}, 6
        s_waitcnt lgkmcnt(0)
        v_readfirstlane_b32 s{sT2}, v{t[1]}
        s_xor_b32 s{sT2}, s{sT2}, 1
        s_and_b32 s{sT2}, s{sT2}, 1
        s_add_u32 s{sT}, s{sT}, s{sT2}
        s_mul_i32 s{sT}, s{sT}, {BLK}
        s_add_u32 s{sT}, s{sT}, s{sKV}
        s_and_b32 s{sT2}, s{S_WAVE}, 1
        s_mul_i32 s{sT2}, s{sT2}, 9216
        s_add_u32 s{sT}, s{sT}, s{sT2}
        s_mul_i32 s82, s78, {BLK}
        s_add_u32 s82, s82, s{sT2}
        s_add_u32 m0, s82, {REG_B}
        s_nop 0
        """)
        for i in range(10):
            a(f"buffer_load_dwordx4 v{vL16}, {WS}, s{sT} offen offset:{1024*(i&3)}{LD} lds")
            if i & 3 == 3: a(f"s_add_u32 m0, m0, 4096\ns_add_u32 s{sT}, s{sT}, 4096")
        a(f"{Ls}:")
    a("s_waitcnt lgkmcnt(2)\ns_nop 0")
    a.stamp(7)
    def poll_post():
        L = a.label("nopa")
        a(f"s_cmp_lg_u32 s{S_WAVE}, 0\ns_cbranch_scc1 {L}")
        poll_issue(a, PL, 4, vL16, FL_A)
        a(f"{L}:")
    def poll_check():
        L = a.label("nopw")
        a(f"s_cmp_lg_u32 s{S_WAVE}, 0\ns_cbranch_scc1 {L}")
        poll_wait(a, PL, 4, vL16, FL_A, issued=True)
        lds_inc(a, t[0], t[1], off=C_FA)
        a(f"{L}:")
    def mid_post():
        a("s_waitcnt vmcnt(0)")
        a.stamp(15)
        a(f"s_setprio {PRIO['M']}\ns_barrier")
        a.stamp(16)
    NLD = 8
    def prefetch_post():
        La, Ld = a.label("pfa"), a.label("pfd")
        a(f"""
        s_cmp_ge_u32 s{S_WAVE}, {0 if 'nopf' in EXP else 9}
        s_cbranch_scc1 {La}
        """)
        lds_spin(a, t[0], t[1], 1, sT, off=C_FA)
        a(f"""
        s_mul_i32 s{sT}, s{sDQ}, 9
        s_add_u32 s{sT}, s{sT}, s{S_WAVE}
        s_lshl_b32 m0, s{S_WAVE}, 13
        s_mul_i32 s{sT}, s{sT}, {18*1024}
        s_add_u32 s{sT}, s{sT}, {WT_OFF}
        """)
        for n in range(NLD):
            a(f"buffer_load_dwordx4 v{vL16}, {WS}, s{sT} offen offset:{1024*(n&3)}{LD} lds")
            if n == 3: a(f"s_add_u32 m0, m0, 4096\ns_add_u32 s{sT}, s{sT}, 4096")
        a(f"""
        v_lshrrev_b32 v{t[0]}, 2, v1
        v_lshlrev_b32 v{t[0]}, 12, v{t[0]}
        v_and_b32 v{t[1]}, 3, v1
        v_lshl_add_u32 v{t[0]}, v{t[1]}, 4, v{t[0]}
        s_mul_i32 s{sT}, s{sDQ}, 9
        s_add_u32 s{sT}, s{sT}, s{S_WAVE}
        s_lshl_b32 s{sT}, s{sT}, 16
        s_lshl_b32 s{sT2}, s{sQT3}, 6
        s_add_u32 s{sT}, s{sT}, s{sT2}
        s_add_u32 s{sT}, s{sT}, {AT_OFF}
        s_lshl_b32 s{sK1}, s{S_WAVE}, 10
        s_add_u32 s{sT2}, s{sK1}, {SPARE - 4096}
        s_add_u32 s{sK1}, s{sK1}, {72*1024}
        s_cmp_ge_u32 s{S_WAVE}, 4
        s_cselect_b32 s{sK1}, s{sT2}, s{sK1}
        s_mov_b32 m0, s{sK1}
        s_nop 0
        buffer_load_dwordx4 v{t[0]}, {WS}, s{sT} offen{LD} lds
        {La}:
        """)
    attn_loop(a, r, PRIO, {0: stage2_pre}, {0: lambda: (stage2_post(), wt_issue()), 3: wt_put, 5: second_blocks, 7: mid_post, 8: poll_post, 10: poll_check, 11: prefetch_post})
    a('s_setprio 3')
    a.stamp(8)
    O0, O1 = r.O
    FD = [72 + 4*i for i in range(10)]
    FL = [8 + 4*i for i in range(8)]
    FA3 = FL + FD
    AV, vG, vB, vOut, ACC3, FB3 = 112, 116, 118, t[3], PL, 40
    OZ = REG_B + BLK
    Lfin, Lp9, Lend, Lfirst, Lwr = [a.label(x) for x in ("fin", "p9", "end", "first", "wr")]
    a(f"""
    s_lshl_b32 s82, s{sKQ}, 2
    s_add_u32 s82, s82, {CNT}
    """)
    lds_inc(a, t[0], t[1], saddr=82, off=C_E)
    a(f"""
    s_lshl_b32 s83, s{sQP}, 2
    s_add_u32 s83, s83, {CNT}
    s_mul_i32 s{sCB}, s{sQP}, 4864
    s_add_u32 s{sCB}, s{sCB}, {REG_B}
    v_cmp_gt_u32 vcc, 32, v1
    v_add_u32 v{t[2]}, s{sCB}, v{vL16}
    v_lshl_add_u32 v{t[3]}, v1, 3, s{sCB}
    v_lshl_add_u32 v{r.aK}, v1, 2, s{sCB}
    """)
    for i in range(3): a(f"v_cndmask_b32 v{O0+8+i}, v{O1+8+i}, v{O0+8+i}, vcc")
    a(f"s_cmp_eq_u32 s{sKQ}, 0\ns_cbranch_scc1 {Lfirst}")
    lds_spin(a, t[0], t[1], f"s{sKQ}", sT, saddr=83, off=C_P)
    a.stamp(18)
    a(f"""
    ds_read_b64 v[24:25], v{t[3]} offset:4096
    ds_read_b32 v26, v{r.aK} offset:4608
    ds_read_b128 v[8:11], v{t[2]}
    ds_read_b128 v[12:15], v{t[2]} offset:1024
    ds_read_b128 v[16:19], v{t[2]} offset:2048
    ds_read_b128 v[20:23], v{t[2]} offset:3072
    s_waitcnt lgkmcnt(4)
    """)
    for i in range(3): a(f"v_add_f32 v{O0+8+i}, v{O0+8+i}, v{24+i}")
    a(f"s_cmp_eq_u32 s{sKQ}, 3\ns_cbranch_scc1 {Lfin}\ns_waitcnt lgkmcnt(2)")
    for i in range(8): a(f"v_add_f32 v{O0+i}, v{O0+i}, v{8+i}")
    a("s_waitcnt lgkmcnt(0)")
    for i in range(8): a(f"v_add_f32 v{O1+i}, v{O1+i}, v{16+i}")
    a(f"s_branch {Lwr}\n{Lfirst}:")
    lds_spin(a, t[0], t[1], 4, sT, saddr=82, off=C_E)
    a(f"""{Lwr}:
    ds_write_b128 v{t[2]}, {vr(O0,4)}
    ds_write_b128 v{t[2]}, {vr(O0+4,4)} offset:1024
    ds_write_b128 v{t[2]}, {vr(O1,4)} offset:2048
    ds_write_b128 v{t[2]}, {vr(O1+4,4)} offset:3072
    ds_write_b64 v{t[3]}, {vr(O0+8,2)} offset:4096
    ds_write_b32 v{r.aK}, v{O0+10} offset:4608
    """)
    lds_inc(a, t[0], t[1], saddr=83, off=C_P)
    a("s_setprio 0")
    a.stamp(17)
    a(f"""
    s_cmp_ge_u32 s{S_WAVE}, 9
    s_cbranch_scc1 {Lp9}
    v_and_b32 v{t[2]}, 15, v1
    v_lshlrev_b32 v{t[2]}, 2, v{t[2]}
    s_lshl_b32 s{sT}, s{sQT3}, 7
    s_add_u32 s{sT}, s{sT}, {G_OFF}
    s_waitcnt lgkmcnt(0)
    buffer_load_dword v{vG}, v{t[2]}, {WS}, s{sT} offen{LD}
    buffer_load_dword v{vG+1}, v{t[2]}, {WS}, s{sT} offen offset:64{LD}
    s_mul_i32 s{sK0}, s{sDQ}, 9
    s_add_u32 s{sK0}, s{sK0}, s{S_WAVE}
    s_mul_i32 s{sT}, s{sK0}, {18*1024}
    s_add_u32 s{sT}, s{sT}, {WT_OFF + NLD*1024}
    """)
    for n in range(10):
        a(f"buffer_load_dwordx4 {vr(FD[n],4)}, v{vL16}, {WS}, s{sT} offen offset:{1024*(n&3)}{LD}")
        if n & 3 == 3: a(f"s_add_u32 s{sT}, s{sT}, 4096")
    a(f"""
    s_lshl_b32 s{sT}, s{S_WAVE}, 13
    v_add_u32 v{t[0]}, s{sT}, v{vL16}
    v_lshrrev_b32 v{t[1]}, 2, v1
    v_lshlrev_b32 v{t[1]}, 6, v{t[1]}
    v_and_b32 v{t[2]}, 3, v1
    v_lshl_add_u32 v{t[1]}, v{t[2]}, 3, v{t[1]}
    v_add_u32 v{t[1]}, s{sK1}, v{t[1]}
    s_waitcnt vmcnt(10)
    """)
    for ks in range(NLD):
        a(f"ds_read_b128 {vr(FL[ks],4)}, v{t[0]} offset:{1024*ks}")
    a(f"""
    ds_read_b64_tr_b16 {vr(AV,2)}, v{t[1]}
    ds_read_b64_tr_b16 {vr(AV+2,2)}, v{t[1]} offset:32
    v_lshrrev_b32 v{t[0]}, 4, v1
    v_and_b32 v{t[2]}, 15, v1
    v_lshlrev_b32 v{vB}, 9, v{t[0]}
    v_add_u32 v{vB}, {OZ}, v{vB}
    v_lshl_add_u32 v{vB+1}, v{t[2]}, 2, v{vB}
    v_add_u32 v{vB+1}, 32768, v{vB+1}
    v_lshl_add_u32 v{vB}, v{t[2]}, 4, v{vB}
    v_mul_u32_u24 v{vOut}, 1152, v{t[2]}
    v_lshl_add_u32 v{vOut}, v{t[0]}, 3, v{vOut}
    v_add_u32 v{t[2]}, 2048, v{vB+1}
    """)
    GA, OM = 60, 68
    for T in range(2):
        g = vG + T
        a(f"""
        v_cvt_pk_bf16_f32 v{g}, v{g}, v{g}
        v_and_b32 v{g}, 0xffff0000, v{g}
        v_mul_f32 v{g}, {fbits(-L_HI)}, v{g}
        v_exp_f32 v{g}, v{g}
        s_nop 0
        v_add_f32 v{g}, 1.0, v{g}
        v_rcp_f32 v{g}, v{g}
        s_nop 0
        v_cvt_pk_bf16_f32 v{g}, v{g}, v{g}
        v_and_b32 v{g}, 0xffff0000, v{g}
        v_sub_f32 v{OM+T}, 1.0, v{g}
        v_cvt_pk_bf16_f32 v{OM+T}, v{OM+T}, v{OM+T}
        v_and_b32 v{OM+T}, 0xffff0000, v{OM+T}
        """)
    for i in range(8): a(f"v_mov_b32 v{ACC3+i}, 0")
    a("s_waitcnt lgkmcnt(0)")
    for T in range(2):
        for h in range(2):
            a(f"v_lshlrev_b32 v{GA+4*T+2*h}, 16, v{AV+2*T+h}\nv_and_b32 v{GA+4*T+2*h+1}, 0xffff0000, v{AV+2*T+h}")
        for i in range(4): a(f"v_mul_f32 v{GA+4*T+i}, v{vG+T}, v{GA+4*T+i}")
    srd(a, R_A, P_OUT, X_BYTES)
    Lscan, Lall = a.label("scan"), a.label("all")
    a(f"""
    s_mul_i32 s{sT}, s{sQT3}, {32*1152}
    s_lshl_b32 s{sT2}, s{sK0}, 5
    s_add_u32 s{sK0}, s{sT}, s{sT2}
    s_add_u32 s{sK1}, s{sK0}, {16*1152}
    v_mov_b32 v{t[0]}, {CNT}
    s_mov_b32 s74, 0
    s_mov_b32 s{S_SPIN}, {SPIN_MAX}
    s_waitcnt vmcnt(0)
    s_setprio 2
    {Lscan}:
    ds_read_b32 v{t[1]}, v{t[0]} offset:{C_F}
    s_sub_u32 s{S_SPIN}, s{S_SPIN}, 1
    s_cbranch_scc1 {Lall}
    s_waitcnt lgkmcnt(0)
    v_readfirstlane_b32 s75, v{t[1]}
    s_andn2_b32 s76, s75, s74
    s_cbranch_scc1 {Lscan}_n
    s_sleep 1
    s_branch {Lscan}
    {Lscan}_n:
    s_mov_b32 s74, s75
    """)
    for g in range(8):
        L = a.label("grp")
        a(f"s_bitcmp0_b32 s76, {g}\ns_cbranch_scc1 {L}")
        for n in range(4):
            a(f"ds_read_b128 {vr(FB3+4*n,4)}, v{vB} offset:{(2*g+(n>>1))*2048 + (n&1)*256}")
        for n in range(4):
            T = n & 1
            a(f"s_waitcnt lgkmcnt({3-n})\nv_mfma_f32_16x16x32_bf16 {vr(ACC3+4*T,4)}, {vr(FA3[2*g+(n>>1)],4)}, {vr(FB3+4*n,4)}, {vr(ACC3+4*T,4)}")
        a(f"{L}:")
    a(f"s_cmp_lg_u32 s74, 0xff\ns_cbranch_scc1 {Lscan}\n{Lall}:")
    a.stamp(21)
    for n in range(4):
        va = vB + 1 if n < 2 else t[2]; T = n & 1; d = FB3 + 4 * n
        a(f"ds_read2_b32 {vr(d,2)}, v{va} offset0:{16*T} offset1:{16*T+32}")
        a(f"ds_read2_b32 {vr(d+2,2)}, v{va} offset0:{16*T+64} offset1:{16*T+96}")
    for n in range(4):
        T = n & 1
        a(f"s_waitcnt lgkmcnt({6-2*n})\nv_mfma_f32_16x16x32_bf16 {vr(ACC3+4*T,4)}, {vr(FA3[16+(n>>1)],4)}, {vr(FB3+4*n,4)}, {vr(ACC3+4*T,4)}")
    a("s_nop 6")
    for T in range(2):
        for i in range(4): a(f"v_fmac_f32 v{GA+4*T+i}, v{OM+T}, v{ACC3+4*T+i}")
        a(f"""
        v_cvt_pk_bf16_f32 v{8+2*T}, v{GA+4*T}, v{GA+4*T+1}
        v_cvt_pk_bf16_f32 v{9+2*T}, v{GA+4*T+2}, v{GA+4*T+3}
        buffer_store_dwordx2 {vr(8+2*T,2)}, v{vOut}, s[{R_A}:{R_A+3}], s{sK0 if T == 0 else sK1} offen
        """)
    a(f"s_branch {Lend}")
    Lpl, Lpc, Lpd = a.label("pl"), a.label("pc"), a.label("pd")
    a(f"{Lp9}:")
    lds_spin(a, t[0], t[1], 4, sT, off=C_E + 4)
    lds_spin(a, t[0], t[1], 4, sT, off=C_E + 8)
    a(f"""
    s_setprio 3
    s_sub_u32 s77, s{S_WAVE}, 9
    v_lshrrev_b32 v{t[2]}, 2, v1
    v_mul_u32_u24 v{t[2]}, 12, v{t[2]}
    v_and_b32 v{t[3]}, 3, v1
    s_lshl_b32 s{sT}, s77, 2
    v_add3_u32 v{t[2]}, v{t[2]}, v{t[3]}, s{sT}
    s_lshr_b32 s{sT}, s{sQT3}, 1
    s_lshl_b32 s{sT}, s{sT}, 12
    s_add_u32 s{sT}, s{sT}, {FL_O}
    v_lshl_add_u32 v{t[2]}, v{t[2]}, 7, s{sT}
    s_cmp_eq_u32 s77, 2
    s_movk_i32 s74, 0xfff
    s_cselect_b32 s74, 0xff, s74
    s_mov_b32 s75, 0
    s_mul_i32 s78, s{sQT3}, {36*1024}
    s_add_u32 s78, s78, {OF_OFF}
    v_mov_b32 v{t[0]}, {CNT}
    s_mov_b32 s{S_SPIN}, {SPIN_MAX}
    {Lpl}:
    s_mov_b32 exec_lo, s74
    s_mov_b32 exec_hi, 0
    buffer_load_dword v{t[3]}, v{t[2]}, {WS}, 0 offen sc1
    s_waitcnt vmcnt(0)
    v_cmp_ne_u32 vcc, s{S_TAG}, v{t[3]}
    s_mov_b64 exec, -1
    s_sub_u32 s{S_SPIN}, s{S_SPIN}, 1
    s_cselect_b32 vcc_lo, 0, vcc_lo
    s_orn2_b32 s76, vcc_lo, s74
    s_mov_b32 s75, 0
    """)
    for i in range(3):
        L = a.label("og")
        a(f"""
        s_and_b32 s{sT}, s76, {0xf << (4*i)}
        s_cbranch_scc1 {L}
        s_andn2_b32 s74, s74, {0xf << (4*i)}
        s_add_u32 s{sT}, s77, {3*i}
        s_bitset1_b32 s75, s{sT}
        s_lshl_b32 s{sT2}, s{sT}, 12
        s_add_u32 m0, s{sT2}, {OZ}
        s_add_u32 s{sT2}, s{sT2}, s78
        """)
        for n in range(4):
            a(f"buffer_load_dwordx4 v{vL16}, {WS}, s{sT2} offen offset:{1024*n}{LD} lds")
        a(f"""
        s_lshl_b32 s{sT2}, s{sT}, 9
        s_add_u32 m0, s{sT2}, {OZ + 32768}
        s_add_u32 s{sT2}, s{sT2}, s78
        s_add_u32 s{sT2}, s{sT2}, 32768
        s_mov_b64 exec, 0xffffffff
        buffer_load_dwordx4 v{vL16}, {WS}, s{sT2} offen{LD} lds
        s_mov_b64 exec, -1
        {L}:
        """)
    a(f"""
    s_cmp_eq_u32 s75, 0
    s_cbranch_scc1 {Lpc}
    v_mov_b32 v{t[1]}, s75
    s_mov_b64 exec, 1
    s_waitcnt vmcnt(0)
    ds_or_b32 v{t[0]}, v{t[1]} offset:{C_F}
    s_mov_b64 exec, -1
    s_cmp_eq_u32 s74, 0
    s_cbranch_scc0 {Lpl}
    """)
    a.stamp(20)
    a(f"""
    s_branch {Lend}
    {Lpc}:
    s_sleep {os.environ.get('OSLEEP', '3')}
    s_branch {Lpl}
    """)
    a(f"""{Lfin}:
    v_mov_b32 v{O1+10}, v{O0+10}
    s_lshl_b32 s{sK0}, s{sQt}, 5
    s_add_u32 s{sK0}, s{sK0}, s{sHd}
    v_permlane32_swap_b32 v{O0+10}, v{O1+10}
    s_lshl_b32 s{sK0}, s{sK0}, 7
    s_add_u32 s{sK0}, s{sK0}, {FL_O}
    s_mul_i32 s{sQt}, s{sQt}, {72*1024}
    s_add_u32 s{sQt}, s{sQt}, {OF_OFF}
    s_lshl_b32 s{sT}, s{sHd}, 7
    s_add_u32 s{sK1}, s{sQt}, s{sT}
    s_add_u32 s{sK1}, s{sK1}, 32768
    s_lshl_b32 s{sT}, s{sHd}, 10
    s_add_u32 s{sQt}, s{sQt}, s{sT}
    s_waitcnt lgkmcnt(2)
    """)
    for i in range(8): a(f"v_add_f32 v{O0+i}, v{O0+i}, v{8+i}")
    a("s_waitcnt lgkmcnt(0)")
    for i in range(8): a(f"v_add_f32 v{O1+i}, v{O1+i}, v{16+i}")
    a.c("softmax ran without max subtraction: valid only if the row sums stayed in a safe range, else redo with the true max")
    a(f"""
    L_norm:
    v_rcp_f32 v{t[0]}, v{O0+10}
    v_rcp_f32 v{t[1]}, v{O1+10}
    v_min_f32 v{t[2]}, v{O0+10}, v{O1+10}
    v_max_f32 v{t[3]}, v{O0+10}, v{O1+10}
    v_cmp_le_f32 s[74:75], {fbits(2.0**-40) if False else 's72'}, v{t[2]}
    v_cmp_ge_f32 s[76:77], s73, v{t[3]}
    v_cmp_gt_u32 vcc, 32, v1
    """)
    for X, O in enumerate((O0, O1)):
        for i in range(8): a(f"v_mul_f32 v{O+i}, v{O+i}, v{t[X]}")
    a(f"""
    v_cndmask_b32 v{t[0]}, v{t[1]}, v{t[0]}, vcc
    s_and_b64 s[74:75], s[74:75], s[76:77]
    v_mul_f32 v{O0+8}, v{O0+8}, v{t[0]}
    v_mul_f32 v{O0+9}, v{O0+9}, v{t[0]}
    """)
    for X, O in enumerate((O0, O1)):
        for i in range(4): a(f"v_cvt_pk_bf16_f32 v{8+4*X+i}, v{O+2*i}, v{O+2*i+1}")
    a(f"v_cvt_pk_bf16_f32 v16, v{O0+8}, v{O0+9}")
    a(f"""
    v_add_f32 v{t[2]}, v{O0+8}, v{O0+9}
    """)
    for i in range(0, 8, 2):
        a(f"v_add3_f32 v{t[2]}, v{t[2]}, v{O0+i}, v{O0+i+1}" if False else f"v_add_f32 v{O0+i}, v{O0+i}, v{O0+i+1}\nv_add_f32 v{O1+i}, v{O1+i}, v{O1+i+1}")
    a(f"""
    v_add_f32 v{O0}, v{O0}, v{O0+2}
    v_add_f32 v{O0+4}, v{O0+4}, v{O0+6}
    v_add_f32 v{O1}, v{O1}, v{O1+2}
    v_add_f32 v{O1+4}, v{O1+4}, v{O1+6}
    v_add_f32 v{O0}, v{O0}, v{O0+4}
    v_add_f32 v{O1}, v{O1}, v{O1+4}
    v_add_f32 v{t[2]}, v{t[2]}, v{O0}
    v_add_f32 v{t[2]}, v{t[2]}, v{O1}
    v_and_b32 v{t[3]}, 31, v1
    v_cmp_class_f32 vcc, v{t[2]}, s64
    v_lshrrev_b32 v{t[1]}, 5, v1
    v_mul_u32_u24 v{t[1]}, {36*1024}, v{t[1]}
    s_and_b64 s[74:75], s[74:75], vcc
    s_or_b64 s[74:75], s[74:75], s[62:63]
    v_lshl_add_u32 v{t[3]}, v{t[3]}, 2, v{t[1]}
    s_cmp_eq_u64 s[74:75], -1
    s_cbranch_scc0 L_fallback
    buffer_store_dwordx4 v[8:11], v{vL16}, {WS}, s{sQt} offen{ST}
    s_add_u32 s{sQt}, s{sQt}, {36*1024}
    buffer_store_dwordx4 v[12:15], v{vL16}, {WS}, s{sQt} offen{ST}
    buffer_store_dword v16, v{t[3]}, {WS}, s{sK1} offen{ST}
    """)
    a.stamp(19)
    a(f"v_mov_b32 v{t[0]}, s{S_TAG}\nv_lshlrev_b32 v{t[1]}, 2, v1\ns_mov_b64 exec, 0xffff\ns_waitcnt vmcnt(0)\nbuffer_store_dword v{t[0]}, v{t[1]}, {WS}, s{sK0} offen sc1\ns_mov_b64 exec, -1")
    a.stamp(20)
    a(f"""
    s_lshl_b32 s{sT}, s2, 4
    s_add_u32 s{sT}, s{sT}, s{S_WAVE}
    s_cmp_lg_u32 s{sT}, 12
    s_cbranch_scc1 {Lend}
    s_mov_b32 s{sT2}, {FL_OFF}
    """)
    flag_store(a, t[0], sT2)
    a(f"{Lend}:")
    def cold():
        a("L_fallback:")
        a(f"s_mov_b32 s82, {CNT+12}")
        lds_spin(a, t[0], t[1], 4, sT, saddr=82, off=C_E)
        fallback(a, r, t, vL16, sKV, sQP, sT, sT2)
        a(f"""
        v_cmp_gt_u32 vcc, 32, v1
        s_mov_b64 s[62:63], -1
        s_nop 0
        v_cndmask_b32 v{O0+8}, v{O1+8}, v{O0+8}, vcc
        v_cndmask_b32 v{O0+9}, v{O1+9}, v{O0+9}, vcc
        s_branch L_norm
        """)
    return cold

def fallback(a, r, t, vL16, sKV, sQP, sT, sT2):
    S, NM = r.S[0], r.S[1]
    sI, sP, sLds = 76, 77, 82
    vM, vKxo = r.aK, r.aKx
    a(f"""
    s_lshl_b32 s{sT}, s{sQP}, 11
    s_add_u32 s{sLds}, s{sT}, {REG_B + 3*BLK}
    v_and_b32 v{vKxo}, 31, v1
    v_lshlrev_b32 v{vKxo}, 3, v{vKxo}
    v_mov_b32 v{r.Kx+1}, 0
    """)
    for i in range(4): a(f"v_add_u32 v{r.aV+i}, s{sT}, v{r.aV+i}")
    for X in range(2):
        O = r.O[X]
        Lp, Lt, Lp2, Lnx, Ldn = a.label("fbpass"), a.label("fbtile"), a.label("fbp2"), a.label("fbnx"), a.label("fbdone")
        a(f"v_mov_b32 v{vM}, 0xff800000\ns_mov_b32 s{sP}, 0")
        for i in range(16): a(f"v_mov_b32 v{NM+i}, 0\nv_mov_b32 v{O+i}, 0")
        a(f"""{Lp}:
        s_mov_b32 s{sI}, 0
        {Lt}:
        s_lshr_b32 s{sT}, s{sI}, 3
        s_mul_i32 s{sT}, s{sT}, {BLK}
        s_add_u32 s{sT}, s{sT}, s{sKV}
        s_and_b32 s{sT2}, s{sI}, 7
        s_lshl_b32 s78, s{sT2}, 10
        s_add_u32 s78, s78, s{sT}
        buffer_load_dwordx4 {vr(r.K,4)}, v{vL16}, {WS}, s78 offen{LD}
        s_and_b32 s78, s{sI}, 6
        s_lshl_b32 s78, s78, 7
        s_and_b32 s79, s{sI}, 1
        s_lshl_b32 s79, s79, 2
        s_add_u32 s78, s78, s79
        s_add_u32 s78, s78, s{sT}
        s_add_u32 s78, s78, {KX_OFF}
        buffer_load_dword v{r.Kx}, v{vKxo}, {WS}, s78 offen{LD}
        s_mul_i32 s78, s{sT2}, 1280
        s_add_u32 s78, s78, s{sT}
        s_add_u32 s78, s78, {V_OFF}
        s_mov_b32 m0, s{sLds}
        s_nop 0
        buffer_load_dwordx4 v{vL16}, {WS}, s78 offen{LD} lds
        s_mov_b64 exec, 0xffff
        buffer_load_dwordx4 v{vL16}, {WS}, s78 offen offset:1024{LD} lds
        s_mov_b64 exec, -1
        s_waitcnt vmcnt(0)
        v_mfma_f32_32x32x8_bf16 {vr(S,16)}, {vr(r.Kx,2)}, {vr(r.Qx[X],2)}, {vr(NM,16)}
        v_mfma_f32_32x32x16_bf16 {vr(S,16)}, {vr(r.K,4)}, {vr(r.Qm[X],4)}, {vr(S,16)}
        ds_read_b64_tr_b16 {vr(r.V0,2)}, v{r.aV}
        ds_read_b64_tr_b16 {vr(r.V0+2,2)}, v{r.aV+1}
        ds_read_b64_tr_b16 {vr(r.V1,2)}, v{r.aV+2}
        ds_read_b64_tr_b16 {vr(r.V1+2,2)}, v{r.aV+3}
        s_waitcnt lgkmcnt(0)
        s_nop 15
        s_cmp_lg_u32 s{sP}, 0
        s_cbranch_scc1 {Lp2}
        """)
        for i in range(8): a(f"v_max3_f32 v{vM}, v{S+2*i}, v{S+2*i+1}, v{vM}")
        a(f"s_branch {Lnx}\n{Lp2}:")
        E(a, S, 0, 16)
        a(f"""
        s_nop 1
        v_smfmac_f32_32x32x32_bf16 {vr(O,16)}, {vr(r.V0,4)}, {vr(S,8)}, v{r.idx}
        v_smfmac_f32_32x32x32_bf16 {vr(O,16)}, {vr(r.V1,4)}, {vr(S+8,8)}, v{r.idx}
        {Lnx}:
        s_add_u32 s{sI}, s{sI}, 1
        s_cmp_lt_u32 s{sI}, 64
        s_cbranch_scc1 {Lt}
        s_cmp_lg_u32 s{sP}, 0
        s_cbranch_scc1 {Ldn}
        v_mov_b32 v{t[2]}, v{vM}
        s_nop 1
        v_permlane32_swap_b32 v{vM}, v{t[2]}
        s_nop 1
        v_max_f32 v{vM}, v{vM}, v{t[2]}
        """)
        for i in range(16): a(f"v_sub_f32 v{NM+i}, 0, v{vM}")
        a(f"""
        s_mov_b32 s{sP}, 1
        s_branch {Lp}
        {Ldn}:
        s_nop 15
        """)
```

```python
class Asm:
    def __init__(self):
        self.lines = []
        self.nlabel = 0
    def __call__(self, s):
        for ln in s.split("\n"):
            ln = ln.strip()
            if ln:
                self.lines.append(ln if ln.endswith(":") else "    " + ln)
    def c(self, s):
        self.lines.append("    ; " + s)
    def label(self, base):
        self.nlabel += 1
        return f"L_{base}_{self.nlabel}"
    diag = False
    probe = None
    lite = False
    only = [int(x) for x in __import__('os').environ.get('ONLY', '').split(',') if x]
    cyc = [int(x) for x in __import__('os').environ.get('CYC', '').split(',') if x]
    def stamp(self, n, real=True):
        if self.probe is not None and self.probe == n:
            self("s_memrealtime s[94:95]\ns_waitcnt lgkmcnt(0)")
        if n >= 32 or not self.diag or (self.lite and n not in (29, 31)): return
        if self.only and n not in self.only + [29, 31]: return
        if self.cyc:
            if n not in self.cyc + [29, 31]: return
            if n in self.cyc: real = False
        self(f"s_mem{'real' if real else ''}time s[98:99]\ns_waitcnt lgkmcnt(0)\nv_writelane_b32 v2, s98, {n}")
    def bar(self, k):
        if self.diag and 1 <= k <= 8:
            self(f"s_memrealtime s[{84+2*((k-1)&3)}:{85+2*((k-1)&3)}]" if (k - 1) // 4 == self.barset else "s_nop 0")
        self("s_barrier")
    barset = int(__import__('os').environ.get('BARSET', '0'))
    def barflush(self):
        if self.diag:
            self("s_waitcnt lgkmcnt(0)")
            for i in range(4): self(f"v_writelane_b32 v2, s{84+2*i}, {9+i}")
    def text(self):
        return "\n".join(self.lines) + "\n"

def vr(b, n=1):
    return f"v{b}" if n == 1 else f"v[{b}:{b+n-1}]"
def sr(b, n=1):
    return f"s{b}" if n == 1 else f"s[{b}:{b+n-1}]"

class Regs:
    def __init__(self, start, limit):
        self.p = start; self.limit = limit; self.hi = start
    def alloc(self, n=1, align=None):
        if align is None:
            align = 1 if n == 1 else 2
        self.p = (self.p + align - 1) // align * align
        b = self.p
        self.p += n
        assert self.p <= self.limit, f"register overflow {self.p} > {self.limit}"
        self.hi = max(self.hi, self.p)
        return b
    def mark(self): return self.p
    def release(self, m): self.p = m
```

```python
from asmlib import *
from layout import *
import math, struct, os
EXP = os.environ.get('EXP', '').split(',')

S_WAVE = 3
P_U, P_LA, P_AI, P_CR, P_CI, P_DT, P_D = 16, 18, 20, 22, 24, 26, 28
P_W, P_WO, P_G, P_OUT, P_DBG, P_WS = 32, 34, 36, 38, 40, 42
R_X, R_W, R_WS, R_A, R_B, R_C, R_D = 44, 48, 52, 56, 60, 64, 68
S_TAG = 30
S_SPIN = 31
S_DV = 70
S_FQ = 67
S_C2 = 68
S_CB = 71
WS = f"s[{R_WS}:{R_WS+3}]"
ST = " sc1"
LD = " sc1"

SLOT = 32768
KG_BASE = 4 * SLOT
KG_STRIDE = 4608
GT = KG_BASE + 6 * KG_STRIDE
CNT = 163328
C_RDY, C_1, C_2, C_Q, C_S, C_O, C_F, C_E, C_P = 0, 16, 32, 48, 64, 72, 76, 80, 96
C_FA = 68
C_TG = 224
C_Y, C_A, C_FREE, C_YR, C_KV = 136, 140, 144, 160, 192
VM_Y = 0
REG_B = 4 * BLK
CP = 4160
CH = 4 * CP + 512 + 4096
UOFF = 4 * CP
CA = 3 * SLOT
QST = REG_B
assert CA + 3 * CH <= CNT and CA + 2 * CH <= GT and QST + 9216 <= CA
NBAR1 = 9
C3MASK = int(os.environ.get('C3MASK', '0xbf40'), 0)
UK = int(os.environ.get('UK', '0'))
LEAD = 3 if 'lead3' in EXP else 2
SPIN_MAX = 1 << 20

def chan(a, d, scs):
    a(f"s_lshl_b32 s{d}, s{scs}, 8\ns_add_u32 s{d}, s{d}, s{S_CB}\ns_cmp_eq_u32 s{scs}, 2\ns_cselect_b32 s{d}, s{S_C2}, s{d}")

def area(a, d, scs):
    a(f"s_mul_i32 s{d}, s{scs}, {CH}\ns_add_u32 s{d}, s{d}, {CA}")

def srd(a, r, p, nbytes):
    a(f"s_mov_b32 s{r}, s{p}\ns_mov_b32 s{r+1}, s{p+1}\ns_mov_b32 s{r+2}, {nbytes}\ns_mov_b32 s{r+3}, 0x20000")

LOG2E = 1.4426950408889634
def f32r(x): return struct.unpack("<f", struct.pack("<f", x))[0]
L_HI = f32r(LOG2E); L_LO = f32r(LOG2E - L_HI)
I2PI = 1.0 / (2 * math.pi)
I_HI = f32r(I2PI); I_LO = f32r(I2PI - I_HI)
LN2 = math.log(2.0)

def lds_inc(a, va, vb, saddr=None, off=0, rtn=None):
    if saddr is None: a(f"v_mov_b32 v{va}, {CNT}")
    else: a(f"v_mov_b32 v{va}, s{saddr}")
    a(f"v_mov_b32 v{vb}, 1\ns_mov_b64 exec, 1")
    if rtn is None:
        a(f"ds_add_u32 v{va}, v{vb} offset:{off}\ns_mov_b64 exec, -1")
    else:
        a(f"ds_add_rtn_u32 v{vb}, v{va}, v{vb} offset:{off}\ns_mov_b64 exec, -1\ns_waitcnt lgkmcnt(0)\nv_readfirstlane_b32 s{rtn}, v{vb}")

def lds_spin(a, va, vb, target, stmp, saddr=None, off=0):
    L, Ld = a.label("lspin"), a.label("lsdone")
    if saddr is None: a(f"v_mov_b32 v{va}, {CNT}")
    else: a(f"v_mov_b32 v{va}, s{saddr}")
    a(f"""
    s_mov_b32 s{S_SPIN}, {SPIN_MAX}
    {L}:
    ds_read_b32 v{vb}, v{va} offset:{off}
    s_waitcnt lgkmcnt(0)
    v_readfirstlane_b32 s{stmp}, v{vb}
    s_cmp_ge_u32 s{stmp}, {target}
    s_cbranch_scc1 {Ld}
    s_sleep {os.environ.get('LSLEEP', '1')}
    s_sub_u32 s{S_SPIN}, s{S_SPIN}, 1
    s_cbranch_scc0 {L}
    {Ld}:
    """)

def flag_line(a, vt, va, soff):
    a(f"""
    v_mov_b32 v{vt}, s{S_TAG}
    v_lshlrev_b32 v{va}, 2, v1
    s_mov_b64 exec, {os.environ.get('FLEX', '0xffff')}
    buffer_store_dword v{vt}, v{va}, {WS}, s{soff} offen sc1
    s_mov_b64 exec, -1
    """)

def flag_store(a, vt, soff):
    a(f"""
    v_mov_b32 v{vt}, s{S_TAG}
    s_mov_b64 exec, 1
    buffer_store_dword v{vt}, off, {WS}, s{soff} sc1
    s_mov_b64 exec, -1
    """)

def poll_issue(a, vd, n, voff, off):
    w = {1: "dword", 4: "dwordx4"}[n]
    a(f"buffer_load_{w} {vr(vd,n)}, v{voff}, {WS}, 0 offen offset:{off & 4095} sc1" if off < 4096 else
      f"s_movk_i32 s{S_SPIN}, {off}\nbuffer_load_{w} {vr(vd,n)}, v{voff}, {WS}, s{S_SPIN} offen sc1")

def poll_wait(a, vd, n, voff, soff_or_imm, issued=False):
    L, Lc, Ld = a.label("poll"), a.label("pollchk"), a.label("polld")
    w = {1: "dword", 4: "dwordx4"}[n]
    a(f"s_mov_b32 s{S_SPIN}, {SPIN_MAX}")
    if issued: a(f"s_branch {Lc}")
    a(f"""
    {L}:
    buffer_load_{w} {vr(vd,n)}, v{voff}, {WS}, 0 offen offset:{soff_or_imm} sc1
    {Lc}:
    s_waitcnt vmcnt(0)
    """)
    if n == 4:
        a(f"""
        v_xor_b32 v{vd}, s{S_TAG}, v{vd}
        v_xor_b32 v{vd+1}, s{S_TAG}, v{vd+1}
        v_xor_b32 v{vd+2}, s{S_TAG}, v{vd+2}
        v_xor_b32 v{vd+3}, s{S_TAG}, v{vd+3}
        v_or3_b32 v{vd}, v{vd}, v{vd+1}, v{vd+2}
        v_or_b32 v{vd}, v{vd}, v{vd+3}
        v_cmp_ne_u32 vcc, 0, v{vd}
        """)
    else:
        a(f"v_cmp_ne_u32 vcc, s{S_TAG}, v{vd}")
    a(f"""
    s_cbranch_vccz {Ld}
    s_sleep {os.environ.get('PSLEEP', '6')}
    s_sub_u32 s{S_SPIN}, s{S_SPIN}, 1
    s_cbranch_scc0 {L}
    {Ld}:
    """)

class Lgkm:
    def __init__(self, a): self.a = a; self.q = []; self.done = 0
    def load(self, txt, regs=()):
        self.a(txt); self.q.append(set(regs))
    def need(self, regs):
        regs = set(regs); last = -1
        for i, s in enumerate(self.q):
            if s & regs: last = i
        if last >= self.done:
            n = min(len(self.q) - 1 - last, 15)
            self.a(f"s_waitcnt lgkmcnt({n})")
            self.done = len(self.q) - n

def rng(b, n): return range(b, b + n)

sRB, sCT, sJ0 = 4, 5, 11

KG_T = [120, 121, 122, 123, 124, 125]
KG_C = 126
sKU, sKC = 65, 66
YB, YS = 32768, 32 * 272

def head(a, name, endlabel, Lkg, Lg):
    Lnp, Lnk = a.label("nopf"), a.label("nokg")
    t = KG_T
    a(f"""
    s_cmp_ge_u32 s2, 256
    s_cbranch_scc1 {endlabel}
    s_load_dwordx16 s[16:31], s[0:1], 0
    s_load_dwordx8 s[32:39], s[0:1], 64
    s_load_dwordx4 s[40:43], s[0:1], 96
    v_lshrrev_b32 v3, 6, v0
    v_and_b32 v1, 63, v0
    v_readfirstlane_b32 s{S_WAVE}, v3
    s_getpc_b64 s[8:9]
    L_pc:
    s_lshr_b32 s7, s2, 3
    s_and_b32 s{S_CB}, s2, 0xc0
    s_and_b32 s6, s7, 7
    s_or_b32 s{S_CB}, s{S_CB}, s6
    s_and_b32 s6, s2, 7
    s_lshl3_add_u32 s{S_CB}, s6, s{S_CB}
    s_lshr_b32 s{sRB}, s6, 1
    s_and_b32 s10, s7, 3
    s_lshl2_add_u32 s{sRB}, s{sRB}, s10
    s_and_b32 s{sCT}, s6, 1
    s_lshr_b32 s12, s7, 2
    s_lshl3_add_u32 s{sCT}, s{sCT}, s12
    """)
    if C3MASK:
        a(f"""
        s_bfm_b32 s13, s{sCT}, 0
        s_and_b32 s13, s13, {C3MASK}
        s_bcnt1_i32_b32 s13, s13
        s_and_b32 s{S_C2}, s6, 6
        s_lshl3_add_u32 s{S_C2}, s13, s{S_C2}
        s_and_b32 s13, s7, 1
        s_add_u32 s{S_C2}, s{S_C2}, s13
        s_addk_i32 s{S_C2}, 512
        s_bitcmp1_b32 {C3MASK}, s{sCT}
        s_cselect_b32 s{S_C2}, s{S_C2}, 576
        s_bitcmp1_b32 s2, 4
        s_cselect_b32 s{S_C2}, s{S_C2}, 576
        """)
    else:
        a(f"""
    s_mul_i32 s{S_C2}, s{sCT}, 43
    s_lshr_b32 s{S_C2}, s{S_C2}, 7
    s_lshl4_add_u32 s{S_C2}, s{S_C2}, s{sRB}
    s_addk_i32 s{S_C2}, 480
    s_bitcmp1_b32 {0x10000 if 'no3' in EXP else 0x9240}, s{sCT}
    s_cselect_b32 s{S_C2}, s{S_C2}, 576
        """)
    a(f"""
    s_cmp_lg_u32 s{S_WAVE}, 0
    s_cbranch_scc1 {Lnp}
    s_and_b32 s6, s7, 3
    s_lshl_b32 s6, s6, 13
    v_lshl_add_u32 v3, v1, 7, s6
    v_min_u32 v3, {endlabel}-L_pc, v3
    global_load_dword v3, v3, s[8:9]
    v_lshlrev_b32 v4, 2, v1
    v_add_u32 v4, {CNT}, v4
    v_mov_b32 v5, 0
    ds_write_b32 v4, v5
    {Lnp}:
    s_movk_i32 s{sKC}, 576
    s_mov_b32 s6, 0xcf3f
    s_bitcmp0_b32 s6, s{S_WAVE}
    s_cbranch_scc1 {Lnk}
    s_and_b32 s{sKU}, s{S_WAVE}, 7
    s_sub_u32 s6, s{sKU}, 2
    s_cmp_ge_u32 s{sKU}, 6
    s_cselect_b32 s{sKU}, s6, s{sKU}
    s_lshr_b32 s{sKC}, s{sKU}, 1
    s_lshl_b32 s{sKC}, s{sKC}, 8
    s_add_u32 s{sKC}, s{sKC}, s{S_CB}
    s_cmp_ge_u32 s{sKU}, 4
    s_cselect_b32 s{sKC}, s{S_C2}, s{sKC}
    s_min_u32 s6, s{sKC}, 575
    s_lshl_b32 s6, s6, 1
    v_mov_b32 v{t[4]}, s6
    s_and_b32 s13, s{sKU}, 1
    s_add_u32 s6, s6, s13
    s_lshl_b32 s6, s6, 7
    v_lshl_add_u32 v{t[0]}, v1, 1, s6
    s_waitcnt lgkmcnt(0)
    global_load_ushort v{t[3]}, v{t[4]}, s[{P_DT}:{P_DT+1}]
    global_load_ushort v{t[1]}, v{t[0]}, s[{P_LA}:{P_LA+1}]
    global_load_ushort v{t[2]}, v{t[0]}, s[{P_AI}:{P_AI+1}]
    s_cmp_ge_u32 s{S_WAVE}, 8
    s_cbranch_scc1 {Lnk}
    global_load_ushort v{KG_C}, v{t[0]}, s[{P_CR}:{P_CR+1}]
    global_load_ushort v{KG_C+1}, v{t[0]}, s[{P_CI}:{P_CI+1}]
    s_mov_b32 s5, s13
    s_barrier
    s_branch {Lkg}
    {Lnk}:
    s_lshl1_add_u32 s{sJ0}, s10, s12
    s_sub_u32 s8, s{sJ0}, 9
    s_cmp_ge_u32 s{sJ0}, 9
    s_cselect_b32 s{sJ0}, s8, s{sJ0}
    s_cmp_lt_u32 s{S_WAVE}, 8
    s_cbranch_scc1 L_ld
    s_lshl_b32 s8, s{sCT}, 4
    s_add_u32 s8, s8, s{S_WAVE}
    s_cmp_eq_u32 s8, 13
    s_cbranch_scc1 L_gate_dma
    s_barrier
    s_branch {Lg}
    L_ld:
    """)

def fetch_tag(a, v):
    a(f"""
    s_load_dword s60, s[{P_WS}:{P_WS+1}], {FL_OFF}
    s_lshr_b32 s69, s{S_CB}, 1
    s_lshl_b32 s69, s69, 2
    s_load_dword s61, s[{P_D}:{P_D+1}], s69
    s_add_u32 s69, s69, 512
    s_load_dword s62, s[{P_D}:{P_D+1}], s69
    s_min_u32 s69, s{S_C2}, 575
    s_lshr_b32 s69, s69, 1
    s_lshl_b32 s69, s69, 2
    s_load_dword s63, s[{P_D}:{P_D+1}], s69
    v_mov_b32 v{v+4}, {CNT}
    s_waitcnt lgkmcnt(0)
    s_mul_i32 s60, s60, 0x9e3779b1
    s_add_u32 s60, s60, 0x7f4a7c15
    v_mov_b32 v{v}, s60
    v_mov_b32 v{v+1}, s61
    v_mov_b32 v{v+2}, s62
    v_mov_b32 v{v+3}, s63
    ds_write_b128 v{v+4}, {vr(v,4)} offset:{C_TG}
    s_waitcnt lgkmcnt(0)
    """)

def get_tag(a, va, vb):
    a(f"""
    s_and_b32 s69, s{S_WAVE}, 12
    s_add_u32 s69, s69, {CNT}
    v_mov_b32 v{va}, {CNT}
    v_mov_b32 v{vb}, s69
    ds_read_b32 v{va}, v{va} offset:{C_TG}
    ds_read_b32 v{vb}, v{vb} offset:{C_TG+4}
    s_waitcnt lgkmcnt(0)
    v_readfirstlane_b32 s{S_TAG}, v{va}
    v_readfirstlane_b32 s{S_DV}, v{vb}
    s_nop 1
    """)

def loader(a):
    sJ, sT, sCm, sAs, sLb, sInc, sXr = 6, 7, 8, 9, 10, 14, 15
    V = [4, 5, 6, 7]; t0, t1, t2, t3 = 8, 9, 10, 11
    Lx, Lc, Lsub, Lover, Lw, Lend = [a.label(x) for x in ("ldx", "ldc", "issue", "over", "ldw", "ldend")]
    a(f"""
    v_lshrrev_b32 v{t2}, 4, v1
    s_setprio 3
    s_mov_b32 s{R_X+3}, 0x20000
    s_mov_b32 s{sJ}, s{sJ0}
    s_cmp_eq_u32 s{S_WAVE}, 6
    s_cbranch_scc1 {Lx}
    v_and_b32 v{t0}, 15, v1
    v_lshlrev_b32 v{t1}, 2, v{t2}
    v_xor_b32 v{t0}, v{t0}, v{t1}
    v_lshrrev_b32 v{t1}, 2, v{t0}
    v_and_b32 v{t0}, 3, v{t0}
    v_cmp_eq_u32 vcc, 3, v{t1}
    v_mul_u32_u24 v{t1}, 9, v{t1}
    v_lshrrev_b32 v{t3}, 1, v{t0}
    v_add_u32 v{t1}, v{t1}, v{t3}
    v_lshl_add_u32 v{t1}, v{t0}, 1, v{t1}
    v_min_u32 v{t0}, 2, v{t0}
    v_mad_u32_u24 v{t0}, v{t0}, 9, 4
    v_cndmask_b32 v{t1}, v{t1}, v{t0}, vcc
    v_mul_u32_u24 v{t2}, 432, v{t2}
    s_mul_i32 s{sT}, s{sCT}, 27
    v_add3_u32 v{t1}, v{t1}, v{t2}, s{sT}
    v_lshlrev_b32 v{V[0]}, 3, v{t1}
    s_mov_b32 s72, {0xffffffff ^ (1<<15) ^ (1<<27)}
    s_mov_b32 s73, {0xffffffff ^ (1<<7) ^ (1<<19)}
    s_mov_b32 s{sCm}, {64*3456}
    s_mov_b32 s{sAs}, 55296
    s_movk_i32 s{sLb}, 16384
    s_movk_i32 s{sInc}, 12800
    s_mov_b32 s{sXr}, 0
    s_mov_b32 s{R_X+2}, {W_BYTES}
    s_waitcnt lgkmcnt(0)
    s_mov_b64 s[{R_X}:{R_X+1}], s[{P_W}:{P_W+1}]
    s_branch {Lc}
    {Lx}:
    v_lshrrev_b32 v{t0}, 3, v1
    s_lshl_b32 s{sT}, s{sRB}, 7
    v_add_u32 v{t1}, s{sT}, v{t0}
    v_mul_u32_u24 v{t1}, 1152, v{t1}
    v_and_b32 v{t3}, 7, v1
    v_xor_b32 v{t3}, v{t3}, v{t2}
    v_lshl_add_u32 v{V[0]}, v{t3}, 4, v{t1}
    s_mov_b64 s[72:73], -1
    s_movk_i32 s{sCm}, 128
    s_mov_b32 s{sAs}, 36864
    s_mov_b32 s{sLb}, 0
    s_movk_i32 s{sInc}, 8192
    s_mov_b32 s{sXr}, 64
    s_mov_b32 s{R_X+2}, {X_BYTES}
    s_waitcnt lgkmcnt(0)
    s_mov_b64 s[{R_X}:{R_X+1}], s[{P_U}:{P_U+1}]
    {Lc}:
    v_xor_b32 v{V[1]}, s{sXr}, v{V[0]}
    v_add_u32 v{V[1]}, s{sInc}, v{V[1]}
    s_lshl_b32 s{sInc}, s{sInc}, 1
    v_add_u32 v{V[2]}, s{sInc}, v{V[0]}
    v_add_u32 v{V[3]}, s{sInc}, v{V[1]}
    """)
    def issue(it):
        a(f"s_add_u32 m0, s{sLb}, {((-it) & 3) * SLOT}\ns_call_b64 s[12:13], {Lsub}")
    a.stamp(22)
    a("s_barrier")
    issue(0)
    a.stamp(23)
    for it in range(1, LEAD): issue(it)
    a(f"s_branch {Lover}\n{Lsub}:")
    a(f"s_mul_i32 s{sT}, s{sJ}, s{sCm}\ns_mov_b64 exec, s[72:73]")
    THR = int(os.environ.get('THR', '20')); THR1 = int(os.environ.get('THR1', '0'))
    for g in range(4):
        if THR: a(f"s_waitcnt vmcnt({THR})")
        for b in range(4):
            if THR1: a(f"s_waitcnt vmcnt({THR1})")
            a(f"buffer_load_dwordx4 v{V[b]}, s[{R_X}:{R_X+3}], s{sT} offen offset:{1024*b} lds")
        if g < 3:
            a(f"s_add_u32 m0, m0, 4096\ns_add_u32 s{sT}, s{sT}, s{sAs}")
    a(f"""
    s_mov_b64 exec, -1
    s_add_u32 s{sJ}, s{sJ}, 1
    s_cmp_eq_u32 s{sJ}, 9
    s_cselect_b32 s{sJ}, 0, s{sJ}
    s_setpc_b64 s[12:13]
    {Lover}:
    """)
    a.stamp(1)
    srd(a, R_WS, P_WS, WS_BYTES)
    a(f"""
    v_lshlrev_b32 v{t2}, 4, v1
    v_lshrrev_b32 v16, 4, v1
    v_bfe_u32 v17, v1, 2, 2
    v_lshl_add_u32 v18, v16, 3, v17
    v_bfe_u32 v19, v18, 1, 3
    v_bfe_u32 v17, v1, 1, 1
    v_xor_b32 v19, v19, v17
    v_lshlrev_b32 v19, 4, v19
    v_lshl_add_u32 v19, v18, 7, v19
    v_and_b32 v17, 1, v1
    v_lshl_add_u32 v19, v17, 3, v19
    s_and_b32 s74, s{sCT}, 8
    s_lshl_b32 s75, s74, 3
    v_xor_b32 v20, s75, v19
    v_xor_b32 v21, 32, v20
    v_and_b32 v17, 15, v1
    v_lshlrev_b32 v17, 6, v17
    v_lshl_add_u32 v17, v16, 4, v17
    s_lshl_b32 s74, s74, 10
    s_mul_i32 s75, s{sRB}, {36*4096}
    s_add_u32 s74, s74, s75
    s_add_u32 s74, s74, {UT_OFF}
    v_add_u32 v22, s74, v17
    """)
    def ut_task(it):
        skip = a.label("utskip")
        a(f"s_mov_b32 s78, 0\ns_cmp_lg_u32 s{S_WAVE}, 6\ns_cbranch_scc1 {skip}")
        if it == 1:
            a(f"s_and_b32 s74, s{sCT}, 7\ns_cmp_lg_u32 s74, 7\ns_cbranch_scc1 {skip}")
            a(f"s_add_u32 s74, s{sJ0}, 1\ns_cmp_eq_u32 s74, 9\ns_cselect_b32 s74, 0, s74\ns_lshl_b32 s74, s74, 14\nv_add_u32 v20, {3*SLOT}, v20\nv_add_u32 v21, {3*SLOT}, v21")
        else:
            a(f"s_lshl_b32 s74, s{sJ0}, 14")
        for m in range(2):
            for i in range(4):
                d = 24 + 32 * it + 16 * m + 4 * i
                a(f"ds_read_b64_tr_b16 {vr(d,2)}, v{20+m} offset:{4096*i}")
                a(f"ds_read_b64_tr_b16 {vr(d+2,2)}, v{21-m} offset:{4096*i + 512}")
            a("s_waitcnt lgkmcnt(0)")
            for i in range(4):
                d = 24 + 32 * it + 16 * m + 4 * i
                a(f"buffer_store_dwordx4 {vr(d,4)}, v22, {WS}, s74 offen offset:{1024*i}{ST}")
            if m == 0: a("s_add_u32 s74, s74, 4096\ns_mov_b32 s78, 1")
        a(f"{skip}:")
    assert LEAD == 2
    for k in range(9):
        left = min(LEAD - 1, 8 - k)
        if k in (UK + 1, UK + 2):
            L = a.label("w24")
            a(f"s_waitcnt vmcnt(24)\ns_cmp_eq_u32 s78, 1\ns_cbranch_scc1 {L}\ns_waitcnt vmcnt(16)\n{L}:")
        else:
            a(f"s_waitcnt vmcnt({16 * left})")
        if 'ldst' in EXP: a.stamp([24, 9, 10, 11, 12, 13, 26, 27, 28][k])
        if k == 0: a.stamp(40)
        a("s_barrier")
        n = k + LEAD
        if n <= 8: issue(n)
        if k == 7: get_tag(a, t0, t1)
        if k in (UK, UK + 1):
            if 'nout' in EXP: a('s_mov_b32 s78, 0')
            else: ut_task(k - UK)
    a.stamp(2)

def wt_load(a, sF, sT, sD2, s8, s9, s10, t0, t1, t2, WL):
    skip = a.label("nowt")
    srd(a, R_A, P_WO, WO_BYTES)
    a(f"""
    s_cmp_ge_u32 s{sF}, 648
    s_cbranch_scc1 {skip}
    v_lshrrev_b32 v{t0}, 4, v1
    v_lshrrev_b32 v{t1}, 1, v{t0}
    v_mul_u32_u24 v{t1}, 20, v{t1}
    v_and_b32 v{t2}, 1, v{t0}
    v_lshl_add_u32 v{t1}, v{t2}, 3, v{t1}
    v_mad_u32_u24 v{t2}, v{t0}, 36, 8
    v_lshlrev_b32 v{t2}, 1, v{t2}
    s_mul_i32 s{s8}, s{sF}, 3641
    s_lshr_b32 s{s8}, s{s8}, 16
    s_mul_i32 s{s9}, s{s8}, 18
    s_sub_u32 s{s9}, s{sF}, s{s9}
    s_mul_i32 s{sT}, s{s9}, {36*1152}
    s_sub_u32 s{s10}, s{s9}, 16
    s_mul_i32 s{s10}, s{s10}, {288*1152}
    s_movk_i32 s{sD2}, {4*1152}
    s_cmp_ge_u32 s{s9}, 16
    s_cselect_b32 s{sT}, s{s10}, s{sT}
    s_cselect_b32 s{sD2}, {36*1152}, s{sD2}
    s_cselect_b64 vcc, -1, 0
    v_cndmask_b32 v{t1}, v{t1}, v{t2}, vcc
    v_mul_u32_u24 v{t1}, 1152, v{t1}
    v_and_b32 v{t2}, 15, v1
    v_lshl_add_u32 v{t1}, v{t2}, 1, v{t1}
    s_lshl_b32 s{s8}, s{s8}, 5
    s_add_u32 s{sT}, s{sT}, s{s8}
    s_add_u32 s{sD2}, s{sD2}, s{sT}
    """)
    for e in range(8):
        a(f"buffer_load_ushort v{WL+e}, v{t1}, s[{R_A}:{R_A+3}], s{sT if e < 4 else sD2} offen offset:{(e&3)*1152}")
    a(f"{skip}:")

def wt_store(a, sF, WL, vL16):
    skip = a.label("wtskip")
    a(f"s_cmp_ge_u32 s{sF}, 648\ns_cbranch_scc1 {skip}")
    for e in range(4):
        a(f"v_lshl_or_b32 v{WL+e}, v{WL+2*e+1}, 16, v{WL+2*e}")
    a(f"""
    s_lshl_b32 s{sF}, s{sF}, 10
    s_add_u32 s{sF}, s{sF}, {WT_OFF}
    buffer_store_dwordx4 {vr(WL,4)}, v{vL16}, {WS}, s{sF} offen{ST}
    {skip}:
    """)

def gemm_waves(a):
    sT, sU, sTP = 7, 12, 13
    R = Regs(4, 120)
    t0, t1, t2, t3 = [R.alloc() for _ in range(4)]
    vXa = [[R.alloc() for _ in range(4)]]
    vWa = [R.alloc()]
    vFr = R.alloc()
    vL16 = R.alloc()
    NB = 2
    FX = [[R.alloc(4, 4), R.alloc(4, 4)] for _ in range(NB)]
    FW = [R.alloc(4, 4) for _ in range(NB)]
    ACC = [R.alloc(16, 4), R.alloc(16, 4)]
    STG = FX[0][0]
    WL = R.alloc()
    vGa = [R.alloc()]
    Lnw, Lng = a.label("nowt"), a.label("nogate")
    vCn, vOne, CV = R.alloc(), R.alloc(), R.alloc(2, 2)
    vSt = R.alloc()
    if 'yfirst' in EXP: kgen_y(a, FX[0][0]); a.stamp(23)
    a(f"""
    v_mov_b32 v{vCn}, {CNT}
    v_mov_b32 v{vOne}, 1
    s_and_b32 s{sU}, s{S_WAVE}, 3
    s_bfe_u32 s{sTP}, s{S_WAVE}, 0x10002
    v_lshlrev_b32 v{vL16}, 4, v1
    s_waitcnt lgkmcnt(0)
    """)
    a(f"s_lshl_b32 s83, s{sCT}, 4\ns_add_u32 s83, s83, s{sU}")
    Lnt, Lnu = a.label("notouch"), a.label("notlb")
    a(f"""
    s_cmp_lg_u32 s{S_WAVE}, 12
    s_cbranch_scc1 {Lnt}
    s_and_b32 s8, s{sCT}, 7
    s_add_u32 s8, s8, 8
    s_sub_u32 s9, s8, 9
    s_cmp_ge_u32 s8, 9
    s_cselect_b32 s8, s9, s8
    s_lshl_b32 s8, s8, 2
    s_and_b32 s9, s{sRB}, 3
    s_add_u32 s8, s8, s9
    s_mul_i32 s8, s8, {16*3456}
    s_mul_i32 s9, s{sCT}, 216
    s_add_u32 s8, s8, s9
    v_lshrrev_b32 v{t0}, 2, v1
    v_mul_u32_u24 v{t0}, 3456, v{t0}
    v_and_b32 v{t1}, 3, v1
    v_mul_u32_u24 v{t1}, 68, v{t1}
    v_add3_u32 v{t0}, v{t0}, v{t1}, s8
    global_load_dword v{WL}, v{t0}, s[{P_W}:{P_W+1}]
    """)
    fetch_tag(a, FX[0][0])
    a(f"{Lnt}:")
    a(f"""    v_and_b32 v{t0}, 31, v1
    v_lshrrev_b32 v{t1}, 5, v1
    v_bfe_u32 v{t2}, v1, 1, 3
    v_xor_b32 v{t2}, v{t2}, v{t1}
    v_lshlrev_b32 v{t2}, 4, v{t2}
    v_lshl_add_u32 v{t2}, v{t0}, 7, v{t2}
    s_lshl_b32 s{sT}, s{sTP}, 13
    v_add_u32 v{vXa[0][0]}, s{sT}, v{t2}
    """)
    for ks in range(1, 4):
        a(f"v_xor_b32 v{vXa[0][ks]}, {32*ks}, v{vXa[0][0]}")
    a(f"""
    v_bfe_u32 v{t0}, v1, 2, 2
    v_lshl_add_u32 v{t2}, v{t1}, 3, v{t0}
    v_lshlrev_b32 v{t2}, 8, v{t2}
    v_xor_b32 v{t0}, s{sU}, v{t0}
    v_lshl_add_u32 v{t2}, v{t0}, 6, v{t2}
    v_and_b32 v{t0}, 1, v1
    v_lshlrev_b32 v{t0}, 4, v{t0}
    v_and_b32 v{t3}, 2, v1
    v_lshl_add_u32 v{t0}, v{t3}, 2, v{t0}
    v_and_b32 v{t3}, 16, v1
    v_lshl_add_u32 v{t0}, v{t3}, 1, v{t0}
    v_lshlrev_b32 v{vWa[0]}, {28 if 'nooob' in EXP else 14}, v{t3}
    v_and_b32 v{t3}, 3, v1
    v_lshl_add_u32 v{t3}, v{t3}, 4, v{vWa[0]}
    s_cmp_eq_u32 s{sU}, 3
    s_cselect_b64 vcc, -1, 0
    v_cndmask_b32 v{t0}, v{t0}, v{t3}, vcc
    v_add_u32 v{vWa[0]}, v{t2}, v{t0}
    """)
    vVm, vQx, vKx, vVx = R.alloc(), R.alloc(), R.alloc(), R.alloc()
    sTile, sP, sTy, sHd, sO, sSc, sB = 10, 15, 74, 75, 76, 77, 78
    def epi_setup():
        a(f"""
        v_and_b32 v{t0}, 31, v1
        v_lshrrev_b32 v{t3}, 5, v1
        v_lshlrev_b32 v{vVm}, 5, v{t0}
        v_lshl_add_u32 v{vVm}, v{t3}, 4, v{vVm}
        v_and_b32 v{t1}, 4, v1
        v_xor_b32 v{t1}, 4, v{t1}
        v_lshlrev_b32 v{t1}, 5, v{t1}
        v_and_b32 v{t2}, 24, v1
        v_lshl_add_u32 v{t1}, v{t2}, 2, v{t1}
        v_and_b32 v{t2}, 3, v1
        v_lshl_add_u32 v{vVx}, v{t2}, 3, v{t1}
        v_lshlrev_b32 v{vQx}, 2, v{t0}
        v_lshlrev_b32 v{vKx}, 3, v{t0}
        s_lshl_b32 s{sTile}, s{sRB}, 1
        s_add_u32 s{sTile}, s{sTile}, s{sTP}
        s_lshl_b32 s{sTile}, s{sTile}, 1
        """)
        a(f"""
        s_mul_i32 s{sP}, s{sCT}, 3
        s_add_u32 s{sP}, s{sP}, s{sU}
        s_lshr_b32 s{sTy}, s{sP}, 4
        s_and_b32 s{sHd}, s{sP}, 15
        s_lshl_b32 s{sHd}, s{sHd}, 1
        s_cmp_eq_u32 s{sTy}, 0
        s_cselect_b32 s{sSc}, {fbits(QSCALE)}, 1.0
        s_lshr_b32 s79, s{sTile}, 3
        s_mul_i32 s79, s79, {BLK}
        s_mul_i32 s80, s{sHd}, {8*BLK}
        s_add_u32 s79, s79, s80
        s_add_u32 s79, s79, {KV_OFF}
        s_and_b32 s80, s{sTile}, 7
        s_lshl_b32 s81, s80, 10
        s_add_u32 s81, s81, s79
        s_mul_i32 s80, s80, 1280
        s_add_u32 s80, s80, s79
        s_add_u32 s80, s80, {V_OFF}
        s_lshl_b32 s79, s{sHd}, 6
        s_add_u32 s79, s79, s{sTile}
        s_lshl_b32 s79, s79, 10
        s_add_u32 s79, s79, {QF_OFF}
        s_mov_b32 s{sB}, {8*BLK}
        s_cmp_eq_u32 s{sTy}, 0
        s_cselect_b32 s{sO}, s79, s81
        s_cselect_b32 s{sB}, 0x10000, s{sB}
        s_movk_i32 s82, 1024
        s_cmp_eq_u32 s{sTy}, 2
        s_cselect_b32 s{sO}, s80, s{sO}
        s_cselect_b32 s82, 1280, s82
        s_cselect_b64 vcc, -1, 0
        v_cndmask_b32 v{vSt}, v{vL16}, v{vVm}, vcc
        s_mul_i32 s9, s{sCT}, {96 if 'fp' in EXP else 16}
        s_add_u32 s9, s9, s{sRB}
        s_lshl_b32 s9, s9, 7
        s_add_u32 s9, s9, {FL_P if 'fp' in EXP else FL_Q}
        """)
    sN, sX, sG = 14, 8, 6
    slow = []
    epi_setup()
    XS = [(44, 45, 46), (47, 48, 49), (50, 51, 59)]
    def extras_setup():
        L = a.label("nx")
        a(f"s_cmp_lg_u32 s{sU}, 3\ns_cbranch_scc1 {L}")
        for p in range(3):
            sTp, sA, sBb = XS[p]
            a(f"""
            s_mul_i32 s{sP}, s{sCT}, 3
            s_add_u32 s{sP}, s{sP}, {p}
            s_lshr_b32 s{sTp}, s{sP}, 4
            s_and_b32 s{sHd}, s{sP}, 15
            s_lshl_b32 s{sHd}, s{sHd}, 1
            s_lshr_b32 s79, s{sTile}, 3
            s_mul_i32 s79, s79, {BLK}
            s_mul_i32 s80, s{sHd}, {8*BLK}
            s_add_u32 s79, s79, s80
            s_and_b32 s80, s{sTile}, 6
            s_lshl_b32 s80, s80, 7
            s_add_u32 s80, s80, {KV_OFF+KX_OFF}
            s_and_b32 s81, s{sTile}, 7
            s_mul_i32 s81, s81, 1280
            s_add_u32 s81, s81, {KV_OFF+V_OFF+1024}
            s_cmp_eq_u32 s{sTp}, 1
            s_cselect_b32 s80, s80, s81
            s_add_u32 s79, s79, s80
            s_lshl_b32 s80, s{sHd}, 6
            s_add_u32 s80, s80, s{sTile}
            s_lshl_b32 s80, s80, 7
            s_add_u32 s80, s80, {QX_OFF}
            s_mov_b32 s81, {8*BLK}
            s_cmp_eq_u32 s{sTp}, 0
            s_cselect_b32 s{sA}, s80, s79
            s_cselect_b32 s81, 0x2000, s81
            s_add_u32 s{sBb}, s{sA}, s81
            """)
        a(f"{L}:")
    assert ACC[1] + 16 == FX[0][0] + 56
    srd(a, R_WS, P_WS, WS_BYTES)
    extras_setup()
    if 'yfirst' not in EXP: kgen_y(a, FX[0][0]); a.stamp(23)
    a('s_setprio 3')
    for tt in range(2):
        for i in range(16): a(f"v_mov_b32 v{ACC[tt]+i}, 0")
    a(f"""
    s_mov_b32 s{sN}, 1
    s_mov_b32 s{sX}, 0x18000
    s_mov_b32 s72, 0xffff0000
    s_mov_b32 s73, 0xffff0000
    v_lshrrev_b32 v{vFr}, 5, v1
    v_lshlrev_b32 v{vFr}, 4, v{vFr}
    v_add_u32 v{vFr}, {GT}, v{vFr}
    s_lshl_b32 s{sG}, s{sJ0}, 7
    v_add_u32 v{vGa[0]}, s{sG}, v{vFr}
    """)
    Lgate, Lj = a.label("gatel"), a.label("gj")
    def mainloop(gate):
        e = 1 if gate else 0
        Lloop = a.label("gloop")
        def Wrd(b, nk):
            a(f"ds_read_b64_tr_b16 {vr(FW[b],2)}, v{vWa[0]} offset:{16384+nk*4096}")
            a(f"ds_read_b64_tr_b16 {vr(FW[b]+2,2)}, v{vWa[0]} offset:{16384+nk*4096+1024}")
            if gate:
                a(f"s_mov_b64 exec, s[72:73]\nds_read_b128 {vr(FW[b],4)}, v{vGa[0]} offset:{32*nk}\ns_mov_b64 exec, -1")
        def step(ks, n, nk, mid=None):
            b = ks & 1
            a(f"s_waitcnt lgkmcnt({n})")
            a(f"v_mfma_f32_32x32x16_bf16 {vr(ACC[0],16)}, {vr(FW[b],4)}, {vr(FX[b][0],4)}, {vr(ACC[0],16)}")
            if mid: mid()
            if nk is not None: a(f"ds_read_b128 {vr(FX[b][0],4)}, v{vXa[0][nk]}")
            a(f"v_mfma_f32_32x32x16_bf16 {vr(ACC[1],16)}, {vr(FW[b],4)}, {vr(FX[b][1],4)}, {vr(ACC[1],16)}")
            if nk is not None:
                Wrd(b, nk)
                a(f"ds_read_b128 {vr(FX[b][1],4)}, v{vXa[0][nk]} offset:4096")
        a("s_barrier")
        a.stamp(1)
        for ks in range(2):
            Wrd(ks, ks)
            a(f"ds_read_b128 {vr(FX[ks][0],4)}, v{vXa[0][ks]}\nds_read_b128 {vr(FX[ks][1],4)}, v{vXa[0][ks]} offset:4096")
        a(f".p2align 3\n{Lloop}:")
        step(0, 4 + e, 2, mid=lambda: a(f"s_add_u32 s{sN}, s{sN}, 1\ns_add_u32 s{sG}, s{sG}, 128\ns_cmp_eq_u32 s{sG}, 1152\ns_cselect_b32 s{sG}, 0, s{sG}" if gate else f"s_add_u32 s{sN}, s{sN}, 1"))
        step(1, 4 + e, 3, mid=lambda: a(f"v_xor_b32 v{vXa[0][0]}, s{sX}, v{vXa[0][0]}\nv_xor_b32 v{vXa[0][1]}, s{sX}, v{vXa[0][1]}"))
        step(2, 4 + e, 0, mid=lambda: a(f"v_xor_b32 v{vWa[0]}, s{sX}, v{vWa[0]}\n" + (f"v_add_u32 v{vGa[0]}, s{sG}, v{vFr}\n" if gate else "") + "s_barrier"))
        step(3, 4 + e, 1, mid=lambda: a(f"v_xor_b32 v{vXa[0][2]}, s{sX}, v{vXa[0][2]}\nv_xor_b32 v{vXa[0][3]}, s{sX}, v{vXa[0][3]}"))
        a(f"s_xor_b32 s{sX}, s{sX}, 0x10000\ns_cmp_lt_u32 s{sN}, 9\ns_cbranch_scc1 {Lloop}")
        if 'early' in EXP:
            a(f"s_mov_b64 exec, 1\nds_add_u32 v{vCn}, v{vOne} offset:{C_FREE}\ns_mov_b64 exec, -1")
        step(0, 4 + e, 2); step(1, 4 + e, 3); step(2, 4 + e, None); step(3, 0, None)
    a(f"s_cmp_eq_u32 s83, 3\ns_cbranch_scc1 {Lgate}")
    mainloop(False)
    a(f"{Lj}:")
    a.stamp(3)
    def cold_gate():
        a(f"{Lgate}:")
        mainloop(True)
        a(f"s_branch {Lj}")
    Lx, Ldone, Lns = a.label("extras"), a.label("gdone"), a.label("noscale")
    a(f"s_setprio 3\ns_nop 6\ns_cmp_eq_u32 s{sU}, 3\ns_cbranch_scc1 {Lx}\ns_cmp_lg_u32 s{sTy}, 0\ns_cbranch_scc1 {Lns}")
    for tt in range(2):
        for i in range(16):
            a(f"v_mul_f32 v{ACC[tt]+i}, s{sSc}, v{ACC[tt]+i}")
    a(f"{Lns}:")
    for tt in range(2):
        for p in range(2):
            dst = FX[tt][p]
            for i in range(4):
                a(f"v_cvt_pk_bf16_f32 v{dst+i}, v{ACC[tt]+8*p+2*i}, v{ACC[tt]+8*p+2*i+1}")
            if p == 0:
                a(f"buffer_store_dwordx4 {vr(dst,4)}, v{vSt}, {WS}, s{sO} offen{ST}")
            else:
                a(f"s_add_u32 s79, s{sO}, s{sB}")
                a(f"buffer_store_dwordx4 {vr(dst,4)}, v{vSt}, {WS}, s79 offen{ST}")
        if tt == 0:
            a(f"s_add_u32 s{sO}, s{sO}, s82")
    a(f"s_branch {Ldone}")
    cold_gate()
    a(f"{Lx}:")
    a(f"v_mov_b32 v{STG+1}, 0x3f80\nv_mov_b32 v{STG+3}, 0x3f80")
    for p in range(3):
        half = p & 1
        rb = 4 * (p >> 1)
        sTp, sA, sBb = XS[p]
        LK, LV, LN = a.label("xk"), a.label("xv"), a.label("xn")
        a(f"""
        s_mov_b32 exec_lo, {0 if half else -1}
        s_mov_b32 exec_hi, {-1 if half else 0}
        s_cmp_eq_u32 s{sTp}, 1
        s_cbranch_scc1 {LK}
        s_cmp_eq_u32 s{sTp}, 2
        s_cbranch_scc1 {LV}
        """)
        for tt in range(2):
            for i in range(4):
                a(f"v_mul_f32 v{ACC[tt]+rb+i}, {fbits(QSCALE)}, v{ACC[tt]+rb+i}")
            a(f"v_cvt_pk_bf16_f32 v{STG+4+2*tt}, v{ACC[tt]+rb}, v{ACC[tt]+rb+1}")
            a(f"v_cvt_pk_bf16_f32 v{STG+5+2*tt}, v{ACC[tt]+rb+2}, v{ACC[tt]+rb+3}")
            a(f"buffer_store_dword v{STG+4+2*tt}, v{vQx}, {WS}, s{sA} offen offset:{128*tt}{ST}")
            a(f"buffer_store_dword v{STG+5+2*tt}, v{vQx}, {WS}, s{sBb} offen offset:{128*tt}{ST}")
        a(f"""
        s_branch {LN}
        {LK}:
        v_cvt_pk_bf16_f32 v{STG+4}, v{ACC[0]+rb}, v{ACC[0]+rb+1}
        v_cvt_pk_bf16_f32 v{STG+5}, v{ACC[1]+rb}, v{ACC[1]+rb+1}
        v_cvt_pk_bf16_f32 v{STG+6}, v{ACC[0]+rb+2}, v{ACC[0]+rb+3}
        v_cvt_pk_bf16_f32 v{STG+7}, v{ACC[1]+rb+2}, v{ACC[1]+rb+3}
        buffer_store_dwordx2 {vr(STG+4,2)}, v{vKx}, {WS}, s{sA} offen{ST}
        buffer_store_dwordx2 {vr(STG+6,2)}, v{vKx}, {WS}, s{sBb} offen{ST}
        s_branch {LN}
        {LV}:
        """)
        for tt in range(2):
            a(f"v_cvt_pk_bf16_f32 v{STG}, v{ACC[tt]+rb}, v{ACC[tt]+rb+1}")
            a(f"v_cvt_pk_bf16_f32 v{STG+2}, v{ACC[tt]+rb+2}, v{ACC[tt]+rb+3}")
            a(f"buffer_store_dwordx2 {vr(STG,2)}, v{vVx}, {WS}, s{sA} offen offset:{1280*tt}{ST}")
            a(f"buffer_store_dwordx2 {vr(STG+2,2)}, v{vVx}, {WS}, s{sBb} offen offset:{1280*tt}{ST}")
        a(f"{LN}:")
    Lnf = a.label("nofq")
    a(f"""
    s_cmp_lg_u32 s{sCT}, 0
    s_cbranch_scc1 {Ldone}
    s_lshl_b32 s79, s{sTile}, 7
    s_add_u32 s79, s79, {G_OFF}
    buffer_store_dword v{ACC[0]+8}, v{vQx}, {WS}, s79 offen{ST}
    buffer_store_dword v{ACC[1]+8}, v{vQx}, {WS}, s79 offen offset:128{ST}
    {Ldone}:
    s_mov_b64 exec, -1
    """)
    if 'early' not in EXP:
        a(f"s_mov_b64 exec, 1\nds_add_u32 v{vCn}, v{vOne} offset:{C_FREE}\ns_mov_b64 exec, -1")
    a.stamp(14)
    get_tag(a, t0, t1)
    a(f"s_mov_b32 s{S_FQ}, s9")
    publish_q(a, t0, t1, 8)
    a.stamp(4)

def publish_q(a, t0, t1, st):
    L = a.label("nofq")
    a("s_waitcnt vmcnt(0)")
    lds_inc(a, t0, t1, off=C_S, rtn=st)
    a(f"s_cmp_lg_u32 s{st}, 7\ns_cbranch_scc1 {L}")
    if 'fp' in EXP:
        a(f"""
        v_mov_b32 v{t0}, s{S_TAG}
        v_lshrrev_b32 v{t1}, 3, v1
        v_lshlrev_b32 v{t1}, 9, v{t1}
        v_and_or_b32 v{t1}, v1, 7, v{t1}
        v_lshlrev_b32 v{t1}, 2, v{t1}
        s_mov_b32 exec_hi, 0xffff
        buffer_store_dword v{t0}, v{t1}, {WS}, s{S_FQ} offen sc1
        s_mov_b64 exec, -1
        """)
    else: flag_line(a, t0, t1, S_FQ)
    a(f"{L}:")

class Seg:
    def __init__(self): self.items = []
    def __call__(self, s):
        for ln in s.split("\n"):
            ln = ln.strip()
            if not ln: continue
            op = ln.split()[0]
            if ln.startswith(";"): c = 0
            elif op in ("v_exp_f32", "v_sin_f32", "v_cos_f32", "v_rcp_f32"): c = 8
            elif op.startswith("v_mfma"): c = 40
            elif op.startswith("ds_"): c = 12
            elif op == "s_waitcnt": c = 60
            else: c = 4
            self.items.append((ln, c))
    nl = 0
    def label(self, base):
        Seg.nl += 1
        return f"L_sg{base}_{Seg.nl}"
    def must_barrier(self): self.items.append(("@BAR", 0))
    def nobar(self, on): self.items.append(("@NOBAR" if on else "@OKBAR", 0))
    def emit(self, a, nbar, after=lambda k: None):
        must = sum(1 for l, _ in self.items if l == "@BAR")
        total = sum(c for _, c in self.items)
        first = float(os.environ.get('KGFIRST', '0.9')) * total
        first = min(first, sum(c for _, c in self.items[:[l for l, _ in self.items].index('@BAR')]) + 1)
        per = (total - first) / (nbar - (1 if first else 0))
        used = 0; acc = per - first if first else 0; ok = True; must_left = must
        for ln, c in self.items:
            if ln == "@BAR":
                a("s_barrier"); after(used); used += 1; must_left -= 1; acc = 0; continue
            if ln.startswith("@STAMP"): a.stamp(int(ln[6:])); continue
            if ln == "@NOBAR": ok = False; continue
            if ln == "@OKBAR": ok = True; continue
            if ok and acc >= per and used + must_left < nbar - 1:
                a("s_barrier"); after(used); used += 1; acc = 0
            a(ln); acc += c
        while used < nbar:
            a("s_barrier"); after(used); used += 1
        return total

def ilv(*seqs):
    seqs = [[l.strip() for l in x.strip().split("\n") if l.strip()] for x in seqs]
    out = []
    for i in range(max(len(x) for x in seqs)):
        for x in seqs:
            if i < len(x): out.append(x[i])
    return "\n".join(out)

class KG:
    def __init__(self, g, sK, tmp, vA2, vBh, vBl):
        self.g = g; self.t = KG_T; self.tmp = tmp
        self.sL, self.sLlo, self.sI, self.sIlo, self.sLn2 = range(sK, sK + 5)
        self.vA2, self.vBh, self.vBl = vA2, vBh, vBl
    def consts(self):
        return f"""
        s_mov_b32 s{self.sL}, {fbits(L_HI)}
        s_mov_b32 s{self.sLlo}, {fbits(L_LO)}
        s_mov_b32 s{self.sI}, {fbits(I_HI)}
        s_mov_b32 s{self.sIlo}, {fbits(I_LO)}
        s_mov_b32 s{self.sLn2}, {fbits(LN2)}
        """
    def expbf(self, x, t1, t2):
        return f"""
        v_lshlrev_b32 v{x}, 16, v{x}
        v_mul_f32 v{t1}, s{self.sL}, v{x}
        v_fma_f32 v{t2}, v{x}, s{self.sL}, -v{t1}
        v_exp_f32 v{t1}, v{t1}
        v_fma_f32 v{t2}, v{x}, s{self.sLlo}, v{t2}
        v_mul_f32 v{t2}, s{self.sLn2}, v{t2}
        v_fma_f32 v{x}, v{t1}, v{t2}, v{t1}
        v_cvt_pk_bf16_f32 v{x}, v{x}, v{x}
        v_and_b32 v{x}, 0xffff0000, v{x}
        """
    def prep(self):
        t, m = self.t, self.tmp
        return ilv(self.expbf(t[3], m[0], m[1]), self.expbf(t[1], m[2], m[3])) + f"""
        v_lshlrev_b32 v{t[2]}, 16, v{t[2]}
        v_mul_f32 v{t[1]}, v{t[1]}, v{t[3]}
        v_mul_f32 v{t[2]}, v{t[2]}, v{t[3]}
        v_mul_f32 v{self.vA2}, s{self.sL}, -v{t[1]}
        v_mul_f32 v{self.vBh}, s{self.sI}, v{t[2]}
        v_fma_f32 v{self.vBl}, v{t[2]}, s{self.sI}, -v{self.vBh}
        v_fma_f32 v{self.vBl}, v{t[2]}, s{self.sIlo}, v{self.vBl}
        """
    def cexp(self, d, p, k):
        fp = fbits(float(p)); r, e = self.tmp[2*k], self.tmp[2*k+1]
        return f"""
        v_mul_f32 v{r}, {fp}, v{self.vBh}
        v_mul_f32 v{e}, {fp}, v{self.vA2}
        v_fract_f32 v{r}, v{r}
        v_exp_f32 v{e}, v{e}
        v_fmac_f32 v{r}, {fp}, v{self.vBl}
        v_cos_f32 v{d}, v{r}
        v_sin_f32 v{d+1}, v{r}
        v_mul_f32 v{d}, v{d}, v{e}
        v_mul_f32 v{d+1}, v{d+1}, v{e}
        """
    def cmul(self, d, x, y):
        return f"""
        v_mul_f32 v{d}, v{x+1}, v{y+1}
        v_mul_f32 v{d+1}, v{x+1}, v{y}
        v_fma_f32 v{d}, v{x}, v{y}, -v{d}
        v_fmac_f32 v{d+1}, v{x}, v{y+1}
        """
    def cvt(self, d, x, conj):
        return f"v_cvt_pk_f16_f32 v{d}, v{x}, {'-' if conj else ''}v{x+1}"
    def rows(self, specs, vWr):
        g = self.g
        for i in range(0, len(specs), 4):
            grp = specs[i:i+4]; tt = self.tmp[(i & 4):(i & 4) + 4]
            for k, (x, y) in enumerate(grp):
                if y is not None: g(f"v_pk_mul_f16 v{tt[k]}, v{x}, v{y} op_sel:[0,0] op_sel_hi:[0,1]")
            for k, (x, y) in enumerate(grp):
                if y is not None: g(f"v_pk_fma_f16 v{tt[k]}, v{x}, v{y}, v{tt[k]} op_sel:[1,1,0] op_sel_hi:[1,0,1] neg_lo:[1,0,0]")
            src = [tt[k] if y is not None else x for k, (x, y) in enumerate(grp)]
            for k in range(0, len(grp), 2):
                if k + 1 < len(grp): g(f"ds_write2_b32 v{vWr[i>>2]}, v{src[k]}, v{src[k+1]} offset0:{68*k} offset1:{68*k+68}")
                else: g(f"ds_write_b32 v{vWr[i>>2]}, v{src[k]} offset:{272*k}")

def kgen_y(a, base):
    R = Regs(base, base + 56)
    tmp = [R.alloc() for _ in range(8)]
    vWr = [R.alloc() for _ in range(8)]
    vA2, vBh, vBl = R.alloc(), R.alloc(), R.alloc()
    H = [R.alloc() for _ in range(11)]
    A1, A2, A3, B1, B2, B3, B4, B5, B6, B7 = [R.alloc(2) for _ in range(10)]
    k = KG(a, 60, tmp, vA2, vBh, vBl)
    L = a.label("noy")
    a('s_setprio 1')
    a(f"s_cmp_ge_u32 s{sKC}, {0 if 'nokg' in EXP or 'nopre' in EXP else 576}\ns_cbranch_scc1 {L}")
    a(f"s_mul_i32 s67, s{sKU}, {YS}\ns_add_u32 s67, s67, {YB}\nv_lshl_add_u32 v{vWr[0]}, v1, 2, s67")
    for i in range(1, 8): a(f"v_add_u32 v{vWr[i]}, {i*4*272}, v{vWr[0]}")
    hA = H[0:4]; hB = [None] + H[4:11]
    a(f"v_mov_b32 v{hA[0]}, 0x3c00\ns_lshl_b32 s67, s{sKU}, 2\ns_add_u32 s67, s67, {CNT}")
    a(k.consts())
    a("s_waitcnt vmcnt(0)")
    a(k.prep())
    a(ilv(k.cexp(A1, 8, 0), k.cexp(B2, 64, 1)))
    a(ilv(k.cmul(A2, A1, A1), k.cmul(B4, B2, B2)))
    a(ilv(k.cmul(B1, A2, A2), k.cmul(A3, A1, A2), k.cmul(B6, B4, B2)))
    a(ilv(k.cmul(B3, B1, B2), k.cmul(B5, B4, B1), k.cmul(B7, B6, B1)))
    for d, x in zip(hA[1:] + hB[1:], (A1, A2, A3, B1, B2, B3, B4, B5, B6, B7)): a(k.cvt(d, x, True))
    def yspec(j):
        x, y = j & 3, j >> 2
        if y == 0: return (hA[x], None)
        if x == 0: return (hB[y], None)
        return (hA[x], hB[y])
    k.rows([yspec(j) for j in range(32)], vWr)
    lds_inc(a, tmp[0], tmp[1], saddr=67, off=C_YR)
    a(f"{L}:")

def kgen_waves(a):
    sMH, sBase, sT, sE, sCS = 5, 6, 7, 8, 14
    R = Regs(4, 120)
    t = KG_T; C = KG_C
    vWr = [R.alloc() for _ in range(4)]
    vRd, vRy = R.alloc(), R.alloc()
    vA2, vBh, vBl, vF = R.alloc(), R.alloc(), R.alloc(), R.alloc()
    vInv, vInvM, vBaseM, vPw = R.alloc(), R.alloc(), R.alloc(), R.alloc()
    FY = R.alloc(32, 4); FXr = R.alloc(32, 4)
    pool = R.alloc(36, 4)
    tmp = [FY + i for i in range(8)]
    g = Seg()
    k = KG(g, 9, tmp, vA2, vBh, vBl)
    Lskip, Lend = a.label("kgskip"), a.label("kgend")
    a(f"""
    s_cmp_ge_u32 s{sKC}, {0 if 'nokg' in EXP else 576}
    s_cbranch_scc1 {Lskip}
    s_lshr_b32 s{sCS}, s{S_WAVE}, 1
    s_mul_i32 s{sBase}, s{S_WAVE}, {KG_STRIDE}
    s_add_u32 s{sBase}, s{sBase}, {KG_BASE}
    """ + k.consts() + f"""
    v_lshl_add_u32 v{vWr[0]}, v1, 2, s{sBase}
    v_add_u32 v{vWr[1]}, {4*272}, v{vWr[0]}
    v_add_u32 v{vWr[2]}, {8*272}, v{vWr[0]}
    v_add_u32 v{vWr[3]}, {12*272}, v{vWr[0]}
    v_lshrrev_b32 v{t[5]}, 5, v1
    v_lshlrev_b32 v{t[5]}, 4, v{t[5]}
    v_and_b32 v{t[4]}, 15, v1
    v_mul_u32_u24 v{t[4]}, 272, v{t[4]}
    v_add3_u32 v{vRd}, v{t[4]}, v{t[5]}, s{sBase}
    v_and_b32 v{t[4]}, 31, v1
    v_mul_u32_u24 v{t[4]}, 272, v{t[4]}
    s_mul_i32 s{sT}, s{S_WAVE}, {YS}
    s_add_u32 s{sT}, s{sT}, {YB}
    v_add3_u32 v{vRy}, v{t[4]}, v{t[5]}, s{sT}
    v_lshl_add_u32 v{vPw}, v1, 2, s{sT}
    s_lshl_b32 s15, s{S_WAVE}, 2
    s_add_u32 s15, s15, {CNT}
    """)
    g("s_waitcnt vmcnt(0)")
    g.items.append(("@STAMP22", 0))
    P = [pool + 2 * i for i in range(12)]
    H = [pool + 24 + i for i in range(12)]
    E1, E2, E4, E256, E512, E1024, X2, X4, X6, E768, X1024 = P[0:11]
    hC, h2, h4, h6, hE1, h256, h512, h768, h1024, hX = H[0:10]
    dpp = [f"v_max_u32_dpp v{t[4]}, v{t[4]}, v{t[4]} {m}" for m in ("row_shr:1", "row_shr:2", "row_shr:4", "row_shr:8", "row_bcast:15 row_mask:0xa", "row_bcast:31 row_mask:0xc")]
    g(f"v_lshlrev_b32 v{C}, 16, v{C}\nv_lshlrev_b32 v{C+1}, 16, v{C+1}\nv_max_f32 v{t[4]}, |v{C}|, |v{C+1}|")
    pl = [l.strip() for l in k.prep().split("\n") if l.strip()]
    for i, l in enumerate(pl):
        g(l)
        if i % 3 == 2 and dpp: g(dpp.pop(0))
    assert not dpp
    g(f"v_readlane_b32 s{sE}, v{t[4]}, 63")
    g(ilv(k.cexp(E1, 1, 0), k.cexp(E256, 256, 1), k.cexp(E1024, 1024, 2)))
    g(f"""
    s_lshr_b32 s{sE}, s{sE}, 23
    s_max_u32 s{sE}, s{sE}, 1
    s_min_u32 s{sE}, s{sE}, 252
    s_sub_u32 s{sT}, 253, s{sE}
    s_lshl_b32 s{sT}, s{sT}, 23
    v_mul_f32 v{C}, s{sT}, v{C}
    v_mul_f32 v{C+1}, s{sT}, v{C+1}
    s_add_u32 s{sE}, s{sE}, 2
    s_lshl_b32 s{sE}, s{sE}, 23
    v_mul_f32 v{vF}, s{sE}, v{t[3]}
    """)
    g(ilv(k.cmul(E2, E1, E1), k.cmul(E512, E256, E256), k.cmul(X1024, C, E1024)))
    g(ilv(k.cmul(E4, E2, E2), k.cmul(X2, C, E2), k.cmul(E768, E256, E512)))
    g(ilv(k.cmul(X4, C, E4), k.cmul(X6, X2, E4)))
    for d, x in ((hC, C), (hE1, E1), (h2, X2), (h256, E256), (h512, E512), (h768, E768), (h1024, E1024), (hX, X1024), (h4, X4), (h6, X6)): g(k.cvt(d, x, False))
    def fragread(dst, upper):
        m = 0xffff0000 if upper else 0x0000ffff
        g(f"s_mov_b32 exec_lo, {m}\ns_mov_b32 exec_hi, {m}")
        for ks in range(8):
            g(f"ds_read_b128 {vr(dst+4*ks,4)}, v{vRd} offset:{32*ks}")
        g("s_mov_b64 exec, -1")
    k.rows([(hX, None), (hX, h256), (hX, h512), (hX, h768), (hX, h1024)], vWr)
    fragread(FXr, True)
    k.rows([(hC, None), (hC, hE1), (h2, None), (h2, hE1), (h4, None), (h4, hE1), (h6, None), (h6, hE1),
          (hC, h256), (h2, h256), (h4, h256), (h6, h256), (hC, h512), (h4, h512), (hC, h768), (h4, h768)], vWr)
    fragread(FXr, False)
    ACC = pool
    g(f"""
    v_and_b32 v{t[0]}, 31, v1
    v_lshrrev_b32 v{t[1]}, 5, v1
    v_lshlrev_b32 v{t[2]}, 3, v{t[0]}
    v_lshl_add_u32 v{t[2]}, v{t[1]}, 2, v{t[2]}
    v_cmp_eq_u32 vcc, 0, v{t[1]}
    v_lshlrev_b32 v{t[3]}, 2, v{t[0]}
    v_lshlrev_b32 v{t[4]}, 1, v{t[0]}
    v_add_u32 v{t[4]}, 128, v{t[4]}
    v_cndmask_b32 v{t[3]}, v{t[4]}, v{t[3]}, vcc
    v_lshl_add_u32 v{t[5]}, v{t[1]}, 7, v{t[0]}
    v_and_b32 v{t[0]}, 0xff0, v{t[2]}
    v_lshl_add_u32 v{t[2]}, v{t[2]}, 2, v{t[0]}
    v_add_u32 v{t[2]}, s{sBase}, v{t[2]}
    v_and_b32 v{t[0]}, 0xff0, v{t[3]}
    v_lshl_add_u32 v{t[3]}, v{t[3]}, 2, v{t[0]}
    v_add_u32 v{t[3]}, s{sBase}, v{t[3]}
    v_mul_u32_u24 v{t[4]}, 312, v{t[1]}
    v_add_u32 v{t[4]}, v{t[4]}, v{t[3]}
    v_and_b32 v{t[0]}, 0xff0, v{t[5]}
    v_lshl_add_u32 v{t[5]}, v{t[5]}, 2, v{t[0]}
    v_add_u32 v{t[5]}, s{sBase}, v{t[5]}
    """)
    g.items.append(("@STAMP23", 0))
    lds_spin(g, tmp[0], tmp[1], 1, sE, saddr=15, off=C_YR)
    for ks in range(8):
        g(f"ds_read_b128 {vr(FY+4*ks,4)}, v{vRy} offset:{32*ks}")
    for ks in range(8):
        c = "0" if ks == 0 else vr(ACC, 16)
        g(f"s_waitcnt lgkmcnt({7-ks})")
        g(f"v_mfma_f32_32x32x16_f16 {vr(ACC,16)}, {vr(FXr+4*ks,4)}, {vr(FY+4*ks,4)}, {c}")
    g(f"""
    s_mul_i32 s{sT}, s{sMH}, {KG_STRIDE}
    s_sub_u32 s{sT}, s{sBase}, s{sT}
    s_sub_u32 s{sT}, s{sT}, {0x2c000000}
    """)
    NV = 22
    AD = pool
    VAL = [FY + 2 * i for i in range(NV)]
    assert FXr == FY + 32
    g("s_nop 12")
    for i in range(12):
        g(f"v_mul_f32 v{ACC+i}, v{vF}, v{ACC+i}")
    g(f"""
    ds_write_b128 v{t[2]}, {vr(ACC,4)} offset:80
    ds_write_b64 v{t[3]}, {vr(ACC+4,2)} offset:{80+1280}
    ds_write_b64 v{t[4]}, {vr(ACC+6,2)} offset:{80+1280+8}
    """)
    for r in range(4):
        g(f"ds_write_b32 v{t[5]}, v{ACC+8+r} offset:{80+2560+160*r}")
    g("s_waitcnt lgkmcnt(0)")
    g.items.append(("@STAMP24", 0))
    g.must_barrier()
    g(f"""
    s_lshr_b32 s{sE}, s{sKC}, 6
    v_and_b32 v{vA2}, 3, v1
    v_lshlrev_b32 v{vA2}, 1, v{vA2}
    v_sub_u32 v{vA2}, s{sE}, v{vA2}
    v_add_u32 v{vBh}, 9, v{vA2}
    v_min3_u32 v{vA2}, v{vA2}, v{vBh}, 7
    s_and_b32 s{sE}, s{sKC}, 32
    s_lshl_b32 s{sE}, s{sE}, 2
    v_lshl_add_u32 v{vA2}, v{vA2}, 4, s{sE}
    v_add_lshl_u32 v{vA2}, v{vA2}, v1, 7
    v_add_u32 v{vA2}, {FL_U}, v{vA2}
    """)
    for run in range(2):
        g(f"""
        s_lshl_b32 s{sE}, s{sMH}, 7
        s_sub_u32 s{sE}, {255 - 64*run}, s{sE}
        v_sub_u32 v{t[4]}, s{sE}, v1
        v_lshlrev_b32 v{t[4]}, 3, v{t[4]}
        v_max_u32 v{t[5]}, 128, v{t[4]}
        v_cvt_f32_u32 v{t[5]}, v{t[5]}
        v_and_b32 v{vInv}, 0x7f800000, v{t[5]}
        v_sub_u32 v{vInv}, {261<<23 & 0xffffffff}, v{vInv}
        v_lshrrev_b32 v{t[5]}, 16, v{t[5]}
        v_subrev_u32 v{t[5]}, {0x4380-256}, v{t[5]}
        v_min_u32 v{t[5]}, v{t[5]}, v{t[4]}
        v_add_u32 v{vBaseM}, 0x4b000010, v{t[5]}
        v_max_u32 v{t[5]}, 129, v{t[4]}
        v_subrev_u32 v{t[5]}, 1, v{t[5]}
        v_cvt_f32_u32 v{t[5]}, v{t[5]}
        v_and_b32 v{vInvM}, 0x7f800000, v{t[5]}
        v_sub_u32 v{vInvM}, {261<<23 & 0xffffffff}, v{vInvM}
        """)
        if run == 1: g(f"v_cmp_ne_u32 s[74:75], 0, v{t[4]}")
        for j in range(11):
            i = 11 * run + j
            r = 7 - j
            inv = vInv if r >= 0 else vInvM
            g(f"v_fmamk_f32 v{AD+i}, v{inv}, {fbits(float(r))}, v{vBaseM}")
            g(f"v_and_b32 v{t[i&1]}, 0xff0, v{AD+i}")
            g(f"v_lshl_add_u32 v{AD+i}, v{AD+i}, 2, s{sT}")
            g(f"v_add_u32 v{AD+i}, v{AD+i}, v{t[i&1]}")
            g(f"ds_read2st64_b32 {vr(VAL[i],2)}, v{AD+i} offset0:0 offset1:{KG_STRIDE//256}")
    g.nobar(True); area(g, sBase, sCS); g.nobar(False)
    g(f"""
    v_lshrrev_b32 v{vBl}, 4, v1
    v_mul_u32_u24 v{vBl}, {36*4096}, v{vBl}
    v_and_b32 v{vF}, 12, v1
    v_lshl_add_u32 v{vBl}, v{vF}, 8, v{vBl}
    v_and_b32 v{vF}, 3, v1
    v_lshl_add_u32 v{vBl}, v{vF}, 4, v{vBl}
    s_and_b32 s10, s{sKC}, 15
    s_lshl_b32 s10, s10, 6
    s_lshr_b32 s9, s{sKC}, 4
    s_lshl_b32 s9, s9, 12
    s_add_u32 s9, s9, s10
    s_add_u32 s9, s9, {UT_OFF}
    v_lshl_add_u32 v{vF}, v1, 3, s{sBase}
    v_mov_b32 v{t[3]}, 0
    s_lshl_b32 s{sE}, s{sMH}, 11
    s_add_u32 s{sE}, s{sE}, s{sBase}
    v_lshl_add_u32 v{t[0]}, v1, 4, s{sE}
    v_lshrrev_b32 v{t[1]}, 4, v1
    v_mul_u32_u24 v{t[1]}, {CP}, v{t[1]}
    v_and_b32 v{t[2]}, 15, v1
    v_lshl_add_u32 v{t[1]}, v{t[2]}, 2, v{t[1]}
    s_add_u32 s{sT}, s{sBase}, 4096
    v_add_u32 v{t[1]}, s{sT}, v{t[1]}
    v_mov_b32 v{t[2]}, 0
    s_waitcnt lgkmcnt(0)
    """)
    for i in range(NV):
        g(f"v_add_f32 v{VAL[i]}, v{VAL[i]}, v{VAL[i]+1}")
    for i in range(19, NV):
        g(f"v_cndmask_b32 v{VAL[i]}, 0, v{VAL[i]}, s[74:75]")
    OUT = pool
    for s in range(4):
        for i in range(8):
            b = 11 * (i >> 2) + 2 * (i & 3) + s
            g(f"v_cvt_pk_bf16_f32 v{OUT+8*s+i}, v{VAL[b]}, v{VAL[b+1]}")
    if 'noexp' in EXP:
        k0 = [l for l, _ in g.items].index('@BAR')
        g.items = g.items[:k0+1] + [x for x in g.items[k0+1:] if not x[0].startswith(("v_fmamk", "ds_read2st64", "v_add_f32", "v_cvt_pk", "v_cndmask")) and "0xff0" not in x[0]]
    if 'nopre' in EXP:
        k0 = [l for l, _ in g.items].index('@BAR')
        g.items = g.items[k0:]
    def after(kb):
        if kb == 0: srd(a, R_WS, P_WS, WS_BYTES); get_tag(a, vWr[0], vWr[1])
        if kb == UK + 3:
            L = a.label("nofu")
            a(f"""
            s_cmp_lg_u32 s{S_WAVE}, 0
            s_cbranch_scc1 {L}
            s_and_b32 s76, s2, 1
            s_lshl_b32 s76, s76, 3
            s_lshr_b32 s77, s2, 5
            s_add_u32 s76, s76, s77
            s_lshl_b32 s76, s76, 2
            s_bfe_u32 s77, s2, 0x20001
            s_add_u32 s76, s76, s77
            s_lshl_b32 s76, s76, 2
            s_bfe_u32 s77, s2, 0x20003
            s_add_u32 s76, s76, s77
            s_lshl_b32 s76, s76, 7
            s_add_u32 s76, s76, {FL_U}
            """)
            flag_line(a, vWr[0], vWr[1], 76)
            a(f"{L}:")
    SPREAD = int(os.environ.get('SPREAD', '1'))
    def after2(kb):
        after(kb)
        if kb == 5:
            L = a.label("np")
            a(f"s_cmp_lg_u32 s{sMH}, 0\ns_cbranch_scc1 {L}\ns_mov_b64 exec, 0xffff")
            poll_issue(a, vBh, 1, vA2, 0)
            a(f"s_mov_b64 exec, -1\n{L}:")
    tot = g.emit(a, NBAR1 - SPREAD, after2)
    a.stamp(25)
    Lnp, L2, L3, Lnu2, Lno, Lre, Lw = [a.label(x) for x in ("np", "kc", "kd", "nu", "no", "re", "uw")]
    def u_dma():
        a(f"s_mov_b64 exec, -1\ns_add_u32 m0, s{sBase}, {UOFF + 512}\ns_nop 0")
        for b in range(4):
            a(f"buffer_load_dwordx4 v{vBl}, {WS}, s9 offen offset:{1024*b}{LD} lds")
            if b < 3: a(f"s_add_u32 s9, s9, {4*36*4096 - 1024}")
    a(f"s_mov_b32 s10, s{sMH}\ns_setprio {os.environ.get('KPRIO', '3')}")
    for _ in range(SPREAD - 1): a("s_barrier")
    a(f"""
    s_cmp_lg_u32 s10, 0
    s_cbranch_scc1 {Lno}
    s_mov_b64 exec, 0xffff
    s_waitcnt vmcnt(0)
    v_cmp_ne_u32 vcc, s{S_TAG}, v{vBh}
    s_cbranch_vccnz {Lre}
    s_mov_b32 s10, 1
    """)
    u_dma()
    a(f"s_branch {Lno}\n{Lre}:")
    poll_issue(a, vBh, 1, vA2, 0)
    a(f"s_mov_b64 exec, -1\n{Lno}:")
    a("s_barrier")
    for s in range(0 if 'nocopy' in EXP else 4):
        a(f"ds_write_b128 v{t[0]}, {vr(OUT+8*s,4)} offset:{s*CP}")
        a(f"ds_write_b128 v{t[0]}, {vr(OUT+8*s+4,4)} offset:{s*CP+1024}")
    assert t[2] % 2 == 0
    a(f"""
    ds_write_b32 v{t[1]}, v{t[2]}
    ds_write_b64 v{vF}, {vr(t[2],2)} offset:{UOFF}
    s_cmp_lg_u32 s10, 0
    s_cbranch_scc1 {Lw}
    s_mov_b64 exec, 0xffff
    """)
    poll_wait(a, vBh, 1, vA2, 0, issued=True)
    u_dma()
    a(f"""
    {Lw}:
    s_waitcnt vmcnt(0)
    s_lshl_b32 s{sT}, s{sCS}, 2
    s_add_u32 s{sT}, s{sT}, {CNT+C_RDY}
    """)
    lds_inc(a, t[0], t[1], saddr=sT)
    a(f"s_branch {Lend}")
    a(f"{Lskip}:")
    TB = int(os.environ.get('TLBAT', '1'))
    for _ in range(TB): a("s_barrier")
    if 'tlb' in EXP:
        Lnu = a.label("notlb")
        a(f"""
        s_lshr_b32 s8, s2, 3
        s_lshl_b32 s8, s8, 1
        s_add_u32 s8, s8, s{sMH}
        s_cmp_lg_u32 s8, 16
        s_cbranch_scc1 {Lnu}
        """)
        for i in sorted(range(1, (WS_BYTES >> 21) + 1), key=lambda i: abs(i - (UT_OFF >> 21) - 0.4)):
            a(f"s_mov_b32 s8, {i << 21}\ns_load_dword s{59+i}, s[{P_WS}:{P_WS+1}], s8")
        a(f"s_load_dword s72, s[{P_WO}:{P_WO+1}], 0\ns_load_dword s73, s[{P_OUT}:{P_OUT+1}], 0\ns_mov_b32 s8, {X_BYTES-4}\ns_load_dword s74, s[{P_OUT}:{P_OUT+1}], s8")
        a(f"{Lnu}:")
    for _ in range(NBAR1 - TB): a("s_barrier")
    srd(a, R_WS, P_WS, WS_BYTES); get_tag(a, t[0], t[1])
    a(f"{Lend}:")
    a.stamp(2)

def phase1(a, name, endlabel):
    Lkg, Lg, Lend = a.label("kg"), a.label("gemm"), a.label("p1end")
    head(a, name, endlabel, Lkg, Lg)
    loader(a)
    a(f"s_branch {Lend}\n{Lkg}:")
    kgen_waves(a)
    a(f"s_branch {Lend}\nL_gate_dma:\ns_waitcnt lgkmcnt(0)")
    srd(a, R_A, P_G, 1152)
    a(f"""
    v_lshlrev_b32 v4, 4, v1
    s_mov_b32 m0, {GT}
    s_nop 0
    buffer_load_dwordx4 v4, s[{R_A}:{R_A+3}], 0 offen lds
    s_mov_b64 exec, 0xff
    buffer_load_dwordx4 v4, s[{R_A}:{R_A+3}], 0 offen offset:1024 lds
    s_mov_b64 exec, -1
    s_barrier
    s_waitcnt vmcnt(0)
    {Lg}:
    """)
    gemm_waves(a)
    a(f"{Lend}:")
```

```python
from f1 import *

def conv_main(a, tiles, vA, vB, bufs, ACC):
    sb = Lgkm(a)
    n = max(tiles) + 1
    ops = []
    for rp in range(1 if 'conv1' in EXP else 4):
        for i in range(n):
            for ti, t in enumerate(tiles):
                if t - i >= 0: ops.append((ti, ("A", i, rp), ("B", t - i, rp)))
    order, last = [], {}
    for k, (ti, x, y) in enumerate(ops):
        for f in (x, y):
            if f not in last: order.append(f)
            last[f] = k
    free = list(bufs); where = {}; nxt = [0]
    MAXO = int(os.environ.get('CMAXO', '15'))
    def try_load(force=False):
        if nxt[0] >= len(order) or not free: return False
        f = order[nxt[0]]
        cost = 2 if f[0] == "A" else 1
        if not force and len(sb.q) - sb.done + cost > MAXO: return False
        d = free.pop(0); where[f] = d; nxt[0] += 1
        w, i, rp = f
        if w == "A":
            off = 4032 - 64 * rp - 512 * i
            sb.load(f"ds_read_b64 {vr(d,2)}, v{vA} offset:{off}", rng(d, 2))
            sb.load(f"ds_read_b64 {vr(d+2,2)}, v{vA} offset:{off+8}", rng(d+2, 2))
        else:
            sb.load(f"ds_read_b128 {vr(d,4)}, v{vB} offset:{480 + 512*i - 64*rp}", rng(d, 4))
        return True
    while try_load(): pass
    started = set()
    for k, (ti, x, y) in enumerate(ops):
        while x not in where or y not in where:
            assert try_load(True)
        sb.need(list(rng(where[x], 4)) + list(rng(where[y], 4)))
        c = vr(ACC+4*ti, 4) if ti in started else "0"
        started.add(ti)
        a(f"v_mfma_f32_16x16x32_bf16 {vr(ACC+4*ti,4)}, {vr(where[x],4)}, {vr(where[y],4)}, {c}")
        for f in (x, y):
            if last[f] == k: free.append(where[f])
        if not try_load():
            if nxt[0] < len(order) and free and len(sb.q) - sb.done > MAXO - 3:
                keep = MAXO - 4
                a(f"s_waitcnt lgkmcnt({keep})"); sb.done = len(sb.q) - keep
                try_load()

class AR:
    def __init__(self, R):
        self.S = [R.alloc(16, 4), R.alloc(16, 4)]
        self.O = [R.alloc(16, 4), R.alloc(16, 4)]
        self.K = R.alloc(4, 4)
        self.Kx = R.alloc(4, 2)
        self.V0 = R.alloc(4, 4)
        self.V1 = R.alloc(4, 4)
        self.Qm = [R.alloc(4, 4), R.alloc(4, 4)]
        self.Qx = [R.alloc(8, 2), R.alloc(8, 2)]
        self.aK = R.alloc(); self.aKx = R.alloc(); self.aV = R.alloc(4, 1); self.idx = R.alloc()

def E(a, base, lo, n=4):
    for i in range(lo, lo + n):
        a(f"v_exp_f32 v{base+i}, v{base+i}")

def k_off(t): return (t & 7) * 1024
def kx_off(g): return KX_OFF + (g & 1) * 512
def v_off(t): return V_OFF + (t & 7) * 1280

class Al:
    def __init__(self, a, mode):
        self.a = a; self.mode = mode; self.sync()
    def sync(self):
        if self.mode: self.a(".p2align 3")
        if self.mode == 2: self.a("s_nop 0")
        self.par = 0; self.last_exp = None
    def __call__(self, txt):
        for ln in txt.split("\n"):
            ln = ln.strip()
            if not ln: continue
            op = ln.split()[0]
            big = op.startswith(("v_mfma", "v_smfmac", "ds_")) or (op == "v_add_u32")
            if big:
                if self.par and self.mode:
                    if self.last_exp is not None:
                        self.a.lines[self.last_exp] = self.a.lines[self.last_exp].replace("v_exp_f32", "v_exp_f32_e64")
                    else:
                        self.a("s_nop 0")
                    self.par = 0
                self.last_exp = None
                self.a(ln)
            else:
                self.a(ln); self.par ^= 1
                if op == "v_exp_f32": self.last_exp = len(self.a.lines) - 1

def attn_loop(a0, r, prio, pre_mid, post_mid, last_hook):
    a = Al(a0, int(os.environ.get('ALIGN', '1')))
    A, B = r.S
    NT = 16
    def smf(o, v, p): a(f"v_smfmac_f32_32x32x32_bf16 {vr(o,16)}, {vr(v,4)}, {vr(p,8)}, v{r.idx}")
    def vread(dst, t, s):
        a(f"ds_read_b64_tr_b16 {vr(dst,2)}, v{r.aV+2*s} offset:{v_off(t)}")
        a(f"ds_read_b64_tr_b16 {vr(dst+2,2)}, v{r.aV+2*s+1} offset:{v_off(t)}")
    a(f"v_mfma_f32_32x32x8_bf16 {vr(A,16)}, {vr(r.Kx,2)}, {vr(r.Qx[0],2)}, 0")
    a(f"v_mfma_f32_32x32x16_bf16 {vr(A,16)}, {vr(r.K,4)}, {vr(r.Qm[0],4)}, {vr(A,16)}")
    a("s_nop 11")
    E(a, A, 0, 2)
    for t in range(NT):
        if t in prio: a(f"s_setprio {prio[t]}")
        kxp = r.Kx + 2 * ((t >> 2) & 1)
        if t > 0: smf(r.O[1], r.V1, B + 8)
        vread(r.V1, t, 1)
        E(a, A, 2)
        a(f"v_mfma_f32_32x32x8_bf16 {vr(B,16)}, {vr(kxp,2)}, {vr(r.Qx[1]+2*(t&3),2)}, 0")
        n_after = 2
        if (t & 7) == 0:
            a(f"ds_read_b64 {vr(r.Kx+2,2)}, v{r.aKx} offset:{kx_off(1)}")
            n_after += 1
        E(a, A, 6)
        a(f"v_mfma_f32_32x32x16_bf16 {vr(B,16)}, {vr(r.K,4)}, {vr(r.Qm[1],4)}, {vr(B,16)}")
        last = t == NT - 1
        if (t & 7) != 7:
            a(f"ds_read_b128 {vr(r.K,4)}, v{r.aK} offset:{k_off(t+1)}")
            n_after += 1
        else:
            a("s_nop 0")
        E(a, A, 10)
        a(f"s_waitcnt lgkmcnt({n_after})")
        smf(r.O[0], r.V0, A)
        if t in pre_mid: pre_mid[t](); a.sync()
        E(a, A, 14, 2)
        if 'nonop' not in EXP: a("s_nop 2")
        E(a, B, 0, 1)
        a("s_waitcnt lgkmcnt(0)")
        if t in post_mid: post_mid[t](); a.sync()
        if t == 7:
            a(f"""
            v_add_u32 v{r.aK}, {REG_B}, v{r.aK}
            v_add_u32 v{r.aKx}, {REG_B}, v{r.aKx}
            ds_read_b64 {vr(r.Kx,2)}, v{r.aKx} offset:{kx_off(0)}
            ds_read_b128 {vr(r.K,4)}, v{r.aK} offset:{k_off(0)}
            """)
            for i in range(4): a(f"v_add_u32 v{r.aV+i}, {REG_B}, v{r.aV+i}")
        tn = t + 1
        kxp = r.Kx + 2 * ((tn >> 2) & 1)
        smf(r.O[0], r.V1, A + 8)
        if last: last_hook(); a.sync()
        E(a, B, 1, 5)
        if t == 7: a("s_waitcnt lgkmcnt(0)")
        if not last:
            a(f"v_mfma_f32_32x32x8_bf16 {vr(A,16)}, {vr(kxp,2)}, {vr(r.Qx[0]+2*(tn&3),2)}, 0")
        E(a, B, 6)
        if not last:
            a(f"v_mfma_f32_32x32x16_bf16 {vr(A,16)}, {vr(r.K,4)}, {vr(r.Qm[0],4)}, {vr(A,16)}")
        E(a, B, 10)
        smf(r.O[1], r.V0, B)
        if not last:
            vread(r.V0, tn, 0)
        E(a, B, 14, 2)
        if not last:
            if 'nonop' not in EXP: a("s_nop 2")
            E(a, A, 0, 2)
    a("s_nop 1")
    smf(r.O[1], r.V1, B + 8)

PRIO = eval(os.environ.get('PRIO', '{0: 1, 6: 0, "M": 2, 13: 1}'))
SPARE = 2 * REG_B

def piece_lds(n):
    return n * 1024 if n < 76 else SPARE + (n - 76) * 1024

def phase23(a):
    sHd, sR, sQP, sKQ, sT, sT2, sC, sCB, sKV, sQt = 4, 5, 6, 7, 8, 9, 10, 11, 12, 13
    sK0, sK1 = 14, 15
    sQT3, sDQ = 80, 81
    R = Regs(4, 128)
    t = [R.alloc() for _ in range(4)]
    r = AR(R)
    vL16 = R.alloc()
    PL = R.alloc(8, 4)
    assert PL == 120 and r.aK == 112
    Lld, LX = a.label("kvload"), a.label("X")
    a(f"""
    s_and_b32 s{sHd}, s2, 7
    s_lshl_b32 s{sQT3}, s{sHd}, 3
    s_lshl_b32 s{sHd}, s{sHd}, 2
    s_bfe_u32 s{sT}, s2, 0x20003
    s_add_u32 s{sHd}, s{sHd}, s{sT}
    s_lshr_b32 s{sR}, s2, 5
    s_bfe_u32 s{sT}, s2, 0x30003
    s_add_u32 s{sQT3}, s{sQT3}, s{sT}
    s_lshr_b32 s{sDQ}, s2, 6
    s_and_b32 s{sQP}, s{S_WAVE}, 3
    s_lshr_b32 s{sKQ}, s{S_WAVE}, 2
    v_lshlrev_b32 v{vL16}, 4, v1
    v_mov_b32 v{PL+4}, 0
    """)
    chan(a, sC, sKQ); area(a, sCB, sKQ)
    a(f"""
    s_mul_i32 s{sKV}, s{sHd}, {8*BLK}
    s_add_u32 s{sKV}, s{sKV}, {KV_OFF}
    s_cmp_eq_u32 s{sKQ}, 3
    s_cbranch_scc1 {Lld}
    s_cmp_ge_u32 s{sC}, 576
    s_cbranch_scc1 {LX}
    """)
    FA, FB, ACC = 8, 40, 72
    vA, vB, vY, vD = r.aK, r.aKx, r.aV, r.aV + 1
    Lts1, Lcj, Lsw = a.label("ts1"), a.label("cj"), a.label("sw")
    a(f"""
    s_lshl_b32 s{sT}, s{S_DV}, 16
    s_and_b32 s{S_DV}, s{S_DV}, 0xffff0000
    s_bitcmp0_b32 s{sC}, 0
    s_cselect_b32 s{S_DV}, s{sT}, s{S_DV}
    v_and_b32 v{t[0]}, 15, v1
    v_lshrrev_b32 v{t[1]}, 4, v1
    v_sub_u32 v{t[2]}, 15, v{t[0]}
    v_and_b32 v{t[3]}, 3, v{t[2]}
    v_and_b32 v{t[2]}, 12, v{t[2]}
    v_lshlrev_b32 v{t[2]}, 1, v{t[2]}
    v_lshl_add_u32 v{t[2]}, v{t[1]}, 4, v{t[2]}
    v_mul_u32_u24 v{t[3]}, {CP}, v{t[3]}
    s_and_b32 s{sT}, s{sQP}, 1
    s_lshl_b32 s{sT}, s{sT}, 8
    s_sub_u32 s{sT}, s{sCB}, s{sT}
    v_add3_u32 v{vA}, v{t[2]}, v{t[3]}, s{sT}
    v_lshlrev_b32 v{t[2]}, 5, v{t[0]}
    v_lshl_add_u32 v{t[3]}, v{t[1]}, 4, v{t[2]}
    s_add_u32 s{sT}, s{sT}, {UOFF}
    v_add_u32 v{vB}, s{sT}, v{t[3]}
    v_lshl_add_u32 v{vY}, v{t[1]}, 3, v{t[2]}
    s_lshl_b32 s82, s{sKQ}, 2
    s_add_u32 s82, s82, {CNT}
    """)
    if 'nokg' in EXP or 'noconv' in EXP: a(f's_branch {LX}')
    lds_spin(a, t[0], t[1], 2, sT, saddr=82, off=C_RDY)
    a.stamp(5)
    a("s_setprio 2")
    if os.environ.get('C3PRIO'): a(f"s_cmp_lt_u32 s{sKQ}, 2\ns_cbranch_scc1 L_c3\ns_setprio {os.environ['C3PRIO']}\nL_c3:")
    T0, T1 = [7, 4, 3, 0], [6, 5, 2, 1]
    BUFS = list(range(8, 72, 4)) + list(range(88, 112, 4))
    a(f"s_cmp_ge_u32 s{sQP}, 2\ns_cbranch_scc1 {Lts1}")
    conv_main(a, T0, vA, vB, BUFS, ACC)
    a(f"s_cmp_eq_u32 s{sQP}, 0\ns_cselect_b32 s{sK0}, {T0[0]}, {T0[2]}\ns_cselect_b32 s{sK1}, {T0[1]}, {T0[3]}\ns_branch {Lcj}")
    a(f"{Lts1}:")
    conv_main(a, T1, vA, vB, BUFS, ACC)
    a(f"s_cmp_eq_u32 s{sQP}, 2\ns_cselect_b32 s{sK0}, {T1[0]}, {T1[2]}\ns_cselect_b32 s{sK1}, {T1[1]}, {T1[3]}")
    a(f"{Lcj}:")
    a.stamp(13)
    lds_inc(a, FB + 8, FB + 9, saddr=82, off=C_1)
    a(f"""
    s_lshl_b32 s{sK0}, s{sK0}, 9
    s_lshl_b32 s{sK1}, s{sK1}, 9
    s_lshl_b32 s{sT}, s{sQP}, 11
    s_add_u32 s{sT}, s{sT}, s{sCB}
    v_add_u32 v{t[0]}, s{sT}, v{vL16}
    s_xor_b32 s{sT}, s{sQP}, 1
    s_lshl_b32 s{sT}, s{sT}, 11
    s_add_u32 s{sT}, s{sT}, s{sCB}
    v_add_u32 v{t[1]}, s{sT}, v{vL16}
    s_add_u32 s{sT}, s{sCB}, s{sK0}
    v_add_u32 v{t[2]}, s{sT}, v{vY}
    s_add_u32 s{sT}, s{sCB}, s{sK1}
    v_add_u32 v{t[3]}, s{sT}, v{vY}
    ds_read_b64 {vr(FA,2)}, v{t[2]} offset:{UOFF+512}
    ds_read_b64 {vr(FA+2,2)}, v{t[3]} offset:{UOFF+512}
    s_bitcmp0_b32 s{sQP}, 0
    s_cbranch_scc1 {Lsw}
    """)
    for i in range(8):
        a(f"v_swap_b32 v{ACC+i}, v{ACC+8+i}")
    a(f"{Lsw}:")
    lds_spin(a, FB + 8, FB + 9, 4, sT, saddr=82, off=C_1)
    a(f"""
    ds_write_b128 v{t[0]}, {vr(ACC+8,4)}
    ds_write_b128 v{t[0]}, {vr(ACC+12,4)} offset:1024
    """)
    lds_inc(a, FB + 8, FB + 9, saddr=82, off=C_2)

    for j in range(2):
        for h in range(2):
            a(f"v_lshlrev_b32 v{FA+4}, 16, v{FA+2*j+h}")
            a(f"v_and_b32 v{FA+5}, 0xffff0000, v{FA+2*j+h}")
            a(f"v_fmac_f32 v{ACC+4*j+2*h}, s{S_DV}, v{FA+4}")
            a(f"v_fmac_f32 v{ACC+4*j+2*h+1}, s{S_DV}, v{FA+5}")
    lds_spin(a, FB + 8, FB + 9, 4, sT, saddr=82, off=C_2)
    a(f"""
    ds_read_b128 {vr(FB,4)}, v{t[1]}
    ds_read_b128 {vr(FB+4,4)}, v{t[1]} offset:1024
    s_lshl_b32 s{sT}, s{sC}, 12
    s_add_u32 s{sT}, s{sT}, {AT_OFF}
    s_add_u32 s{sK0}, s{sK0}, s{sT}
    s_add_u32 s{sK1}, s{sK1}, s{sT}
    s_waitcnt lgkmcnt(0)
    """)
    for i in range(8):
        a(f"v_add_f32 v{ACC+i}, v{ACC+i}, v{FB+i}")
    for i in range(4):
        a(f"v_cvt_pk_bf16_f32 v{PL+i}, v{ACC+2*i}, v{ACC+2*i+1}")
    a(f"""
    buffer_store_dwordx2 {vr(PL,2)}, v{vY}, {WS}, s{sK0} offen{ST}
    buffer_store_dwordx2 {vr(PL+2,2)}, v{vY}, {WS}, s{sK1} offen{ST}
    s_cmp_lt_u32 s{sKQ}, 2
    s_cbranch_scc1 {LX}
    s_waitcnt vmcnt(0)
    """)
    def publish_a(Lskip):
        lds_inc(a, t[0], t[1], off=C_A, rtn=sT)
        a(f"""
        s_cmp_lt_u32 s{S_C2}, 576
        s_cselect_b32 s{sT2}, {7 if 'nokg' in EXP or 'noconv' in EXP else 11}, 7
        s_cmp_lg_u32 s{sT}, s{sT2}
        s_cbranch_scc1 {Lskip}
        """)
        lds_spin(a, t[0], t[1], 8, sT, off=C_S)
        a(f"s_lshl_b32 s{sT2}, s2, 2\ns_add_u32 s{sT2}, s{sT2}, {FL_A}")
        flag_store(a, t[0], sT2)
    publish_a(LX)
    a(f"s_branch {LX}")
    Lp, Lc, Lq, Lnq, Lgo = [a.label(x) for x in ("kp", "kc", "noqx", "nq", "go")]
    def kv_flags(vd, vt, quarter):
        a(f"""
        v_and_b32 v{vd}, 1, v1
        v_lshlrev_b32 v{vd}, 5, v{vd}
        v_add3_u32 v{vd}, v{vd}, 32, s{sHd}
        v_lshrrev_b32 v{vt}, 1, v1
        s_lshl_b32 s{sT}, s{quarter}, 2
        v_add_u32 v{vt}, s{sT}, v{vt}
        s_lshl_b32 s{sT}, s{sR}, 1
        s_lshr_b32 s{sT2}, s{sQP}, 1
        s_add_u32 s{sT}, s{sT}, s{sT2}
        v_writelane_b32 v{vd}, s{sHd}, 8
        v_writelane_b32 v{vt}, s{sT}, 8
        v_mul_u32_u24 v{vd}, {256 if 'fp' in EXP else 43}, v{vd}
        v_lshrrev_b32 v{vd}, 8, v{vd}
        v_lshl_add_u32 v{vd}, v{vd}, 4, v{vt}
        v_lshlrev_b32 v{vd}, 7, v{vd}
        v_add_u32 v{vd}, {FL_P if 'fp' in EXP else FL_Q}, v{vd}
        """)
    a(f"{Lld}:")
    kv_flags(t[2], t[3], sQP)
    lds_spin(a, t[0], t[1], 8, sT, off=C_S if 'early' in EXP else C_FREE)
    a(f"""
    s_lshl_b32 s74, s{sHd}, 3
    s_add_u32 s74, s74, s{sR}
    s_lshl_b32 s75, s74, 2
    s_add_u32 s75, s75, s{sQP}
    s_mov_b32 s76, 0
    s_lshl_b32 s82, s{sQP}, 2
    s_add_u32 s82, s82, {CNT + C_Q}
    v_mov_b32 v{PL}, s82
    v_mov_b32 v{PL+1}, 1
    s_mov_b32 s{S_SPIN}, {SPIN_MAX}
    """)
    PD = int(os.environ.get('PD', '2'))
    PS = os.environ.get('PSLEEP', '3')
    PR = [8 + i for i in range(PD)]
    def pissue(i):
        a(f"s_mov_b64 exec, 0x1ff\nbuffer_load_dword v{PR[i]}, v{t[2]}, {WS}, 0 offen sc1")
    for i in range(PD - 1):
        pissue(i); a(f"s_sleep {PS}")
    a(f"{Lp}:")
    for i in range(PD):
        Lq, Lc, Lnq = a.label("q"), a.label("c"), a.label("nq")
        pissue((i + PD - 1) % PD)
        a(f"""
        s_waitcnt vmcnt({PD-1})
        v_cmp_ne_u32 vcc, s{S_TAG}, v{PR[i]}
        s_cmp_lt_u32 s76, 2
        s_cbranch_scc1 {Lq}
        s_sub_u32 s76, s76, 1
        s_cmp_lg_u32 s76, 1
        s_cbranch_scc1 {Lq}
        ds_write_b32 v{PL}, v{PL+1}
        {Lq}:
        s_mov_b64 exec, -1
        s_sub_u32 s{S_SPIN}, s{S_SPIN}, 1
        s_cselect_b32 vcc_lo, 0, vcc_lo
        s_bitcmp1_b32 vcc_lo, 8
        s_cbranch_scc1 {Lc}
        s_cmp_lg_u32 s76, 0
        s_cbranch_scc1 {Lnq}
        s_mov_b32 s76, {PD+1}
        s_call_b64 s[78:79], L_qdma
        {Lnq}:
        s_mov_b32 s77, 0
        s_and_b32 s{sT}, vcc_lo, 0x0f
        s_cbranch_scc0 {Lgo}
        s_mov_b32 s77, 1
        s_and_b32 s{sT}, vcc_lo, 0xf0
        s_cbranch_scc0 {Lgo}
        {Lc}:
        s_sleep {PS}
        """)
    a(f"""
    s_branch {Lp}
    L_qdma:
    s_lshl_b32 s{sT}, s{sQP}, 11
    s_add_u32 m0, s{sT}, {QST}
    s_lshl_b32 s{sT2}, s75, 11
    s_add_u32 s{sT2}, s{sT2}, {QF_OFF}
    buffer_load_dwordx4 v{vL16}, {WS}, s{sT2} offen{LD} lds
    buffer_load_dwordx4 v{vL16}, {WS}, s{sT2} offen offset:1024{LD} lds
    s_lshl_b32 s{sT}, s{sQP}, 8
    s_add_u32 m0, s{sT}, {QST+8192}
    s_lshl_b32 s{sT2}, s75, 8
    s_add_u32 s{sT2}, s{sT2}, {QX_OFF}
    s_mov_b64 exec, 0xffff
    buffer_load_dwordx4 v{vL16}, {WS}, s{sT2} offen{LD} lds
    s_mov_b64 exec, -1
    s_setpc_b64 s[78:79]
    {Lgo}:
    """)
    a.stamp(5)
    a(f"""
    s_lshl_b32 s{sT}, s{sQP}, 1
    s_add_u32 s{sT}, s{sT}, s77
    s_mul_i32 s{sT}, s{sT}, {BLK}
    s_add_u32 s{sT}, s{sT}, s{sKV}
    s_mul_i32 s82, s{sQP}, {BLK}
    """)
    def run(first, n):
        a(f"s_add_u32 m0, s82, {first*1024}\ns_add_u32 s{sT2}, s{sT}, {first*1024}")
        for i in range(n):
            a(f"buffer_load_dwordx4 v{vL16}, {WS}, s{sT2} offen offset:{1024*i}{LD} lds")
    run(0, 2); run(8, 4)
    a(f"""
    s_lshl_b32 s78, s{sQP}, 3
    s_add_u32 s78, s78, {CNT + C_KV}
    v_mov_b32 v{t[0]}, s78
    v_mov_b32 v{t[2]}, 1
    v_mov_b32 v{t[3]}, s77
    v_mov_b32 v{t[1]}, 2
    s_waitcnt vmcnt(0)
    ds_write_b32 v{PL}, v{PL+1}
    ds_write_b64 v{t[0]}, {vr(t[2],2)}
    s_waitcnt lgkmcnt(0)
    """)
    run(2, 4); run(12, 4); run(6, 2); run(16, 3)
    a(f"s_waitcnt vmcnt(0)\nds_write_b32 v{t[0]}, v{t[1]}")
    a(f"{LX}:")
    a(f"""
    s_mul_i32 s{sT}, s{sKQ}, {BLK}
    v_add_u32 v{r.aK}, s{sT}, v{vL16}
    v_lshl_add_u32 v{r.aKx}, v1, 3, s{sT}
    v_bfe_u32 v{t[0]}, v1, 2, 2
    v_and_b32 v{t[1]}, 1, v1
    v_lshlrev_b32 v{t[1]}, 4, v{t[1]}
    v_and_b32 v{t[2]}, 2, v1
    v_lshl_add_u32 v{t[1]}, v{t[2]}, 2, v{t[1]}
    v_lshl_add_u32 v{t[1]}, v{t[0]}, 5, v{t[1]}
    v_and_b32 v{t[3]}, 32, v1
    v_lshl_add_u32 v{t[1]}, v{t[3]}, 3, v{t[1]}
    v_lshl_add_u32 v{t[0]}, v{t[0]}, 3, v{t[3]}
    v_add_u32 v{t[0]}, 1152, v{t[0]}
    v_lshl_add_u32 v{t[0]}, v{t[2]}, 17, v{t[0]}
    v_and_b32 v{t[2]}, 16, v1
    v_cmp_eq_u32 vcc, 0, v{t[2]}
    v_lshlrev_b32 v{t[2]}, 4, v{t[2]}
    v_mov_b32 v{t[3]}, 512
    v_cndmask_b32 v{t[1]}, v{t[0]}, v{t[1]}, vcc
    v_add_u32 v{r.aV}, s{sT}, v{t[1]}
    v_sub_u32 v{t[2]}, 128, v{t[2]}
    v_cndmask_b32 v{t[3]}, 64, v{t[3]}, vcc
    v_add_u32 v{r.aV+1}, v{r.aV}, v{t[2]}
    v_add_u32 v{r.aV+2}, v{r.aV}, v{t[3]}
    v_add_u32 v{r.aV+3}, v{r.aV+2}, v{t[2]}
    v_mov_b32 v{r.idx}, 0xdddddddd
    s_mov_b32 s72, {fbits(2.0**-40)}
    s_mov_b32 s73, {fbits(2.0**60)}
    s_movk_i32 s64, 0x1f8
    s_mov_b64 s[62:63], 0
    s_lshl_b32 s{sT}, s{sQP}, 11
    s_add_u32 s{sT}, s{sT}, {QST}
    v_add_u32 v{t[0]}, s{sT}, v{vL16}
    v_and_b32 v{t[1]}, 31, v1
    s_lshl_b32 s{sT}, s{sQP}, 8
    s_add_u32 s{sT}, s{sT}, {QST+8192}
    v_lshl_add_u32 v{t[1]}, v{t[1]}, 2, s{sT}
    v_cmp_gt_u32 vcc, 32, v1
    s_lshl_b32 s{sQt}, s{sR}, 2
    s_add_u32 s{sQt}, s{sQt}, s{sQP}
    """)
    for X in range(2):
        for i in (1, 2, 5, 6): a(f"v_mov_b32 v{r.Qx[X]+i}, 0")
        for i in range(16): a(f"v_mov_b32 v{r.O[X]+i}, 0")
    a.stamp(6)
    a(f"s_lshl_b32 s82, s{sQP}, 2\ns_add_u32 s82, s82, {CNT}\ns_lshl_b32 s83, s{sKQ}, 3\ns_add_u32 s83, s83, {CNT}")
    lds_spin(a, PL, PL + 1, 1, sT, saddr=82, off=C_Q)
    a(f"""
    ds_read_b128 {vr(r.Qm[0],4)}, v{t[0]}
    ds_read_b128 {vr(r.Qm[1],4)}, v{t[0]} offset:1024
    ds_read2_b32 {vr(t[2],2)}, v{t[1]} offset0:0 offset1:32
    """)
    lds_inc(a, PL, PL + 1, off=C_Y)
    a("s_waitcnt lgkmcnt(1)")
    for X in range(2):
        q = r.Qx[X]; src = t[2] + X
        a(f"""
        v_cndmask_b32 v{q+0}, 0, v{src}, vcc
        v_cndmask_b32 v{q+3}, 0, v{src}, vcc
        v_cndmask_b32 v{q+4}, v{src}, 0, vcc
        v_cndmask_b32 v{q+7}, v{src}, 0, vcc
        """)
    lds_spin(a, PL, PL + 1, 1, sT, saddr=83, off=C_KV)
    a(f"""
    ds_read_b64 {vr(r.Kx,2)}, v{r.aKx} offset:{kx_off(0)}
    ds_read_b128 {vr(r.K,4)}, v{r.aK} offset:{k_off(0)}
    ds_read_b64_tr_b16 {vr(r.V0,2)}, v{r.aV} offset:{v_off(0)}
    ds_read_b64_tr_b16 {vr(r.V0+2,2)}, v{r.aV+1} offset:{v_off(0)}
    """)
    def stage2_pre():
        a(f"v_mov_b32 v{t[0]}, s83\nds_read_b32 v{t[1]}, v{t[0]} offset:{C_KV}")
    def stage2_post():
        if 'nos2' in EXP: return
        L = a.label("cok")
        a(f"v_cmp_gt_u32 vcc, 2, v{t[1]}\ns_cbranch_vccz {L}")
        lds_spin(a, t[0], t[1], 2, sT, saddr=83, off=C_KV)
        a(f"{L}:")
    def wt_issue():
        L = a.label("nw")
        a(f"s_cmp_ge_u32 s{S_WAVE}, 3\ns_cbranch_scc1 {L}\ns_lshl_b32 s79, s{S_WAVE}, 8\ns_add_u32 s79, s79, s2")
        if 'nowt' in EXP: a("s_movk_i32 s79, 1000")
        wt_load(a, 79, sT, 78, 77, 76, 75, t[0], t[1], t[2], PL)
        a(f"{L}:")
    def wt_put():
        L, Ls = a.label("nw"), a.label("ns")
        a(f"s_cmp_ge_u32 s{S_WAVE}, 8\ns_cbranch_scc1 {Ls}\ns_cmp_ge_u32 s{S_WAVE}, 3\ns_cbranch_scc1 {L}\ns_waitcnt vmcnt(0)")
        wt_store(a, 79, PL, vL16)
        a(f"{L}:\ns_lshr_b32 s78, s{S_WAVE}, 1")
        kv_flags(PL + 4, PL + 5, 78)
        a("s_mov_b64 exec, 0xff")
        poll_issue(a, PL + 5, 1, PL + 4, 0)
        a(f"s_mov_b64 exec, -1\n{Ls}:")
    def second_blocks():
        Ls, Lw = a.label("kvs"), a.label("nw")
        a(f"s_cmp_ge_u32 s{S_WAVE}, 8\ns_cbranch_scc1 {Ls}\ns_mov_b64 exec, 0xff")
        poll_wait(a, PL + 5, 1, PL + 4, 0, issued=True)
        a("s_mov_b64 exec, -1")
        publish_a(Lw)
        a(f"{Lw}:")
        lds_spin(a, t[0], t[1], 16, sT, off=C_Y)
        a(f"s_lshl_b32 s82, s78, 3\ns_add_u32 s82, s82, {CNT}")
        lds_spin(a, t[0], t[1], 1, sT, saddr=82, off=C_KV)
        a(f"""
        ds_read_b32 v{t[1]}, v{t[0]} offset:{C_KV+4}
        s_and_b32 s{sT}, s{S_WAVE}, 6
        s_waitcnt lgkmcnt(0)
        v_readfirstlane_b32 s{sT2}, v{t[1]}
        s_xor_b32 s{sT2}, s{sT2}, 1
        s_and_b32 s{sT2}, s{sT2}, 1
        s_add_u32 s{sT}, s{sT}, s{sT2}
        s_mul_i32 s{sT}, s{sT}, {BLK}
        s_add_u32 s{sT}, s{sT}, s{sKV}
        s_and_b32 s{sT2}, s{S_WAVE}, 1
        s_mul_i32 s{sT2}, s{sT2}, 9216
        s_add_u32 s{sT}, s{sT}, s{sT2}
        s_mul_i32 s82, s78, {BLK}
        s_add_u32 s82, s82, s{sT2}
        s_add_u32 m0, s82, {REG_B}
        s_nop 0
        """)
        for i in range(10):
            a(f"buffer_load_dwordx4 v{vL16}, {WS}, s{sT} offen offset:{1024*(i&3)}{LD} lds")
            if i & 3 == 3: a(f"s_add_u32 m0, m0, 4096\ns_add_u32 s{sT}, s{sT}, 4096")
        a(f"{Ls}:")
    a("s_waitcnt lgkmcnt(2)\ns_nop 0")
    a.stamp(7)
    def poll_post():
        L = a.label("nopa")
        a(f"s_cmp_lg_u32 s{S_WAVE}, 0\ns_cbranch_scc1 {L}")
        poll_issue(a, PL, 4, vL16, FL_A)
        a(f"{L}:")
    def poll_check():
        L = a.label("nopw")
        a(f"s_cmp_lg_u32 s{S_WAVE}, 0\ns_cbranch_scc1 {L}")
        poll_wait(a, PL, 4, vL16, FL_A, issued=True)
        lds_inc(a, t[0], t[1], off=C_FA)
        a(f"{L}:")
    def mid_post():
        a("s_waitcnt vmcnt(0)")
        a.stamp(15)
        a(f"s_setprio {PRIO['M']}")
        if 'nom' not in EXP: a("s_barrier")
        a.stamp(16)
    NLD = 8
    def prefetch_post():
        La, Ld = a.label("pfa"), a.label("pfd")
        a(f"""
        s_cmp_ge_u32 s{S_WAVE}, {0 if 'nopf' in EXP else 9}
        s_cbranch_scc1 {La}
        """)
        lds_spin(a, t[0], t[1], 1, sT, off=C_FA)
        a(f"""
        s_mul_i32 s{sT}, s{sDQ}, 9
        s_add_u32 s{sT}, s{sT}, s{S_WAVE}
        s_lshl_b32 m0, s{S_WAVE}, 13
        s_mul_i32 s{sT}, s{sT}, {18*1024}
        s_add_u32 s{sT}, s{sT}, {WT_OFF}
        """)
        for n in range(NLD):
            a(f"buffer_load_dwordx4 v{vL16}, {WS}, s{sT} offen offset:{1024*(n&3)}{LD} lds")
            if n == 3: a(f"s_add_u32 m0, m0, 4096\ns_add_u32 s{sT}, s{sT}, 4096")
        a(f"""
        v_lshrrev_b32 v{t[0]}, 2, v1
        v_lshlrev_b32 v{t[0]}, 12, v{t[0]}
        v_and_b32 v{t[1]}, 3, v1
        v_lshl_add_u32 v{t[0]}, v{t[1]}, 4, v{t[0]}
        s_mul_i32 s{sT}, s{sDQ}, 9
        s_add_u32 s{sT}, s{sT}, s{S_WAVE}
        s_lshl_b32 s{sT}, s{sT}, 16
        s_lshl_b32 s{sT2}, s{sQT3}, 6
        s_add_u32 s{sT}, s{sT}, s{sT2}
        s_add_u32 s{sT}, s{sT}, {AT_OFF}
        s_lshl_b32 s{sK1}, s{S_WAVE}, 10
        s_add_u32 s{sT2}, s{sK1}, {SPARE - 4096}
        s_add_u32 s{sK1}, s{sK1}, {72*1024}
        s_cmp_ge_u32 s{S_WAVE}, 4
        s_cselect_b32 s{sK1}, s{sT2}, s{sK1}
        s_mov_b32 m0, s{sK1}
        s_nop 0
        buffer_load_dwordx4 v{t[0]}, {WS}, s{sT} offen{LD} lds
        {La}:
        """)
    vP16, vP8, vP4, vPC, vXo = PL, PL + 1, PL + 2, PL + 3, PL + 4
    sFO, sOM, sOX = 60, 61, 65
    def tail_setup():
        a(f"""
        s_mul_i32 s{sCB}, s{sQP}, 4864
        s_add_u32 s{sCB}, s{sCB}, {REG_B}
        s_lshl_b32 s82, s{sKQ}, 2
        s_add_u32 s82, s82, {CNT}
        s_lshl_b32 s83, s{sQP}, 2
        s_add_u32 s83, s83, {CNT}
        v_add_u32 v{vP16}, s{sCB}, v{vL16}
        v_lshl_add_u32 v{vP8}, v1, 3, s{sCB}
        v_lshl_add_u32 v{vP4}, v1, 2, s{sCB}
        v_mov_b32 v{vPC}, s83
        v_lshrrev_b32 v{vXo}, 5, v1
        v_mul_u32_u24 v{vXo}, {36*1024 - 128}, v{vXo}
        v_lshl_add_u32 v{vXo}, v1, 2, v{vXo}
        s_lshl_b32 s{sFO}, s{sQt}, 5
        s_add_u32 s{sFO}, s{sFO}, s{sHd}
        s_lshl_b32 s{sFO}, s{sFO}, 7
        s_add_u32 s{sFO}, s{sFO}, {FL_O}
        s_mul_i32 s{sOM}, s{sQt}, {72*1024}
        s_add_u32 s{sOM}, s{sOM}, {OF_OFF}
        s_lshl_b32 s{sT}, s{sHd}, 7
        s_add_u32 s{sOX}, s{sOM}, s{sT}
        s_add_u32 s{sOX}, s{sOX}, 32768
        s_lshl_b32 s{sT}, s{sHd}, 10
        s_add_u32 s{sOM}, s{sOM}, s{sT}
        s_add_u32 s66, s{sOM}, {36*1024}
        s_mov_b32 s76, -1
        s_mov_b32 s77, 0
        """)
    PX = r.K
    def tail_reads():
        a(f"""
        ds_read_b32 v{PX+3}, v{vPC} offset:{C_P}
        ds_read_b64 {vr(PX,2)}, v{vP8} offset:4096
        ds_read_b32 v{PX+2}, v{vP4} offset:4608
        ds_read_b128 v[8:11], v{vP16}
        ds_read_b128 v[12:15], v{vP16} offset:1024
        ds_read_b128 v[16:19], v{vP16} offset:2048
        ds_read_b128 v[20:23], v{vP16} offset:3072
        """)
    attn_loop(a, r, PRIO, {0: stage2_pre}, {0: lambda: (stage2_post(), wt_issue()), 3: wt_put, 5: second_blocks, 7: mid_post, 8: poll_post, 10: poll_check, 11: prefetch_post, 12: tail_setup}, tail_reads)
    a('s_setprio 3')
    a.stamp(8)
    O0, O1 = r.O
    FD = [72 + 4*i for i in range(10)]
    FL = [8 + 4*i for i in range(8)]
    FA3 = FL + FD
    AV, vG, vB, vOut, ACC3, FB3 = 112, 116, 118, t[3], PL, 40
    OZ = REG_B + BLK
    Lfin, Lp9, Lend, Lfirst, Lwr = [a.label(x) for x in ("fin", "p9", "end", "first", "wr")]
    Lre, Lok = a.label("re"), a.label("ok")
    a(f"""
    s_cmp_eq_u32 s{sKQ}, 0
    s_cbranch_scc1 {Lfirst}
    s_waitcnt lgkmcnt(0)
    v_cmp_gt_u32 vcc, s{sKQ}, v{PX+3}
    s_cbranch_vccnz {Lre}
    {Lok}:
    """)
    a.stamp(18)
    for i in range(0, 8, 2): a(f"v_pk_add_f32 {vr(O0+i,2)}, {vr(O0+i,2)}, {vr(8+i,2)}")
    a("s_nop 2")
    def pack():
        for i in (2, 0, 1): a(f"v_cndmask_b32 v{O0+8+i}, v{O1+8+i}, v{O0+8+i}, s[76:77]")
    pack()
    a(f"v_add_f32 v{O0+10}, v{O0+10}, v{PX+2}\nv_pk_add_f32 {vr(O0+8,2)}, {vr(O0+8,2)}, {vr(PX,2)}\nv_mov_b32 v{O1+10}, v{O0+10}")
    for i in range(0, 8, 2): a(f"v_pk_add_f32 {vr(O1+i,2)}, {vr(O1+i,2)}, {vr(16+i,2)}")
    a(f"s_cmp_eq_u32 s{sKQ}, 3\ns_cbranch_scc1 {Lfin}\ns_branch {Lwr}\n{Lre}:")
    lds_spin(a, t[0], t[1], f"s{sKQ}", sT, saddr=83, off=C_P)
    tail_reads()
    a(f"s_waitcnt lgkmcnt(0)\ns_branch {Lok}\n{Lfirst}:")
    lds_inc(a, t[0], t[1], saddr=82, off=C_E)
    lds_spin(a, t[0], t[1], 4, sT, saddr=82, off=C_E)
    pack()
    a(f"""{Lwr}:
    ds_write_b128 v{vP16}, {vr(O0,4)}
    ds_write_b128 v{vP16}, {vr(O0+4,4)} offset:1024
    ds_write_b128 v{vP16}, {vr(O1,4)} offset:2048
    ds_write_b128 v{vP16}, {vr(O1+4,4)} offset:3072
    ds_write_b64 v{vP8}, {vr(O0+8,2)} offset:4096
    ds_write_b32 v{vP4}, v{O0+10} offset:4608
    """)
    lds_inc(a, t[0], t[1], saddr=83, off=C_P)
    lds_inc(a, t[0], t[1], saddr=82, off=C_E)
    a("s_setprio 0")
    a.stamp(17)
    a(f"""
    s_cmp_ge_u32 s{S_WAVE}, 9
    s_cbranch_scc1 {Lp9}
    v_and_b32 v{t[2]}, 15, v1
    v_lshlrev_b32 v{t[2]}, 2, v{t[2]}
    s_lshl_b32 s{sT}, s{sQT3}, 7
    s_add_u32 s{sT}, s{sT}, {G_OFF}
    s_waitcnt lgkmcnt(0)
    buffer_load_dword v{vG}, v{t[2]}, {WS}, s{sT} offen{LD}
    buffer_load_dword v{vG+1}, v{t[2]}, {WS}, s{sT} offen offset:64{LD}
    s_mul_i32 s{sK0}, s{sDQ}, 9
    s_add_u32 s{sK0}, s{sK0}, s{S_WAVE}
    s_mul_i32 s{sT}, s{sK0}, {18*1024}
    s_add_u32 s{sT}, s{sT}, {WT_OFF + NLD*1024}
    """)
    if 'wtlate' in EXP:
        L = a.label("wl")
        a(f"s_cmp_lt_u32 s{S_WAVE}, {os.environ.get('WTE', '0')}\ns_cbranch_scc1 {L}")
        lds_spin(a, t[0], t[1], 4, sT2, off=C_O)
        a(f"{L}:")
    for n in range(10):
        a(f"buffer_load_dwordx4 {vr(FD[n],4)}, v{vL16}, {WS}, s{sT} offen offset:{1024*(n&3)}{LD}")
        if n & 3 == 3: a(f"s_add_u32 s{sT}, s{sT}, 4096")
    a(f"""
    s_lshl_b32 s{sT}, s{S_WAVE}, 13
    v_add_u32 v{t[0]}, s{sT}, v{vL16}
    v_lshrrev_b32 v{t[1]}, 2, v1
    v_lshlrev_b32 v{t[1]}, 6, v{t[1]}
    v_and_b32 v{t[2]}, 3, v1
    v_lshl_add_u32 v{t[1]}, v{t[2]}, 3, v{t[1]}
    v_add_u32 v{t[1]}, s{sK1}, v{t[1]}
    s_waitcnt vmcnt(10)
    """)
    for ks in range(NLD):
        a(f"ds_read_b128 {vr(FL[ks],4)}, v{t[0]} offset:{1024*ks}")
    a(f"""
    ds_read_b64_tr_b16 {vr(AV,2)}, v{t[1]}
    ds_read_b64_tr_b16 {vr(AV+2,2)}, v{t[1]} offset:32
    v_lshrrev_b32 v{t[0]}, 4, v1
    v_and_b32 v{t[2]}, 15, v1
    v_lshlrev_b32 v{vB}, 9, v{t[0]}
    v_add_u32 v{vB}, {OZ}, v{vB}
    v_lshl_add_u32 v{vB+1}, v{t[2]}, 2, v{vB}
    v_add_u32 v{vB+1}, 32768, v{vB+1}
    v_lshl_add_u32 v{vB}, v{t[2]}, 4, v{vB}
    v_mul_u32_u24 v{vOut}, 1152, v{t[2]}
    v_lshl_add_u32 v{vOut}, v{t[0]}, 3, v{vOut}
    v_add_u32 v{t[2]}, 2048, v{vB+1}
    """)
    for T in range(2):
        g = vG + T
        a(f"""
        v_cvt_pk_bf16_f32 v{g}, v{g}, v{g}
        v_and_b32 v{g}, 0xffff0000, v{g}
        v_mul_f32 v{g}, {fbits(-L_HI)}, v{g}
        v_exp_f32 v{g}, v{g}
        s_nop 0
        v_add_f32 v{g}, 1.0, v{g}
        v_rcp_f32 v{g}, v{g}
        s_nop 0
        v_cvt_pk_bf16_f32 v{g}, v{g}, v{g}
        v_and_b32 v{g}, 0xffff0000, v{g}
        """)
    for i in range(8): a(f"v_mov_b32 v{ACC3+i}, 0")
    srd(a, R_A, P_OUT, X_BYTES)
    Lscan = a.label("scan")
    a(f"""
    s_mul_i32 s{sT}, s{sQT3}, {32*1152}
    s_lshl_b32 s{sT2}, s{sK0}, 5
    s_add_u32 s{sK0}, s{sT}, s{sT2}
    s_add_u32 s{sK1}, s{sK0}, {16*1152}
    v_mov_b32 v{t[0]}, {CNT}
    s_mov_b32 s74, 0
    s_mov_b32 s{S_SPIN}, {SPIN_MAX}
    s_waitcnt vmcnt(0) lgkmcnt(0)
    """)
    a.stamp(12)
    a(f"""
    s_branch {Lscan}
    {Lscan}_s:
    s_sleep 1
    {Lscan}:
    ds_read_b32 v{t[1]}, v{t[0]} offset:{C_F}
    s_sub_u32 s{S_SPIN}, s{S_SPIN}, 1
    s_cselect_b32 s77, 0xff, 0
    s_waitcnt lgkmcnt(0)
    v_readfirstlane_b32 s75, v{t[1]}
    s_or_b32 s75, s75, s77
    s_andn2_b32 s76, s75, s74
    s_cbranch_scc0 {Lscan}_s
    s_mov_b32 s74, s75
    s_cmp_eq_u32 s75, 0xff
    s_cselect_b32 s77, 0x100, 0
    s_or_b32 s76, s76, s77
    """)
    if a.diag and 13 in a.only:
        a.stamp(13); a("s_bcnt1_i32_b32 s98, s76\nv_writelane_b32 v2, s98, 14")
    def rd(g):
        b = FB3 + 16 * (g & 1)
        for n in range(4):
            T = n & 1; d = b + 4 * n
            if g < 8:
                a(f"ds_read_b128 {vr(d,4)}, v{vB} offset:{(2*g+(n>>1))*2048 + T*256}")
            else:
                va = vB + 1 if n < 2 else t[2]
                a(f"ds_read2_b32 {vr(d,2)}, v{va} offset0:{16*T} offset1:{16*T+32}")
                a(f"ds_read2_b32 {vr(d+2,2)}, v{va} offset0:{16*T+64} offset1:{16*T+96}")
    def mm(g, younger):
        b = FB3 + 16 * (g & 1); k = 2 if g == 8 else 1
        for n in range(4):
            T = n & 1
            a(f"s_waitcnt lgkmcnt({younger + k*(3-n)})\nv_mfma_f32_16x16x32_bf16 {vr(ACC3+4*T,4)}, {vr(FA3[2*g+(n>>1)],4)}, {vr(b+4*n,4)}, {vr(ACC3+4*T,4)}")
    for g in range(9):
        a(f"L_e{g}:\ns_bitcmp1_b32 s76, {g}\ns_cbranch_scc1 L_r{g}")
    a(f"s_branch {Lscan}")
    for g in range(9):
        a(f"L_r{g}:")
        rd(g)
        a(f"s_branch L_p{g+1}")
    for g in range(1, 9):
        a(f"L_f{g}:")
        mm(g - 1, 0)
        a(f"s_branch L_e{g+1}" if g < 8 else f"s_branch {Lscan}")
    for g in range(1, 9):
        a(f"L_p{g}:\ns_bitcmp0_b32 s76, {g}\ns_cbranch_scc1 L_f{g}")
        rd(g)
        mm(g - 1, 8 if g == 8 else 4)
    a("L_p9:")
    W = 8
    mm(8, 0)
    a.stamp(21)
    for T in range(2):
        for h in range(2):
            a(f"v_lshlrev_b32 v{W+4*T+2*h}, 16, v{AV+2*T+h}\nv_and_b32 v{W+4*T+2*h+1}, 0xffff0000, v{AV+2*T+h}")
    for T in range(2):
        a(f"v_sub_f32 v{W+8+T}, 1.0, v{vG+T}")
        for i in range(4): a(f"v_mul_f32 v{W+4*T+i}, v{vG+T}, v{W+4*T+i}")
    a(f"v_cvt_pk_bf16_f32 v{W+8}, v{W+8}, v{W+9}\nv_and_b32 v{W+9}, 0xffff0000, v{W+8}\nv_lshlrev_b32 v{W+8}, 16, v{W+8}")
    for T in range(2):
        for i in range(4): a(f"v_fmac_f32 v{W+4*T+i}, v{W+8+T}, v{ACC3+4*T+i}")
        a(f"""
        v_cvt_pk_bf16_f32 v{W+12+2*T}, v{W+4*T}, v{W+4*T+1}
        v_cvt_pk_bf16_f32 v{W+13+2*T}, v{W+4*T+2}, v{W+4*T+3}
        buffer_store_dwordx2 {vr(W+12+2*T,2)}, v{vOut}, s[{R_A}:{R_A+3}], s{sK0 if T == 0 else sK1} offen
        """)
    a(f"s_branch {Lend}")
    Lpl, Lpc, Lpd = a.label("pl"), a.label("pc"), a.label("pd")
    a(f"{Lp9}:")
    lds_spin(a, t[0], t[1], 4, sT, off=C_E + 4)
    lds_spin(a, t[0], t[1], 4, sT, off=C_E + 8)
    a(f"""
    s_setprio {os.environ.get('SPRIO', '3')}
    s_sub_u32 s77, s{S_WAVE}, 9
    s_mul_i32 s77, s77, 3
    s_lshl_b32 s{sT}, s77, 2
    v_add_u32 v{t[2]}, s{sT}, v1
    s_lshr_b32 s{sT}, s{sQT3}, 1
    s_lshl_b32 s{sT}, s{sT}, 12
    s_add_u32 s{sT}, s{sT}, {FL_O}
    v_lshl_add_u32 v{t[2]}, v{t[2]}, 7, s{sT}
    s_cmp_eq_u32 s77, 6
    s_movk_i32 s74, 0xfff
    s_cselect_b32 s74, 0xff, s74
    s_mov_b32 s75, 0
    s_mul_i32 s78, s{sQT3}, {36*1024}
    s_add_u32 s78, s78, {OF_OFF}
    v_mov_b32 v{t[0]}, {CNT}
    s_mov_b32 s{S_SPIN}, {SPIN_MAX}
    {Lpl}:
    s_mov_b32 exec_lo, s74
    s_mov_b32 exec_hi, 0
    buffer_load_dword v{t[3]}, v{t[2]}, {WS}, 0 offen sc1
    s_cmp_eq_u32 s75, 0
    s_cbranch_scc1 {Lpd}
    s_mov_b64 exec, 1
    s_waitcnt vmcnt(1)
    ds_or_b32 v{t[0]}, v{t[1]} offset:{C_F}
    s_mov_b32 exec_lo, s74
    {Lpd}:
    s_waitcnt vmcnt(0)
    v_cmp_ne_u32 vcc, s{S_TAG}, v{t[3]}
    s_mov_b64 exec, -1
    s_sub_u32 s{S_SPIN}, s{S_SPIN}, 1
    s_cselect_b32 vcc_lo, 0, vcc_lo
    s_orn2_b32 s76, vcc_lo, s74
    s_mov_b32 s75, 0
    """)
    for i in range(3):
        L = a.label("og")
        a(f"""
        s_and_b32 s{sT}, s76, {0xf << (4*i)}
        s_cbranch_scc1 {L}
        s_andn2_b32 s74, s74, {0xf << (4*i)}
        s_add_u32 s{sT}, s77, {i}
        s_bitset1_b32 s75, s{sT}
        s_lshl_b32 s{sT2}, s{sT}, 12
        s_add_u32 m0, s{sT2}, {OZ}
        s_add_u32 s{sT2}, s{sT2}, s78
        """)
        for n in range(4):
            a(f"buffer_load_dwordx4 v{vL16}, {WS}, s{sT2} offen offset:{1024*n}{LD} lds")
        a(f"""
        s_lshl_b32 s{sT2}, s{sT}, 9
        s_add_u32 m0, s{sT2}, {OZ + 32768}
        s_add_u32 s{sT2}, s{sT2}, s78
        s_add_u32 s{sT2}, s{sT2}, 32768
        s_mov_b64 exec, 0xffffffff
        buffer_load_dwordx4 v{vL16}, {WS}, s{sT2} offen{LD} lds
        s_mov_b64 exec, -1
        {L}:
        """)
    a(f"""
    s_cmp_eq_u32 s75, 0
    s_cbranch_scc1 {Lpc}
    v_mov_b32 v{t[1]}, s75
    s_cmp_eq_u32 s74, 0
    s_cbranch_scc0 {Lpl}
    s_mov_b64 exec, 1
    s_waitcnt vmcnt(0)
    ds_or_b32 v{t[0]}, v{t[1]} offset:{C_F}
    s_mov_b64 exec, -1
    """)
    a.stamp(20)
    a(f"""
    s_branch {Lend}
    {Lpc}:
    s_sleep {os.environ.get('OSLEEP', '3')}
    s_branch {Lpl}
    """)
    a.c("softmax ran without max subtraction: valid only if the row sums stayed in a safe range, else redo with the true max")
    a(f"""{Lfin}:
    v_permlane32_swap_b32 v{O0+10}, v{O1+10}
    L_norm:
    s_nop 0
    v_rcp_f32 v{t[0]}, v{O0+10}
    v_rcp_f32 v{t[2]}, v{O1+10}
    """)
    for i in range(0, 8, 2): a(f"v_pk_mul_f32 {vr(O0+i,2)}, {vr(O0+i,2)}, {vr(t[0],2)} op_sel_hi:[1,0]")
    for i in range(4): a(f"v_cvt_pk_bf16_f32 v{8+i}, v{O0+2*i}, v{O0+2*i+1}")
    a(f"buffer_store_dwordx4 v[8:11], v{vL16}, {WS}, s{sOM} offen{ST}")
    for i in range(0, 8, 2): a(f"v_pk_mul_f32 {vr(O1+i,2)}, {vr(O1+i,2)}, {vr(t[2],2)} op_sel_hi:[1,0]")
    a(f"v_cndmask_b32 v{t[0]}, v{t[2]}, v{t[0]}, s[76:77]")
    for i in range(4): a(f"v_cvt_pk_bf16_f32 v{12+i}, v{O1+2*i}, v{O1+2*i+1}")
    a(f"""
    buffer_store_dwordx4 v[12:15], v{vL16}, {WS}, s66 offen{ST}
    v_pk_mul_f32 {vr(O0+8,2)}, {vr(O0+8,2)}, {vr(t[0],2)} op_sel_hi:[1,0]
    v_cvt_pk_bf16_f32 v16, v{O0+8}, v{O0+9}
    buffer_store_dword v16, v{vXo}, {WS}, s{sOX} offen{ST}
    """)
    a.stamp(19)
    lds_inc(a, t[0], t[1], saddr=82, off=C_E)
    a(f"""
    v_min_f32 v{t[2]}, v{O0+10}, v{O1+10}
    v_max_f32 v{t[3]}, v{O0+10}, v{O1+10}
    v_cmp_le_f32 s[74:75], s72, v{t[2]}
    v_cmp_ge_f32 vcc, s73, v{t[3]}
    v_add_f32 v{t[2]}, v{O0+8}, v{O0+9}
    s_and_b64 s[74:75], s[74:75], vcc
    """)
    if 'wtlate' in EXP: lds_inc(a, t[0], t[1], off=C_O)
    for i in range(0, 8, 2):
        a(f"v_add_f32 v{O0+i}, v{O0+i}, v{O0+i+1}\nv_add_f32 v{O1+i}, v{O1+i}, v{O1+i+1}")
    a(f"""
    v_add_f32 v{O0}, v{O0}, v{O0+2}
    v_add_f32 v{O0+4}, v{O0+4}, v{O0+6}
    v_add_f32 v{O1}, v{O1}, v{O1+2}
    v_add_f32 v{O1+4}, v{O1+4}, v{O1+6}
    v_add_f32 v{O0}, v{O0}, v{O0+4}
    v_add_f32 v{O1}, v{O1}, v{O1+4}
    v_add_f32 v{t[2]}, v{t[2]}, v{O0}
    v_add_f32 v{t[2]}, v{t[2]}, v{O1}
    v_cmp_class_f32 vcc, v{t[2]}, s64
    s_and_b64 s[74:75], s[74:75], vcc
    s_or_b64 s[74:75], s[74:75], s[62:63]
    s_cmp_eq_u64 s[74:75], -1
    s_cbranch_scc0 L_fallback
    """)
    a(f"v_mov_b32 v{t[0]}, s{S_TAG}\nv_lshlrev_b32 v{t[1]}, 2, v1\ns_mov_b64 exec, 0xffff\ns_waitcnt vmcnt(0)\nbuffer_store_dword v{t[0]}, v{t[1]}, {WS}, s{sFO} offen sc1\ns_mov_b64 exec, -1")
    a.stamp(20)
    a(f"""
    s_lshl_b32 s{sT}, s2, 4
    s_add_u32 s{sT}, s{sT}, s{S_WAVE}
    s_cmp_lg_u32 s{sT}, 12
    s_cbranch_scc1 {Lend}
    s_mov_b32 s{sT2}, {FL_OFF}
    """)
    flag_store(a, t[0], sT2)
    a(f"{Lend}:")
    def cold():
        a("L_fallback:")
        lds_spin(a, t[0], t[1], 4, sT, saddr=82, off=C_E)
        fallback(a, r, t, vL16, sKV, sQP, sT, sT2)
        a(f"""
        s_mov_b32 s76, -1
        s_mov_b32 s77, 0
        s_mov_b32 s82, {CNT+12}
        s_mov_b64 s[62:63], -1
        v_cndmask_b32 v{O0+8}, v{O1+8}, v{O0+8}, s[76:77]
        v_cndmask_b32 v{O0+9}, v{O1+9}, v{O0+9}, s[76:77]
        s_branch L_norm
        """)
    return cold

def fallback(a, r, t, vL16, sKV, sQP, sT, sT2):
    S, NM = r.S[0], r.S[1]
    sI, sP, sLds = 76, 77, 82
    vM, vKxo = r.aK, r.aKx
    a(f"""
    s_lshl_b32 s{sT}, s{sQP}, 11
    s_add_u32 s{sLds}, s{sT}, {REG_B + 3*BLK}
    v_and_b32 v{vKxo}, 31, v1
    v_lshlrev_b32 v{vKxo}, 3, v{vKxo}
    v_mov_b32 v{r.Kx+1}, 0
    """)
    for i in range(4): a(f"v_add_u32 v{r.aV+i}, s{sT}, v{r.aV+i}")
    for X in range(2):
        O = r.O[X]
        Lp, Lt, Lp2, Lnx, Ldn = a.label("fbpass"), a.label("fbtile"), a.label("fbp2"), a.label("fbnx"), a.label("fbdone")
        a(f"v_mov_b32 v{vM}, 0xff800000\ns_mov_b32 s{sP}, 0")
        for i in range(16): a(f"v_mov_b32 v{NM+i}, 0\nv_mov_b32 v{O+i}, 0")
        a(f"""{Lp}:
        s_mov_b32 s{sI}, 0
        {Lt}:
        s_lshr_b32 s{sT}, s{sI}, 3
        s_mul_i32 s{sT}, s{sT}, {BLK}
        s_add_u32 s{sT}, s{sT}, s{sKV}
        s_and_b32 s{sT2}, s{sI}, 7
        s_lshl_b32 s78, s{sT2}, 10
        s_add_u32 s78, s78, s{sT}
        buffer_load_dwordx4 {vr(r.K,4)}, v{vL16}, {WS}, s78 offen{LD}
        s_and_b32 s78, s{sI}, 6
        s_lshl_b32 s78, s78, 7
        s_and_b32 s79, s{sI}, 1
        s_lshl_b32 s79, s79, 2
        s_add_u32 s78, s78, s79
        s_add_u32 s78, s78, s{sT}
        s_add_u32 s78, s78, {KX_OFF}
        buffer_load_dword v{r.Kx}, v{vKxo}, {WS}, s78 offen{LD}
        s_mul_i32 s78, s{sT2}, 1280
        s_add_u32 s78, s78, s{sT}
        s_add_u32 s78, s78, {V_OFF}
        s_mov_b32 m0, s{sLds}
        s_nop 0
        buffer_load_dwordx4 v{vL16}, {WS}, s78 offen{LD} lds
        s_mov_b64 exec, 0xffff
        buffer_load_dwordx4 v{vL16}, {WS}, s78 offen offset:1024{LD} lds
        s_mov_b64 exec, -1
        s_waitcnt vmcnt(0)
        v_mfma_f32_32x32x8_bf16 {vr(S,16)}, {vr(r.Kx,2)}, {vr(r.Qx[X],2)}, {vr(NM,16)}
        v_mfma_f32_32x32x16_bf16 {vr(S,16)}, {vr(r.K,4)}, {vr(r.Qm[X],4)}, {vr(S,16)}
        ds_read_b64_tr_b16 {vr(r.V0,2)}, v{r.aV}
        ds_read_b64_tr_b16 {vr(r.V0+2,2)}, v{r.aV+1}
        ds_read_b64_tr_b16 {vr(r.V1,2)}, v{r.aV+2}
        ds_read_b64_tr_b16 {vr(r.V1+2,2)}, v{r.aV+3}
        s_waitcnt lgkmcnt(0)
        s_nop 15
        s_cmp_lg_u32 s{sP}, 0
        s_cbranch_scc1 {Lp2}
        """)
        for i in range(8): a(f"v_max3_f32 v{vM}, v{S+2*i}, v{S+2*i+1}, v{vM}")
        a(f"s_branch {Lnx}\n{Lp2}:")
        E(a, S, 0, 16)
        a(f"""
        s_nop 1
        v_smfmac_f32_32x32x32_bf16 {vr(O,16)}, {vr(r.V0,4)}, {vr(S,8)}, v{r.idx}
        v_smfmac_f32_32x32x32_bf16 {vr(O,16)}, {vr(r.V1,4)}, {vr(S+8,8)}, v{r.idx}
        {Lnx}:
        s_add_u32 s{sI}, s{sI}, 1
        s_cmp_lt_u32 s{sI}, 64
        s_cbranch_scc1 {Lt}
        s_cmp_lg_u32 s{sP}, 0
        s_cbranch_scc1 {Ldn}
        v_mov_b32 v{t[2]}, v{vM}
        s_nop 1
        v_permlane32_swap_b32 v{vM}, v{t[2]}
        s_nop 1
        v_max_f32 v{vM}, v{vM}, v{t[2]}
        """)
        for i in range(16): a(f"v_sub_f32 v{NM+i}, 0, v{vM}")
        a(f"""
        s_mov_b32 s{sP}, 1
        s_branch {Lp}
        {Ldn}:
        s_nop 15
        """)
```

```python
class Asm:
    def __init__(self):
        self.lines = []
        self.nlabel = 0
    def __call__(self, s):
        for ln in s.split("\n"):
            ln = ln.strip()
            if ln:
                self.lines.append(ln if ln.endswith(":") else "    " + ln)
    def c(self, s):
        self.lines.append("    ; " + s)
    def label(self, base):
        self.nlabel += 1
        return f"L_{base}_{self.nlabel}"
    diag = False
    probe = None
    lite = False
    jit = int(__import__('os').environ.get('JIT', '0'))
    def jitter(self):
        import random
        self.nlabel += 1
        rnd = random.Random(self.jit * 1000 + self.nlabel)
        L = f"L_jit_{self.nlabel}"
        self(f"s_cselect_b32 s99, 1, 0\ns_lshl_b32 s98, s2, 4\ns_add_u32 s98, s98, s3\ns_mul_i32 s98, s98, {rnd.randrange(1 << 30) | 1}\ns_bfe_u32 s98, s98, 0x2000c\ns_cmp_lg_u32 s98, 0\ns_cbranch_scc1 {L}\ns_sleep {rnd.choice([10, 30, 60, 120])}\n{L}:\ns_cmp_eq_u32 s99, 1")
    only = [int(x) for x in __import__('os').environ.get('ONLY', '').split(',') if x]
    cyc = [int(x) for x in __import__('os').environ.get('CYC', '').split(',') if x]
    def stamp(self, n, real=True):
        if self.jit: self.jitter()
        if self.probe is not None and self.probe == n:
            self("s_memrealtime s[94:95]\ns_waitcnt lgkmcnt(0)")
        if n >= 32 or not self.diag or (self.lite and n not in (29, 31)): return
        if self.only and n not in self.only + [29, 31]: return
        if self.cyc:
            if n not in self.cyc + [29, 31]: return
            if n in self.cyc: real = False
        self(f"s_mem{'real' if real else ''}time s[98:99]\ns_waitcnt lgkmcnt(0)\nv_writelane_b32 v2, s98, {n}")
    def bar(self, k):
        if self.diag and 1 <= k <= 8:
            self(f"s_memrealtime s[{84+2*((k-1)&3)}:{85+2*((k-1)&3)}]" if (k - 1) // 4 == self.barset else "s_nop 0")
        self("s_barrier")
    barset = int(__import__('os').environ.get('BARSET', '0'))
    def barflush(self):
        if self.diag:
            self("s_waitcnt lgkmcnt(0)")
            for i in range(4): self(f"v_writelane_b32 v2, s{84+2*i}, {9+i}")
    def text(self):
        return "\n".join(self.lines) + "\n"

def vr(b, n=1):
    return f"v{b}" if n == 1 else f"v[{b}:{b+n-1}]"
def sr(b, n=1):
    return f"s{b}" if n == 1 else f"s[{b}:{b+n-1}]"

class Regs:
    def __init__(self, start, limit):
        self.p = start; self.limit = limit; self.hi = start
    def alloc(self, n=1, align=None):
        if align is None:
            align = 1 if n == 1 else 2
        self.p = (self.p + align - 1) // align * align
        b = self.p
        self.p += n
        assert self.p <= self.limit, f"register overflow {self.p} > {self.limit}"
        self.hi = max(self.hi, self.p)
        return b
    def mark(self): return self.p
    def release(self, m): self.p = m
```

```python
from asmlib import *
from layout import *
import math, struct, os
EXP = os.environ.get('EXP', '').split(',')

S_WAVE = 3
P_U, P_LA, P_AI, P_CR, P_CI, P_DT, P_D = 16, 18, 20, 22, 24, 26, 28
P_W, P_WO, P_G, P_OUT, P_DBG, P_WS = 32, 34, 36, 38, 40, 42
R_X, R_W, R_WS, R_A, R_B, R_C, R_D = 44, 48, 52, 56, 60, 64, 68
S_TAG = 30
S_SPIN = 31
S_DV = 70
S_FQ = 67
S_C2 = 68
S_CB = 71
WS = f"s[{R_WS}:{R_WS+3}]"
ST = " sc1"
LD = " sc1"

SLOT = 32768
KG_BASE = 4 * SLOT
KG_STRIDE = 4608
GT = KG_BASE + 6 * KG_STRIDE
CNT = 163328
C_RDY, C_1, C_2, C_Q, C_S, C_O, C_F, C_E, C_P = 0, 16, 32, 48, 64, 72, 76, 80, 96
C_FA = 68
C_TG = 224
C_Y, C_A, C_FREE, C_YR, C_KV = 136, 140, 144, 160, 192
VM_Y = 0
REG_B = 4 * BLK
CP = 4160
CH = 4 * CP + 512 + 4096
UOFF = 4 * CP
CA = 3 * SLOT
QST = REG_B
assert CA + 3 * CH <= CNT and CA + 2 * CH <= GT and QST + 9216 <= CA
NBAR1 = 9
C3MASK = int(os.environ.get('C3MASK', '0xbf40'), 0)
UK = int(os.environ.get('UK', '0'))
LEAD = 3 if 'lead3' in EXP else 2
SPIN_MAX = 1 << 20

def chan(a, d, scs):
    a(f"s_lshl_b32 s{d}, s{scs}, 8\ns_add_u32 s{d}, s{d}, s{S_CB}\ns_cmp_eq_u32 s{scs}, 2\ns_cselect_b32 s{d}, s{S_C2}, s{d}")

def area(a, d, scs):
    a(f"s_mul_i32 s{d}, s{scs}, {CH}\ns_add_u32 s{d}, s{d}, {CA}")

def srd(a, r, p, nbytes):
    a(f"s_mov_b32 s{r}, s{p}\ns_mov_b32 s{r+1}, s{p+1}\ns_mov_b32 s{r+2}, {nbytes}\ns_mov_b32 s{r+3}, 0x20000")

LOG2E = 1.4426950408889634
def f32r(x): return struct.unpack("<f", struct.pack("<f", x))[0]
L_HI = f32r(LOG2E); L_LO = f32r(LOG2E - L_HI)
I2PI = 1.0 / (2 * math.pi)
I_HI = f32r(I2PI); I_LO = f32r(I2PI - I_HI)
LN2 = math.log(2.0)

def lds_inc(a, va, vb, saddr=None, off=0, rtn=None):
    if getattr(a, 'jit', 0): a.jitter()
    if saddr is None: a(f"v_mov_b32 v{va}, {CNT}")
    else: a(f"v_mov_b32 v{va}, s{saddr}")
    a(f"v_mov_b32 v{vb}, 1\ns_mov_b64 exec, 1")
    if rtn is None:
        a(f"ds_add_u32 v{va}, v{vb} offset:{off}\ns_mov_b64 exec, -1")
    else:
        a(f"ds_add_rtn_u32 v{vb}, v{va}, v{vb} offset:{off}\ns_mov_b64 exec, -1\ns_waitcnt lgkmcnt(0)\nv_readfirstlane_b32 s{rtn}, v{vb}")

def lds_spin(a, va, vb, target, stmp, saddr=None, off=0):
    L, Ld = a.label("lspin"), a.label("lsdone")
    if saddr is None: a(f"v_mov_b32 v{va}, {CNT}")
    else: a(f"v_mov_b32 v{va}, s{saddr}")
    a(f"""
    s_mov_b32 s{S_SPIN}, {SPIN_MAX}
    {L}:
    ds_read_b32 v{vb}, v{va} offset:{off}
    s_waitcnt lgkmcnt(0)
    v_readfirstlane_b32 s{stmp}, v{vb}
    s_cmp_ge_u32 s{stmp}, {target}
    s_cbranch_scc1 {Ld}
    s_sleep {os.environ.get('LSLEEP', '1')}
    s_sub_u32 s{S_SPIN}, s{S_SPIN}, 1
    s_cbranch_scc0 {L}
    {Ld}:
    """)
    if getattr(a, 'jit', 0): a.jitter()

def flag_line(a, vt, va, soff):
    a(f"""
    v_mov_b32 v{vt}, s{S_TAG}
    v_lshlrev_b32 v{va}, 2, v1
    s_mov_b64 exec, {os.environ.get('FLEX', '0xffff')}
    buffer_store_dword v{vt}, v{va}, {WS}, s{soff} offen sc1
    s_mov_b64 exec, -1
    """)

def flag_store(a, vt, soff):
    a(f"""
    v_mov_b32 v{vt}, s{S_TAG}
    s_mov_b64 exec, 1
    buffer_store_dword v{vt}, off, {WS}, s{soff} sc1
    s_mov_b64 exec, -1
    """)

def poll_issue(a, vd, n, voff, off):
    w = {1: "dword", 4: "dwordx4"}[n]
    a(f"buffer_load_{w} {vr(vd,n)}, v{voff}, {WS}, 0 offen offset:{off & 4095} sc1" if off < 4096 else
      f"s_movk_i32 s{S_SPIN}, {off}\nbuffer_load_{w} {vr(vd,n)}, v{voff}, {WS}, s{S_SPIN} offen sc1")

def poll_wait(a, vd, n, voff, soff_or_imm, issued=False):
    L, Lc, Ld = a.label("poll"), a.label("pollchk"), a.label("polld")
    w = {1: "dword", 4: "dwordx4"}[n]
    a(f"s_mov_b32 s{S_SPIN}, {SPIN_MAX}")
    if issued: a(f"s_branch {Lc}")
    a(f"""
    {L}:
    buffer_load_{w} {vr(vd,n)}, v{voff}, {WS}, 0 offen offset:{soff_or_imm} sc1
    {Lc}:
    s_waitcnt vmcnt(0)
    """)
    if n == 4:
        a(f"""
        v_xor_b32 v{vd}, s{S_TAG}, v{vd}
        v_xor_b32 v{vd+1}, s{S_TAG}, v{vd+1}
        v_xor_b32 v{vd+2}, s{S_TAG}, v{vd+2}
        v_xor_b32 v{vd+3}, s{S_TAG}, v{vd+3}
        v_or3_b32 v{vd}, v{vd}, v{vd+1}, v{vd+2}
        v_or_b32 v{vd}, v{vd}, v{vd+3}
        v_cmp_ne_u32 vcc, 0, v{vd}
        """)
    else:
        a(f"v_cmp_ne_u32 vcc, s{S_TAG}, v{vd}")
    a(f"""
    s_cbranch_vccz {Ld}
    s_sleep {os.environ.get('PSLEEP', '6')}
    s_sub_u32 s{S_SPIN}, s{S_SPIN}, 1
    s_cbranch_scc0 {L}
    {Ld}:
    """)

class Lgkm:
    def __init__(self, a): self.a = a; self.q = []; self.done = 0
    def load(self, txt, regs=()):
        self.a(txt); self.q.append(set(regs))
    def need(self, regs):
        regs = set(regs); last = -1
        for i, s in enumerate(self.q):
            if s & regs: last = i
        if last >= self.done:
            n = min(len(self.q) - 1 - last, 15)
            self.a(f"s_waitcnt lgkmcnt({n})")
            self.done = len(self.q) - n

def rng(b, n): return range(b, b + n)

sRB, sCT, sJ0 = 4, 5, 11

KG_T = [120, 121, 122, 123, 124, 125]
KG_C = 126
sKU, sKC = 65, 66
YB, YS = 32768, 32 * 272

def head(a, name, endlabel, Lkg, Lg):
    Lnp, Lnk = a.label("nopf"), a.label("nokg")
    t = KG_T
    a(f"""
    s_cmp_ge_u32 s2, 256
    s_cbranch_scc1 {endlabel}
    s_load_dwordx16 s[16:31], s[0:1], 0
    s_load_dwordx8 s[32:39], s[0:1], 64
    s_load_dwordx4 s[40:43], s[0:1], 96
    v_lshrrev_b32 v3, 6, v0
    v_and_b32 v1, 63, v0
    v_readfirstlane_b32 s{S_WAVE}, v3
    s_getpc_b64 s[8:9]
    L_pc:
    s_lshr_b32 s7, s2, 3
    s_and_b32 s{S_CB}, s2, 0xc0
    s_and_b32 s6, s7, 7
    s_or_b32 s{S_CB}, s{S_CB}, s6
    s_and_b32 s6, s2, 7
    s_lshl3_add_u32 s{S_CB}, s6, s{S_CB}
    s_lshr_b32 s{sRB}, s6, 1
    s_and_b32 s10, s7, 3
    s_lshl2_add_u32 s{sRB}, s{sRB}, s10
    s_and_b32 s{sCT}, s6, 1
    s_lshr_b32 s12, s7, 2
    s_lshl3_add_u32 s{sCT}, s{sCT}, s12
    """)
    if C3MASK:
        a(f"""
        s_bfm_b32 s13, s{sCT}, 0
        s_and_b32 s13, s13, {C3MASK}
        s_bcnt1_i32_b32 s13, s13
        s_and_b32 s{S_C2}, s6, 6
        s_lshl3_add_u32 s{S_C2}, s13, s{S_C2}
        s_and_b32 s13, s7, 1
        s_add_u32 s{S_C2}, s{S_C2}, s13
        s_addk_i32 s{S_C2}, 512
        s_bitcmp1_b32 {C3MASK}, s{sCT}
        s_cselect_b32 s{S_C2}, s{S_C2}, 576
        s_bitcmp1_b32 s2, 4
        s_cselect_b32 s{S_C2}, s{S_C2}, 576
        """)
    else:
        a(f"""
    s_mul_i32 s{S_C2}, s{sCT}, 43
    s_lshr_b32 s{S_C2}, s{S_C2}, 7
    s_lshl4_add_u32 s{S_C2}, s{S_C2}, s{sRB}
    s_addk_i32 s{S_C2}, 480
    s_bitcmp1_b32 {0x10000 if 'no3' in EXP else 0x9240}, s{sCT}
    s_cselect_b32 s{S_C2}, s{S_C2}, 576
        """)
    a(f"""
    s_cmp_lg_u32 s{S_WAVE}, 0
    s_cbranch_scc1 {Lnp}
    s_and_b32 s6, s7, 3
    s_lshl_b32 s6, s6, 13
    v_lshl_add_u32 v3, v1, 7, s6
    v_min_u32 v3, {endlabel}-L_pc, v3
    global_load_dword v3, v3, s[8:9]
    v_lshlrev_b32 v4, 2, v1
    v_add_u32 v4, {CNT}, v4
    v_mov_b32 v5, 0
    ds_write_b32 v4, v5
    {Lnp}:
    s_movk_i32 s{sKC}, 576
    s_mov_b32 s6, 0xcf3f
    s_bitcmp0_b32 s6, s{S_WAVE}
    s_cbranch_scc1 {Lnk}
    s_and_b32 s{sKU}, s{S_WAVE}, 7
    s_sub_u32 s6, s{sKU}, 2
    s_cmp_ge_u32 s{sKU}, 6
    s_cselect_b32 s{sKU}, s6, s{sKU}
    s_lshr_b32 s{sKC}, s{sKU}, 1
    s_lshl_b32 s{sKC}, s{sKC}, 8
    s_add_u32 s{sKC}, s{sKC}, s{S_CB}
    s_cmp_ge_u32 s{sKU}, 4
    s_cselect_b32 s{sKC}, s{S_C2}, s{sKC}
    s_min_u32 s6, s{sKC}, 575
    s_lshl_b32 s6, s6, 1
    v_mov_b32 v{t[4]}, s6
    s_and_b32 s13, s{sKU}, 1
    s_add_u32 s6, s6, s13
    s_lshl_b32 s6, s6, 7
    v_lshl_add_u32 v{t[0]}, v1, 1, s6
    s_waitcnt lgkmcnt(0)
    global_load_ushort v{t[3]}, v{t[4]}, s[{P_DT}:{P_DT+1}]
    global_load_ushort v{t[1]}, v{t[0]}, s[{P_LA}:{P_LA+1}]
    global_load_ushort v{t[2]}, v{t[0]}, s[{P_AI}:{P_AI+1}]
    s_cmp_ge_u32 s{S_WAVE}, 8
    s_cbranch_scc1 {Lnk}
    global_load_ushort v{KG_C}, v{t[0]}, s[{P_CR}:{P_CR+1}]
    global_load_ushort v{KG_C+1}, v{t[0]}, s[{P_CI}:{P_CI+1}]
    s_mov_b32 s5, s13
    s_barrier
    s_branch {Lkg}
    {Lnk}:
    s_lshl1_add_u32 s{sJ0}, s10, s12
    s_sub_u32 s8, s{sJ0}, 9
    s_cmp_ge_u32 s{sJ0}, 9
    s_cselect_b32 s{sJ0}, s8, s{sJ0}
    s_cmp_lt_u32 s{S_WAVE}, 8
    s_cbranch_scc1 L_ld
    s_lshl_b32 s8, s{sCT}, 4
    s_add_u32 s8, s8, s{S_WAVE}
    s_cmp_eq_u32 s8, 13
    s_cbranch_scc1 L_gate_dma
    s_barrier
    s_branch {Lg}
    L_ld:
    """)

def fetch_tag(a, v):
    a(f"""
    s_load_dword s60, s[{P_WS}:{P_WS+1}], {FL_OFF}
    s_lshr_b32 s69, s{S_CB}, 1
    s_lshl_b32 s69, s69, 2
    s_load_dword s61, s[{P_D}:{P_D+1}], s69
    s_add_u32 s69, s69, 512
    s_load_dword s62, s[{P_D}:{P_D+1}], s69
    s_min_u32 s69, s{S_C2}, 575
    s_lshr_b32 s69, s69, 1
    s_lshl_b32 s69, s69, 2
    s_load_dword s63, s[{P_D}:{P_D+1}], s69
    v_mov_b32 v{v+4}, {CNT}
    s_waitcnt lgkmcnt(0)
    s_mul_i32 s60, s60, 0x9e3779b1
    s_add_u32 s60, s60, 0x7f4a7c15
    v_mov_b32 v{v}, s60
    v_mov_b32 v{v+1}, s61
    v_mov_b32 v{v+2}, s62
    v_mov_b32 v{v+3}, s63
    ds_write_b128 v{v+4}, {vr(v,4)} offset:{C_TG}
    s_waitcnt lgkmcnt(0)
    """)

def get_tag(a, va, vb):
    a(f"""
    s_and_b32 s69, s{S_WAVE}, 12
    s_add_u32 s69, s69, {CNT}
    v_mov_b32 v{va}, {CNT}
    v_mov_b32 v{vb}, s69
    ds_read_b32 v{va}, v{va} offset:{C_TG}
    ds_read_b32 v{vb}, v{vb} offset:{C_TG+4}
    s_waitcnt lgkmcnt(0)
    v_readfirstlane_b32 s{S_TAG}, v{va}
    v_readfirstlane_b32 s{S_DV}, v{vb}
    s_nop 1
    """)

def loader(a):
    sJ, sT, sCm, sAs, sLb, sInc, sXr = 6, 7, 8, 9, 10, 14, 15
    V = [4, 5, 6, 7]; t0, t1, t2, t3 = 8, 9, 10, 11
    Lx, Lc, Lsub, Lover, Lw, Lend = [a.label(x) for x in ("ldx", "ldc", "issue", "over", "ldw", "ldend")]
    a(f"""
    v_lshrrev_b32 v{t2}, 4, v1
    s_setprio 3
    s_mov_b32 s{R_X+3}, 0x20000
    s_mov_b32 s{sJ}, s{sJ0}
    s_cmp_eq_u32 s{S_WAVE}, 6
    s_cbranch_scc1 {Lx}
    v_and_b32 v{t0}, 15, v1
    v_lshlrev_b32 v{t1}, 2, v{t2}
    v_xor_b32 v{t0}, v{t0}, v{t1}
    v_lshrrev_b32 v{t1}, 2, v{t0}
    v_and_b32 v{t0}, 3, v{t0}
    v_cmp_eq_u32 vcc, 3, v{t1}
    v_mul_u32_u24 v{t1}, 9, v{t1}
    v_lshrrev_b32 v{t3}, 1, v{t0}
    v_add_u32 v{t1}, v{t1}, v{t3}
    v_lshl_add_u32 v{t1}, v{t0}, 1, v{t1}
    v_min_u32 v{t0}, 2, v{t0}
    v_mad_u32_u24 v{t0}, v{t0}, 9, 4
    v_cndmask_b32 v{t1}, v{t1}, v{t0}, vcc
    v_mul_u32_u24 v{t2}, 432, v{t2}
    s_mul_i32 s{sT}, s{sCT}, 27
    v_add3_u32 v{t1}, v{t1}, v{t2}, s{sT}
    v_lshlrev_b32 v{V[0]}, 3, v{t1}
    s_mov_b32 s72, {0xffffffff ^ (1<<15) ^ (1<<27)}
    s_mov_b32 s73, {0xffffffff ^ (1<<7) ^ (1<<19)}
    s_mov_b32 s{sCm}, {64*3456}
    s_mov_b32 s{sAs}, 55296
    s_movk_i32 s{sLb}, 16384
    s_movk_i32 s{sInc}, 12800
    s_mov_b32 s{sXr}, 0
    s_mov_b32 s{R_X+2}, {W_BYTES}
    s_waitcnt lgkmcnt(0)
    s_mov_b64 s[{R_X}:{R_X+1}], s[{P_W}:{P_W+1}]
    s_branch {Lc}
    {Lx}:
    v_lshrrev_b32 v{t0}, 3, v1
    s_lshl_b32 s{sT}, s{sRB}, 7
    v_add_u32 v{t1}, s{sT}, v{t0}
    v_mul_u32_u24 v{t1}, 1152, v{t1}
    v_and_b32 v{t3}, 7, v1
    v_xor_b32 v{t3}, v{t3}, v{t2}
    v_lshl_add_u32 v{V[0]}, v{t3}, 4, v{t1}
    s_mov_b64 s[72:73], -1
    s_movk_i32 s{sCm}, 128
    s_mov_b32 s{sAs}, 36864
    s_mov_b32 s{sLb}, 0
    s_movk_i32 s{sInc}, 8192
    s_mov_b32 s{sXr}, 64
    s_mov_b32 s{R_X+2}, {X_BYTES}
    s_waitcnt lgkmcnt(0)
    s_mov_b64 s[{R_X}:{R_X+1}], s[{P_U}:{P_U+1}]
    {Lc}:
    v_xor_b32 v{V[1]}, s{sXr}, v{V[0]}
    v_add_u32 v{V[1]}, s{sInc}, v{V[1]}
    s_lshl_b32 s{sInc}, s{sInc}, 1
    v_add_u32 v{V[2]}, s{sInc}, v{V[0]}
    v_add_u32 v{V[3]}, s{sInc}, v{V[1]}
    """)
    def issue(it):
        a(f"s_add_u32 m0, s{sLb}, {((-it) & 3) * SLOT}\ns_call_b64 s[12:13], {Lsub}")
    a.stamp(22)
    a("s_barrier")
    issue(0)
    a.stamp(23)
    for it in range(1, LEAD): issue(it)
    a(f"s_branch {Lover}\n{Lsub}:")
    a(f"s_mul_i32 s{sT}, s{sJ}, s{sCm}\ns_mov_b64 exec, s[72:73]")
    THR = int(os.environ.get('THR', '20')); THR1 = int(os.environ.get('THR1', '0'))
    for g in range(4):
        if THR: a(f"s_waitcnt vmcnt({THR})")
        for b in range(4):
            if THR1: a(f"s_waitcnt vmcnt({THR1})")
            a(f"buffer_load_dwordx4 v{V[b]}, s[{R_X}:{R_X+3}], s{sT} offen offset:{1024*b} lds")
        if g < 3:
            a(f"s_add_u32 m0, m0, 4096\ns_add_u32 s{sT}, s{sT}, s{sAs}")
    a(f"""
    s_mov_b64 exec, -1
    s_add_u32 s{sJ}, s{sJ}, 1
    s_cmp_eq_u32 s{sJ}, 9
    s_cselect_b32 s{sJ}, 0, s{sJ}
    s_setpc_b64 s[12:13]
    {Lover}:
    """)
    a.stamp(1)
    srd(a, R_WS, P_WS, WS_BYTES)
    a(f"""
    v_lshlrev_b32 v{t2}, 4, v1
    v_lshrrev_b32 v16, 4, v1
    v_bfe_u32 v17, v1, 2, 2
    v_lshl_add_u32 v18, v16, 3, v17
    v_bfe_u32 v19, v18, 1, 3
    v_bfe_u32 v17, v1, 1, 1
    v_xor_b32 v19, v19, v17
    v_lshlrev_b32 v19, 4, v19
    v_lshl_add_u32 v19, v18, 7, v19
    v_and_b32 v17, 1, v1
    v_lshl_add_u32 v19, v17, 3, v19
    s_and_b32 s74, s{sCT}, 8
    s_lshl_b32 s75, s74, 3
    v_xor_b32 v20, s75, v19
    v_xor_b32 v21, 32, v20
    v_and_b32 v17, 15, v1
    v_lshlrev_b32 v17, 6, v17
    v_lshl_add_u32 v17, v16, 4, v17
    s_lshl_b32 s74, s74, 10
    s_mul_i32 s75, s{sRB}, {36*4096}
    s_add_u32 s74, s74, s75
    s_add_u32 s74, s74, {UT_OFF}
    v_add_u32 v22, s74, v17
    """)
    def ut_task(it):
        skip = a.label("utskip")
        a(f"s_mov_b32 s78, 0\ns_cmp_lg_u32 s{S_WAVE}, 6\ns_cbranch_scc1 {skip}")
        if it == 1:
            a(f"s_and_b32 s74, s{sCT}, 7\ns_cmp_lg_u32 s74, 7\ns_cbranch_scc1 {skip}")
            a(f"s_add_u32 s74, s{sJ0}, 1\ns_cmp_eq_u32 s74, 9\ns_cselect_b32 s74, 0, s74\ns_lshl_b32 s74, s74, 14\nv_add_u32 v20, {3*SLOT}, v20\nv_add_u32 v21, {3*SLOT}, v21")
        else:
            a(f"s_lshl_b32 s74, s{sJ0}, 14")
        for m in range(2):
            for i in range(4):
                d = 24 + 32 * it + 16 * m + 4 * i
                a(f"ds_read_b64_tr_b16 {vr(d,2)}, v{20+m} offset:{4096*i}")
                a(f"ds_read_b64_tr_b16 {vr(d+2,2)}, v{21-m} offset:{4096*i + 512}")
            a("s_waitcnt lgkmcnt(0)")
            for i in range(4):
                d = 24 + 32 * it + 16 * m + 4 * i
                a(f"buffer_store_dwordx4 {vr(d,4)}, v22, {WS}, s74 offen offset:{1024*i}{ST}")
            if m == 0: a("s_add_u32 s74, s74, 4096\ns_mov_b32 s78, 1")
        a(f"{skip}:")
    assert LEAD == 2
    for k in range(9):
        left = min(LEAD - 1, 8 - k)
        if k in (UK + 1, UK + 2):
            L = a.label("w24")
            a(f"s_waitcnt vmcnt(24)\ns_cmp_eq_u32 s78, 1\ns_cbranch_scc1 {L}\ns_waitcnt vmcnt(16)\n{L}:")
        else:
            a(f"s_waitcnt vmcnt({16 * left})")
        if 'ldst' in EXP: a.stamp([24, 9, 10, 11, 12, 13, 26, 27, 28][k])
        if k == 0: a.stamp(40)
        a("s_barrier")
        if a.jit: a.jitter()
        n = k + LEAD
        if n <= 8: issue(n)
        if k == 7: get_tag(a, t0, t1)
        if k in (UK, UK + 1):
            if 'nout' in EXP: a('s_mov_b32 s78, 0')
            else: ut_task(k - UK)
    a.stamp(2)

def wt_load(a, sF, sT, sD2, s8, s9, s10, t0, t1, t2, WL):
    skip = a.label("nowt")
    srd(a, R_A, P_WO, WO_BYTES)
    a(f"""
    s_cmp_ge_u32 s{sF}, 648
    s_cbranch_scc1 {skip}
    v_lshrrev_b32 v{t0}, 4, v1
    v_lshrrev_b32 v{t1}, 1, v{t0}
    v_mul_u32_u24 v{t1}, 20, v{t1}
    v_and_b32 v{t2}, 1, v{t0}
    v_lshl_add_u32 v{t1}, v{t2}, 3, v{t1}
    v_mad_u32_u24 v{t2}, v{t0}, 36, 8
    v_lshlrev_b32 v{t2}, 1, v{t2}
    s_mul_i32 s{s8}, s{sF}, 3641
    s_lshr_b32 s{s8}, s{s8}, 16
    s_mul_i32 s{s9}, s{s8}, 18
    s_sub_u32 s{s9}, s{sF}, s{s9}
    s_mul_i32 s{sT}, s{s9}, {36*1152}
    s_sub_u32 s{s10}, s{s9}, 16
    s_mul_i32 s{s10}, s{s10}, {288*1152}
    s_movk_i32 s{sD2}, {4*1152}
    s_cmp_ge_u32 s{s9}, 16
    s_cselect_b32 s{sT}, s{s10}, s{sT}
    s_cselect_b32 s{sD2}, {36*1152}, s{sD2}
    s_cselect_b64 vcc, -1, 0
    v_cndmask_b32 v{t1}, v{t1}, v{t2}, vcc
    v_mul_u32_u24 v{t1}, 1152, v{t1}
    v_and_b32 v{t2}, 15, v1
    v_lshl_add_u32 v{t1}, v{t2}, 1, v{t1}
    s_lshl_b32 s{s8}, s{s8}, 5
    s_add_u32 s{sT}, s{sT}, s{s8}
    s_add_u32 s{sD2}, s{sD2}, s{sT}
    """)
    for e in range(8):
        a(f"buffer_load_ushort v{WL+e}, v{t1}, s[{R_A}:{R_A+3}], s{sT if e < 4 else sD2} offen offset:{(e&3)*1152}")
    a(f"{skip}:")

def wt_store(a, sF, WL, vL16):
    skip = a.label("wtskip")
    a(f"s_cmp_ge_u32 s{sF}, 648\ns_cbranch_scc1 {skip}")
    for e in range(4):
        a(f"v_lshl_or_b32 v{WL+e}, v{WL+2*e+1}, 16, v{WL+2*e}")
    a(f"""
    s_lshl_b32 s{sF}, s{sF}, 10
    s_add_u32 s{sF}, s{sF}, {WT_OFF}
    buffer_store_dwordx4 {vr(WL,4)}, v{vL16}, {WS}, s{sF} offen{ST}
    {skip}:
    """)

def gemm_waves(a):
    sT, sU, sTP = 7, 12, 13
    R = Regs(4, 120)
    t0, t1, t2, t3 = [R.alloc() for _ in range(4)]
    vXa = [[R.alloc() for _ in range(4)]]
    vWa = [R.alloc()]
    vFr = R.alloc()
    vL16 = R.alloc()
    NB = 2
    FX = [[R.alloc(4, 4), R.alloc(4, 4)] for _ in range(NB)]
    FW = [R.alloc(4, 4) for _ in range(NB)]
    ACC = [R.alloc(16, 4), R.alloc(16, 4)]
    STG = FX[0][0]
    WL = R.alloc()
    vGa = [R.alloc()]
    Lnw, Lng = a.label("nowt"), a.label("nogate")
    vCn, vOne, CV = R.alloc(), R.alloc(), R.alloc(2, 2)
    vSt = R.alloc()
    if 'yfirst' in EXP: kgen_y(a, FX[0][0]); a.stamp(23)
    a(f"""
    v_mov_b32 v{vCn}, {CNT}
    v_mov_b32 v{vOne}, 1
    s_and_b32 s{sU}, s{S_WAVE}, 3
    s_bfe_u32 s{sTP}, s{S_WAVE}, 0x10002
    v_lshlrev_b32 v{vL16}, 4, v1
    s_waitcnt lgkmcnt(0)
    """)
    a(f"s_lshl_b32 s83, s{sCT}, 4\ns_add_u32 s83, s83, s{sU}")
    Lnt, Lnu = a.label("notouch"), a.label("notlb")
    a(f"""
    s_cmp_lg_u32 s{S_WAVE}, 12
    s_cbranch_scc1 {Lnt}
    s_and_b32 s8, s{sCT}, 7
    s_add_u32 s8, s8, 8
    s_sub_u32 s9, s8, 9
    s_cmp_ge_u32 s8, 9
    s_cselect_b32 s8, s9, s8
    s_lshl_b32 s8, s8, 2
    s_and_b32 s9, s{sRB}, 3
    s_add_u32 s8, s8, s9
    s_mul_i32 s8, s8, {16*3456}
    s_mul_i32 s9, s{sCT}, 216
    s_add_u32 s8, s8, s9
    v_lshrrev_b32 v{t0}, 2, v1
    v_mul_u32_u24 v{t0}, 3456, v{t0}
    v_and_b32 v{t1}, 3, v1
    v_mul_u32_u24 v{t1}, 68, v{t1}
    v_add3_u32 v{t0}, v{t0}, v{t1}, s8
    global_load_dword v{WL}, v{t0}, s[{P_W}:{P_W+1}]
    """)
    fetch_tag(a, FX[0][0])
    a(f"{Lnt}:")
    a(f"""    v_and_b32 v{t0}, 31, v1
    v_lshrrev_b32 v{t1}, 5, v1
    v_bfe_u32 v{t2}, v1, 1, 3
    v_xor_b32 v{t2}, v{t2}, v{t1}
    v_lshlrev_b32 v{t2}, 4, v{t2}
    v_lshl_add_u32 v{t2}, v{t0}, 7, v{t2}
    s_lshl_b32 s{sT}, s{sTP}, 13
    v_add_u32 v{vXa[0][0]}, s{sT}, v{t2}
    """)
    for ks in range(1, 4):
        a(f"v_xor_b32 v{vXa[0][ks]}, {32*ks}, v{vXa[0][0]}")
    a(f"""
    v_bfe_u32 v{t0}, v1, 2, 2
    v_lshl_add_u32 v{t2}, v{t1}, 3, v{t0}
    v_lshlrev_b32 v{t2}, 8, v{t2}
    v_xor_b32 v{t0}, s{sU}, v{t0}
    v_lshl_add_u32 v{t2}, v{t0}, 6, v{t2}
    v_and_b32 v{t0}, 1, v1
    v_lshlrev_b32 v{t0}, 4, v{t0}
    v_and_b32 v{t3}, 2, v1
    v_lshl_add_u32 v{t0}, v{t3}, 2, v{t0}
    v_and_b32 v{t3}, 16, v1
    v_lshl_add_u32 v{t0}, v{t3}, 1, v{t0}
    v_lshlrev_b32 v{vWa[0]}, {28 if 'nooob' in EXP else 14}, v{t3}
    v_and_b32 v{t3}, 3, v1
    v_lshl_add_u32 v{t3}, v{t3}, 4, v{vWa[0]}
    s_cmp_eq_u32 s{sU}, 3
    s_cselect_b64 vcc, -1, 0
    v_cndmask_b32 v{t0}, v{t0}, v{t3}, vcc
    v_add_u32 v{vWa[0]}, v{t2}, v{t0}
    """)
    vVm, vQx, vKx, vVx = R.alloc(), R.alloc(), R.alloc(), R.alloc()
    sTile, sP, sTy, sHd, sO, sSc, sB = 10, 15, 74, 75, 76, 77, 78
    def epi_setup():
        a(f"""
        v_and_b32 v{t0}, 31, v1
        v_lshrrev_b32 v{t3}, 5, v1
        v_lshlrev_b32 v{vVm}, 5, v{t0}
        v_lshl_add_u32 v{vVm}, v{t3}, 4, v{vVm}
        v_and_b32 v{t1}, 4, v1
        v_xor_b32 v{t1}, 4, v{t1}
        v_lshlrev_b32 v{t1}, 5, v{t1}
        v_and_b32 v{t2}, 24, v1
        v_lshl_add_u32 v{t1}, v{t2}, 2, v{t1}
        v_and_b32 v{t2}, 3, v1
        v_lshl_add_u32 v{vVx}, v{t2}, 3, v{t1}
        v_lshlrev_b32 v{vQx}, 2, v{t0}
        v_lshlrev_b32 v{vKx}, 3, v{t0}
        s_lshl_b32 s{sTile}, s{sRB}, 1
        s_add_u32 s{sTile}, s{sTile}, s{sTP}
        s_lshl_b32 s{sTile}, s{sTile}, 1
        """)
        a(f"""
        s_mul_i32 s{sP}, s{sCT}, 3
        s_add_u32 s{sP}, s{sP}, s{sU}
        s_lshr_b32 s{sTy}, s{sP}, 4
        s_and_b32 s{sHd}, s{sP}, 15
        s_lshl_b32 s{sHd}, s{sHd}, 1
        s_cmp_eq_u32 s{sTy}, 0
        s_cselect_b32 s{sSc}, {fbits(QSCALE)}, 1.0
        s_lshr_b32 s79, s{sTile}, 3
        s_mul_i32 s79, s79, {BLK}
        s_mul_i32 s80, s{sHd}, {8*BLK}
        s_add_u32 s79, s79, s80
        s_add_u32 s79, s79, {KV_OFF}
        s_and_b32 s80, s{sTile}, 7
        s_lshl_b32 s81, s80, 10
        s_add_u32 s81, s81, s79
        s_mul_i32 s80, s80, 1280
        s_add_u32 s80, s80, s79
        s_add_u32 s80, s80, {V_OFF}
        s_lshl_b32 s79, s{sHd}, 6
        s_add_u32 s79, s79, s{sTile}
        s_lshl_b32 s79, s79, 10
        s_add_u32 s79, s79, {QF_OFF}
        s_mov_b32 s{sB}, {8*BLK}
        s_cmp_eq_u32 s{sTy}, 0
        s_cselect_b32 s{sO}, s79, s81
        s_cselect_b32 s{sB}, 0x10000, s{sB}
        s_movk_i32 s82, 1024
        s_cmp_eq_u32 s{sTy}, 2
        s_cselect_b32 s{sO}, s80, s{sO}
        s_cselect_b32 s82, 1280, s82
        s_cselect_b64 vcc, -1, 0
        v_cndmask_b32 v{vSt}, v{vL16}, v{vVm}, vcc
        s_mul_i32 s9, s{sCT}, {96 if 'fp' in EXP else 16}
        s_add_u32 s9, s9, s{sRB}
        s_lshl_b32 s9, s9, 7
        s_add_u32 s9, s9, {FL_P if 'fp' in EXP else FL_Q}
        """)
    sN, sX, sG = 14, 8, 6
    slow = []
    epi_setup()
    XS = [(44, 45, 46), (47, 48, 49), (50, 51, 59)]
    def extras_setup():
        L = a.label("nx")
        a(f"s_cmp_lg_u32 s{sU}, 3\ns_cbranch_scc1 {L}")
        for p in range(3):
            sTp, sA, sBb = XS[p]
            a(f"""
            s_mul_i32 s{sP}, s{sCT}, 3
            s_add_u32 s{sP}, s{sP}, {p}
            s_lshr_b32 s{sTp}, s{sP}, 4
            s_and_b32 s{sHd}, s{sP}, 15
            s_lshl_b32 s{sHd}, s{sHd}, 1
            s_lshr_b32 s79, s{sTile}, 3
            s_mul_i32 s79, s79, {BLK}
            s_mul_i32 s80, s{sHd}, {8*BLK}
            s_add_u32 s79, s79, s80
            s_and_b32 s80, s{sTile}, 6
            s_lshl_b32 s80, s80, 7
            s_add_u32 s80, s80, {KV_OFF+KX_OFF}
            s_and_b32 s81, s{sTile}, 7
            s_mul_i32 s81, s81, 1280
            s_add_u32 s81, s81, {KV_OFF+V_OFF+1024}
            s_cmp_eq_u32 s{sTp}, 1
            s_cselect_b32 s80, s80, s81
            s_add_u32 s79, s79, s80
            s_lshl_b32 s80, s{sHd}, 6
            s_add_u32 s80, s80, s{sTile}
            s_lshl_b32 s80, s80, 7
            s_add_u32 s80, s80, {QX_OFF}
            s_mov_b32 s81, {8*BLK}
            s_cmp_eq_u32 s{sTp}, 0
            s_cselect_b32 s{sA}, s80, s79
            s_cselect_b32 s81, 0x2000, s81
            s_add_u32 s{sBb}, s{sA}, s81
            """)
        a(f"{L}:")
    assert ACC[1] + 16 == FX[0][0] + 56
    srd(a, R_WS, P_WS, WS_BYTES)
    extras_setup()
    if 'yfirst' not in EXP: kgen_y(a, FX[0][0]); a.stamp(23)
    a('s_setprio 3')
    for tt in range(2):
        for i in range(16): a(f"v_mov_b32 v{ACC[tt]+i}, 0")
    a(f"""
    s_mov_b32 s{sN}, 1
    s_mov_b32 s{sX}, 0x18000
    s_mov_b32 s72, 0xffff0000
    s_mov_b32 s73, 0xffff0000
    v_lshrrev_b32 v{vFr}, 5, v1
    v_lshlrev_b32 v{vFr}, 4, v{vFr}
    v_add_u32 v{vFr}, {GT}, v{vFr}
    s_lshl_b32 s{sG}, s{sJ0}, 7
    v_add_u32 v{vGa[0]}, s{sG}, v{vFr}
    """)
    Lgate, Lj = a.label("gatel"), a.label("gj")
    def mainloop(gate):
        e = 1 if gate else 0
        Lloop = a.label("gloop")
        def Wrd(b, nk):
            a(f"ds_read_b64_tr_b16 {vr(FW[b],2)}, v{vWa[0]} offset:{16384+nk*4096}")
            a(f"ds_read_b64_tr_b16 {vr(FW[b]+2,2)}, v{vWa[0]} offset:{16384+nk*4096+1024}")
            if gate:
                a(f"s_mov_b64 exec, s[72:73]\nds_read_b128 {vr(FW[b],4)}, v{vGa[0]} offset:{32*nk}\ns_mov_b64 exec, -1")
        def step(ks, n, nk, mid=None):
            b = ks & 1
            a(f"s_waitcnt lgkmcnt({n})")
            a(f"v_mfma_f32_32x32x16_bf16 {vr(ACC[0],16)}, {vr(FW[b],4)}, {vr(FX[b][0],4)}, {vr(ACC[0],16)}")
            if mid: mid()
            if nk is not None: a(f"ds_read_b128 {vr(FX[b][0],4)}, v{vXa[0][nk]}")
            a(f"v_mfma_f32_32x32x16_bf16 {vr(ACC[1],16)}, {vr(FW[b],4)}, {vr(FX[b][1],4)}, {vr(ACC[1],16)}")
            if nk is not None:
                Wrd(b, nk)
                a(f"ds_read_b128 {vr(FX[b][1],4)}, v{vXa[0][nk]} offset:4096")
        a("s_barrier")
        a.stamp(1)
        for ks in range(2):
            Wrd(ks, ks)
            a(f"ds_read_b128 {vr(FX[ks][0],4)}, v{vXa[0][ks]}\nds_read_b128 {vr(FX[ks][1],4)}, v{vXa[0][ks]} offset:4096")
        a(f".p2align 3\n{Lloop}:")
        if a.jit: a.jitter()
        step(0, 4 + e, 2, mid=lambda: a(f"s_add_u32 s{sN}, s{sN}, 1\ns_add_u32 s{sG}, s{sG}, 128\ns_cmp_eq_u32 s{sG}, 1152\ns_cselect_b32 s{sG}, 0, s{sG}" if gate else f"s_add_u32 s{sN}, s{sN}, 1"))
        step(1, 4 + e, 3, mid=lambda: a(f"v_xor_b32 v{vXa[0][0]}, s{sX}, v{vXa[0][0]}\nv_xor_b32 v{vXa[0][1]}, s{sX}, v{vXa[0][1]}"))
        step(2, 4 + e, 0, mid=lambda: a(f"v_xor_b32 v{vWa[0]}, s{sX}, v{vWa[0]}\n" + (f"v_add_u32 v{vGa[0]}, s{sG}, v{vFr}\n" if gate else "") + "s_barrier"))
        step(3, 4 + e, 1, mid=lambda: a(f"v_xor_b32 v{vXa[0][2]}, s{sX}, v{vXa[0][2]}\nv_xor_b32 v{vXa[0][3]}, s{sX}, v{vXa[0][3]}"))
        a(f"s_xor_b32 s{sX}, s{sX}, 0x10000\ns_cmp_lt_u32 s{sN}, 9\ns_cbranch_scc1 {Lloop}")
        if 'early' in EXP:
            a(f"s_mov_b64 exec, 1\nds_add_u32 v{vCn}, v{vOne} offset:{C_FREE}\ns_mov_b64 exec, -1")
        step(0, 4 + e, 2); step(1, 4 + e, 3); step(2, 4 + e, None); step(3, 0, None)
    if 'noxu' in EXP:
        a(f"s_cmp_lg_u32 s{sU}, 3\ns_cbranch_scc1 L_xu")
        for _ in range(9): a("s_barrier")
        a(f"s_branch {Lj}\nL_xu:")
    a(f"s_cmp_eq_u32 s83, 3\ns_cbranch_scc1 {Lgate}")
    mainloop(False)
    a(f"{Lj}:")
    a.stamp(3)
    def cold_gate():
        a(f"{Lgate}:")
        mainloop(True)
        a(f"s_branch {Lj}")
    Lx, Ldone, Lns = a.label("extras"), a.label("gdone"), a.label("noscale")
    a(f"s_setprio 3\ns_nop 6\ns_cmp_eq_u32 s{sU}, 3\ns_cbranch_scc1 {Lx}\ns_cmp_lg_u32 s{sTy}, 0\ns_cbranch_scc1 {Lns}")
    for tt in range(2):
        for i in range(16):
            a(f"v_mul_f32 v{ACC[tt]+i}, s{sSc}, v{ACC[tt]+i}")
    a(f"{Lns}:")
    for tt in range(2):
        for p in range(2):
            dst = FX[tt][p]
            for i in range(4):
                a(f"v_cvt_pk_bf16_f32 v{dst+i}, v{ACC[tt]+8*p+2*i}, v{ACC[tt]+8*p+2*i+1}")
            if p == 0:
                a(f"buffer_store_dwordx4 {vr(dst,4)}, v{vSt}, {WS}, s{sO} offen{ST}")
            else:
                a(f"s_add_u32 s79, s{sO}, s{sB}")
                a(f"buffer_store_dwordx4 {vr(dst,4)}, v{vSt}, {WS}, s79 offen{ST}")
        if tt == 0:
            a(f"s_add_u32 s{sO}, s{sO}, s82")
    a(f"s_branch {Ldone}")
    cold_gate()
    a(f"{Lx}:")
    a(f"v_mov_b32 v{STG+1}, 0x3f80\nv_mov_b32 v{STG+3}, 0x3f80")
    for p in range(3):
        half = p & 1
        rb = 4 * (p >> 1)
        sTp, sA, sBb = XS[p]
        LK, LV, LN = a.label("xk"), a.label("xv"), a.label("xn")
        a(f"""
        s_mov_b32 exec_lo, {0 if half else -1}
        s_mov_b32 exec_hi, {-1 if half else 0}
        s_cmp_eq_u32 s{sTp}, 1
        s_cbranch_scc1 {LK}
        s_cmp_eq_u32 s{sTp}, 2
        s_cbranch_scc1 {LV}
        """)
        for tt in range(2):
            for i in range(4):
                a(f"v_mul_f32 v{ACC[tt]+rb+i}, {fbits(QSCALE)}, v{ACC[tt]+rb+i}")
            a(f"v_cvt_pk_bf16_f32 v{STG+4+2*tt}, v{ACC[tt]+rb}, v{ACC[tt]+rb+1}")
            a(f"v_cvt_pk_bf16_f32 v{STG+5+2*tt}, v{ACC[tt]+rb+2}, v{ACC[tt]+rb+3}")
            a(f"buffer_store_dword v{STG+4+2*tt}, v{vQx}, {WS}, s{sA} offen offset:{128*tt}{ST}")
            a(f"buffer_store_dword v{STG+5+2*tt}, v{vQx}, {WS}, s{sBb} offen offset:{128*tt}{ST}")
        a(f"""
        s_branch {LN}
        {LK}:
        v_cvt_pk_bf16_f32 v{STG+4}, v{ACC[0]+rb}, v{ACC[0]+rb+1}
        v_cvt_pk_bf16_f32 v{STG+5}, v{ACC[1]+rb}, v{ACC[1]+rb+1}
        v_cvt_pk_bf16_f32 v{STG+6}, v{ACC[0]+rb+2}, v{ACC[0]+rb+3}
        v_cvt_pk_bf16_f32 v{STG+7}, v{ACC[1]+rb+2}, v{ACC[1]+rb+3}
        buffer_store_dwordx2 {vr(STG+4,2)}, v{vKx}, {WS}, s{sA} offen{ST}
        buffer_store_dwordx2 {vr(STG+6,2)}, v{vKx}, {WS}, s{sBb} offen{ST}
        s_branch {LN}
        {LV}:
        """)
        for tt in range(2):
            a(f"v_cvt_pk_bf16_f32 v{STG}, v{ACC[tt]+rb}, v{ACC[tt]+rb+1}")
            a(f"v_cvt_pk_bf16_f32 v{STG+2}, v{ACC[tt]+rb+2}, v{ACC[tt]+rb+3}")
            a(f"buffer_store_dwordx2 {vr(STG,2)}, v{vVx}, {WS}, s{sA} offen offset:{1280*tt}{ST}")
            a(f"buffer_store_dwordx2 {vr(STG+2,2)}, v{vVx}, {WS}, s{sBb} offen offset:{1280*tt}{ST}")
        a(f"{LN}:")
    Lnf = a.label("nofq")
    a(f"""
    s_cmp_lg_u32 s{sCT}, 0
    s_cbranch_scc1 {Ldone}
    s_lshl_b32 s79, s{sTile}, 7
    s_add_u32 s79, s79, {G_OFF}
    buffer_store_dword v{ACC[0]+8}, v{vQx}, {WS}, s79 offen{ST}
    buffer_store_dword v{ACC[1]+8}, v{vQx}, {WS}, s79 offen offset:128{ST}
    {Ldone}:
    s_mov_b64 exec, -1
    """)
    if 'early' not in EXP:
        a(f"s_mov_b64 exec, 1\nds_add_u32 v{vCn}, v{vOne} offset:{C_FREE}\ns_mov_b64 exec, -1")
    a.stamp(14)
    get_tag(a, t0, t1)
    a(f"s_mov_b32 s{S_FQ}, s9")
    publish_q(a, t0, t1, 8)
    a.stamp(4)

def publish_q(a, t0, t1, st):
    L = a.label("nofq")
    if 'hintQ' not in EXP: a("s_waitcnt vmcnt(0)")
    lds_inc(a, t0, t1, off=C_S, rtn=st)
    a(f"s_cmp_lg_u32 s{st}, 7\ns_cbranch_scc1 {L}")
    if 'fp' in EXP:
        a(f"""
        v_mov_b32 v{t0}, s{S_TAG}
        v_lshrrev_b32 v{t1}, 3, v1
        v_lshlrev_b32 v{t1}, 9, v{t1}
        v_and_or_b32 v{t1}, v1, 7, v{t1}
        v_lshlrev_b32 v{t1}, 2, v{t1}
        s_mov_b32 exec_hi, 0xffff
        buffer_store_dword v{t0}, v{t1}, {WS}, s{S_FQ} offen sc1
        s_mov_b64 exec, -1
        """)
    else: flag_line(a, t0, t1, S_FQ)
    a(f"{L}:")

class Seg:
    def __init__(self): self.items = []
    def __call__(self, s):
        for ln in s.split("\n"):
            ln = ln.strip()
            if not ln: continue
            op = ln.split()[0]
            if ln.startswith(";"): c = 0
            elif op in ("v_exp_f32", "v_sin_f32", "v_cos_f32", "v_rcp_f32"): c = 8
            elif op.startswith("v_mfma"): c = 40
            elif op.startswith("ds_"): c = 12
            elif op == "s_waitcnt": c = 60
            else: c = 4
            self.items.append((ln, c))
    nl = 0
    def label(self, base):
        Seg.nl += 1
        return f"L_sg{base}_{Seg.nl}"
    def must_barrier(self): self.items.append(("@BAR", 0))
    def nobar(self, on): self.items.append(("@NOBAR" if on else "@OKBAR", 0))
    def emit(self, a, nbar, after=lambda k: None):
        must = sum(1 for l, _ in self.items if l == "@BAR")
        total = sum(c for _, c in self.items)
        first = float(os.environ.get('KGFIRST', '0.9')) * total
        first = min(first, sum(c for _, c in self.items[:[l for l, _ in self.items].index('@BAR')]) + 1)
        per = (total - first) / (nbar - (1 if first else 0))
        used = 0; acc = per - first if first else 0; ok = True; must_left = must
        for ln, c in self.items:
            if ln == "@BAR":
                a("s_barrier"); after(used); used += 1; must_left -= 1; acc = 0; continue
            if ln.startswith("@STAMP"): a.stamp(int(ln[6:])); continue
            if ln == "@NOBAR": ok = False; continue
            if ln == "@OKBAR": ok = True; continue
            if ok and acc >= per and used + must_left < nbar - 1:
                a("s_barrier"); after(used); used += 1; acc = 0
            a(ln); acc += c
        while used < nbar:
            a("s_barrier"); after(used); used += 1
        return total

def ilv(*seqs):
    seqs = [[l.strip() for l in x.strip().split("\n") if l.strip()] for x in seqs]
    out = []
    for i in range(max(len(x) for x in seqs)):
        for x in seqs:
            if i < len(x): out.append(x[i])
    return "\n".join(out)

class KG:
    def __init__(self, g, sK, tmp, vA2, vBh, vBl):
        self.g = g; self.t = KG_T; self.tmp = tmp
        self.sL, self.sLlo, self.sI, self.sIlo, self.sLn2 = range(sK, sK + 5)
        self.vA2, self.vBh, self.vBl = vA2, vBh, vBl
    def consts(self):
        return f"""
        s_mov_b32 s{self.sL}, {fbits(L_HI)}
        s_mov_b32 s{self.sLlo}, {fbits(L_LO)}
        s_mov_b32 s{self.sI}, {fbits(I_HI)}
        s_mov_b32 s{self.sIlo}, {fbits(I_LO)}
        s_mov_b32 s{self.sLn2}, {fbits(LN2)}
        """
    def expbf(self, x, t1, t2):
        return f"""
        v_lshlrev_b32 v{x}, 16, v{x}
        v_mul_f32 v{t1}, s{self.sL}, v{x}
        v_fma_f32 v{t2}, v{x}, s{self.sL}, -v{t1}
        v_exp_f32 v{t1}, v{t1}
        v_fma_f32 v{t2}, v{x}, s{self.sLlo}, v{t2}
        v_mul_f32 v{t2}, s{self.sLn2}, v{t2}
        v_fma_f32 v{x}, v{t1}, v{t2}, v{t1}
        v_cvt_pk_bf16_f32 v{x}, v{x}, v{x}
        v_and_b32 v{x}, 0xffff0000, v{x}
        """
    def prep(self):
        t, m = self.t, self.tmp
        return ilv(self.expbf(t[3], m[0], m[1]), self.expbf(t[1], m[2], m[3])) + f"""
        v_lshlrev_b32 v{t[2]}, 16, v{t[2]}
        v_mul_f32 v{t[1]}, v{t[1]}, v{t[3]}
        v_mul_f32 v{t[2]}, v{t[2]}, v{t[3]}
        v_mul_f32 v{self.vA2}, s{self.sL}, -v{t[1]}
        v_mul_f32 v{self.vBh}, s{self.sI}, v{t[2]}
        v_fma_f32 v{self.vBl}, v{t[2]}, s{self.sI}, -v{self.vBh}
        v_fma_f32 v{self.vBl}, v{t[2]}, s{self.sIlo}, v{self.vBl}
        """
    def cexp(self, d, p, k):
        fp = fbits(float(p)); r, e = self.tmp[2*k], self.tmp[2*k+1]
        return f"""
        v_mul_f32 v{r}, {fp}, v{self.vBh}
        v_mul_f32 v{e}, {fp}, v{self.vA2}
        v_fract_f32 v{r}, v{r}
        v_exp_f32 v{e}, v{e}
        v_fmac_f32 v{r}, {fp}, v{self.vBl}
        v_cos_f32 v{d}, v{r}
        v_sin_f32 v{d+1}, v{r}
        v_mul_f32 v{d}, v{d}, v{e}
        v_mul_f32 v{d+1}, v{d+1}, v{e}
        """
    def cmul(self, d, x, y):
        return f"""
        v_mul_f32 v{d}, v{x+1}, v{y+1}
        v_mul_f32 v{d+1}, v{x+1}, v{y}
        v_fma_f32 v{d}, v{x}, v{y}, -v{d}
        v_fmac_f32 v{d+1}, v{x}, v{y+1}
        """
    def cvt(self, d, x, conj):
        return f"v_cvt_pk_f16_f32 v{d}, v{x}, {'-' if conj else ''}v{x+1}"
    def rows(self, specs, vWr):
        g = self.g
        for i in range(0, len(specs), 4):
            grp = specs[i:i+4]; tt = self.tmp[(i & 4):(i & 4) + 4]
            for k, (x, y) in enumerate(grp):
                if y is not None: g(f"v_pk_mul_f16 v{tt[k]}, v{x}, v{y} op_sel:[0,0] op_sel_hi:[0,1]")
            for k, (x, y) in enumerate(grp):
                if y is not None: g(f"v_pk_fma_f16 v{tt[k]}, v{x}, v{y}, v{tt[k]} op_sel:[1,1,0] op_sel_hi:[1,0,1] neg_lo:[1,0,0]")
            src = [tt[k] if y is not None else x for k, (x, y) in enumerate(grp)]
            for k in range(0, len(grp), 2):
                if k + 1 < len(grp): g(f"ds_write2_b32 v{vWr[i>>2]}, v{src[k]}, v{src[k+1]} offset0:{68*k} offset1:{68*k+68}")
                else: g(f"ds_write_b32 v{vWr[i>>2]}, v{src[k]} offset:{272*k}")

def kgen_y(a, base):
    R = Regs(base, base + 56)
    tmp = [R.alloc() for _ in range(8)]
    vWr = [R.alloc() for _ in range(8)]
    vA2, vBh, vBl = R.alloc(), R.alloc(), R.alloc()
    H = [R.alloc() for _ in range(11)]
    A1, A2, A3, B1, B2, B3, B4, B5, B6, B7 = [R.alloc(2) for _ in range(10)]
    k = KG(a, 60, tmp, vA2, vBh, vBl)
    L = a.label("noy")
    a('s_setprio 1')
    a(f"s_cmp_ge_u32 s{sKC}, {0 if 'nokg' in EXP or 'nopre' in EXP else 576}\ns_cbranch_scc1 {L}")
    a(f"s_mul_i32 s67, s{sKU}, {YS}\ns_add_u32 s67, s67, {YB}\nv_lshl_add_u32 v{vWr[0]}, v1, 2, s67")
    for i in range(1, 8): a(f"v_add_u32 v{vWr[i]}, {i*4*272}, v{vWr[0]}")
    hA = H[0:4]; hB = [None] + H[4:11]
    a(f"v_mov_b32 v{hA[0]}, 0x3c00\ns_lshl_b32 s67, s{sKU}, 2\ns_add_u32 s67, s67, {CNT}")
    a(k.consts())
    a("s_waitcnt vmcnt(0)")
    a(k.prep())
    a(ilv(k.cexp(A1, 8, 0), k.cexp(B2, 64, 1)))
    a(ilv(k.cmul(A2, A1, A1), k.cmul(B4, B2, B2)))
    a(ilv(k.cmul(B1, A2, A2), k.cmul(A3, A1, A2), k.cmul(B6, B4, B2)))
    a(ilv(k.cmul(B3, B1, B2), k.cmul(B5, B4, B1), k.cmul(B7, B6, B1)))
    for d, x in zip(hA[1:] + hB[1:], (A1, A2, A3, B1, B2, B3, B4, B5, B6, B7)): a(k.cvt(d, x, True))
    def yspec(j):
        x, y = j & 3, j >> 2
        if y == 0: return (hA[x], None)
        if x == 0: return (hB[y], None)
        return (hA[x], hB[y])
    k.rows([yspec(j) for j in range(32)], vWr)
    lds_inc(a, tmp[0], tmp[1], saddr=67, off=C_YR)
    a(f"{L}:")

def kgen_waves(a):
    sMH, sBase, sT, sE, sCS = 5, 6, 7, 8, 14
    R = Regs(4, 120)
    t = KG_T; C = KG_C
    vWr = [R.alloc() for _ in range(4)]
    vRd, vRy = R.alloc(), R.alloc()
    vA2, vBh, vBl, vF = R.alloc(), R.alloc(), R.alloc(), R.alloc()
    vInv, vInvM, vBaseM, vPw = R.alloc(), R.alloc(), R.alloc(), R.alloc()
    FY = R.alloc(32, 4); FXr = R.alloc(32, 4)
    pool = R.alloc(36, 4)
    tmp = [FY + i for i in range(8)]
    g = Seg()
    k = KG(g, 9, tmp, vA2, vBh, vBl)
    Lskip, Lend = a.label("kgskip"), a.label("kgend")
    a(f"""
    s_cmp_ge_u32 s{sKC}, {0 if 'nokg' in EXP else 576}
    s_cbranch_scc1 {Lskip}
    s_lshr_b32 s{sCS}, s{S_WAVE}, 1
    s_mul_i32 s{sBase}, s{S_WAVE}, {KG_STRIDE}
    s_add_u32 s{sBase}, s{sBase}, {KG_BASE}
    """ + k.consts() + f"""
    v_lshl_add_u32 v{vWr[0]}, v1, 2, s{sBase}
    v_add_u32 v{vWr[1]}, {4*272}, v{vWr[0]}
    v_add_u32 v{vWr[2]}, {8*272}, v{vWr[0]}
    v_add_u32 v{vWr[3]}, {12*272}, v{vWr[0]}
    v_lshrrev_b32 v{t[5]}, 5, v1
    v_lshlrev_b32 v{t[5]}, 4, v{t[5]}
    v_and_b32 v{t[4]}, 15, v1
    v_mul_u32_u24 v{t[4]}, 272, v{t[4]}
    v_add3_u32 v{vRd}, v{t[4]}, v{t[5]}, s{sBase}
    v_and_b32 v{t[4]}, 31, v1
    v_mul_u32_u24 v{t[4]}, 272, v{t[4]}
    s_mul_i32 s{sT}, s{S_WAVE}, {YS}
    s_add_u32 s{sT}, s{sT}, {YB}
    v_add3_u32 v{vRy}, v{t[4]}, v{t[5]}, s{sT}
    v_lshl_add_u32 v{vPw}, v1, 2, s{sT}
    s_lshl_b32 s15, s{S_WAVE}, 2
    s_add_u32 s15, s15, {CNT}
    """)
    g("s_waitcnt vmcnt(0)")
    g.items.append(("@STAMP22", 0))
    P = [pool + 2 * i for i in range(12)]
    H = [pool + 24 + i for i in range(12)]
    E1, E2, E4, E256, E512, E1024, X2, X4, X6, E768, X1024 = P[0:11]
    hC, h2, h4, h6, hE1, h256, h512, h768, h1024, hX = H[0:10]
    dpp = [f"v_max_u32_dpp v{t[4]}, v{t[4]}, v{t[4]} {m}" for m in ("row_shr:1", "row_shr:2", "row_shr:4", "row_shr:8", "row_bcast:15 row_mask:0xa", "row_bcast:31 row_mask:0xc")]
    g(f"v_lshlrev_b32 v{C}, 16, v{C}\nv_lshlrev_b32 v{C+1}, 16, v{C+1}\nv_max_f32 v{t[4]}, |v{C}|, |v{C+1}|")
    pl = [l.strip() for l in k.prep().split("\n") if l.strip()]
    for i, l in enumerate(pl):
        g(l)
        if i % 3 == 2 and dpp: g(dpp.pop(0))
    assert not dpp
    g(f"v_readlane_b32 s{sE}, v{t[4]}, 63")
    g(ilv(k.cexp(E1, 1, 0), k.cexp(E256, 256, 1), k.cexp(E1024, 1024, 2)))
    g(f"""
    s_lshr_b32 s{sE}, s{sE}, 23
    s_max_u32 s{sE}, s{sE}, 1
    s_min_u32 s{sE}, s{sE}, 252
    s_sub_u32 s{sT}, 253, s{sE}
    s_lshl_b32 s{sT}, s{sT}, 23
    v_mul_f32 v{C}, s{sT}, v{C}
    v_mul_f32 v{C+1}, s{sT}, v{C+1}
    s_add_u32 s{sE}, s{sE}, 2
    s_lshl_b32 s{sE}, s{sE}, 23
    v_mul_f32 v{vF}, s{sE}, v{t[3]}
    """)
    g(ilv(k.cmul(E2, E1, E1), k.cmul(E512, E256, E256), k.cmul(X1024, C, E1024)))
    g(ilv(k.cmul(E4, E2, E2), k.cmul(X2, C, E2), k.cmul(E768, E256, E512)))
    g(ilv(k.cmul(X4, C, E4), k.cmul(X6, X2, E4)))
    for d, x in ((hC, C), (hE1, E1), (h2, X2), (h256, E256), (h512, E512), (h768, E768), (h1024, E1024), (hX, X1024), (h4, X4), (h6, X6)): g(k.cvt(d, x, False))
    def fragread(dst, upper):
        m = 0xffff0000 if upper else 0x0000ffff
        g(f"s_mov_b32 exec_lo, {m}\ns_mov_b32 exec_hi, {m}")
        for ks in range(8):
            g(f"ds_read_b128 {vr(dst+4*ks,4)}, v{vRd} offset:{32*ks}")
        g("s_mov_b64 exec, -1")
    k.rows([(hX, None), (hX, h256), (hX, h512), (hX, h768), (hX, h1024)], vWr)
    fragread(FXr, True)
    k.rows([(hC, None), (hC, hE1), (h2, None), (h2, hE1), (h4, None), (h4, hE1), (h6, None), (h6, hE1),
          (hC, h256), (h2, h256), (h4, h256), (h6, h256), (hC, h512), (h4, h512), (hC, h768), (h4, h768)], vWr)
    fragread(FXr, False)
    ACC = pool
    g(f"""
    v_and_b32 v{t[0]}, 31, v1
    v_lshrrev_b32 v{t[1]}, 5, v1
    v_lshlrev_b32 v{t[2]}, 3, v{t[0]}
    v_lshl_add_u32 v{t[2]}, v{t[1]}, 2, v{t[2]}
    v_cmp_eq_u32 vcc, 0, v{t[1]}
    v_lshlrev_b32 v{t[3]}, 2, v{t[0]}
    v_lshlrev_b32 v{t[4]}, 1, v{t[0]}
    v_add_u32 v{t[4]}, 128, v{t[4]}
    v_cndmask_b32 v{t[3]}, v{t[4]}, v{t[3]}, vcc
    v_lshl_add_u32 v{t[5]}, v{t[1]}, 7, v{t[0]}
    v_and_b32 v{t[0]}, 0xff0, v{t[2]}
    v_lshl_add_u32 v{t[2]}, v{t[2]}, 2, v{t[0]}
    v_add_u32 v{t[2]}, s{sBase}, v{t[2]}
    v_and_b32 v{t[0]}, 0xff0, v{t[3]}
    v_lshl_add_u32 v{t[3]}, v{t[3]}, 2, v{t[0]}
    v_add_u32 v{t[3]}, s{sBase}, v{t[3]}
    v_mul_u32_u24 v{t[4]}, 312, v{t[1]}
    v_add_u32 v{t[4]}, v{t[4]}, v{t[3]}
    v_and_b32 v{t[0]}, 0xff0, v{t[5]}
    v_lshl_add_u32 v{t[5]}, v{t[5]}, 2, v{t[0]}
    v_add_u32 v{t[5]}, s{sBase}, v{t[5]}
    """)
    g.items.append(("@STAMP23", 0))
    lds_spin(g, tmp[0], tmp[1], 1, sE, saddr=15, off=C_YR)
    for ks in range(8):
        g(f"ds_read_b128 {vr(FY+4*ks,4)}, v{vRy} offset:{32*ks}")
    for ks in range(8):
        c = "0" if ks == 0 else vr(ACC, 16)
        g(f"s_waitcnt lgkmcnt({7-ks})")
        g(f"v_mfma_f32_32x32x16_f16 {vr(ACC,16)}, {vr(FXr+4*ks,4)}, {vr(FY+4*ks,4)}, {c}")
    g(f"""
    s_mul_i32 s{sT}, s{sMH}, {KG_STRIDE}
    s_sub_u32 s{sT}, s{sBase}, s{sT}
    s_sub_u32 s{sT}, s{sT}, {0x2c000000}
    """)
    NR = 9
    NV = 2 * NR
    AD = pool
    VAL = [FY + 2 * i for i in range(NV)]
    assert FXr == FY + 32
    g("s_nop 12")
    for i in range(12):
        g(f"v_mul_f32 v{ACC+i}, v{vF}, v{ACC+i}")
    g(f"""
    ds_write_b128 v{t[2]}, {vr(ACC,4)} offset:80
    ds_write_b64 v{t[3]}, {vr(ACC+4,2)} offset:{80+1280}
    ds_write_b64 v{t[4]}, {vr(ACC+6,2)} offset:{80+1280+8}
    """)
    for r in range(4):
        g(f"ds_write_b32 v{t[5]}, v{ACC+8+r} offset:{80+2560+160*r}")
    g("s_waitcnt lgkmcnt(0)")
    g.items.append(("@STAMP24", 0))
    g.must_barrier()
    g(f"""
    s_lshr_b32 s{sE}, s{sKC}, 6
    v_and_b32 v{vA2}, 3, v1
    v_lshlrev_b32 v{vA2}, 1, v{vA2}
    v_sub_u32 v{vA2}, s{sE}, v{vA2}
    v_add_u32 v{vBh}, 9, v{vA2}
    v_min3_u32 v{vA2}, v{vA2}, v{vBh}, 7
    s_and_b32 s{sE}, s{sKC}, 32
    s_lshl_b32 s{sE}, s{sE}, 2
    v_lshl_add_u32 v{vA2}, v{vA2}, 4, s{sE}
    v_add_lshl_u32 v{vA2}, v{vA2}, v1, 7
    v_add_u32 v{vA2}, {FL_U}, v{vA2}
    """)
    for run in range(2):
        g(f"""
        s_lshl_b32 s{sE}, s{sMH}, 7
        s_sub_u32 s{sE}, {255 - 64*run}, s{sE}
        v_sub_u32 v{t[4]}, s{sE}, v1
        v_lshlrev_b32 v{t[4]}, 3, v{t[4]}
        v_max_u32 v{t[5]}, 128, v{t[4]}
        v_cvt_f32_u32 v{t[5]}, v{t[5]}
        v_and_b32 v{vInv}, 0x7f800000, v{t[5]}
        v_sub_u32 v{vInv}, {261<<23 & 0xffffffff}, v{vInv}
        v_lshrrev_b32 v{t[5]}, 16, v{t[5]}
        v_subrev_u32 v{t[5]}, {0x4380-256}, v{t[5]}
        v_min_u32 v{t[5]}, v{t[5]}, v{t[4]}
        v_add_u32 v{vBaseM}, 0x4b000010, v{t[5]}
        v_max_u32 v{t[5]}, 129, v{t[4]}
        v_subrev_u32 v{t[5]}, 1, v{t[5]}
        v_cvt_f32_u32 v{t[5]}, v{t[5]}
        v_and_b32 v{vInvM}, 0x7f800000, v{t[5]}
        v_sub_u32 v{vInvM}, {261<<23 & 0xffffffff}, v{vInvM}
        """)
        if run == 1: g(f"v_cmp_ne_u32 s[74:75], 0, v{t[4]}")
        for j in range(NR):
            i = NR * run + j
            r = 7 - j
            inv = vInv if r >= 0 else vInvM
            g(f"v_fmamk_f32 v{AD+i}, v{inv}, {fbits(float(r))}, v{vBaseM}")
            g(f"v_and_b32 v{t[i&1]}, 0xff0, v{AD+i}")
            g(f"v_lshl_add_u32 v{AD+i}, v{AD+i}, 2, s{sT}")
            g(f"v_add_u32 v{AD+i}, v{AD+i}, v{t[i&1]}")
            g(f"ds_read2st64_b32 {vr(VAL[i],2)}, v{AD+i} offset0:0 offset1:{KG_STRIDE//256}")
    g.nobar(True); area(g, sBase, sCS); g.nobar(False)
    g(f"""
    v_lshrrev_b32 v{vBl}, 4, v1
    v_mul_u32_u24 v{vBl}, {36*4096}, v{vBl}
    v_and_b32 v{vF}, 12, v1
    v_lshl_add_u32 v{vBl}, v{vF}, 8, v{vBl}
    v_and_b32 v{vF}, 3, v1
    v_lshl_add_u32 v{vBl}, v{vF}, 4, v{vBl}
    s_and_b32 s10, s{sKC}, 15
    s_lshl_b32 s10, s10, 6
    s_lshr_b32 s9, s{sKC}, 4
    s_lshl_b32 s9, s9, 12
    s_add_u32 s9, s9, s10
    s_add_u32 s9, s9, {UT_OFF}
    v_lshl_add_u32 v{vF}, v1, 3, s{sBase}
    v_mov_b32 v{t[3]}, 0
    s_lshl_b32 s{sE}, s{sMH}, 11
    s_add_u32 s{sE}, s{sE}, s{sBase}
    v_lshl_add_u32 v{t[0]}, v1, 4, s{sE}
    v_lshrrev_b32 v{t[1]}, 4, v1
    v_mul_u32_u24 v{t[1]}, {CP}, v{t[1]}
    v_and_b32 v{t[2]}, 15, v1
    v_lshl_add_u32 v{t[1]}, v{t[2]}, 2, v{t[1]}
    s_add_u32 s{sT}, s{sBase}, 4096
    v_add_u32 v{t[1]}, s{sT}, v{t[1]}
    v_mov_b32 v{t[2]}, 0
    s_waitcnt lgkmcnt(0)
    """)
    for i in range(NV):
        g(f"v_add_f32 v{VAL[i]}, v{VAL[i]}, v{VAL[i]+1}")
    for i in range(NV - 1, NV):
        g(f"v_cndmask_b32 v{VAL[i]}, 0, v{VAL[i]}, s[74:75]")
    OUT = pool
    for s in range(2):
        for i in range(8):
            b = NR * (i >> 2) + 2 * (i & 3) + s
            g(f"v_cvt_pk_bf16_f32 v{OUT+8*s+i}, v{VAL[b]}, v{VAL[b+1]}")
    if 'noexp' in EXP:
        k0 = [l for l, _ in g.items].index('@BAR')
        g.items = g.items[:k0+1] + [x for x in g.items[k0+1:] if not x[0].startswith(("v_fmamk", "ds_read2st64", "v_add_f32", "v_cvt_pk", "v_cndmask")) and "0xff0" not in x[0]]
    if 'nopre' in EXP:
        k0 = [l for l, _ in g.items].index('@BAR')
        g.items = g.items[k0:]
    def after(kb):
        if kb == 0: srd(a, R_WS, P_WS, WS_BYTES); get_tag(a, vWr[0], vWr[1])
        if kb == UK + 3:
            L = a.label("nofu")
            a(f"""
            s_cmp_lg_u32 s{S_WAVE}, 0
            s_cbranch_scc1 {L}
            s_and_b32 s76, s2, 1
            s_lshl_b32 s76, s76, 3
            s_lshr_b32 s77, s2, 5
            s_add_u32 s76, s76, s77
            s_lshl_b32 s76, s76, 2
            s_bfe_u32 s77, s2, 0x20001
            s_add_u32 s76, s76, s77
            s_lshl_b32 s76, s76, 2
            s_bfe_u32 s77, s2, 0x20003
            s_add_u32 s76, s76, s77
            s_lshl_b32 s76, s76, 7
            s_add_u32 s76, s76, {FL_U}
            """)
            flag_line(a, vWr[0], vWr[1], 76)
            a(f"{L}:")
    SPREAD = int(os.environ.get('SPREAD', '1'))
    def after2(kb):
        after(kb)
        if kb == 5:
            L = a.label("np")
            a(f"s_cmp_lg_u32 s{sMH}, 0\ns_cbranch_scc1 {L}\ns_mov_b64 exec, 0xffff")
            poll_issue(a, vBh, 1, vA2, 0)
            a(f"s_mov_b64 exec, -1\n{L}:")
    tot = g.emit(a, NBAR1 - SPREAD, after2)
    a.stamp(25)
    Lnp, L2, L3, Lnu2, Lno, Lre, Lw = [a.label(x) for x in ("np", "kc", "kd", "nu", "no", "re", "uw")]
    def u_dma():
        a(f"s_mov_b64 exec, -1\ns_add_u32 m0, s{sBase}, {UOFF + 512}\ns_nop 0")
        for b in range(4):
            a(f"buffer_load_dwordx4 v{vBl}, {WS}, s9 offen offset:{1024*b}{LD} lds")
            if b < 3: a(f"s_add_u32 s9, s9, {4*36*4096 - 1024}")
    a(f"s_mov_b32 s10, s{sMH}\ns_setprio {os.environ.get('KPRIO', '3')}")
    for _ in range(SPREAD - 1): a("s_barrier")
    a(f"""
    s_cmp_lg_u32 s10, 0
    s_cbranch_scc1 {Lno}
    s_mov_b64 exec, 0xffff
    s_waitcnt vmcnt(0)
    v_cmp_ne_u32 vcc, s{S_TAG}, v{vBh}
    s_cbranch_vccnz {Lre}
    s_mov_b32 s10, 1
    """)
    u_dma()
    a(f"s_branch {Lno}\n{Lre}:")
    poll_issue(a, vBh, 1, vA2, 0)
    a(f"s_mov_b64 exec, -1\n{Lno}:")
    if 'w7' not in EXP: a("s_barrier")
    for s in range(2):
        a(f"ds_write_b128 v{t[0]}, {vr(OUT+8*s,4)} offset:{s*CP}")
        a(f"ds_write_b128 v{t[0]}, {vr(OUT+8*s+4,4)} offset:{s*CP+1024}")
    assert t[2] % 2 == 0
    a(f"""
    s_cmp_eq_u32 s{sMH}, 0
    s_cbranch_scc1 L_nz
    ds_write_b32 v{t[1]}, v{t[2]}
    ds_write_b64 v{vF}, {vr(t[2],2)} offset:{UOFF}
    L_nz:
    {"s_barrier" if 'w7' in EXP else ""}
    s_cmp_lg_u32 s10, 0
    s_cbranch_scc1 {Lw}
    s_mov_b64 exec, 0xffff
    """)
    poll_wait(a, vBh, 1, vA2, 0, issued=True)
    u_dma()
    a(f"""
    {Lw}:
    s_waitcnt vmcnt(0)
    s_lshl_b32 s{sT}, s{sCS}, 2
    s_add_u32 s{sT}, s{sT}, {CNT+C_RDY}
    """)
    lds_inc(a, t[0], t[1], saddr=sT)
    a(f"s_branch {Lend}")
    a(f"{Lskip}:")
    TB = int(os.environ.get('TLBAT', '1'))
    for _ in range(TB): a("s_barrier")
    if 'tlb' in EXP:
        Lnu = a.label("notlb")
        a(f"""
        s_lshr_b32 s8, s2, 3
        s_lshl_b32 s8, s8, 1
        s_add_u32 s8, s8, s{sMH}
        s_cmp_lg_u32 s8, 16
        s_cbranch_scc1 {Lnu}
        """)
        for i in sorted(range(1, (WS_BYTES >> 21) + 1), key=lambda i: abs(i - (UT_OFF >> 21) - 0.4)):
            a(f"s_mov_b32 s8, {i << 21}\ns_load_dword s{59+i}, s[{P_WS}:{P_WS+1}], s8")
        a(f"s_load_dword s72, s[{P_WO}:{P_WO+1}], 0\ns_load_dword s73, s[{P_OUT}:{P_OUT+1}], 0\ns_mov_b32 s8, {X_BYTES-4}\ns_load_dword s74, s[{P_OUT}:{P_OUT+1}], s8")
        a(f"{Lnu}:")
    for _ in range(NBAR1 - TB): a("s_barrier")
    srd(a, R_WS, P_WS, WS_BYTES); get_tag(a, t[0], t[1])
    a(f"{Lend}:")
    a.stamp(2)

def phase1(a, name, endlabel):
    Lkg, Lg, Lend = a.label("kg"), a.label("gemm"), a.label("p1end")
    head(a, name, endlabel, Lkg, Lg)
    loader(a)
    a(f"s_branch {Lend}\n{Lkg}:")
    kgen_waves(a)
    a(f"s_branch {Lend}\nL_gate_dma:\ns_waitcnt lgkmcnt(0)")
    srd(a, R_A, P_G, 1152)
    a(f"""
    v_lshlrev_b32 v4, 4, v1
    s_mov_b32 m0, {GT}
    s_nop 0
    buffer_load_dwordx4 v4, s[{R_A}:{R_A+3}], 0 offen lds
    s_mov_b64 exec, 0xff
    buffer_load_dwordx4 v4, s[{R_A}:{R_A+3}], 0 offen offset:1024 lds
    s_mov_b64 exec, -1
    s_barrier
    s_waitcnt vmcnt(0)
    {Lg}:
    """)
    gemm_waves(a)
    a(f"{Lend}:")
```

```python
from f1 import *

def conv_main(a, tiles, vA, vB, bufs, ACC):
    sb = Lgkm(a)
    n = max(tiles) + 1
    ops = []
    for rp in range(1 if 'conv1' in EXP else 4):
        for i in range(n):
            for ti, t in enumerate(tiles):
                if t - i >= 0: ops.append((ti, ("A", i, rp), ("B", t - i, rp)))
    order, last = [], {}
    for k, (ti, x, y) in enumerate(ops):
        for f in (x, y):
            if f not in last: order.append(f)
            last[f] = k
    free = list(bufs); where = {}; nxt = [0]
    MAXO = int(os.environ.get('CMAXO', '15'))
    def try_load(force=False):
        if nxt[0] >= len(order) or not free: return False
        f = order[nxt[0]]
        cost = 2 if f[0] == "A" else 1
        if not force and len(sb.q) - sb.done + cost > MAXO: return False
        d = free.pop(0); where[f] = d; nxt[0] += 1
        w, i, rp = f
        if w == "A":
            off = 4032 - 64 * rp - 512 * i
            va = vA[off >> 10]; o = (off & 1023) >> 2
            sb.load(f"ds_read2_b32 {vr(d,2)}, v{va} offset0:{o} offset1:{o+1}", rng(d, 2))
            sb.load(f"ds_read2_b32 {vr(d+2,2)}, v{va} offset0:{o+2} offset1:{o+3}", rng(d+2, 2))
        else:
            sb.load(f"ds_read_b128 {vr(d,4)}, v{vB} offset:{480 + 512*i - 64*rp}", rng(d, 4))
        return True
    while try_load(): pass
    started = set()
    for k, (ti, x, y) in enumerate(ops):
        while x not in where or y not in where:
            assert try_load(True)
        sb.need(list(rng(where[x], 4)) + list(rng(where[y], 4)))
        c = vr(ACC+4*ti, 4) if ti in started else "0"
        started.add(ti)
        a(f"v_mfma_f32_16x16x32_bf16 {vr(ACC+4*ti,4)}, {vr(where[x],4)}, {vr(where[y],4)}, {c}")
        for f in (x, y):
            if last[f] == k: free.append(where[f])
        if not try_load():
            if nxt[0] < len(order) and free and len(sb.q) - sb.done > MAXO - 3:
                keep = MAXO - 4
                a(f"s_waitcnt lgkmcnt({keep})"); sb.done = len(sb.q) - keep
                try_load()

class AR:
    def __init__(self, R):
        self.S = [R.alloc(16, 4), R.alloc(16, 4)]
        self.O = [R.alloc(16, 4), R.alloc(16, 4)]
        self.K = R.alloc(4, 4)
        self.Kx = R.alloc(4, 2)
        self.V0 = R.alloc(4, 4)
        self.V1 = R.alloc(4, 4)
        self.Qm = [R.alloc(4, 4), R.alloc(4, 4)]
        self.Qx = [R.alloc(8, 2), R.alloc(8, 2)]
        self.aK = R.alloc(); self.aKx = R.alloc(); self.aV = R.alloc(4, 1); self.idx = R.alloc()

def E(a, base, lo, n=4):
    for i in range(lo, lo + n):
        a(f"v_exp_f32 v{base+i}, v{base+i}")

def k_off(t): return (t & 7) * 1024
def kx_off(g): return KX_OFF + (g & 1) * 512
def v_off(t): return V_OFF + (t & 7) * 1280

class Al:
    def __init__(self, a, mode):
        self.a = a; self.mode = mode; self.sync()
    def sync(self):
        if self.mode: self.a(".p2align 3")
        if self.mode == 2: self.a("s_nop 0")
        self.par = 0; self.last_exp = None
    def __call__(self, txt):
        for ln in txt.split("\n"):
            ln = ln.strip()
            if not ln: continue
            if 'nox8' in EXP:
                if "32x32x8" in ln: continue
                if "v_mfma_f32_32x32x16" in ln: ln = ln[:ln.rindex(",")] + ", 0"
            if 'b2b' in EXP:
                if "32x32x8" in ln:
                    self.held = ln; continue
                if "v_mfma_f32_32x32x16" in ln:
                    EXP.remove('b2b'); self(self.held); EXP.append('b2b')
            op = ln.split()[0]
            big = op.startswith(("v_mfma", "v_smfmac", "ds_")) or (op == "v_add_u32")
            if big:
                if self.par and self.mode:
                    if self.last_exp is not None:
                        self.a.lines[self.last_exp] = self.a.lines[self.last_exp].replace("v_exp_f32", "v_exp_f32_e64")
                    else:
                        self.a("s_nop 0")
                    self.par = 0
                self.last_exp = None
                self.a(ln)
            else:
                self.a(ln); self.par ^= 1
                if op == "v_exp_f32": self.last_exp = len(self.a.lines) - 1

def attn_loop(a0, r, prio, pre_mid, post_mid, last_hook):
    a = Al(a0, int(os.environ.get('ALIGN', '1')))
    A, B = r.S
    NT = 16
    def smf(o, v, p): a(f"v_smfmac_f32_32x32x32_bf16 {vr(o,16)}, {vr(v,4)}, {vr(p,8)}, v{r.idx}")
    def vread(dst, t, s):
        if 'halfds' in EXP and t & 1:
            a("s_waitcnt lgkmcnt(0)"); return
        a(f"ds_read_b64_tr_b16 {vr(dst,2)}, v{r.aV+2*s} offset:{v_off(t)}")
        a(f"ds_read_b64_tr_b16 {vr(dst+2,2)}, v{r.aV+2*s+1} offset:{v_off(t)}")
    a(f"v_mfma_f32_32x32x8_bf16 {vr(A,16)}, {vr(r.Kx,2)}, {vr(r.Qx[0],2)}, 0")
    a(f"v_mfma_f32_32x32x16_bf16 {vr(A,16)}, {vr(r.K,4)}, {vr(r.Qm[0],4)}, {vr(A,16)}")
    a("s_nop 11")
    E(a, A, 0, 2)
    for t in range(NT):
        if t in prio: a(f"s_setprio {prio[t]}")
        if a0.jit: a0.jitter(); a.sync()
        kxp = r.Kx + 2 * ((t >> 2) & 1)
        if t > 0: smf(r.O[1], r.V1, B + 8)
        vread(r.V1, t, 1)
        E(a, A, 2)
        a(f"v_mfma_f32_32x32x8_bf16 {vr(B,16)}, {vr(kxp,2)}, {vr(r.Qx[1]+2*(t&3),2)}, 0")
        n_after = 2
        if (t & 7) == 0:
            a(f"ds_read_b64 {vr(r.Kx+2,2)}, v{r.aKx} offset:{kx_off(1)}")
            n_after += 1
        E(a, A, 6)
        a(f"v_mfma_f32_32x32x16_bf16 {vr(B,16)}, {vr(r.K,4)}, {vr(r.Qm[1],4)}, {vr(B,16)}")
        last = t == NT - 1
        if 'halfds' in EXP and not t & 1:
            a("s_waitcnt lgkmcnt(0)")
        elif (t & 7) != 7:
            a(f"ds_read_b128 {vr(r.K,4)}, v{r.aK} offset:{k_off(t+1)}")
            n_after += 1
        else:
            a("s_nop 0")
        E(a, A, 10)
        a(f"s_waitcnt lgkmcnt({n_after})")
        smf(r.O[0], r.V0, A)
        if t in pre_mid: pre_mid[t](); a.sync()
        E(a, A, 14, 2)
        if 'nonop' not in EXP: a("s_nop 2")
        E(a, B, 0, 1)
        a("s_waitcnt lgkmcnt(0)")
        if t in post_mid: post_mid[t](); a.sync()
        if t == 7:
            a(f"""
            v_add_u32 v{r.aK}, {REG_B}, v{r.aK}
            v_add_u32 v{r.aKx}, {REG_B}, v{r.aKx}
            ds_read_b64 {vr(r.Kx,2)}, v{r.aKx} offset:{kx_off(0)}
            ds_read_b128 {vr(r.K,4)}, v{r.aK} offset:{k_off(0)}
            """)
            for i in range(4): a(f"v_add_u32 v{r.aV+i}, {REG_B}, v{r.aV+i}")
        tn = t + 1
        kxp = r.Kx + 2 * ((tn >> 2) & 1)
        smf(r.O[0], r.V1, A + 8)
        if last: last_hook(); a.sync()
        E(a, B, 1, 5)
        if t == 7: a("s_waitcnt lgkmcnt(0)")
        if not last:
            a(f"v_mfma_f32_32x32x8_bf16 {vr(A,16)}, {vr(kxp,2)}, {vr(r.Qx[0]+2*(tn&3),2)}, 0")
        E(a, B, 6)
        if not last:
            a(f"v_mfma_f32_32x32x16_bf16 {vr(A,16)}, {vr(r.K,4)}, {vr(r.Qm[0],4)}, {vr(A,16)}")
        E(a, B, 10)
        smf(r.O[1], r.V0, B)
        if not last:
            vread(r.V0, tn, 0)
        E(a, B, 14, 2)
        if not last:
            if 'nonop' not in EXP: a("s_nop 2")
            E(a, A, 0, 2)
    a("s_nop 1")
    smf(r.O[1], r.V1, B + 8)

PRIO = eval(os.environ.get('PRIO', '{0: 1, 6: 0, "M": 2, 13: 1}'))
SPARE = 2 * REG_B

def piece_lds(n):
    return n * 1024 if n < 76 else SPARE + (n - 76) * 1024

def phase23(a):
    sHd, sR, sQP, sKQ, sT, sT2, sC, sCB, sKV, sQt = 4, 5, 6, 7, 8, 9, 10, 11, 12, 13
    sK0, sK1 = 14, 15
    sQT3, sDQ = 80, 81
    R = Regs(4, 128)
    t = [R.alloc() for _ in range(4)]
    r = AR(R)
    vL16 = R.alloc()
    PL = R.alloc(8, 4)
    assert PL == 120 and r.aK == 112
    Lld, LX = a.label("kvload"), a.label("X")
    a(f"""
    s_and_b32 s{sHd}, s2, 7
    s_lshl_b32 s{sQT3}, s{sHd}, 3
    s_lshl_b32 s{sHd}, s{sHd}, 2
    s_bfe_u32 s{sT}, s2, 0x20003
    s_add_u32 s{sHd}, s{sHd}, s{sT}
    s_lshr_b32 s{sR}, s2, 5
    s_bfe_u32 s{sT}, s2, 0x30003
    s_add_u32 s{sQT3}, s{sQT3}, s{sT}
    s_lshr_b32 s{sDQ}, s2, 6
    s_and_b32 s{sQP}, s{S_WAVE}, 3
    s_lshr_b32 s{sKQ}, s{S_WAVE}, 2
    v_lshlrev_b32 v{vL16}, 4, v1
    v_mov_b32 v{PL+4}, 0
    v_mov_b32 v{PL+6}, 0
    """)
    chan(a, sC, sKQ); area(a, sCB, sKQ)
    a(f"""
    s_mul_i32 s{sKV}, s{sHd}, {8*BLK}
    s_add_u32 s{sKV}, s{sKV}, {KV_OFF}
    s_cmp_eq_u32 s{sKQ}, 3
    s_cbranch_scc1 {Lld}
    s_cmp_ge_u32 s{sC}, 576
    s_cbranch_scc1 {LX}
    """)
    FA, FB, ACC = 8, 40, 72
    vA, vB, vY = [r.aK, r.aV + 1, r.aV + 2, r.aV + 3], r.aKx, r.aV
    Lts1, Lcj, Lsw = a.label("ts1"), a.label("cj"), a.label("sw")
    a(f"""
    s_lshl_b32 s{sT}, s{S_DV}, 16
    s_and_b32 s{S_DV}, s{S_DV}, 0xffff0000
    s_bitcmp0_b32 s{sC}, 0
    s_cselect_b32 s{S_DV}, s{sT}, s{S_DV}
    v_and_b32 v{t[0]}, 15, v1
    v_lshrrev_b32 v{t[1]}, 4, v1
    v_sub_u32 v{t[2]}, 15, v{t[0]}
    v_and_b32 v{t[3]}, 1, v{t[2]}
    v_and_b32 v{t[2]}, 14, v{t[2]}
    v_lshlrev_b32 v{t[2]}, 1, v{t[2]}
    v_lshl_add_u32 v{t[2]}, v{t[1]}, 4, v{t[2]}
    v_mul_u32_u24 v{t[3]}, {CP}, v{t[3]}
    s_and_b32 s{sT}, s{sQP}, 1
    s_lshl_b32 s{sT}, s{sT}, 8
    s_sub_u32 s{sT}, s{sCB}, s{sT}
    v_add3_u32 v{vA[0]}, v{t[2]}, v{t[3]}, s{sT}
    v_add_u32 v{vA[1]}, 1024, v{vA[0]}
    v_add_u32 v{vA[2]}, 2048, v{vA[0]}
    v_add_u32 v{vA[3]}, 3072, v{vA[0]}
    v_lshlrev_b32 v{t[2]}, 5, v{t[0]}
    v_lshl_add_u32 v{t[3]}, v{t[1]}, 4, v{t[2]}
    s_add_u32 s{sT}, s{sT}, {UOFF}
    v_add_u32 v{vB}, s{sT}, v{t[3]}
    v_lshl_add_u32 v{vY}, v{t[1]}, 3, v{t[2]}
    s_lshl_b32 s82, s{sKQ}, 2
    s_add_u32 s82, s82, {CNT}
    """)
    if 'nokg' in EXP or 'noconv' in EXP: a(f's_branch {LX}')
    lds_spin(a, t[0], t[1], 2, sT, saddr=82, off=C_RDY)
    a.stamp(5)
    a("s_setprio 2")
    if os.environ.get('C3PRIO'): a(f"s_cmp_lt_u32 s{sKQ}, 2\ns_cbranch_scc1 L_c3\ns_setprio {os.environ['C3PRIO']}\nL_c3:")
    T0, T1 = [7, 4, 3, 0], [6, 5, 2, 1]
    BUFS = list(range(8, 72, 4)) + list(range(88, 112, 4))
    a(f"s_cmp_ge_u32 s{sQP}, 2\ns_cbranch_scc1 {Lts1}")
    conv_main(a, T0, vA, vB, BUFS, ACC)
    a(f"s_cmp_eq_u32 s{sQP}, 0\ns_cselect_b32 s{sK0}, {T0[0]}, {T0[2]}\ns_cselect_b32 s{sK1}, {T0[1]}, {T0[3]}\ns_branch {Lcj}")
    a(f"{Lts1}:")
    conv_main(a, T1, vA, vB, BUFS, ACC)
    a(f"s_cmp_eq_u32 s{sQP}, 2\ns_cselect_b32 s{sK0}, {T1[0]}, {T1[2]}\ns_cselect_b32 s{sK1}, {T1[1]}, {T1[3]}")
    a(f"{Lcj}:")
    a.stamp(13)
    a(f"""
    s_lshl_b32 s{sK0}, s{sK0}, 9
    s_lshl_b32 s{sK1}, s{sK1}, 9
    s_lshl_b32 s{sT}, s{sQP}, 11
    s_add_u32 s{sT}, s{sT}, s{sCB}
    v_add_u32 v{t[0]}, s{sT}, v{vL16}
    s_xor_b32 s{sT}, s{sQP}, 1
    s_lshl_b32 s{sT}, s{sT}, 11
    s_add_u32 s{sT}, s{sT}, s{sCB}
    v_add_u32 v{t[1]}, s{sT}, v{vL16}
    s_add_u32 s{sT}, s{sCB}, s{sK0}
    v_add_u32 v{t[2]}, s{sT}, v{vY}
    s_add_u32 s{sT}, s{sCB}, s{sK1}
    v_add_u32 v{t[3]}, s{sT}, v{vY}
    ds_read_b64 {vr(FA,2)}, v{t[2]} offset:{UOFF+512}
    ds_read_b64 {vr(FA+2,2)}, v{t[3]} offset:{UOFF+512}
    s_bitcmp0_b32 s{sQP}, 0
    s_cbranch_scc1 {Lsw}
    """)
    for i in range(8):
        a(f"v_swap_b32 v{ACC+i}, v{ACC+8+i}")
    a(f"{Lsw}:")
    a('s_nop 1')
    a(f"""
    ds_write_b128 v{t[0]}, {vr(ACC+8,4)} offset:{2*CP}
    ds_write_b128 v{t[0]}, {vr(ACC+12,4)} offset:{2*CP+1024}
    """)
    lds_inc(a, FB + 8, FB + 9, saddr=82, off=C_2)
    a('s_waitcnt lgkmcnt(3)')

    for j in range(2):
        for h in range(2):
            a(f"v_lshlrev_b32 v{FA+4}, 16, v{FA+2*j+h}")
            a(f"v_and_b32 v{FA+5}, 0xffff0000, v{FA+2*j+h}")
            a(f"v_fmac_f32 v{ACC+4*j+2*h}, s{S_DV}, v{FA+4}")
            a(f"v_fmac_f32 v{ACC+4*j+2*h+1}, s{S_DV}, v{FA+5}")
    lds_spin(a, FB + 8, FB + 9, 4, sT, saddr=82, off=C_2)
    a(f"""
    ds_read_b128 {vr(FB,4)}, v{t[1]} offset:{2*CP}
    ds_read_b128 {vr(FB+4,4)}, v{t[1]} offset:{2*CP+1024}
    s_lshl_b32 s{sT}, s{sC}, 12
    s_add_u32 s{sT}, s{sT}, {AT_OFF}
    s_add_u32 s{sK0}, s{sK0}, s{sT}
    s_add_u32 s{sK1}, s{sK1}, s{sT}
    s_waitcnt lgkmcnt(0)
    """)
    for i in range(8):
        a(f"v_add_f32 v{ACC+i}, v{ACC+i}, v{FB+i}")
    for i in range(4):
        a(f"v_cvt_pk_bf16_f32 v{PL+2+i}, v{ACC+2*i}, v{ACC+2*i+1}")
    def at_store():
        a(f"""
        buffer_store_dwordx2 {vr(PL+2,2)}, v{PL+6}, {WS}, s{sK0} offen{ST}
        buffer_store_dwordx2 {vr(PL+4,2)}, v{PL+6}, {WS}, s{sK1} offen{ST}
        """)
    a(f"v_mov_b32 v{PL+6}, v{vY}\ns_cmp_lt_u32 s{sKQ}, 2\ns_cbranch_scc1 {LX}")
    at_store()
    a(f"""
    s_waitcnt vmcnt(0)
    """)
    def publish_a(Lskip):
        lds_inc(a, t[0], t[1], off=C_A, rtn=sT)
        a(f"""
        s_cmp_lt_u32 s{S_C2}, 576
        s_cselect_b32 s{sT2}, {7 if 'nokg' in EXP or 'noconv' in EXP else 11}, 7
        s_cmp_lg_u32 s{sT}, s{sT2}
        s_cbranch_scc1 {Lskip}
        """)
        lds_spin(a, t[0], t[1], 8, sT, off=C_S)
        a(f"s_lshl_b32 s{sT2}, s2, 2\ns_add_u32 s{sT2}, s{sT2}, {FL_A}")
        flag_store(a, t[0], sT2)
    publish_a(LX)
    a(f"s_branch {LX}")
    Lp, Lc, Lq, Lnq, Lgo = [a.label(x) for x in ("kp", "kc", "noqx", "nq", "go")]
    def kv_flags(vd, vt, quarter):
        a(f"""
        v_and_b32 v{vd}, 1, v1
        v_lshlrev_b32 v{vd}, 5, v{vd}
        v_add3_u32 v{vd}, v{vd}, 32, s{sHd}
        v_lshrrev_b32 v{vt}, 1, v1
        s_lshl_b32 s{sT}, s{quarter}, 2
        v_add_u32 v{vt}, s{sT}, v{vt}
        s_lshl_b32 s{sT}, s{sR}, 1
        s_lshr_b32 s{sT2}, s{sQP}, 1
        s_add_u32 s{sT}, s{sT}, s{sT2}
        v_writelane_b32 v{vd}, s{sHd}, 8
        v_writelane_b32 v{vt}, s{sT}, 8
        v_mul_u32_u24 v{vd}, {256 if 'fp' in EXP else 43}, v{vd}
        v_lshrrev_b32 v{vd}, 8, v{vd}
        v_lshl_add_u32 v{vd}, v{vd}, 4, v{vt}
        v_lshlrev_b32 v{vd}, 7, v{vd}
        v_add_u32 v{vd}, {FL_P if 'fp' in EXP else FL_Q}, v{vd}
        """)
    a(f"{Lld}:")
    kv_flags(t[2], t[3], sQP)
    lds_spin(a, t[0], t[1], 8, sT, off=C_S if 'early' in EXP else C_FREE)
    a(f"""
    s_lshl_b32 s74, s{sHd}, 3
    s_add_u32 s74, s74, s{sR}
    s_lshl_b32 s75, s74, 2
    s_add_u32 s75, s75, s{sQP}
    s_mov_b32 s76, 0
    s_lshl_b32 s82, s{sQP}, 2
    s_add_u32 s82, s82, {CNT + C_Q}
    v_mov_b32 v{PL}, s82
    v_mov_b32 v{PL+1}, 1
    s_mov_b32 s{S_SPIN}, {SPIN_MAX}
    """)
    PD = int(os.environ.get('PD', '2'))
    PS = os.environ.get('PSLEEP', '3')
    PR = [8 + i for i in range(PD)]
    def pissue(i):
        a(f"s_mov_b64 exec, 0x1ff\nbuffer_load_dword v{PR[i]}, v{t[2]}, {WS}, 0 offen sc1")
    for i in range(PD - 1):
        pissue(i); a(f"s_sleep {PS}")
    a(f"{Lp}:")
    for i in range(PD):
        Lq, Lc, Lnq = a.label("q"), a.label("c"), a.label("nq")
        pissue((i + PD - 1) % PD)
        a(f"""
        s_waitcnt vmcnt({PD-1})
        v_cmp_ne_u32 vcc, s{S_TAG}, v{PR[i]}
        s_cmp_lt_u32 s76, 2
        s_cbranch_scc1 {Lq}
        s_sub_u32 s76, s76, 1
        s_cmp_lg_u32 s76, 1
        s_cbranch_scc1 {Lq}
        ds_write_b32 v{PL}, v{PL+1}
        {Lq}:
        s_mov_b64 exec, -1
        s_sub_u32 s{S_SPIN}, s{S_SPIN}, 1
        s_cselect_b32 vcc_lo, 0, vcc_lo
        s_bitcmp1_b32 vcc_lo, 8
        s_cbranch_scc1 {Lc}
        s_cmp_lg_u32 s76, 0
        s_cbranch_scc1 {Lnq}
        s_mov_b32 s76, {PD+1}
        s_call_b64 s[78:79], L_qdma
        {Lnq}:
        s_mov_b32 s77, 0
        s_and_b32 s{sT}, vcc_lo, 0x0f
        s_cbranch_scc0 {Lgo}
        s_mov_b32 s77, 1
        s_and_b32 s{sT}, vcc_lo, 0xf0
        s_cbranch_scc0 {Lgo}
        {Lc}:
        s_sleep {PS}
        """)
    a(f"""
    s_branch {Lp}
    L_qdma:
    s_lshl_b32 s{sT}, s{sQP}, 11
    s_add_u32 m0, s{sT}, {QST}
    s_lshl_b32 s{sT2}, s75, 11
    s_add_u32 s{sT2}, s{sT2}, {QF_OFF}
    buffer_load_dwordx4 v{vL16}, {WS}, s{sT2} offen{LD} lds
    buffer_load_dwordx4 v{vL16}, {WS}, s{sT2} offen offset:1024{LD} lds
    s_lshl_b32 s{sT}, s{sQP}, 8
    s_add_u32 m0, s{sT}, {QST+8192}
    s_lshl_b32 s{sT2}, s75, 8
    s_add_u32 s{sT2}, s{sT2}, {QX_OFF}
    s_mov_b64 exec, 0xffff
    buffer_load_dwordx4 v{vL16}, {WS}, s{sT2} offen{LD} lds
    s_mov_b64 exec, -1
    s_setpc_b64 s[78:79]
    {Lgo}:
    """)
    a.stamp(5)
    a(f"""
    s_lshl_b32 s{sT}, s{sQP}, 1
    s_add_u32 s{sT}, s{sT}, s77
    s_mul_i32 s{sT}, s{sT}, {BLK}
    s_add_u32 s{sT}, s{sT}, s{sKV}
    s_mul_i32 s82, s{sQP}, {BLK}
    """)
    def run(first, n):
        a(f"s_add_u32 m0, s82, {first*1024}\ns_add_u32 s{sT2}, s{sT}, {first*1024}")
        for i in range(n):
            a(f"buffer_load_dwordx4 v{vL16}, {WS}, s{sT2} offen offset:{1024*i}{LD} lds")
    S1 = int(os.environ.get('S1', '4'))
    if S1 == 2: st1 = [(0, 2), (8, 4)]; st2 = [(2, 4), (12, 4), (6, 2), (16, 3)]
    elif S1 == 3: st1 = [(0, 3), (8, 4), (12, 1)]; st2 = [(3, 4), (13, 4), (7, 1), (17, 2)]
    else: st1 = [(0, 4), (8, 4), (12, 2)]; st2 = [(4, 4), (14, 4), (18, 1)]
    n2 = sum(n for _, n in st2)
    for x in st1: run(*x)
    if 's2late' not in EXP:
        for x in st2: run(*x)
    a(f"""
    s_lshl_b32 s78, s{sQP}, 3
    s_add_u32 s78, s78, {CNT + C_KV}
    v_mov_b32 v{t[0]}, s78
    v_mov_b32 v{t[2]}, 1
    v_mov_b32 v{t[3]}, s77
    v_mov_b32 v{t[1]}, 2
    s_waitcnt vmcnt({n2 if 's2late' not in EXP else 0})
    ds_write_b32 v{PL}, v{PL+1}
    ds_write_b64 v{t[0]}, {vr(t[2],2)}
    s_waitcnt lgkmcnt(0)
    """)
    if 's2late' in EXP:
        for x in st2: run(*x)
    a(f"s_waitcnt vmcnt(0)\nds_write_b32 v{t[0]}, v{t[1]}")
    a(f"{LX}:")
    a(f"""
    s_mul_i32 s{sT}, s{sKQ}, {BLK}
    v_add_u32 v{r.aK}, s{sT}, v{vL16}
    v_lshl_add_u32 v{r.aKx}, v1, 3, s{sT}
    v_bfe_u32 v{t[0]}, v1, 2, 2
    v_and_b32 v{t[1]}, 1, v1
    v_lshlrev_b32 v{t[1]}, 4, v{t[1]}
    v_and_b32 v{t[2]}, 2, v1
    v_lshl_add_u32 v{t[1]}, v{t[2]}, 2, v{t[1]}
    v_lshl_add_u32 v{t[1]}, v{t[0]}, 5, v{t[1]}
    v_and_b32 v{t[3]}, 32, v1
    v_lshl_add_u32 v{t[1]}, v{t[3]}, 3, v{t[1]}
    v_lshl_add_u32 v{t[0]}, v{t[0]}, 3, v{t[3]}
    v_add_u32 v{t[0]}, 1152, v{t[0]}
    v_and_b32 v{t[2]}, 3, v1
    v_lshl_add_u32 v{t[0]}, v{t[2]}, 18, v{t[0]}
    v_and_b32 v{t[2]}, 16, v1
    v_cmp_eq_u32 vcc, 0, v{t[2]}
    v_lshlrev_b32 v{t[2]}, 4, v{t[2]}
    v_mov_b32 v{t[3]}, 512
    v_cndmask_b32 v{t[1]}, v{t[0]}, v{t[1]}, vcc
    v_add_u32 v{r.aV}, s{sT}, v{t[1]}
    v_sub_u32 v{t[2]}, 128, v{t[2]}
    v_cndmask_b32 v{t[3]}, 64, v{t[3]}, vcc
    v_add_u32 v{r.aV+1}, v{r.aV}, v{t[2]}
    v_add_u32 v{r.aV+2}, v{r.aV}, v{t[3]}
    v_add_u32 v{r.aV+3}, v{r.aV+2}, v{t[2]}
    v_mov_b32 v{r.idx}, 0xdddddddd
    s_mov_b32 s72, {fbits(2.0**-40)}
    s_mov_b32 s73, {fbits(2.0**60)}
    s_movk_i32 s64, 0x1f8
    s_mov_b64 s[62:63], {-1 if 'nochk' in EXP else 0}
    s_lshl_b32 s{sT}, s{sQP}, 11
    s_add_u32 s{sT}, s{sT}, {QST}
    v_add_u32 v{t[0]}, s{sT}, v{vL16}
    v_and_b32 v{t[1]}, 31, v1
    s_lshl_b32 s{sT}, s{sQP}, 8
    s_add_u32 s{sT}, s{sT}, {QST+8192}
    v_lshl_add_u32 v{t[1]}, v{t[1]}, 2, s{sT}
    v_cmp_gt_u32 vcc, 32, v1
    s_lshl_b32 s{sQt}, s{sR}, 2
    s_add_u32 s{sQt}, s{sQt}, s{sQP}
    """)
    for X in range(2):
        for i in (1, 2, 5, 6): a(f"v_mov_b32 v{r.Qx[X]+i}, 0")
        for i in range(16): a(f"v_mov_b32 v{r.O[X]+i}, 0")
    a.stamp(6)
    a(f"s_lshl_b32 s82, s{sQP}, 2\ns_add_u32 s82, s82, {CNT}\ns_lshl_b32 s83, s{sKQ}, 3\ns_add_u32 s83, s83, {CNT}")
    lds_spin(a, PL, PL + 1, 1, sT, saddr=82, off=C_Q)
    a(f"""
    ds_read_b128 {vr(r.Qm[0],4)}, v{t[0]}
    ds_read_b128 {vr(r.Qm[1],4)}, v{t[0]} offset:1024
    ds_read2_b32 {vr(t[2],2)}, v{t[1]} offset0:0 offset1:32
    """)
    lds_inc(a, PL, PL + 1, off=C_Y)
    a("s_waitcnt lgkmcnt(1)")
    for X in range(2):
        q = r.Qx[X]; src = t[2] + X
        a(f"""
        v_cndmask_b32 v{q+0}, 0, v{src}, vcc
        v_cndmask_b32 v{q+3}, 0, v{src}, vcc
        v_cndmask_b32 v{q+4}, v{src}, 0, vcc
        v_cndmask_b32 v{q+7}, v{src}, 0, vcc
        """)
    lds_spin(a, PL, PL + 1, 1, sT, saddr=83, off=C_KV)
    a(f"""
    ds_read_b64 {vr(r.Kx,2)}, v{r.aKx} offset:{kx_off(0)}
    ds_read_b128 {vr(r.K,4)}, v{r.aK} offset:{k_off(0)}
    ds_read_b64_tr_b16 {vr(r.V0,2)}, v{r.aV} offset:{v_off(0)}
    ds_read_b64_tr_b16 {vr(r.V0+2,2)}, v{r.aV+1} offset:{v_off(0)}
    """)
    def stage2_pre():
        a(f"v_mov_b32 v{t[0]}, s83\nds_read_b32 v{t[1]}, v{t[0]} offset:{C_KV}")
    def stage2_post():
        if 'nos2' in EXP: return
        L = a.label("cok")
        a(f"v_cmp_gt_u32 vcc, 2, v{t[1]}\ns_cbranch_vccz {L}")
        lds_spin(a, t[0], t[1], 2, sT, saddr=83, off=C_KV)
        a(f"{L}:")
    def wt_issue():
        L = a.label("nw")
        a(f"s_cmp_ge_u32 s{S_WAVE}, 8\ns_cbranch_scc1 {L}")
        at_store()
        a(f"s_cmp_ge_u32 s{S_WAVE}, 3\ns_cbranch_scc1 {L}\ns_lshl_b32 s79, s{S_WAVE}, 8\ns_add_u32 s79, s79, s2")
        if 'nowt' in EXP: a("s_movk_i32 s79, 1000")
        wt_load(a, 79, sT, 78, 77, 76, 75, t[0], t[1], t[2], PL)
        a(f"{L}:")
    def wt_put():
        L, Ls = a.label("nw"), a.label("ns")
        a(f"s_cmp_ge_u32 s{S_WAVE}, 8\ns_cbranch_scc1 {Ls}\ns_cmp_ge_u32 s{S_WAVE}, 3\ns_cbranch_scc1 {L}\ns_waitcnt vmcnt(0)")
        wt_store(a, 79, PL, vL16)
        a(f"{L}:\ns_lshr_b32 s78, s{S_WAVE}, 1")
        kv_flags(PL + 4, PL + 5, 78)
        a("s_mov_b64 exec, 0xff")
        poll_issue(a, PL + 5, 1, PL + 4, 0)
        a(f"s_mov_b64 exec, -1\n{Ls}:")
    def second_blocks():
        Ls, Lw = a.label("kvs"), a.label("nw")
        a(f"s_cmp_ge_u32 s{S_WAVE}, 8\ns_cbranch_scc1 {Ls}\ns_mov_b64 exec, 0xff")
        poll_wait(a, PL + 5, 1, PL + 4, 0, issued=True)
        a("s_mov_b64 exec, -1")
        publish_a(Lw)
        a(f"{Lw}:")
        lds_spin(a, t[0], t[1], 16, sT, off=C_Y)
        a(f"s_lshl_b32 s82, s78, 3\ns_add_u32 s82, s82, {CNT}")
        lds_spin(a, t[0], t[1], 1, sT, saddr=82, off=C_KV)
        a(f"""
        ds_read_b32 v{t[1]}, v{t[0]} offset:{C_KV+4}
        s_and_b32 s{sT}, s{S_WAVE}, 6
        s_waitcnt lgkmcnt(0)
        v_readfirstlane_b32 s{sT2}, v{t[1]}
        s_xor_b32 s{sT2}, s{sT2}, 1
        s_and_b32 s{sT2}, s{sT2}, 1
        s_add_u32 s{sT}, s{sT}, s{sT2}
        s_mul_i32 s{sT}, s{sT}, {BLK}
        s_add_u32 s{sT}, s{sT}, s{sKV}
        s_and_b32 s{sT2}, s{S_WAVE}, 1
        s_mul_i32 s{sT2}, s{sT2}, 9216
        s_add_u32 s{sT}, s{sT}, s{sT2}
        s_mul_i32 s82, s78, {BLK}
        s_add_u32 s82, s82, s{sT2}
        s_add_u32 m0, s82, {REG_B}
        s_nop 0
        """)
        for i in range(10):
            a(f"buffer_load_dwordx4 v{vL16}, {WS}, s{sT} offen offset:{1024*(i&3)}{LD} lds")
            if i & 3 == 3: a(f"s_add_u32 m0, m0, 4096\ns_add_u32 s{sT}, s{sT}, 4096")
        a(f"{Ls}:")
    if os.environ.get('DLY'): a(f"s_sleep {os.environ['DLY']}")
    a("s_waitcnt lgkmcnt(2)\ns_nop 0")
    a.stamp(7)
    def poll_post():
        L = a.label("nopa")
        a(f"s_cmp_lg_u32 s{S_WAVE}, 0\ns_cbranch_scc1 {L}")
        poll_issue(a, PL, 4, vL16, FL_A)
        if 'warm' in EXP:
            a(f"""
            s_mul_i32 s{sT}, s{sQT3}, {32*1152}
            v_mov_b32 v{PL+4}, s{sT}
            s_mov_b64 exec, 1
            global_load_dword v{PL+5}, v{PL+4}, s[{P_OUT}:{P_OUT+1}]
            s_mul_i32 s{sT}, s{sQT3}, {36*1024}
            s_add_u32 s{sT}, s{sT}, {OF_OFF}
            buffer_load_dword v{PL+6}, off, {WS}, s{sT} sc1
            s_mul_i32 s{sT}, s{sQt}, {72*1024}
            s_add_u32 s{sT}, s{sT}, {OF_OFF}
            buffer_load_dword v{PL+7}, off, {WS}, s{sT} sc1
            s_mov_b64 exec, -1
            """)
        a(f"{L}:")
    def poll_check():
        L = a.label("nopw")
        a(f"s_cmp_lg_u32 s{S_WAVE}, 0\ns_cbranch_scc1 {L}")
        poll_wait(a, PL, 4, vL16, FL_A, issued=True)
        lds_inc(a, t[0], t[1], off=C_FA)
        a(f"{L}:")
    def mid_post():
        a("s_waitcnt vmcnt(0)")
        a.stamp(15)
        a(f"s_setprio {PRIO['M']}")
        if 'nom' not in EXP: a("s_barrier")
        if os.environ.get('DLYM'): a(f"s_sleep {os.environ['DLYM']}")
        a.stamp(16)
    NLD = 8
    def prefetch_post():
        La, Ld = a.label("pfa"), a.label("pfd")
        a(f"""
        s_cmp_ge_u32 s{S_WAVE}, {0 if 'nopf' in EXP else 9}
        s_cbranch_scc1 {La}
        """)
        lds_spin(a, t[0], t[1], 1, sT, off=C_FA)
        a(f"""
        s_mul_i32 s{sT}, s{sDQ}, 9
        s_add_u32 s{sT}, s{sT}, s{S_WAVE}
        s_lshl_b32 m0, s{S_WAVE}, 13
        s_mul_i32 s{sT}, s{sT}, {18*1024}
        s_add_u32 s{sT}, s{sT}, {WT_OFF}
        """)
        for n in range(NLD):
            a(f"buffer_load_dwordx4 v{vL16}, {WS}, s{sT} offen offset:{1024*(n&3)}{LD} lds")
            if n == 3: a(f"s_add_u32 m0, m0, 4096\ns_add_u32 s{sT}, s{sT}, 4096")
        a(f"""
        v_lshrrev_b32 v{t[0]}, 2, v1
        v_lshlrev_b32 v{t[0]}, 12, v{t[0]}
        v_and_b32 v{t[1]}, 3, v1
        v_lshl_add_u32 v{t[0]}, v{t[1]}, 4, v{t[0]}
        s_mul_i32 s{sT}, s{sDQ}, 9
        s_add_u32 s{sT}, s{sT}, s{S_WAVE}
        s_lshl_b32 s{sT}, s{sT}, 16
        s_lshl_b32 s{sT2}, s{sQT3}, 6
        s_add_u32 s{sT}, s{sT}, s{sT2}
        s_add_u32 s{sT}, s{sT}, {AT_OFF}
        s_lshl_b32 s{sK1}, s{S_WAVE}, 10
        s_add_u32 s{sT2}, s{sK1}, {SPARE - 4096}
        s_add_u32 s{sK1}, s{sK1}, {72*1024}
        s_cmp_ge_u32 s{S_WAVE}, 4
        s_cselect_b32 s{sK1}, s{sT2}, s{sK1}
        s_mov_b32 m0, s{sK1}
        s_nop 0
        buffer_load_dwordx4 v{t[0]}, {WS}, s{sT} offen{LD} lds
        {La}:
        """)
    HK = eval(os.environ.get('HK', '(1, 4, 5)'))
    vP16, vP8, vP4, vPC, vXo = PL, PL + 1, PL + 2, PL + 3, PL + 4
    sFO, sOM, sOX = 60, 61, 65
    def tail_setup():
        a(f"""
        s_mul_i32 s{sCB}, s{sQP}, 4864
        s_add_u32 s{sCB}, s{sCB}, {REG_B}
        s_lshl_b32 s82, s{sKQ}, 2
        s_add_u32 s82, s82, {CNT}
        s_lshl_b32 s83, s{sQP}, 2
        s_add_u32 s83, s83, {CNT}
        v_add_u32 v{vP16}, s{sCB}, v{vL16}
        v_lshl_add_u32 v{vP8}, v1, 3, s{sCB}
        v_lshl_add_u32 v{vP4}, v1, 2, s{sCB}
        v_mov_b32 v{vPC}, s83
        v_lshrrev_b32 v{vXo}, 5, v1
        v_mul_u32_u24 v{vXo}, {36*1024 - 128}, v{vXo}
        v_lshl_add_u32 v{vXo}, v1, 2, v{vXo}
        s_lshl_b32 s{sFO}, s{sQt}, 5
        s_add_u32 s{sFO}, s{sFO}, s{sHd}
        s_lshl_b32 s{sFO}, s{sFO}, 7
        s_add_u32 s{sFO}, s{sFO}, {FL_O}
        s_mul_i32 s{sOM}, s{sQt}, {72*1024}
        s_add_u32 s{sOM}, s{sOM}, {OF_OFF}
        s_lshl_b32 s{sT}, s{sHd}, 7
        s_add_u32 s{sOX}, s{sOM}, s{sT}
        s_add_u32 s{sOX}, s{sOX}, 32768
        s_lshl_b32 s{sT}, s{sHd}, 10
        s_add_u32 s{sOM}, s{sOM}, s{sT}
        s_add_u32 s66, s{sOM}, {36*1024}
        s_mov_b32 s76, -1
        s_mov_b32 s77, 0
        """)
    PX = r.K
    def tail_reads():
        a(f"""
        ds_read_b32 v{PX+3}, v{vPC} offset:{C_P}
        ds_read_b64 {vr(PX,2)}, v{vP8} offset:4096
        ds_read_b32 v{PX+2}, v{vP4} offset:4608
        ds_read_b128 v[8:11], v{vP16}
        ds_read_b128 v[12:15], v{vP16} offset:1024
        ds_read_b128 v[16:19], v{vP16} offset:2048
        ds_read_b128 v[20:23], v{vP16} offset:3072
        """)
    attn_loop(a, r, PRIO, {S1 - 2: stage2_pre}, {HK[0]: wt_issue, S1 - 2: stage2_post, HK[1]: wt_put, HK[2]: second_blocks, 7: mid_post, 8: poll_post, 10: poll_check, 11: prefetch_post, 12: tail_setup}, tail_reads)
    a('s_setprio 3')
    a.stamp(8)
    O0, O1 = r.O
    FD = [72 + 4*i for i in range(10)]
    FL = [8 + 4*i for i in range(8)]
    FA3 = FL + FD
    AV, vG, vB, vOut, ACC3, FB3 = 112, 116, 118, t[3], PL, 40
    OZ = REG_B + BLK
    Lfin, Lp9, Lend, Lfirst, Lwr = [a.label(x) for x in ("fin", "p9", "end", "first", "wr")]
    Lre, Lok = a.label("re"), a.label("ok")
    a(f"""
    s_cmp_eq_u32 s{sKQ}, 0
    s_cbranch_scc1 {Lfirst}
    s_waitcnt lgkmcnt(0)
    v_cmp_gt_u32 vcc, s{sKQ}, v{PX+3}
    s_cbranch_vccnz {Lre}
    {Lok}:
    """)
    a.stamp(18)
    for i in range(0, 8, 2): a(f"v_pk_add_f32 {vr(O0+i,2)}, {vr(O0+i,2)}, {vr(8+i,2)}")
    a("s_nop 2")
    def pack():
        for i in (2, 0, 1): a(f"v_permlane32_swap_b32 v{O0+8+i}, v{O1+8+i}")
        a("s_nop 0")
    pack()
    a(f"v_add_f32 v{O0+10}, v{O0+10}, v{PX+2}\nv_pk_add_f32 {vr(O0+8,2)}, {vr(O0+8,2)}, {vr(PX,2)}\nv_mov_b32 v{O1+10}, v{O0+10}")
    for i in range(0, 8, 2): a(f"v_pk_add_f32 {vr(O1+i,2)}, {vr(O1+i,2)}, {vr(16+i,2)}")
    a(f"s_cmp_eq_u32 s{sKQ}, 3\ns_cbranch_scc1 {Lfin}\ns_branch {Lwr}\n{Lre}:")
    lds_spin(a, t[0], t[1], f"s{sKQ}", sT, saddr=83, off=C_P)
    tail_reads()
    a(f"s_waitcnt lgkmcnt(0)\ns_branch {Lok}\n{Lfirst}:")
    lds_inc(a, t[0], t[1], saddr=82, off=C_E)
    lds_spin(a, t[0], t[1], 4, sT, saddr=82, off=C_E)
    pack()
    a(f"""{Lwr}:
    ds_write_b128 v{vP16}, {vr(O0,4)}
    ds_write_b128 v{vP16}, {vr(O0+4,4)} offset:1024
    ds_write_b128 v{vP16}, {vr(O1,4)} offset:2048
    ds_write_b128 v{vP16}, {vr(O1+4,4)} offset:3072
    ds_write_b64 v{vP8}, {vr(O0+8,2)} offset:4096
    ds_write_b32 v{vP4}, v{O0+10} offset:4608
    """)
    lds_inc(a, t[0], t[1], saddr=83, off=C_P)
    lds_inc(a, t[0], t[1], saddr=82, off=C_E)
    a("s_setprio 0")
    a.stamp(17)
    a(f"""
    s_cmp_ge_u32 s{S_WAVE}, 9
    s_cbranch_scc1 {Lp9}
    v_and_b32 v{t[2]}, 15, v1
    v_lshlrev_b32 v{t[2]}, 2, v{t[2]}
    s_lshl_b32 s{sT}, s{sQT3}, 7
    s_add_u32 s{sT}, s{sT}, {G_OFF}
    s_waitcnt lgkmcnt(0)
    buffer_load_dword v{vG}, v{t[2]}, {WS}, s{sT} offen{LD}
    buffer_load_dword v{vG+1}, v{t[2]}, {WS}, s{sT} offen offset:64{LD}
    s_mul_i32 s{sK0}, s{sDQ}, 9
    s_add_u32 s{sK0}, s{sK0}, s{S_WAVE}
    s_mul_i32 s{sT}, s{sK0}, {18*1024}
    s_add_u32 s{sT}, s{sT}, {WT_OFF + NLD*1024}
    """)
    if 'wtlate' in EXP:
        L = a.label("wl")
        a(f"s_cmp_lt_u32 s{S_WAVE}, {os.environ.get('WTE', '0')}\ns_cbranch_scc1 {L}")
        lds_spin(a, t[0], t[1], 4, sT2, off=C_O)
        a(f"{L}:")
    for n in range(10):
        a(f"buffer_load_dwordx4 {vr(FD[n],4)}, v{vL16}, {WS}, s{sT} offen offset:{1024*(n&3)}{LD}")
        if n & 3 == 3: a(f"s_add_u32 s{sT}, s{sT}, 4096")
    a(f"""
    s_lshl_b32 s{sT}, s{S_WAVE}, 13
    v_add_u32 v{t[0]}, s{sT}, v{vL16}
    v_lshrrev_b32 v{t[1]}, 2, v1
    v_lshlrev_b32 v{t[1]}, 6, v{t[1]}
    v_and_b32 v{t[2]}, 3, v1
    v_lshl_add_u32 v{t[1]}, v{t[2]}, 3, v{t[1]}
    v_add_u32 v{t[1]}, s{sK1}, v{t[1]}
    s_waitcnt vmcnt(10)
    """)
    for ks in range(NLD):
        a(f"ds_read_b128 {vr(FL[ks],4)}, v{t[0]} offset:{1024*ks}")
    a(f"""
    ds_read_b64_tr_b16 {vr(AV,2)}, v{t[1]}
    ds_read_b64_tr_b16 {vr(AV+2,2)}, v{t[1]} offset:32
    v_lshrrev_b32 v{t[0]}, 4, v1
    v_and_b32 v{t[2]}, 15, v1
    v_lshlrev_b32 v{vB}, 9, v{t[0]}
    v_add_u32 v{vB}, {OZ}, v{vB}
    v_lshl_add_u32 v{vB+1}, v{t[2]}, 2, v{vB}
    v_add_u32 v{vB+1}, 32768, v{vB+1}
    v_lshl_add_u32 v{vB}, v{t[2]}, 4, v{vB}
    v_mul_u32_u24 v{vOut}, 1152, v{t[2]}
    v_lshl_add_u32 v{vOut}, v{t[0]}, 3, v{vOut}
    v_add_u32 v{t[2]}, 2048, v{vB+1}
    """)
    for T in range(2):
        g = vG + T
        a(f"""
        v_cvt_pk_bf16_f32 v{g}, v{g}, v{g}
        v_and_b32 v{g}, 0xffff0000, v{g}
        v_mul_f32 v{g}, {fbits(-L_HI)}, v{g}
        v_exp_f32 v{g}, v{g}
        s_nop 0
        v_add_f32 v{g}, 1.0, v{g}
        v_rcp_f32 v{g}, v{g}
        s_nop 0
        v_cvt_pk_bf16_f32 v{g}, v{g}, v{g}
        v_and_b32 v{g}, 0xffff0000, v{g}
        """)
    for i in range(8): a(f"v_mov_b32 v{ACC3+i}, 0")
    srd(a, R_A, P_OUT, X_BYTES)
    Lscan = a.label("scan")
    a(f"""
    s_mul_i32 s{sT}, s{sQT3}, {32*1152}
    s_lshl_b32 s{sT2}, s{sK0}, 5
    s_add_u32 s{sK0}, s{sT}, s{sT2}
    s_add_u32 s{sK1}, s{sK0}, {16*1152}
    v_mov_b32 v{t[0]}, {CNT}
    s_mov_b32 s74, 0
    s_mov_b32 s{S_SPIN}, {SPIN_MAX}
    s_waitcnt vmcnt(0) lgkmcnt(0)
    """)
    a.stamp(12)
    a(f"""
    s_branch {Lscan}
    {Lscan}_s:
    s_sleep 1
    {Lscan}:
    ds_read_b32 v{t[1]}, v{t[0]} offset:{C_F}
    s_sub_u32 s{S_SPIN}, s{S_SPIN}, 1
    s_cselect_b32 s77, 0xff, 0
    s_waitcnt lgkmcnt(0)
    v_readfirstlane_b32 s75, v{t[1]}
    s_or_b32 s75, s75, s77
    s_andn2_b32 s76, s75, s74
    s_cbranch_scc0 {Lscan}_s
    s_mov_b32 s74, s75
    s_cmp_eq_u32 s75, 0xff
    s_cselect_b32 s77, 0x100, 0
    s_or_b32 s76, s76, s77
    """)
    if a.diag and 13 in a.only:
        a.stamp(13); a("s_bcnt1_i32_b32 s98, s76\nv_writelane_b32 v2, s98, 14")
    def rd(g):
        b = FB3 + 16 * (g & 1)
        for n in range(4):
            T = n & 1; d = b + 4 * n
            if g < 8:
                a(f"ds_read_b128 {vr(d,4)}, v{vB} offset:{(2*g+(n>>1))*2048 + T*256}")
            else:
                va = vB + 1 if n < 2 else t[2]
                a(f"ds_read2_b32 {vr(d,2)}, v{va} offset0:{16*T} offset1:{16*T+32}")
                a(f"ds_read2_b32 {vr(d+2,2)}, v{va} offset0:{16*T+64} offset1:{16*T+96}")
    def mm(g, younger):
        b = FB3 + 16 * (g & 1); k = 2 if g == 8 else 1
        for n in range(4):
            T = n & 1
            a(f"s_waitcnt lgkmcnt({younger + k*(3-n)})\nv_mfma_f32_16x16x32_bf16 {vr(ACC3+4*T,4)}, {vr(FA3[2*g+(n>>1)],4)}, {vr(b+4*n,4)}, {vr(ACC3+4*T,4)}")
    for g in range(9):
        a(f"L_e{g}:\ns_bitcmp1_b32 s76, {g}\ns_cbranch_scc1 L_r{g}")
    a(f"s_branch {Lscan}")
    for g in range(9):
        a(f"L_r{g}:")
        rd(g)
        a(f"s_branch L_p{g+1}")
    for g in range(1, 9):
        a(f"L_f{g}:")
        mm(g - 1, 0)
        a(f"s_branch L_e{g+1}" if g < 8 else f"s_branch {Lscan}")
    for g in range(1, 9):
        a(f"L_p{g}:\ns_bitcmp0_b32 s76, {g}\ns_cbranch_scc1 L_f{g}")
        rd(g)
        mm(g - 1, 8 if g == 8 else 4)
    a("L_p9:")
    W = 8
    mm(8, 0)
    a.stamp(21)
    for T in range(2):
        for h in range(2):
            a(f"v_lshlrev_b32 v{W+4*T+2*h}, 16, v{AV+2*T+h}\nv_and_b32 v{W+4*T+2*h+1}, 0xffff0000, v{AV+2*T+h}")
    for T in range(2):
        a(f"v_sub_f32 v{W+8+T}, 1.0, v{vG+T}")
        for i in range(4): a(f"v_mul_f32 v{W+4*T+i}, v{vG+T}, v{W+4*T+i}")
    a(f"v_cvt_pk_bf16_f32 v{W+8}, v{W+8}, v{W+9}\nv_and_b32 v{W+9}, 0xffff0000, v{W+8}\nv_lshlrev_b32 v{W+8}, 16, v{W+8}")
    for T in range(2):
        for i in range(4): a(f"v_fmac_f32 v{W+4*T+i}, v{W+8+T}, v{ACC3+4*T+i}")
        a(f"""
        v_cvt_pk_bf16_f32 v{W+12+2*T}, v{W+4*T}, v{W+4*T+1}
        v_cvt_pk_bf16_f32 v{W+13+2*T}, v{W+4*T+2}, v{W+4*T+3}
        buffer_store_dwordx2 {vr(W+12+2*T,2)}, v{vOut}, s[{R_A}:{R_A+3}], s{sK0 if T == 0 else sK1} offen
        """)
    a(f"s_branch {Lend}")
    Lpl, Lpc, Lpd = a.label("pl"), a.label("pc"), a.label("pd")
    a(f"{Lp9}:")
    lds_spin(a, t[0], t[1], 4, sT, off=C_E + 4)
    lds_spin(a, t[0], t[1], 4, sT, off=C_E + 8)
    a(f"""
    s_setprio {os.environ.get('SPRIO', '3')}
    s_sub_u32 s77, s{S_WAVE}, 9
    s_mul_i32 s77, s77, 3
    s_lshl_b32 s{sT}, s77, 2
    v_add_u32 v{t[2]}, s{sT}, v1
    s_lshr_b32 s{sT}, s{sQT3}, 1
    s_lshl_b32 s{sT}, s{sT}, 12
    s_add_u32 s{sT}, s{sT}, {FL_O}
    v_lshl_add_u32 v{t[2]}, v{t[2]}, 7, s{sT}
    s_cmp_eq_u32 s77, 6
    s_movk_i32 s74, 0xfff
    s_cselect_b32 s74, 0xff, s74
    s_mov_b32 s75, 0
    s_mul_i32 s78, s{sQT3}, {36*1024}
    s_add_u32 s78, s78, {OF_OFF}
    v_mov_b32 v{t[0]}, {CNT}
    s_mov_b32 s{S_SPIN}, {SPIN_MAX}
    {Lpl}:
    s_mov_b32 exec_lo, s74
    s_mov_b32 exec_hi, 0
    buffer_load_dword v{t[3]}, v{t[2]}, {WS}, 0 offen sc1
    s_cmp_eq_u32 s75, 0
    s_cbranch_scc1 {Lpd}
    s_mov_b64 exec, 1
    s_waitcnt vmcnt(1)
    ds_or_b32 v{t[0]}, v{t[1]} offset:{C_F}
    s_mov_b32 exec_lo, s74
    {Lpd}:
    s_waitcnt vmcnt(0)
    v_cmp_ne_u32 vcc, s{S_TAG}, v{t[3]}
    s_mov_b64 exec, -1
    s_sub_u32 s{S_SPIN}, s{S_SPIN}, 1
    s_cselect_b32 vcc_lo, 0, vcc_lo
    s_orn2_b32 s76, vcc_lo, s74
    s_mov_b32 s75, 0
    """)
    for i in range(3):
        L = a.label("og")
        a(f"""
        s_and_b32 s{sT}, s76, {0xf << (4*i)}
        s_cbranch_scc1 {L}
        s_andn2_b32 s74, s74, {0xf << (4*i)}
        s_add_u32 s{sT}, s77, {i}
        s_bitset1_b32 s75, s{sT}
        s_lshl_b32 s{sT2}, s{sT}, 12
        s_add_u32 m0, s{sT2}, {OZ}
        s_add_u32 s{sT2}, s{sT2}, s78
        """)
        for n in range(4):
            a(f"buffer_load_dwordx4 v{vL16}, {WS}, s{sT2} offen offset:{1024*n}{LD} lds")
        a(f"""
        s_lshl_b32 s{sT2}, s{sT}, 9
        s_add_u32 m0, s{sT2}, {OZ + 32768}
        s_add_u32 s{sT2}, s{sT2}, s78
        s_add_u32 s{sT2}, s{sT2}, 32768
        s_mov_b64 exec, 0xffffffff
        buffer_load_dwordx4 v{vL16}, {WS}, s{sT2} offen{LD} lds
        s_mov_b64 exec, -1
        {L}:
        """)
    a(f"""
    s_cmp_eq_u32 s75, 0
    s_cbranch_scc1 {Lpc}
    v_mov_b32 v{t[1]}, s75
    s_cmp_eq_u32 s74, 0
    s_cbranch_scc0 {Lpl}
    s_mov_b64 exec, 1
    s_waitcnt vmcnt(0)
    ds_or_b32 v{t[0]}, v{t[1]} offset:{C_F}
    s_mov_b64 exec, -1
    """)
    a.stamp(20)
    a(f"""
    s_branch {Lend}
    {Lpc}:
    s_sleep {os.environ.get('OSLEEP', '3')}
    s_branch {Lpl}
    """)
    a.c("softmax ran without max subtraction: valid only if the row sums stayed in a safe range, else redo with the true max")
    a(f"""{Lfin}:
    v_permlane32_swap_b32 v{O0+10}, v{O1+10}
    s_nop 0
    v_rcp_f32 v{t[0]}, v{O0+10}
    v_rcp_f32 v{t[2]}, v{O1+10}
    """)
    for i in range(0, 8, 2): a(f"v_pk_mul_f32 {vr(O0+i,2)}, {vr(O0+i,2)}, {vr(t[0],2)} op_sel_hi:[1,0]")
    for i in range(4): a(f"v_cvt_pk_bf16_f32 v{8+i}, v{O0+2*i}, v{O0+2*i+1}")
    a(f"buffer_store_dwordx4 v[8:11], v{vL16}, {WS}, s{sOM} offen{ST}")
    for i in range(0, 8, 2): a(f"v_pk_mul_f32 {vr(O1+i,2)}, {vr(O1+i,2)}, {vr(t[2],2)} op_sel_hi:[1,0]")
    a(f"v_cndmask_b32 v{t[0]}, v{t[2]}, v{t[0]}, s[76:77]")
    for i in range(4): a(f"v_cvt_pk_bf16_f32 v{12+i}, v{O1+2*i}, v{O1+2*i+1}")
    a(f"""
    buffer_store_dwordx4 v[12:15], v{vL16}, {WS}, s66 offen{ST}
    v_pk_mul_f32 {vr(O0+8,2)}, {vr(O0+8,2)}, {vr(t[0],2)} op_sel_hi:[1,0]
    v_cvt_pk_bf16_f32 v16, v{O0+8}, v{O0+9}
    buffer_store_dword v16, v{vXo}, {WS}, s{sOX} offen{ST}
    """)
    a.stamp(19)
    lds_inc(a, t[0], t[1], saddr=82, off=C_E)
    a(f"""
    v_min_f32 v{t[2]}, v{O0+10}, v{O1+10}
    v_max_f32 v{t[3]}, v{O0+10}, v{O1+10}
    v_cmp_le_f32 s[74:75], s72, v{t[2]}
    v_cmp_ge_f32 vcc, s73, v{t[3]}
    v_add_f32 v{t[2]}, v{O0+8}, v{O0+9}
    s_and_b64 s[74:75], s[74:75], vcc
    """)
    if 'wtlate' in EXP: lds_inc(a, t[0], t[1], off=C_O)
    for i in range(0, 8, 2):
        a(f"v_add_f32 v{O0+i}, v{O0+i}, v{O0+i+1}\nv_add_f32 v{O1+i}, v{O1+i}, v{O1+i+1}")
    a(f"""
    v_add_f32 v{O0}, v{O0}, v{O0+2}
    v_add_f32 v{O0+4}, v{O0+4}, v{O0+6}
    v_add_f32 v{O1}, v{O1}, v{O1+2}
    v_add_f32 v{O1+4}, v{O1+4}, v{O1+6}
    v_add_f32 v{O0}, v{O0}, v{O0+4}
    v_add_f32 v{O1}, v{O1}, v{O1+4}
    v_add_f32 v{t[2]}, v{t[2]}, v{O0}
    v_add_f32 v{t[2]}, v{t[2]}, v{O1}
    v_cmp_class_f32 vcc, v{t[2]}, s64
    s_and_b64 s[74:75], s[74:75], vcc
    s_or_b64 s[74:75], s[74:75], s[62:63]
    s_cmp_eq_u64 s[74:75], -1
    s_cbranch_scc0 L_fallback
    """)
    a(f"v_mov_b32 v{t[0]}, s{S_TAG}\nv_lshlrev_b32 v{t[1]}, 2, v1\ns_mov_b64 exec, 0xffff\n{'s_nop 0' if 'hintO' in EXP else 's_waitcnt vmcnt(0)'}\nbuffer_store_dword v{t[0]}, v{t[1]}, {WS}, s{sFO} offen sc1\ns_mov_b64 exec, -1")
    a.stamp(20)
    a(f"""
    s_lshl_b32 s{sT}, s2, 4
    s_add_u32 s{sT}, s{sT}, s{S_WAVE}
    s_cmp_lg_u32 s{sT}, 12
    s_cbranch_scc1 {Lend}
    s_mov_b32 s{sT2}, {FL_OFF}
    """)
    flag_store(a, t[0], sT2)
    a(f"{Lend}:")
    def cold():
        a("L_fallback:")
        lds_spin(a, t[0], t[1], 4, sT, saddr=82, off=C_E)
        fallback(a, r, t, vL16, sKV, sQP, sT, sT2)
        a(f"""
        s_mov_b32 s76, -1
        s_mov_b32 s77, 0
        s_mov_b32 s82, {CNT+12}
        s_mov_b64 s[62:63], -1
        """)
        pack()
        a(f"v_mov_b32 v{O1+10}, v{O0+10}\ns_nop 1\ns_branch {Lfin}")
    return cold

def fallback(a, r, t, vL16, sKV, sQP, sT, sT2):
    S, NM = r.S[0], r.S[1]
    sI, sP, sLds = 76, 77, 82
    vM, vKxo = r.aK, r.aKx
    a(f"""
    s_lshl_b32 s{sT}, s{sQP}, 11
    s_add_u32 s{sLds}, s{sT}, {REG_B + 3*BLK}
    v_and_b32 v{vKxo}, 31, v1
    v_lshlrev_b32 v{vKxo}, 3, v{vKxo}
    v_mov_b32 v{r.Kx+1}, 0
    """)
    for i in range(4): a(f"v_add_u32 v{r.aV+i}, s{sT}, v{r.aV+i}")
    for X in range(2):
        O = r.O[X]
        Lp, Lt, Lp2, Lnx, Ldn = a.label("fbpass"), a.label("fbtile"), a.label("fbp2"), a.label("fbnx"), a.label("fbdone")
        a(f"v_mov_b32 v{vM}, 0xff800000\ns_mov_b32 s{sP}, 0")
        for i in range(16): a(f"v_mov_b32 v{NM+i}, 0\nv_mov_b32 v{O+i}, 0")
        a(f"""{Lp}:
        s_mov_b32 s{sI}, 0
        {Lt}:
        s_lshr_b32 s{sT}, s{sI}, 3
        s_mul_i32 s{sT}, s{sT}, {BLK}
        s_add_u32 s{sT}, s{sT}, s{sKV}
        s_and_b32 s{sT2}, s{sI}, 7
        s_lshl_b32 s78, s{sT2}, 10
        s_add_u32 s78, s78, s{sT}
        buffer_load_dwordx4 {vr(r.K,4)}, v{vL16}, {WS}, s78 offen{LD}
        s_and_b32 s78, s{sI}, 6
        s_lshl_b32 s78, s78, 7
        s_and_b32 s79, s{sI}, 1
        s_lshl_b32 s79, s79, 2
        s_add_u32 s78, s78, s79
        s_add_u32 s78, s78, s{sT}
        s_add_u32 s78, s78, {KX_OFF}
        buffer_load_dword v{r.Kx}, v{vKxo}, {WS}, s78 offen{LD}
        s_mul_i32 s78, s{sT2}, 1280
        s_add_u32 s78, s78, s{sT}
        s_add_u32 s78, s78, {V_OFF}
        s_mov_b32 m0, s{sLds}
        s_nop 0
        buffer_load_dwordx4 v{vL16}, {WS}, s78 offen{LD} lds
        s_mov_b64 exec, 0xffff
        buffer_load_dwordx4 v{vL16}, {WS}, s78 offen offset:1024{LD} lds
        s_mov_b64 exec, -1
        s_waitcnt vmcnt(0)
        v_mfma_f32_32x32x8_bf16 {vr(S,16)}, {vr(r.Kx,2)}, {vr(r.Qx[X],2)}, {vr(NM,16)}
        v_mfma_f32_32x32x16_bf16 {vr(S,16)}, {vr(r.K,4)}, {vr(r.Qm[X],4)}, {vr(S,16)}
        ds_read_b64_tr_b16 {vr(r.V0,2)}, v{r.aV}
        ds_read_b64_tr_b16 {vr(r.V0+2,2)}, v{r.aV+1}
        ds_read_b64_tr_b16 {vr(r.V1,2)}, v{r.aV+2}
        ds_read_b64_tr_b16 {vr(r.V1+2,2)}, v{r.aV+3}
        s_waitcnt lgkmcnt(0)
        s_nop 15
        s_cmp_lg_u32 s{sP}, 0
        s_cbranch_scc1 {Lp2}
        """)
        for i in range(8): a(f"v_max3_f32 v{vM}, v{S+2*i}, v{S+2*i+1}, v{vM}")
        a(f"s_branch {Lnx}\n{Lp2}:")
        E(a, S, 0, 16)
        a(f"""
        s_nop 1
        v_smfmac_f32_32x32x32_bf16 {vr(O,16)}, {vr(r.V0,4)}, {vr(S,8)}, v{r.idx}
        v_smfmac_f32_32x32x32_bf16 {vr(O,16)}, {vr(r.V1,4)}, {vr(S+8,8)}, v{r.idx}
        {Lnx}:
        s_add_u32 s{sI}, s{sI}, 1
        s_cmp_lt_u32 s{sI}, 64
        s_cbranch_scc1 {Lt}
        s_cmp_lg_u32 s{sP}, 0
        s_cbranch_scc1 {Ldn}
        v_mov_b32 v{t[2]}, v{vM}
        s_nop 1
        v_permlane32_swap_b32 v{vM}, v{t[2]}
        s_nop 1
        v_max_f32 v{vM}, v{vM}, v{t[2]}
        """)
        for i in range(16): a(f"v_sub_f32 v{NM+i}, 0, v{vM}")
        a(f"""
        s_mov_b32 s{sP}, 1
        s_branch {Lp}
        {Ldn}:
        s_nop 15
        """)
```

```python
import sys
sys.path.insert(0, "gen")
from asmlib import *
from layout import *
import f1, f2
NAME = "gated_mix__ssm_conv_s4d__mha_block__prompt"
HEAD = open("cdna_kernels/" + NAME + ".s.ref").read().split("; Override launch")[0]

DOC = """;
"""

def build(diag=False):
    a = Asm(); a.diag = diag; a.lite = len(sys.argv) > 2 and sys.argv[2] == 'lite'
    import os
    probe = os.environ.get("PROBE")
    if probe is not None:
        a.probe = int(probe)
        a("s_memrealtime s[96:97]\ns_waitcnt lgkmcnt(0)\ns_mov_b32 s94, s96")
    name = NAME + "_kernel"
    if diag:
        a("s_memrealtime s[96:97]\ns_memtime s[94:95]\nv_mov_b32 v2, 0")
    f1.phase1(a, name, "L_end")
    if diag:
        a("v_writelane_b32 v2, s96, 0\nv_writelane_b32 v2, s94, 30")
    cold = f2.phase23(a)
    if diag:
        a("s_waitcnt vmcnt(0)")
        a.stamp(29); a.stamp(31, False)
        a(f"""
        s_lshl_b32 s4, s2, 4
        s_add_u32 s4, s4, s3
        s_lshl_b32 s4, s4, 7
        s_add_u32 s4, s4, {DG_OFF}
        v_lshlrev_b32 v3, 2, v1
        s_mov_b64 exec, 0xffffffff
        buffer_store_dword v2, v3, {f1.WS}, s4 offen
        """)
    if probe is not None:
        a("s_waitcnt vmcnt(0)")
        a.stamp(29)
        a("""
        s_sub_u32 s94, s94, s96
        s_lshl_b32 s94, s94, 2
        s_add_u32 s94, s94, 6000
        L_pad:
        s_sleep 4
        s_memrealtime s[98:99]
        s_waitcnt lgkmcnt(0)
        s_sub_u32 s98, s98, s96
        s_cmp_lt_u32 s98, s94
        s_cbranch_scc1 L_pad
        """)
    a("s_endpgm")
    cold()
    a("L_end:\ns_endpgm")
    out = HEAD + "; @launch grid=(256,1,1) block=(1024,1,1) lds=163840\n" + DOC + ".amdgcn_target \"amdgcn-amd-amdhsa--gfx950\"\n.text\n"
    out += f".globl {name}\n.p2align 8\n.type {name},@function\n{name}:\n" + a.text()
    out += f""".section .rodata,"a"
.p2align 6
.amdhsa_kernel {name}
  .amdhsa_next_free_vgpr 128
  .amdhsa_next_free_sgpr 100
  .amdhsa_accum_offset 128
  .amdhsa_group_segment_fixed_size 0
  .amdhsa_kernarg_size 112
  .amdhsa_user_sgpr_count 2
  .amdhsa_user_sgpr_kernarg_segment_ptr 1
  .amdhsa_system_sgpr_workgroup_id_x 1
  .amdhsa_float_denorm_mode_32 3
.end_amdhsa_kernel
"""
    return out

if __name__ == "__main__":
    open(sys.argv[1], "w").write(build(diag=len(sys.argv) > 2))
```

```python
from asmlib import *
from layout import *
import math, struct, os
EXP = os.environ.get('EXP', '').split(',')

S_WAVE = 3
P_U, P_LA, P_AI, P_CR, P_CI, P_DT, P_D = 16, 18, 20, 22, 24, 26, 28
P_W, P_WO, P_G, P_OUT, P_DBG, P_WS = 32, 34, 36, 38, 40, 42
R_X, R_W, R_WS, R_A, R_B, R_C, R_D = 44, 48, 52, 56, 60, 64, 68
S_TAG = 30
S_SPIN = 31
S_DV = 70
S_FQ = 67
S_C2 = 68
S_CB = 71
WS = f"s[{R_WS}:{R_WS+3}]"
ST = " sc1"
LD = " sc1"

SLOT = 32768
KG_BASE = 4 * SLOT
KG_STRIDE = 4608
GT = KG_BASE + 6 * KG_STRIDE
CNT = 163328
C_RDY, C_1, C_2, C_Q, C_S, C_O, C_F, C_E, C_P = 0, 16, 32, 48, 64, 72, 76, 80, 96
C_FA = 68
C_TG = 224
C_Y, C_A, C_FREE, C_YR, C_KV = 136, 140, 144, 160, 192
VM_Y = 0
REG_B = 4 * BLK
CP = 4160
CH = 4 * CP + 512 + 4096
UOFF = 4 * CP
CA = 3 * SLOT
QST = REG_B
assert CA + 3 * CH <= CNT and CA + 2 * CH <= GT and QST + 9216 <= CA
NBAR1 = 9
C3MASK = int(os.environ.get('C3MASK', '0xbf40'), 0)
UK = int(os.environ.get('UK', '0'))
LEAD = 3 if 'lead3' in EXP else 2
SPIN_MAX = 1 << 20

def chan(a, d, scs):
    a(f"s_lshl_b32 s{d}, s{scs}, 8\ns_add_u32 s{d}, s{d}, s{S_CB}\ns_cmp_eq_u32 s{scs}, 2\ns_cselect_b32 s{d}, s{S_C2}, s{d}")

def area(a, d, scs):
    a(f"s_mul_i32 s{d}, s{scs}, {CH}\ns_add_u32 s{d}, s{d}, {CA}")

def srd(a, r, p, nbytes):
    a(f"s_mov_b32 s{r}, s{p}\ns_mov_b32 s{r+1}, s{p+1}\ns_mov_b32 s{r+2}, {nbytes}\ns_mov_b32 s{r+3}, 0x20000")

LOG2E = 1.4426950408889634
def f32r(x): return struct.unpack("<f", struct.pack("<f", x))[0]
L_HI = f32r(LOG2E); L_LO = f32r(LOG2E - L_HI)
I2PI = 1.0 / (2 * math.pi)
I_HI = f32r(I2PI); I_LO = f32r(I2PI - I_HI)
LN2 = math.log(2.0)

def lds_inc(a, va, vb, saddr=None, off=0, rtn=None):
    if getattr(a, 'jit', 0): a.jitter()
    if saddr is None: a(f"v_mov_b32 v{va}, {CNT}")
    else: a(f"v_mov_b32 v{va}, s{saddr}")
    a(f"v_mov_b32 v{vb}, 1\ns_mov_b64 exec, 1")
    if rtn is None:
        a(f"ds_add_u32 v{va}, v{vb} offset:{off}\ns_mov_b64 exec, -1")
    else:
        a(f"ds_add_rtn_u32 v{vb}, v{va}, v{vb} offset:{off}\ns_mov_b64 exec, -1\ns_waitcnt lgkmcnt(0)\nv_readfirstlane_b32 s{rtn}, v{vb}")

def lds_spin(a, va, vb, target, stmp, saddr=None, off=0):
    L, Ld = a.label("lspin"), a.label("lsdone")
    if saddr is None: a(f"v_mov_b32 v{va}, {CNT}")
    else: a(f"v_mov_b32 v{va}, s{saddr}")
    a(f"""
    s_mov_b32 s{S_SPIN}, {SPIN_MAX}
    {L}:
    ds_read_b32 v{vb}, v{va} offset:{off}
    s_waitcnt lgkmcnt(0)
    v_readfirstlane_b32 s{stmp}, v{vb}
    s_cmp_ge_u32 s{stmp}, {target}
    s_cbranch_scc1 {Ld}
    s_sleep {os.environ.get('LSLEEP', '1')}
    s_sub_u32 s{S_SPIN}, s{S_SPIN}, 1
    s_cbranch_scc0 {L}
    {Ld}:
    """)
    if getattr(a, 'jit', 0): a.jitter()

def flag_line(a, vt, va, soff):
    a(f"""
    v_mov_b32 v{vt}, s{S_TAG}
    v_lshlrev_b32 v{va}, 2, v1
    s_mov_b64 exec, {os.environ.get('FLEX', '0xffff')}
    buffer_store_dword v{vt}, v{va}, {WS}, s{soff} offen sc1
    s_mov_b64 exec, -1
    """)

def flag_store(a, vt, soff):
    a(f"""
    v_mov_b32 v{vt}, s{S_TAG}
    s_mov_b64 exec, 1
    buffer_store_dword v{vt}, off, {WS}, s{soff} sc1
    s_mov_b64 exec, -1
    """)

def poll_issue(a, vd, n, voff, off):
    w = {1: "dword", 4: "dwordx4"}[n]
    a(f"buffer_load_{w} {vr(vd,n)}, v{voff}, {WS}, 0 offen offset:{off & 4095} sc1" if off < 4096 else
      f"s_movk_i32 s{S_SPIN}, {off}\nbuffer_load_{w} {vr(vd,n)}, v{voff}, {WS}, s{S_SPIN} offen sc1")

def poll_wait(a, vd, n, voff, soff_or_imm, issued=False):
    L, Lc, Ld = a.label("poll"), a.label("pollchk"), a.label("polld")
    w = {1: "dword", 4: "dwordx4"}[n]
    a(f"s_mov_b32 s{S_SPIN}, {SPIN_MAX}")
    if issued: a(f"s_branch {Lc}")
    a(f"""
    {L}:
    buffer_load_{w} {vr(vd,n)}, v{voff}, {WS}, 0 offen offset:{soff_or_imm} sc1
    {Lc}:
    s_waitcnt vmcnt(0)
    """)
    if n == 4:
        a(f"""
        v_xor_b32 v{vd}, s{S_TAG}, v{vd}
        v_xor_b32 v{vd+1}, s{S_TAG}, v{vd+1}
        v_xor_b32 v{vd+2}, s{S_TAG}, v{vd+2}
        v_xor_b32 v{vd+3}, s{S_TAG}, v{vd+3}
        v_or3_b32 v{vd}, v{vd}, v{vd+1}, v{vd+2}
        v_or_b32 v{vd}, v{vd}, v{vd+3}
        v_cmp_ne_u32 vcc, 0, v{vd}
        """)
    else:
        a(f"v_cmp_ne_u32 vcc, s{S_TAG}, v{vd}")
    a(f"""
    s_cbranch_vccz {Ld}
    s_sleep {os.environ.get('PSLEEP', '6')}
    s_sub_u32 s{S_SPIN}, s{S_SPIN}, 1
    s_cbranch_scc0 {L}
    {Ld}:
    """)

class Lgkm:
    def __init__(self, a): self.a = a; self.q = []; self.done = 0
    def load(self, txt, regs=()):
        self.a(txt); self.q.append(set(regs))
    def need(self, regs):
        regs = set(regs); last = -1
        for i, s in enumerate(self.q):
            if s & regs: last = i
        if last >= self.done:
            n = min(len(self.q) - 1 - last, 15)
            self.a(f"s_waitcnt lgkmcnt({n})")
            self.done = len(self.q) - n

def rng(b, n): return range(b, b + n)

sRB, sCT, sJ0 = 4, 5, 11

KG_T = [120, 121, 122, 123, 124, 125]
KG_C = 126
sKU, sKC = 65, 66
YB, YS = 32768, 32 * 272

def head(a, name, endlabel, Lkg, Lg):
    Lnp, Lnk = a.label("nopf"), a.label("nokg")
    t = KG_T
    a(f"""
    s_cmp_ge_u32 s2, 256
    s_cbranch_scc1 {endlabel}
    s_load_dwordx16 s[16:31], s[0:1], 0
    s_load_dwordx8 s[32:39], s[0:1], 64
    s_load_dwordx4 s[40:43], s[0:1], 96
    v_lshrrev_b32 v3, 6, v0
    v_and_b32 v1, 63, v0
    v_readfirstlane_b32 s{S_WAVE}, v3
    s_getpc_b64 s[8:9]
    L_pc:
    s_lshr_b32 s7, s2, 3
    s_and_b32 s{S_CB}, s2, 0xc0
    s_and_b32 s6, s7, 7
    s_or_b32 s{S_CB}, s{S_CB}, s6
    s_and_b32 s6, s2, 7
    s_lshl3_add_u32 s{S_CB}, s6, s{S_CB}
    s_lshr_b32 s{sRB}, s6, 1
    s_and_b32 s10, s7, 3
    s_lshl2_add_u32 s{sRB}, s{sRB}, s10
    s_and_b32 s{sCT}, s6, 1
    s_lshr_b32 s12, s7, 2
    s_lshl3_add_u32 s{sCT}, s{sCT}, s12
    """)
    if C3MASK:
        a(f"""
        s_bfm_b32 s13, s{sCT}, 0
        s_and_b32 s13, s13, {C3MASK}
        s_bcnt1_i32_b32 s13, s13
        s_and_b32 s{S_C2}, s6, 6
        s_lshl3_add_u32 s{S_C2}, s13, s{S_C2}
        s_and_b32 s13, s7, 1
        s_add_u32 s{S_C2}, s{S_C2}, s13
        s_addk_i32 s{S_C2}, 512
        s_bitcmp1_b32 {C3MASK}, s{sCT}
        s_cselect_b32 s{S_C2}, s{S_C2}, 576
        s_bitcmp1_b32 s2, 4
        s_cselect_b32 s{S_C2}, s{S_C2}, 576
        """)
    else:
        a(f"""
    s_mul_i32 s{S_C2}, s{sCT}, 43
    s_lshr_b32 s{S_C2}, s{S_C2}, 7
    s_lshl4_add_u32 s{S_C2}, s{S_C2}, s{sRB}
    s_addk_i32 s{S_C2}, 480
    s_bitcmp1_b32 {0x10000 if 'no3' in EXP else 0x9240}, s{sCT}
    s_cselect_b32 s{S_C2}, s{S_C2}, 576
        """)
    a(f"""
    s_cmp_lg_u32 s{S_WAVE}, 0
    s_cbranch_scc1 {Lnp}
    s_and_b32 s6, s7, 3
    s_lshl_b32 s6, s6, 13
    v_lshl_add_u32 v3, v1, 7, s6
    v_min_u32 v3, {endlabel}-L_pc, v3
    global_load_dword v3, v3, s[8:9]
    v_lshlrev_b32 v4, 2, v1
    v_add_u32 v4, {CNT}, v4
    v_mov_b32 v5, 0
    ds_write_b32 v4, v5
    {Lnp}:
    s_movk_i32 s{sKC}, 576
    s_mov_b32 s6, 0xcf3f
    s_bitcmp0_b32 s6, s{S_WAVE}
    s_cbranch_scc1 {Lnk}
    s_and_b32 s{sKU}, s{S_WAVE}, 7
    s_sub_u32 s6, s{sKU}, 2
    s_cmp_ge_u32 s{sKU}, 6
    s_cselect_b32 s{sKU}, s6, s{sKU}
    s_lshr_b32 s{sKC}, s{sKU}, 1
    s_lshl_b32 s{sKC}, s{sKC}, 8
    s_add_u32 s{sKC}, s{sKC}, s{S_CB}
    s_cmp_ge_u32 s{sKU}, 4
    s_cselect_b32 s{sKC}, s{S_C2}, s{sKC}
    s_min_u32 s6, s{sKC}, 575
    s_lshl_b32 s6, s6, 1
    v_mov_b32 v{t[4]}, s6
    s_and_b32 s13, s{sKU}, 1
    s_add_u32 s6, s6, s13
    s_lshl_b32 s6, s6, 7
    v_lshl_add_u32 v{t[0]}, v1, 1, s6
    s_waitcnt lgkmcnt(0)
    global_load_ushort v{t[3]}, v{t[4]}, s[{P_DT}:{P_DT+1}]
    global_load_ushort v{t[1]}, v{t[0]}, s[{P_LA}:{P_LA+1}]
    global_load_ushort v{t[2]}, v{t[0]}, s[{P_AI}:{P_AI+1}]
    s_cmp_ge_u32 s{S_WAVE}, 8
    s_cbranch_scc1 {Lnk}
    global_load_ushort v{KG_C}, v{t[0]}, s[{P_CR}:{P_CR+1}]
    global_load_ushort v{KG_C+1}, v{t[0]}, s[{P_CI}:{P_CI+1}]
    s_mov_b32 s5, s13
    s_barrier
    s_branch {Lkg}
    {Lnk}:
    s_lshl1_add_u32 s{sJ0}, s10, s12
    s_sub_u32 s8, s{sJ0}, 9
    s_cmp_ge_u32 s{sJ0}, 9
    s_cselect_b32 s{sJ0}, s8, s{sJ0}
    s_cmp_lt_u32 s{S_WAVE}, 8
    s_cbranch_scc1 L_ld
    s_lshl_b32 s8, s{sCT}, 4
    s_add_u32 s8, s8, s{S_WAVE}
    s_cmp_eq_u32 s8, 13
    s_cbranch_scc1 L_gate_dma
    s_barrier
    s_branch {Lg}
    L_ld:
    """)

def fetch_tag(a, v):
    a(f"""
    s_load_dword s60, s[{P_WS}:{P_WS+1}], {FL_OFF}
    s_lshr_b32 s69, s{S_CB}, 1
    s_lshl_b32 s69, s69, 2
    s_load_dword s61, s[{P_D}:{P_D+1}], s69
    s_add_u32 s69, s69, 512
    s_load_dword s62, s[{P_D}:{P_D+1}], s69
    s_min_u32 s69, s{S_C2}, 575
    s_lshr_b32 s69, s69, 1
    s_lshl_b32 s69, s69, 2
    s_load_dword s63, s[{P_D}:{P_D+1}], s69
    v_mov_b32 v{v+4}, {CNT}
    s_waitcnt lgkmcnt(0)
    s_mul_i32 s60, s60, 0x9e3779b1
    s_add_u32 s60, s60, 0x7f4a7c15
    v_mov_b32 v{v}, s60
    v_mov_b32 v{v+1}, s61
    v_mov_b32 v{v+2}, s62
    v_mov_b32 v{v+3}, s63
    ds_write_b128 v{v+4}, {vr(v,4)} offset:{C_TG}
    s_waitcnt lgkmcnt(0)
    """)

def get_tag(a, va, vb):
    a(f"""
    s_and_b32 s69, s{S_WAVE}, 12
    s_add_u32 s69, s69, {CNT}
    v_mov_b32 v{va}, {CNT}
    v_mov_b32 v{vb}, s69
    ds_read_b32 v{va}, v{va} offset:{C_TG}
    ds_read_b32 v{vb}, v{vb} offset:{C_TG+4}
    s_waitcnt lgkmcnt(0)
    v_readfirstlane_b32 s{S_TAG}, v{va}
    v_readfirstlane_b32 s{S_DV}, v{vb}
    s_nop 1
    """)

def loader(a):
    sJ, sT, sCm, sAs, sLb, sInc, sXr = 6, 7, 8, 9, 10, 14, 15
    V = [4, 5, 6, 7]; t0, t1, t2, t3 = 8, 9, 10, 11
    Lx, Lc, Lsub, Lover, Lw, Lend = [a.label(x) for x in ("ldx", "ldc", "issue", "over", "ldw", "ldend")]
    a(f"""
    v_lshrrev_b32 v{t2}, 4, v1
    s_setprio 3
    s_mov_b32 s{R_X+3}, 0x20000
    s_mov_b32 s{sJ}, s{sJ0}
    s_cmp_eq_u32 s{S_WAVE}, 6
    s_cbranch_scc1 {Lx}
    v_and_b32 v{t0}, 15, v1
    v_lshlrev_b32 v{t1}, 2, v{t2}
    v_xor_b32 v{t0}, v{t0}, v{t1}
    v_lshrrev_b32 v{t1}, 2, v{t0}
    v_and_b32 v{t0}, 3, v{t0}
    v_cmp_eq_u32 vcc, 3, v{t1}
    v_mul_u32_u24 v{t1}, 9, v{t1}
    v_lshrrev_b32 v{t3}, 1, v{t0}
    v_add_u32 v{t1}, v{t1}, v{t3}
    v_lshl_add_u32 v{t1}, v{t0}, 1, v{t1}
    v_min_u32 v{t0}, 2, v{t0}
    v_mad_u32_u24 v{t0}, v{t0}, 9, 4
    v_cndmask_b32 v{t1}, v{t1}, v{t0}, vcc
    v_mul_u32_u24 v{t2}, 432, v{t2}
    s_mul_i32 s{sT}, s{sCT}, 27
    v_add3_u32 v{t1}, v{t1}, v{t2}, s{sT}
    v_lshlrev_b32 v{V[0]}, 3, v{t1}
    s_mov_b32 s72, {0xffffffff ^ (1<<15) ^ (1<<27)}
    s_mov_b32 s73, {0xffffffff ^ (1<<7) ^ (1<<19)}
    s_mov_b32 s{sCm}, {64*3456}
    s_mov_b32 s{sAs}, 55296
    s_movk_i32 s{sLb}, 16384
    s_movk_i32 s{sInc}, 12800
    s_mov_b32 s{sXr}, 0
    s_mov_b32 s{R_X+2}, {W_BYTES}
    s_waitcnt lgkmcnt(0)
    s_mov_b64 s[{R_X}:{R_X+1}], s[{P_W}:{P_W+1}]
    s_branch {Lc}
    {Lx}:
    v_lshrrev_b32 v{t0}, 3, v1
    s_lshl_b32 s{sT}, s{sRB}, 7
    v_add_u32 v{t1}, s{sT}, v{t0}
    v_mul_u32_u24 v{t1}, 1152, v{t1}
    v_and_b32 v{t3}, 7, v1
    v_xor_b32 v{t3}, v{t3}, v{t2}
    v_lshl_add_u32 v{V[0]}, v{t3}, 4, v{t1}
    s_mov_b64 s[72:73], -1
    s_movk_i32 s{sCm}, 128
    s_mov_b32 s{sAs}, 36864
    s_mov_b32 s{sLb}, 0
    s_movk_i32 s{sInc}, 8192
    s_mov_b32 s{sXr}, 64
    s_mov_b32 s{R_X+2}, {X_BYTES}
    s_waitcnt lgkmcnt(0)
    s_mov_b64 s[{R_X}:{R_X+1}], s[{P_U}:{P_U+1}]
    {Lc}:
    v_xor_b32 v{V[1]}, s{sXr}, v{V[0]}
    v_add_u32 v{V[1]}, s{sInc}, v{V[1]}
    s_lshl_b32 s{sInc}, s{sInc}, 1
    v_add_u32 v{V[2]}, s{sInc}, v{V[0]}
    v_add_u32 v{V[3]}, s{sInc}, v{V[1]}
    """)
    def issue(it):
        a(f"s_add_u32 m0, s{sLb}, {((-it) & 3) * SLOT}\ns_call_b64 s[12:13], {Lsub}")
    a.stamp(22)
    a("s_barrier")
    issue(0)
    a.stamp(23)
    for it in range(1, LEAD): issue(it)
    a(f"s_branch {Lover}\n{Lsub}:")
    a(f"s_mul_i32 s{sT}, s{sJ}, s{sCm}\ns_mov_b64 exec, s[72:73]")
    THR = int(os.environ.get('THR', '20')); THR1 = int(os.environ.get('THR1', '0'))
    for g in range(4):
        if THR: a(f"s_waitcnt vmcnt({THR})")
        for b in range(4):
            if THR1: a(f"s_waitcnt vmcnt({THR1})")
            a(f"buffer_load_dwordx4 v{V[b]}, s[{R_X}:{R_X+3}], s{sT} offen offset:{1024*b} lds")
        if g < 3:
            a(f"s_add_u32 m0, m0, 4096\ns_add_u32 s{sT}, s{sT}, s{sAs}")
    a(f"""
    s_mov_b64 exec, -1
    s_add_u32 s{sJ}, s{sJ}, 1
    s_cmp_eq_u32 s{sJ}, 9
    s_cselect_b32 s{sJ}, 0, s{sJ}
    s_setpc_b64 s[12:13]
    {Lover}:
    """)
    a.stamp(1)
    srd(a, R_WS, P_WS, WS_BYTES)
    a(f"""
    v_lshlrev_b32 v{t2}, 4, v1
    v_lshrrev_b32 v16, 4, v1
    v_bfe_u32 v17, v1, 2, 2
    v_lshl_add_u32 v18, v16, 3, v17
    v_bfe_u32 v19, v18, 1, 3
    v_bfe_u32 v17, v1, 1, 1
    v_xor_b32 v19, v19, v17
    v_lshlrev_b32 v19, 4, v19
    v_lshl_add_u32 v19, v18, 7, v19
    v_and_b32 v17, 1, v1
    v_lshl_add_u32 v19, v17, 3, v19
    s_and_b32 s74, s{sCT}, 8
    s_lshl_b32 s75, s74, 3
    v_xor_b32 v20, s75, v19
    v_xor_b32 v21, 32, v20
    v_and_b32 v17, 15, v1
    v_lshlrev_b32 v17, 6, v17
    v_lshl_add_u32 v17, v16, 4, v17
    s_lshl_b32 s74, s74, 10
    s_mul_i32 s75, s{sRB}, {36*4096}
    s_add_u32 s74, s74, s75
    s_add_u32 s74, s74, {UT_OFF}
    v_add_u32 v22, s74, v17
    """)
    def ut_task(it):
        skip = a.label("utskip")
        a(f"s_mov_b32 s78, 0\ns_cmp_lg_u32 s{S_WAVE}, 6\ns_cbranch_scc1 {skip}")
        if it == 1:
            a(f"s_and_b32 s74, s{sCT}, 7\ns_cmp_lg_u32 s74, 7\ns_cbranch_scc1 {skip}")
            a(f"s_add_u32 s74, s{sJ0}, 1\ns_cmp_eq_u32 s74, 9\ns_cselect_b32 s74, 0, s74\ns_lshl_b32 s74, s74, 14\nv_add_u32 v20, {3*SLOT}, v20\nv_add_u32 v21, {3*SLOT}, v21")
        else:
            a(f"s_lshl_b32 s74, s{sJ0}, 14")
        a("s_mov_b32 s78, 1")
        for m in range(2):
            for i in range(4):
                d = 24 + 32 * it + 16 * m + 4 * i
                a(f"ds_read_b64_tr_b16 {vr(d,2)}, v{20+m} offset:{4096*i}")
                a(f"ds_read_b64_tr_b16 {vr(d+2,2)}, v{21-m} offset:{4096*i + 512}")
        a(f"{skip}:")
    def ut_store(it):
        skip = a.label("utskip")
        a(f"s_cmp_eq_u32 s78, 0\ns_cbranch_scc1 {skip}\ns_waitcnt lgkmcnt(0)")
        for m in range(2):
            for i in range(4):
                d = 24 + 32 * it + 16 * m + 4 * i
                a(f"buffer_store_dwordx4 {vr(d,4)}, v22, {WS}, s74 offen offset:{1024*i}{ST}")
            if m == 0: a("s_add_u32 s74, s74, 4096")
        a(f"{skip}:")
    assert LEAD == 2
    for k in range(9):
        left = min(LEAD - 1, 8 - k)
        if k in (UK + 1, UK + 2):
            L = a.label("w24")
            a(f"s_waitcnt vmcnt(24)\ns_cmp_eq_u32 s78, 1\ns_cbranch_scc1 {L}\ns_waitcnt vmcnt(16)\n{L}:")
        else:
            a(f"s_waitcnt vmcnt({16 * left})")
        if 'ldst' in EXP: a.stamp([24, 9, 10, 11, 12, 13, 26, 27, 28][k])
        if k == 0: a.stamp(40)
        a("s_barrier")
        if a.jit: a.jitter()
        n = k + LEAD
        if k in (UK, UK + 1): ut_task(k - UK)
        if n <= 8: issue(n)
        if k == 7: get_tag(a, t0, t1)
        if k in (UK, UK + 1): ut_store(k - UK)
    a.stamp(2)

def wt_load(a, sF, sT, sD2, s8, s9, s10, t0, t1, t2, WL):
    skip = a.label("nowt")
    srd(a, R_A, P_WO, WO_BYTES)
    a(f"""
    s_cmp_ge_u32 s{sF}, 648
    s_cbranch_scc1 {skip}
    v_lshrrev_b32 v{t0}, 4, v1
    v_lshrrev_b32 v{t1}, 1, v{t0}
    v_mul_u32_u24 v{t1}, 20, v{t1}
    v_and_b32 v{t2}, 1, v{t0}
    v_lshl_add_u32 v{t1}, v{t2}, 3, v{t1}
    v_mad_u32_u24 v{t2}, v{t0}, 36, 8
    v_lshlrev_b32 v{t2}, 1, v{t2}
    s_mul_i32 s{s8}, s{sF}, 3641
    s_lshr_b32 s{s8}, s{s8}, 16
    s_mul_i32 s{s9}, s{s8}, 18
    s_sub_u32 s{s9}, s{sF}, s{s9}
    s_mul_i32 s{sT}, s{s9}, {36*1152}
    s_sub_u32 s{s10}, s{s9}, 16
    s_mul_i32 s{s10}, s{s10}, {288*1152}
    s_movk_i32 s{sD2}, {4*1152}
    s_cmp_ge_u32 s{s9}, 16
    s_cselect_b32 s{sT}, s{s10}, s{sT}
    s_cselect_b32 s{sD2}, {36*1152}, s{sD2}
    s_cselect_b64 vcc, -1, 0
    v_cndmask_b32 v{t1}, v{t1}, v{t2}, vcc
    v_mul_u32_u24 v{t1}, 1152, v{t1}
    v_and_b32 v{t2}, 15, v1
    v_lshl_add_u32 v{t1}, v{t2}, 1, v{t1}
    s_lshl_b32 s{s8}, s{s8}, 5
    s_add_u32 s{sT}, s{sT}, s{s8}
    s_add_u32 s{sD2}, s{sD2}, s{sT}
    """)
    for e in range(8):
        a(f"buffer_load_ushort v{WL+e}, v{t1}, s[{R_A}:{R_A+3}], s{sT if e < 4 else sD2} offen offset:{(e&3)*1152}")
    a(f"{skip}:")

def wt_store(a, sF, WL, vL16):
    skip = a.label("wtskip")
    a(f"s_cmp_ge_u32 s{sF}, 648\ns_cbranch_scc1 {skip}")
    for e in range(4):
        a(f"v_lshl_or_b32 v{WL+e}, v{WL+2*e+1}, 16, v{WL+2*e}")
    a(f"""
    s_lshl_b32 s{sF}, s{sF}, 10
    s_add_u32 s{sF}, s{sF}, {WT_OFF}
    buffer_store_dwordx4 {vr(WL,4)}, v{vL16}, {WS}, s{sF} offen{ST}
    {skip}:
    """)

def gemm_waves(a):
    sT, sU, sTP = 7, 12, 13
    R = Regs(4, 120)
    t0, t1, t2, t3 = [R.alloc() for _ in range(4)]
    vXa = [[R.alloc() for _ in range(4)]]
    vWa = [R.alloc()]
    vFr = R.alloc()
    vL16 = R.alloc()
    NB = 4
    FX = [[R.alloc(4, 4), R.alloc(4, 4)] for _ in range(NB)]
    FW = [R.alloc(4, 4) for _ in range(NB)]
    ACC = [R.alloc(16, 4), R.alloc(16, 4)]
    STG = FX[0][0]
    WL = R.alloc()
    vGa = [R.alloc()]
    Lnw, Lng = a.label("nowt"), a.label("nogate")
    vCn, vOne, CV = R.alloc(), R.alloc(), R.alloc(2, 2)
    vSt = R.alloc()
    if 'yfirst' in EXP: kgen_y(a, FX[0][0]); a.stamp(23)
    a(f"""
    v_mov_b32 v{vCn}, {CNT}
    v_mov_b32 v{vOne}, 1
    s_and_b32 s{sU}, s{S_WAVE}, 3
    s_bfe_u32 s{sTP}, s{S_WAVE}, 0x10002
    v_lshlrev_b32 v{vL16}, 4, v1
    s_waitcnt lgkmcnt(0)
    """)
    a(f"s_lshl_b32 s83, s{sCT}, 4\ns_add_u32 s83, s83, s{sU}")
    Lnt, Lnu = a.label("notouch"), a.label("notlb")
    a(f"""
    s_cmp_lg_u32 s{S_WAVE}, 12
    s_cbranch_scc1 {Lnt}
    s_and_b32 s8, s{sCT}, 7
    s_add_u32 s8, s8, 8
    s_sub_u32 s9, s8, 9
    s_cmp_ge_u32 s8, 9
    s_cselect_b32 s8, s9, s8
    s_lshl_b32 s8, s8, 2
    s_and_b32 s9, s{sRB}, 3
    s_add_u32 s8, s8, s9
    s_mul_i32 s8, s8, {16*3456}
    s_mul_i32 s9, s{sCT}, 216
    s_add_u32 s8, s8, s9
    v_lshrrev_b32 v{t0}, 2, v1
    v_mul_u32_u24 v{t0}, 3456, v{t0}
    v_and_b32 v{t1}, 3, v1
    v_mul_u32_u24 v{t1}, 68, v{t1}
    v_add3_u32 v{t0}, v{t0}, v{t1}, s8
    global_load_dword v{WL}, v{t0}, s[{P_W}:{P_W+1}]
    """)
    fetch_tag(a, FX[0][0])
    a(f"{Lnt}:")
    a(f"""    v_and_b32 v{t0}, 31, v1
    v_lshrrev_b32 v{t1}, 5, v1
    v_bfe_u32 v{t2}, v1, 1, 3
    v_xor_b32 v{t2}, v{t2}, v{t1}
    v_lshlrev_b32 v{t2}, 4, v{t2}
    v_lshl_add_u32 v{t2}, v{t0}, 7, v{t2}
    s_lshl_b32 s{sT}, s{sTP}, 13
    v_add_u32 v{vXa[0][0]}, s{sT}, v{t2}
    """)
    for ks in range(1, 4):
        a(f"v_xor_b32 v{vXa[0][ks]}, {32*ks}, v{vXa[0][0]}")
    a(f"""
    v_bfe_u32 v{t0}, v1, 2, 2
    v_lshl_add_u32 v{t2}, v{t1}, 3, v{t0}
    v_lshlrev_b32 v{t2}, 8, v{t2}
    v_xor_b32 v{t0}, s{sU}, v{t0}
    v_lshl_add_u32 v{t2}, v{t0}, 6, v{t2}
    v_and_b32 v{t0}, 1, v1
    v_lshlrev_b32 v{t0}, 4, v{t0}
    v_and_b32 v{t3}, 2, v1
    v_lshl_add_u32 v{t0}, v{t3}, 2, v{t0}
    v_and_b32 v{t3}, 16, v1
    v_lshl_add_u32 v{t0}, v{t3}, 1, v{t0}
    v_lshlrev_b32 v{vWa[0]}, {28 if 'nooob' in EXP else 14}, v{t3}
    v_and_b32 v{t3}, 3, v1
    v_lshl_add_u32 v{t3}, v{t3}, 4, v{vWa[0]}
    s_cmp_eq_u32 s{sU}, 3
    s_cselect_b64 vcc, -1, 0
    v_cndmask_b32 v{t0}, v{t0}, v{t3}, vcc
    v_add_u32 v{vWa[0]}, v{t2}, v{t0}
    """)
    vVm, vQx, vKx, vVx = R.alloc(), R.alloc(), R.alloc(), R.alloc()
    sTile, sP, sTy, sHd, sO, sSc, sB = 10, 15, 74, 75, 76, 77, 78
    def epi_setup():
        a(f"""
        v_and_b32 v{t0}, 31, v1
        v_lshrrev_b32 v{t3}, 5, v1
        v_lshlrev_b32 v{vVm}, 5, v{t0}
        v_lshl_add_u32 v{vVm}, v{t3}, 4, v{vVm}
        v_and_b32 v{t1}, 4, v1
        v_xor_b32 v{t1}, 4, v{t1}
        v_lshlrev_b32 v{t1}, 5, v{t1}
        v_and_b32 v{t2}, 24, v1
        v_lshl_add_u32 v{t1}, v{t2}, 2, v{t1}
        v_and_b32 v{t2}, 3, v1
        v_lshl_add_u32 v{vVx}, v{t2}, 3, v{t1}
        v_lshlrev_b32 v{vQx}, 2, v{t0}
        v_lshlrev_b32 v{vKx}, 3, v{t0}
        s_lshl_b32 s{sTile}, s{sRB}, 1
        s_add_u32 s{sTile}, s{sTile}, s{sTP}
        s_lshl_b32 s{sTile}, s{sTile}, 1
        """)
        a(f"""
        s_mul_i32 s{sP}, s{sCT}, 3
        s_add_u32 s{sP}, s{sP}, s{sU}
        s_lshr_b32 s{sTy}, s{sP}, 4
        s_and_b32 s{sHd}, s{sP}, 15
        s_lshl_b32 s{sHd}, s{sHd}, 1
        s_cmp_eq_u32 s{sTy}, 0
        s_cselect_b32 s{sSc}, {fbits(QSCALE)}, 1.0
        s_lshr_b32 s79, s{sTile}, 3
        s_mul_i32 s79, s79, {BLK}
        s_mul_i32 s80, s{sHd}, {8*BLK}
        s_add_u32 s79, s79, s80
        s_add_u32 s79, s79, {KV_OFF}
        s_and_b32 s80, s{sTile}, 7
        s_lshl_b32 s81, s80, 10
        s_add_u32 s81, s81, s79
        s_mul_i32 s80, s80, 1280
        s_add_u32 s80, s80, s79
        s_add_u32 s80, s80, {V_OFF}
        s_lshl_b32 s79, s{sHd}, 6
        s_add_u32 s79, s79, s{sTile}
        s_lshl_b32 s79, s79, 10
        s_add_u32 s79, s79, {QF_OFF}
        s_mov_b32 s{sB}, {8*BLK}
        s_cmp_eq_u32 s{sTy}, 0
        s_cselect_b32 s{sO}, s79, s81
        s_cselect_b32 s{sB}, 0x10000, s{sB}
        s_movk_i32 s82, 1024
        s_cmp_eq_u32 s{sTy}, 2
        s_cselect_b32 s{sO}, s80, s{sO}
        s_cselect_b32 s82, 1280, s82
        s_cselect_b64 vcc, -1, 0
        v_cndmask_b32 v{vSt}, v{vL16}, v{vVm}, vcc
        s_mul_i32 s9, s{sCT}, {96 if 'fp' in EXP else 16}
        s_add_u32 s9, s9, s{sRB}
        s_lshl_b32 s9, s9, 7
        s_add_u32 s9, s9, {FL_P if 'fp' in EXP else FL_Q}
        """)
    sN, sX, sG, sX2 = 14, 8, 6, 7
    slow = []
    epi_setup()
    XS = [(44, 45, 46), (47, 48, 49), (50, 51, 59)]
    def extras_setup():
        L = a.label("nx")
        a(f"s_cmp_lg_u32 s{sU}, 3\ns_cbranch_scc1 {L}")
        for p in range(3):
            sTp, sA, sBb = XS[p]
            a(f"""
            s_mul_i32 s{sP}, s{sCT}, 3
            s_add_u32 s{sP}, s{sP}, {p}
            s_lshr_b32 s{sTp}, s{sP}, 4
            s_and_b32 s{sHd}, s{sP}, 15
            s_lshl_b32 s{sHd}, s{sHd}, 1
            s_lshr_b32 s79, s{sTile}, 3
            s_mul_i32 s79, s79, {BLK}
            s_mul_i32 s80, s{sHd}, {8*BLK}
            s_add_u32 s79, s79, s80
            s_and_b32 s80, s{sTile}, 6
            s_lshl_b32 s80, s80, 7
            s_add_u32 s80, s80, {KV_OFF+KX_OFF}
            s_and_b32 s81, s{sTile}, 7
            s_mul_i32 s81, s81, 1280
            s_add_u32 s81, s81, {KV_OFF+V_OFF+1024}
            s_cmp_eq_u32 s{sTp}, 1
            s_cselect_b32 s80, s80, s81
            s_add_u32 s79, s79, s80
            s_lshl_b32 s80, s{sHd}, 6
            s_add_u32 s80, s80, s{sTile}
            s_lshl_b32 s80, s80, 7
            s_add_u32 s80, s80, {QX_OFF}
            s_mov_b32 s81, {8*BLK}
            s_cmp_eq_u32 s{sTp}, 0
            s_cselect_b32 s{sA}, s80, s79
            s_cselect_b32 s81, 0x2000, s81
            s_add_u32 s{sBb}, s{sA}, s81
            """)
        a(f"{L}:")
    assert ACC[1] + 16 >= FX[0][0] + 56
    srd(a, R_WS, P_WS, WS_BYTES)
    extras_setup()
    if 'yfirst' not in EXP: kgen_y(a, FX[0][0]); a.stamp(23)
    a('s_setprio 3')
    for tt in range(2):
        for i in range(16): a(f"v_mov_b32 v{ACC[tt]+i}, 0")
    a(f"""
    s_mov_b32 s{sN}, 1
    s_mov_b32 s{sX}, 0x18000
    s_mov_b32 s72, 0xffff0000
    s_mov_b32 s73, 0xffff0000
    v_lshrrev_b32 v{vFr}, 5, v1
    v_lshlrev_b32 v{vFr}, 4, v{vFr}
    v_add_u32 v{vFr}, {GT}, v{vFr}
    s_lshl_b32 s{sG}, s{sJ0}, 7
    v_add_u32 v{vGa[0]}, s{sG}, v{vFr}
    """)
    Lgate, Lj = a.label("gatel"), a.label("gj")
    def mainloop(gate):
        e = 1 if gate else 0
        Lloop = a.label("gloop")
        def Wrd(b, nk):
            a(f"ds_read_b64_tr_b16 {vr(FW[b],2)}, v{vWa[0]} offset:{16384+nk*4096}")
            a(f"ds_read_b64_tr_b16 {vr(FW[b]+2,2)}, v{vWa[0]} offset:{16384+nk*4096+1024}")
            if gate:
                a(f"s_mov_b64 exec, s[72:73]\nds_read_b128 {vr(FW[b],4)}, v{vGa[0]} offset:{32*nk}\ns_mov_b64 exec, -1")
        GD = int(os.environ.get('GD', '2'))
        def Xrd(nk):
            a(f"ds_read_b128 {vr(FX[nk][0],4)}, v{vXa[0][nk]}\nds_read_b128 {vr(FX[nk][1],4)}, v{vXa[0][nk]} offset:4096")
        def step(ks, n, nk, mid=None):
            a(f"s_waitcnt lgkmcnt({n})")
            a(f"v_mfma_f32_32x32x16_bf16 {vr(ACC[0],16)}, {vr(FW[ks],4)}, {vr(FX[ks][0],4)}, {vr(ACC[0],16)}")
            if mid: mid()
            if nk is not None: Wrd(nk, nk)
            a(f"v_mfma_f32_32x32x16_bf16 {vr(ACC[1],16)}, {vr(FW[ks],4)}, {vr(FX[ks][1],4)}, {vr(ACC[1],16)}")
            if nk is not None:
                Xrd(nk)
                if mid is not None or n >= 0 and inloop[0]: a(f"v_xor_b32 v{vXa[0][(nk+3)&3]}, s{sXs[(nk+3)&3]}, v{vXa[0][(nk+3)&3]}")
        inloop = [False]
        a("s_barrier")
        a.stamp(1)
        for ks in range(GD):
            Wrd(ks, ks); Xrd(ks)
        for ks in range(GD - 1): a(f"v_xor_b32 v{vXa[0][ks]}, s{sX}, v{vXa[0][ks]}")
        a(f"s_xor_b32 s{sX2}, s{sX}, 0x10000")
        sXs = {k: (sX if k >= GD - 1 else sX2) for k in range(4)}
        a(f".p2align 3\n{Lloop}:")
        if a.jit: a.jitter()
        inloop[0] = True
        W1 = (GD - 1) * (4 + e)
        for ks in range(4):
            nk = (ks + GD) & 3
            if nk == 0:
                mid = lambda: a(f"v_xor_b32 v{vWa[0]}, s{sX}, v{vWa[0]}\n" + (f"v_add_u32 v{vGa[0]}, s{sG}, v{vFr}\n" if gate else "") + "s_barrier")
            elif ks == 0:
                mid = lambda: a(f"s_add_u32 s{sG}, s{sG}, 128\ns_cmp_eq_u32 s{sG}, 1152\ns_cselect_b32 s{sG}, 0, s{sG}" if gate else "")
            else: mid = None
            step(ks, W1, nk, mid)
        a(f"s_add_u32 s{sN}, s{sN}, 1\ns_xor_b32 s{sX}, s{sX}, 0x10000\ns_xor_b32 s{sX2}, s{sX2}, 0x10000\ns_cmp_lt_u32 s{sN}, 9\ns_cbranch_scc1 {Lloop}")
        inloop[0] = False
        for ks in range(4):
            nk = ks + GD if ks + GD < 4 else None
            step(ks, min(GD - 1, 3 - ks) * (4 + e), nk)
    a(f"s_cmp_eq_u32 s83, 3\ns_cbranch_scc1 {Lgate}")
    mainloop(False)
    a(f"{Lj}:")
    a.stamp(3)
    def cold_gate():
        a(f"{Lgate}:")
        mainloop(True)
        a(f"s_branch {Lj}")
    Lx, Ldone, Lns = a.label("extras"), a.label("gdone"), a.label("noscale")
    a(f"s_setprio 3\ns_nop 6\ns_cmp_eq_u32 s{sU}, 3\ns_cbranch_scc1 {Lx}\ns_cmp_lg_u32 s{sTy}, 0\ns_cbranch_scc1 {Lns}")
    for tt in range(2):
        for i in range(16):
            a(f"v_mul_f32 v{ACC[tt]+i}, s{sSc}, v{ACC[tt]+i}")
    a(f"{Lns}:")
    for tt in range(2):
        for p in range(2):
            dst = FX[tt][p]
            for i in range(4):
                a(f"v_cvt_pk_bf16_f32 v{dst+i}, v{ACC[tt]+8*p+2*i}, v{ACC[tt]+8*p+2*i+1}")
            if p == 0:
                a(f"buffer_store_dwordx4 {vr(dst,4)}, v{vSt}, {WS}, s{sO} offen{ST}")
            else:
                a(f"s_add_u32 s79, s{sO}, s{sB}")
                a(f"buffer_store_dwordx4 {vr(dst,4)}, v{vSt}, {WS}, s79 offen{ST}")
        if tt == 0:
            a(f"s_add_u32 s{sO}, s{sO}, s82")
    a(f"s_branch {Ldone}")
    cold_gate()
    a(f"{Lx}:")
    a(f"v_mov_b32 v{STG+1}, 0x3f80\nv_mov_b32 v{STG+3}, 0x3f80")
    for p in range(3):
        half = p & 1
        rb = 4 * (p >> 1)
        sTp, sA, sBb = XS[p]
        LK, LV, LN = a.label("xk"), a.label("xv"), a.label("xn")
        a(f"""
        s_mov_b32 exec_lo, {0 if half else -1}
        s_mov_b32 exec_hi, {-1 if half else 0}
        s_cmp_eq_u32 s{sTp}, 1
        s_cbranch_scc1 {LK}
        s_cmp_eq_u32 s{sTp}, 2
        s_cbranch_scc1 {LV}
        """)
        for tt in range(2):
            for i in range(4):
                a(f"v_mul_f32 v{ACC[tt]+rb+i}, {fbits(QSCALE)}, v{ACC[tt]+rb+i}")
            a(f"v_cvt_pk_bf16_f32 v{STG+4+2*tt}, v{ACC[tt]+rb}, v{ACC[tt]+rb+1}")
            a(f"v_cvt_pk_bf16_f32 v{STG+5+2*tt}, v{ACC[tt]+rb+2}, v{ACC[tt]+rb+3}")
            a(f"buffer_store_dword v{STG+4+2*tt}, v{vQx}, {WS}, s{sA} offen offset:{128*tt}{ST}")
            a(f"buffer_store_dword v{STG+5+2*tt}, v{vQx}, {WS}, s{sBb} offen offset:{128*tt}{ST}")
        a(f"""
        s_branch {LN}
        {LK}:
        v_cvt_pk_bf16_f32 v{STG+4}, v{ACC[0]+rb}, v{ACC[0]+rb+1}
        v_cvt_pk_bf16_f32 v{STG+5}, v{ACC[1]+rb}, v{ACC[1]+rb+1}
        v_cvt_pk_bf16_f32 v{STG+6}, v{ACC[0]+rb+2}, v{ACC[0]+rb+3}
        v_cvt_pk_bf16_f32 v{STG+7}, v{ACC[1]+rb+2}, v{ACC[1]+rb+3}
        buffer_store_dwordx2 {vr(STG+4,2)}, v{vKx}, {WS}, s{sA} offen{ST}
        buffer_store_dwordx2 {vr(STG+6,2)}, v{vKx}, {WS}, s{sBb} offen{ST}
        s_branch {LN}
        {LV}:
        """)
        for tt in range(2):
            a(f"v_cvt_pk_bf16_f32 v{STG}, v{ACC[tt]+rb}, v{ACC[tt]+rb+1}")
            a(f"v_cvt_pk_bf16_f32 v{STG+2}, v{ACC[tt]+rb+2}, v{ACC[tt]+rb+3}")
            a(f"buffer_store_dwordx2 {vr(STG,2)}, v{vVx}, {WS}, s{sA} offen offset:{1280*tt}{ST}")
            a(f"buffer_store_dwordx2 {vr(STG+2,2)}, v{vVx}, {WS}, s{sBb} offen offset:{1280*tt}{ST}")
        a(f"{LN}:")
    Lnf = a.label("nofq")
    a(f"""
    s_cmp_lg_u32 s{sCT}, 0
    s_cbranch_scc1 {Ldone}
    s_lshl_b32 s79, s{sTile}, 7
    s_add_u32 s79, s79, {G_OFF}
    buffer_store_dword v{ACC[0]+8}, v{vQx}, {WS}, s79 offen{ST}
    buffer_store_dword v{ACC[1]+8}, v{vQx}, {WS}, s79 offen offset:128{ST}
    {Ldone}:
    s_mov_b64 exec, -1
    """)
    if 'early' not in EXP:
        a(f"s_mov_b64 exec, 1\nds_add_u32 v{vCn}, v{vOne} offset:{C_FREE}\ns_mov_b64 exec, -1")
    a.stamp(14)
    get_tag(a, t0, t1)
    a(f"s_mov_b32 s{S_FQ}, s9")
    publish_q(a, t0, t1, 8)
    a.stamp(4)

def publish_q(a, t0, t1, st):
    L = a.label("nofq")
    if 'hintQ' not in EXP: a("s_waitcnt vmcnt(0)")
    lds_inc(a, t0, t1, off=C_S, rtn=st)
    a(f"s_cmp_lg_u32 s{st}, 7\ns_cbranch_scc1 {L}")
    if 'fp' in EXP:
        a(f"""
        v_mov_b32 v{t0}, s{S_TAG}
        v_lshrrev_b32 v{t1}, 3, v1
        v_lshlrev_b32 v{t1}, 9, v{t1}
        v_and_or_b32 v{t1}, v1, 7, v{t1}
        v_lshlrev_b32 v{t1}, 2, v{t1}
        s_mov_b32 exec_hi, 0xffff
        buffer_store_dword v{t0}, v{t1}, {WS}, s{S_FQ} offen sc1
        s_mov_b64 exec, -1
        """)
    else: flag_line(a, t0, t1, S_FQ)
    a(f"{L}:")

class Seg:
    def __init__(self): self.items = []
    def __call__(self, s):
        for ln in s.split("\n"):
            ln = ln.strip()
            if not ln: continue
            op = ln.split()[0]
            if ln.startswith(";"): c = 0
            elif op in ("v_exp_f32", "v_sin_f32", "v_cos_f32", "v_rcp_f32"): c = 8
            elif op.startswith("v_mfma"): c = 40
            elif op.startswith("ds_"): c = 12
            elif op == "s_waitcnt": c = 60
            else: c = 4
            self.items.append((ln, c))
    nl = 0
    def label(self, base):
        Seg.nl += 1
        return f"L_sg{base}_{Seg.nl}"
    def must_barrier(self): self.items.append(("@BAR", 0))
    def nobar(self, on): self.items.append(("@NOBAR" if on else "@OKBAR", 0))
    def emit(self, a, nbar, after=lambda k: None):
        must = sum(1 for l, _ in self.items if l == "@BAR")
        total = sum(c for _, c in self.items)
        first = float(os.environ.get('KGFIRST', '0.9')) * total
        first = min(first, sum(c for _, c in self.items[:[l for l, _ in self.items].index('@BAR')]) + 1)
        per = (total - first) / (nbar - (1 if first else 0))
        used = 0; acc = per - first if first else 0; ok = True; must_left = must
        for ln, c in self.items:
            if ln == "@BAR":
                a("s_barrier"); after(used); used += 1; must_left -= 1; acc = 0; continue
            if ln.startswith("@STAMP"): a.stamp(int(ln[6:])); continue
            if ln == "@NOBAR": ok = False; continue
            if ln == "@OKBAR": ok = True; continue
            if ok and acc >= per and used + must_left < nbar - 1:
                a("s_barrier"); after(used); used += 1; acc = 0
            a(ln); acc += c
        while used < nbar:
            a("s_barrier"); after(used); used += 1
        return total

def ilv(*seqs):
    seqs = [[l.strip() for l in x.strip().split("\n") if l.strip()] for x in seqs]
    out = []
    for i in range(max(len(x) for x in seqs)):
        for x in seqs:
            if i < len(x): out.append(x[i])
    return "\n".join(out)

class KG:
    def __init__(self, g, sK, tmp, vA2, vBh, vBl):
        self.g = g; self.t = KG_T; self.tmp = tmp
        self.sL, self.sLlo, self.sI, self.sIlo, self.sLn2 = range(sK, sK + 5)
        self.vA2, self.vBh, self.vBl = vA2, vBh, vBl
    def consts(self):
        return f"""
        s_mov_b32 s{self.sL}, {fbits(L_HI)}
        s_mov_b32 s{self.sLlo}, {fbits(L_LO)}
        s_mov_b32 s{self.sI}, {fbits(I_HI)}
        s_mov_b32 s{self.sIlo}, {fbits(I_LO)}
        s_mov_b32 s{self.sLn2}, {fbits(LN2)}
        """
    def expbf(self, x, t1, t2):
        return f"""
        v_lshlrev_b32 v{x}, 16, v{x}
        v_mul_f32 v{t1}, s{self.sL}, v{x}
        v_fma_f32 v{t2}, v{x}, s{self.sL}, -v{t1}
        v_exp_f32 v{t1}, v{t1}
        v_fma_f32 v{t2}, v{x}, s{self.sLlo}, v{t2}
        v_mul_f32 v{t2}, s{self.sLn2}, v{t2}
        v_fma_f32 v{x}, v{t1}, v{t2}, v{t1}
        v_cvt_pk_bf16_f32 v{x}, v{x}, v{x}
        v_and_b32 v{x}, 0xffff0000, v{x}
        """
    def prep(self):
        t, m = self.t, self.tmp
        return ilv(self.expbf(t[3], m[0], m[1]), self.expbf(t[1], m[2], m[3])) + f"""
        v_lshlrev_b32 v{t[2]}, 16, v{t[2]}
        v_mul_f32 v{t[1]}, v{t[1]}, v{t[3]}
        v_mul_f32 v{t[2]}, v{t[2]}, v{t[3]}
        v_mul_f32 v{self.vA2}, s{self.sL}, -v{t[1]}
        v_mul_f32 v{self.vBh}, s{self.sI}, v{t[2]}
        v_fma_f32 v{self.vBl}, v{t[2]}, s{self.sI}, -v{self.vBh}
        v_fma_f32 v{self.vBl}, v{t[2]}, s{self.sIlo}, v{self.vBl}
        """
    def cexp(self, d, p, k):
        fp = fbits(float(p)); r, e = self.tmp[2*k], self.tmp[2*k+1]
        return f"""
        v_mul_f32 v{r}, {fp}, v{self.vBh}
        v_mul_f32 v{e}, {fp}, v{self.vA2}
        v_fract_f32 v{r}, v{r}
        v_exp_f32 v{e}, v{e}
        v_fmac_f32 v{r}, {fp}, v{self.vBl}
        v_cos_f32 v{d}, v{r}
        v_sin_f32 v{d+1}, v{r}
        v_mul_f32 v{d}, v{d}, v{e}
        v_mul_f32 v{d+1}, v{d+1}, v{e}
        """
    def cmul(self, d, x, y):
        return f"""
        v_mul_f32 v{d}, v{x+1}, v{y+1}
        v_mul_f32 v{d+1}, v{x+1}, v{y}
        v_fma_f32 v{d}, v{x}, v{y}, -v{d}
        v_fmac_f32 v{d+1}, v{x}, v{y+1}
        """
    def cvt(self, d, x, conj):
        return f"v_cvt_pk_f16_f32 v{d}, v{x}, {'-' if conj else ''}v{x+1}"
    def rows(self, specs, vWr):
        g = self.g
        for i in range(0, len(specs), 4):
            grp = specs[i:i+4]; tt = self.tmp[(i & 4):(i & 4) + 4]
            for k, (x, y) in enumerate(grp):
                if y is not None: g(f"v_pk_mul_f16 v{tt[k]}, v{x}, v{y} op_sel:[0,0] op_sel_hi:[0,1]")
            for k, (x, y) in enumerate(grp):
                if y is not None: g(f"v_pk_fma_f16 v{tt[k]}, v{x}, v{y}, v{tt[k]} op_sel:[1,1,0] op_sel_hi:[1,0,1] neg_lo:[1,0,0]")
            src = [tt[k] if y is not None else x for k, (x, y) in enumerate(grp)]
            for k in range(0, len(grp), 2):
                if k + 1 < len(grp): g(f"ds_write2_b32 v{vWr[i>>2]}, v{src[k]}, v{src[k+1]} offset0:{68*k} offset1:{68*k+68}")
                else: g(f"ds_write_b32 v{vWr[i>>2]}, v{src[k]} offset:{272*k}")

def kgen_y(a, base):
    R = Regs(base, base + 56)
    tmp = [R.alloc() for _ in range(8)]
    vWr = [R.alloc() for _ in range(8)]
    vA2, vBh, vBl = R.alloc(), R.alloc(), R.alloc()
    H = [R.alloc() for _ in range(11)]
    A1, A2, A3, B1, B2, B3, B4, B5, B6, B7 = [R.alloc(2) for _ in range(10)]
    k = KG(a, 60, tmp, vA2, vBh, vBl)
    L = a.label("noy")
    a('s_setprio 1')
    a(f"s_cmp_ge_u32 s{sKC}, {0 if 'nokg' in EXP or 'nopre' in EXP else 576}\ns_cbranch_scc1 {L}")
    a(f"s_mul_i32 s67, s{sKU}, {YS}\ns_add_u32 s67, s67, {YB}\nv_lshl_add_u32 v{vWr[0]}, v1, 2, s67")
    for i in range(1, 8): a(f"v_add_u32 v{vWr[i]}, {i*4*272}, v{vWr[0]}")
    hA = H[0:4]; hB = [None] + H[4:11]
    a(f"v_mov_b32 v{hA[0]}, 0x3c00\ns_lshl_b32 s67, s{sKU}, 2\ns_add_u32 s67, s67, {CNT}")
    a(k.consts())
    a("s_waitcnt vmcnt(0)")
    a(k.prep())
    a(ilv(k.cexp(A1, 8, 0), k.cexp(B2, 64, 1)))
    a(ilv(k.cmul(A2, A1, A1), k.cmul(B4, B2, B2)))
    a(ilv(k.cmul(B1, A2, A2), k.cmul(A3, A1, A2), k.cmul(B6, B4, B2)))
    a(ilv(k.cmul(B3, B1, B2), k.cmul(B5, B4, B1), k.cmul(B7, B6, B1)))
    for d, x in zip(hA[1:] + hB[1:], (A1, A2, A3, B1, B2, B3, B4, B5, B6, B7)): a(k.cvt(d, x, True))
    def yspec(j):
        x, y = j & 3, j >> 2
        if y == 0: return (hA[x], None)
        if x == 0: return (hB[y], None)
        return (hA[x], hB[y])
    k.rows([yspec(j) for j in range(32)], vWr)
    lds_inc(a, tmp[0], tmp[1], saddr=67, off=C_YR)
    a(f"{L}:")

def kgen_waves(a):
    sMH, sBase, sT, sE, sCS = 5, 6, 7, 8, 14
    R = Regs(4, 120)
    t = KG_T; C = KG_C
    vWr = [R.alloc() for _ in range(4)]
    vRd, vRy = R.alloc(), R.alloc()
    vA2, vBh, vBl, vF = R.alloc(), R.alloc(), R.alloc(), R.alloc()
    vInv, vInvM, vBaseM, vPw = R.alloc(), R.alloc(), R.alloc(), R.alloc()
    FY = R.alloc(32, 4); FXr = R.alloc(32, 4)
    pool = R.alloc(36, 4)
    tmp = [FY + i for i in range(8)]
    g = Seg()
    k = KG(g, 9, tmp, vA2, vBh, vBl)
    Lskip, Lend = a.label("kgskip"), a.label("kgend")
    a(f"""
    s_cmp_ge_u32 s{sKC}, {0 if 'nokg' in EXP else 576}
    s_cbranch_scc1 {Lskip}
    s_lshr_b32 s{sCS}, s{S_WAVE}, 1
    s_mul_i32 s{sBase}, s{S_WAVE}, {KG_STRIDE}
    s_add_u32 s{sBase}, s{sBase}, {KG_BASE}
    """ + k.consts() + f"""
    v_lshl_add_u32 v{vWr[0]}, v1, 2, s{sBase}
    v_add_u32 v{vWr[1]}, {4*272}, v{vWr[0]}
    v_add_u32 v{vWr[2]}, {8*272}, v{vWr[0]}
    v_add_u32 v{vWr[3]}, {12*272}, v{vWr[0]}
    v_lshrrev_b32 v{t[5]}, 5, v1
    v_lshlrev_b32 v{t[5]}, 4, v{t[5]}
    v_and_b32 v{t[4]}, 15, v1
    v_mul_u32_u24 v{t[4]}, 272, v{t[4]}
    v_add3_u32 v{vRd}, v{t[4]}, v{t[5]}, s{sBase}
    v_and_b32 v{t[4]}, 31, v1
    v_mul_u32_u24 v{t[4]}, 272, v{t[4]}
    s_mul_i32 s{sT}, s{S_WAVE}, {YS}
    s_add_u32 s{sT}, s{sT}, {YB}
    v_add3_u32 v{vRy}, v{t[4]}, v{t[5]}, s{sT}
    v_lshl_add_u32 v{vPw}, v1, 2, s{sT}
    s_lshl_b32 s15, s{S_WAVE}, 2
    s_add_u32 s15, s15, {CNT}
    """)
    g("s_waitcnt vmcnt(0)")
    g.items.append(("@STAMP22", 0))
    P = [pool + 2 * i for i in range(12)]
    H = [pool + 24 + i for i in range(12)]
    E1, E2, E4, E256, E512, E1024, X2, X4, X6, E768, X1024 = P[0:11]
    hC, h2, h4, h6, hE1, h256, h512, h768, h1024, hX = H[0:10]
    dpp = [f"v_max_u32_dpp v{t[4]}, v{t[4]}, v{t[4]} {m}" for m in ("row_shr:1", "row_shr:2", "row_shr:4", "row_shr:8", "row_bcast:15 row_mask:0xa", "row_bcast:31 row_mask:0xc")]
    g(f"v_lshlrev_b32 v{C}, 16, v{C}\nv_lshlrev_b32 v{C+1}, 16, v{C+1}\nv_max_f32 v{t[4]}, |v{C}|, |v{C+1}|")
    pl = [l.strip() for l in k.prep().split("\n") if l.strip()]
    for i, l in enumerate(pl):
        g(l)
        if i % 3 == 2 and dpp: g(dpp.pop(0))
    assert not dpp
    g(f"v_readlane_b32 s{sE}, v{t[4]}, 63")
    g(ilv(k.cexp(E1, 1, 0), k.cexp(E256, 256, 1), k.cexp(E1024, 1024, 2)))
    g(f"""
    s_lshr_b32 s{sE}, s{sE}, 23
    s_max_u32 s{sE}, s{sE}, 1
    s_min_u32 s{sE}, s{sE}, 252
    s_sub_u32 s{sT}, 253, s{sE}
    s_lshl_b32 s{sT}, s{sT}, 23
    v_mul_f32 v{C}, s{sT}, v{C}
    v_mul_f32 v{C+1}, s{sT}, v{C+1}
    s_add_u32 s{sE}, s{sE}, 2
    s_lshl_b32 s{sE}, s{sE}, 23
    v_mul_f32 v{vF}, s{sE}, v{t[3]}
    """)
    g(ilv(k.cmul(E2, E1, E1), k.cmul(E512, E256, E256), k.cmul(X1024, C, E1024)))
    g(ilv(k.cmul(E4, E2, E2), k.cmul(X2, C, E2), k.cmul(E768, E256, E512)))
    g(ilv(k.cmul(X4, C, E4), k.cmul(X6, X2, E4)))
    for d, x in ((hC, C), (hE1, E1), (h2, X2), (h256, E256), (h512, E512), (h768, E768), (h1024, E1024), (hX, X1024), (h4, X4), (h6, X6)): g(k.cvt(d, x, False))
    def fragread(dst, upper):
        m = 0xffff0000 if upper else 0x0000ffff
        g(f"s_mov_b32 exec_lo, {m}\ns_mov_b32 exec_hi, {m}")
        for ks in range(8):
            g(f"ds_read_b128 {vr(dst+4*ks,4)}, v{vRd} offset:{32*ks}")
        g("s_mov_b64 exec, -1")
    k.rows([(hX, None), (hX, h256), (hX, h512), (hX, h768), (hX, h1024)], vWr)
    fragread(FXr, True)
    k.rows([(hC, None), (hC, hE1), (h2, None), (h2, hE1), (h4, None), (h4, hE1), (h6, None), (h6, hE1),
          (hC, h256), (h2, h256), (h4, h256), (h6, h256), (hC, h512), (h4, h512), (hC, h768), (h4, h768)], vWr)
    fragread(FXr, False)
    ACC = pool
    g(f"""
    v_and_b32 v{t[0]}, 31, v1
    v_lshrrev_b32 v{t[1]}, 5, v1
    v_lshlrev_b32 v{t[2]}, 3, v{t[0]}
    v_lshl_add_u32 v{t[2]}, v{t[1]}, 2, v{t[2]}
    v_cmp_eq_u32 vcc, 0, v{t[1]}
    v_lshlrev_b32 v{t[3]}, 2, v{t[0]}
    v_lshlrev_b32 v{t[4]}, 1, v{t[0]}
    v_add_u32 v{t[4]}, 128, v{t[4]}
    v_cndmask_b32 v{t[3]}, v{t[4]}, v{t[3]}, vcc
    v_lshl_add_u32 v{t[5]}, v{t[1]}, 7, v{t[0]}
    v_and_b32 v{t[0]}, 0xff0, v{t[2]}
    v_lshl_add_u32 v{t[2]}, v{t[2]}, 2, v{t[0]}
    v_add_u32 v{t[2]}, s{sBase}, v{t[2]}
    v_and_b32 v{t[0]}, 0xff0, v{t[3]}
    v_lshl_add_u32 v{t[3]}, v{t[3]}, 2, v{t[0]}
    v_add_u32 v{t[3]}, s{sBase}, v{t[3]}
    v_mul_u32_u24 v{t[4]}, 312, v{t[1]}
    v_add_u32 v{t[4]}, v{t[4]}, v{t[3]}
    v_and_b32 v{t[0]}, 0xff0, v{t[5]}
    v_lshl_add_u32 v{t[5]}, v{t[5]}, 2, v{t[0]}
    v_add_u32 v{t[5]}, s{sBase}, v{t[5]}
    """)
    g.items.append(("@STAMP23", 0))
    lds_spin(g, tmp[0], tmp[1], 1, sE, saddr=15, off=C_YR)
    for ks in range(8):
        g(f"ds_read_b128 {vr(FY+4*ks,4)}, v{vRy} offset:{32*ks}")
    for ks in range(8):
        c = "0" if ks == 0 else vr(ACC, 16)
        g(f"s_waitcnt lgkmcnt({7-ks})")
        g(f"v_mfma_f32_32x32x16_f16 {vr(ACC,16)}, {vr(FXr+4*ks,4)}, {vr(FY+4*ks,4)}, {c}")
    g(f"""
    s_mul_i32 s{sT}, s{sMH}, {KG_STRIDE}
    s_sub_u32 s{sT}, s{sBase}, s{sT}
    s_sub_u32 s{sT}, s{sT}, {0x2c000000}
    """)
    NR = 9
    NV = 2 * NR
    AD = pool
    VAL = [FY + 2 * i for i in range(NV)]
    assert FXr == FY + 32
    g("s_nop 12")
    for i in range(12):
        g(f"v_mul_f32 v{ACC+i}, v{vF}, v{ACC+i}")
    g(f"""
    ds_write_b128 v{t[2]}, {vr(ACC,4)} offset:80
    ds_write_b64 v{t[3]}, {vr(ACC+4,2)} offset:{80+1280}
    ds_write_b64 v{t[4]}, {vr(ACC+6,2)} offset:{80+1280+8}
    """)
    for r in range(4):
        g(f"ds_write_b32 v{t[5]}, v{ACC+8+r} offset:{80+2560+160*r}")
    g("s_waitcnt lgkmcnt(0)")
    g.items.append(("@STAMP24", 0))
    g.must_barrier()
    g(f"""
    s_lshr_b32 s{sE}, s{sKC}, 6
    v_and_b32 v{vA2}, 3, v1
    v_lshlrev_b32 v{vA2}, 1, v{vA2}
    v_sub_u32 v{vA2}, s{sE}, v{vA2}
    v_add_u32 v{vBh}, 9, v{vA2}
    v_min3_u32 v{vA2}, v{vA2}, v{vBh}, 7
    s_and_b32 s{sE}, s{sKC}, 32
    s_lshl_b32 s{sE}, s{sE}, 2
    v_lshl_add_u32 v{vA2}, v{vA2}, 4, s{sE}
    v_add_lshl_u32 v{vA2}, v{vA2}, v1, 7
    v_add_u32 v{vA2}, {FL_U}, v{vA2}
    """)
    for run in range(2):
        g(f"""
        s_lshl_b32 s{sE}, s{sMH}, 7
        s_sub_u32 s{sE}, {255 - 64*run}, s{sE}
        v_sub_u32 v{t[4]}, s{sE}, v1
        v_lshlrev_b32 v{t[4]}, 3, v{t[4]}
        v_max_u32 v{t[5]}, 128, v{t[4]}
        v_cvt_f32_u32 v{t[5]}, v{t[5]}
        v_and_b32 v{vInv}, 0x7f800000, v{t[5]}
        v_sub_u32 v{vInv}, {261<<23 & 0xffffffff}, v{vInv}
        v_lshrrev_b32 v{t[5]}, 16, v{t[5]}
        v_subrev_u32 v{t[5]}, {0x4380-256}, v{t[5]}
        v_min_u32 v{t[5]}, v{t[5]}, v{t[4]}
        v_add_u32 v{vBaseM}, 0x4b000010, v{t[5]}
        v_max_u32 v{t[5]}, 129, v{t[4]}
        v_subrev_u32 v{t[5]}, 1, v{t[5]}
        v_cvt_f32_u32 v{t[5]}, v{t[5]}
        v_and_b32 v{vInvM}, 0x7f800000, v{t[5]}
        v_sub_u32 v{vInvM}, {261<<23 & 0xffffffff}, v{vInvM}
        """)
        if run == 1: g(f"v_cmp_ne_u32 s[74:75], 0, v{t[4]}")
        for j in range(NR):
            i = NR * run + j
            r = 7 - j
            inv = vInv if r >= 0 else vInvM
            g(f"v_fmamk_f32 v{AD+i}, v{inv}, {fbits(float(r))}, v{vBaseM}")
            g(f"v_and_b32 v{t[i&1]}, 0xff0, v{AD+i}")
            g(f"v_lshl_add_u32 v{AD+i}, v{AD+i}, 2, s{sT}")
            g(f"v_add_u32 v{AD+i}, v{AD+i}, v{t[i&1]}")
            g(f"ds_read2st64_b32 {vr(VAL[i],2)}, v{AD+i} offset0:0 offset1:{KG_STRIDE//256}")
    g.nobar(True); area(g, sBase, sCS); g.nobar(False)
    g(f"""
    v_lshrrev_b32 v{vBl}, 4, v1
    v_mul_u32_u24 v{vBl}, {36*4096}, v{vBl}
    v_and_b32 v{vF}, 12, v1
    v_lshl_add_u32 v{vBl}, v{vF}, 8, v{vBl}
    v_and_b32 v{vF}, 3, v1
    v_lshl_add_u32 v{vBl}, v{vF}, 4, v{vBl}
    s_and_b32 s10, s{sKC}, 15
    s_lshl_b32 s10, s10, 6
    s_lshr_b32 s9, s{sKC}, 4
    s_lshl_b32 s9, s9, 12
    s_add_u32 s9, s9, s10
    s_add_u32 s9, s9, {UT_OFF}
    v_lshl_add_u32 v{vF}, v1, 3, s{sBase}
    v_mov_b32 v{t[3]}, 0
    s_lshl_b32 s{sE}, s{sMH}, 11
    s_add_u32 s{sE}, s{sE}, s{sBase}
    v_lshl_add_u32 v{t[0]}, v1, 4, s{sE}
    v_lshrrev_b32 v{t[1]}, 4, v1
    v_mul_u32_u24 v{t[1]}, {CP}, v{t[1]}
    v_and_b32 v{t[2]}, 15, v1
    v_lshl_add_u32 v{t[1]}, v{t[2]}, 2, v{t[1]}
    s_add_u32 s{sT}, s{sBase}, 4096
    v_add_u32 v{t[1]}, s{sT}, v{t[1]}
    v_mov_b32 v{t[2]}, 0
    s_waitcnt lgkmcnt(0)
    """)
    for i in range(NV):
        g(f"v_add_f32 v{VAL[i]}, v{VAL[i]}, v{VAL[i]+1}")
    for i in range(NV - 1, NV):
        g(f"v_cndmask_b32 v{VAL[i]}, 0, v{VAL[i]}, s[74:75]")
    OUT = pool
    for s in range(2):
        for i in range(8):
            b = NR * (i >> 2) + 2 * (i & 3) + s
            g(f"v_cvt_pk_bf16_f32 v{OUT+8*s+i}, v{VAL[b]}, v{VAL[b+1]}")
    if 'noexp' in EXP:
        k0 = [l for l, _ in g.items].index('@BAR')
        g.items = g.items[:k0+1] + [x for x in g.items[k0+1:] if not x[0].startswith(("v_fmamk", "ds_read2st64", "v_add_f32", "v_cvt_pk", "v_cndmask")) and "0xff0" not in x[0]]
    if 'nopre' in EXP:
        k0 = [l for l, _ in g.items].index('@BAR')
        g.items = g.items[k0:]
    def after(kb):
        if kb == 0: srd(a, R_WS, P_WS, WS_BYTES); get_tag(a, vWr[0], vWr[1])
        if kb == UK + 3:
            L = a.label("nofu")
            a(f"""
            s_cmp_lg_u32 s{S_WAVE}, 0
            s_cbranch_scc1 {L}
            s_and_b32 s76, s2, 1
            s_lshl_b32 s76, s76, 3
            s_lshr_b32 s77, s2, 5
            s_add_u32 s76, s76, s77
            s_lshl_b32 s76, s76, 2
            s_bfe_u32 s77, s2, 0x20001
            s_add_u32 s76, s76, s77
            s_lshl_b32 s76, s76, 2
            s_bfe_u32 s77, s2, 0x20003
            s_add_u32 s76, s76, s77
            s_lshl_b32 s76, s76, 7
            s_add_u32 s76, s76, {FL_U}
            """)
            flag_line(a, vWr[0], vWr[1], 76)
            a(f"{L}:")
    SPREAD = int(os.environ.get('SPREAD', '1'))
    def after2(kb):
        after(kb)
        if kb == int(os.environ.get('PB', '5')):
            L = a.label("np")
            a(f"s_cmp_lg_u32 s{sMH}, 0\ns_cbranch_scc1 {L}\ns_mov_b64 exec, 0xffff")
            poll_issue(a, vBh, 1, vA2, 0)
            a(f"s_mov_b64 exec, -1\n{L}:")
    tot = g.emit(a, NBAR1 - SPREAD, after2)
    a.stamp(25)
    Lnp, L2, L3, Lnu2, Lno, Lre, Lw = [a.label(x) for x in ("np", "kc", "kd", "nu", "no", "re", "uw")]
    def u_dma():
        a(f"s_mov_b64 exec, -1\ns_add_u32 m0, s{sBase}, {UOFF + 512}\ns_nop 0")
        for b in range(4):
            a(f"buffer_load_dwordx4 v{vBl}, {WS}, s9 offen offset:{1024*b}{LD} lds")
            if b < 3: a(f"s_add_u32 s9, s9, {4*36*4096 - 1024}")
    a(f"s_mov_b32 s10, s{sMH}\ns_setprio {os.environ.get('KPRIO', '3')}")
    for _ in range(SPREAD - 1): a("s_barrier")
    a(f"""
    s_cmp_lg_u32 s10, 0
    s_cbranch_scc1 {Lno}
    s_mov_b64 exec, 0xffff
    s_waitcnt vmcnt(0)
    v_cmp_ne_u32 vcc, s{S_TAG}, v{vBh}
    s_cbranch_vccnz {Lre}
    s_mov_b32 s10, 1
    """)
    u_dma()
    a(f"s_branch {Lno}\n{Lre}:")
    poll_issue(a, vBh, 1, vA2, 0)
    a(f"s_mov_b64 exec, -1\n{Lno}:")
    if 'w7' not in EXP: a("s_barrier")
    for s in range(2):
        a(f"ds_write_b128 v{t[0]}, {vr(OUT+8*s,4)} offset:{s*CP}")
        a(f"ds_write_b128 v{t[0]}, {vr(OUT+8*s+4,4)} offset:{s*CP+1024}")
    assert t[2] % 2 == 0
    a(f"""
    s_cmp_eq_u32 s{sMH}, 0
    s_cbranch_scc1 L_nz
    ds_write_b32 v{t[1]}, v{t[2]}
    ds_write_b64 v{vF}, {vr(t[2],2)} offset:{UOFF}
    L_nz:
    {"s_barrier" if 'w7' in EXP else ""}
    s_cmp_lg_u32 s10, 0
    s_cbranch_scc1 {Lw}
    s_mov_b64 exec, 0xffff
    """)
    poll_wait(a, vBh, 1, vA2, 0, issued=True)
    u_dma()
    a(f"""
    {Lw}:
    s_waitcnt vmcnt(0)
    s_lshl_b32 s{sT}, s{sCS}, 2
    s_add_u32 s{sT}, s{sT}, {CNT+C_RDY}
    """)
    lds_inc(a, t[0], t[1], saddr=sT)
    a(f"s_branch {Lend}")
    a(f"{Lskip}:")
    TB = int(os.environ.get('TLBAT', '1'))
    for _ in range(TB): a("s_barrier")
    if 'tlb' in EXP:
        Lnu = a.label("notlb")
        a(f"""
        s_lshr_b32 s8, s2, 3
        s_lshl_b32 s8, s8, 1
        s_add_u32 s8, s8, s{sMH}
        s_cmp_lg_u32 s8, 16
        s_cbranch_scc1 {Lnu}
        """)
        for i in sorted(range(1, (WS_BYTES >> 21) + 1), key=lambda i: abs(i - (UT_OFF >> 21) - 0.4)):
            a(f"s_mov_b32 s8, {i << 21}\ns_load_dword s{59+i}, s[{P_WS}:{P_WS+1}], s8")
        a(f"s_load_dword s72, s[{P_WO}:{P_WO+1}], 0\ns_load_dword s73, s[{P_OUT}:{P_OUT+1}], 0\ns_mov_b32 s8, {X_BYTES-4}\ns_load_dword s74, s[{P_OUT}:{P_OUT+1}], s8")
        a(f"{Lnu}:")
    for _ in range(NBAR1 - TB): a("s_barrier")
    srd(a, R_WS, P_WS, WS_BYTES); get_tag(a, t[0], t[1])
    a(f"{Lend}:")
    a.stamp(2)

def phase1(a, name, endlabel):
    Lkg, Lg, Lend = a.label("kg"), a.label("gemm"), a.label("p1end")
    head(a, name, endlabel, Lkg, Lg)
    loader(a)
    a(f"s_branch {Lend}\n{Lkg}:")
    kgen_waves(a)
    a(f"s_branch {Lend}\nL_gate_dma:\ns_waitcnt lgkmcnt(0)")
    srd(a, R_A, P_G, 1152)
    a(f"""
    v_lshlrev_b32 v4, 4, v1
    s_mov_b32 m0, {GT}
    s_nop 0
    buffer_load_dwordx4 v4, s[{R_A}:{R_A+3}], 0 offen lds
    s_mov_b64 exec, 0xff
    buffer_load_dwordx4 v4, s[{R_A}:{R_A+3}], 0 offen offset:1024 lds
    s_mov_b64 exec, -1
    s_barrier
    s_waitcnt vmcnt(0)
    {Lg}:
    """)
    gemm_waves(a)
    a(f"{Lend}:")
```

```python
from asmlib import *
from layout import *
import math, struct, os
EXP = os.environ.get('EXP', '').split(',')

S_WAVE = 3
P_U, P_LA, P_AI, P_CR, P_CI, P_DT, P_D = 16, 18, 20, 22, 24, 26, 28
P_W, P_WO, P_G, P_OUT, P_DBG, P_WS = 32, 34, 36, 38, 40, 42
R_X, R_W, R_WS, R_A, R_B, R_C, R_D = 44, 48, 52, 56, 60, 64, 68
S_TAG = 30
S_SPIN = 31
S_DV = 70
S_FQ = 67
S_C2 = 68
S_CB = 71
WS = f"s[{R_WS}:{R_WS+3}]"
ST = " sc1"
LD = " sc1"

SLOT = 32768
KG_BASE = 4 * SLOT
KG_STRIDE = 4608
GT = KG_BASE + 6 * KG_STRIDE
CNT = 163328
C_RDY, C_1, C_2, C_Q, C_S, C_O, C_F, C_E, C_P = 0, 16, 32, 48, 64, 72, 76, 80, 96
C_FA = 68
C_TG = 224
C_Y, C_A, C_FREE, C_YR, C_KV = 136, 140, 144, 160, 192
VM_Y = 0
REG_B = 4 * BLK
CP = 4160
CH = 4 * CP + 512 + 4096
UOFF = 4 * CP
CA = 3 * SLOT
QST = REG_B
assert CA + 3 * CH <= CNT and CA + 2 * CH <= GT and QST + 9216 <= CA
NBAR1 = 9
C3MASK = int(os.environ.get('C3MASK', '0xbf40'), 0)
UK = int(os.environ.get('UK', '0'))
LEAD = 3 if 'lead3' in EXP else 2
SPIN_MAX = 1 << 20

def chan(a, d, scs):
    a(f"s_lshl_b32 s{d}, s{scs}, 8\ns_add_u32 s{d}, s{d}, s{S_CB}\ns_cmp_eq_u32 s{scs}, 2\ns_cselect_b32 s{d}, s{S_C2}, s{d}")

def area(a, d, scs):
    a(f"s_mul_i32 s{d}, s{scs}, {CH}\ns_add_u32 s{d}, s{d}, {CA}")

def srd(a, r, p, nbytes):
    a(f"s_mov_b32 s{r}, s{p}\ns_mov_b32 s{r+1}, s{p+1}\ns_mov_b32 s{r+2}, {nbytes}\ns_mov_b32 s{r+3}, 0x20000")

LOG2E = 1.4426950408889634
def f32r(x): return struct.unpack("<f", struct.pack("<f", x))[0]
L_HI = f32r(LOG2E); L_LO = f32r(LOG2E - L_HI)
I2PI = 1.0 / (2 * math.pi)
I_HI = f32r(I2PI); I_LO = f32r(I2PI - I_HI)
LN2 = math.log(2.0)

def lds_inc(a, va, vb, saddr=None, off=0, rtn=None):
    if getattr(a, 'jit', 0): a.jitter()
    if saddr is None: a(f"v_mov_b32 v{va}, {CNT}")
    else: a(f"v_mov_b32 v{va}, s{saddr}")
    a(f"v_mov_b32 v{vb}, 1\ns_mov_b64 exec, 1")
    if rtn is None:
        a(f"ds_add_u32 v{va}, v{vb} offset:{off}\ns_mov_b64 exec, -1")
    else:
        a(f"ds_add_rtn_u32 v{vb}, v{va}, v{vb} offset:{off}\ns_mov_b64 exec, -1\ns_waitcnt lgkmcnt(0)\nv_readfirstlane_b32 s{rtn}, v{vb}")

def lds_spin(a, va, vb, target, stmp, saddr=None, off=0):
    L, Ld = a.label("lspin"), a.label("lsdone")
    if saddr is None: a(f"v_mov_b32 v{va}, {CNT}")
    else: a(f"v_mov_b32 v{va}, s{saddr}")
    a(f"""
    s_mov_b32 s{S_SPIN}, {SPIN_MAX}
    {L}:
    ds_read_b32 v{vb}, v{va} offset:{off}
    s_waitcnt lgkmcnt(0)
    v_readfirstlane_b32 s{stmp}, v{vb}
    s_cmp_ge_u32 s{stmp}, {target}
    s_cbranch_scc1 {Ld}
    s_sleep {os.environ.get('LSLEEP', '1')}
    s_sub_u32 s{S_SPIN}, s{S_SPIN}, 1
    s_cbranch_scc0 {L}
    {Ld}:
    """)
    if getattr(a, 'jit', 0): a.jitter()

def flag_line(a, vt, va, soff):
    a(f"""
    v_mov_b32 v{vt}, s{S_TAG}
    v_lshlrev_b32 v{va}, 2, v1
    s_mov_b64 exec, {os.environ.get('FLEX', '0xffff')}
    buffer_store_dword v{vt}, v{va}, {WS}, s{soff} offen sc1
    s_mov_b64 exec, -1
    """)

def flag_store(a, vt, soff):
    a(f"""
    v_mov_b32 v{vt}, s{S_TAG}
    s_mov_b64 exec, 1
    buffer_store_dword v{vt}, off, {WS}, s{soff} sc1
    s_mov_b64 exec, -1
    """)

def poll_issue(a, vd, n, voff, off):
    w = {1: "dword", 4: "dwordx4"}[n]
    a(f"buffer_load_{w} {vr(vd,n)}, v{voff}, {WS}, 0 offen offset:{off & 4095} sc1" if off < 4096 else
      f"s_movk_i32 s{S_SPIN}, {off}\nbuffer_load_{w} {vr(vd,n)}, v{voff}, {WS}, s{S_SPIN} offen sc1")

def poll_wait(a, vd, n, voff, soff_or_imm, issued=False):
    L, Lc, Ld = a.label("poll"), a.label("pollchk"), a.label("polld")
    w = {1: "dword", 4: "dwordx4"}[n]
    a(f"s_mov_b32 s{S_SPIN}, {SPIN_MAX}")
    if issued: a(f"s_branch {Lc}")
    a(f"""
    {L}:
    buffer_load_{w} {vr(vd,n)}, v{voff}, {WS}, 0 offen offset:{soff_or_imm} sc1
    {Lc}:
    s_waitcnt vmcnt(0)
    """)
    if n == 4:
        a(f"""
        v_xor_b32 v{vd}, s{S_TAG}, v{vd}
        v_xor_b32 v{vd+1}, s{S_TAG}, v{vd+1}
        v_xor_b32 v{vd+2}, s{S_TAG}, v{vd+2}
        v_xor_b32 v{vd+3}, s{S_TAG}, v{vd+3}
        v_or3_b32 v{vd}, v{vd}, v{vd+1}, v{vd+2}
        v_or_b32 v{vd}, v{vd}, v{vd+3}
        v_cmp_ne_u32 vcc, 0, v{vd}
        """)
    else:
        a(f"v_cmp_ne_u32 vcc, s{S_TAG}, v{vd}")
    a(f"""
    s_cbranch_vccz {Ld}
    s_sleep {os.environ.get('PSLEEP', '6')}
    s_sub_u32 s{S_SPIN}, s{S_SPIN}, 1
    s_cbranch_scc0 {L}
    {Ld}:
    """)

class Lgkm:
    def __init__(self, a): self.a = a; self.q = []; self.done = 0
    def load(self, txt, regs=()):
        self.a(txt); self.q.append(set(regs))
    def need(self, regs):
        regs = set(regs); last = -1
        for i, s in enumerate(self.q):
            if s & regs: last = i
        if last >= self.done:
            n = min(len(self.q) - 1 - last, 15)
            self.a(f"s_waitcnt lgkmcnt({n})")
            self.done = len(self.q) - n

def rng(b, n): return range(b, b + n)

sRB, sCT, sJ0 = 4, 5, 11

KG_T = [120, 121, 122, 123, 124, 125]
KG_C = 126
sKU, sKC = 65, 66
YB, YS = 32768, 32 * 272

def head(a, name, endlabel, Lkg, Lg):
    Lnp, Lnk = a.label("nopf"), a.label("nokg")
    t = KG_T
    a(f"""
    s_cmp_ge_u32 s2, 256
    s_cbranch_scc1 {endlabel}
    s_load_dwordx16 s[16:31], s[0:1], 0
    s_load_dwordx8 s[32:39], s[0:1], 64
    s_load_dwordx4 s[40:43], s[0:1], 96
    v_lshrrev_b32 v3, 6, v0
    v_and_b32 v1, 63, v0
    v_readfirstlane_b32 s{S_WAVE}, v3
    s_getpc_b64 s[8:9]
    L_pc:
    s_lshr_b32 s7, s2, 3
    s_and_b32 s{S_CB}, s2, 0xc0
    s_and_b32 s6, s7, 7
    s_or_b32 s{S_CB}, s{S_CB}, s6
    s_and_b32 s6, s2, 7
    s_lshl3_add_u32 s{S_CB}, s6, s{S_CB}
    s_lshr_b32 s{sRB}, s6, 1
    s_and_b32 s10, s7, 3
    s_lshl2_add_u32 s{sRB}, s{sRB}, s10
    s_and_b32 s{sCT}, s6, 1
    s_lshr_b32 s12, s7, 2
    s_lshl3_add_u32 s{sCT}, s{sCT}, s12
    """)
    if C3MASK:
        a(f"""
        s_bfm_b32 s13, s{sCT}, 0
        s_and_b32 s13, s13, {C3MASK}
        s_bcnt1_i32_b32 s13, s13
        s_and_b32 s{S_C2}, s6, 6
        s_lshl3_add_u32 s{S_C2}, s13, s{S_C2}
        s_and_b32 s13, s7, 1
        s_add_u32 s{S_C2}, s{S_C2}, s13
        s_addk_i32 s{S_C2}, 512
        s_bitcmp1_b32 {C3MASK}, s{sCT}
        s_cselect_b32 s{S_C2}, s{S_C2}, 576
        s_bitcmp1_b32 s2, 4
        s_cselect_b32 s{S_C2}, s{S_C2}, 576
        """)
    else:
        a(f"""
    s_mul_i32 s{S_C2}, s{sCT}, 43
    s_lshr_b32 s{S_C2}, s{S_C2}, 7
    s_lshl4_add_u32 s{S_C2}, s{S_C2}, s{sRB}
    s_addk_i32 s{S_C2}, 480
    s_bitcmp1_b32 {0x10000 if 'no3' in EXP else 0x9240}, s{sCT}
    s_cselect_b32 s{S_C2}, s{S_C2}, 576
        """)
    a(f"""
    s_cmp_lg_u32 s{S_WAVE}, 0
    s_cbranch_scc1 {Lnp}
    s_and_b32 s6, s7, 3
    s_lshl_b32 s6, s6, 13
    v_lshl_add_u32 v3, v1, 7, s6
    v_min_u32 v3, {endlabel}-L_pc, v3
    global_load_dword v3, v3, s[8:9]
    v_lshlrev_b32 v4, 2, v1
    v_add_u32 v4, {CNT}, v4
    v_mov_b32 v5, 0
    ds_write_b32 v4, v5
    {Lnp}:
    s_movk_i32 s{sKC}, 576
    s_mov_b32 s6, 0xcf3f
    s_bitcmp0_b32 s6, s{S_WAVE}
    s_cbranch_scc1 {Lnk}
    s_and_b32 s{sKU}, s{S_WAVE}, 7
    s_sub_u32 s6, s{sKU}, 2
    s_cmp_ge_u32 s{sKU}, 6
    s_cselect_b32 s{sKU}, s6, s{sKU}
    s_lshr_b32 s{sKC}, s{sKU}, 1
    s_lshl_b32 s{sKC}, s{sKC}, 8
    s_add_u32 s{sKC}, s{sKC}, s{S_CB}
    s_cmp_ge_u32 s{sKU}, 4
    s_cselect_b32 s{sKC}, s{S_C2}, s{sKC}
    s_min_u32 s6, s{sKC}, 575
    s_lshl_b32 s6, s6, 1
    v_mov_b32 v{t[4]}, s6
    s_and_b32 s13, s{sKU}, 1
    s_add_u32 s6, s6, s13
    s_lshl_b32 s6, s6, 7
    v_lshl_add_u32 v{t[0]}, v1, 1, s6
    s_waitcnt lgkmcnt(0)
    global_load_ushort v{t[3]}, v{t[4]}, s[{P_DT}:{P_DT+1}]
    global_load_ushort v{t[1]}, v{t[0]}, s[{P_LA}:{P_LA+1}]
    global_load_ushort v{t[2]}, v{t[0]}, s[{P_AI}:{P_AI+1}]
    s_cmp_ge_u32 s{S_WAVE}, 8
    s_cbranch_scc1 {Lnk}
    global_load_ushort v{KG_C}, v{t[0]}, s[{P_CR}:{P_CR+1}]
    global_load_ushort v{KG_C+1}, v{t[0]}, s[{P_CI}:{P_CI+1}]
    s_mov_b32 s5, s13
    s_barrier
    s_branch {Lkg}
    {Lnk}:
    s_lshl1_add_u32 s{sJ0}, s10, s12
    s_sub_u32 s8, s{sJ0}, 9
    s_cmp_ge_u32 s{sJ0}, 9
    s_cselect_b32 s{sJ0}, s8, s{sJ0}
    s_cmp_lt_u32 s{S_WAVE}, 8
    s_cbranch_scc1 L_ld
    s_lshl_b32 s8, s{sCT}, 4
    s_add_u32 s8, s8, s{S_WAVE}
    s_cmp_eq_u32 s8, 13
    s_cbranch_scc1 L_gate_dma
    s_barrier
    s_branch {Lg}
    L_ld:
    """)

def fetch_tag(a, v):
    a(f"""
    s_load_dword s60, s[{P_WS}:{P_WS+1}], {FL_OFF}
    s_lshr_b32 s69, s{S_CB}, 1
    s_lshl_b32 s69, s69, 2
    s_load_dword s61, s[{P_D}:{P_D+1}], s69
    s_add_u32 s69, s69, 512
    s_load_dword s62, s[{P_D}:{P_D+1}], s69
    s_min_u32 s69, s{S_C2}, 575
    s_lshr_b32 s69, s69, 1
    s_lshl_b32 s69, s69, 2
    s_load_dword s63, s[{P_D}:{P_D+1}], s69
    v_mov_b32 v{v+4}, {CNT}
    s_waitcnt lgkmcnt(0)
    s_mul_i32 s60, s60, 0x9e3779b1
    s_add_u32 s60, s60, 0x7f4a7c15
    v_mov_b32 v{v}, s60
    v_mov_b32 v{v+1}, s61
    v_mov_b32 v{v+2}, s62
    v_mov_b32 v{v+3}, s63
    ds_write_b128 v{v+4}, {vr(v,4)} offset:{C_TG}
    s_waitcnt lgkmcnt(0)
    """)

def get_tag(a, va, vb):
    a(f"""
    s_and_b32 s69, s{S_WAVE}, 12
    s_add_u32 s69, s69, {CNT}
    v_mov_b32 v{va}, {CNT}
    v_mov_b32 v{vb}, s69
    ds_read_b32 v{va}, v{va} offset:{C_TG}
    ds_read_b32 v{vb}, v{vb} offset:{C_TG+4}
    s_waitcnt lgkmcnt(0)
    v_readfirstlane_b32 s{S_TAG}, v{va}
    v_readfirstlane_b32 s{S_DV}, v{vb}
    s_nop 1
    """)

def loader(a):
    sJ, sT, sCm, sAs, sLb, sInc, sXr = 6, 7, 8, 9, 10, 14, 15
    V = [4, 5, 6, 7]; t0, t1, t2, t3 = 8, 9, 10, 11
    Lx, Lc, Lsub, Lover, Lw, Lend = [a.label(x) for x in ("ldx", "ldc", "issue", "over", "ldw", "ldend")]
    a(f"""
    v_lshrrev_b32 v{t2}, 4, v1
    s_setprio 3
    s_mov_b32 s{R_X+3}, 0x20000
    s_mov_b32 s{sJ}, s{sJ0}
    s_cmp_eq_u32 s{S_WAVE}, 6
    s_cbranch_scc1 {Lx}
    v_and_b32 v{t0}, 15, v1
    v_lshlrev_b32 v{t1}, 2, v{t2}
    v_xor_b32 v{t0}, v{t0}, v{t1}
    v_lshrrev_b32 v{t1}, 2, v{t0}
    v_and_b32 v{t0}, 3, v{t0}
    v_cmp_eq_u32 vcc, 3, v{t1}
    v_mul_u32_u24 v{t1}, 9, v{t1}
    v_lshrrev_b32 v{t3}, 1, v{t0}
    v_add_u32 v{t1}, v{t1}, v{t3}
    v_lshl_add_u32 v{t1}, v{t0}, 1, v{t1}
    v_min_u32 v{t0}, 2, v{t0}
    v_mad_u32_u24 v{t0}, v{t0}, 9, 4
    v_cndmask_b32 v{t1}, v{t1}, v{t0}, vcc
    v_mul_u32_u24 v{t2}, 432, v{t2}
    s_mul_i32 s{sT}, s{sCT}, 27
    v_add3_u32 v{t1}, v{t1}, v{t2}, s{sT}
    v_lshlrev_b32 v{V[0]}, 3, v{t1}
    s_mov_b32 s72, {0xffffffff ^ (1<<15) ^ (1<<27)}
    s_mov_b32 s73, {0xffffffff ^ (1<<7) ^ (1<<19)}
    s_mov_b32 s{sCm}, {64*3456}
    s_mov_b32 s{sAs}, 55296
    s_movk_i32 s{sLb}, 16384
    s_movk_i32 s{sInc}, 12800
    s_mov_b32 s{sXr}, 0
    s_mov_b32 s{R_X+2}, {W_BYTES}
    s_waitcnt lgkmcnt(0)
    s_mov_b64 s[{R_X}:{R_X+1}], s[{P_W}:{P_W+1}]
    s_branch {Lc}
    {Lx}:
    v_lshrrev_b32 v{t0}, 3, v1
    s_lshl_b32 s{sT}, s{sRB}, 7
    v_add_u32 v{t1}, s{sT}, v{t0}
    v_mul_u32_u24 v{t1}, 1152, v{t1}
    v_and_b32 v{t3}, 7, v1
    v_xor_b32 v{t3}, v{t3}, v{t2}
    v_lshl_add_u32 v{V[0]}, v{t3}, 4, v{t1}
    s_mov_b64 s[72:73], -1
    s_movk_i32 s{sCm}, 128
    s_mov_b32 s{sAs}, 36864
    s_mov_b32 s{sLb}, 0
    s_movk_i32 s{sInc}, 8192
    s_mov_b32 s{sXr}, 64
    s_mov_b32 s{R_X+2}, {X_BYTES}
    s_waitcnt lgkmcnt(0)
    s_mov_b64 s[{R_X}:{R_X+1}], s[{P_U}:{P_U+1}]
    {Lc}:
    v_xor_b32 v{V[1]}, s{sXr}, v{V[0]}
    v_add_u32 v{V[1]}, s{sInc}, v{V[1]}
    s_lshl_b32 s{sInc}, s{sInc}, 1
    v_add_u32 v{V[2]}, s{sInc}, v{V[0]}
    v_add_u32 v{V[3]}, s{sInc}, v{V[1]}
    """)
    def issue(it):
        a(f"s_add_u32 m0, s{sLb}, {((-it) & 3) * SLOT}\ns_call_b64 s[12:13], {Lsub}")
    a.stamp(22)
    a("s_barrier")
    issue(0)
    a.stamp(23)
    for it in range(1, LEAD): issue(it)
    a(f"s_branch {Lover}\n{Lsub}:")
    a(f"s_mul_i32 s{sT}, s{sJ}, s{sCm}\ns_mov_b64 exec, s[72:73]")
    THR = int(os.environ.get('THR', '20')); THR1 = int(os.environ.get('THR1', '0'))
    for g in range(4):
        if THR: a(f"s_waitcnt vmcnt({THR})")
        for b in range(4):
            if THR1: a(f"s_waitcnt vmcnt({THR1})")
            a(f"buffer_load_dwordx4 v{V[b]}, s[{R_X}:{R_X+3}], s{sT} offen offset:{1024*b} lds")
        if g < 3:
            a(f"s_add_u32 m0, m0, 4096\ns_add_u32 s{sT}, s{sT}, s{sAs}")
    a(f"""
    s_mov_b64 exec, -1
    s_add_u32 s{sJ}, s{sJ}, 1
    s_cmp_eq_u32 s{sJ}, 9
    s_cselect_b32 s{sJ}, 0, s{sJ}
    s_setpc_b64 s[12:13]
    {Lover}:
    """)
    a.stamp(1)
    srd(a, R_WS, P_WS, WS_BYTES)
    a(f"""
    v_lshlrev_b32 v{t2}, 4, v1
    v_lshrrev_b32 v16, 4, v1
    v_bfe_u32 v17, v1, 2, 2
    v_lshl_add_u32 v18, v16, 3, v17
    v_bfe_u32 v19, v18, 1, 3
    v_bfe_u32 v17, v1, 1, 1
    v_xor_b32 v19, v19, v17
    v_lshlrev_b32 v19, 4, v19
    v_lshl_add_u32 v19, v18, 7, v19
    v_and_b32 v17, 1, v1
    v_lshl_add_u32 v19, v17, 3, v19
    s_and_b32 s74, s{sCT}, 8
    s_lshl_b32 s75, s74, 3
    v_xor_b32 v20, s75, v19
    v_xor_b32 v21, 32, v20
    v_and_b32 v17, 15, v1
    v_lshlrev_b32 v17, 6, v17
    v_lshl_add_u32 v17, v16, 4, v17
    s_lshl_b32 s74, s74, 10
    s_mul_i32 s75, s{sRB}, {36*4096}
    s_add_u32 s74, s74, s75
    s_add_u32 s74, s74, {UT_OFF}
    v_add_u32 v22, s74, v17
    """)
    def ut_task(it):
        skip = a.label("utskip")
        a(f"s_mov_b32 s78, 0\ns_cmp_lg_u32 s{S_WAVE}, 6\ns_cbranch_scc1 {skip}")
        if it == 1:
            a(f"s_and_b32 s74, s{sCT}, 7\ns_cmp_lg_u32 s74, 7\ns_cbranch_scc1 {skip}")
            a(f"s_add_u32 s74, s{sJ0}, 1\ns_cmp_eq_u32 s74, 9\ns_cselect_b32 s74, 0, s74\ns_lshl_b32 s74, s74, 14\nv_add_u32 v20, {3*SLOT}, v20\nv_add_u32 v21, {3*SLOT}, v21")
        else:
            a(f"s_lshl_b32 s74, s{sJ0}, 14")
        a("s_mov_b32 s78, 1")
        for m in range(2):
            for i in range(4):
                d = 24 + 32 * it + 16 * m + 4 * i
                a(f"ds_read_b64_tr_b16 {vr(d,2)}, v{20+m} offset:{4096*i}")
                a(f"ds_read_b64_tr_b16 {vr(d+2,2)}, v{21-m} offset:{4096*i + 512}")
        a(f"{skip}:")
    def ut_store(it):
        skip = a.label("utskip")
        a(f"s_cmp_eq_u32 s78, 0\ns_cbranch_scc1 {skip}\ns_waitcnt lgkmcnt(0)")
        for m in range(2):
            for i in range(4):
                d = 24 + 32 * it + 16 * m + 4 * i
                a(f"buffer_store_dwordx4 {vr(d,4)}, v22, {WS}, s74 offen offset:{1024*i}{ST}")
            if m == 0: a("s_add_u32 s74, s74, 4096")
        a(f"{skip}:")
    assert LEAD == 2
    for k in range(9):
        left = min(LEAD - 1, 8 - k)
        if k in (UK + 1, UK + 2):
            L = a.label("w24")
            a(f"s_waitcnt vmcnt(24)\ns_cmp_eq_u32 s78, 1\ns_cbranch_scc1 {L}\ns_waitcnt vmcnt(16)\n{L}:")
        else:
            a(f"s_waitcnt vmcnt({16 * left})")
        if 'ldst' in EXP: a.stamp([24, 9, 10, 11, 12, 13, 26, 27, 28][k])
        if k == 0: a.stamp(40)
        a("s_barrier")
        if a.jit: a.jitter()
        n = k + LEAD
        if k in (UK, UK + 1): ut_task(k - UK)
        if n <= 8: issue(n)
        if k == 7: get_tag(a, t0, t1)
        if k in (UK, UK + 1): ut_store(k - UK)
    a.stamp(2)

def wt_load(a, sF, sT, sD2, s8, s9, s10, t0, t1, t2, WL):
    skip = a.label("nowt")
    srd(a, R_A, P_WO, WO_BYTES)
    a(f"""
    s_cmp_ge_u32 s{sF}, 648
    s_cbranch_scc1 {skip}
    v_lshrrev_b32 v{t0}, 4, v1
    v_lshrrev_b32 v{t1}, 1, v{t0}
    v_mul_u32_u24 v{t1}, 20, v{t1}
    v_and_b32 v{t2}, 1, v{t0}
    v_lshl_add_u32 v{t1}, v{t2}, 3, v{t1}
    v_mad_u32_u24 v{t2}, v{t0}, 36, 8
    v_lshlrev_b32 v{t2}, 1, v{t2}
    s_mul_i32 s{s8}, s{sF}, 3641
    s_lshr_b32 s{s8}, s{s8}, 16
    s_mul_i32 s{s9}, s{s8}, 18
    s_sub_u32 s{s9}, s{sF}, s{s9}
    s_mul_i32 s{sT}, s{s9}, {36*1152}
    s_sub_u32 s{s10}, s{s9}, 16
    s_mul_i32 s{s10}, s{s10}, {288*1152}
    s_movk_i32 s{sD2}, {4*1152}
    s_cmp_ge_u32 s{s9}, 16
    s_cselect_b32 s{sT}, s{s10}, s{sT}
    s_cselect_b32 s{sD2}, {36*1152}, s{sD2}
    s_cselect_b64 vcc, -1, 0
    v_cndmask_b32 v{t1}, v{t1}, v{t2}, vcc
    v_mul_u32_u24 v{t1}, 1152, v{t1}
    v_and_b32 v{t2}, 15, v1
    v_lshl_add_u32 v{t1}, v{t2}, 1, v{t1}
    s_lshl_b32 s{s8}, s{s8}, 5
    s_add_u32 s{sT}, s{sT}, s{s8}
    s_add_u32 s{sD2}, s{sD2}, s{sT}
    """)
    for e in range(8):
        a(f"buffer_load_ushort v{WL+e}, v{t1}, s[{R_A}:{R_A+3}], s{sT if e < 4 else sD2} offen offset:{(e&3)*1152}")
    a(f"{skip}:")

def wt_store(a, sF, WL, vL16):
    skip = a.label("wtskip")
    a(f"s_cmp_ge_u32 s{sF}, 648\ns_cbranch_scc1 {skip}")
    for e in range(4):
        a(f"v_lshl_or_b32 v{WL+e}, v{WL+2*e+1}, 16, v{WL+2*e}")
    a(f"""
    s_lshl_b32 s{sF}, s{sF}, 10
    s_add_u32 s{sF}, s{sF}, {WT_OFF}
    buffer_store_dwordx4 {vr(WL,4)}, v{vL16}, {WS}, s{sF} offen{ST}
    {skip}:
    """)

def gemm_waves(a):
    sT, sU, sTL = 7, 12, 13
    R = Regs(4, 120)
    t0, t1, t2, t3 = [R.alloc() for _ in range(4)]
    vXa = [R.alloc() for _ in range(4)]
    vWa, vFr, vL16 = R.alloc(), R.alloc(), R.alloc()
    FX = [[R.alloc(4, 4), R.alloc(4, 4)] for _ in range(4)]
    FW = [R.alloc(4, 4) for _ in range(4)]
    ACC = [R.alloc(16, 4), R.alloc(16, 4)]
    EA = [ACC[1], ACC[1] + 4]; EW = [ACC[1] + 8, ACC[1] + 12]
    WL, vGa, vCn, vOne, vSt = [R.alloc() for _ in range(5)]
    vXe = [R.alloc(), R.alloc()]
    vWe, vE0, vE1, vSc = [R.alloc() for _ in range(4)]
    a(f"""
    v_mov_b32 v{vCn}, {CNT}
    v_mov_b32 v{vOne}, 1
    v_mov_b32 v{vE0}, 0
    v_mov_b32 v{vE1}, 0
    s_and_b32 s{sU}, s{S_WAVE}, 1
    s_and_b32 s{sTL}, s{S_WAVE}, 2
    s_and_b32 s8, s{S_WAVE}, 3
    s_cmp_ge_u32 s{S_WAVE}, 12
    s_cselect_b32 s{sU}, 2, s{sU}
    s_cselect_b32 s{sTL}, s8, s{sTL}
    v_lshlrev_b32 v{vL16}, 4, v1
    s_waitcnt lgkmcnt(0)
    """)
    Lnt = a.label("notouch")
    a(f"""
    s_cmp_lg_u32 s{S_WAVE}, 12
    s_cbranch_scc1 {Lnt}
    s_and_b32 s8, s{sCT}, 7
    s_add_u32 s8, s8, 8
    s_sub_u32 s9, s8, 9
    s_cmp_ge_u32 s8, 9
    s_cselect_b32 s8, s9, s8
    s_lshl_b32 s8, s8, 2
    s_and_b32 s9, s{sRB}, 3
    s_add_u32 s8, s8, s9
    s_mul_i32 s8, s8, {16*3456}
    s_mul_i32 s9, s{sCT}, 216
    s_add_u32 s8, s8, s9
    v_lshrrev_b32 v{t0}, 2, v1
    v_mul_u32_u24 v{t0}, 3456, v{t0}
    v_and_b32 v{t1}, 3, v1
    v_mul_u32_u24 v{t1}, 68, v{t1}
    v_add3_u32 v{t0}, v{t0}, v{t1}, s8
    global_load_dword v{WL}, v{t0}, s[{P_W}:{P_W+1}]
    """)
    fetch_tag(a, FX[0][0])
    a(f"""{Lnt}:
    v_and_b32 v{t0}, 31, v1
    v_lshrrev_b32 v{t1}, 5, v1
    v_bfe_u32 v{t2}, v1, 1, 3
    v_xor_b32 v{t2}, v{t2}, v{t1}
    v_lshlrev_b32 v{t2}, 4, v{t2}
    v_lshl_add_u32 v{t2}, v{t0}, 7, v{t2}
    s_lshl_b32 s{sT}, s{sTL}, 12
    v_add_u32 v{vXa[0]}, s{sT}, v{t2}
    v_lshlrev_b32 v{vSt}, 5, v{t0}
    v_lshl_add_u32 v{vSt}, v{t1}, 4, v{vSt}
    """)
    for ks in range(1, 4):
        a(f"v_xor_b32 v{vXa[ks]}, {32*ks}, v{vXa[0]}")
    sTile, sP, sTy, sHd, sO, sSc, sB = 10, 15, 74, 75, 76, 77, 78
    a(f"""
    v_bfe_u32 v{t0}, v1, 2, 2
    v_lshl_add_u32 v{t2}, v{t1}, 3, v{t0}
    v_lshlrev_b32 v{t2}, 8, v{t2}
    v_xor_b32 v{t0}, s{sU}, v{t0}
    v_lshl_add_u32 v{t2}, v{t0}, 6, v{t2}
    v_and_b32 v{t0}, 1, v1
    v_lshlrev_b32 v{t0}, 4, v{t0}
    v_and_b32 v{t3}, 2, v1
    v_lshl_add_u32 v{t0}, v{t3}, 2, v{t0}
    v_and_b32 v{t3}, 16, v1
    v_lshl_add_u32 v{t0}, v{t3}, 1, v{t0}
    v_add_u32 v{vWa}, v{t2}, v{t0}
    s_lshl2_add_u32 s{sTile}, s{sRB}, s{sTL}
    s_mul_i32 s{sP}, s{sCT}, 3
    s_add_u32 s79, s{sP}, s{sU}
    s_lshr_b32 s{sTy}, s79, 4
    s_and_b32 s{sHd}, s79, 15
    s_lshl_b32 s{sHd}, s{sHd}, 1
    s_mov_b32 s{sSc}, {fbits(QSCALE)}
    s_lshr_b32 s83, s{sTile}, 3
    s_mul_i32 s83, s83, {BLK}
    s_add_u32 s83, s83, {KV_OFF}
    s_mul_i32 s79, s{sHd}, {8*BLK}
    s_add_u32 s79, s79, s83
    s_and_b32 s80, s{sTile}, 7
    s_lshl_b32 s81, s80, 10
    s_add_u32 s81, s81, s79
    s_mul_i32 s80, s80, 1280
    s_add_u32 s80, s80, s79
    s_add_u32 s80, s80, {V_OFF}
    s_lshl_b32 s79, s{sHd}, 6
    s_add_u32 s79, s79, s{sTile}
    s_lshl_b32 s79, s79, 10
    s_add_u32 s79, s79, {QF_OFF}
    s_mov_b32 s{sB}, {8*BLK}
    s_cmp_eq_u32 s{sTy}, 0
    s_cselect_b32 s{sO}, s79, s81
    s_cselect_b32 s{sB}, 0x10000, s{sB}
    s_movk_i32 s82, 1024
    s_cmp_eq_u32 s{sTy}, 2
    s_cselect_b32 s{sO}, s80, s{sO}
    s_cselect_b32 s82, 1280, s82
    s_cselect_b64 vcc, -1, 0
    v_cndmask_b32 v{vSt}, v{vL16}, v{vSt}, vcc
    s_lshl4_add_u32 s9, s{sCT}, s{sRB}
    s_lshl_b32 s9, s9, 7
    s_add_u32 s9, s9, {FL_Q}
    """)
    sN, sX, sG, sX2 = 14, 8, 6, 7
    srd(a, R_WS, P_WS, WS_BYTES)
    Lny = a.label("nx")
    a(f"""
    s_cmp_lt_u32 s{S_WAVE}, 12
    s_cbranch_scc1 {Lny}
    v_lshrrev_b32 v{t0}, 4, v1
    v_and_b32 v{t1}, 15, v1
    v_bfe_u32 v{t2}, v1, 1, 3
    v_xor_b32 v{t2}, v{t2}, v{t0}
    v_lshlrev_b32 v{t2}, 4, v{t2}
    v_lshl_add_u32 v{t2}, v{t1}, 7, v{t2}
    v_add_u32 v{vXe[0]}, s{sT}, v{t2}
    v_xor_b32 v{vXe[1]}, 64, v{vXe[0]}
    v_bfe_u32 v{t2}, v1, 2, 2
    v_lshl_add_u32 v{t3}, v{t0}, 3, v{t2}
    v_lshlrev_b32 v{t3}, 8, v{t3}
    v_xor_b32 v{t2}, 3, v{t2}
    v_lshl_add_u32 v{t3}, v{t2}, 6, v{t3}
    v_and_b32 v{t2}, 3, v1
    v_lshl_add_u32 v{t3}, v{t2}, 4, v{t3}
    v_add_u32 v{t2}, 1, v{t2}
    v_and_b32 v{t2}, 4, v{t2}
    v_lshl_add_u32 v{vWe}, v{t2}, 16, v{t3}
    v_lshlrev_b32 v{vFr}, 4, v{t0}
    v_add_u32 v{vFr}, {GT}, v{vFr}
    s_lshl_b32 s{sG}, s{sJ0}, 7
    v_add_u32 v{vGa}, s{sG}, v{vFr}
    s_mov_b32 s72, 0xf000f000
    s_mov_b32 s73, 0xf000f000
    v_add_u32 v{t0}, s{sP}, v{t0}
    v_cmp_gt_u32 s[44:45], 16, v{t0}
    v_cmp_gt_u32 s[46:47], 32, v{t0}
    v_and_b32 v{t0}, 15, v{t0}
    v_mov_b32 v{vSc}, s{sSc}
    v_cndmask_b32 v{vSc}, 1.0, v{vSc}, s[44:45]
    s_and_b32 s80, s{sTile}, 7
    s_lshl_b32 s81, s80, 7
    s_add_u32 s81, s81, {KX_OFF}
    s_mul_i32 s80, s80, 1280
    s_add_u32 s80, s80, {V_OFF + 1024}
    v_lshl_add_u32 v{t2}, v{t1}, 2, s81
    v_and_b32 v{t3}, 4, v1
    v_xor_b32 v{t3}, 4, v{t3}
    v_lshl_add_u32 v{vE0}, v{t3}, 5, s80
    v_and_b32 v{t3}, 8, v1
    v_lshl_add_u32 v{vE0}, v{t3}, 2, v{vE0}
    v_and_b32 v{t3}, 3, v1
    v_lshl_add_u32 v{vE0}, v{t3}, 3, v{vE0}
    v_cndmask_b32 v{vE0}, v{vE0}, v{t2}, s[46:47]
    v_mul_u32_u24 v{t2}, {16*BLK}, v{t0}
    v_add3_u32 v{vE0}, v{vE0}, v{t2}, s83
    s_lshl_b32 s80, s{sTile}, 7
    s_add_u32 s80, s80, {QX_OFF}
    v_lshl_add_u32 v{t2}, v{t0}, 14, s80
    v_lshl_add_u32 v{t2}, v{t1}, 2, v{t2}
    v_cndmask_b32 v{vE0}, v{vE0}, v{t2}, s[44:45]
    v_mov_b32 v{t2}, {8*BLK}
    v_mov_b32 v{t3}, 0x2000
    v_cndmask_b32 v{t2}, v{t2}, v{t3}, s[44:45]
    v_add_u32 v{vE1}, v{vE0}, v{t2}
    s_andn2_b32 s48, -1, s46
    s_andn2_b32 s49, 0xffff, s47
    s_and_b32 s47, s47, 0xffff
    {Lny}:
    """)
    kgen_y(a, FX[0][0]); a.stamp(23)
    a('s_setprio 3')
    for tt in range(2):
        for i in range(16): a(f"v_mov_b32 v{ACC[tt]+i}, 0")
    a(f"s_mov_b32 s{sN}, 1\ns_mov_b32 s{sX}, 0x18000\ns_mov_b32 s{sX2}, 0x8000")
    def mainloop(young, gate):
        Lloop = a.label("gloop")
        def Wrd(nk):
            a(f"ds_read_b64_tr_b16 {vr(FW[nk],2)}, v{vWa} offset:{16384+nk*4096}")
            a(f"ds_read_b64_tr_b16 {vr(FW[nk]+2,2)}, v{vWa} offset:{16384+nk*4096+1024}")
        def Xrd(nk):
            a(f"ds_read_b128 {vr(FX[nk][0],4)}, v{vXa[nk]}")
            if young: a(f"ds_read_b128 {vr(FX[nk][1],4)}, v{vXe[nk>>1]} offset:{2048*(nk&1)}")
            else: a(f"ds_read_b128 {vr(FX[nk][1],4)}, v{vXa[nk]} offset:4096")
        def Erd(nk):
            if not young or nk & 1: return
            k = nk >> 1
            a(f"ds_read_b64_tr_b16 {vr(EW[k],2)}, v{vWe} offset:{16384+k*8192}")
            a(f"ds_read_b64_tr_b16 {vr(EW[k]+2,2)}, v{vWe} offset:{16384+k*8192+1024}")
            if gate: a(f"s_mov_b64 exec, s[72:73]\nds_read_b128 {vr(EW[k],4)}, v{vGa} offset:{64*k}\ns_mov_b64 exec, -1")
        def size(nk): return 4 + ((2 + (1 if gate else 0)) if young and not nk & 1 else 0)
        def step(ks, n, nk, mid="", post=""):
            a(f"s_waitcnt lgkmcnt({n})")
            a(f"v_mfma_f32_32x32x16_bf16 {vr(ACC[0],16)}, {vr(FW[ks],4)}, {vr(FX[ks][0],4)}, {vr(ACC[0],16)}")
            a(mid)
            if nk is not None: Wrd(nk)
            if not young:
                a(f"v_mfma_f32_32x32x16_bf16 {vr(ACC[1],16)}, {vr(FW[ks],4)}, {vr(FX[ks][1],4)}, {vr(ACC[1],16)}")
            elif ks & 1:
                for h in range(2):
                    a(f"v_mfma_f32_16x16x32_bf16 {vr(EA[h],4)}, {vr(EW[ks>>1],4)}, {vr(FX[ks-1+h][1],4)}, {vr(EA[h],4)}")
            if nk is not None:
                Xrd(nk); Erd(nk)
            a(post)
        def xo(v, sx): return f"v_xor_b32 v{v}, s{sx}, v{v}\n"
        a("s_barrier")
        a.stamp(1)
        for ks in range(2):
            Wrd(ks); Xrd(ks); Erd(ks)
        a(xo(vXa[0], sX))
        a(f".p2align 3\n{Lloop}:")
        if a.jit: a.jitter()
        step(0, size(1), 2, mid=(f"s_add_u32 s{sG}, s{sG}, 128\ns_cmp_eq_u32 s{sG}, 1152\ns_cselect_b32 s{sG}, 0, s{sG}" if gate else ""), post=xo(vXa[1], sX))
        step(1, size(2), 3, mid=(xo(vXe[0], sX) + xo(vWe, sX) if young else ""), post=xo(vXa[2], sX))
        step(2, size(3), 0, mid=xo(vWa, sX) + (f"v_add_u32 v{vGa}, s{sG}, v{vFr}\n" if gate else "") + "s_barrier", post=xo(vXa[3], sX))
        step(3, size(0), 1, mid=(xo(vXe[1], sX) if young else ""), post=xo(vXa[0], sX2))
        a(f"s_add_u32 s{sN}, s{sN}, 1\ns_xor_b32 s{sX}, s{sX}, 0x10000\ns_xor_b32 s{sX2}, s{sX2}, 0x10000\ns_cmp_lt_u32 s{sN}, 9\ns_cbranch_scc1 {Lloop}")
        if 'oldlow' in EXP: a("s_setprio 3")
        step(0, size(1), 2); step(1, size(2), 3); step(2, size(3), None); step(3, 0, None)
        a.stamp(3)
    def main_out(ntt):
        Lns = a.label("noscale")
        a(f"s_nop 9\ns_cmp_lg_u32 s{sTy}, 0\ns_cbranch_scc1 {Lns}")
        for tt in range(ntt):
            for i in range(16):
                a(f"v_mul_f32 v{ACC[tt]+i}, s{sSc}, v{ACC[tt]+i}")
        a(f"{Lns}:")
        for tt in range(ntt):
            for p in range(2):
                dst = FX[tt][p]
                for i in range(4):
                    a(f"v_cvt_pk_bf16_f32 v{dst+i}, v{ACC[tt]+8*p+2*i}, v{ACC[tt]+8*p+2*i+1}")
                if p == 0:
                    a(f"buffer_store_dwordx4 {vr(dst,4)}, v{vSt}, {WS}, s{sO} offen{ST}")
                else:
                    a(f"s_add_u32 s79, s{sO}, s{sB}")
                    a(f"buffer_store_dwordx4 {vr(dst,4)}, v{vSt}, {WS}, s79 offen{ST}")
            if tt + 1 < ntt:
                a(f"s_add_u32 s{sO}, s{sO}, s82")
    Ly, Lgate, Lj, Ldone, Lv, Lg = [a.label(x) for x in ("young", "gatel", "gj", "gdone", "xv", "xg")]
    a(f"s_cmp_ge_u32 s{S_WAVE}, 12\ns_cbranch_scc1 {Ly}")
    if 'oldlow' in EXP: a("s_setprio 2")
    mainloop(False, False)
    main_out(2)
    a(f"s_branch {Ldone}\n{Lgate}:")
    mainloop(True, True)
    a(f"s_branch {Lj}\n{Ly}:\ns_cmp_eq_u32 s{sCT}, 0\ns_cbranch_scc1 {Lgate}")
    mainloop(True, False)
    a(f"{Lj}:")
    main_out(1)
    D = FX[1][0]
    a(f"v_mov_b32 v{t0}, v{EA[0]}\nv_mov_b32 v{t1}, v{EA[1]}")
    for i in range(8): a(f"v_mul_f32 v{EA[0]+i}, v{vSc}, v{EA[0]+i}")
    for j in range(4):
        a(f"v_cvt_pk_bf16_f32 v{D+2*j}, v{EA[0]+2*j}, v{EA[0]+2*j+1}\nv_mov_b32 v{D+2*j+1}, 0x3f80")
    a(f"s_cmp_eq_u64 s[46:47], 0\ns_cbranch_scc1 {Lv}\ns_mov_b64 exec, s[46:47]")
    for j in range(4):
        a(f"buffer_store_dword v{D+2*j}, v{vE1 if j & 1 else vE0}, {WS}, 0 offen offset:{64*(j>>1)}{ST}")
    a(f"{Lv}:\ns_cmp_eq_u64 s[48:49], 0\ns_cbranch_scc1 {Lg}\ns_mov_b64 exec, s[48:49]")
    for j in range(4):
        a(f"buffer_store_dwordx2 {vr(D+2*j,2)}, v{vE1 if j & 1 else vE0}, {WS}, 0 offen offset:{64*(j>>1)}{ST}")
    a(f"""{Lg}:
    s_mov_b64 exec, -1
    s_cmp_lg_u32 s{sCT}, 0
    s_cbranch_scc1 {Ldone}
    v_lshlrev_b32 v{t2}, 2, v1
    s_lshl_b32 s79, s{sTile}, 7
    s_add_u32 s79, s79, {G_OFF - 192}
    s_mov_b32 exec_lo, 0
    s_mov_b32 exec_hi, 0xffff0000
    buffer_store_dword v{t0}, v{t2}, {WS}, s79 offen{ST}
    buffer_store_dword v{t1}, v{t2}, {WS}, s79 offen offset:64{ST}
    {Ldone}:
    s_mov_b64 exec, 1
    ds_add_u32 v{vCn}, v{vOne} offset:{C_FREE}
    s_mov_b64 exec, -1
    """)
    a.stamp(14)
    get_tag(a, t2, t3)
    a(f"s_mov_b32 s{S_FQ}, s9")
    publish_q(a, t2, t3, 8)
    a.stamp(4)

def publish_q(a, t0, t1, st):
    L = a.label("nofq")
    if 'hintQ' not in EXP: a("s_waitcnt vmcnt(0)")
    lds_inc(a, t0, t1, off=C_S, rtn=st)
    a(f"s_cmp_lg_u32 s{st}, 7\ns_cbranch_scc1 {L}")
    if 'fp' in EXP:
        a(f"""
        v_mov_b32 v{t0}, s{S_TAG}
        v_lshrrev_b32 v{t1}, 3, v1
        v_lshlrev_b32 v{t1}, 9, v{t1}
        v_and_or_b32 v{t1}, v1, 7, v{t1}
        v_lshlrev_b32 v{t1}, 2, v{t1}
        s_mov_b32 exec_hi, 0xffff
        buffer_store_dword v{t0}, v{t1}, {WS}, s{S_FQ} offen sc1
        s_mov_b64 exec, -1
        """)
    else: flag_line(a, t0, t1, S_FQ)
    a(f"{L}:")

class Seg:
    def __init__(self): self.items = []
    def __call__(self, s):
        for ln in s.split("\n"):
            ln = ln.strip()
            if not ln: continue
            op = ln.split()[0]
            if ln.startswith(";"): c = 0
            elif op in ("v_exp_f32", "v_sin_f32", "v_cos_f32", "v_rcp_f32"): c = 8
            elif op.startswith("v_mfma"): c = 40
            elif op.startswith("ds_"): c = 12
            elif op == "s_waitcnt": c = 60
            else: c = 4
            self.items.append((ln, c))
    nl = 0
    def label(self, base):
        Seg.nl += 1
        return f"L_sg{base}_{Seg.nl}"
    def must_barrier(self): self.items.append(("@BAR", 0))
    def nobar(self, on): self.items.append(("@NOBAR" if on else "@OKBAR", 0))
    def emit(self, a, nbar, after=lambda k: None):
        must = sum(1 for l, _ in self.items if l == "@BAR")
        total = sum(c for _, c in self.items)
        first = float(os.environ.get('KGFIRST', '0.9')) * total
        first = min(first, sum(c for _, c in self.items[:[l for l, _ in self.items].index('@BAR')]) + 1)
        per = (total - first) / (nbar - (1 if first else 0))
        used = 0; acc = per - first if first else 0; ok = True; must_left = must
        for ln, c in self.items:
            if ln == "@BAR":
                a("s_barrier"); after(used); used += 1; must_left -= 1; acc = 0; continue
            if ln.startswith("@STAMP"): a.stamp(int(ln[6:])); continue
            if ln == "@NOBAR": ok = False; continue
            if ln == "@OKBAR": ok = True; continue
            if ok and acc >= per and used + must_left < nbar - 1:
                a("s_barrier"); after(used); used += 1; acc = 0
            a(ln); acc += c
        while used < nbar:
            a("s_barrier"); after(used); used += 1
        return total

def ilv(*seqs):
    seqs = [[l.strip() for l in x.strip().split("\n") if l.strip()] for x in seqs]
    out = []
    for i in range(max(len(x) for x in seqs)):
        for x in seqs:
            if i < len(x): out.append(x[i])
    return "\n".join(out)

class KG:
    def __init__(self, g, sK, tmp, vA2, vBh, vBl):
        self.g = g; self.t = KG_T; self.tmp = tmp
        self.sL, self.sLlo, self.sI, self.sIlo, self.sLn2 = range(sK, sK + 5)
        self.vA2, self.vBh, self.vBl = vA2, vBh, vBl
    def consts(self):
        return f"""
        s_mov_b32 s{self.sL}, {fbits(L_HI)}
        s_mov_b32 s{self.sLlo}, {fbits(L_LO)}
        s_mov_b32 s{self.sI}, {fbits(I_HI)}
        s_mov_b32 s{self.sIlo}, {fbits(I_LO)}
        s_mov_b32 s{self.sLn2}, {fbits(LN2)}
        """
    def expbf(self, x, t1, t2):
        return f"""
        v_lshlrev_b32 v{x}, 16, v{x}
        v_mul_f32 v{t1}, s{self.sL}, v{x}
        v_fma_f32 v{t2}, v{x}, s{self.sL}, -v{t1}
        v_exp_f32 v{t1}, v{t1}
        v_fma_f32 v{t2}, v{x}, s{self.sLlo}, v{t2}
        v_mul_f32 v{t2}, s{self.sLn2}, v{t2}
        v_fma_f32 v{x}, v{t1}, v{t2}, v{t1}
        v_cvt_pk_bf16_f32 v{x}, v{x}, v{x}
        v_and_b32 v{x}, 0xffff0000, v{x}
        """
    def prep(self):
        t, m = self.t, self.tmp
        return ilv(self.expbf(t[3], m[0], m[1]), self.expbf(t[1], m[2], m[3])) + f"""
        v_lshlrev_b32 v{t[2]}, 16, v{t[2]}
        v_mul_f32 v{t[1]}, v{t[1]}, v{t[3]}
        v_mul_f32 v{t[2]}, v{t[2]}, v{t[3]}
        v_mul_f32 v{self.vA2}, s{self.sL}, -v{t[1]}
        v_mul_f32 v{self.vBh}, s{self.sI}, v{t[2]}
        v_fma_f32 v{self.vBl}, v{t[2]}, s{self.sI}, -v{self.vBh}
        v_fma_f32 v{self.vBl}, v{t[2]}, s{self.sIlo}, v{self.vBl}
        """
    def cexp(self, d, p, k):
        fp = fbits(float(p)); r, e = self.tmp[2*k], self.tmp[2*k+1]
        return f"""
        v_mul_f32 v{r}, {fp}, v{self.vBh}
        v_mul_f32 v{e}, {fp}, v{self.vA2}
        v_fract_f32 v{r}, v{r}
        v_exp_f32 v{e}, v{e}
        v_fmac_f32 v{r}, {fp}, v{self.vBl}
        v_cos_f32 v{d}, v{r}
        v_sin_f32 v{d+1}, v{r}
        v_mul_f32 v{d}, v{d}, v{e}
        v_mul_f32 v{d+1}, v{d+1}, v{e}
        """
    def cmul(self, d, x, y):
        return f"""
        v_mul_f32 v{d}, v{x+1}, v{y+1}
        v_mul_f32 v{d+1}, v{x+1}, v{y}
        v_fma_f32 v{d}, v{x}, v{y}, -v{d}
        v_fmac_f32 v{d+1}, v{x}, v{y+1}
        """
    def cvt(self, d, x, conj):
        return f"v_cvt_pk_f16_f32 v{d}, v{x}, {'-' if conj else ''}v{x+1}"
    def rows(self, specs, vWr):
        g = self.g
        for i in range(0, len(specs), 4):
            grp = specs[i:i+4]; tt = self.tmp[(i & 4):(i & 4) + 4]
            for k, (x, y) in enumerate(grp):
                if y is not None: g(f"v_pk_mul_f16 v{tt[k]}, v{x}, v{y} op_sel:[0,0] op_sel_hi:[0,1]")
            for k, (x, y) in enumerate(grp):
                if y is not None: g(f"v_pk_fma_f16 v{tt[k]}, v{x}, v{y}, v{tt[k]} op_sel:[1,1,0] op_sel_hi:[1,0,1] neg_lo:[1,0,0]")
            src = [tt[k] if y is not None else x for k, (x, y) in enumerate(grp)]
            for k in range(0, len(grp), 2):
                if k + 1 < len(grp): g(f"ds_write2_b32 v{vWr[i>>2]}, v{src[k]}, v{src[k+1]} offset0:{68*k} offset1:{68*k+68}")
                else: g(f"ds_write_b32 v{vWr[i>>2]}, v{src[k]} offset:{272*k}")

def kgen_y(a, base):
    R = Regs(base, base + 56)
    tmp = [R.alloc() for _ in range(8)]
    vWr = [R.alloc() for _ in range(8)]
    vA2, vBh, vBl = R.alloc(), R.alloc(), R.alloc()
    H = [R.alloc() for _ in range(11)]
    A1, A2, A3, B1, B2, B3, B4, B5, B6, B7 = [R.alloc(2) for _ in range(10)]
    k = KG(a, 60, tmp, vA2, vBh, vBl)
    L = a.label("noy")
    a('s_setprio 1')
    a(f"s_cmp_ge_u32 s{sKC}, {0 if 'nokg' in EXP or 'nopre' in EXP else 576}\ns_cbranch_scc1 {L}")
    a(f"s_mul_i32 s67, s{sKU}, {YS}\ns_add_u32 s67, s67, {YB}\nv_lshl_add_u32 v{vWr[0]}, v1, 2, s67")
    for i in range(1, 8): a(f"v_add_u32 v{vWr[i]}, {i*4*272}, v{vWr[0]}")
    hA = H[0:4]; hB = [None] + H[4:11]
    a(f"v_mov_b32 v{hA[0]}, 0x3c00\ns_lshl_b32 s67, s{sKU}, 2\ns_add_u32 s67, s67, {CNT}")
    a(k.consts())
    a("s_waitcnt vmcnt(0)")
    a(k.prep())
    a(ilv(k.cexp(A1, 8, 0), k.cexp(B2, 64, 1)))
    a(ilv(k.cmul(A2, A1, A1), k.cmul(B4, B2, B2)))
    a(ilv(k.cmul(B1, A2, A2), k.cmul(A3, A1, A2), k.cmul(B6, B4, B2)))
    a(ilv(k.cmul(B3, B1, B2), k.cmul(B5, B4, B1), k.cmul(B7, B6, B1)))
    for d, x in zip(hA[1:] + hB[1:], (A1, A2, A3, B1, B2, B3, B4, B5, B6, B7)): a(k.cvt(d, x, True))
    def yspec(j):
        x, y = j & 3, j >> 2
        if y == 0: return (hA[x], None)
        if x == 0: return (hB[y], None)
        return (hA[x], hB[y])
    k.rows([yspec(j) for j in range(32)], vWr)
    lds_inc(a, tmp[0], tmp[1], saddr=67, off=C_YR)
    a(f"{L}:")

def kgen_waves(a):
    sMH, sBase, sT, sE, sCS = 5, 6, 7, 8, 14
    R = Regs(4, 120)
    t = KG_T; C = KG_C
    vWr = [R.alloc() for _ in range(4)]
    vRd, vRy = R.alloc(), R.alloc()
    vA2, vBh, vBl, vF = R.alloc(), R.alloc(), R.alloc(), R.alloc()
    vInv, vInvM, vBaseM, vPw = R.alloc(), R.alloc(), R.alloc(), R.alloc()
    FY = R.alloc(32, 4); FXr = R.alloc(32, 4)
    pool = R.alloc(36, 4)
    tmp = [FY + i for i in range(8)]
    g = Seg()
    k = KG(g, 9, tmp, vA2, vBh, vBl)
    Lskip, Lend = a.label("kgskip"), a.label("kgend")
    a(f"""
    s_cmp_ge_u32 s{sKC}, {0 if 'nokg' in EXP else 576}
    s_cbranch_scc1 {Lskip}
    s_lshr_b32 s{sCS}, s{S_WAVE}, 1
    s_mul_i32 s{sBase}, s{S_WAVE}, {KG_STRIDE}
    s_add_u32 s{sBase}, s{sBase}, {KG_BASE}
    """ + k.consts() + f"""
    v_lshl_add_u32 v{vWr[0]}, v1, 2, s{sBase}
    v_add_u32 v{vWr[1]}, {4*272}, v{vWr[0]}
    v_add_u32 v{vWr[2]}, {8*272}, v{vWr[0]}
    v_add_u32 v{vWr[3]}, {12*272}, v{vWr[0]}
    v_lshrrev_b32 v{t[5]}, 5, v1
    v_lshlrev_b32 v{t[5]}, 4, v{t[5]}
    v_and_b32 v{t[4]}, 15, v1
    v_mul_u32_u24 v{t[4]}, 272, v{t[4]}
    v_add3_u32 v{vRd}, v{t[4]}, v{t[5]}, s{sBase}
    v_and_b32 v{t[4]}, 31, v1
    v_mul_u32_u24 v{t[4]}, 272, v{t[4]}
    s_mul_i32 s{sT}, s{S_WAVE}, {YS}
    s_add_u32 s{sT}, s{sT}, {YB}
    v_add3_u32 v{vRy}, v{t[4]}, v{t[5]}, s{sT}
    v_lshl_add_u32 v{vPw}, v1, 2, s{sT}
    s_lshl_b32 s15, s{S_WAVE}, 2
    s_add_u32 s15, s15, {CNT}
    """)
    g("s_waitcnt vmcnt(0)")
    g.items.append(("@STAMP22", 0))
    P = [pool + 2 * i for i in range(12)]
    H = [pool + 24 + i for i in range(12)]
    E1, E2, E4, E256, E512, E1024, X2, X4, X6, E768, X1024 = P[0:11]
    hC, h2, h4, h6, hE1, h256, h512, h768, h1024, hX = H[0:10]
    dpp = [f"v_max_u32_dpp v{t[4]}, v{t[4]}, v{t[4]} {m}" for m in ("row_shr:1", "row_shr:2", "row_shr:4", "row_shr:8", "row_bcast:15 row_mask:0xa", "row_bcast:31 row_mask:0xc")]
    g(f"v_lshlrev_b32 v{C}, 16, v{C}\nv_lshlrev_b32 v{C+1}, 16, v{C+1}\nv_max_f32 v{t[4]}, |v{C}|, |v{C+1}|")
    pl = [l.strip() for l in k.prep().split("\n") if l.strip()]
    for i, l in enumerate(pl):
        g(l)
        if i % 3 == 2 and dpp: g(dpp.pop(0))
    assert not dpp
    g(f"v_readlane_b32 s{sE}, v{t[4]}, 63")
    g(ilv(k.cexp(E1, 1, 0), k.cexp(E256, 256, 1), k.cexp(E1024, 1024, 2)))
    g(f"""
    s_lshr_b32 s{sE}, s{sE}, 23
    s_max_u32 s{sE}, s{sE}, 1
    s_min_u32 s{sE}, s{sE}, 252
    s_sub_u32 s{sT}, 253, s{sE}
    s_lshl_b32 s{sT}, s{sT}, 23
    v_mul_f32 v{C}, s{sT}, v{C}
    v_mul_f32 v{C+1}, s{sT}, v{C+1}
    s_add_u32 s{sE}, s{sE}, 2
    s_lshl_b32 s{sE}, s{sE}, 23
    v_mul_f32 v{vF}, s{sE}, v{t[3]}
    """)
    g(ilv(k.cmul(E2, E1, E1), k.cmul(E512, E256, E256), k.cmul(X1024, C, E1024)))
    g(ilv(k.cmul(E4, E2, E2), k.cmul(X2, C, E2), k.cmul(E768, E256, E512)))
    g(ilv(k.cmul(X4, C, E4), k.cmul(X6, X2, E4)))
    for d, x in ((hC, C), (hE1, E1), (h2, X2), (h256, E256), (h512, E512), (h768, E768), (h1024, E1024), (hX, X1024), (h4, X4), (h6, X6)): g(k.cvt(d, x, False))
    def fragread(dst, upper):
        m = 0xffff0000 if upper else 0x0000ffff
        g(f"s_mov_b32 exec_lo, {m}\ns_mov_b32 exec_hi, {m}")
        for ks in range(8):
            g(f"ds_read_b128 {vr(dst+4*ks,4)}, v{vRd} offset:{32*ks}")
        g("s_mov_b64 exec, -1")
    k.rows([(hX, None), (hX, h256), (hX, h512), (hX, h768), (hX, h1024)], vWr)
    fragread(FXr, True)
    k.rows([(hC, None), (hC, hE1), (h2, None), (h2, hE1), (h4, None), (h4, hE1), (h6, None), (h6, hE1),
          (hC, h256), (h2, h256), (h4, h256), (h6, h256), (hC, h512), (h4, h512), (hC, h768), (h4, h768)], vWr)
    fragread(FXr, False)
    ACC = pool
    g(f"""
    v_and_b32 v{t[0]}, 31, v1
    v_lshrrev_b32 v{t[1]}, 5, v1
    v_lshlrev_b32 v{t[2]}, 3, v{t[0]}
    v_lshl_add_u32 v{t[2]}, v{t[1]}, 2, v{t[2]}
    v_cmp_eq_u32 vcc, 0, v{t[1]}
    v_lshlrev_b32 v{t[3]}, 2, v{t[0]}
    v_lshlrev_b32 v{t[4]}, 1, v{t[0]}
    v_add_u32 v{t[4]}, 128, v{t[4]}
    v_cndmask_b32 v{t[3]}, v{t[4]}, v{t[3]}, vcc
    v_lshl_add_u32 v{t[5]}, v{t[1]}, 7, v{t[0]}
    v_and_b32 v{t[0]}, 0xff0, v{t[2]}
    v_lshl_add_u32 v{t[2]}, v{t[2]}, 2, v{t[0]}
    v_add_u32 v{t[2]}, s{sBase}, v{t[2]}
    v_and_b32 v{t[0]}, 0xff0, v{t[3]}
    v_lshl_add_u32 v{t[3]}, v{t[3]}, 2, v{t[0]}
    v_add_u32 v{t[3]}, s{sBase}, v{t[3]}
    v_mul_u32_u24 v{t[4]}, 312, v{t[1]}
    v_add_u32 v{t[4]}, v{t[4]}, v{t[3]}
    v_and_b32 v{t[0]}, 0xff0, v{t[5]}
    v_lshl_add_u32 v{t[5]}, v{t[5]}, 2, v{t[0]}
    v_add_u32 v{t[5]}, s{sBase}, v{t[5]}
    """)
    g.items.append(("@STAMP23", 0))
    lds_spin(g, tmp[0], tmp[1], 1, sE, saddr=15, off=C_YR)
    for ks in range(8):
        g(f"ds_read_b128 {vr(FY+4*ks,4)}, v{vRy} offset:{32*ks}")
    for ks in range(8):
        c = "0" if ks == 0 else vr(ACC, 16)
        g(f"s_waitcnt lgkmcnt({7-ks})")
        g(f"v_mfma_f32_32x32x16_f16 {vr(ACC,16)}, {vr(FXr+4*ks,4)}, {vr(FY+4*ks,4)}, {c}")
    g(f"""
    s_mul_i32 s{sT}, s{sMH}, {KG_STRIDE}
    s_sub_u32 s{sT}, s{sBase}, s{sT}
    s_sub_u32 s{sT}, s{sT}, {0x2c000000}
    """)
    NR = 9
    NV = 2 * NR
    AD = pool
    VAL = [FY + 2 * i for i in range(NV)]
    assert FXr == FY + 32
    g("s_nop 12")
    for i in range(12):
        g(f"v_mul_f32 v{ACC+i}, v{vF}, v{ACC+i}")
    g(f"""
    ds_write_b128 v{t[2]}, {vr(ACC,4)} offset:80
    ds_write_b64 v{t[3]}, {vr(ACC+4,2)} offset:{80+1280}
    ds_write_b64 v{t[4]}, {vr(ACC+6,2)} offset:{80+1280+8}
    """)
    for r in range(4):
        g(f"ds_write_b32 v{t[5]}, v{ACC+8+r} offset:{80+2560+160*r}")
    g("s_waitcnt lgkmcnt(0)")
    g.items.append(("@STAMP24", 0))
    g.must_barrier()
    g(f"""
    s_lshr_b32 s{sE}, s{sKC}, 6
    v_and_b32 v{vA2}, 3, v1
    v_lshlrev_b32 v{vA2}, 1, v{vA2}
    v_sub_u32 v{vA2}, s{sE}, v{vA2}
    v_add_u32 v{vBh}, 9, v{vA2}
    v_min3_u32 v{vA2}, v{vA2}, v{vBh}, 7
    s_and_b32 s{sE}, s{sKC}, 32
    s_lshl_b32 s{sE}, s{sE}, 2
    v_lshl_add_u32 v{vA2}, v{vA2}, 4, s{sE}
    v_add_lshl_u32 v{vA2}, v{vA2}, v1, 7
    v_add_u32 v{vA2}, {FL_U}, v{vA2}
    """)
    for run in range(2):
        g(f"""
        s_lshl_b32 s{sE}, s{sMH}, 7
        s_sub_u32 s{sE}, {255 - 64*run}, s{sE}
        v_sub_u32 v{t[4]}, s{sE}, v1
        v_lshlrev_b32 v{t[4]}, 3, v{t[4]}
        v_max_u32 v{t[5]}, 128, v{t[4]}
        v_cvt_f32_u32 v{t[5]}, v{t[5]}
        v_and_b32 v{vInv}, 0x7f800000, v{t[5]}
        v_sub_u32 v{vInv}, {261<<23 & 0xffffffff}, v{vInv}
        v_lshrrev_b32 v{t[5]}, 16, v{t[5]}
        v_subrev_u32 v{t[5]}, {0x4380-256}, v{t[5]}
        v_min_u32 v{t[5]}, v{t[5]}, v{t[4]}
        v_add_u32 v{vBaseM}, 0x4b000010, v{t[5]}
        v_max_u32 v{t[5]}, 129, v{t[4]}
        v_subrev_u32 v{t[5]}, 1, v{t[5]}
        v_cvt_f32_u32 v{t[5]}, v{t[5]}
        v_and_b32 v{vInvM}, 0x7f800000, v{t[5]}
        v_sub_u32 v{vInvM}, {261<<23 & 0xffffffff}, v{vInvM}
        """)
        if run == 1: g(f"v_cmp_ne_u32 s[74:75], 0, v{t[4]}")
        for j in range(NR):
            i = NR * run + j
            r = 7 - j
            inv = vInv if r >= 0 else vInvM
            g(f"v_fmamk_f32 v{AD+i}, v{inv}, {fbits(float(r))}, v{vBaseM}")
            g(f"v_and_b32 v{t[i&1]}, 0xff0, v{AD+i}")
            g(f"v_lshl_add_u32 v{AD+i}, v{AD+i}, 2, s{sT}")
            g(f"v_add_u32 v{AD+i}, v{AD+i}, v{t[i&1]}")
            g(f"ds_read2st64_b32 {vr(VAL[i],2)}, v{AD+i} offset0:0 offset1:{KG_STRIDE//256}")
    g.nobar(True); area(g, sBase, sCS); g.nobar(False)
    g(f"""
    v_lshrrev_b32 v{vBl}, 4, v1
    v_mul_u32_u24 v{vBl}, {36*4096}, v{vBl}
    v_and_b32 v{vF}, 12, v1
    v_lshl_add_u32 v{vBl}, v{vF}, 8, v{vBl}
    v_and_b32 v{vF}, 3, v1
    v_lshl_add_u32 v{vBl}, v{vF}, 4, v{vBl}
    s_and_b32 s10, s{sKC}, 15
    s_lshl_b32 s10, s10, 6
    s_lshr_b32 s9, s{sKC}, 4
    s_lshl_b32 s9, s9, 12
    s_add_u32 s9, s9, s10
    s_add_u32 s9, s9, {UT_OFF}
    v_lshl_add_u32 v{vF}, v1, 3, s{sBase}
    v_mov_b32 v{t[3]}, 0
    s_lshl_b32 s{sE}, s{sMH}, 11
    s_add_u32 s{sE}, s{sE}, s{sBase}
    v_lshl_add_u32 v{t[0]}, v1, 4, s{sE}
    v_lshrrev_b32 v{t[1]}, 4, v1
    v_mul_u32_u24 v{t[1]}, {CP}, v{t[1]}
    v_and_b32 v{t[2]}, 15, v1
    v_lshl_add_u32 v{t[1]}, v{t[2]}, 2, v{t[1]}
    s_add_u32 s{sT}, s{sBase}, 4096
    v_add_u32 v{t[1]}, s{sT}, v{t[1]}
    v_mov_b32 v{t[2]}, 0
    s_waitcnt lgkmcnt(0)
    """)
    for i in range(NV):
        g(f"v_add_f32 v{VAL[i]}, v{VAL[i]}, v{VAL[i]+1}")
    for i in range(NV - 1, NV):
        g(f"v_cndmask_b32 v{VAL[i]}, 0, v{VAL[i]}, s[74:75]")
    OUT = pool
    for s in range(2):
        for i in range(8):
            b = NR * (i >> 2) + 2 * (i & 3) + s
            g(f"v_cvt_pk_bf16_f32 v{OUT+8*s+i}, v{VAL[b]}, v{VAL[b+1]}")
    if 'noexp' in EXP:
        k0 = [l for l, _ in g.items].index('@BAR')
        g.items = g.items[:k0+1] + [x for x in g.items[k0+1:] if not x[0].startswith(("v_fmamk", "ds_read2st64", "v_add_f32", "v_cvt_pk", "v_cndmask")) and "0xff0" not in x[0]]
    if 'nopre' in EXP:
        k0 = [l for l, _ in g.items].index('@BAR')
        g.items = g.items[k0:]
    def after(kb):
        if kb == 0: srd(a, R_WS, P_WS, WS_BYTES); get_tag(a, vWr[0], vWr[1])
        if kb == UK + 3:
            L = a.label("nofu")
            a(f"""
            s_cmp_lg_u32 s{S_WAVE}, 0
            s_cbranch_scc1 {L}
            s_and_b32 s76, s2, 1
            s_lshl_b32 s76, s76, 3
            s_lshr_b32 s77, s2, 5
            s_add_u32 s76, s76, s77
            s_lshl_b32 s76, s76, 2
            s_bfe_u32 s77, s2, 0x20001
            s_add_u32 s76, s76, s77
            s_lshl_b32 s76, s76, 2
            s_bfe_u32 s77, s2, 0x20003
            s_add_u32 s76, s76, s77
            s_lshl_b32 s76, s76, 7
            s_add_u32 s76, s76, {FL_U}
            """)
            flag_line(a, vWr[0], vWr[1], 76)
            a(f"{L}:")
    SPREAD = int(os.environ.get('SPREAD', '1'))
    def after2(kb):
        after(kb)
        if kb == int(os.environ.get('PB', '5')):
            L = a.label("np")
            a(f"s_cmp_lg_u32 s{sMH}, 0\ns_cbranch_scc1 {L}\ns_mov_b64 exec, 0xffff")
            poll_issue(a, vBh, 1, vA2, 0)
            a(f"s_mov_b64 exec, -1\n{L}:")
    tot = g.emit(a, NBAR1 - SPREAD, after2)
    a.stamp(25)
    Lnp, L2, L3, Lnu2, Lno, Lre, Lw = [a.label(x) for x in ("np", "kc", "kd", "nu", "no", "re", "uw")]
    def u_dma():
        a(f"s_mov_b64 exec, -1\ns_add_u32 m0, s{sBase}, {UOFF + 512}\ns_nop 0")
        for b in range(4):
            a(f"buffer_load_dwordx4 v{vBl}, {WS}, s9 offen offset:{1024*b}{LD} lds")
            if b < 3: a(f"s_add_u32 s9, s9, {4*36*4096 - 1024}")
    a(f"s_mov_b32 s10, s{sMH}\ns_setprio {os.environ.get('KPRIO', '3')}")
    for _ in range(SPREAD - 1): a("s_barrier")
    a(f"""
    s_cmp_lg_u32 s10, 0
    s_cbranch_scc1 {Lno}
    s_mov_b64 exec, 0xffff
    s_waitcnt vmcnt(0)
    v_cmp_ne_u32 vcc, s{S_TAG}, v{vBh}
    s_cbranch_vccnz {Lre}
    s_mov_b32 s10, 1
    """)
    u_dma()
    a(f"s_branch {Lno}\n{Lre}:")
    poll_issue(a, vBh, 1, vA2, 0)
    a(f"s_mov_b64 exec, -1\n{Lno}:")
    if 'w7' not in EXP: a("s_barrier")
    for s in range(2):
        a(f"ds_write_b128 v{t[0]}, {vr(OUT+8*s,4)} offset:{s*CP}")
        a(f"ds_write_b128 v{t[0]}, {vr(OUT+8*s+4,4)} offset:{s*CP+1024}")
    assert t[2] % 2 == 0
    a(f"""
    s_cmp_eq_u32 s{sMH}, 0
    s_cbranch_scc1 L_nz
    ds_write_b32 v{t[1]}, v{t[2]}
    ds_write_b64 v{vF}, {vr(t[2],2)} offset:{UOFF}
    L_nz:
    {"s_barrier" if 'w7' in EXP else ""}
    s_cmp_lg_u32 s10, 0
    s_cbranch_scc1 {Lw}
    s_mov_b64 exec, 0xffff
    """)
    poll_wait(a, vBh, 1, vA2, 0, issued=True)
    u_dma()
    a(f"""
    {Lw}:
    s_waitcnt vmcnt(0)
    s_lshl_b32 s{sT}, s{sCS}, 2
    s_add_u32 s{sT}, s{sT}, {CNT+C_RDY}
    """)
    lds_inc(a, t[0], t[1], saddr=sT)
    a(f"s_branch {Lend}")
    a(f"{Lskip}:")
    TB = int(os.environ.get('TLBAT', '1'))
    for _ in range(TB): a("s_barrier")
    if 'tlb' in EXP:
        Lnu = a.label("notlb")
        a(f"""
        s_lshr_b32 s8, s2, 3
        s_lshl_b32 s8, s8, 1
        s_add_u32 s8, s8, s{sMH}
        s_cmp_lg_u32 s8, 16
        s_cbranch_scc1 {Lnu}
        """)
        for i in sorted(range(1, (WS_BYTES >> 21) + 1), key=lambda i: abs(i - (UT_OFF >> 21) - 0.4)):
            a(f"s_mov_b32 s8, {i << 21}\ns_load_dword s{59+i}, s[{P_WS}:{P_WS+1}], s8")
        a(f"s_load_dword s72, s[{P_WO}:{P_WO+1}], 0\ns_load_dword s73, s[{P_OUT}:{P_OUT+1}], 0\ns_mov_b32 s8, {X_BYTES-4}\ns_load_dword s74, s[{P_OUT}:{P_OUT+1}], s8")
        a(f"{Lnu}:")
    for _ in range(NBAR1 - TB): a("s_barrier")
    srd(a, R_WS, P_WS, WS_BYTES); get_tag(a, t[0], t[1])
    a(f"{Lend}:")
    a.stamp(2)

def phase1(a, name, endlabel):
    Lkg, Lg, Lend = a.label("kg"), a.label("gemm"), a.label("p1end")
    head(a, name, endlabel, Lkg, Lg)
    loader(a)
    a(f"s_branch {Lend}\n{Lkg}:")
    kgen_waves(a)
    a(f"s_branch {Lend}\nL_gate_dma:\ns_waitcnt lgkmcnt(0)")
    srd(a, R_A, P_G, 1152)
    a(f"""
    v_lshlrev_b32 v4, 4, v1
    s_mov_b32 m0, {GT}
    s_nop 0
    buffer_load_dwordx4 v4, s[{R_A}:{R_A+3}], 0 offen lds
    s_mov_b64 exec, 0xff
    buffer_load_dwordx4 v4, s[{R_A}:{R_A+3}], 0 offen offset:1024 lds
    s_mov_b64 exec, -1
    s_barrier
    s_waitcnt vmcnt(0)
    {Lg}:
    """)
    gemm_waves(a)
    a(f"{Lend}:")
```

```python
from f1 import *

def conv_main(a, tiles, vA, vB, bufs, ACC):
    sb = Lgkm(a)
    n = max(tiles) + 1
    ops = []
    for rp in range(1 if 'conv1' in EXP else 4):
        for i in range(n):
            for ti, t in enumerate(tiles):
                if t - i >= 0: ops.append((ti, ("A", i, rp), ("B", t - i, rp)))
    order, last = [], {}
    for k, (ti, x, y) in enumerate(ops):
        for f in (x, y):
            if f not in last: order.append(f)
            last[f] = k
    free = list(bufs); where = {}; nxt = [0]
    MAXO = int(os.environ.get('CMAXO', '15'))
    def try_load(force=False):
        if nxt[0] >= len(order) or not free: return False
        f = order[nxt[0]]
        cost = 2 if f[0] == "A" else 1
        if not force and len(sb.q) - sb.done + cost > MAXO: return False
        d = free.pop(0); where[f] = d; nxt[0] += 1
        w, i, rp = f
        if w == "A":
            off = 4032 - 64 * rp - 512 * i
            va = vA[off >> 10]; o = (off & 1023) >> 2
            sb.load(f"ds_read2_b32 {vr(d,2)}, v{va} offset0:{o} offset1:{o+1}", rng(d, 2))
            sb.load(f"ds_read2_b32 {vr(d+2,2)}, v{va} offset0:{o+2} offset1:{o+3}", rng(d+2, 2))
        else:
            sb.load(f"ds_read_b128 {vr(d,4)}, v{vB} offset:{480 + 512*i - 64*rp}", rng(d, 4))
        return True
    while try_load(): pass
    started = set()
    for k, (ti, x, y) in enumerate(ops):
        while x not in where or y not in where:
            assert try_load(True)
        sb.need(list(rng(where[x], 4)) + list(rng(where[y], 4)))
        c = vr(ACC+4*ti, 4) if ti in started else "0"
        started.add(ti)
        a(f"v_mfma_f32_16x16x32_bf16 {vr(ACC+4*ti,4)}, {vr(where[x],4)}, {vr(where[y],4)}, {c}")
        for f in (x, y):
            if last[f] == k: free.append(where[f])
        if not try_load():
            if nxt[0] < len(order) and free and len(sb.q) - sb.done > MAXO - 3:
                keep = MAXO - 4
                a(f"s_waitcnt lgkmcnt({keep})"); sb.done = len(sb.q) - keep
                try_load()

class AR:
    def __init__(self, R):
        self.S = [R.alloc(16, 4), R.alloc(16, 4)]
        self.O = [R.alloc(16, 4), R.alloc(16, 4)]
        self.K = R.alloc(4, 4)
        self.Kx = R.alloc(4, 2)
        self.V0 = R.alloc(4, 4)
        self.V1 = R.alloc(4, 4)
        self.Qm = [R.alloc(4, 4), R.alloc(4, 4)]
        self.Qx = [R.alloc(8, 2), R.alloc(8, 2)]
        self.aK = R.alloc(); self.aKx = R.alloc(); self.aV = R.alloc(4, 1); self.idx = R.alloc()

def E(a, base, lo, n=4):
    for i in range(lo, lo + n):
        a(f"v_exp_f32 v{base+i}, v{base+i}")

def k_off(t): return (t & 7) * 1024
def kx_off(g): return KX_OFF + (g & 1) * 512
def v_off(t): return V_OFF + (t & 7) * 1280

class Al:
    def __init__(self, a, mode):
        self.a = a; self.mode = mode; self.sync()
    def sync(self):
        if self.mode: self.a(".p2align 3")
        if self.mode == 2: self.a("s_nop 0")
        self.par = 0; self.last_exp = None
    def __call__(self, txt):
        for ln in txt.split("\n"):
            ln = ln.strip()
            if not ln: continue
            if 'nox8' in EXP:
                if "32x32x8" in ln: continue
                if "v_mfma_f32_32x32x16" in ln: ln = ln[:ln.rindex(",")] + ", 0"
            if 'b2b' in EXP:
                if "32x32x8" in ln:
                    self.held = ln; continue
                if "v_mfma_f32_32x32x16" in ln:
                    EXP.remove('b2b'); self(self.held); EXP.append('b2b')
            op = ln.split()[0]
            big = op.startswith(("v_mfma", "v_smfmac", "ds_")) or (op == "v_add_u32")
            if big:
                if self.par and self.mode:
                    if self.last_exp is not None:
                        self.a.lines[self.last_exp] = self.a.lines[self.last_exp].replace("v_exp_f32", "v_exp_f32_e64")
                    else:
                        self.a("s_nop 0")
                    self.par = 0
                self.last_exp = None
                self.a(ln)
            else:
                self.a(ln); self.par ^= 1
                if op == "v_exp_f32": self.last_exp = len(self.a.lines) - 1

def attn_loop(a0, r, prio, pre_mid, post_mid, last_hook):
    a = Al(a0, int(os.environ.get('ALIGN', '1')))
    A, B = r.S
    NT = 16
    def smf(o, v, p): a(f"v_smfmac_f32_32x32x32_bf16 {vr(o,16)}, {vr(v,4)}, {vr(p,8)}, v{r.idx}")
    def vread(dst, t, s):
        if 'halfds' in EXP and t & 1:
            a("s_waitcnt lgkmcnt(0)"); return
        a(f"ds_read_b64_tr_b16 {vr(dst,2)}, v{r.aV+2*s} offset:{v_off(t)}")
        a(f"ds_read_b64_tr_b16 {vr(dst+2,2)}, v{r.aV+2*s+1} offset:{v_off(t)}")
    a(f"v_mfma_f32_32x32x8_bf16 {vr(A,16)}, {vr(r.Kx,2)}, {vr(r.Qx[0],2)}, 0")
    a(f"v_mfma_f32_32x32x16_bf16 {vr(A,16)}, {vr(r.K,4)}, {vr(r.Qm[0],4)}, {vr(A,16)}")
    a("s_nop 11")
    E(a, A, 0, 2)
    for t in range(NT):
        if t in prio: a(f"s_setprio {prio[t]}")
        if a0.jit: a0.jitter(); a.sync()
        kxp = r.Kx + 2 * ((t >> 2) & 1)
        if t > 0: smf(r.O[1], r.V1, B + 8)
        vread(r.V1, t, 1)
        E(a, A, 2)
        a(f"v_mfma_f32_32x32x8_bf16 {vr(B,16)}, {vr(kxp,2)}, {vr(r.Qx[1]+2*(t&3),2)}, 0")
        n_after = 2
        if (t & 7) == 0:
            a(f"ds_read2_b32 {vr(r.Kx+2,2)}, v{r.aKx} offset0:128 offset1:160")
            n_after += 1
        E(a, A, 6)
        a(f"v_mfma_f32_32x32x16_bf16 {vr(B,16)}, {vr(r.K,4)}, {vr(r.Qm[1],4)}, {vr(B,16)}")
        last = t == NT - 1
        if 'halfds' in EXP and not t & 1:
            a("s_waitcnt lgkmcnt(0)")
        elif (t & 7) != 7:
            a(f"ds_read_b128 {vr(r.K,4)}, v{r.aK} offset:{k_off(t+1)}")
            n_after += 1
        else:
            a("s_nop 0")
        E(a, A, 10)
        a(f"s_waitcnt lgkmcnt({n_after})")
        smf(r.O[0], r.V0, A)
        if t in pre_mid: pre_mid[t](); a.sync()
        E(a, A, 14, 2)
        if 'nonop' not in EXP: a("s_nop 2")
        E(a, B, 0, 1)
        a("s_waitcnt lgkmcnt(0)")
        if t in post_mid: post_mid[t](); a.sync()
        if t == 7:
            a(f"""
            v_add_u32 v{r.aK}, {REG_B}, v{r.aK}
            v_add_u32 v{r.aKx}, {REG_B}, v{r.aKx}
            ds_read2_b32 {vr(r.Kx,2)}, v{r.aKx} offset0:0 offset1:32
            ds_read_b128 {vr(r.K,4)}, v{r.aK} offset:{k_off(0)}
            """)
            for i in range(4): a(f"v_add_u32 v{r.aV+i}, {REG_B}, v{r.aV+i}")
        tn = t + 1
        kxp = r.Kx + 2 * ((tn >> 2) & 1)
        smf(r.O[0], r.V1, A + 8)
        if last: last_hook(); a.sync()
        E(a, B, 1, 5)
        if t == 7: a("s_waitcnt lgkmcnt(0)")
        if not last:
            a(f"v_mfma_f32_32x32x8_bf16 {vr(A,16)}, {vr(kxp,2)}, {vr(r.Qx[0]+2*(tn&3),2)}, 0")
        E(a, B, 6)
        if not last:
            a(f"v_mfma_f32_32x32x16_bf16 {vr(A,16)}, {vr(r.K,4)}, {vr(r.Qm[0],4)}, {vr(A,16)}")
        E(a, B, 10)
        smf(r.O[1], r.V0, B)
        if not last:
            vread(r.V0, tn, 0)
        E(a, B, 14, 2)
        if not last:
            if 'nonop' not in EXP: a("s_nop 2")
            E(a, A, 0, 2)
    a("s_nop 1")
    smf(r.O[1], r.V1, B + 8)

PRIO = eval(os.environ.get('PRIO', '{0: 1, 6: 0, "M": 2, 13: 1}'))
SPARE = 2 * REG_B

def piece_lds(n):
    return n * 1024 if n < 76 else SPARE + (n - 76) * 1024

def phase23(a):
    sHd, sR, sQP, sKQ, sT, sT2, sC, sCB, sKV, sQt = 4, 5, 6, 7, 8, 9, 10, 11, 12, 13
    sK0, sK1 = 14, 15
    sQT3, sDQ = 80, 81
    R = Regs(4, 128)
    t = [R.alloc() for _ in range(4)]
    r = AR(R)
    vL16 = R.alloc()
    PL = R.alloc(8, 4)
    assert PL == 120 and r.aK == 112
    Lld, LX = a.label("kvload"), a.label("X")
    a(f"""
    s_and_b32 s{sHd}, s2, 7
    s_lshl_b32 s{sQT3}, s{sHd}, 3
    s_lshl_b32 s{sHd}, s{sHd}, 2
    s_bfe_u32 s{sT}, s2, 0x20003
    s_add_u32 s{sHd}, s{sHd}, s{sT}
    s_lshr_b32 s{sR}, s2, 5
    s_bfe_u32 s{sT}, s2, 0x30003
    s_add_u32 s{sQT3}, s{sQT3}, s{sT}
    s_lshr_b32 s{sDQ}, s2, 6
    s_and_b32 s{sQP}, s{S_WAVE}, 3
    s_lshr_b32 s{sKQ}, s{S_WAVE}, 2
    v_lshlrev_b32 v{vL16}, 4, v1
    v_mov_b32 v{PL+4}, 0
    v_mov_b32 v{PL+6}, 0
    """)
    chan(a, sC, sKQ); area(a, sCB, sKQ)
    a(f"""
    s_mul_i32 s{sKV}, s{sHd}, {8*BLK}
    s_add_u32 s{sKV}, s{sKV}, {KV_OFF}
    s_cmp_eq_u32 s{sKQ}, 3
    s_cbranch_scc1 {Lld}
    s_cmp_ge_u32 s{sC}, 576
    s_cbranch_scc1 {LX}
    """)
    FA, FB, ACC = 8, 40, 72
    vA, vB, vY = [r.aK, r.aV + 1, r.aV + 2, r.aV + 3], r.aKx, r.aV
    Lts1, Lcj, Lsw = a.label("ts1"), a.label("cj"), a.label("sw")
    a(f"""
    s_lshl_b32 s{sT}, s{S_DV}, 16
    s_and_b32 s{S_DV}, s{S_DV}, 0xffff0000
    s_bitcmp0_b32 s{sC}, 0
    s_cselect_b32 s{S_DV}, s{sT}, s{S_DV}
    v_and_b32 v{t[0]}, 15, v1
    v_lshrrev_b32 v{t[1]}, 4, v1
    v_sub_u32 v{t[2]}, 15, v{t[0]}
    v_and_b32 v{t[3]}, 1, v{t[2]}
    v_and_b32 v{t[2]}, 14, v{t[2]}
    v_lshlrev_b32 v{t[2]}, 1, v{t[2]}
    v_lshl_add_u32 v{t[2]}, v{t[1]}, 4, v{t[2]}
    v_mul_u32_u24 v{t[3]}, {CP}, v{t[3]}
    s_and_b32 s{sT}, s{sQP}, 1
    s_lshl_b32 s{sT}, s{sT}, 8
    s_sub_u32 s{sT}, s{sCB}, s{sT}
    v_add3_u32 v{vA[0]}, v{t[2]}, v{t[3]}, s{sT}
    v_add_u32 v{vA[1]}, 1024, v{vA[0]}
    v_add_u32 v{vA[2]}, 2048, v{vA[0]}
    v_add_u32 v{vA[3]}, 3072, v{vA[0]}
    v_lshlrev_b32 v{t[2]}, 5, v{t[0]}
    v_lshl_add_u32 v{t[3]}, v{t[1]}, 4, v{t[2]}
    s_add_u32 s{sT}, s{sT}, {UOFF}
    v_add_u32 v{vB}, s{sT}, v{t[3]}
    v_lshl_add_u32 v{vY}, v{t[1]}, 3, v{t[2]}
    s_lshl_b32 s82, s{sKQ}, 2
    s_add_u32 s82, s82, {CNT}
    """)
    if 'nokg' in EXP or 'noconv' in EXP: a(f's_branch {LX}')
    lds_spin(a, t[0], t[1], 2, sT, saddr=82, off=C_RDY)
    a.stamp(5)
    a("s_setprio 2")
    if os.environ.get('C3PRIO'): a(f"s_cmp_lt_u32 s{sKQ}, 2\ns_cbranch_scc1 L_c3\ns_setprio {os.environ['C3PRIO']}\nL_c3:")
    T0, T1 = [7, 4, 3, 0], [6, 5, 2, 1]
    BUFS = list(range(8, 72, 4)) + list(range(88, 112, 4))
    a(f"s_cmp_ge_u32 s{sQP}, 2\ns_cbranch_scc1 {Lts1}")
    conv_main(a, T0, vA, vB, BUFS, ACC)
    a(f"s_cmp_eq_u32 s{sQP}, 0\ns_cselect_b32 s{sK0}, {T0[0]}, {T0[2]}\ns_cselect_b32 s{sK1}, {T0[1]}, {T0[3]}\ns_branch {Lcj}")
    a(f"{Lts1}:")
    conv_main(a, T1, vA, vB, BUFS, ACC)
    a(f"s_cmp_eq_u32 s{sQP}, 2\ns_cselect_b32 s{sK0}, {T1[0]}, {T1[2]}\ns_cselect_b32 s{sK1}, {T1[1]}, {T1[3]}")
    a(f"{Lcj}:")
    a.stamp(13)
    a(f"""
    s_lshl_b32 s{sK0}, s{sK0}, 9
    s_lshl_b32 s{sK1}, s{sK1}, 9
    s_lshl_b32 s{sT}, s{sQP}, 11
    s_add_u32 s{sT}, s{sT}, s{sCB}
    v_add_u32 v{t[0]}, s{sT}, v{vL16}
    s_xor_b32 s{sT}, s{sQP}, 1
    s_lshl_b32 s{sT}, s{sT}, 11
    s_add_u32 s{sT}, s{sT}, s{sCB}
    v_add_u32 v{t[1]}, s{sT}, v{vL16}
    s_add_u32 s{sT}, s{sCB}, s{sK0}
    v_add_u32 v{t[2]}, s{sT}, v{vY}
    s_add_u32 s{sT}, s{sCB}, s{sK1}
    v_add_u32 v{t[3]}, s{sT}, v{vY}
    ds_read_b64 {vr(FA,2)}, v{t[2]} offset:{UOFF+512}
    ds_read_b64 {vr(FA+2,2)}, v{t[3]} offset:{UOFF+512}
    s_bitcmp0_b32 s{sQP}, 0
    s_cbranch_scc1 {Lsw}
    """)
    for i in range(8):
        a(f"v_swap_b32 v{ACC+i}, v{ACC+8+i}")
    a(f"{Lsw}:")
    a('s_nop 1')
    a(f"""
    ds_write_b128 v{t[0]}, {vr(ACC+8,4)} offset:{2*CP}
    ds_write_b128 v{t[0]}, {vr(ACC+12,4)} offset:{2*CP+1024}
    """)
    lds_inc(a, FB + 8, FB + 9, saddr=82, off=C_2)
    a('s_waitcnt lgkmcnt(3)')

    for j in range(2):
        for h in range(2):
            a(f"v_lshlrev_b32 v{FA+4}, 16, v{FA+2*j+h}")
            a(f"v_and_b32 v{FA+5}, 0xffff0000, v{FA+2*j+h}")
            a(f"v_fmac_f32 v{ACC+4*j+2*h}, s{S_DV}, v{FA+4}")
            a(f"v_fmac_f32 v{ACC+4*j+2*h+1}, s{S_DV}, v{FA+5}")
    lds_spin(a, FB + 8, FB + 9, 4, sT, saddr=82, off=C_2)
    a(f"""
    ds_read_b128 {vr(FB,4)}, v{t[1]} offset:{2*CP}
    ds_read_b128 {vr(FB+4,4)}, v{t[1]} offset:{2*CP+1024}
    s_lshl_b32 s{sT}, s{sC}, 12
    s_add_u32 s{sT}, s{sT}, {AT_OFF}
    s_add_u32 s{sK0}, s{sK0}, s{sT}
    s_add_u32 s{sK1}, s{sK1}, s{sT}
    s_waitcnt lgkmcnt(0)
    """)
    for i in range(8):
        a(f"v_add_f32 v{ACC+i}, v{ACC+i}, v{FB+i}")
    for i in range(4):
        a(f"v_cvt_pk_bf16_f32 v{PL+2+i}, v{ACC+2*i}, v{ACC+2*i+1}")
    def at_store():
        a(f"""
        buffer_store_dwordx2 {vr(PL+2,2)}, v{PL+6}, {WS}, s{sK0} offen{ST}
        buffer_store_dwordx2 {vr(PL+4,2)}, v{PL+6}, {WS}, s{sK1} offen{ST}
        """)
    a(f"v_mov_b32 v{PL+6}, v{vY}\ns_cmp_lt_u32 s{sKQ}, 2\ns_cbranch_scc1 {LX}")
    at_store()
    a(f"""
    s_waitcnt vmcnt(0)
    """)
    def publish_a(Lskip):
        lds_inc(a, t[0], t[1], off=C_A, rtn=sT)
        a(f"""
        s_cmp_lt_u32 s{S_C2}, 576
        s_cselect_b32 s{sT2}, {7 if 'nokg' in EXP or 'noconv' in EXP else 11}, 7
        s_cmp_lg_u32 s{sT}, s{sT2}
        s_cbranch_scc1 {Lskip}
        """)
        lds_spin(a, t[0], t[1], 8, sT, off=C_S)
        a(f"s_lshl_b32 s{sT2}, s2, 2\ns_add_u32 s{sT2}, s{sT2}, {FL_A}")
        flag_store(a, t[0], sT2)
    publish_a(LX)
    a(f"s_branch {LX}")
    Lp, Lc, Lq, Lnq, Lgo = [a.label(x) for x in ("kp", "kc", "noqx", "nq", "go")]
    def kv_flags(vd, vt, quarter):
        a(f"""
        v_and_b32 v{vd}, 1, v1
        v_lshlrev_b32 v{vd}, 5, v{vd}
        v_add3_u32 v{vd}, v{vd}, 32, s{sHd}
        v_lshrrev_b32 v{vt}, 1, v1
        s_lshl_b32 s{sT}, s{quarter}, 2
        v_add_u32 v{vt}, s{sT}, v{vt}
        s_lshl_b32 s{sT}, s{sR}, 1
        s_lshr_b32 s{sT2}, s{sQP}, 1
        s_add_u32 s{sT}, s{sT}, s{sT2}
        v_writelane_b32 v{vd}, s{sHd}, 8
        v_writelane_b32 v{vt}, s{sT}, 8
        v_mul_u32_u24 v{vd}, {256 if 'fp' in EXP else 43}, v{vd}
        v_lshrrev_b32 v{vd}, 8, v{vd}
        v_lshl_add_u32 v{vd}, v{vd}, 4, v{vt}
        v_lshlrev_b32 v{vd}, 7, v{vd}
        v_add_u32 v{vd}, {FL_P if 'fp' in EXP else FL_Q}, v{vd}
        """)
    a(f"{Lld}:")
    kv_flags(t[2], t[3], sQP)
    lds_spin(a, t[0], t[1], 8, sT, off=C_S if 'early' in EXP else C_FREE)
    a(f"""
    s_lshl_b32 s74, s{sHd}, 3
    s_add_u32 s74, s74, s{sR}
    s_lshl_b32 s75, s74, 2
    s_add_u32 s75, s75, s{sQP}
    s_mov_b32 s76, 0
    s_lshl_b32 s82, s{sQP}, 2
    s_add_u32 s82, s82, {CNT + C_Q}
    v_mov_b32 v{PL}, s82
    v_mov_b32 v{PL+1}, 1
    s_mov_b32 s{S_SPIN}, {SPIN_MAX}
    """)
    PD = int(os.environ.get('PD', '2'))
    PS = os.environ.get('PSLEEP', '3')
    PR = [8 + i for i in range(PD)]
    def pissue(i):
        a(f"s_mov_b64 exec, 0x1ff\nbuffer_load_dword v{PR[i]}, v{t[2]}, {WS}, 0 offen sc1")
    for i in range(PD - 1):
        pissue(i); a(f"s_sleep {PS}")
    a(f"{Lp}:")
    for i in range(PD):
        Lq, Lc, Lnq = a.label("q"), a.label("c"), a.label("nq")
        pissue((i + PD - 1) % PD)
        a(f"""
        s_waitcnt vmcnt({PD-1})
        v_cmp_ne_u32 vcc, s{S_TAG}, v{PR[i]}
        s_cmp_lt_u32 s76, 2
        s_cbranch_scc1 {Lq}
        s_sub_u32 s76, s76, 1
        s_cmp_lg_u32 s76, 1
        s_cbranch_scc1 {Lq}
        ds_write_b32 v{PL}, v{PL+1}
        {Lq}:
        s_mov_b64 exec, -1
        s_sub_u32 s{S_SPIN}, s{S_SPIN}, 1
        s_cselect_b32 vcc_lo, 0, vcc_lo
        s_bitcmp1_b32 vcc_lo, 8
        s_cbranch_scc1 {Lc}
        s_cmp_lg_u32 s76, 0
        s_cbranch_scc1 {Lnq}
        s_mov_b32 s76, {PD+1}
        s_call_b64 s[78:79], L_qdma
        {Lnq}:
        s_mov_b32 s77, 0
        s_and_b32 s{sT}, vcc_lo, 0x0f
        s_cbranch_scc0 {Lgo}
        s_mov_b32 s77, 1
        s_and_b32 s{sT}, vcc_lo, 0xf0
        s_cbranch_scc0 {Lgo}
        {Lc}:
        s_sleep {PS}
        """)
    a(f"""
    s_branch {Lp}
    L_qdma:
    s_lshl_b32 s{sT}, s{sQP}, 11
    s_add_u32 m0, s{sT}, {QST}
    s_lshl_b32 s{sT2}, s75, 11
    s_add_u32 s{sT2}, s{sT2}, {QF_OFF}
    buffer_load_dwordx4 v{vL16}, {WS}, s{sT2} offen{LD} lds
    buffer_load_dwordx4 v{vL16}, {WS}, s{sT2} offen offset:1024{LD} lds
    s_lshl_b32 s{sT}, s{sQP}, 8
    s_add_u32 m0, s{sT}, {QST+8192}
    s_lshl_b32 s{sT2}, s75, 8
    s_add_u32 s{sT2}, s{sT2}, {QX_OFF}
    s_mov_b64 exec, 0xffff
    buffer_load_dwordx4 v{vL16}, {WS}, s{sT2} offen{LD} lds
    s_mov_b64 exec, -1
    s_setpc_b64 s[78:79]
    {Lgo}:
    """)
    a.stamp(5)
    a(f"""
    s_lshl_b32 s{sT}, s{sQP}, 1
    s_add_u32 s{sT}, s{sT}, s77
    s_mul_i32 s{sT}, s{sT}, {BLK}
    s_add_u32 s{sT}, s{sT}, s{sKV}
    s_mul_i32 s82, s{sQP}, {BLK}
    """)
    def run(first, n):
        a(f"s_add_u32 m0, s82, {first*1024}\ns_add_u32 s{sT2}, s{sT}, {first*1024}")
        for i in range(n):
            a(f"buffer_load_dwordx4 v{vL16}, {WS}, s{sT2} offen offset:{1024*i}{LD} lds")
    S1 = int(os.environ.get('S1', '4'))
    if S1 == 2: st1 = [(0, 2), (8, 4)]; st2 = [(2, 4), (12, 4), (6, 2), (16, 3)]
    elif S1 == 3: st1 = [(0, 3), (8, 4), (12, 1)]; st2 = [(3, 4), (13, 4), (7, 1), (17, 2)]
    else: st1 = [(0, 4), (8, 4), (12, 2)]; st2 = [(4, 4), (14, 4), (18, 1)]
    n2 = sum(n for _, n in st2)
    for x in st1: run(*x)
    if 's2late' not in EXP:
        for x in st2: run(*x)
    a(f"""
    s_lshl_b32 s78, s{sQP}, 3
    s_add_u32 s78, s78, {CNT + C_KV}
    v_mov_b32 v{t[0]}, s78
    v_mov_b32 v{t[2]}, 1
    v_mov_b32 v{t[3]}, s77
    v_mov_b32 v{t[1]}, 2
    s_waitcnt vmcnt({n2 if 's2late' not in EXP else 0})
    ds_write_b32 v{PL}, v{PL+1}
    ds_write_b64 v{t[0]}, {vr(t[2],2)}
    s_waitcnt lgkmcnt(0)
    """)
    if 's2late' in EXP:
        for x in st2: run(*x)
    a(f"s_waitcnt vmcnt(0)\nds_write_b32 v{t[0]}, v{t[1]}")
    a(f"{LX}:")
    a(f"""
    s_mul_i32 s{sT}, s{sKQ}, {BLK}
    v_add_u32 v{r.aK}, s{sT}, v{vL16}
    v_and_b32 v{t[0]}, 32, v1
    v_add_u32 v{t[0]}, v{t[0]}, v1
    v_lshl_add_u32 v{r.aKx}, v{t[0]}, 2, s{sT}
    v_add_u32 v{r.aKx}, {KX_OFF}, v{r.aKx}
    v_bfe_u32 v{t[0]}, v1, 2, 2
    v_and_b32 v{t[1]}, 1, v1
    v_lshlrev_b32 v{t[1]}, 4, v{t[1]}
    v_and_b32 v{t[2]}, 2, v1
    v_lshl_add_u32 v{t[1]}, v{t[2]}, 2, v{t[1]}
    v_lshl_add_u32 v{t[1]}, v{t[0]}, 5, v{t[1]}
    v_and_b32 v{t[3]}, 32, v1
    v_lshl_add_u32 v{t[1]}, v{t[3]}, 3, v{t[1]}
    v_lshl_add_u32 v{t[0]}, v{t[0]}, 3, v{t[3]}
    v_add_u32 v{t[0]}, 1152, v{t[0]}
    v_and_b32 v{t[2]}, 3, v1
    v_lshl_add_u32 v{t[0]}, v{t[2]}, 18, v{t[0]}
    v_and_b32 v{t[2]}, 16, v1
    v_cmp_eq_u32 vcc, 0, v{t[2]}
    v_lshlrev_b32 v{t[2]}, 4, v{t[2]}
    v_mov_b32 v{t[3]}, 512
    v_cndmask_b32 v{t[1]}, v{t[0]}, v{t[1]}, vcc
    v_add_u32 v{r.aV}, s{sT}, v{t[1]}
    v_sub_u32 v{t[2]}, 128, v{t[2]}
    v_cndmask_b32 v{t[3]}, 64, v{t[3]}, vcc
    v_add_u32 v{r.aV+1}, v{r.aV}, v{t[2]}
    v_add_u32 v{r.aV+2}, v{r.aV}, v{t[3]}
    v_add_u32 v{r.aV+3}, v{r.aV+2}, v{t[2]}
    v_mov_b32 v{r.idx}, 0xdddddddd
    s_mov_b32 s72, {fbits(2.0**-40)}
    s_mov_b32 s73, {fbits(2.0**60)}
    s_movk_i32 s64, 0x1f8
    s_mov_b64 s[62:63], {-1 if 'nochk' in EXP else 0}
    s_lshl_b32 s{sT}, s{sQP}, 11
    s_add_u32 s{sT}, s{sT}, {QST}
    v_add_u32 v{t[0]}, s{sT}, v{vL16}
    v_and_b32 v{t[1]}, 31, v1
    s_lshl_b32 s{sT}, s{sQP}, 8
    s_add_u32 s{sT}, s{sT}, {QST+8192}
    v_lshl_add_u32 v{t[1]}, v{t[1]}, 2, s{sT}
    v_cmp_gt_u32 vcc, 32, v1
    s_lshl_b32 s{sQt}, s{sR}, 2
    s_add_u32 s{sQt}, s{sQt}, s{sQP}
    """)
    for X in range(2):
        for i in (1, 2, 5, 6): a(f"v_mov_b32 v{r.Qx[X]+i}, 0")
        for i in range(16): a(f"v_mov_b32 v{r.O[X]+i}, 0")
    a.stamp(6)
    a(f"s_lshl_b32 s82, s{sQP}, 2\ns_add_u32 s82, s82, {CNT}\ns_lshl_b32 s83, s{sKQ}, 3\ns_add_u32 s83, s83, {CNT}")
    lds_spin(a, PL, PL + 1, 1, sT, saddr=82, off=C_Q)
    a(f"""
    ds_read_b128 {vr(r.Qm[0],4)}, v{t[0]}
    ds_read_b128 {vr(r.Qm[1],4)}, v{t[0]} offset:1024
    ds_read2_b32 {vr(t[2],2)}, v{t[1]} offset0:0 offset1:32
    """)
    lds_inc(a, PL, PL + 1, off=C_Y)
    a("s_waitcnt lgkmcnt(1)")
    for X in range(2):
        q = r.Qx[X]; src = t[2] + X
        a(f"""
        v_cndmask_b32 v{q+0}, 0, v{src}, vcc
        v_cndmask_b32 v{q+3}, 0, v{src}, vcc
        v_cndmask_b32 v{q+4}, v{src}, 0, vcc
        v_cndmask_b32 v{q+7}, v{src}, 0, vcc
        """)
    lds_spin(a, PL, PL + 1, 1, sT, saddr=83, off=C_KV)
    a(f"""
    ds_read2_b32 {vr(r.Kx,2)}, v{r.aKx} offset0:0 offset1:32
    ds_read_b128 {vr(r.K,4)}, v{r.aK} offset:{k_off(0)}
    ds_read_b64_tr_b16 {vr(r.V0,2)}, v{r.aV} offset:{v_off(0)}
    ds_read_b64_tr_b16 {vr(r.V0+2,2)}, v{r.aV+1} offset:{v_off(0)}
    """)
    def stage2_pre():
        a(f"v_mov_b32 v{t[0]}, s83\nds_read_b32 v{t[1]}, v{t[0]} offset:{C_KV}")
    def stage2_post():
        if 'nos2' in EXP: return
        L = a.label("cok")
        a(f"v_cmp_gt_u32 vcc, 2, v{t[1]}\ns_cbranch_vccz {L}")
        lds_spin(a, t[0], t[1], 2, sT, saddr=83, off=C_KV)
        a(f"{L}:")
    def wt_issue():
        L = a.label("nw")
        a(f"s_cmp_ge_u32 s{S_WAVE}, 8\ns_cbranch_scc1 {L}")
        at_store()
        a(f"s_cmp_ge_u32 s{S_WAVE}, 3\ns_cbranch_scc1 {L}\ns_lshl_b32 s79, s{S_WAVE}, 8\ns_add_u32 s79, s79, s2")
        if 'nowt' in EXP: a("s_movk_i32 s79, 1000")
        wt_load(a, 79, sT, 78, 77, 76, 75, t[0], t[1], t[2], PL)
        a(f"{L}:")
    def wt_put():
        L, Ls = a.label("nw"), a.label("ns")
        a(f"s_cmp_ge_u32 s{S_WAVE}, 8\ns_cbranch_scc1 {Ls}\ns_cmp_ge_u32 s{S_WAVE}, 3\ns_cbranch_scc1 {L}\ns_waitcnt vmcnt(0)")
        wt_store(a, 79, PL, vL16)
        a(f"{L}:\ns_lshr_b32 s78, s{S_WAVE}, 1")
        kv_flags(PL + 4, PL + 5, 78)
        a("s_mov_b64 exec, 0xff")
        poll_issue(a, PL + 5, 1, PL + 4, 0)
        a(f"s_mov_b64 exec, -1\n{Ls}:")
    def second_blocks():
        Ls, Lw = a.label("kvs"), a.label("nw")
        a(f"s_cmp_ge_u32 s{S_WAVE}, 8\ns_cbranch_scc1 {Ls}\ns_mov_b64 exec, 0xff")
        poll_wait(a, PL + 5, 1, PL + 4, 0, issued=True)
        a("s_mov_b64 exec, -1")
        publish_a(Lw)
        a(f"{Lw}:")
        lds_spin(a, t[0], t[1], 16, sT, off=C_Y)
        a(f"s_lshl_b32 s82, s78, 3\ns_add_u32 s82, s82, {CNT}")
        lds_spin(a, t[0], t[1], 1, sT, saddr=82, off=C_KV)
        a(f"""
        ds_read_b32 v{t[1]}, v{t[0]} offset:{C_KV+4}
        s_and_b32 s{sT}, s{S_WAVE}, 6
        s_waitcnt lgkmcnt(0)
        v_readfirstlane_b32 s{sT2}, v{t[1]}
        s_xor_b32 s{sT2}, s{sT2}, 1
        s_and_b32 s{sT2}, s{sT2}, 1
        s_add_u32 s{sT}, s{sT}, s{sT2}
        s_mul_i32 s{sT}, s{sT}, {BLK}
        s_add_u32 s{sT}, s{sT}, s{sKV}
        s_and_b32 s{sT2}, s{S_WAVE}, 1
        s_mul_i32 s{sT2}, s{sT2}, 9216
        s_add_u32 s{sT}, s{sT}, s{sT2}
        s_mul_i32 s82, s78, {BLK}
        s_add_u32 s82, s82, s{sT2}
        s_add_u32 m0, s82, {REG_B}
        s_nop 0
        """)
        for i in range(10):
            a(f"buffer_load_dwordx4 v{vL16}, {WS}, s{sT} offen offset:{1024*(i&3)}{LD} lds")
            if i & 3 == 3: a(f"s_add_u32 m0, m0, 4096\ns_add_u32 s{sT}, s{sT}, 4096")
        a(f"{Ls}:")
    if os.environ.get('DLY'): a(f"s_sleep {os.environ['DLY']}")
    a("s_waitcnt lgkmcnt(2)\ns_nop 0")
    a.stamp(7)
    def poll_post():
        L = a.label("nopa")
        a(f"s_cmp_lg_u32 s{S_WAVE}, 0\ns_cbranch_scc1 {L}")
        poll_issue(a, PL, 4, vL16, FL_A)
        if 'warm' in EXP:
            a(f"""
            s_mul_i32 s{sT}, s{sQT3}, {32*1152}
            v_mov_b32 v{PL+4}, s{sT}
            s_mov_b64 exec, 1
            global_load_dword v{PL+5}, v{PL+4}, s[{P_OUT}:{P_OUT+1}]
            s_mul_i32 s{sT}, s{sQT3}, {36*1024}
            s_add_u32 s{sT}, s{sT}, {OF_OFF}
            buffer_load_dword v{PL+6}, off, {WS}, s{sT} sc1
            s_mul_i32 s{sT}, s{sQt}, {72*1024}
            s_add_u32 s{sT}, s{sT}, {OF_OFF}
            buffer_load_dword v{PL+7}, off, {WS}, s{sT} sc1
            s_mov_b64 exec, -1
            """)
        a(f"{L}:")
    def poll_check():
        L = a.label("nopw")
        a(f"s_cmp_lg_u32 s{S_WAVE}, 0\ns_cbranch_scc1 {L}")
        poll_wait(a, PL, 4, vL16, FL_A, issued=True)
        lds_inc(a, t[0], t[1], off=C_FA)
        a(f"{L}:")
    def mid_post():
        a("s_waitcnt vmcnt(0)")
        a.stamp(15)
        a(f"s_setprio {PRIO['M']}")
        if 'nom' not in EXP: a("s_barrier")
        if os.environ.get('DLYM'): a(f"s_sleep {os.environ['DLYM']}")
        a.stamp(16)
    NLD = 8
    def prefetch_post():
        La, Ld = a.label("pfa"), a.label("pfd")
        a(f"""
        s_cmp_ge_u32 s{S_WAVE}, {0 if 'nopf' in EXP else 9}
        s_cbranch_scc1 {La}
        """)
        lds_spin(a, t[0], t[1], 1, sT, off=C_FA)
        a(f"""
        s_mul_i32 s{sT}, s{sDQ}, 9
        s_add_u32 s{sT}, s{sT}, s{S_WAVE}
        s_lshl_b32 m0, s{S_WAVE}, 13
        s_mul_i32 s{sT}, s{sT}, {18*1024}
        s_add_u32 s{sT}, s{sT}, {WT_OFF}
        """)
        for n in range(NLD):
            a(f"buffer_load_dwordx4 v{vL16}, {WS}, s{sT} offen offset:{1024*(n&3)}{LD} lds")
            if n == 3: a(f"s_add_u32 m0, m0, 4096\ns_add_u32 s{sT}, s{sT}, 4096")
        a(f"""
        v_lshrrev_b32 v{t[0]}, 2, v1
        v_lshlrev_b32 v{t[0]}, 12, v{t[0]}
        v_and_b32 v{t[1]}, 3, v1
        v_lshl_add_u32 v{t[0]}, v{t[1]}, 4, v{t[0]}
        s_mul_i32 s{sT}, s{sDQ}, 9
        s_add_u32 s{sT}, s{sT}, s{S_WAVE}
        s_lshl_b32 s{sT}, s{sT}, 16
        s_lshl_b32 s{sT2}, s{sQT3}, 6
        s_add_u32 s{sT}, s{sT}, s{sT2}
        s_add_u32 s{sT}, s{sT}, {AT_OFF}
        s_lshl_b32 s{sK1}, s{S_WAVE}, 10
        s_add_u32 s{sT2}, s{sK1}, {SPARE - 4096}
        s_add_u32 s{sK1}, s{sK1}, {72*1024}
        s_cmp_ge_u32 s{S_WAVE}, 4
        s_cselect_b32 s{sK1}, s{sT2}, s{sK1}
        s_mov_b32 m0, s{sK1}
        s_nop 0
        buffer_load_dwordx4 v{t[0]}, {WS}, s{sT} offen{LD} lds
        {La}:
        """)
    HK = eval(os.environ.get('HK', '(1, 4, 5)'))
    vP16, vP8, vP4, vPC, vXo = PL, PL + 1, PL + 2, PL + 3, PL + 4
    sFO, sOM, sOX = 60, 61, 65
    def tail_setup():
        a(f"""
        s_mul_i32 s{sCB}, s{sQP}, 4864
        s_add_u32 s{sCB}, s{sCB}, {REG_B}
        s_lshl_b32 s82, s{sKQ}, 2
        s_add_u32 s82, s82, {CNT}
        s_lshl_b32 s83, s{sQP}, 2
        s_add_u32 s83, s83, {CNT}
        v_add_u32 v{vP16}, s{sCB}, v{vL16}
        v_lshl_add_u32 v{vP8}, v1, 3, s{sCB}
        v_lshl_add_u32 v{vP4}, v1, 2, s{sCB}
        v_mov_b32 v{vPC}, s83
        v_lshrrev_b32 v{vXo}, 5, v1
        v_mul_u32_u24 v{vXo}, {36*1024 - 128}, v{vXo}
        v_lshl_add_u32 v{vXo}, v1, 2, v{vXo}
        s_lshl_b32 s{sFO}, s{sQt}, 5
        s_add_u32 s{sFO}, s{sFO}, s{sHd}
        s_lshl_b32 s{sFO}, s{sFO}, 7
        s_add_u32 s{sFO}, s{sFO}, {FL_O}
        s_mul_i32 s{sOM}, s{sQt}, {72*1024}
        s_add_u32 s{sOM}, s{sOM}, {OF_OFF}
        s_lshl_b32 s{sT}, s{sHd}, 7
        s_add_u32 s{sOX}, s{sOM}, s{sT}
        s_add_u32 s{sOX}, s{sOX}, 32768
        s_lshl_b32 s{sT}, s{sHd}, 10
        s_add_u32 s{sOM}, s{sOM}, s{sT}
        s_add_u32 s66, s{sOM}, {36*1024}
        s_mov_b32 s76, -1
        s_mov_b32 s77, 0
        """)
    PX = r.K
    def tail_reads():
        a(f"""
        ds_read_b32 v{PX+3}, v{vPC} offset:{C_P}
        ds_read_b64 {vr(PX,2)}, v{vP8} offset:4096
        ds_read_b32 v{PX+2}, v{vP4} offset:4608
        ds_read_b128 v[8:11], v{vP16}
        ds_read_b128 v[12:15], v{vP16} offset:1024
        ds_read_b128 v[16:19], v{vP16} offset:2048
        ds_read_b128 v[20:23], v{vP16} offset:3072
        """)
    attn_loop(a, r, PRIO, {S1 - 2: stage2_pre}, {HK[0]: wt_issue, S1 - 2: stage2_post, HK[1]: wt_put, HK[2]: second_blocks, 7: mid_post, 8: poll_post, 10: poll_check, 11: prefetch_post, 12: tail_setup}, tail_reads)
    a('s_setprio 3')
    a.stamp(8)
    O0, O1 = r.O
    FD = [72 + 4*i for i in range(10)]
    FL = [8 + 4*i for i in range(8)]
    FA3 = FL + FD
    AV, vG, vB, vOut, ACC3, FB3 = 112, 116, 118, t[3], PL, 40
    OZ = REG_B + BLK
    Lfin, Lp9, Lend, Lfirst, Lwr = [a.label(x) for x in ("fin", "p9", "end", "first", "wr")]
    Lre, Lok = a.label("re"), a.label("ok")
    a(f"""
    s_cmp_eq_u32 s{sKQ}, 0
    s_cbranch_scc1 {Lfirst}
    s_waitcnt lgkmcnt(0)
    v_cmp_gt_u32 vcc, s{sKQ}, v{PX+3}
    s_cbranch_vccnz {Lre}
    {Lok}:
    """)
    a.stamp(18)
    for i in range(0, 8, 2): a(f"v_pk_add_f32 {vr(O0+i,2)}, {vr(O0+i,2)}, {vr(8+i,2)}")
    a("s_nop 2")
    def pack():
        for i in (2, 0, 1): a(f"v_permlane32_swap_b32 v{O0+8+i}, v{O1+8+i}")
        a("s_nop 0")
    pack()
    a(f"v_add_f32 v{O0+10}, v{O0+10}, v{PX+2}\nv_pk_add_f32 {vr(O0+8,2)}, {vr(O0+8,2)}, {vr(PX,2)}\nv_mov_b32 v{O1+10}, v{O0+10}")
    for i in range(0, 8, 2): a(f"v_pk_add_f32 {vr(O1+i,2)}, {vr(O1+i,2)}, {vr(16+i,2)}")
    a(f"s_cmp_eq_u32 s{sKQ}, 3\ns_cbranch_scc1 {Lfin}\ns_branch {Lwr}\n{Lre}:")
    lds_spin(a, t[0], t[1], f"s{sKQ}", sT, saddr=83, off=C_P)
    tail_reads()
    a(f"s_waitcnt lgkmcnt(0)\ns_branch {Lok}\n{Lfirst}:")
    lds_inc(a, t[0], t[1], saddr=82, off=C_E)
    lds_spin(a, t[0], t[1], 4, sT, saddr=82, off=C_E)
    pack()
    a(f"""{Lwr}:
    ds_write_b128 v{vP16}, {vr(O0,4)}
    ds_write_b128 v{vP16}, {vr(O0+4,4)} offset:1024
    ds_write_b128 v{vP16}, {vr(O1,4)} offset:2048
    ds_write_b128 v{vP16}, {vr(O1+4,4)} offset:3072
    ds_write_b64 v{vP8}, {vr(O0+8,2)} offset:4096
    ds_write_b32 v{vP4}, v{O0+10} offset:4608
    """)
    lds_inc(a, t[0], t[1], saddr=83, off=C_P)
    lds_inc(a, t[0], t[1], saddr=82, off=C_E)
    a("s_setprio 0")
    a.stamp(17)
    a(f"""
    s_cmp_ge_u32 s{S_WAVE}, 9
    s_cbranch_scc1 {Lp9}
    v_and_b32 v{t[2]}, 15, v1
    v_lshlrev_b32 v{t[2]}, 2, v{t[2]}
    s_lshl_b32 s{sT}, s{sQT3}, 7
    s_add_u32 s{sT}, s{sT}, {G_OFF}
    s_waitcnt lgkmcnt(0)
    buffer_load_dword v{vG}, v{t[2]}, {WS}, s{sT} offen{LD}
    buffer_load_dword v{vG+1}, v{t[2]}, {WS}, s{sT} offen offset:64{LD}
    s_mul_i32 s{sK0}, s{sDQ}, 9
    s_add_u32 s{sK0}, s{sK0}, s{S_WAVE}
    s_mul_i32 s{sT}, s{sK0}, {18*1024}
    s_add_u32 s{sT}, s{sT}, {WT_OFF + NLD*1024}
    """)
    if 'wtlate' in EXP:
        L = a.label("wl")
        a(f"s_cmp_lt_u32 s{S_WAVE}, {os.environ.get('WTE', '0')}\ns_cbranch_scc1 {L}")
        lds_spin(a, t[0], t[1], 4, sT2, off=C_O)
        a(f"{L}:")
    for n in range(10):
        a(f"buffer_load_dwordx4 {vr(FD[n],4)}, v{vL16}, {WS}, s{sT} offen offset:{1024*(n&3)}{LD}")
        if n & 3 == 3: a(f"s_add_u32 s{sT}, s{sT}, 4096")
    a(f"""
    s_lshl_b32 s{sT}, s{S_WAVE}, 13
    v_add_u32 v{t[0]}, s{sT}, v{vL16}
    v_lshrrev_b32 v{t[1]}, 2, v1
    v_lshlrev_b32 v{t[1]}, 6, v{t[1]}
    v_and_b32 v{t[2]}, 3, v1
    v_lshl_add_u32 v{t[1]}, v{t[2]}, 3, v{t[1]}
    v_add_u32 v{t[1]}, s{sK1}, v{t[1]}
    s_waitcnt vmcnt(10)
    """)
    for ks in range(NLD):
        a(f"ds_read_b128 {vr(FL[ks],4)}, v{t[0]} offset:{1024*ks}")
    a(f"""
    ds_read_b64_tr_b16 {vr(AV,2)}, v{t[1]}
    ds_read_b64_tr_b16 {vr(AV+2,2)}, v{t[1]} offset:32
    v_lshrrev_b32 v{t[0]}, 4, v1
    v_and_b32 v{t[2]}, 15, v1
    v_lshlrev_b32 v{vB}, 9, v{t[0]}
    v_add_u32 v{vB}, {OZ}, v{vB}
    v_lshl_add_u32 v{vB+1}, v{t[2]}, 2, v{vB}
    v_add_u32 v{vB+1}, 32768, v{vB+1}
    v_lshl_add_u32 v{vB}, v{t[2]}, 4, v{vB}
    v_and_b32 v{vOut}, 31, v1
    v_mul_u32_u24 v{vOut}, 1152, v{vOut}
    v_lshrrev_b32 v{t[0]}, 5, v1
    v_lshl_add_u32 v{vOut}, v{t[0]}, 4, v{vOut}
    v_add_u32 v{t[2]}, 2048, v{vB+1}
    """)
    for T in range(2):
        g = vG + T
        a(f"""
        v_cvt_pk_bf16_f32 v{g}, v{g}, v{g}
        v_and_b32 v{g}, 0xffff0000, v{g}
        v_mul_f32 v{g}, {fbits(-L_HI)}, v{g}
        v_exp_f32 v{g}, v{g}
        s_nop 0
        v_add_f32 v{g}, 1.0, v{g}
        v_rcp_f32 v{g}, v{g}
        s_nop 0
        v_cvt_pk_bf16_f32 v{g}, v{g}, v{g}
        v_and_b32 v{g}, 0xffff0000, v{g}
        """)
    for i in range(8): a(f"v_mov_b32 v{ACC3+i}, 0")
    srd(a, R_A, P_OUT, X_BYTES)
    Lscan = a.label("scan")
    a(f"""
    s_mul_i32 s{sT}, s{sQT3}, {32*1152}
    s_lshl_b32 s{sT2}, s{sK0}, 5
    s_add_u32 s{sK0}, s{sT}, s{sT2}
    v_mov_b32 v{t[0]}, {CNT}
    s_mov_b32 s74, 0
    s_mov_b32 s{S_SPIN}, {SPIN_MAX}
    s_waitcnt vmcnt(0) lgkmcnt(0)
    """)
    a.stamp(12)
    if os.environ.get('W8P'): a(f"s_cmp_lg_u32 s{S_WAVE}, 8\ns_cbranch_scc1 L_w8\ns_setprio 1\nL_w8:")
    a(f"""
    s_branch {Lscan}
    {Lscan}_s:
    s_sleep {os.environ.get('SSL', '1')}
    {Lscan}:
    ds_read_b32 v{t[1]}, v{t[0]} offset:{C_F}
    s_sub_u32 s{S_SPIN}, s{S_SPIN}, 1
    s_cselect_b32 s77, 0xff, 0
    s_waitcnt lgkmcnt(0)
    v_readfirstlane_b32 s75, v{t[1]}
    s_or_b32 s75, s75, s77
    s_andn2_b32 s76, s75, s74
    s_cbranch_scc0 {Lscan}_s
    s_mov_b32 s74, s75
    s_cmp_eq_u32 s75, 0xff
    s_cselect_b32 s77, 0x100, 0
    s_or_b32 s76, s76, s77
    """)
    if a.diag and 13 in a.only:
        a.stamp(13); a("s_bcnt1_i32_b32 s98, s76\nv_writelane_b32 v2, s98, 14")
    def rd(g):
        b = FB3 + 16 * (g & 1)
        for n in range(4):
            T = n & 1; d = b + 4 * n
            if g < 8:
                a(f"ds_read_b128 {vr(d,4)}, v{vB} offset:{(2*g+(n>>1))*2048 + T*256}")
            else:
                va = vB + 1 if n < 2 else t[2]
                a(f"ds_read2_b32 {vr(d,2)}, v{va} offset0:{16*T} offset1:{16*T+32}")
                a(f"ds_read2_b32 {vr(d+2,2)}, v{va} offset0:{16*T+64} offset1:{16*T+96}")
    def mm(g, younger):
        b = FB3 + 16 * (g & 1); k = 2 if g == 8 else 1
        for n in range(4):
            T = n & 1
            a(f"s_waitcnt lgkmcnt({younger + k*(3-n)})\nv_mfma_f32_16x16x32_bf16 {vr(ACC3+4*T,4)}, {vr(FA3[2*g+(n>>1)],4)}, {vr(b+4*n,4)}, {vr(ACC3+4*T,4)}")
    for g in range(9):
        a(f"L_e{g}:\ns_bitcmp1_b32 s76, {g}\ns_cbranch_scc1 L_r{g}")
    a(f"s_branch {Lscan}")
    for g in range(9):
        a(f"L_r{g}:")
        rd(g)
        a(f"s_branch L_p{g+1}")
    for g in range(1, 9):
        a(f"L_f{g}:")
        mm(g - 1, 0)
        a(f"s_branch L_e{g+1}" if g < 8 else f"s_branch {Lscan}")
    for g in range(1, 9):
        a(f"L_p{g}:\ns_bitcmp0_b32 s76, {g}\ns_cbranch_scc1 L_f{g}")
        rd(g)
        mm(g - 1, 8 if g == 8 else 4)
    a("L_p9:")
    W = 8
    for T in range(2):
        for h in range(2):
            a(f"v_lshlrev_b32 v{W+4*T+2*h}, 16, v{AV+2*T+h}\nv_and_b32 v{W+4*T+2*h+1}, 0xffff0000, v{AV+2*T+h}")
    for T in range(2):
        a(f"v_sub_f32 v{W+8+T}, 1.0, v{vG+T}")
        for i in range(4): a(f"v_mul_f32 v{W+4*T+i}, v{vG+T}, v{W+4*T+i}")
    a(f"v_cvt_pk_bf16_f32 v{W+8}, v{W+8}, v{W+9}\nv_and_b32 v{W+9}, 0xffff0000, v{W+8}\nv_lshlrev_b32 v{W+8}, 16, v{W+8}")
    mm(8, 0)
    a.stamp(21)
    a("s_nop 5")
    for T in range(2):
        for i in range(4): a(f"v_fmac_f32 v{W+4*T+i}, v{W+8+T}, v{ACC3+4*T+i}")
        a(f"""
        v_cvt_pk_bf16_f32 v{W+12+2*T}, v{W+4*T}, v{W+4*T+1}
        v_cvt_pk_bf16_f32 v{W+13+2*T}, v{W+4*T+2}, v{W+4*T+3}
        """)
    a(f"""
    s_nop 1
    v_permlane16_swap_b32 v{W+12}, v{W+14}
    v_permlane16_swap_b32 v{W+13}, v{W+15}
    s_nop 0
    buffer_store_dwordx4 {vr(W+12,4)}, v{vOut}, s[{R_A}:{R_A+3}], s{sK0} offen
    """)
    a(f"s_branch {Lend}")
    Lpl, Lpc, Lpd = a.label("pl"), a.label("pc"), a.label("pd")
    a(f"{Lp9}:")
    lds_spin(a, t[0], t[1], 4, sT, off=C_E + 4)
    lds_spin(a, t[0], t[1], 4, sT, off=C_E + 8)
    a(f"""
    s_setprio {os.environ.get('SPRIO', '3')}
    s_sub_u32 s77, s{S_WAVE}, 9
    s_mul_i32 s77, s77, 3
    s_lshl_b32 s{sT}, s77, 2
    v_add_u32 v{t[2]}, s{sT}, v1
    s_lshr_b32 s{sT}, s{sQT3}, 1
    s_lshl_b32 s{sT}, s{sT}, 12
    s_add_u32 s{sT}, s{sT}, {FL_O}
    v_lshl_add_u32 v{t[2]}, v{t[2]}, 7, s{sT}
    s_cmp_eq_u32 s77, 6
    s_movk_i32 s74, 0xfff
    s_cselect_b32 s74, 0xff, s74
    s_mov_b32 s75, 0
    s_mul_i32 s78, s{sQT3}, {36*1024}
    s_add_u32 s78, s78, {OF_OFF}
    v_mov_b32 v{t[0]}, {CNT}
    s_mov_b32 s{S_SPIN}, {SPIN_MAX}
    {Lpl}:
    s_mov_b32 exec_lo, s74
    s_mov_b32 exec_hi, 0
    buffer_load_dword v{t[3]}, v{t[2]}, {WS}, 0 offen sc1
    s_cmp_eq_u32 s75, 0
    s_cbranch_scc1 {Lpd}
    s_mov_b64 exec, 1
    s_waitcnt vmcnt(1)
    ds_or_b32 v{t[0]}, v{t[1]} offset:{C_F}
    s_mov_b32 exec_lo, s74
    {Lpd}:
    s_waitcnt vmcnt(0)
    v_cmp_ne_u32 vcc, s{S_TAG}, v{t[3]}
    s_mov_b64 exec, -1
    s_sub_u32 s{S_SPIN}, s{S_SPIN}, 1
    s_cselect_b32 vcc_lo, 0, vcc_lo
    s_orn2_b32 s76, vcc_lo, s74
    s_mov_b32 s75, 0
    """)
    for i in range(3):
        L = a.label("og")
        a(f"""
        s_and_b32 s{sT}, s76, {0xf << (4*i)}
        s_cbranch_scc1 {L}
        s_andn2_b32 s74, s74, {0xf << (4*i)}
        s_add_u32 s{sT}, s77, {i}
        s_bitset1_b32 s75, s{sT}
        s_lshl_b32 s{sT2}, s{sT}, 12
        s_add_u32 m0, s{sT2}, {OZ}
        s_add_u32 s{sT2}, s{sT2}, s78
        """)
        for n in range(4):
            a(f"buffer_load_dwordx4 v{vL16}, {WS}, s{sT2} offen offset:{1024*n}{LD} lds")
        a(f"""
        s_lshl_b32 s{sT2}, s{sT}, 9
        s_add_u32 m0, s{sT2}, {OZ + 32768}
        s_add_u32 s{sT2}, s{sT2}, s78
        s_add_u32 s{sT2}, s{sT2}, 32768
        s_mov_b64 exec, 0xffffffff
        buffer_load_dwordx4 v{vL16}, {WS}, s{sT2} offen{LD} lds
        s_mov_b64 exec, -1
        {L}:
        """)
    a(f"""
    s_cmp_eq_u32 s75, 0
    s_cbranch_scc1 {Lpc}
    v_mov_b32 v{t[1]}, s75
    s_cmp_eq_u32 s74, 0
    s_cbranch_scc0 {Lpl}
    s_mov_b64 exec, 1
    s_waitcnt vmcnt(0)
    ds_or_b32 v{t[0]}, v{t[1]} offset:{C_F}
    s_mov_b64 exec, -1
    """)
    a.stamp(20)
    a(f"""
    s_branch {Lend}
    {Lpc}:
    s_sleep {os.environ.get('OSLEEP', '3')}
    s_branch {Lpl}
    """)
    a.c("softmax ran without max subtraction: valid only if the row sums stayed in a safe range, else redo with the true max")
    a(f"""{Lfin}:
    v_permlane32_swap_b32 v{O0+10}, v{O1+10}
    s_nop 0
    v_rcp_f32 v{t[0]}, v{O0+10}
    v_rcp_f32 v{t[2]}, v{O1+10}
    """)
    for i in range(0, 8, 2): a(f"v_pk_mul_f32 {vr(O0+i,2)}, {vr(O0+i,2)}, {vr(t[0],2)} op_sel_hi:[1,0]")
    for i in range(4): a(f"v_cvt_pk_bf16_f32 v{8+i}, v{O0+2*i}, v{O0+2*i+1}")
    a(f"buffer_store_dwordx4 v[8:11], v{vL16}, {WS}, s{sOM} offen{ST}")
    for i in range(0, 8, 2): a(f"v_pk_mul_f32 {vr(O1+i,2)}, {vr(O1+i,2)}, {vr(t[2],2)} op_sel_hi:[1,0]")
    a(f"v_cndmask_b32 v{t[0]}, v{t[2]}, v{t[0]}, s[76:77]")
    for i in range(4): a(f"v_cvt_pk_bf16_f32 v{12+i}, v{O1+2*i}, v{O1+2*i+1}")
    a(f"""
    buffer_store_dwordx4 v[12:15], v{vL16}, {WS}, s66 offen{ST}
    v_pk_mul_f32 {vr(O0+8,2)}, {vr(O0+8,2)}, {vr(t[0],2)} op_sel_hi:[1,0]
    v_cvt_pk_bf16_f32 v16, v{O0+8}, v{O0+9}
    buffer_store_dword v16, v{vXo}, {WS}, s{sOX} offen{ST}
    """)
    a.stamp(19)
    lds_inc(a, t[0], t[1], saddr=82, off=C_E)
    a(f"""
    v_min_f32 v{t[2]}, v{O0+10}, v{O1+10}
    v_max_f32 v{t[3]}, v{O0+10}, v{O1+10}
    v_cmp_le_f32 s[74:75], s72, v{t[2]}
    v_cmp_ge_f32 vcc, s73, v{t[3]}
    v_add_f32 v{t[2]}, v{O0+8}, v{O0+9}
    s_and_b64 s[74:75], s[74:75], vcc
    """)
    if 'wtlate' in EXP: lds_inc(a, t[0], t[1], off=C_O)
    for i in range(0, 8, 2):
        a(f"v_add_f32 v{O0+i}, v{O0+i}, v{O0+i+1}\nv_add_f32 v{O1+i}, v{O1+i}, v{O1+i+1}")
    a(f"""
    v_add_f32 v{O0}, v{O0}, v{O0+2}
    v_add_f32 v{O0+4}, v{O0+4}, v{O0+6}
    v_add_f32 v{O1}, v{O1}, v{O1+2}
    v_add_f32 v{O1+4}, v{O1+4}, v{O1+6}
    v_add_f32 v{O0}, v{O0}, v{O0+4}
    v_add_f32 v{O1}, v{O1}, v{O1+4}
    v_add_f32 v{t[2]}, v{t[2]}, v{O0}
    v_add_f32 v{t[2]}, v{t[2]}, v{O1}
    v_cmp_class_f32 vcc, v{t[2]}, s64
    s_and_b64 s[74:75], s[74:75], vcc
    s_or_b64 s[74:75], s[74:75], s[62:63]
    s_cmp_eq_u64 s[74:75], -1
    s_cbranch_scc0 L_fallback
    """)
    a(f"v_mov_b32 v{t[0]}, s{S_TAG}\nv_lshlrev_b32 v{t[1]}, 2, v1\ns_mov_b64 exec, 0xffff\n{'s_nop 0' if 'hintO' in EXP else 's_waitcnt vmcnt(0)'}\nbuffer_store_dword v{t[0]}, v{t[1]}, {WS}, s{sFO} offen sc1\ns_mov_b64 exec, -1")
    a.stamp(20)
    a(f"""
    s_lshl_b32 s{sT}, s2, 4
    s_add_u32 s{sT}, s{sT}, s{S_WAVE}
    s_cmp_lg_u32 s{sT}, 12
    s_cbranch_scc1 {Lend}
    s_mov_b32 s{sT2}, {FL_OFF}
    """)
    flag_store(a, t[0], sT2)
    a(f"{Lend}:")
    def cold():
        a("L_fallback:")
        lds_spin(a, t[0], t[1], 4, sT, saddr=82, off=C_E)
        fallback(a, r, t, vL16, sKV, sQP, sT, sT2)
        a(f"""
        s_mov_b32 s76, -1
        s_mov_b32 s77, 0
        s_mov_b32 s82, {CNT+12}
        s_mov_b64 s[62:63], -1
        """)
        pack()
        a(f"v_mov_b32 v{O1+10}, v{O0+10}\ns_nop 1\ns_branch {Lfin}")
    return cold

def fallback(a, r, t, vL16, sKV, sQP, sT, sT2):
    S, NM = r.S[0], r.S[1]
    sI, sP, sLds = 76, 77, 82
    vM, vKxo = r.aK, r.aKx
    a(f"""
    s_lshl_b32 s{sT}, s{sQP}, 11
    s_add_u32 s{sLds}, s{sT}, {REG_B + 3*BLK}
    v_and_b32 v{vKxo}, 31, v1
    v_lshlrev_b32 v{vKxo}, 2, v{vKxo}
    v_mov_b32 v{r.Kx+1}, 0
    """)
    for i in range(4): a(f"v_add_u32 v{r.aV+i}, s{sT}, v{r.aV+i}")
    for X in range(2):
        O = r.O[X]
        Lp, Lt, Lp2, Lnx, Ldn = a.label("fbpass"), a.label("fbtile"), a.label("fbp2"), a.label("fbnx"), a.label("fbdone")
        a(f"v_mov_b32 v{vM}, 0xff800000\ns_mov_b32 s{sP}, 0")
        for i in range(16): a(f"v_mov_b32 v{NM+i}, 0\nv_mov_b32 v{O+i}, 0")
        a(f"""{Lp}:
        s_mov_b32 s{sI}, 0
        {Lt}:
        s_lshr_b32 s{sT}, s{sI}, 3
        s_mul_i32 s{sT}, s{sT}, {BLK}
        s_add_u32 s{sT}, s{sT}, s{sKV}
        s_and_b32 s{sT2}, s{sI}, 7
        s_lshl_b32 s78, s{sT2}, 10
        s_add_u32 s78, s78, s{sT}
        buffer_load_dwordx4 {vr(r.K,4)}, v{vL16}, {WS}, s78 offen{LD}
        s_lshl_b32 s78, s{sT2}, 7
        s_add_u32 s78, s78, s{sT}
        s_add_u32 s78, s78, {KX_OFF}
        buffer_load_dword v{r.Kx}, v{vKxo}, {WS}, s78 offen{LD}
        s_mul_i32 s78, s{sT2}, 1280
        s_add_u32 s78, s78, s{sT}
        s_add_u32 s78, s78, {V_OFF}
        s_mov_b32 m0, s{sLds}
        s_nop 0
        buffer_load_dwordx4 v{vL16}, {WS}, s78 offen{LD} lds
        s_mov_b64 exec, 0xffff
        buffer_load_dwordx4 v{vL16}, {WS}, s78 offen offset:1024{LD} lds
        s_mov_b64 exec, -1
        s_waitcnt vmcnt(0)
        v_mfma_f32_32x32x8_bf16 {vr(S,16)}, {vr(r.Kx,2)}, {vr(r.Qx[X],2)}, {vr(NM,16)}
        v_mfma_f32_32x32x16_bf16 {vr(S,16)}, {vr(r.K,4)}, {vr(r.Qm[X],4)}, {vr(S,16)}
        ds_read_b64_tr_b16 {vr(r.V0,2)}, v{r.aV}
        ds_read_b64_tr_b16 {vr(r.V0+2,2)}, v{r.aV+1}
        ds_read_b64_tr_b16 {vr(r.V1,2)}, v{r.aV+2}
        ds_read_b64_tr_b16 {vr(r.V1+2,2)}, v{r.aV+3}
        s_waitcnt lgkmcnt(0)
        s_nop 15
        s_cmp_lg_u32 s{sP}, 0
        s_cbranch_scc1 {Lp2}
        """)
        for i in range(8): a(f"v_max3_f32 v{vM}, v{S+2*i}, v{S+2*i+1}, v{vM}")
        a(f"s_branch {Lnx}\n{Lp2}:")
        E(a, S, 0, 16)
        a(f"""
        s_nop 1
        v_smfmac_f32_32x32x32_bf16 {vr(O,16)}, {vr(r.V0,4)}, {vr(S,8)}, v{r.idx}
        v_smfmac_f32_32x32x32_bf16 {vr(O,16)}, {vr(r.V1,4)}, {vr(S+8,8)}, v{r.idx}
        {Lnx}:
        s_add_u32 s{sI}, s{sI}, 1
        s_cmp_lt_u32 s{sI}, 64
        s_cbranch_scc1 {Lt}
        s_cmp_lg_u32 s{sP}, 0
        s_cbranch_scc1 {Ldn}
        v_mov_b32 v{t[2]}, v{vM}
        s_nop 1
        v_permlane32_swap_b32 v{vM}, v{t[2]}
        s_nop 1
        v_max_f32 v{vM}, v{vM}, v{t[2]}
        """)
        for i in range(16): a(f"v_sub_f32 v{NM+i}, 0, v{vM}")
        a(f"""
        s_mov_b32 s{sP}, 1
        s_branch {Lp}
        {Ldn}:
        s_nop 15
        """)
```
